```python
import torch

def _softmax(x, axis=-1):
    return torch.softmax(x, dim=axis)
def _gelu(x):
    return torch.nn.functional.gelu(x, approximate="tanh")
def _silu(x):
    return torch.nn.functional.silu(x)
def _sigmoid(x):
    return torch.sigmoid(x)
def _layernorm(x, axis=-1, eps=1e-5):
    m = x.mean(dim=axis, keepdim=True)
    v = x.var(dim=axis, keepdim=True, unbiased=False)
    return (x - m) / torch.sqrt(v + eps)
def _scatter_add(tgt, idx, src, axis=0):
    return tgt.clone().index_add_(axis, idx, src)
def _segment_sum(src, seg, n):
    out = torch.zeros((n,) + src.shape[1:], dtype=src.dtype)
    return out.index_add_(0, seg, src)
def _pad(x, pw):
    flat = tuple(v for pair in reversed(pw) for v in pair)
    return torch.nn.functional.pad(x, flat)

kernel_name = 'parallel_sum__ssm_conv_h3__glu_gated_bilinear__prompt'

def setup_inputs():

    _w = (lambda a: (lambda t: t.to(torch.bfloat16) if t.is_floating_point() else t)(torch.as_tensor(a)))
    def _A_setup():
        B, S, D = 1, 2048, 512
        ks = 4
        return {
            "q": _w((lambda *s: torch.randn(*s, dtype=torch.bfloat16) * 0.05)(B, S, D)),
            "k": _w((lambda *s: torch.randn(*s, dtype=torch.bfloat16) * 0.2)(B, S, D)),
            "v": _w((lambda *s: torch.randn(*s, dtype=torch.bfloat16) * 0.2)(B, S, D)),
            "shift_k": _w((lambda *s: torch.randn(*s, dtype=torch.bfloat16) * 0.2)(D, ks) * 0.5),
            "ssm_k": _w((lambda *s: torch.randn(*s, dtype=torch.bfloat16) * 0.4)(D, S) * (1.0 / S ** 0.5)),
            "ssm_D": _w((lambda *s: torch.randn(*s, dtype=torch.bfloat16) * 0.2)(D)),
        }
    _A_in = _A_setup()

    def _B_setup():
        B, S, D, F = 1, 2048, 512, 1376
        return {
            "x": _w((lambda *s: torch.randn(*s, dtype=torch.bfloat16) * 0.05)(B, S, D)),
            "w_gate": _w((lambda *s: torch.randn(*s, dtype=torch.bfloat16) * 0.2)(D, F) * (D ** -0.5)),
            "w_up": _w((lambda *s: torch.randn(*s, dtype=torch.bfloat16) * 0.2)(D, F) * (D ** -0.5)),
            "w_down": _w((lambda *s: torch.randn(*s, dtype=torch.bfloat16) * 0.2)(F, D) * (F ** -0.5)),
        }
    _B_in = _B_setup()

    return {
        "A_q": _A_in["q"],
        "A_k": _A_in["k"],
        "A_v": _A_in["v"],
        "A_shift_k": _A_in["shift_k"],
        "A_ssm_k": _A_in["ssm_k"],
        "A_ssm_D": _A_in["ssm_D"],
        "B_x": _B_in["x"],
        "B_w_gate": _B_in["w_gate"],
        "B_w_up": _B_in["w_up"],
        "B_w_down": _B_in["w_down"],
    }

def reference(A_q, A_k, A_v, A_shift_k, A_ssm_k, A_ssm_D, B_x, B_w_gate, B_w_up, B_w_down):
    def _A_ref(q, k, v, shift_k, ssm_k, ssm_D):
        B, S, D = q.shape
        ks = shift_k.shape[-1]
        k_pad = _pad(k, ((0, 0), (ks - 1, 0), (0, 0)))
        k_shift = torch.zeros_like(k)
        for t in range(ks):
            k_shift = k_shift + k_pad[:, t:t + S, :] * shift_k[:, ks - 1 - t][None, None, :]
        kv = k_shift * v
        L = 2 * S
        kv_pad = _pad(kv, ((0, 0), (0, S), (0, 0)))
        kf_pad = _pad(ssm_k, ((0, 0), (0, S)))
        kv_f = (lambda x, axes=(-2,-1): torch.fft.rfft2(x.float(), dim=axes))(kv_pad[:, None, :, :], axes=(1, 2))
        kf_f = (lambda x, axes=(-2,-1): torch.fft.rfft2(x.float(), dim=axes))(kf_pad[:, None, :], axes=(1, 2))
        kf_f = (lambda x, *d: x.permute(*d))(kf_f, 1, 2, 0)
        y_f = kv_f * kf_f[None, :, :, :]
        y = (lambda x, s, axes=(-2,-1): torch.fft.irfft2(x, s=s, dim=axes).to(torch.bfloat16))(y_f, (1, L), axes=(1, 2))[:, 0, :S, :]
        y = y + kv * ssm_D[None, None, :]
        return q * y

    def _B_ref(x, w_gate, w_up, w_down):
        g = torch.einsum("bsd,df->bsf", x, w_gate)
        u = torch.einsum("bsd,df->bsf", x, w_up)
        h = g * u
        return torch.einsum("bsf,fd->bsd", h, w_down)

    x = A_q
    xn = _layernorm(x, axis=-1)
    return x + _A_ref(xn, A_k, A_v, A_shift_k, A_ssm_k, A_ssm_D) + _B_ref(xn, B_w_gate, B_w_up, B_w_down)
```

```python
import sys

S, D, F = 2048, 512, 1376
WS_XN = 0x000000
WS_KVR = 0x200000
WS_H = 0x400000
WS_YT = 0xA00000
H_BYTES = S * F * 2

out = []


def E(s=""):
    out.append(s)


class VM:
    def __init__(self):
        self.q = []

    def issue(self, tag):
        self.q.append(tag)

    def wait(self, tag):
        idx = -1
        for i, t in enumerate(self.q):
            if t == tag:
                idx = i
        if idx < 0:
            return
        n = len(self.q) - 1 - idx
        assert n <= 63, n
        E(f"    s_waitcnt vmcnt({n})")
        self.q = self.q[idx + 1:]

    def wait_all(self):
        E("    s_waitcnt vmcnt(0)")
        self.q = []


def srd(dst, lo, hi, nbytes):
    E(f"    s_mov_b32 s{dst}, s{lo}")
    E(f"    s_and_b32 s{dst+1}, s{hi}, 0xffff")
    E(f"    s_mov_b32 s{dst+2}, {nbytes}")
    E(f"    s_mov_b32 s{dst+3}, 0x00020000")


def srd_off(dst, lo, hi, off, nbytes):
    E(f"    s_add_u32 s{dst}, s{lo}, {off}")
    E(f"    s_addc_u32 s{dst+1}, s{hi}, 0")
    E(f"    s_and_b32 s{dst+1}, s{dst+1}, 0xffff")
    E(f"    s_mov_b32 s{dst+2}, {nbytes}")
    E(f"    s_mov_b32 s{dst+3}, 0x00020000")


def kernel_begin(name):
    E(f".globl {name}")
    E(".p2align 8")
    E(f".type {name},@function")
    E(f"{name}:")


def wave_reduce_add(v, t):
    E("    s_nop 1")
    E(f"    v_add_f32_dpp v{t}, v{v}, v{v} quad_perm:[1,0,3,2] row_mask:0xf bank_mask:0xf")
    E("    s_nop 1")
    E(f"    v_add_f32_dpp v{v}, v{t}, v{t} quad_perm:[2,3,0,1] row_mask:0xf bank_mask:0xf")
    E("    s_nop 1")
    E(f"    v_add_f32_dpp v{t}, v{v}, v{v} row_half_mirror row_mask:0xf bank_mask:0xf")
    E("    s_nop 1")
    E(f"    v_add_f32_dpp v{v}, v{t}, v{t} row_mirror row_mask:0xf bank_mask:0xf")
    E(f"    v_mov_b32 v{t}, v{v}")
    E("    s_nop 1")
    E(f"    v_permlane16_swap_b32 v{v}, v{t}")
    E("    s_nop 1")
    E(f"    v_add_f32 v{v}, v{v}, v{t}")
    E(f"    v_mov_b32 v{t}, v{v}")
    E("    s_nop 1")
    E(f"    v_permlane32_swap_b32 v{v}, v{t}")
    E("    s_nop 1")
    E(f"    v_add_f32 v{v}, v{v}, v{t}")


def round_pair(a, b, t, mask_sgpr):
    E(f"    v_cvt_pk_bf16_f32 v{t}, v{a}, v{b}")
    E(f"    v_lshlrev_b32 v{a}, 16, v{t}")
    E(f"    v_and_b32 v{b}, s{mask_sgpr}, v{t}")


def gen_prep():
    kernel_begin("prep_kernel")
    E("    s_cmp_ge_u32 s2, 768")
    E("    s_cbranch_scc1 prep_done")
    E("    s_load_dwordx2 s[4:5], s[0:1], 0")
    E("    s_load_dwordx4 s[8:11], s[0:1], 8")
    E("    s_load_dwordx2 s[12:13], s[0:1], 24")
    E("    s_load_dwordx2 s[14:15], s[0:1], 96")
    E("    s_mov_b32 s40, 0xffff0000")
    E("    s_waitcnt lgkmcnt(0)")
    E("    s_cmp_ge_u32 s2, 512")
    E("    s_cbranch_scc1 prep_kv")
    srd(16, 4, 5, S * D * 2)
    srd_off(20, 14, 15, WS_XN, S * D * 2)
    E("    s_lshl_b32 s3, s2, 12")
    E("    v_lshlrev_b32 v1, 4, v0")
    E("    v_add_u32 v1, s3, v1")
    E("    buffer_load_dwordx4 v[4:7], v1, s[16:19], 0 offen")
    E("    s_waitcnt vmcnt(0)")
    for i in range(4):
        E(f"    v_lshlrev_b32 v{8+2*i}, 16, v{4+i}")
        E(f"    v_and_b32 v{9+2*i}, s40, v{4+i}")
    E("    v_add_f32 v16, v8, v9")
    E("    v_add_f32 v17, v10, v11")
    E("    v_add_f32 v18, v12, v13")
    E("    v_add_f32 v19, v14, v15")
    E("    v_add_f32 v16, v16, v17")
    E("    v_add_f32 v18, v18, v19")
    E("    v_add_f32 v16, v16, v18")
    wave_reduce_add(16, 17)
    E("    v_mul_f32 v16, 0x3b000000, v16")
    for i in range(8):
        E(f"    v_sub_f32 v{20+i}, v{8+i}, v16")
    E("    v_mul_f32 v18, v20, v20")
    E("    v_mul_f32 v19, v21, v21")
    for i in range(2, 8, 2):
        E(f"    v_fmac_f32 v18, v{20+i}, v{20+i}")
        E(f"    v_fmac_f32 v19, v{21+i}, v{21+i}")
    E("    v_add_f32 v18, v18, v19")
    wave_reduce_add(18, 17)
    E("    v_mul_f32 v18, 0x3b000000, v18")
    round_pair(16, 18, 17, 40)
    E("    v_add_f32 v18, 0x3727c5ac, v18")
    E("    v_cvt_pk_bf16_f32 v17, v18, v18")
    E("    v_and_b32 v18, s40, v17")
    E("    v_sqrt_f32 v19, v18")
    E("    s_nop 0")
    E("    v_rcp_f32 v28, v19")
    E("    v_fma_f32 v29, -v19, v19, v18")
    E("    v_mul_f32 v28, 0.5, v28")
    E("    v_fma_f32 v19, v29, v28, v19")
    E("    v_cvt_pk_bf16_f32 v17, v19, v19")
    E("    v_and_b32 v19, s40, v17")
    E("    v_rcp_f32 v28, v19")
    for i in range(8):
        E(f"    v_sub_f32 v{20+i}, v{8+i}, v16")
    for i in range(0, 8, 2):
        round_pair(20 + i, 21 + i, 17, 40)
    for i in range(8):
        E(f"    v_mul_f32 v{8+i}, v{20+i}, v28")
    for i in range(8):
        E(f"    v_fma_f32 v{30+i}, -v{8+i}, v19, v{20+i}")
    for i in range(8):
        E(f"    v_fma_f32 v{8+i}, v{30+i}, v28, v{8+i}")
    for i in range(4):
        E(f"    v_cvt_pk_bf16_f32 v{4+i}, v{8+2*i}, v{9+2*i}")
    E("    buffer_store_dwordx4 v[4:7], v1, s[20:23], 0 offen")
    E("    s_endpgm")
    E("prep_kv:")
    srd(16, 8, 9, S * D * 2)
    srd(20, 10, 11, S * D * 2)
    srd(24, 12, 13, D * 4 * 2)
    srd_off(28, 14, 15, WS_KVR, S * D * 2)
    E("    s_sub_u32 s3, s2, 512")
    E("    s_lshr_b32 s32, s3, 3")
    E("    s_and_b32 s33, s3, 7")
    E("    v_and_b32 v1, 31, v0")
    E("    v_lshrrev_b32 v2, 5, v0")
    E("    s_lshl_b32 s34, s32, 6")
    E("    v_lshlrev_b32 v2, 3, v2")
    E("    v_add_u32 v2, s34, v2")
    E("    s_lshl_b32 s35, s33, 5")
    E("    v_add_u32 v1, s35, v1")
    E("    v_lshlrev_b32 v3, 10, v2")
    E("    v_lshlrev_b32 v4, 2, v1")
    E("    v_add_u32 v3, v3, v4")
    E("    v_add_u32 v4, 4096, v3")
    E("    v_subrev_u32 v5, 3072, v3")
    E("    v_lshlrev_b32 v6, 4, v1")
    E("    buffer_load_dwordx4 v[8:11], v6, s[24:27], 0 offen")
    for j in range(3):
        E(f"    buffer_load_dword v{12+j}, v5, s[16:19], 0 offen offset:{1024*j}")
    for j in range(4):
        E(f"    buffer_load_dword v{15+j}, v3, s[16:19], 0 offen offset:{1024*j}")
    for j in range(4):
        E(f"    buffer_load_dword v{19+j}, v4, s[16:19], 0 offen offset:{1024*j}")
    for j in range(4):
        E(f"    buffer_load_dword v{24+j}, v3, s[20:23], 0 offen offset:{1024*j}")
    for j in range(4):
        E(f"    buffer_load_dword v{28+j}, v4, s[20:23], 0 offen offset:{1024*j}")
    E("    v_lshlrev_b32 v6, 13, v1")
    E("    v_sub_u32 v7, 2040, v2")
    E("    v_lshlrev_b32 v7, 1, v7")
    E("    v_add_u32 v6, v6, v7")
    E("    v_add_u32 v7, 4096, v6")
    E("    s_waitcnt vmcnt(0)")
    for c in range(2):
        for d in range(2):
            E(f"    v_lshlrev_b32 v{32+4*c+2*d}, 16, v{8+2*c+d}")
            E(f"    v_and_b32 v{33+4*c+2*d}, s40, v{8+2*c+d}")
    for j in range(11):
        E(f"    v_lshlrev_b32 v{40+j}, 16, v{12+j}")
        E(f"    v_and_b32 v{52+j}, s40, v{12+j}")
    for j in range(8):
        E(f"    v_lshlrev_b32 v{64+j}, 16, v{24+j}")
        E(f"    v_and_b32 v{72+j}, s40, v{24+j}")
    for j in range(8):
        A0, A1, B0, B1, T = 96, 97, 98, 99, 100
        E(f"    v_mul_f32 v{A0}, v{40+j}, v35")
        E(f"    v_mul_f32 v{A1}, v{52+j}, v39")
        E(f"    v_mul_f32 v{B0}, v{41+j}, v34")
        E(f"    v_mul_f32 v{B1}, v{53+j}, v38")
        round_pair(A0, A1, T, 40)
        round_pair(B0, B1, T, 40)
        E(f"    v_add_f32 v{A0}, v{A0}, v{B0}")
        E(f"    v_add_f32 v{A1}, v{A1}, v{B1}")
        E(f"    v_mul_f32 v{B0}, v{42+j}, v33")
        E(f"    v_mul_f32 v{B1}, v{54+j}, v37")
        round_pair(A0, A1, T, 40)
        round_pair(B0, B1, T, 40)
        E(f"    v_add_f32 v{A0}, v{A0}, v{B0}")
        E(f"    v_add_f32 v{A1}, v{A1}, v{B1}")
        E(f"    v_mul_f32 v{B0}, v{43+j}, v32")
        E(f"    v_mul_f32 v{B1}, v{55+j}, v36")
        round_pair(A0, A1, T, 40)
        round_pair(B0, B1, T, 40)
        E(f"    v_add_f32 v{A0}, v{A0}, v{B0}")
        E(f"    v_add_f32 v{A1}, v{A1}, v{B1}")
        round_pair(A0, A1, T, 40)
        E(f"    v_mul_f32 v{80+j}, v{A0}, v{64+j}")
        E(f"    v_mul_f32 v{88+j}, v{A1}, v{72+j}")
    for c in range(2):
        for jj in range(4):
            E(f"    v_cvt_pk_bf16_f32 v{104+4*c+jj}, v{80+8*c+7-2*jj}, v{80+8*c+6-2*jj}")
    E("    buffer_store_dwordx4 v[104:107], v6, s[28:31], 0 offen")
    E("    buffer_store_dwordx4 v[108:111], v7, s[28:31], 0 offen")
    E("prep_done:")
    E("    s_endpgm")


COPY_BYTES = 4240
_order = [(1, 0), (0, 11), (2, 4), (5, 0), (4, 12), (3, 8), (6, 4), (7, 8)]
COPY_BASE = {}
_pos = 0
for _b, _beta in _order:
    while (_pos // 16) % 16 != _beta:
        _pos += 16
    COPY_BASE[_b] = _pos
    _pos += COPY_BYTES
KV_OFF = (_pos + 15) // 16 * 16
CH_BYTES = (KV_OFF + 33 * 144 + 255) // 256 * 256
MAIN_LDS = max(2 * CH_BYTES, 65536)
assert MAIN_LDS <= 81920, MAIN_LDS


def gen_gemm1_path(nt):
    vm = VM()
    XA = 64
    ACC_G = 192
    ACC_U = 208
    WF = 224
    V_DMA = 10
    V_TR = 11
    V_ST = 12
    nstages = nt * 4

    def issue_dma(stage):
        tau, kq = stage // 4, stage % 4
        buf = stage % 4
        for j in range(4):
            soff = (kq * 128 + 16 * j) * 2752 + tau * 64
            E(f"    s_add_u32 s38, s36, {soff}")
            E(f"    s_add_u32 m0, s37, {buf*16384 + j*1024}")
            E("    s_nop 0")
            E(f"    buffer_load_dwordx4 v{V_DMA}, s[16:19], s38 offen lds")
            vm.issue(("dma", stage))

    for st in range(min(3, nstages)):
        issue_dma(st)
    for ks in range(32):
        E(f"    buffer_load_dwordx4 v[{XA+4*ks}:{XA+4*ks+3}], v13, s[20:23], 0 offen offset:{32*ks}")
        vm.issue(("xn", ks // 8))

    def trread(setidx, mat, buf, ks):
        base = buf * 16384 + mat * 8192 + ks * 1024
        r = WF + 4 * setidx
        E(f"    ds_read_b64_tr_b16 v[{r}:{r+1}], v{V_TR} offset:{base}")
        E(f"    ds_read_b64_tr_b16 v[{r+2}:{r+3}], v{V_TR} offset:{base+256}")

    for stage in range(nstages):
        tau, kq = stage // 4, stage % 4
        buf = stage % 4
        vm.wait(("dma", stage))
        E("    s_barrier")
        if stage + 3 < nstages:
            issue_dma(stage + 3)
        if tau == 0:
            vm.wait(("xn", kq))
        trread(0, 0, buf, 0)
        trread(1, 1, buf, 0)
        for ks in range(8):
            cur = (ks % 2) * 2
            nxt = ((ks + 1) % 2) * 2
            if ks + 1 < 8:
                trread(nxt, 0, buf, ks + 1)
                trread(nxt + 1, 1, buf, ks + 1)
                E("    s_waitcnt lgkmcnt(4)")
            else:
                E("    s_waitcnt lgkmcnt(0)")
            kk = kq * 8 + ks
            xa = XA + 4 * kk
            first = (kq == 0 and ks == 0)
            cg = "0" if first else f"v[{ACC_G}:{ACC_G+15}]"
            cu = "0" if first else f"v[{ACC_U}:{ACC_U+15}]"
            wg = WF + 4 * cur
            wu = WF + 4 * (cur + 1)
            E(f"    v_mfma_f32_32x32x16_bf16 v[{ACC_G}:{ACC_G+15}], v[{wg}:{wg+3}], v[{xa}:{xa+3}], {cg}")
            E(f"    v_mfma_f32_32x32x16_bf16 v[{ACC_U}:{ACC_U+15}], v[{wu}:{wu+3}], v[{xa}:{xa+3}], {cu}")
        if kq == 3:
            E("    s_nop 15")
            T = 14
            for j in range(0, 16, 2):
                round_pair(ACC_G + j, ACC_G + j + 1, T, 40)
                round_pair(ACC_U + j, ACC_U + j + 1, T, 40)
            for j in range(16):
                E(f"    v_mul_f32 v{ACC_G+j}, v{ACC_G+j}, v{ACC_U+j}")
            P = 16
            for j in range(8):
                E(f"    v_cvt_pk_bf16_f32 v{P+j}, v{ACC_G+2*j}, v{ACC_G+2*j+1}")
            E("    s_nop 1")
            for pair in range(2):
                q0 = P + 4 * pair
                E(f"    v_permlane32_swap_b32 v{q0}, v{q0+2}")
                E(f"    v_permlane32_swap_b32 v{q0+1}, v{q0+3}")
            for pair in range(2):
                q0 = P + 4 * pair
                E(f"    buffer_store_dwordx4 v[{q0}:{q0+3}], v{V_ST}, s[24:27], s36 offen offset:{tau*64 + pair*32}")
                vm.issue(("st", tau))
            E("    s_nop 1")
    E("    s_endpgm")


def gen_main():
    kernel_begin("main_kernel")
    E("    s_cmp_ge_u32 s2, 512")
    E("    s_cbranch_scc1 main_done")
    E("    s_load_dwordx4 s[4:7], s[0:1], 56")
    E("    s_load_dwordx4 s[8:11], s[0:1], 32")
    E("    s_load_dwordx2 s[12:13], s[0:1], 96")
    E("    s_mov_b32 s40, 0xffff0000")
    E("    v_and_b32 v1, 63, v0")
    E("    v_lshrrev_b32 v2, 6, v0")
    E("    s_nop 0")
    E("    v_readfirstlane_b32 s3, v2")
    E("    s_waitcnt lgkmcnt(0)")
    E("    s_cmp_ge_u32 s2, 256")
    E("    s_cbranch_scc1 main_conv")
    E("    s_and_b32 s30, s2, 7")
    E("    s_lshl_b32 s30, s30, 1")
    E("    s_bfe_u32 s31, s2, 0x10003")
    E("    s_add_u32 s30, s30, s31")
    E("    s_lshr_b32 s31, s2, 4")
    E("    s_cmp_ge_u32 s3, 2")
    E("    s_cselect_b32 s14, s6, s4")
    E("    s_cselect_b32 s15, s7, s5")
    srd(16, 14, 15, D * F * 2)
    srd_off(20, 12, 13, WS_XN, S * D * 2)
    srd_off(24, 12, 13, WS_H, H_BYTES)
    E("    s_lshl_b32 s32, s30, 7")
    E("    s_lshl_b32 s33, s3, 5")
    E("    s_add_u32 s32, s32, s33")
    E("    v_and_b32 v3, 31, v1")
    E("    v_add_u32 v3, s32, v3")
    E("    v_lshrrev_b32 v4, 5, v1")
    E("    v_lshlrev_b32 v13, 10, v3")
    E("    v_lshlrev_b32 v5, 4, v4")
    E("    v_add_u32 v13, v13, v5")
    E("    s_movk_i32 s34, 2752")
    E("    v_mul_lo_u32 v12, v3, s34")
    E("    v_add_u32 v12, v12, v5")
    E("    s_and_b32 s35, s3, 1")
    E("    s_lshl_b32 s35, s35, 6")
    E("    v_lshrrev_b32 v6, 2, v1")
    E("    v_add_u32 v6, s35, v6")
    E("    v_mul_lo_u32 v10, v6, s34")
    E("    v_and_b32 v7, 3, v1")
    E("    v_lshlrev_b32 v7, 4, v7")
    E("    v_add_u32 v10, v10, v7")
    E("    s_lshr_b32 s37, s3, 1")
    E("    s_lshl_b32 s37, s37, 13")
    E("    s_lshl_b32 s35, s35, 6")
    E("    s_add_u32 s37, s37, s35")
    E("    v_and_b32 v6, 15, v1")
    E("    v_lshrrev_b32 v7, 2, v6")
    E("    v_lshl_add_u32 v7, v4, 3, v7")
    E("    v_lshlrev_b32 v11, 6, v7")
    E("    v_bfe_u32 v7, v1, 4, 1")
    E("    v_lshl_add_u32 v11, v7, 5, v11")
    E("    v_and_b32 v7, 3, v6")
    E("    v_lshl_add_u32 v11, v7, 3, v11")
    E("    s_cmp_lt_u32 s31, 11")
    E("    s_cbranch_scc0 main_g2")
    E("    s_mul_i32 s36, s31, 192")
    gen_gemm1_path(3)
    E("main_g2:")
    E("    s_lshl_b32 s36, s31, 7")
    E("    s_add_u32 s36, s36, 704")
    gen_gemm1_path(2)

    E("main_conv:")
    vm = VM()
    E("    s_sub_u32 s30, s2, 256")
    E("    s_lshl_b32 s30, s30, 1")
    E("    s_lshr_b32 s31, s3, 1")
    E("    s_add_u32 s30, s30, s31")
    E("    s_and_b32 s32, s3, 1")
    E("    s_lshl_b32 s33, s30, 12")
    srd_off(16, 8, 9, "s33", 4096)
    E("    s_add_u32 s34, s33, %d" % WS_KVR)
    srd_off(20, 12, 13, "s34", 4096)
    E("    s_add_u32 s34, s33, %d" % WS_YT)
    srd_off(24, 12, 13, "s34", 4096)
    srd(44, 10, 11, D * 2)
    E(f"    s_mul_i32 s35, s31, {CH_BYTES}")
    E("    s_lshl_b32 s36, s32, 6")
    E("    v_add_u32 v3, s36, v1")
    E("    v_lshlrev_b32 v4, 5, v3")
    E("    v_subrev_u32 v4, 16, v4")
    E("    buffer_load_dwordx4 v[16:19], v4, s[16:19], 0 offen")
    E("    v_lshlrev_b32 v5, 5, v3")
    E("    buffer_load_dwordx4 v[20:23], v5, s[16:19], 0 offen")
    E("    buffer_load_dwordx4 v[24:27], v5, s[16:19], 0 offen offset:16")
    E("    v_lshlrev_b32 v6, 4, v3")
    E("    buffer_load_dwordx4 v[28:31], v6, s[20:23], 0 offen")
    E("    buffer_load_dwordx4 v[32:35], v6, s[20:23], 0 offen offset:2048")
    E("    s_lshl_b32 s36, s30, 1")
    E("    v_mov_b32 v7, s36")
    E("    buffer_load_ushort v9, v7, s[44:47], 0 offen")
    E("    v_mov_b32 v36, 0")
    E("    v_mov_b32 v37, 0")
    E("    v_mov_b32 v38, 0")
    E("    v_mov_b32 v39, 0")
    E("    v_lshlrev_b32 v7, 4, v1")
    E("    v_add_u32 v7, s35, v7")
    E("    s_mov_b64 exec, 0x7f")
    for b in range(8):
        E(f"    ds_write_b128 v7, v[36:39] offset:{COPY_BASE[b]}")
    E("    s_mov_b64 exec, 0xff")
    E(f"    ds_write_b128 v7, v[36:39] offset:{KV_OFF + 32*144}")
    E("    s_mov_b64 exec, -1")
    E("    v_lshlrev_b32 v7, 5, v3")
    E("    v_add_u32 v7, s35, v7")
    E("    v_lshrrev_b32 v8, 3, v3")
    E("    v_mul_u32_u24 v8, 144, v8")
    E("    v_and_b32 v10, 7, v3")
    E("    v_lshl_add_u32 v8, v10, 4, v8")
    E("    v_add_u32 v8, s35, v8")
    E("    s_waitcnt vmcnt(3)")
    for u in range(2):
        e = 16 + 4 * u
        for b in range(8):
            off = COPY_BASE[b] + 112 + 16 * u
            if b % 2 == 0 and (b // 2) % 2 == 0:
                r = e + b // 2
                E(f"    ds_write_b128 v7, v[{r}:{r+3}] offset:{off}")
            else:
                t = 40 + 4 * ((u * 8 + b) % 4)
                for d in range(4):
                    if b % 2 == 0:
                        E(f"    v_mov_b32 v{t+d}, v{e + b//2 + d}")
                    else:
                        be = (b - 1) // 2
                        E(f"    v_alignbyte_b32 v{t+d}, v{e+be+d+1}, v{e+be+d}, 2")
                E(f"    ds_write_b128 v7, v[{t}:{t+3}] offset:{off}")
    E(f"    ds_write_b128 v7, v[24:27] offset:{COPY_BASE[0] + 112 + 32}")
    E("    s_waitcnt vmcnt(1)")
    E(f"    ds_write_b128 v8, v[28:31] offset:{KV_OFF}")
    E(f"    ds_write_b128 v8, v[32:35] offset:{KV_OFF + 16*144}")
    E("    v_and_b32 v3, 31, v1")
    E("    v_lshrrev_b32 v4, 5, v1")
    E("    v_add_u32 v5, 1, v3")
    E("    v_and_b32 v6, 7, v5")
    E("    v_lshrrev_b32 v5, 3, v5")
    E("    v_sub_u32 v5, v5, v4")
    E("    v_add_u32 v5, 1, v5")
    E("    v_lshlrev_b32 v5, 4, v5")
    E("    v_mov_b32 v10, 0")
    for b in range(8):
        E(f"    v_cmp_eq_u32 vcc, {b}, v6")
        E(f"    v_mov_b32 v11, {COPY_BASE[b]}")
        E("    s_nop 0")
        E("    v_cndmask_b32 v10, v10, v11, vcc")
    E("    v_add_u32 v10, v10, v5")
    E("    s_lshl_b32 s36, s32, 11")
    E("    s_add_u32 s36, s36, s35")
    E("    v_add_u32 v10, s36, v10")
    E("    v_sub_u32 v5, 31, v3")
    E("    s_lshl_b32 s36, s32, 4")
    E("    v_add_u32 v5, s36, v5")
    E("    v_mul_u32_u24 v5, 144, v5")
    E("    v_lshlrev_b32 v6, 4, v4")
    E("    v_sub_u32 v5, v5, v6")
    E(f"    s_add_u32 s36, s35, {KV_OFF + 16}")
    E("    v_add_u32 v11, s36, v5")
    E(f"    s_add_u32 s36, s36, {144*32}")
    E("    v_sub_u32 v12, s36, v6")
    E("    s_waitcnt lgkmcnt(0)")
    E("    s_barrier")
    FA = 64
    FB = 112
    ACC = 144

    def fslot(t):
        return FA + 4 * ((t + 3) % 12)

    def load_A(t):
        r = fslot(t)
        E(f"    ds_read_b128 v[{r}:{r+3}], v10 offset:{32*(t+3)}")

    def load_B(dl):
        E(f"    v_add_u32 v13, {144*dl}, v11")
        E("    v_min_u32 v13, v13, v12")
        for q in range(4):
            r = FB + 16 * (dl % 2) + 4 * q
            E(f"    ds_read_b128 v[{r}:{r+3}], v13 offset:{32*(3-q)}")

    for t in range(-3, 3):
        load_A(t)
    load_B(0)
    for dl in range(16):
        E("    s_waitcnt lgkmcnt(0)")
        if dl + 1 < 16:
            for t in range(4 * dl + 3, 4 * dl + 7):
                load_A(t)
            load_B(dl + 1)
        for q in range(4):
            for p in range(2):
                a = fslot(4 * dl + 2 * p - q)
                b = FB + 16 * (dl % 2) + 4 * q
                c = "0" if (dl == 0 and q == 0) else f"v[{ACC+16*p}:{ACC+16*p+15}]"
                E(f"    v_mfma_f32_32x32x16_bf16 v[{ACC+16*p}:{ACC+16*p+15}], v[{a}:{a+3}], v[{b}:{b+3}], {c}")
    E("    s_barrier")
    E("    v_lshlrev_b32 v13, 4, v1")
    E("    v_add_u32 v13, s35, v13")
    E("    s_lshl_b32 s36, s32, 12")
    E("    v_add_u32 v14, s36, v13")
    E("    s_xor_b32 s36, s36, 4096")
    E("    v_add_u32 v13, s36, v13")
    E("    s_nop 7")
    E("    s_cmp_eq_u32 s32, 0")
    E("    s_cbranch_scc1 conv_hw0")
    for jq in range(4):
        E(f"    ds_write_b128 v13, v[{ACC+4*jq}:{ACC+4*jq+3}] offset:{1024*jq}")
    for j in range(16):
        E(f"    v_mov_b32 v{64+j}, v{ACC+16+j}")
    E("    s_branch conv_x")
    E("conv_hw0:")
    for jq in range(4):
        E(f"    ds_write_b128 v13, v[{ACC+16+4*jq}:{ACC+16+4*jq+3}] offset:{1024*jq}")
    for j in range(16):
        E(f"    v_mov_b32 v{64+j}, v{ACC+j}")
    E("conv_x:")
    E("    s_waitcnt lgkmcnt(0)")
    E("    s_barrier")
    for jq in range(4):
        E(f"    ds_read_b128 v[{80+4*jq}:{80+4*jq+3}], v14 offset:{1024*jq}")
    E("    v_sub_u32 v5, 31, v3")
    E("    v_mul_u32_u24 v5, 144, v5")
    E("    v_lshlrev_b32 v6, 3, v4")
    E("    v_sub_u32 v5, v5, v6")
    E("    s_lshl_b32 s36, s32, 6")
    E(f"    s_sub_u32 s36, {KV_OFF + 120 - 48}, s36")
    E("    s_add_u32 s36, s36, s35")
    E("    v_add_u32 v5, s36, v5")
    for jq in range(4):
        E(f"    ds_read_b64 v[{96+2*jq}:{96+2*jq+1}], v5 offset:{16*(3-jq)}")
    E("    v_lshlrev_b32 v6, 7, v3")
    E("    v_lshl_add_u32 v6, v4, 3, v6")
    E("    s_lshl_b32 s36, s32, 6")
    E("    v_add_u32 v6, s36, v6")
    E("    s_waitcnt vmcnt(0)")
    E("    v_lshlrev_b32 v9, 16, v9")
    E("    s_waitcnt lgkmcnt(0)")
    for j in range(16):
        E(f"    v_add_f32 v{64+j}, v{64+j}, v{80+j}")
    for jq in range(4):
        k0, k1, k2, k3 = 104, 105, 106, 107
        E(f"    v_and_b32 v{k0}, s40, v{97+2*jq}")
        E(f"    v_lshlrev_b32 v{k1}, 16, v{97+2*jq}")
        E(f"    v_and_b32 v{k2}, s40, v{96+2*jq}")
        E(f"    v_lshlrev_b32 v{k3}, 16, v{96+2*jq}")
        for kk in (k0, k1, k2, k3):
            E(f"    v_mul_f32 v{kk}, v{kk}, v9")
        round_pair(k0, k1, 108, 40)
        round_pair(k2, k3, 108, 40)
        y = 64 + 4 * jq
        round_pair(y, y + 1, 108, 40)
        round_pair(y + 2, y + 3, 108, 40)
        for e_, kk in enumerate((k0, k1, k2, k3)):
            E(f"    v_add_f32 v{y+e_}, v{y+e_}, v{kk}")
        E(f"    v_cvt_pk_bf16_f32 v{110+2*jq}, v{y}, v{y+1}")
        E(f"    v_cvt_pk_bf16_f32 v{111+2*jq}, v{y+2}, v{y+3}")
        E(f"    buffer_store_dwordx2 v[{110+2*jq}:{111+2*jq}], v6, s[24:27], 0 offen offset:{16*jq}")
    E("main_done:")
    E("    s_endpgm")


NSLOT = 8
FIN_YOFF = NSLOT * 16384
FIN_LDS = FIN_YOFF + 8192


def gen_fin():
    kernel_begin("fin_kernel")
    vm = VM()
    E("    s_cmp_ge_u32 s2, 256")
    E("    s_cbranch_scc1 fin_done")
    E("    s_load_dwordx2 s[4:5], s[0:1], 0")
    E("    s_load_dwordx4 s[8:11], s[0:1], 72")
    E("    s_load_dwordx2 s[12:13], s[0:1], 96")
    E("    s_mov_b32 s40, 0xffff0000")
    E("    v_and_b32 v1, 63, v0")
    E("    v_lshrrev_b32 v2, 6, v0")
    E("    s_nop 0")
    E("    v_readfirstlane_b32 s3, v2")
    E("    s_waitcnt lgkmcnt(0)")
    E("    s_and_b32 s30, s2, 7")
    E("    s_bfe_u32 s31, s2, 0x20003")
    E("    s_lshl_b32 s31, s31, 3")
    E("    s_add_u32 s30, s30, s31")
    E("    s_lshr_b32 s31, s2, 5")
    E("    s_and_b32 s32, s3, 1")
    E("    s_lshr_b32 s33, s3, 1")
    srd(16, 8, 9, F * D * 2)
    srd_off(20, 12, 13, WS_H, H_BYTES)
    srd(24, 4, 5, S * D * 2)
    srd_off(44, 12, 13, WS_XN, S * D * 2)
    srd_off(48, 12, 13, WS_YT, S * D * 2)
    srd(52, 10, 11, S * D * 2)
    E("    v_lshrrev_b32 v3, 3, v1")
    E("    s_lshl_b32 s34, s3, 5")
    E("    v_add_u32 v3, s34, v3")
    E("    v_lshlrev_b32 v10, 10, v3")
    E("    v_and_b32 v4, 7, v1")
    E("    v_bfe_u32 v5, v1, 4, 1")
    E("    v_lshlrev_b32 v5, 2, v5")
    E("    v_xor_b32 v4, v4, v5")
    E("    v_lshl_add_u32 v10, v4, 4, v10")
    E("    s_lshl_b32 s34, s31, 7")
    E("    v_add_u32 v10, s34, v10")
    E("    s_lshl_b32 s37, s3, 12")
    E("    v_lshrrev_b32 v3, 3, v1")
    E("    s_lshl_b32 s34, s31, 6")
    E("    s_lshl_b32 s35, s3, 4")
    E("    s_add_u32 s34, s34, s35")
    E("    v_add_u32 v3, s34, v3")
    E("    v_lshlrev_b32 v9, 12, v3")
    E("    v_and_b32 v4, 7, v1")
    E("    v_lshl_add_u32 v9, v4, 4, v9")
    E("    s_lshl_b32 s34, s30, 7")
    E("    v_add_u32 v9, s34, v9")
    E("    s_lshl_b32 s35, s3, 11")
    for j in range(2):
        E(f"    s_add_u32 m0, s35, {FIN_YOFF + 1024*j}")
        E(f"    s_mov_b32 s38, {8*4096*j}")
        E(f"    buffer_load_dwordx4 v9, s[48:51], s38 offen lds")
        vm.issue("y")
    nch = 11

    def issue_dma(c):
        slot = c % NSLOT
        for j in range(4):
            E(f"    s_mov_b32 s38, {(128*c + 8*j)*1024}")
            E(f"    s_add_u32 m0, s37, {slot*16384 + j*1024}")
            E("    s_nop 0")
            E("    buffer_load_dwordx4 v10, s[16:19], s38 offen lds")
            vm.issue(("dma", c))

    HF = 64

    def issue_h(c):
        nk = 8 if c < 10 else 6
        E(f"    s_mov_b32 s39, {256*c}")
        for ks in range(nk):
            r = HF + 32 * (c % 3) + 4 * ks
            E(f"    buffer_load_dwordx4 v[{r}:{r+3}], v12, s[20:23], s39 offen offset:{32*ks}")
            vm.issue(("h", c))

    E("    v_and_b32 v3, 31, v1")
    E("    s_lshl_b32 s34, s30, 6")
    E("    s_lshl_b32 s35, s32, 5")
    E("    s_add_u32 s34, s34, s35")
    E("    v_add_u32 v3, s34, v3")
    E("    v_lshrrev_b32 v4, 5, v1")
    E("    s_movk_i32 s35, 2752")
    E("    v_mul_lo_u32 v12, v3, s35")
    E("    v_lshl_add_u32 v12, v4, 4, v12")
    issue_dma(0)
    issue_h(0)
    issue_dma(1)
    issue_h(1)
    for c in range(2, NSLOT - 1):
        issue_dma(c)
    E("    v_lshlrev_b32 v13, 10, v3")
    E("    v_lshl_add_u32 v13, v4, 3, v13")
    E("    s_lshl_b32 s34, s31, 7")
    E("    s_lshl_b32 s35, s33, 6")
    E("    s_add_u32 s34, s34, s35")
    E("    v_add_u32 v13, s34, v13")
    XR, NR = 176, 184
    for jq in range(4):
        E(f"    buffer_load_dwordx2 v[{XR+2*jq}:{XR+2*jq+1}], v13, s[24:27], 0 offen offset:{16*jq}")
        vm.issue("x")
    for jq in range(4):
        E(f"    buffer_load_dwordx2 v[{NR+2*jq}:{NR+2*jq+1}], v13, s[44:47], 0 offen offset:{16*jq}")
        vm.issue("x")
    E("    v_and_b32 v5, 15, v1")
    E("    v_lshrrev_b32 v6, 2, v5")
    E("    v_lshl_add_u32 v6, v4, 3, v6")
    E("    v_lshlrev_b32 v11, 7, v6")
    E("    v_bfe_u32 v6, v1, 4, 1")
    E("    v_lshlrev_b32 v6, 5, v6")
    E("    v_and_b32 v7, 3, v5")
    E("    v_lshl_add_u32 v6, v7, 3, v6")
    E("    s_lshl_b32 s35, s33, 6")
    E("    v_add_u32 v6, s35, v6")
    E("    v_bfe_u32 v7, v1, 3, 1")
    E("    v_lshlrev_b32 v7, 6, v7")
    E("    v_xor_b32 v6, v6, v7")
    E("    v_add_u32 v11, v11, v6")
    ACC = 160
    WF = 16

    def trread(setidx, ks):
        r = WF + 4 * setidx
        E(f"    ds_read_b64_tr_b16 v[{r}:{r+1}], v14 offset:{ks*2048}")
        E(f"    ds_read_b64_tr_b16 v[{r+2}:{r+3}], v14 offset:{ks*2048+512}")

    for c in range(nch):
        slot = c % NSLOT
        nk = 8 if c < 10 else 6
        vm.wait(("dma", c))
        E("    s_barrier")
        if c + NSLOT - 1 < nch:
            issue_dma(c + NSLOT - 1)
        E(f"    v_add_u32 v14, {slot*16384}, v11")
        trread(0, 0)
        vm.wait(("h", c))
        if c + 2 < nch:
            issue_h(c + 2)
        for ks in range(nk):
            if ks + 1 < nk:
                trread((ks + 1) % 2, ks + 1)
                E("    s_waitcnt lgkmcnt(2)")
            else:
                E("    s_waitcnt lgkmcnt(0)")
            w = WF + 4 * (ks % 2)
            hfr = HF + 32 * (c % 3) + 4 * ks
            cc = "0" if (c == 0 and ks == 0) else f"v[{ACC}:{ACC+15}]"
            E(f"    v_mfma_f32_32x32x16_bf16 v[{ACC}:{ACC+15}], v[{w}:{w+3}], v[{hfr}:{hfr+3}], {cc}")
    E("    v_lshrrev_b32 v6, 2, v5")
    E("    v_lshl_add_u32 v6, v4, 2, v6")
    E("    s_lshl_b32 s35, s33, 5")
    E("    v_add_u32 v6, s35, v6")
    E("    v_lshlrev_b32 v14, 7, v6")
    E("    v_bfe_u32 v6, v1, 4, 1")
    E("    v_lshlrev_b32 v6, 5, v6")
    E("    v_and_b32 v7, 3, v5")
    E("    v_lshl_add_u32 v6, v7, 3, v6")
    E("    s_lshl_b32 s35, s32, 6")
    E("    v_add_u32 v6, s35, v6")
    E("    v_add_u32 v14, v14, v6")
    E(f"    v_add_u32 v14, {FIN_YOFF}, v14")
    YR = 24
    for jq in range(4):
        E(f"    ds_read_b64_tr_b16 v[{YR+2*jq}:{YR+2*jq+1}], v14 offset:{jq*1024}")
    vm.wait_all()
    E("    s_waitcnt lgkmcnt(0)")
    E("    s_nop 7")
    for jq in range(4):
        a = ACC + 4 * jq
        t = 32
        xs = [t, t + 1, t + 2, t + 3]
        ns = [t + 4, t + 5, t + 6, t + 7]
        ys = [t + 8, t + 9, t + 10, t + 11]
        for (dst, src) in ((xs, XR + 2 * jq), (ns, NR + 2 * jq), (ys, YR + 2 * jq)):
            E(f"    v_lshlrev_b32 v{dst[0]}, 16, v{src}")
            E(f"    v_and_b32 v{dst[1]}, s40, v{src}")
            E(f"    v_lshlrev_b32 v{dst[2]}, 16, v{src+1}")
            E(f"    v_and_b32 v{dst[3]}, s40, v{src+1}")
        for e_ in range(4):
            E(f"    v_mul_f32 v{ns[e_]}, v{ns[e_]}, v{ys[e_]}")
        round_pair(ns[0], ns[1], t + 12, 40)
        round_pair(ns[2], ns[3], t + 12, 40)
        for e_ in range(4):
            E(f"    v_add_f32 v{xs[e_]}, v{xs[e_]}, v{ns[e_]}")
        round_pair(xs[0], xs[1], t + 12, 40)
        round_pair(xs[2], xs[3], t + 12, 40)
        round_pair(a, a + 1, t + 12, 40)
        round_pair(a + 2, a + 3, t + 12, 40)
        for e_ in range(4):
            E(f"    v_add_f32 v{xs[e_]}, v{xs[e_]}, v{a+e_}")
        o = 48 + 2 * jq
        E(f"    v_cvt_pk_bf16_f32 v{o}, v{xs[0]}, v{xs[1]}")
        E(f"    v_cvt_pk_bf16_f32 v{o+1}, v{xs[2]}, v{xs[3]}")
        E(f"    buffer_store_dwordx2 v[{o}:{o+1}], v13, s[52:55], 0 offen offset:{16*jq}")
    E("fin_done:")
    E("    s_endpgm")


def descriptor(name, vgpr, sgpr=64):
    E(f".amdhsa_kernel {name}")
    E(f"  .amdhsa_next_free_vgpr {vgpr}")
    E(f"  .amdhsa_next_free_sgpr {sgpr}")
    E(f"  .amdhsa_accum_offset {(vgpr + 3)//4*4}")
    E("  .amdhsa_group_segment_fixed_size 0")
    E("  .amdhsa_kernarg_size 104")
    E("  .amdhsa_user_sgpr_count 2")
    E("  .amdhsa_user_sgpr_kernarg_segment_ptr 1")
    E("  .amdhsa_system_sgpr_workgroup_id_x 1")
    E(".end_amdhsa_kernel")


def main():
    hdr = open("parallel_sum__ssm_conv_h3__glu_gated_bilinear__prompt.s.ref").read().splitlines()
    for l in hdr:
        if l.startswith("; Override") or l.startswith("; grid=") or l.startswith("; @launch"):
            continue
        if not l.startswith(";"):
            break
        E(l)
    E("; @launch kernel=prep_kernel grid=(768,1,1) block=(256,1,1) lds=0")
    E(f"; @launch kernel=main_kernel grid=(512,1,1) block=(256,1,1) lds={MAIN_LDS}")
    E(f"; @launch kernel=fin_kernel grid=(256,1,1) block=(256,1,1) lds={FIN_LDS}")
    E('.amdgcn_target "amdgcn-amd-amdhsa--gfx950"')
    E(".text")
    gen_prep()
    gen_main()
    gen_fin()
    E('.section .rodata,"a"')
    E(".p2align 6")
    descriptor("prep_kernel", 112)
    E(".p2align 6")
    descriptor("main_kernel", 240)
    E(".p2align 6")
    descriptor("fin_kernel", 192)
    path = sys.argv[1] if len(sys.argv) > 1 else "parallel_sum__ssm_conv_h3__glu_gated_bilinear__prompt.s"
    open(path, "w").write("\n".join(out) + "\n")
    print("wrote", path, len(out), "lines; MAIN_LDS", MAIN_LDS, "FIN_LDS", FIN_LDS, "COPY_BASE", COPY_BASE, "KV_OFF", KV_OFF, "CH_BYTES", CH_BYTES)


main()
```

```python
import sys

S, D, F = 2048, 512, 1376
WS_XN = 0x000000
WS_KVR = 0x200000
WS_H = 0x400000
WS_YT = 0xA00000
H_BYTES = S * F * 2

out = []


def E(s=""):
    out.append(s)


class VM:
    def __init__(self):
        self.q = []

    def issue(self, tag):
        self.q.append(tag)

    def wait(self, tag):
        idx = -1
        for i, t in enumerate(self.q):
            if t == tag:
                idx = i
        if idx < 0:
            return
        n = len(self.q) - 1 - idx
        assert n <= 63, n
        E(f"    s_waitcnt vmcnt({n})")
        self.q = self.q[idx + 1:]

    def wait_all(self):
        E("    s_waitcnt vmcnt(0)")
        self.q = []


DIAG = len(sys.argv) > 2 and sys.argv[2] == "diag"
STAMP_WS = 0x2000000


def stamp_init(kidx, ws_lo, ws_hi):
    if not DIAG:
        return
    E(f"    s_add_u32 s56, s{ws_lo}, {STAMP_WS + kidx*1024*4*32*4}")
    E(f"    s_addc_u32 s57, s{ws_hi}, 0")
    E("    s_and_b32 s57, s57, 0xffff")
    E("    s_mov_b32 s58, 0x80000")
    E("    s_mov_b32 s59, 0x00020000")
    E("    s_lshl_b32 s60, s2, 2")
    E("    s_add_u32 s60, s60, s3")
    E("    s_lshl_b32 s60, s60, 7")
    E("    v_mov_b32 v254, s60")


def stamp(slot, vm=None):
    if not DIAG:
        return
    E("    s_waitcnt lgkmcnt(0)")
    E("    s_memtime s[62:63]")
    E("    s_waitcnt lgkmcnt(0)")
    E("    v_mov_b32 v255, s62")
    E("    s_mov_b64 s[60:61], exec")
    E("    s_mov_b64 exec, 1")
    E(f"    buffer_store_dword v255, v254, s[56:59], 0 offen offset:{4*slot}")
    E("    s_mov_b64 exec, s[60:61]")
    if vm is not None:
        vm.issue("stamp")


def srd(dst, lo, hi, nbytes):
    E(f"    s_mov_b32 s{dst}, s{lo}")
    E(f"    s_and_b32 s{dst+1}, s{hi}, 0xffff")
    E(f"    s_mov_b32 s{dst+2}, {nbytes}")
    E(f"    s_mov_b32 s{dst+3}, 0x00020000")


def srd_off(dst, lo, hi, off, nbytes):
    E(f"    s_add_u32 s{dst}, s{lo}, {off}")
    E(f"    s_addc_u32 s{dst+1}, s{hi}, 0")
    E(f"    s_and_b32 s{dst+1}, s{dst+1}, 0xffff")
    E(f"    s_mov_b32 s{dst+2}, {nbytes}")
    E(f"    s_mov_b32 s{dst+3}, 0x00020000")


def kernel_begin(name):
    E(f".globl {name}")
    E(".p2align 8")
    E(f".type {name},@function")
    E(f"{name}:")


def wave_reduce_add(v, t):
    E("    s_nop 1")
    E(f"    v_add_f32_dpp v{t}, v{v}, v{v} quad_perm:[1,0,3,2] row_mask:0xf bank_mask:0xf")
    E("    s_nop 1")
    E(f"    v_add_f32_dpp v{v}, v{t}, v{t} quad_perm:[2,3,0,1] row_mask:0xf bank_mask:0xf")
    E("    s_nop 1")
    E(f"    v_add_f32_dpp v{t}, v{v}, v{v} row_half_mirror row_mask:0xf bank_mask:0xf")
    E("    s_nop 1")
    E(f"    v_add_f32_dpp v{v}, v{t}, v{t} row_mirror row_mask:0xf bank_mask:0xf")
    E(f"    v_mov_b32 v{t}, v{v}")
    E("    s_nop 1")
    E(f"    v_permlane16_swap_b32 v{v}, v{t}")
    E("    s_nop 1")
    E(f"    v_add_f32 v{v}, v{v}, v{t}")
    E(f"    v_mov_b32 v{t}, v{v}")
    E("    s_nop 1")
    E(f"    v_permlane32_swap_b32 v{v}, v{t}")
    E("    s_nop 1")
    E(f"    v_add_f32 v{v}, v{v}, v{t}")


def round_pair(a, b, t, mask_sgpr):
    E(f"    v_cvt_pk_bf16_f32 v{t}, v{a}, v{b}")
    E(f"    v_lshlrev_b32 v{a}, 16, v{t}")
    E(f"    v_and_b32 v{b}, s{mask_sgpr}, v{t}")


def gen_prep():
    kernel_begin("prep_kernel")
    E("    s_cmp_ge_u32 s2, 768")
    E("    s_cbranch_scc1 prep_done")
    E("    s_load_dwordx2 s[4:5], s[0:1], 0")
    E("    s_load_dwordx4 s[8:11], s[0:1], 8")
    E("    s_load_dwordx2 s[12:13], s[0:1], 24")
    E("    s_load_dwordx2 s[14:15], s[0:1], 96")
    E("    s_load_dwordx4 s[44:47], s[0:1], 56")
    E("    s_load_dwordx2 s[48:49], s[0:1], 32")
    E("    s_mov_b32 s40, 0xffff0000")
    E("    s_waitcnt lgkmcnt(0)")
    E("    s_lshr_b32 s50, s2, 3")
    E("    s_and_b32 s51, s2, 7")
    E("    s_cmp_ge_u32 s50, 64")
    E("    s_cbranch_scc1 prep_pf2")
    E("    s_cmp_ge_u32 s50, 32")
    E("    s_cselect_b32 s52, s46, s44")
    E("    s_cselect_b32 s53, s47, s45")
    srd(56, 52, 53, D * F * 2)
    E("    s_and_b32 s52, s50, 31")
    E("    s_lshl_b32 s52, s52, 4")
    E("    v_lshrrev_b32 v1, 3, v0")
    E("    v_and_b32 v1, 15, v1")
    E("    v_add_u32 v1, s52, v1")
    E("    s_movk_i32 s53, 2752")
    E("    v_mul_lo_u32 v1, v1, s53")
    E("    v_and_b32 v2, 7, v0")
    E("    v_lshl_add_u32 v1, v2, 7, v1")
    E("    s_and_b32 s52, s51, 3")
    E("    s_mul_i32 s53, s52, 768")
    E("    s_cmp_eq_u32 s52, 3")
    E("    s_cselect_b32 s53, 2240, s53")
    E("    v_mov_b32 v112, v1")
    E("    s_mov_b32 s60, s53")
    E("    s_branch prep_pf_done")
    E("prep_pf2:")
    srd(56, 48, 49, D * S * 2)
    E("    s_sub_u32 s52, s50, 64")
    E("    s_lshl_b32 s52, s52, 3")
    E("    s_add_u32 s52, s52, s51")
    E("    s_lshl_b32 s52, s52, 13")
    E("    v_and_b32 v1, 63, v0")
    E("    v_lshlrev_b32 v1, 7, v1")
    E("    v_mov_b32 v112, v1")
    E("    s_mov_b32 s60, s52")
    E("prep_pf_done:")
    E("    s_cmp_ge_u32 s2, 512")
    E("    s_cbranch_scc1 prep_kv")
    srd(16, 4, 5, S * D * 2)
    srd_off(20, 14, 15, WS_XN, S * D * 2)
    E("    s_lshl_b32 s3, s2, 12")
    E("    v_lshlrev_b32 v1, 4, v0")
    E("    v_add_u32 v1, s3, v1")
    E("    buffer_load_dwordx4 v[4:7], v1, s[16:19], 0 offen")
    E("    buffer_load_dword v113, v112, s[56:59], s60 offen sc1")
    E("    s_waitcnt vmcnt(1)")
    for i in range(4):
        E(f"    v_lshlrev_b32 v{8+2*i}, 16, v{4+i}")
        E(f"    v_and_b32 v{9+2*i}, s40, v{4+i}")
    E("    v_add_f32 v16, v8, v9")
    E("    v_add_f32 v17, v10, v11")
    E("    v_add_f32 v18, v12, v13")
    E("    v_add_f32 v19, v14, v15")
    E("    v_add_f32 v16, v16, v17")
    E("    v_add_f32 v18, v18, v19")
    E("    v_add_f32 v16, v16, v18")
    wave_reduce_add(16, 17)
    E("    v_mul_f32 v16, 0x3b000000, v16")
    for i in range(8):
        E(f"    v_sub_f32 v{20+i}, v{8+i}, v16")
    E("    v_mul_f32 v18, v20, v20")
    E("    v_mul_f32 v19, v21, v21")
    for i in range(2, 8, 2):
        E(f"    v_fmac_f32 v18, v{20+i}, v{20+i}")
        E(f"    v_fmac_f32 v19, v{21+i}, v{21+i}")
    E("    v_add_f32 v18, v18, v19")
    wave_reduce_add(18, 17)
    E("    v_mul_f32 v18, 0x3b000000, v18")
    round_pair(16, 18, 17, 40)
    E("    v_add_f32 v18, 0x3727c5ac, v18")
    E("    v_cvt_pk_bf16_f32 v17, v18, v18")
    E("    v_and_b32 v18, s40, v17")
    E("    v_sqrt_f32 v19, v18")
    E("    s_nop 0")
    E("    v_rcp_f32 v28, v19")
    E("    v_fma_f32 v29, -v19, v19, v18")
    E("    v_mul_f32 v28, 0.5, v28")
    E("    v_fma_f32 v19, v29, v28, v19")
    E("    v_cvt_pk_bf16_f32 v17, v19, v19")
    E("    v_and_b32 v19, s40, v17")
    E("    v_rcp_f32 v28, v19")
    for i in range(8):
        E(f"    v_sub_f32 v{20+i}, v{8+i}, v16")
    for i in range(0, 8, 2):
        round_pair(20 + i, 21 + i, 17, 40)
    for i in range(8):
        E(f"    v_mul_f32 v{8+i}, v{20+i}, v28")
    for i in range(8):
        E(f"    v_fma_f32 v{30+i}, -v{8+i}, v19, v{20+i}")
    for i in range(8):
        E(f"    v_fma_f32 v{8+i}, v{30+i}, v28, v{8+i}")
    for i in range(4):
        E(f"    v_cvt_pk_bf16_f32 v{4+i}, v{8+2*i}, v{9+2*i}")
    E("    buffer_store_dwordx4 v[4:7], v1, s[20:23], 0 offen")
    E("    s_endpgm")
    E("prep_kv:")
    srd(16, 8, 9, S * D * 2)
    srd(20, 10, 11, S * D * 2)
    srd(24, 12, 13, D * 4 * 2)
    srd_off(28, 14, 15, WS_KVR, S * D * 2)
    E("    s_sub_u32 s3, s2, 512")
    E("    s_lshr_b32 s32, s3, 3")
    E("    s_and_b32 s33, s3, 7")
    E("    v_and_b32 v1, 31, v0")
    E("    v_lshrrev_b32 v2, 5, v0")
    E("    s_lshl_b32 s34, s32, 6")
    E("    v_lshlrev_b32 v2, 3, v2")
    E("    v_add_u32 v2, s34, v2")
    E("    s_lshl_b32 s35, s33, 5")
    E("    v_add_u32 v1, s35, v1")
    E("    v_lshlrev_b32 v3, 10, v2")
    E("    v_lshlrev_b32 v4, 2, v1")
    E("    v_add_u32 v3, v3, v4")
    E("    v_add_u32 v4, 4096, v3")
    E("    v_subrev_u32 v5, 3072, v3")
    E("    v_lshlrev_b32 v6, 4, v1")
    E("    buffer_load_dwordx4 v[8:11], v6, s[24:27], 0 offen")
    for j in range(3):
        E(f"    buffer_load_dword v{12+j}, v5, s[16:19], 0 offen offset:{1024*j}")
    for j in range(4):
        E(f"    buffer_load_dword v{15+j}, v3, s[16:19], 0 offen offset:{1024*j}")
    for j in range(4):
        E(f"    buffer_load_dword v{19+j}, v4, s[16:19], 0 offen offset:{1024*j}")
    for j in range(4):
        E(f"    buffer_load_dword v{24+j}, v3, s[20:23], 0 offen offset:{1024*j}")
    for j in range(4):
        E(f"    buffer_load_dword v{28+j}, v4, s[20:23], 0 offen offset:{1024*j}")
    E("    v_lshlrev_b32 v6, 13, v1")
    E("    v_sub_u32 v7, 2040, v2")
    E("    v_lshlrev_b32 v7, 1, v7")
    E("    v_add_u32 v6, v6, v7")
    E("    v_add_u32 v7, 4096, v6")
    E("    buffer_load_dword v113, v112, s[56:59], s60 offen sc1")
    E("    s_waitcnt vmcnt(1)")
    for c in range(2):
        for d in range(2):
            E(f"    v_lshlrev_b32 v{32+4*c+2*d}, 16, v{8+2*c+d}")
            E(f"    v_and_b32 v{33+4*c+2*d}, s40, v{8+2*c+d}")
    for j in range(11):
        E(f"    v_lshlrev_b32 v{40+j}, 16, v{12+j}")
        E(f"    v_and_b32 v{52+j}, s40, v{12+j}")
    for j in range(8):
        E(f"    v_lshlrev_b32 v{64+j}, 16, v{24+j}")
        E(f"    v_and_b32 v{72+j}, s40, v{24+j}")
    for j in range(8):
        A0, A1, B0, B1, T = 96, 97, 98, 99, 100
        E(f"    v_mul_f32 v{A0}, v{40+j}, v35")
        E(f"    v_mul_f32 v{A1}, v{52+j}, v39")
        E(f"    v_mul_f32 v{B0}, v{41+j}, v34")
        E(f"    v_mul_f32 v{B1}, v{53+j}, v38")
        round_pair(A0, A1, T, 40)
        round_pair(B0, B1, T, 40)
        E(f"    v_add_f32 v{A0}, v{A0}, v{B0}")
        E(f"    v_add_f32 v{A1}, v{A1}, v{B1}")
        E(f"    v_mul_f32 v{B0}, v{42+j}, v33")
        E(f"    v_mul_f32 v{B1}, v{54+j}, v37")
        round_pair(A0, A1, T, 40)
        round_pair(B0, B1, T, 40)
        E(f"    v_add_f32 v{A0}, v{A0}, v{B0}")
        E(f"    v_add_f32 v{A1}, v{A1}, v{B1}")
        E(f"    v_mul_f32 v{B0}, v{43+j}, v32")
        E(f"    v_mul_f32 v{B1}, v{55+j}, v36")
        round_pair(A0, A1, T, 40)
        round_pair(B0, B1, T, 40)
        E(f"    v_add_f32 v{A0}, v{A0}, v{B0}")
        E(f"    v_add_f32 v{A1}, v{A1}, v{B1}")
        round_pair(A0, A1, T, 40)
        E(f"    v_mul_f32 v{80+j}, v{A0}, v{64+j}")
        E(f"    v_mul_f32 v{88+j}, v{A1}, v{72+j}")
    for c in range(2):
        for jj in range(4):
            E(f"    v_cvt_pk_bf16_f32 v{104+4*c+jj}, v{80+8*c+7-2*jj}, v{80+8*c+6-2*jj}")
    E("    buffer_store_dwordx4 v[104:107], v6, s[28:31], 0 offen")
    E("    buffer_store_dwordx4 v[108:111], v7, s[28:31], 0 offen")
    E("prep_done:")
    E("    s_endpgm")


COPY_BYTES = 4240
_order = [(1, 0), (0, 11), (2, 4), (5, 0), (4, 12), (3, 8), (6, 4), (7, 8)]
COPY_BASE = {}
_pos = 0
for _b, _beta in _order:
    while (_pos // 16) % 16 != _beta:
        _pos += 16
    COPY_BASE[_b] = _pos
    _pos += COPY_BYTES
KV_OFF = (_pos + 15) // 16 * 16
CH_BYTES = (KV_OFF + 33 * 144 + 255) // 256 * 256
MAIN_LDS = max(2 * CH_BYTES, 81920)
assert MAIN_LDS <= 81920, MAIN_LDS


def gen_gemm1_path(nt):
    vm = VM()
    ACC = 128
    WF = 64
    XF = 112
    STG = 20480
    NB = 4
    nst = 16

    def issue_dma(st):
        buf = st % NB
        for j in range(2):
            E(f"    s_mov_b32 s38, {st*64 + j*16*1024}")
            E(f"    s_add_u32 m0, s41, {buf*STG + j*1024}")
            E("    s_nop 0")
            E(f"    buffer_load_dwordx4 v8, s[20:23], s38 offen lds")
            vm.issue(("dma", st))
        for i in range(nt):
            E(f"    s_add_u32 s38, s{70+i}, {st*32*2752}")
            E(f"    s_add_u32 m0, s{74+i}, {buf*STG}")
            E("    s_nop 0")
            E(f"    buffer_load_dwordx4 v10, s[{80+4*i}:{83+4*i}], s38 offen lds")
            vm.issue(("dma", st))

    for i in range(nt):
        E(f"    s_add_u32 s48, s3, {4*i}")
        E("    s_lshr_b32 s49, s48, 1")
        E("    s_and_b32 s50, s48, 1")
        E(f"    s_cmp_ge_u32 s49, {nt}")
        E("    s_cselect_b32 s51, 1, 0")
        E(f"    s_cselect_b32 s{80+4*i}, s44, s16")
        E(f"    s_cselect_b32 s{81+4*i}, s45, s17")
        E(f"    s_mov_b32 s{82+4*i}, s18")
        E(f"    s_mov_b32 s{83+4*i}, s19")
        E(f"    s_mul_i32 s51, s51, {nt}")
        E("    s_sub_u32 s51, s49, s51")
        E("    s_lshl_b32 s51, s51, 6")
        E("    s_mul_i32 s52, s50, 16*2752")
        E("    s_add_u32 s51, s51, s52")
        E(f"    s_add_u32 s{70+i}, s51, s36")
        E("    s_lshl_b32 s49, s49, 11")
        E("    s_lshl_b32 s50, s50, 10")
        E("    s_add_u32 s49, s49, s50")
        E(f"    s_add_u32 s{74+i}, s49, 8192")

    def loadfr(setidx, buf, ks):
        x = XF + 4 * setidx
        E(f"    ds_read_b128 v[{x}:{x+3}], v{4+ks} offset:{buf*STG}")
        for mt in range(2 * nt):
            r = WF + 24 * setidx + 4 * mt
            base = (buf % 2) * STG + 8192 + mt * 2048 + ks * 1024
            vb = 11 if buf < 2 else 15
            E(f"    ds_read_b64_tr_b16 v[{r}:{r+1}], v{vb} offset:{base}")
            E(f"    ds_read_b64_tr_b16 v[{r+2}:{r+3}], v{vb} offset:{base+256}")

    nld = 1 + 4 * nt
    for st in range(NB - 1):
        issue_dma(st)
    for st in range(nst):
        buf = st % NB
        vm.wait(("dma", st))
        E("    s_barrier")
        if st % 2 == 0:
            stamp(1 + st // 2, vm)
        loadfr(0, buf, 0)
        if st + NB - 1 < nst:
            issue_dma(st + NB - 1)
        for ks in range(2):
            if ks + 1 < 2:
                loadfr((ks + 1) % 2, buf, ks + 1)
                E(f"    s_waitcnt lgkmcnt({nld})")
            else:
                E("    s_waitcnt lgkmcnt(0)")
            x = XF + 4 * (ks % 2)
            first = (st == 0 and ks == 0)
            for mt in range(2 * nt):
                w = WF + 24 * (ks % 2) + 4 * mt
                a = ACC + 16 * mt
                c = "0" if first else f"v[{a}:{a+15}]"
                E(f"    v_mfma_f32_32x32x16_bf16 v[{a}:{a+15}], v[{w}:{w+3}], v[{x}:{x+3}], {c}")
    stamp(10, vm)
    E("    s_nop 15")
    for tau in range(nt):
        G = ACC + 16 * tau
        U = ACC + 16 * (nt + tau)
        T = 14
        for j in range(0, 16, 2):
            round_pair(G + j, G + j + 1, T, 40)
            round_pair(U + j, U + j + 1, T, 40)
        for j in range(16):
            E(f"    v_mul_f32 v{G+j}, v{G+j}, v{U+j}")
        P = 16 + 8 * tau
        for j in range(8):
            E(f"    v_cvt_pk_bf16_f32 v{P+j}, v{G+2*j}, v{G+2*j+1}")
        E("    s_nop 1")
        for pair in range(2):
            q0 = P + 4 * pair
            E(f"    v_permlane32_swap_b32 v{q0}, v{q0+2}")
            E(f"    v_permlane32_swap_b32 v{q0+1}, v{q0+3}")
        for pair in range(2):
            q0 = P + 4 * pair
            E(f"    buffer_store_dwordx4 v[{q0}:{q0+3}], v12, s[24:27], s36 offen offset:{tau*64 + pair*32}")
    if DIAG:
        E("    s_waitcnt vmcnt(0)")
    stamp(14)
    E("    s_endpgm")


def gen_main():
    kernel_begin("main_kernel")
    E("    s_cmp_ge_u32 s2, 512")
    E("    s_cbranch_scc1 main_done")
    E("    s_load_dwordx4 s[4:7], s[0:1], 56")
    E("    s_load_dwordx4 s[8:11], s[0:1], 32")
    E("    s_load_dwordx2 s[12:13], s[0:1], 96")
    E("    s_load_dwordx2 s[64:65], s[0:1], 72")
    E("    s_mov_b32 s40, 0xffff0000")
    E("    v_and_b32 v1, 63, v0")
    E("    v_lshrrev_b32 v2, 6, v0")
    E("    s_nop 0")
    E("    v_readfirstlane_b32 s3, v2")
    E("    s_waitcnt lgkmcnt(0)")
    stamp_init(1, 12, 13)
    stamp(0)
    E("    s_cmp_lt_u32 s2, 256")
    E("    s_cbranch_scc1 main_conv")
    E("    s_sub_u32 s42, s2, 256")
    E("    s_bfe_u32 s30, s42, 0x10002")
    E("    s_lshl_b32 s30, s30, 3")
    E("    s_lshr_b32 s31, s42, 5")
    E("    s_add_u32 s30, s30, s31")
    E("    s_and_b32 s31, s42, 3")
    E("    s_lshl_b32 s31, s31, 2")
    E("    s_bfe_u32 s43, s42, 0x20003")
    E("    s_add_u32 s31, s31, s43")
    srd(16, 4, 5, D * F * 2)
    srd(44, 6, 7, D * F * 2)
    E("    s_lshl_b32 s32, s30, 17")
    E(f"    s_add_u32 s32, s32, {WS_XN}")
    srd_off(20, 12, 13, "s32", 128 * 1024)
    srd_off(24, 12, 13, WS_H, H_BYTES)
    E("    v_and_b32 v3, 31, v1")
    E("    v_lshrrev_b32 v13, 5, v1")
    E("    s_lshl_b32 s33, s3, 5")
    E("    v_add_u32 v3, s33, v3")
    E("    s_lshl_b32 s32, s30, 7")
    E("    v_add_u32 v14, s32, v3")
    E("    s_movk_i32 s34, 2752")
    E("    v_mul_lo_u32 v12, v14, s34")
    E("    v_lshl_add_u32 v12, v13, 4, v12")
    E("    v_bfe_u32 v14, v3, 2, 2")
    E("    v_xor_b32 v14, v14, v13")
    E("    v_lshlrev_b32 v14, 4, v14")
    E("    v_lshl_add_u32 v4, v3, 6, v14")
    E("    v_xor_b32 v5, 32, v4")
    E("    v_lshrrev_b32 v14, 2, v1")
    E("    v_add_u32 v14, s33, v14")
    E("    v_lshlrev_b32 v14, 10, v14")
    E("    v_and_b32 v15, 3, v1")
    E("    v_lshrrev_b32 v16, 4, v1")
    E("    v_xor_b32 v15, v15, v16")
    E("    v_lshl_add_u32 v8, v15, 4, v14")
    E("    s_lshl_b32 s41, s3, 11")
    E("    v_lshrrev_b32 v14, 2, v1")
    E("    v_mul_lo_u32 v10, v14, s34")
    E("    v_and_b32 v15, 3, v1")
    E("    v_lshl_add_u32 v10, v15, 4, v10")
    E("    v_and_b32 v14, 15, v1")
    E("    v_lshrrev_b32 v15, 2, v14")
    E("    v_lshl_add_u32 v15, v13, 3, v15")
    E("    v_lshlrev_b32 v11, 6, v15")
    E("    v_bfe_u32 v15, v1, 4, 1")
    E("    v_lshl_add_u32 v11, v15, 5, v11")
    E("    v_and_b32 v15, 3, v14")
    E("    v_lshl_add_u32 v11, v15, 3, v11")
    E("    v_add_u32 v15, 40960, v11")
    E("    s_cmp_lt_u32 s31, 11")
    E("    s_cbranch_scc0 main_g2")
    E("    s_mul_i32 s36, s31, 192")
    gen_gemm1_path(3)
    E("main_g2:")
    E("    s_lshl_b32 s36, s31, 7")
    E("    s_add_u32 s36, s36, 704")
    gen_gemm1_path(2)

    E("main_conv:")
    vm = VM()
    E("    s_lshl_b32 s30, s2, 1")
    E("    s_lshr_b32 s31, s3, 1")
    E("    s_add_u32 s30, s30, s31")
    E("    s_and_b32 s32, s3, 1")
    E("    s_lshl_b32 s33, s30, 12")
    srd_off(16, 8, 9, "s33", 4096)
    E("    s_add_u32 s34, s33, %d" % WS_KVR)
    srd_off(20, 12, 13, "s34", 4096)
    E("    s_add_u32 s34, s33, %d" % WS_YT)
    srd_off(24, 12, 13, "s34", 4096)
    srd(44, 10, 11, D * 2)
    E(f"    s_mul_i32 s35, s31, {CH_BYTES}")
    E("    s_lshl_b32 s36, s32, 6")
    E("    v_add_u32 v3, s36, v1")
    E("    v_lshlrev_b32 v4, 5, v3")
    E("    v_subrev_u32 v4, 16, v4")
    E("    buffer_load_dwordx4 v[16:19], v4, s[16:19], 0 offen")
    E("    v_lshlrev_b32 v5, 5, v3")
    E("    buffer_load_dwordx4 v[20:23], v5, s[16:19], 0 offen")
    E("    buffer_load_dwordx4 v[24:27], v5, s[16:19], 0 offen offset:16")
    E("    v_lshlrev_b32 v6, 4, v3")
    E("    buffer_load_dwordx4 v[28:31], v6, s[20:23], 0 offen")
    E("    buffer_load_dwordx4 v[32:35], v6, s[20:23], 0 offen offset:2048")
    E("    s_lshl_b32 s36, s30, 1")
    E("    v_mov_b32 v7, s36")
    E("    buffer_load_ushort v9, v7, s[44:47], 0 offen")
    srd(52, 64, 65, F * D * 2)
    E("    s_lshr_b32 s48, s2, 3")
    E("    s_mul_i32 s48, s48, 344*128")
    E("    v_lshlrev_b32 v60, 7, v0")
    E("    buffer_load_dword v61, v60, s[52:55], s48 offen sc1")
    E("    v_min_u32 v60, 87, v0")
    E("    v_lshlrev_b32 v60, 7, v60")
    E("    s_add_u32 s48, s48, 256*128")
    E("    buffer_load_dword v61, v60, s[52:55], s48 offen sc1")
    E("    v_mov_b32 v36, 0")
    E("    v_mov_b32 v37, 0")
    E("    v_mov_b32 v38, 0")
    E("    v_mov_b32 v39, 0")
    E("    v_lshlrev_b32 v7, 4, v1")
    E("    v_add_u32 v7, s35, v7")
    E("    s_mov_b64 exec, 0x7f")
    for b in range(8):
        E(f"    ds_write_b128 v7, v[36:39] offset:{COPY_BASE[b]}")
    E("    s_mov_b64 exec, 0xff")
    E(f"    ds_write_b128 v7, v[36:39] offset:{KV_OFF + 32*144}")
    E("    s_mov_b64 exec, -1")
    E("    v_lshlrev_b32 v7, 5, v3")
    E("    v_add_u32 v7, s35, v7")
    E("    v_lshrrev_b32 v8, 3, v3")
    E("    v_mul_u32_u24 v8, 144, v8")
    E("    v_and_b32 v10, 7, v3")
    E("    v_lshl_add_u32 v8, v10, 4, v8")
    E("    v_add_u32 v8, s35, v8")
    E("    s_waitcnt vmcnt(5)")
    for u in range(2):
        e = 16 + 4 * u
        for b in range(8):
            off = COPY_BASE[b] + 112 + 16 * u
            if b % 2 == 0 and (b // 2) % 2 == 0:
                r = e + b // 2
                E(f"    ds_write_b128 v7, v[{r}:{r+3}] offset:{off}")
            else:
                t = 40 + 4 * ((u * 8 + b) % 4)
                for d in range(4):
                    if b % 2 == 0:
                        E(f"    v_mov_b32 v{t+d}, v{e + b//2 + d}")
                    else:
                        be = (b - 1) // 2
                        E(f"    v_alignbyte_b32 v{t+d}, v{e+be+d+1}, v{e+be+d}, 2")
                E(f"    ds_write_b128 v7, v[{t}:{t+3}] offset:{off}")
    E(f"    ds_write_b128 v7, v[24:27] offset:{COPY_BASE[0] + 112 + 32}")
    E("    s_waitcnt vmcnt(3)")
    E(f"    ds_write_b128 v8, v[28:31] offset:{KV_OFF}")
    E(f"    ds_write_b128 v8, v[32:35] offset:{KV_OFF + 16*144}")
    E("    v_and_b32 v3, 31, v1")
    E("    v_lshrrev_b32 v4, 5, v1")
    E("    v_add_u32 v5, 1, v3")
    E("    v_and_b32 v6, 7, v5")
    E("    v_lshrrev_b32 v5, 3, v5")
    E("    v_sub_u32 v5, v5, v4")
    E("    v_add_u32 v5, 1, v5")
    E("    v_lshlrev_b32 v5, 4, v5")
    E("    v_mov_b32 v10, 0")
    for b in range(8):
        E(f"    v_cmp_eq_u32 vcc, {b}, v6")
        E(f"    v_mov_b32 v11, {COPY_BASE[b]}")
        E("    s_nop 0")
        E("    v_cndmask_b32 v10, v10, v11, vcc")
    E("    v_add_u32 v10, v10, v5")
    E("    s_lshl_b32 s36, s32, 11")
    E("    s_add_u32 s36, s36, s35")
    E("    v_add_u32 v10, s36, v10")
    E("    v_sub_u32 v5, 31, v3")
    E("    s_lshl_b32 s36, s32, 4")
    E("    v_add_u32 v5, s36, v5")
    E("    v_mul_u32_u24 v5, 144, v5")
    E("    v_lshlrev_b32 v6, 4, v4")
    E("    v_sub_u32 v5, v5, v6")
    E(f"    s_add_u32 s36, s35, {KV_OFF + 16}")
    E("    v_add_u32 v11, s36, v5")
    E(f"    s_add_u32 s36, s36, {144*32}")
    E("    v_sub_u32 v12, s36, v6")
    E("    s_waitcnt lgkmcnt(0)")
    stamp(1)
    E("    s_barrier")
    stamp(2)
    FA = 64
    FB = 112
    ACC = 144

    def fslot(t):
        return FA + 4 * ((t + 3) % 12)

    def load_A(t):
        r = fslot(t)
        E(f"    ds_read_b128 v[{r}:{r+3}], v10 offset:{32*(t+3)}")

    def load_B(dl):
        E(f"    v_add_u32 v13, {144*dl}, v11")
        E("    v_min_u32 v13, v13, v12")
        for q in range(4):
            r = FB + 16 * (dl % 2) + 4 * q
            E(f"    ds_read_b128 v[{r}:{r+3}], v13 offset:{32*(3-q)}")

    for t in range(-3, 3):
        load_A(t)
    load_B(0)
    for dl in range(16):
        E("    s_waitcnt lgkmcnt(0)")
        if dl + 1 < 16:
            for t in range(4 * dl + 3, 4 * dl + 7):
                load_A(t)
            load_B(dl + 1)
        for q in range(4):
            for p in range(2):
                a = fslot(4 * dl + 2 * p - q)
                b = FB + 16 * (dl % 2) + 4 * q
                c = "0" if (dl == 0 and q == 0) else f"v[{ACC+16*p}:{ACC+16*p+15}]"
                E(f"    v_mfma_f32_32x32x16_bf16 v[{ACC+16*p}:{ACC+16*p+15}], v[{a}:{a+3}], v[{b}:{b+3}], {c}")
    stamp(3)
    E("    s_barrier")
    stamp(4)
    E("    v_lshlrev_b32 v13, 4, v1")
    E("    v_add_u32 v13, s35, v13")
    E("    s_lshl_b32 s36, s32, 12")
    E("    v_add_u32 v14, s36, v13")
    E("    s_xor_b32 s36, s36, 4096")
    E("    v_add_u32 v13, s36, v13")
    E("    s_nop 7")
    E("    s_cmp_eq_u32 s32, 0")
    E("    s_cbranch_scc1 conv_hw0")
    for jq in range(4):
        E(f"    ds_write_b128 v13, v[{ACC+4*jq}:{ACC+4*jq+3}] offset:{1024*jq}")
    for j in range(16):
        E(f"    v_mov_b32 v{64+j}, v{ACC+16+j}")
    E("    s_branch conv_x")
    E("conv_hw0:")
    for jq in range(4):
        E(f"    ds_write_b128 v13, v[{ACC+16+4*jq}:{ACC+16+4*jq+3}] offset:{1024*jq}")
    for j in range(16):
        E(f"    v_mov_b32 v{64+j}, v{ACC+j}")
    E("conv_x:")
    E("    s_waitcnt lgkmcnt(0)")
    E("    s_barrier")
    for jq in range(4):
        E(f"    ds_read_b128 v[{80+4*jq}:{80+4*jq+3}], v14 offset:{1024*jq}")
    E("    v_sub_u32 v5, 31, v3")
    E("    v_mul_u32_u24 v5, 144, v5")
    E("    v_lshlrev_b32 v6, 3, v4")
    E("    v_sub_u32 v5, v5, v6")
    E("    s_lshl_b32 s36, s32, 6")
    E(f"    s_sub_u32 s36, {KV_OFF + 120 - 48}, s36")
    E("    s_add_u32 s36, s36, s35")
    E("    v_add_u32 v5, s36, v5")
    for jq in range(4):
        E(f"    ds_read_b64 v[{96+2*jq}:{96+2*jq+1}], v5 offset:{16*(3-jq)}")
    E("    v_lshlrev_b32 v6, 7, v3")
    E("    v_lshl_add_u32 v6, v4, 3, v6")
    E("    s_lshl_b32 s36, s32, 6")
    E("    v_add_u32 v6, s36, v6")
    E("    s_waitcnt vmcnt(0)")
    E("    v_lshlrev_b32 v9, 16, v9")
    E("    s_waitcnt lgkmcnt(0)")
    for j in range(16):
        E(f"    v_add_f32 v{64+j}, v{64+j}, v{80+j}")
    for jq in range(4):
        k0, k1, k2, k3 = 104, 105, 106, 107
        E(f"    v_and_b32 v{k0}, s40, v{97+2*jq}")
        E(f"    v_lshlrev_b32 v{k1}, 16, v{97+2*jq}")
        E(f"    v_and_b32 v{k2}, s40, v{96+2*jq}")
        E(f"    v_lshlrev_b32 v{k3}, 16, v{96+2*jq}")
        for kk in (k0, k1, k2, k3):
            E(f"    v_mul_f32 v{kk}, v{kk}, v9")
        round_pair(k0, k1, 108, 40)
        round_pair(k2, k3, 108, 40)
        y = 64 + 4 * jq
        round_pair(y, y + 1, 108, 40)
        round_pair(y + 2, y + 3, 108, 40)
        for e_, kk in enumerate((k0, k1, k2, k3)):
            E(f"    v_add_f32 v{y+e_}, v{y+e_}, v{kk}")
        E(f"    v_cvt_pk_bf16_f32 v{110+2*jq}, v{y}, v{y+1}")
        E(f"    v_cvt_pk_bf16_f32 v{111+2*jq}, v{y+2}, v{y+3}")
        E(f"    buffer_store_dwordx2 v[{110+2*jq}:{111+2*jq}], v6, s[24:27], 0 offen offset:{16*jq}")
    E("    s_waitcnt vmcnt(0)")
    stamp(5)
    E("main_done:")
    E("    s_endpgm")


NSLOT = 4
SLOT = 32768
FIN_YOFF = NSLOT * SLOT
FIN_LDS = FIN_YOFF + 8192


def gen_fin():
    kernel_begin("fin_kernel")
    vm = VM()
    E("    s_cmp_ge_u32 s2, 256")
    E("    s_cbranch_scc1 fin_done")
    E("    s_load_dwordx2 s[4:5], s[0:1], 0")
    E("    s_load_dwordx4 s[8:11], s[0:1], 72")
    E("    s_load_dwordx2 s[12:13], s[0:1], 96")
    E("    s_mov_b32 s40, 0xffff0000")
    E("    v_and_b32 v1, 63, v0")
    E("    v_lshrrev_b32 v2, 6, v0")
    E("    s_nop 0")
    E("    v_readfirstlane_b32 s3, v2")
    E("    s_waitcnt lgkmcnt(0)")
    stamp_init(2, 12, 13)
    stamp(0, vm)
    E("    s_and_b32 s30, s2, 7")
    E("    s_bfe_u32 s31, s2, 0x20003")
    E("    s_lshl_b32 s31, s31, 3")
    E("    s_add_u32 s30, s30, s31")
    E("    s_lshr_b32 s31, s2, 5")
    E("    s_and_b32 s32, s3, 1")
    E("    s_lshr_b32 s33, s3, 1")
    srd(16, 8, 9, F * D * 2)
    srd_off(20, 12, 13, WS_H, H_BYTES)
    E("    v_lshrrev_b32 v3, 3, v1")
    E("    s_lshl_b32 s34, s3, 5")
    E("    v_add_u32 v3, s34, v3")
    E("    v_lshlrev_b32 v10, 10, v3")
    E("    v_and_b32 v4, 7, v1")
    E("    v_bfe_u32 v5, v1, 4, 1")
    E("    v_lshlrev_b32 v5, 2, v5")
    E("    v_xor_b32 v4, v4, v5")
    E("    v_lshl_add_u32 v10, v4, 4, v10")
    E("    s_lshl_b32 s34, s31, 7")
    E("    v_add_u32 v10, s34, v10")
    E("    s_lshl_b32 s37, s3, 12")
    E("    v_lshrrev_b32 v3, 4, v1")
    E("    s_lshl_b32 s34, s30, 6")
    E("    s_lshl_b32 s35, s3, 4")
    E("    s_add_u32 s34, s34, s35")
    E("    v_add_u32 v4, s34, v3")
    E("    s_movk_i32 s35, 2752")
    E("    v_mul_lo_u32 v4, v4, s35")
    E("    v_and_b32 v5, 15, v1")
    E("    v_xor_b32 v5, v5, v3")
    E("    v_lshl_add_u32 v16, v5, 4, v4")
    E("    v_xor_b32 v6, 4, v5")
    E("    v_lshl_add_u32 v17, v6, 4, v4")
    E("    v_xor_b32 v6, 8, v5")
    E("    v_lshl_add_u32 v18, v6, 4, v4")
    E("    v_xor_b32 v6, 12, v5")
    E("    v_lshl_add_u32 v19, v6, 4, v4")
    nch = 11

    def issue_dma(c):
        slot = c % NSLOT
        for j in range(4):
            E(f"    s_mov_b32 s38, {256*c + 4*j*2752}")
            E(f"    s_add_u32 m0, s37, {slot*SLOT + j*1024}")
            E("    s_nop 0")
            E(f"    buffer_load_dwordx4 v{16+j}, s[20:23], s38 offen lds")
            vm.issue(("dma", c))
        for j in range(4):
            E(f"    s_mov_b32 s38, {(128*c + 8*j)*1024}")
            E(f"    s_add_u32 m0, s37, {slot*SLOT + 16384 + j*1024}")
            E("    s_nop 0")
            E("    buffer_load_dwordx4 v10, s[16:19], s38 offen lds")
            vm.issue(("dma", c))

    issue_dma(0)
    E("    s_lshr_b32 s34, s2, 3")
    E("    s_and_b32 s35, s34, 3")
    E("    s_lshl_b32 s35, s35, 3")
    E("    s_and_b32 s36, s2, 7")
    E("    s_add_u32 s35, s35, s36")
    E("    s_mul_i32 s35, s35, 64*2752")
    E("    s_lshr_b32 s36, s34, 2")
    E("    s_mul_i32 s36, s36, 172*128")
    E("    s_add_u32 s35, s35, s36")
    E("    v_min_u32 v4, 171, v0")
    E("    v_lshlrev_b32 v4, 7, v4")
    E("    buffer_load_dword v38, v4, s[20:23], s35 offen sc1")
    vm.issue("pf")
    for c in range(1, NSLOT - 1):
        issue_dma(c)
    srd(24, 4, 5, S * D * 2)
    srd_off(44, 12, 13, WS_XN, S * D * 2)
    srd_off(48, 12, 13, WS_YT, S * D * 2)
    srd(52, 10, 11, S * D * 2)
    E("    v_lshrrev_b32 v3, 3, v1")
    E("    s_lshl_b32 s34, s31, 6")
    E("    s_lshl_b32 s35, s3, 4")
    E("    s_add_u32 s34, s34, s35")
    E("    v_add_u32 v3, s34, v3")
    E("    v_lshlrev_b32 v9, 12, v3")
    E("    v_and_b32 v4, 7, v1")
    E("    v_lshl_add_u32 v9, v4, 4, v9")
    E("    s_lshl_b32 s34, s30, 7")
    E("    v_add_u32 v9, s34, v9")
    E("    s_lshl_b32 s35, s3, 11")
    for j in range(2):
        E(f"    s_add_u32 m0, s35, {FIN_YOFF + 1024*j}")
        E(f"    s_mov_b32 s38, {8*4096*j}")
        E(f"    buffer_load_dwordx4 v9, s[48:51], s38 offen lds")
        vm.issue("y")
    E("    v_and_b32 v3, 31, v1")
    E("    s_lshl_b32 s35, s32, 5")
    E("    v_add_u32 v3, s35, v3")
    E("    s_lshl_b32 s34, s30, 6")
    E("    v_add_u32 v6, s34, v3")
    E("    v_lshrrev_b32 v4, 5, v1")
    E("    v_lshlrev_b32 v13, 10, v6")
    E("    v_lshl_add_u32 v13, v4, 3, v13")
    E("    s_lshl_b32 s34, s31, 7")
    E("    s_lshl_b32 s35, s33, 6")
    E("    s_add_u32 s34, s34, s35")
    E("    v_add_u32 v13, s34, v13")
    XR, NR = 96, 104
    for jq in range(4):
        E(f"    buffer_load_dwordx2 v[{XR+2*jq}:{XR+2*jq+1}], v13, s[24:27], 0 offen offset:{16*jq}")
        vm.issue("x")
    for jq in range(4):
        E(f"    buffer_load_dwordx2 v[{NR+2*jq}:{NR+2*jq+1}], v13, s[44:47], 0 offen offset:{16*jq}")
        vm.issue("x")
    E("    v_and_b32 v5, 15, v1")
    E("    v_lshrrev_b32 v6, 2, v5")
    E("    v_lshl_add_u32 v6, v4, 3, v6")
    E("    v_lshlrev_b32 v11, 7, v6")
    E("    v_bfe_u32 v6, v1, 4, 1")
    E("    v_lshlrev_b32 v6, 5, v6")
    E("    v_and_b32 v7, 3, v5")
    E("    v_lshl_add_u32 v6, v7, 3, v6")
    E("    s_lshl_b32 s35, s33, 6")
    E("    v_add_u32 v6, s35, v6")
    E("    v_bfe_u32 v7, v1, 3, 1")
    E("    v_lshlrev_b32 v7, 6, v7")
    E("    v_xor_b32 v6, v6, v7")
    E("    v_add_u32 v11, v11, v6")
    E("    v_add_u32 v11, 16384, v11")
    E(f"    v_add_u32 v12, {2*SLOT}, v11")
    E("    v_and_b32 v6, 15, v3")
    E("    v_xor_b32 v6, v6, v4")
    E("    v_lshlrev_b32 v6, 4, v6")
    E("    v_lshl_add_u32 v20, v3, 8, v6")
    for ks in range(1, 8):
        E(f"    v_xor_b32 v{20+ks}, {32*ks}, v20")
    for ks in range(8):
        E(f"    v_add_u32 v{28+ks}, {2*SLOT}, v{20+ks}")
    ACC = 64
    FR = 80

    def loadfr(setidx, slot, ks):
        r = FR + 8 * setidx
        so = (slot % 2) * SLOT
        wb = 11 if slot < 2 else 12
        hb = (20 if slot < 2 else 28) + ks
        E(f"    ds_read_b64_tr_b16 v[{r}:{r+1}], v{wb} offset:{so + ks*2048}")
        E(f"    ds_read_b64_tr_b16 v[{r+2}:{r+3}], v{wb} offset:{so + ks*2048+512}")
        E(f"    ds_read_b128 v[{r+4}:{r+7}], v{hb} offset:{so}")

    for c in range(nch):
        slot = c % NSLOT
        nk = 8 if c < 10 else 6
        vm.wait(("dma", c))
        E("    s_barrier")
        stamp(1 + c, vm)
        loadfr(0, slot, 0)
        if c + NSLOT - 1 < nch:
            issue_dma(c + NSLOT - 1)
        for ks in range(nk):
            if ks + 1 < nk:
                loadfr((ks + 1) % 2, slot, ks + 1)
                E("    s_waitcnt lgkmcnt(3)")
            else:
                E("    s_waitcnt lgkmcnt(0)")
            r = FR + 8 * (ks % 2)
            cc = "0" if (c == 0 and ks == 0) else f"v[{ACC}:{ACC+15}]"
            E(f"    v_mfma_f32_32x32x16_bf16 v[{ACC}:{ACC+15}], v[{r}:{r+3}], v[{r+4}:{r+7}], {cc}")
    stamp(12, vm)
    E("    v_lshrrev_b32 v6, 2, v5")
    E("    v_lshl_add_u32 v6, v4, 2, v6")
    E("    s_lshl_b32 s35, s33, 5")
    E("    v_add_u32 v6, s35, v6")
    E("    v_lshlrev_b32 v14, 7, v6")
    E("    v_bfe_u32 v6, v1, 4, 1")
    E("    v_lshlrev_b32 v6, 5, v6")
    E("    v_and_b32 v7, 3, v5")
    E("    v_lshl_add_u32 v6, v7, 3, v6")
    E("    s_lshl_b32 s35, s32, 6")
    E("    v_add_u32 v6, s35, v6")
    E("    v_add_u32 v14, v14, v6")
    E(f"    v_add_u32 v14, {FIN_YOFF}, v14")
    YR = 24
    for jq in range(4):
        E(f"    ds_read_b64_tr_b16 v[{YR+2*jq}:{YR+2*jq+1}], v14 offset:{jq*1024}")
    vm.wait_all()
    E("    s_waitcnt lgkmcnt(0)")
    E("    s_nop 7")
    for jq in range(4):
        a = ACC + 4 * jq
        t = 36
        xs = [t, t + 1, t + 2, t + 3]
        ns = [t + 4, t + 5, t + 6, t + 7]
        ys = [t + 8, t + 9, t + 10, t + 11]
        for (dst, src) in ((xs, XR + 2 * jq), (ns, NR + 2 * jq), (ys, YR + 2 * jq)):
            E(f"    v_lshlrev_b32 v{dst[0]}, 16, v{src}")
            E(f"    v_and_b32 v{dst[1]}, s40, v{src}")
            E(f"    v_lshlrev_b32 v{dst[2]}, 16, v{src+1}")
            E(f"    v_and_b32 v{dst[3]}, s40, v{src+1}")
        for e_ in range(4):
            E(f"    v_mul_f32 v{ns[e_]}, v{ns[e_]}, v{ys[e_]}")
        round_pair(ns[0], ns[1], t + 12, 40)
        round_pair(ns[2], ns[3], t + 12, 40)
        for e_ in range(4):
            E(f"    v_add_f32 v{xs[e_]}, v{xs[e_]}, v{ns[e_]}")
        round_pair(xs[0], xs[1], t + 12, 40)
        round_pair(xs[2], xs[3], t + 12, 40)
        round_pair(a, a + 1, t + 12, 40)
        round_pair(a + 2, a + 3, t + 12, 40)
        for e_ in range(4):
            E(f"    v_add_f32 v{xs[e_]}, v{xs[e_]}, v{a+e_}")
        o = 52 + 2 * jq
        E(f"    v_cvt_pk_bf16_f32 v{o}, v{xs[0]}, v{xs[1]}")
        E(f"    v_cvt_pk_bf16_f32 v{o+1}, v{xs[2]}, v{xs[3]}")
        E(f"    buffer_store_dwordx2 v[{o}:{o+1}], v13, s[52:55], 0 offen offset:{16*jq}")
    if DIAG:
        E("    s_waitcnt vmcnt(0)")
    stamp(13)
    E("fin_done:")
    E("    s_endpgm")


def descriptor(name, vgpr, sgpr=96):
    E(f".amdhsa_kernel {name}")
    E(f"  .amdhsa_next_free_vgpr {vgpr}")
    E(f"  .amdhsa_next_free_sgpr {sgpr}")
    E(f"  .amdhsa_accum_offset {(vgpr + 3)//4*4}")
    E("  .amdhsa_group_segment_fixed_size 0")
    E("  .amdhsa_kernarg_size 104")
    E("  .amdhsa_user_sgpr_count 2")
    E("  .amdhsa_user_sgpr_kernarg_segment_ptr 1")
    E("  .amdhsa_system_sgpr_workgroup_id_x 1")
    E(".end_amdhsa_kernel")


def main():
    hdr = open("parallel_sum__ssm_conv_h3__glu_gated_bilinear__prompt.s.ref").read().splitlines()
    for l in hdr:
        if l.startswith("; Override") or l.startswith("; grid=") or l.startswith("; @launch"):
            continue
        if not l.startswith(";"):
            break
        E(l)
    E("; @launch kernel=prep_kernel grid=(768,1,1) block=(256,1,1) lds=0")
    E(f"; @launch kernel=main_kernel grid=(512,1,1) block=(256,1,1) lds={MAIN_LDS}")
    E(f"; @launch kernel=fin_kernel grid=(256,1,1) block=(256,1,1) lds={FIN_LDS}")
    E('.amdgcn_target "amdgcn-amd-amdhsa--gfx950"')
    E(".text")
    gen_prep()
    gen_main()
    gen_fin()
    E('.section .rodata,"a"')
    E(".p2align 6")
    descriptor("prep_kernel", 116)
    E(".p2align 6")
    descriptor("main_kernel", 256 if DIAG else 224)
    E(".p2align 6")
    descriptor("fin_kernel", 256 if DIAG else 112)
    path = sys.argv[1] if len(sys.argv) > 1 else "parallel_sum__ssm_conv_h3__glu_gated_bilinear__prompt.s"
    open(path, "w").write("\n".join(out) + "\n")
    print("wrote", path, len(out), "lines; MAIN_LDS", MAIN_LDS, "FIN_LDS", FIN_LDS, "COPY_BASE", COPY_BASE, "KV_OFF", KV_OFF, "CH_BYTES", CH_BYTES)


main()
```

```python
import sys

S, D, F = 2048, 512, 1376
WS_XN = 0x000000
WS_KVR = 0x200000
WS_H = 0x400000
WS_YT = 0xA00000
WS_WT = 0xC00000
HP = 2816
H_BYTES = S * HP

out = []


def E(s=""):
    out.append(s)


class VM:
    def __init__(self):
        self.q = []

    def issue(self, tag):
        self.q.append(tag)

    def wait(self, tag):
        idx = -1
        for i, t in enumerate(self.q):
            if t == tag:
                idx = i
        if idx < 0:
            return
        n = len(self.q) - 1 - idx
        assert n <= 63, n
        E(f"    s_waitcnt vmcnt({n})")
        self.q = self.q[idx + 1:]

    def wait_all(self):
        E("    s_waitcnt vmcnt(0)")
        self.q = []


DIAG = len(sys.argv) > 2 and sys.argv[2] == "diag"
STAMP_WS = 0x2000000


def stamp_init(kidx, ws_lo, ws_hi):
    if not DIAG:
        return
    E(f"    s_add_u32 s56, s{ws_lo}, {STAMP_WS + kidx*1024*4*32*4}")
    E(f"    s_addc_u32 s57, s{ws_hi}, 0")
    E("    s_and_b32 s57, s57, 0xffff")
    E("    s_mov_b32 s58, 0x80000")
    E("    s_mov_b32 s59, 0x00020000")
    E("    s_lshl_b32 s60, s2, 2")
    E("    s_add_u32 s60, s60, s3")
    E("    s_lshl_b32 s60, s60, 7")
    E("    v_mov_b32 v254, s60")


def stamp(slot, vm=None, real=False):
    if not DIAG:
        return
    E("    s_waitcnt lgkmcnt(0)")
    E("    s_memrealtime s[62:63]" if real else "    s_memtime s[62:63]")
    E("    s_waitcnt lgkmcnt(0)")
    E("    v_mov_b32 v255, s62")
    E("    s_mov_b64 s[60:61], exec")
    E("    s_mov_b64 exec, 1")
    E(f"    buffer_store_dword v255, v254, s[56:59], 0 offen offset:{4*slot}")
    E("    s_mov_b64 exec, s[60:61]")
    if vm is not None:
        vm.issue("stamp")


def pstamp(slot, real=False):
    if not DIAG:
        return
    E("    s_waitcnt lgkmcnt(0)")
    E("    s_memrealtime s[72:73]" if real else "    s_memtime s[72:73]")
    E("    s_waitcnt lgkmcnt(0)")
    E("    v_mov_b32 v255, s72")
    E("    s_mov_b64 s[74:75], exec")
    E("    s_mov_b64 exec, 1")
    E(f"    buffer_store_dword v255, v254, s[68:71], 0 offen offset:{4*slot}")
    E("    s_mov_b64 exec, s[74:75]")


def srd(dst, lo, hi, nbytes):
    E(f"    s_mov_b32 s{dst}, s{lo}")
    E(f"    s_and_b32 s{dst+1}, s{hi}, 0xffff")
    E(f"    s_mov_b32 s{dst+2}, {nbytes}")
    E(f"    s_mov_b32 s{dst+3}, 0x00020000")


def srd_off(dst, lo, hi, off, nbytes):
    E(f"    s_add_u32 s{dst}, s{lo}, {off}")
    E(f"    s_addc_u32 s{dst+1}, s{hi}, 0")
    E(f"    s_and_b32 s{dst+1}, s{dst+1}, 0xffff")
    E(f"    s_mov_b32 s{dst+2}, {nbytes}")
    E(f"    s_mov_b32 s{dst+3}, 0x00020000")


def kernel_begin(name):
    E(f".globl {name}")
    E(".p2align 8")
    E(f".type {name},@function")
    E(f"{name}:")


def wave_reduce_add(v, t):
    E("    s_nop 1")
    E(f"    v_add_f32_dpp v{t}, v{v}, v{v} quad_perm:[1,0,3,2] row_mask:0xf bank_mask:0xf")
    E("    s_nop 1")
    E(f"    v_add_f32_dpp v{v}, v{t}, v{t} quad_perm:[2,3,0,1] row_mask:0xf bank_mask:0xf")
    E("    s_nop 1")
    E(f"    v_add_f32_dpp v{t}, v{v}, v{v} row_half_mirror row_mask:0xf bank_mask:0xf")
    E("    s_nop 1")
    E(f"    v_add_f32_dpp v{v}, v{t}, v{t} row_mirror row_mask:0xf bank_mask:0xf")
    E(f"    v_mov_b32 v{t}, v{v}")
    E("    s_nop 1")
    E(f"    v_permlane16_swap_b32 v{v}, v{t}")
    E("    s_nop 1")
    E(f"    v_add_f32 v{v}, v{v}, v{t}")
    E(f"    v_mov_b32 v{t}, v{v}")
    E("    s_nop 1")
    E(f"    v_permlane32_swap_b32 v{v}, v{t}")
    E("    s_nop 1")
    E(f"    v_add_f32 v{v}, v{v}, v{t}")


def round_pair(a, b, t, mask_sgpr):
    E(f"    v_cvt_pk_bf16_f32 v{t}, v{a}, v{b}")
    E(f"    v_lshlrev_b32 v{a}, 16, v{t}")
    E(f"    v_and_b32 v{b}, s{mask_sgpr}, v{t}")


def gen_prep():
    kernel_begin("prep_kernel")
    E("    s_cmp_ge_u32 s2, 896")
    E("    s_cbranch_scc1 prep_done")
    E("    s_load_dwordx2 s[4:5], s[0:1], 0")
    E("    s_load_dwordx4 s[8:11], s[0:1], 8")
    E("    s_load_dwordx2 s[12:13], s[0:1], 24")
    E("    s_load_dwordx2 s[14:15], s[0:1], 96")
    E("    s_load_dwordx4 s[44:47], s[0:1], 56")
    E("    s_load_dwordx2 s[48:49], s[0:1], 32")
    E("    s_mov_b32 s40, 0xffff0000")
    E("    s_waitcnt lgkmcnt(0)")
    if DIAG:
        E("    v_lshrrev_b32 v2, 6, v0")
        E("    s_nop 0")
        E("    v_readfirstlane_b32 s3, v2")
        E("    s_mov_b32 s64, s14")
        E("    s_mov_b32 s65, s15")
        E(f"    s_add_u32 s68, s64, {STAMP_WS}")
        E("    s_addc_u32 s69, s65, 0")
        E("    s_and_b32 s69, s69, 0xffff")
        E("    s_mov_b32 s70, 0x80000")
        E("    s_mov_b32 s71, 0x00020000")
        E("    s_lshl_b32 s66, s2, 2")
        E("    s_add_u32 s66, s66, s3")
        E("    s_lshl_b32 s66, s66, 7")
        E("    v_mov_b32 v254, s66")
    pstamp(30, True)
    pstamp(0)
    E("    s_cmp_ge_u32 s2, 768")
    E("    s_cbranch_scc1 prep_w")
    srd(56, 48, 49, D * S * 2)
    E("    s_and_b32 s52, s2, 255")
    E("    s_lshl_b32 s60, s52, 13")
    E("    v_and_b32 v112, 63, v0")
    E("    v_lshlrev_b32 v112, 7, v112")
    E("    s_cmp_ge_u32 s2, 512")
    E("    s_cbranch_scc1 prep_kv")
    srd(16, 4, 5, S * D * 2)
    srd_off(20, 14, 15, WS_XN, S * D * 2)
    E("    s_lshl_b32 s3, s2, 12")
    E("    v_lshlrev_b32 v1, 4, v0")
    E("    v_add_u32 v1, s3, v1")
    E("    buffer_load_dwordx4 v[4:7], v1, s[16:19], 0 offen")
    E("    buffer_load_dword v113, v112, s[56:59], s60 offen sc1")
    E("    v_lshrrev_b32 v2, 6, v0")
    E("    v_and_b32 v3, 63, v0")
    E("    s_lshr_b32 s30, s2, 5")
    E("    s_lshl_b32 s30, s30, 17")
    E("    s_and_b32 s31, s2, 31")
    E("    s_lshl_b32 s31, s31, 8")
    E("    s_add_u32 s30, s30, s31")
    E("    s_and_b32 s31, s2, 3")
    E("    v_lshlrev_b32 v2, 6, v2")
    E("    v_add_u32 v2, s30, v2")
    E("    v_lshrrev_b32 v16, 2, v3")
    E("    v_lshl_add_u32 v2, v16, 13, v2")
    E("    v_and_b32 v16, 3, v3")
    E("    v_xor_b32 v16, s31, v16")
    E("    v_lshl_add_u32 v2, v16, 4, v2")
    E("    s_waitcnt vmcnt(1)")
    pstamp(1)
    for i in range(4):
        E(f"    v_lshlrev_b32 v{8+2*i}, 16, v{4+i}")
        E(f"    v_and_b32 v{9+2*i}, s40, v{4+i}")
    E("    v_add_f32 v16, v8, v9")
    E("    v_add_f32 v17, v10, v11")
    E("    v_add_f32 v18, v12, v13")
    E("    v_add_f32 v19, v14, v15")
    E("    v_add_f32 v16, v16, v17")
    E("    v_add_f32 v18, v18, v19")
    E("    v_add_f32 v16, v16, v18")
    wave_reduce_add(16, 17)
    E("    v_mul_f32 v16, 0x3b000000, v16")
    for i in range(8):
        E(f"    v_sub_f32 v{20+i}, v{8+i}, v16")
    E("    v_mul_f32 v18, v20, v20")
    E("    v_mul_f32 v19, v21, v21")
    for i in range(2, 8, 2):
        E(f"    v_fmac_f32 v18, v{20+i}, v{20+i}")
        E(f"    v_fmac_f32 v19, v{21+i}, v{21+i}")
    E("    v_add_f32 v18, v18, v19")
    wave_reduce_add(18, 17)
    E("    v_mul_f32 v18, 0x3b000000, v18")
    round_pair(16, 18, 17, 40)
    E("    v_add_f32 v18, 0x3727c5ac, v18")
    E("    v_cvt_pk_bf16_f32 v17, v18, v18")
    E("    v_and_b32 v18, s40, v17")
    E("    v_sqrt_f32 v19, v18")
    E("    s_nop 0")
    E("    v_rcp_f32 v28, v19")
    E("    v_fma_f32 v29, -v19, v19, v18")
    E("    v_mul_f32 v28, 0.5, v28")
    E("    v_fma_f32 v19, v29, v28, v19")
    E("    v_cvt_pk_bf16_f32 v17, v19, v19")
    E("    v_and_b32 v19, s40, v17")
    E("    v_rcp_f32 v28, v19")
    for i in range(8):
        E(f"    v_sub_f32 v{20+i}, v{8+i}, v16")
    for i in range(0, 8, 2):
        round_pair(20 + i, 21 + i, 17, 40)
    for i in range(8):
        E(f"    v_mul_f32 v{8+i}, v{20+i}, v28")
    for i in range(8):
        E(f"    v_fma_f32 v{30+i}, -v{8+i}, v19, v{20+i}")
    for i in range(8):
        E(f"    v_fma_f32 v{8+i}, v{30+i}, v28, v{8+i}")
    for i in range(4):
        E(f"    v_cvt_pk_bf16_f32 v{4+i}, v{8+2*i}, v{9+2*i}")
    E("    buffer_store_dwordx4 v[4:7], v2, s[20:23], 0 offen")
    pstamp(2)
    if DIAG:
        E("    s_waitcnt vmcnt(0)")
    pstamp(3)
    pstamp(31, True)
    E("    s_endpgm")
    E("prep_kv:")
    srd(16, 8, 9, S * D * 2)
    srd(20, 10, 11, S * D * 2)
    srd(24, 12, 13, D * 4 * 2)
    srd_off(28, 14, 15, WS_KVR, S * D * 2)
    E("    s_sub_u32 s3, s2, 512")
    E("    s_lshr_b32 s32, s3, 3")
    E("    s_and_b32 s33, s3, 7")
    E("    v_and_b32 v1, 31, v0")
    E("    v_lshrrev_b32 v2, 5, v0")
    E("    s_lshl_b32 s34, s32, 6")
    E("    v_lshlrev_b32 v2, 3, v2")
    E("    v_add_u32 v2, s34, v2")
    E("    s_lshl_b32 s35, s33, 5")
    E("    v_add_u32 v1, s35, v1")
    E("    v_lshlrev_b32 v3, 10, v2")
    E("    v_lshlrev_b32 v4, 2, v1")
    E("    v_add_u32 v3, v3, v4")
    E("    v_add_u32 v4, 4096, v3")
    E("    v_subrev_u32 v5, 3072, v3")
    E("    v_lshlrev_b32 v6, 4, v1")
    E("    buffer_load_dwordx4 v[8:11], v6, s[24:27], 0 offen")
    for j in range(3):
        E(f"    buffer_load_dword v{12+j}, v5, s[16:19], 0 offen offset:{1024*j}")
    for j in range(4):
        E(f"    buffer_load_dword v{15+j}, v3, s[16:19], 0 offen offset:{1024*j}")
    for j in range(4):
        E(f"    buffer_load_dword v{19+j}, v4, s[16:19], 0 offen offset:{1024*j}")
    for j in range(4):
        E(f"    buffer_load_dword v{24+j}, v3, s[20:23], 0 offen offset:{1024*j}")
    for j in range(4):
        E(f"    buffer_load_dword v{28+j}, v4, s[20:23], 0 offen offset:{1024*j}")
    E("    v_lshlrev_b32 v6, 13, v1")
    E("    v_sub_u32 v7, 2040, v2")
    E("    v_lshlrev_b32 v7, 1, v7")
    E("    v_add_u32 v6, v6, v7")
    E("    v_add_u32 v7, 4096, v6")
    E("    buffer_load_dword v113, v112, s[56:59], s60 offen sc1")
    E("    s_waitcnt vmcnt(1)")
    pstamp(1)
    for c in range(2):
        for d in range(2):
            E(f"    v_lshlrev_b32 v{32+4*c+2*d}, 16, v{8+2*c+d}")
            E(f"    v_and_b32 v{33+4*c+2*d}, s40, v{8+2*c+d}")
    for j in range(11):
        E(f"    v_lshlrev_b32 v{40+j}, 16, v{12+j}")
        E(f"    v_and_b32 v{52+j}, s40, v{12+j}")
    for j in range(8):
        E(f"    v_lshlrev_b32 v{64+j}, 16, v{24+j}")
        E(f"    v_and_b32 v{72+j}, s40, v{24+j}")
    for j in range(8):
        A0, A1, B0, B1, T = 96, 97, 98, 99, 100
        E(f"    v_mul_f32 v{A0}, v{40+j}, v35")
        E(f"    v_mul_f32 v{A1}, v{52+j}, v39")
        E(f"    v_mul_f32 v{B0}, v{41+j}, v34")
        E(f"    v_mul_f32 v{B1}, v{53+j}, v38")
        round_pair(A0, A1, T, 40)
        round_pair(B0, B1, T, 40)
        E(f"    v_add_f32 v{A0}, v{A0}, v{B0}")
        E(f"    v_add_f32 v{A1}, v{A1}, v{B1}")
        E(f"    v_mul_f32 v{B0}, v{42+j}, v33")
        E(f"    v_mul_f32 v{B1}, v{54+j}, v37")
        round_pair(A0, A1, T, 40)
        round_pair(B0, B1, T, 40)
        E(f"    v_add_f32 v{A0}, v{A0}, v{B0}")
        E(f"    v_add_f32 v{A1}, v{A1}, v{B1}")
        E(f"    v_mul_f32 v{B0}, v{43+j}, v32")
        E(f"    v_mul_f32 v{B1}, v{55+j}, v36")
        round_pair(A0, A1, T, 40)
        round_pair(B0, B1, T, 40)
        E(f"    v_add_f32 v{A0}, v{A0}, v{B0}")
        E(f"    v_add_f32 v{A1}, v{A1}, v{B1}")
        round_pair(A0, A1, T, 40)
        E(f"    v_mul_f32 v{80+j}, v{A0}, v{64+j}")
        E(f"    v_mul_f32 v{88+j}, v{A1}, v{72+j}")
    for c in range(2):
        for jj in range(4):
            E(f"    v_cvt_pk_bf16_f32 v{104+4*c+jj}, v{80+8*c+7-2*jj}, v{80+8*c+6-2*jj}")
    E("    buffer_store_dwordx4 v[104:107], v6, s[28:31], 0 offen")
    E("    buffer_store_dwordx4 v[108:111], v7, s[28:31], 0 offen")
    pstamp(2)
    if DIAG:
        E("    s_waitcnt vmcnt(0)")
    pstamp(3)
    pstamp(31, True)
    E("    s_endpgm")
    E("prep_w:")
    E("    s_sub_u32 s30, s2, 768")
    E("    s_and_b32 s31, s30, 15")
    E("    s_bfe_u32 s32, s30, 0x10004")
    E("    s_lshr_b32 s33, s30, 5")
    E("    v_lshrrev_b32 v2, 6, v0")
    E("    v_and_b32 v1, 63, v0")
    E("    s_nop 0")
    E("    v_readfirstlane_b32 s3, v2")
    E("    s_cmp_eq_u32 s32, 1")
    E("    s_cselect_b32 s52, s46, s44")
    E("    s_cselect_b32 s53, s47, s45")
    srd(16, 52, 53, D * F * 2)
    E("    s_mul_i32 s34, s31, 3")
    E("    s_lshl_b32 s35, s31, 1")
    E("    s_add_u32 s35, s35, 11")
    E("    s_cmp_lt_u32 s31, 11")
    E("    s_cselect_b32 s34, s34, s35")
    E("    s_cselect_b32 s35, 3, 2")
    E("    s_lshl_b32 s36, s34, 16")
    E(f"    s_add_u32 s36, s36, {WS_WT}")
    srd_off(20, 14, 15, "s36", 3 * 65536)
    E("    s_lshl_b32 s37, s33, 2")
    E("    s_add_u32 s37, s37, s3")
    E("    v_lshrrev_b32 v3, 2, v1")
    E("    s_movk_i32 s38, 2752")
    E("    v_mul_lo_u32 v3, v3, s38")
    E("    v_and_b32 v4, 3, v1")
    E("    v_lshl_add_u32 v3, v4, 4, v3")
    E("    s_mul_i32 s38, s37, 32*2752")
    E("    s_lshl_b32 s39, s34, 6")
    E("    s_add_u32 s38, s38, s39")
    E("    s_add_u32 s39, s38, 16*2752")
    E("    v_lshlrev_b32 v4, 4, v1")
    E("    s_lshl_b32 s41, s37, 1")
    E("    s_add_u32 s41, s41, s32")
    E("    s_mul_i32 s41, s41, s35")
    E("    s_lshl_b32 s41, s41, 11")
    for t in range(2):
        E(f"    buffer_load_dwordx4 v[{8+8*t}:{11+8*t}], v3, s[16:19], s38 offen offset:{64*t}")
        E(f"    buffer_load_dwordx4 v[{12+8*t}:{15+8*t}], v3, s[16:19], s39 offen offset:{64*t}")
    E("    s_cmp_eq_u32 s35, 2")
    E("    s_cbranch_scc1 prep_w2")
    E("    buffer_load_dwordx4 v[24:27], v3, s[16:19], s38 offen offset:128")
    E("    buffer_load_dwordx4 v[28:31], v3, s[16:19], s39 offen offset:128")
    E("    s_waitcnt vmcnt(0)")
    E("    s_add_u32 s42, s41, 4096")
    E("    buffer_store_dwordx4 v[24:27], v4, s[20:23], s42 offen")
    E("    buffer_store_dwordx4 v[28:31], v4, s[20:23], s42 offen offset:1024")
    E("prep_w2:")
    E("    s_waitcnt vmcnt(0)")
    pstamp(1)
    for t in range(2):
        E(f"    buffer_store_dwordx4 v[{8+8*t}:{11+8*t}], v4, s[20:23], s41 offen offset:{2048*t}")
        E(f"    buffer_store_dwordx4 v[{12+8*t}:{15+8*t}], v4, s[20:23], s41 offen offset:{2048*t+1024}")
    pstamp(2)
    if DIAG:
        E("    s_waitcnt vmcnt(0)")
    pstamp(3)
    pstamp(31, True)
    E("prep_done:")
    E("    s_endpgm")


COPY_BYTES = 4240
_order = [(1, 0), (0, 11), (2, 4), (5, 0), (4, 12), (3, 8), (6, 4), (7, 8)]
COPY_BASE = {}
_pos = 0
for _b, _beta in _order:
    while (_pos // 16) % 16 != _beta:
        _pos += 16
    COPY_BASE[_b] = _pos
    _pos += COPY_BYTES
KV_OFF = (_pos + 15) // 16 * 16
CH_BYTES = (KV_OFF + 33 * 144 + 255) // 256 * 256
MAIN_LDS = max(2 * CH_BYTES, 81920)
assert MAIN_LDS <= 81920, MAIN_LDS


def gen_gemm1_path(nt):
    vm = VM()
    ACC = 128
    WF = 64
    XF = 112
    STG = 20480
    NB = 4
    nst = 16

    def dma_ops(st):
        buf = st % NB
        ops = []
        for j in range(2):
            def f(j=j):
                E(f"    s_add_u32 s38, s41, {st*8192 + j*1024}")
                E(f"    s_add_u32 m0, s41, {buf*STG + j*1024}")
                E("    s_nop 0")
                E(f"    buffer_load_dwordx4 v8, s[20:23], s38 offen lds")
                vm.issue(("dma", st))
            ops.append(f)
        for i in range(nt):
            def f(i=i):
                E(f"    s_add_u32 s38, s43, {st*nt*4096 + i*4096}")
                E(f"    s_add_u32 m0, s43, {buf*STG + 8192 + i*4096}")
                E("    s_nop 0")
                E(f"    buffer_load_dwordx4 v8, s[16:19], s38 offen lds")
                vm.issue(("dma", st))
            ops.append(f)
        return ops

    def fr_ops(setidx, buf, ks):
        ops = []
        x = XF + 4 * setidx
        ops.append(lambda: E(f"    ds_read_b128 v[{x}:{x+3}], v{4+ks} offset:{buf*STG}"))
        for mt in range(2 * nt):
            r = WF + 24 * setidx + 4 * mt
            base = (buf % 2) * STG + 8192 + mt * 2048 + ks * 1024
            vb = 11 if buf < 2 else 15
            ops.append(lambda r=r, vb=vb, base=base: E(f"    ds_read_b64_tr_b16 v[{r}:{r+1}], v{vb} offset:{base}"))
            ops.append(lambda r=r, vb=vb, base=base: E(f"    ds_read_b64_tr_b16 v[{r+2}:{r+3}], v{vb} offset:{base+256}"))
        return ops

    def mfma_group(setidx, first, reads, dmas):
        x = XF + 4 * setidx
        reads = list(reads)
        dmas = list(dmas)
        n = 2 * nt
        rg = n // 2
        per = (len(reads) + rg - 1) // rg
        for mt in range(n):
            w = WF + 24 * setidx + 4 * mt
            a = ACC + 16 * mt
            c = "0" if first else f"v[{a}:{a+15}]"
            E(f"    v_mfma_f32_32x32x16_bf16 v[{a}:{a+15}], v[{w}:{w+3}], v[{x}:{x+3}], {c}")
            if mt < rg:
                for _ in range(per):
                    if reads:
                        reads.pop(0)()
            else:
                k = 1 if mt + 1 < n else len(dmas)
                for _ in range(k):
                    if dmas:
                        dmas.pop(0)()

    stamp(11, vm)
    for st in range(2):
        for f in dma_ops(st):
            f()
    E("    v_lshlrev_b32 v9, 7, v1")
    E("    buffer_load_dword v10, v9, s[20:23], s46 offen sc1")
    vm.issue("pf")
    E(f"    s_mul_i32 s47, s47, {nt*8192}")
    E(f"    s_min_u32 s48, s3, {nt-1}")
    E("    s_lshl_b32 s48, s48, 13")
    E("    s_add_u32 s47, s47, s48")
    E("    buffer_load_dword v10, v9, s[16:19], s47 offen sc1")
    vm.issue("pf")
    stamp(12, vm)
    vm.wait(("dma", 0))
    stamp(13, vm)
    E("    s_barrier")
    stamp(1, vm)
    for f in fr_ops(0, 0, 0):
        f()
    for f in dma_ops(2):
        f()
    for st in range(nst):
        buf = st % NB
        dm = dma_ops(st + 3) if st + 3 < nst else []
        na = len(dm) // 2
        E("    s_waitcnt lgkmcnt(0)")
        mfma_group(0, st == 0, fr_ops(1, buf, 1), dm[:na])
        if st + 1 < nst:
            vm.wait(("dma", st + 1))
        E("    s_waitcnt lgkmcnt(0)")
        rd = []
        if st + 1 < nst:
            E("    s_barrier")
            if st % 2 == 1:
                stamp(2 + st // 2, vm)
            rd = fr_ops(0, (st + 1) % NB, 0)
        mfma_group(1, False, rd, dm[na:])
    stamp(10, vm)
    E("    s_nop 15")
    for tau in range(nt):
        G = ACC + 16 * tau
        U = ACC + 16 * (nt + tau)
        T = 14
        for j in range(0, 16, 2):
            round_pair(G + j, G + j + 1, T, 40)
            round_pair(U + j, U + j + 1, T, 40)
        for j in range(16):
            E(f"    v_mul_f32 v{G+j}, v{G+j}, v{U+j}")
        P = 16 + 8 * tau
        for j in range(8):
            E(f"    v_cvt_pk_bf16_f32 v{P+j}, v{G+2*j}, v{G+2*j+1}")
        E("    s_nop 1")
        for pair in range(2):
            q0 = P + 4 * pair
            E(f"    v_permlane32_swap_b32 v{q0}, v{q0+2}")
            E(f"    v_permlane32_swap_b32 v{q0+1}, v{q0+3}")
        for pair in range(2):
            q0 = P + 4 * pair
            E(f"    buffer_store_dwordx4 v[{q0}:{q0+3}], v12, s[24:27], s36 offen offset:{tau*64 + pair*32}")
    if DIAG:
        E("    s_waitcnt vmcnt(0)")
    stamp(14)
    stamp(31, real=True)
    E("    s_endpgm")


def gen_main():
    kernel_begin("main_kernel")
    E("    s_cmp_ge_u32 s2, 512")
    E("    s_cbranch_scc1 main_done")
    E("    s_load_dwordx4 s[4:7], s[0:1], 56")
    E("    s_load_dwordx4 s[8:11], s[0:1], 32")
    E("    s_load_dwordx2 s[12:13], s[0:1], 96")
    E("    s_load_dwordx2 s[64:65], s[0:1], 72")
    E("    s_mov_b32 s40, 0xffff0000")
    E("    v_and_b32 v1, 63, v0")
    E("    v_lshrrev_b32 v2, 6, v0")
    E("    s_nop 0")
    E("    v_readfirstlane_b32 s3, v2")
    E("    s_waitcnt lgkmcnt(0)")
    stamp_init(1, 12, 13)
    stamp(30, real=True)
    stamp(0)
    E("    s_cmp_lt_u32 s2, 256")
    E("    s_cbranch_scc1 main_conv")
    import os
    if os.environ.get("PRIO"):
        E(f"    s_setprio {os.environ['PRIO']}")
    E("    s_sub_u32 s42, s2, 256")
    E("    s_bfe_u32 s30, s42, 0x10002")
    E("    s_lshl_b32 s30, s30, 3")
    E("    s_lshr_b32 s31, s42, 5")
    E("    s_add_u32 s30, s30, s31")
    E("    s_and_b32 s31, s42, 3")
    E("    s_lshl_b32 s31, s31, 2")
    E("    s_bfe_u32 s43, s42, 0x20003")
    E("    s_add_u32 s31, s31, s43")
    E("    s_mul_i32 s34, s31, 3")
    E("    s_lshl_b32 s35, s31, 1")
    E("    s_add_u32 s35, s35, 11")
    E("    s_cmp_lt_u32 s31, 11")
    E("    s_cselect_b32 s34, s34, s35")
    E("    s_lshl_b32 s34, s34, 16")
    E(f"    s_add_u32 s34, s34, {WS_WT}")
    srd_off(16, 12, 13, "s34", 3 * 65536)
    E("    s_lshl_b32 s32, s30, 17")
    E(f"    s_add_u32 s32, s32, {WS_XN}")
    srd_off(20, 12, 13, "s32", 128 * 1024)
    srd_off(24, 12, 13, WS_H, H_BYTES)
    E("    v_and_b32 v3, 31, v1")
    E("    v_lshrrev_b32 v13, 5, v1")
    E("    s_lshl_b32 s33, s3, 5")
    E("    v_add_u32 v3, s33, v3")
    E("    s_lshl_b32 s32, s30, 7")
    E("    v_add_u32 v14, s32, v3")
    E(f"    s_movk_i32 s34, {HP}")
    E("    v_mul_lo_u32 v12, v14, s34")
    E("    v_lshl_add_u32 v12, v13, 4, v12")
    E("    v_bfe_u32 v14, v3, 2, 2")
    E("    v_xor_b32 v14, v14, v13")
    E("    v_lshlrev_b32 v14, 4, v14")
    E("    v_lshl_add_u32 v4, v3, 6, v14")
    E("    v_xor_b32 v5, 32, v4")
    E("    v_lshlrev_b32 v8, 4, v1")
    E("    s_lshl_b32 s46, s3, 2")
    E("    s_add_u32 s46, s46, s43")
    E("    s_lshl_b32 s46, s46, 13")
    E("    s_lshr_b32 s47, s42, 5")
    E("    s_lshl_b32 s41, s3, 11")
    E("    s_lshl_b32 s43, s3, 10")
    E("    v_and_b32 v14, 15, v1")
    E("    v_lshrrev_b32 v15, 2, v14")
    E("    v_lshl_add_u32 v15, v13, 3, v15")
    E("    v_lshlrev_b32 v11, 6, v15")
    E("    v_bfe_u32 v15, v1, 4, 1")
    E("    v_lshl_add_u32 v11, v15, 5, v11")
    E("    v_and_b32 v15, 3, v14")
    E("    v_lshl_add_u32 v11, v15, 3, v11")
    E("    v_add_u32 v15, 40960, v11")
    E("    s_cmp_lt_u32 s31, 11")
    E("    s_cbranch_scc0 main_g2")
    E("    s_mul_i32 s36, s31, 192")
    gen_gemm1_path(3)
    E("main_g2:")
    E("    s_lshl_b32 s36, s31, 7")
    E("    s_add_u32 s36, s36, 704")
    gen_gemm1_path(2)

    E("main_conv:")
    vm = VM()
    E("    s_lshl_b32 s30, s2, 1")
    E("    s_lshr_b32 s31, s3, 1")
    E("    s_add_u32 s30, s30, s31")
    E("    s_and_b32 s32, s3, 1")
    E("    s_lshl_b32 s33, s30, 12")
    srd_off(16, 8, 9, "s33", 4096)
    E("    s_add_u32 s34, s33, %d" % WS_KVR)
    srd_off(20, 12, 13, "s34", 4096)
    E("    s_add_u32 s34, s33, %d" % WS_YT)
    srd_off(24, 12, 13, "s34", 4096)
    srd(44, 10, 11, D * 2)
    E(f"    s_mul_i32 s35, s31, {CH_BYTES}")
    E("    s_lshl_b32 s36, s32, 6")
    E("    v_add_u32 v3, s36, v1")
    E("    v_lshlrev_b32 v4, 5, v3")
    E("    v_subrev_u32 v4, 16, v4")
    E("    buffer_load_dwordx4 v[16:19], v4, s[16:19], 0 offen")
    E("    v_lshlrev_b32 v5, 5, v3")
    E("    buffer_load_dwordx4 v[20:23], v5, s[16:19], 0 offen")
    E("    buffer_load_dwordx4 v[24:27], v5, s[16:19], 0 offen offset:16")
    E("    v_lshlrev_b32 v6, 4, v3")
    E("    buffer_load_dwordx4 v[28:31], v6, s[20:23], 0 offen")
    E("    buffer_load_dwordx4 v[32:35], v6, s[20:23], 0 offen offset:2048")
    E("    s_lshl_b32 s36, s30, 1")
    E("    v_mov_b32 v7, s36")
    E("    buffer_load_ushort v9, v7, s[44:47], 0 offen")
    E("    v_mov_b32 v36, 0")
    E("    v_mov_b32 v37, 0")
    E("    v_mov_b32 v38, 0")
    E("    v_mov_b32 v39, 0")
    E("    v_lshlrev_b32 v7, 4, v1")
    E("    v_add_u32 v7, s35, v7")
    E("    s_mov_b64 exec, 0x7f")
    for b in range(8):
        E(f"    ds_write_b128 v7, v[36:39] offset:{COPY_BASE[b]}")
    E("    s_mov_b64 exec, 0xff")
    E(f"    ds_write_b128 v7, v[36:39] offset:{KV_OFF + 32*144}")
    E("    s_mov_b64 exec, -1")
    E("    v_lshlrev_b32 v7, 5, v3")
    E("    v_add_u32 v7, s35, v7")
    E("    v_lshrrev_b32 v8, 3, v3")
    E("    v_mul_u32_u24 v8, 144, v8")
    E("    v_and_b32 v10, 7, v3")
    E("    v_lshl_add_u32 v8, v10, 4, v8")
    E("    v_add_u32 v8, s35, v8")
    E("    s_waitcnt vmcnt(3)")
    for u in range(2):
        e = 16 + 4 * u
        for b in range(8):
            off = COPY_BASE[b] + 112 + 16 * u
            if b % 2 == 0 and (b // 2) % 2 == 0:
                r = e + b // 2
                E(f"    ds_write_b128 v7, v[{r}:{r+3}] offset:{off}")
            else:
                t = 40 + 4 * ((u * 8 + b) % 4)
                for d in range(4):
                    if b % 2 == 0:
                        E(f"    v_mov_b32 v{t+d}, v{e + b//2 + d}")
                    else:
                        be = (b - 1) // 2
                        E(f"    v_alignbyte_b32 v{t+d}, v{e+be+d+1}, v{e+be+d}, 2")
                E(f"    ds_write_b128 v7, v[{t}:{t+3}] offset:{off}")
    E(f"    ds_write_b128 v7, v[24:27] offset:{COPY_BASE[0] + 112 + 32}")
    E("    s_waitcnt vmcnt(1)")
    E(f"    ds_write_b128 v8, v[28:31] offset:{KV_OFF}")
    E(f"    ds_write_b128 v8, v[32:35] offset:{KV_OFF + 16*144}")
    E("    v_and_b32 v3, 31, v1")
    E("    v_lshrrev_b32 v4, 5, v1")
    E("    v_add_u32 v5, 1, v3")
    E("    v_and_b32 v6, 7, v5")
    E("    v_lshrrev_b32 v5, 3, v5")
    E("    v_sub_u32 v5, v5, v4")
    E("    v_add_u32 v5, 1, v5")
    E("    v_lshlrev_b32 v5, 4, v5")
    E("    v_mov_b32 v10, 0")
    for b in range(8):
        E(f"    v_cmp_eq_u32 vcc, {b}, v6")
        E(f"    v_mov_b32 v11, {COPY_BASE[b]}")
        E("    s_nop 0")
        E("    v_cndmask_b32 v10, v10, v11, vcc")
    E("    v_add_u32 v10, v10, v5")
    E("    s_lshl_b32 s36, s32, 11")
    E("    s_add_u32 s36, s36, s35")
    E("    v_add_u32 v10, s36, v10")
    E("    v_sub_u32 v5, 31, v3")
    E("    s_lshl_b32 s36, s32, 4")
    E("    v_add_u32 v5, s36, v5")
    E("    v_mul_u32_u24 v5, 144, v5")
    E("    v_lshlrev_b32 v6, 4, v4")
    E("    v_sub_u32 v5, v5, v6")
    E(f"    s_add_u32 s36, s35, {KV_OFF + 16}")
    E("    v_add_u32 v11, s36, v5")
    E(f"    s_add_u32 s36, s36, {144*32}")
    E("    v_sub_u32 v12, s36, v6")
    E("    s_waitcnt lgkmcnt(0)")
    stamp(1)
    E("    s_barrier")
    stamp(2)
    FA = 64
    FB = 112
    ACC = 144

    def fslot(t):
        return FA + 4 * ((t + 3) % 12)

    def load_A(t):
        r = fslot(t)
        E(f"    ds_read_b128 v[{r}:{r+3}], v10 offset:{32*(t+3)}")

    def load_B(dl):
        E(f"    v_add_u32 v13, {144*dl}, v11")
        E("    v_min_u32 v13, v13, v12")
        for q in range(4):
            r = FB + 16 * (dl % 2) + 4 * q
            E(f"    ds_read_b128 v[{r}:{r+3}], v13 offset:{32*(3-q)}")

    for t in range(-3, 3):
        load_A(t)
    load_B(0)
    for dl in range(16):
        E("    s_waitcnt lgkmcnt(0)")
        if dl == 6:
            srd(52, 64, 65, F * D * 2)
            E("    s_lshr_b32 s48, s2, 3")
            E("    s_mul_i32 s48, s48, 344*128")
            E("    v_lshlrev_b32 v60, 7, v0")
            E("    buffer_load_dword v61, v60, s[52:55], s48 offen sc1")
            E("    v_min_u32 v60, 87, v0")
            E("    v_lshlrev_b32 v60, 7, v60")
            E("    s_add_u32 s48, s48, 256*128")
            E("    buffer_load_dword v61, v60, s[52:55], s48 offen sc1")

        if dl + 1 < 16:
            for t in range(4 * dl + 3, 4 * dl + 7):
                load_A(t)
            load_B(dl + 1)
        for q in range(4):
            for p in range(2):
                a = fslot(4 * dl + 2 * p - q)
                b = FB + 16 * (dl % 2) + 4 * q
                c = "0" if (dl == 0 and q == 0) else f"v[{ACC+16*p}:{ACC+16*p+15}]"
                E(f"    v_mfma_f32_32x32x16_bf16 v[{ACC+16*p}:{ACC+16*p+15}], v[{a}:{a+3}], v[{b}:{b+3}], {c}")
    stamp(3)
    E("    s_barrier")
    stamp(4)
    E("    v_lshlrev_b32 v13, 4, v1")
    E("    v_add_u32 v13, s35, v13")
    E("    s_lshl_b32 s36, s32, 12")
    E("    v_add_u32 v14, s36, v13")
    E("    s_xor_b32 s36, s36, 4096")
    E("    v_add_u32 v13, s36, v13")
    E("    s_nop 7")
    E("    s_cmp_eq_u32 s32, 0")
    E("    s_cbranch_scc1 conv_hw0")
    for jq in range(4):
        E(f"    ds_write_b128 v13, v[{ACC+4*jq}:{ACC+4*jq+3}] offset:{1024*jq}")
    for j in range(16):
        E(f"    v_mov_b32 v{64+j}, v{ACC+16+j}")
    E("    s_branch conv_x")
    E("conv_hw0:")
    for jq in range(4):
        E(f"    ds_write_b128 v13, v[{ACC+16+4*jq}:{ACC+16+4*jq+3}] offset:{1024*jq}")
    for j in range(16):
        E(f"    v_mov_b32 v{64+j}, v{ACC+j}")
    E("conv_x:")
    E("    s_waitcnt lgkmcnt(0)")
    E("    s_barrier")
    for jq in range(4):
        E(f"    ds_read_b128 v[{80+4*jq}:{80+4*jq+3}], v14 offset:{1024*jq}")
    E("    v_sub_u32 v5, 31, v3")
    E("    v_mul_u32_u24 v5, 144, v5")
    E("    v_lshlrev_b32 v6, 3, v4")
    E("    v_sub_u32 v5, v5, v6")
    E("    s_lshl_b32 s36, s32, 6")
    E(f"    s_sub_u32 s36, {KV_OFF + 120 - 48}, s36")
    E("    s_add_u32 s36, s36, s35")
    E("    v_add_u32 v5, s36, v5")
    for jq in range(4):
        E(f"    ds_read_b64 v[{96+2*jq}:{96+2*jq+1}], v5 offset:{16*(3-jq)}")
    E("    v_lshlrev_b32 v6, 7, v3")
    E("    v_lshl_add_u32 v6, v4, 3, v6")
    E("    s_lshl_b32 s36, s32, 6")
    E("    v_add_u32 v6, s36, v6")
    E("    s_waitcnt vmcnt(0)")
    E("    v_lshlrev_b32 v9, 16, v9")
    E("    s_waitcnt lgkmcnt(0)")
    for j in range(16):
        E(f"    v_add_f32 v{64+j}, v{64+j}, v{80+j}")
    for jq in range(4):
        k0, k1, k2, k3 = 104, 105, 106, 107
        E(f"    v_and_b32 v{k0}, s40, v{97+2*jq}")
        E(f"    v_lshlrev_b32 v{k1}, 16, v{97+2*jq}")
        E(f"    v_and_b32 v{k2}, s40, v{96+2*jq}")
        E(f"    v_lshlrev_b32 v{k3}, 16, v{96+2*jq}")
        for kk in (k0, k1, k2, k3):
            E(f"    v_mul_f32 v{kk}, v{kk}, v9")
        round_pair(k0, k1, 108, 40)
        round_pair(k2, k3, 108, 40)
        y = 64 + 4 * jq
        round_pair(y, y + 1, 108, 40)
        round_pair(y + 2, y + 3, 108, 40)
        for e_, kk in enumerate((k0, k1, k2, k3)):
            E(f"    v_add_f32 v{y+e_}, v{y+e_}, v{kk}")
        E(f"    v_cvt_pk_bf16_f32 v{110+2*jq}, v{y}, v{y+1}")
        E(f"    v_cvt_pk_bf16_f32 v{111+2*jq}, v{y+2}, v{y+3}")
        E(f"    buffer_store_dwordx2 v[{110+2*jq}:{111+2*jq}], v6, s[24:27], 0 offen offset:{16*jq}")
    E("    s_waitcnt vmcnt(0)")
    stamp(5)
    E("main_done:")
    E("    s_endpgm")


NSLOT = 4
SLOT = 32768
FIN_YOFF = NSLOT * SLOT
FIN_XOFF = FIN_YOFF + 8192
FIN_NOFF = FIN_XOFF + 8192
FIN_LDS = FIN_NOFF + 8192


def gen_fin():
    kernel_begin("fin_kernel")
    vm = VM()
    E("    s_cmp_ge_u32 s2, 256")
    E("    s_cbranch_scc1 fin_done")
    E("    s_load_dwordx2 s[4:5], s[0:1], 0")
    E("    s_load_dwordx4 s[8:11], s[0:1], 72")
    E("    s_load_dwordx2 s[12:13], s[0:1], 96")
    E("    s_mov_b32 s40, 0xffff0000")
    E("    v_and_b32 v1, 63, v0")
    E("    v_lshrrev_b32 v2, 6, v0")
    E("    s_nop 0")
    E("    v_readfirstlane_b32 s3, v2")
    E("    s_waitcnt lgkmcnt(0)")
    stamp_init(2, 12, 13)
    stamp(0, vm)
    E("    s_and_b32 s30, s2, 7")
    E("    s_bfe_u32 s31, s2, 0x20003")
    E("    s_lshl_b32 s31, s31, 3")
    E("    s_add_u32 s30, s30, s31")
    E("    s_lshr_b32 s31, s2, 5")
    E("    s_and_b32 s32, s3, 1")
    E("    s_lshr_b32 s33, s3, 1")
    srd(16, 8, 9, F * D * 2)
    srd_off(20, 12, 13, WS_H, H_BYTES)
    E("    v_lshrrev_b32 v3, 3, v1")
    E("    s_lshl_b32 s34, s3, 5")
    E("    v_add_u32 v3, s34, v3")
    E("    v_lshlrev_b32 v10, 10, v3")
    E("    v_and_b32 v4, 7, v1")
    E("    v_bfe_u32 v5, v1, 4, 1")
    E("    v_lshlrev_b32 v5, 2, v5")
    E("    v_xor_b32 v4, v4, v5")
    E("    v_lshl_add_u32 v10, v4, 4, v10")
    E("    s_lshl_b32 s34, s31, 7")
    E("    v_add_u32 v10, s34, v10")
    E("    s_lshl_b32 s37, s3, 12")
    E("    v_lshrrev_b32 v3, 4, v1")
    E("    s_lshl_b32 s34, s30, 6")
    E("    s_lshl_b32 s35, s3, 4")
    E("    s_add_u32 s34, s34, s35")
    E("    v_add_u32 v4, s34, v3")
    E(f"    s_movk_i32 s35, {HP}")
    E("    v_mul_lo_u32 v4, v4, s35")
    E("    v_and_b32 v5, 15, v1")
    E("    v_xor_b32 v5, v5, v3")
    E("    v_lshl_add_u32 v16, v5, 4, v4")
    E("    v_xor_b32 v6, 4, v5")
    E("    v_lshl_add_u32 v17, v6, 4, v4")
    E("    v_xor_b32 v6, 8, v5")
    E("    v_lshl_add_u32 v18, v6, 4, v4")
    E("    v_xor_b32 v6, 12, v5")
    E("    v_lshl_add_u32 v19, v6, 4, v4")
    nch = 11

    def dma_ops(c):
        slot = c % NSLOT
        ops = []
        for j in range(4):
            def f(j=j):
                E(f"    s_mov_b32 s38, {256*c + 4*j*HP}")
                E(f"    s_add_u32 m0, s37, {slot*SLOT + j*1024}")
                E("    s_nop 0")
                E(f"    buffer_load_dwordx4 v{16+j}, s[20:23], s38 offen lds")
                vm.issue(("dma", c))
            ops.append(f)
        for j in range(4):
            def f(j=j):
                E(f"    s_mov_b32 s38, {(128*c + 8*j)*1024}")
                E(f"    s_add_u32 m0, s37, {slot*SLOT + 16384 + j*1024}")
                E("    s_nop 0")
                E("    buffer_load_dwordx4 v10, s[16:19], s38 offen lds")
                vm.issue(("dma", c))
            ops.append(f)
        return ops

    def issue_dma(c):
        for f in dma_ops(c):
            f()

    issue_dma(0)
    E("    s_lshr_b32 s34, s2, 3")
    E("    s_and_b32 s35, s34, 3")
    E("    s_lshl_b32 s35, s35, 3")
    E("    s_and_b32 s36, s2, 7")
    E("    s_add_u32 s35, s35, s36")
    E(f"    s_mul_i32 s35, s35, {64*HP}")
    E("    s_lshr_b32 s36, s34, 2")
    E("    s_mul_i32 s36, s36, 176*128")
    E("    s_add_u32 s35, s35, s36")
    E("    v_min_u32 v4, 175, v0")
    E("    v_lshlrev_b32 v4, 7, v4")
    E("    buffer_load_dword v38, v4, s[20:23], s35 offen sc1")
    vm.issue("pf")
    issue_dma(1)
    late = []
    srd(24, 4, 5, S * D * 2)
    srd_off(44, 12, 13, WS_XN, S * D * 2)
    srd_off(48, 12, 13, WS_YT, S * D * 2)
    srd(52, 10, 11, S * D * 2)
    E("    s_lshl_b32 s34, s3, 4")
    E("    v_add_u32 v3, s34, v1")
    E("    v_lshlrev_b32 v4, 10, v3")
    E("    s_lshl_b32 s34, s30, 16")
    E("    s_lshl_b32 s35, s31, 7")
    E("    s_add_u32 s34, s34, s35")
    E("    v_lshrrev_b32 v5, 5, v3")
    E("    v_lshlrev_b32 v5, 13, v5")
    E("    v_and_b32 v6, 31, v3")
    E("    v_lshl_add_u32 v5, v6, 7, v5")
    E("    s_lshr_b32 s35, s30, 1")
    E("    s_lshl_b32 s35, s35, 17")
    E("    s_and_b32 s36, s30, 1")
    E("    s_lshl_b32 s36, s36, 12")
    E("    s_add_u32 s35, s35, s36")
    E("    s_lshl_b32 s36, s31, 14")
    E("    s_add_u32 s35, s35, s36")
    E("    v_lshlrev_b32 v6, 12, v3")
    E("    s_lshl_b32 s36, s31, 18")
    E("    s_lshl_b32 s38, s30, 7")
    E("    s_add_u32 s36, s36, s38")
    E("    s_mov_b64 exec, 0xffff")
    E("    buffer_load_dword v38, v4, s[24:27], s34 offen sc1")
    E("    buffer_load_dword v38, v5, s[44:47], s35 offen sc1")
    E("    buffer_load_dword v38, v6, s[48:51], s36 offen sc1")
    E("    s_mov_b64 exec, -1")
    for _ in range(3):
        vm.issue("pf")
    E("    v_lshrrev_b32 v3, 3, v1")
    E("    s_lshl_b32 s34, s31, 6")
    E("    s_lshl_b32 s35, s3, 4")
    E("    s_add_u32 s34, s34, s35")
    E("    v_add_u32 v3, s34, v3")
    E("    v_lshlrev_b32 v9, 12, v3")
    E("    v_and_b32 v4, 7, v1")
    E("    v_lshl_add_u32 v9, v4, 4, v9")
    E("    s_lshl_b32 s34, s30, 7")
    E("    v_add_u32 v9, s34, v9")
    E("    s_lshl_b32 s35, s3, 11")
    E("    s_mov_b32 s39, s35")
    for j in range(2):
        def f(j=j):
            E(f"    s_add_u32 m0, s39, {FIN_YOFF + 1024*j}")
            E(f"    s_mov_b32 s38, {8*4096*j}")
            E(f"    buffer_load_dwordx4 v9, s[48:51], s38 offen lds")
            vm.issue("y")
        late.append(f)
    E("    v_and_b32 v3, 31, v1")
    E("    s_lshl_b32 s35, s32, 5")
    E("    v_add_u32 v3, s35, v3")
    E("    s_lshl_b32 s34, s30, 6")
    E("    v_add_u32 v6, s34, v3")
    E("    v_lshrrev_b32 v4, 5, v1")
    E("    v_lshlrev_b32 v13, 10, v6")
    E("    v_lshl_add_u32 v13, v4, 3, v13")
    E("    s_lshl_b32 s34, s31, 7")
    E("    s_lshl_b32 s35, s33, 6")
    E("    s_add_u32 s34, s34, s35")
    E("    v_add_u32 v13, s34, v13")
    XR, NR = 96, 104
    E("    v_lshrrev_b32 v5, 3, v1")
    E("    v_and_b32 v7, 7, v1")
    E("    v_xor_b32 v7, v7, v5")
    E("    v_lshlrev_b32 v40, 10, v5")
    E("    v_lshl_add_u32 v40, v7, 4, v40")
    E("    s_lshl_b32 s34, s30, 2")
    E("    s_add_u32 s34, s34, s3")
    E("    s_lshl_b32 s34, s34, 14")
    E("    s_lshl_b32 s35, s31, 7")
    E("    s_add_u32 s42, s34, s35")
    for j in range(2):
        def f(j=j):
            E(f"    s_add_u32 m0, s39, {FIN_XOFF + 1024*j}")
            E(f"    s_add_u32 s38, s42, {8192*j}")
            E(f"    buffer_load_dwordx4 v40, s[24:27], s38 offen lds")
            vm.issue("x")
        late.append(f)
    E("    v_lshlrev_b32 v41, 4, v1")
    E("    s_lshr_b32 s34, s30, 1")
    E("    s_lshl_b32 s34, s34, 17")
    E("    s_lshl_b32 s35, s31, 1")
    E("    s_add_u32 s35, s35, s33")
    E("    s_lshl_b32 s35, s35, 13")
    E("    s_add_u32 s34, s34, s35")
    E("    s_and_b32 s35, s30, 1")
    E("    s_lshl_b32 s35, s35, 12")
    E("    s_add_u32 s34, s34, s35")
    E("    s_lshl_b32 s35, s32, 11")
    E("    s_add_u32 s41, s34, s35")
    for j in range(2):
        def f(j=j):
            E(f"    s_add_u32 m0, s39, {FIN_NOFF + 1024*j}")
            E(f"    s_add_u32 s38, s41, {1024*j}")
            E(f"    buffer_load_dwordx4 v41, s[44:47], s38 offen lds")
            vm.issue("x")
        late.append(f)
    E("    v_and_b32 v5, 7, v3")
    E("    s_lshl_b32 s35, s33, 2")
    E("    v_xor_b32 v5, s35, v5")
    E("    v_lshlrev_b32 v42, 7, v3")
    E("    v_lshl_add_u32 v42, v5, 4, v42")
    E("    v_lshl_add_u32 v42, v4, 3, v42")
    E(f"    v_add_u32 v42, {FIN_XOFF}, v42")
    E("    v_bfe_u32 v5, v3, 2, 2")
    E("    v_lshlrev_b32 v43, 6, v3")
    E("    v_lshl_add_u32 v43, v5, 4, v43")
    E("    v_lshl_add_u32 v43, v4, 3, v43")
    E("    s_lshl_b32 s35, s33, 12")
    E(f"    s_add_u32 s35, s35, {FIN_NOFF}")
    E("    v_add_u32 v43, s35, v43")
    E("    v_and_b32 v5, 15, v1")
    E("    v_lshrrev_b32 v6, 2, v5")
    E("    v_lshl_add_u32 v6, v4, 3, v6")
    E("    v_lshlrev_b32 v11, 7, v6")
    E("    v_bfe_u32 v6, v1, 4, 1")
    E("    v_lshlrev_b32 v6, 5, v6")
    E("    v_and_b32 v7, 3, v5")
    E("    v_lshl_add_u32 v6, v7, 3, v6")
    E("    s_lshl_b32 s35, s33, 6")
    E("    v_add_u32 v6, s35, v6")
    E("    v_bfe_u32 v7, v1, 3, 1")
    E("    v_lshlrev_b32 v7, 6, v7")
    E("    v_xor_b32 v6, v6, v7")
    E("    v_add_u32 v11, v11, v6")
    E("    v_add_u32 v11, 16384, v11")
    E(f"    v_add_u32 v12, {2*SLOT}, v11")
    E("    v_and_b32 v6, 15, v3")
    E("    v_xor_b32 v6, v6, v4")
    E("    v_lshlrev_b32 v6, 4, v6")
    E("    v_lshl_add_u32 v20, v3, 8, v6")
    for ks in range(1, 8):
        E(f"    v_xor_b32 v{20+ks}, {32*ks}, v20")
    for ks in range(8):
        E(f"    v_add_u32 v{28+ks}, {2*SLOT}, v{20+ks}")
    ACC = 64
    FR = 112

    def fr_ops(setidx, slot, ks):
        r = FR + 64 * setidx + 8 * ks
        so = (slot % 2) * SLOT
        wb = 11 if slot < 2 else 12
        hb = (20 if slot < 2 else 28) + ks
        return [lambda: E(f"    ds_read_b64_tr_b16 v[{r}:{r+1}], v{wb} offset:{so + ks*2048}"),
                lambda: E(f"    ds_read_b64_tr_b16 v[{r+2}:{r+3}], v{wb} offset:{so + ks*2048+512}"),
                lambda: E(f"    ds_read_b128 v[{r+4}:{r+7}], v{hb} offset:{so}")]

    def nk_of(c):
        return 8 if c < 10 else 6

    vm.wait(("dma", 0))
    E("    s_barrier")
    stamp(1, vm)
    for ks in range(8):
        for f in fr_ops(0, 0, ks):
            f()
    issue_dma(2)
    for c in range(nch):
        if c + 1 < nch:
            vm.wait(("dma", c + 1))
        E("    s_waitcnt lgkmcnt(0)")
        rd = []
        dm = []
        if c + 1 < nch:
            E("    s_barrier")
            stamp(2 + c, vm)
            for ks in range(nk_of(c + 1)):
                rd += fr_ops((c + 1) % 2, (c + 1) % NSLOT, ks)
        if c + 3 < nch:
            dm = dma_ops(c + 3)
        if c == 6:
            dm = late + dm
        for ks in range(nk_of(c)):
            r = FR + 64 * (c % 2) + 8 * ks
            cc = "0" if (c == 0 and ks == 0) else f"v[{ACC}:{ACC+15}]"
            E(f"    v_mfma_f32_32x32x16_bf16 v[{ACC}:{ACC+15}], v[{r}:{r+3}], v[{r+4}:{r+7}], {cc}")
            last = ks + 1 == nk_of(c)
            for _ in range(len(rd) if last else 4):
                if rd:
                    rd.pop(0)()
            for _ in range(len(dm) if last else (2 if c == 6 else 1)):
                if dm:
                    dm.pop(0)()
    stamp(12, vm)
    E("    v_lshrrev_b32 v6, 2, v5")
    E("    v_lshl_add_u32 v6, v4, 2, v6")
    E("    s_lshl_b32 s35, s33, 5")
    E("    v_add_u32 v6, s35, v6")
    E("    v_lshlrev_b32 v14, 7, v6")
    E("    v_bfe_u32 v6, v1, 4, 1")
    E("    v_lshlrev_b32 v6, 5, v6")
    E("    v_and_b32 v7, 3, v5")
    E("    v_lshl_add_u32 v6, v7, 3, v6")
    E("    s_lshl_b32 s35, s32, 6")
    E("    v_add_u32 v6, s35, v6")
    E("    v_add_u32 v14, v14, v6")
    E(f"    v_add_u32 v14, {FIN_YOFF}, v14")
    YR = 24
    for jq in range(4):
        E(f"    ds_read_b64_tr_b16 v[{YR+2*jq}:{YR+2*jq+1}], v14 offset:{jq*1024}")
    for jq in range(4):
        E(f"    v_xor_b32 v44, {16*jq}, v42")
        E(f"    v_xor_b32 v45, {16*jq}, v43")
        E(f"    ds_read_b64 v[{XR+2*jq}:{XR+2*jq+1}], v44")
        E(f"    ds_read_b64 v[{NR+2*jq}:{NR+2*jq+1}], v45")
    vm.wait_all()
    E("    s_waitcnt lgkmcnt(0)")
    E("    s_nop 7")
    for jq in range(4):
        a = ACC + 4 * jq
        t = 36
        xs = [t, t + 1, t + 2, t + 3]
        ns = [t + 4, t + 5, t + 6, t + 7]
        ys = [t + 8, t + 9, t + 10, t + 11]
        for (dst, src) in ((xs, XR + 2 * jq), (ns, NR + 2 * jq), (ys, YR + 2 * jq)):
            E(f"    v_lshlrev_b32 v{dst[0]}, 16, v{src}")
            E(f"    v_and_b32 v{dst[1]}, s40, v{src}")
            E(f"    v_lshlrev_b32 v{dst[2]}, 16, v{src+1}")
            E(f"    v_and_b32 v{dst[3]}, s40, v{src+1}")
        for e_ in range(4):
            E(f"    v_mul_f32 v{ns[e_]}, v{ns[e_]}, v{ys[e_]}")
        round_pair(ns[0], ns[1], t + 12, 40)
        round_pair(ns[2], ns[3], t + 12, 40)
        for e_ in range(4):
            E(f"    v_add_f32 v{xs[e_]}, v{xs[e_]}, v{ns[e_]}")
        round_pair(xs[0], xs[1], t + 12, 40)
        round_pair(xs[2], xs[3], t + 12, 40)
        round_pair(a, a + 1, t + 12, 40)
        round_pair(a + 2, a + 3, t + 12, 40)
        for e_ in range(4):
            E(f"    v_add_f32 v{xs[e_]}, v{xs[e_]}, v{a+e_}")
        o = 52 + 2 * jq
        E(f"    v_cvt_pk_bf16_f32 v{o}, v{xs[0]}, v{xs[1]}")
        E(f"    v_cvt_pk_bf16_f32 v{o+1}, v{xs[2]}, v{xs[3]}")
        E(f"    buffer_store_dwordx2 v[{o}:{o+1}], v13, s[52:55], 0 offen offset:{16*jq}")
    if DIAG:
        E("    s_waitcnt vmcnt(0)")
    stamp(13)
    E("fin_done:")
    E("    s_endpgm")


def descriptor(name, vgpr, sgpr=96):
    E(f".amdhsa_kernel {name}")
    E(f"  .amdhsa_next_free_vgpr {vgpr}")
    E(f"  .amdhsa_next_free_sgpr {sgpr}")
    E(f"  .amdhsa_accum_offset {(vgpr + 3)//4*4}")
    E("  .amdhsa_group_segment_fixed_size 0")
    E("  .amdhsa_kernarg_size 104")
    E("  .amdhsa_user_sgpr_count 2")
    E("  .amdhsa_user_sgpr_kernarg_segment_ptr 1")
    E("  .amdhsa_system_sgpr_workgroup_id_x 1")
    E(".end_amdhsa_kernel")


def main():
    hdr = open("parallel_sum__ssm_conv_h3__glu_gated_bilinear__prompt.s.ref").read().splitlines()
    for l in hdr:
        if l.startswith("; Override") or l.startswith("; grid=") or l.startswith("; @launch"):
            continue
        if not l.startswith(";"):
            break
        E(l)
    E("; @launch kernel=prep_kernel grid=(896,1,1) block=(256,1,1) lds=0")
    E(f"; @launch kernel=main_kernel grid=(512,1,1) block=(256,1,1) lds={MAIN_LDS}")
    E(f"; @launch kernel=fin_kernel grid=(256,1,1) block=(256,1,1) lds={FIN_LDS}")
    E('.amdgcn_target "amdgcn-amd-amdhsa--gfx950"')
    E(".text")
    gen_prep()
    gen_main()
    gen_fin()
    E('.section .rodata,"a"')
    E(".p2align 6")
    descriptor("prep_kernel", 256 if DIAG else 116)
    E(".p2align 6")
    descriptor("main_kernel", 256 if DIAG else 224)
    E(".p2align 6")
    descriptor("fin_kernel", 256 if DIAG else 240)
    path = sys.argv[1] if len(sys.argv) > 1 else "parallel_sum__ssm_conv_h3__glu_gated_bilinear__prompt.s"
    open(path, "w").write("\n".join(out) + "\n")
    print("wrote", path, len(out), "lines; MAIN_LDS", MAIN_LDS, "FIN_LDS", FIN_LDS, "COPY_BASE", COPY_BASE, "KV_OFF", KV_OFF, "CH_BYTES", CH_BYTES)


main()
```

```python
import sys

S, D, F = 2048, 512, 1376
WS_XN = 0x000000
WS_KVR = 0x200000
WS_H = 0x400000
WS_YT = 0xA00000
WS_WT = 0xC00000
HP = 2816
H_BYTES = S * HP

out = []


def E(s=""):
    out.append(s)


class VM:
    def __init__(self):
        self.q = []

    def issue(self, tag):
        self.q.append(tag)

    def wait(self, tag):
        idx = -1
        for i, t in enumerate(self.q):
            if t == tag:
                idx = i
        if idx < 0:
            return
        n = len(self.q) - 1 - idx
        assert n <= 63, n
        E(f"    s_waitcnt vmcnt({n})")
        self.q = self.q[idx + 1:]

    def wait_all(self):
        E("    s_waitcnt vmcnt(0)")
        self.q = []


DIAG = len(sys.argv) > 2 and sys.argv[2] == "diag"
STAMP_WS = 0x2000000


def stamp_init(kidx, ws_lo, ws_hi):
    if not DIAG:
        return
    E(f"    s_add_u32 s56, s{ws_lo}, {STAMP_WS + kidx*1024*4*32*4}")
    E(f"    s_addc_u32 s57, s{ws_hi}, 0")
    E("    s_and_b32 s57, s57, 0xffff")
    E("    s_mov_b32 s58, 0x80000")
    E("    s_mov_b32 s59, 0x00020000")
    E("    s_lshl_b32 s60, s2, 2")
    E("    s_add_u32 s60, s60, s3")
    E("    s_lshl_b32 s60, s60, 7")
    E("    v_mov_b32 v254, s60")


def stamp(slot, vm=None, real=False):
    if not DIAG:
        return
    E("    s_waitcnt lgkmcnt(0)")
    E("    s_memrealtime s[62:63]" if real else "    s_memtime s[62:63]")
    E("    s_waitcnt lgkmcnt(0)")
    E("    v_mov_b32 v255, s62")
    E("    s_mov_b64 s[60:61], exec")
    E("    s_mov_b64 exec, 1")
    E(f"    buffer_store_dword v255, v254, s[56:59], 0 offen offset:{4*slot}")
    E("    s_mov_b64 exec, s[60:61]")
    if vm is not None:
        vm.issue("stamp")


def pstamp(slot, real=False):
    if not DIAG:
        return
    E("    s_waitcnt lgkmcnt(0)")
    E("    s_memrealtime s[72:73]" if real else "    s_memtime s[72:73]")
    E("    s_waitcnt lgkmcnt(0)")
    E("    v_mov_b32 v255, s72")
    E("    s_mov_b64 s[74:75], exec")
    E("    s_mov_b64 exec, 1")
    E(f"    buffer_store_dword v255, v254, s[68:71], 0 offen offset:{4*slot}")
    E("    s_mov_b64 exec, s[74:75]")


def srd(dst, lo, hi, nbytes):
    E(f"    s_mov_b32 s{dst}, s{lo}")
    E(f"    s_and_b32 s{dst+1}, s{hi}, 0xffff")
    E(f"    s_mov_b32 s{dst+2}, {nbytes}")
    E(f"    s_mov_b32 s{dst+3}, 0x00020000")


def srd_off(dst, lo, hi, off, nbytes):
    E(f"    s_add_u32 s{dst}, s{lo}, {off}")
    E(f"    s_addc_u32 s{dst+1}, s{hi}, 0")
    E(f"    s_and_b32 s{dst+1}, s{dst+1}, 0xffff")
    E(f"    s_mov_b32 s{dst+2}, {nbytes}")
    E(f"    s_mov_b32 s{dst+3}, 0x00020000")


def kernel_begin(name):
    E(f".globl {name}")
    E(".p2align 8")
    E(f".type {name},@function")
    E(f"{name}:")


def wave_reduce_add(v, t):
    E("    s_nop 1")
    E(f"    v_add_f32_dpp v{t}, v{v}, v{v} quad_perm:[1,0,3,2] row_mask:0xf bank_mask:0xf")
    E("    s_nop 1")
    E(f"    v_add_f32_dpp v{v}, v{t}, v{t} quad_perm:[2,3,0,1] row_mask:0xf bank_mask:0xf")
    E("    s_nop 1")
    E(f"    v_add_f32_dpp v{t}, v{v}, v{v} row_half_mirror row_mask:0xf bank_mask:0xf")
    E("    s_nop 1")
    E(f"    v_add_f32_dpp v{v}, v{t}, v{t} row_mirror row_mask:0xf bank_mask:0xf")
    E(f"    v_mov_b32 v{t}, v{v}")
    E("    s_nop 1")
    E(f"    v_permlane16_swap_b32 v{v}, v{t}")
    E("    s_nop 1")
    E(f"    v_add_f32 v{v}, v{v}, v{t}")
    E(f"    v_mov_b32 v{t}, v{v}")
    E("    s_nop 1")
    E(f"    v_permlane32_swap_b32 v{v}, v{t}")
    E("    s_nop 1")
    E(f"    v_add_f32 v{v}, v{v}, v{t}")


def round_pair(a, b, t, mask_sgpr):
    E(f"    v_cvt_pk_bf16_f32 v{t}, v{a}, v{b}")
    E(f"    v_lshlrev_b32 v{a}, 16, v{t}")
    E(f"    v_and_b32 v{b}, s{mask_sgpr}, v{t}")


def gen_prep():
    kernel_begin("prep_kernel")
    E("    s_cmp_ge_u32 s2, 512")
    E("    s_cbranch_scc1 prep_done")
    E("    s_load_dwordx2 s[4:5], s[0:1], 0")
    E("    s_load_dwordx4 s[8:11], s[0:1], 8")
    E("    s_load_dwordx2 s[12:13], s[0:1], 24")
    E("    s_load_dwordx2 s[14:15], s[0:1], 96")
    E("    s_load_dwordx4 s[44:47], s[0:1], 56")
    E("    s_load_dwordx2 s[48:49], s[0:1], 32")
    E("    s_mov_b32 s40, 0xffff0000")
    E("    s_waitcnt lgkmcnt(0)")
    if DIAG:
        E("    v_lshrrev_b32 v2, 6, v0")
        E("    s_nop 0")
        E("    v_readfirstlane_b32 s3, v2")
        E("    s_mov_b32 s64, s14")
        E("    s_mov_b32 s65, s15")
        E(f"    s_add_u32 s68, s64, {STAMP_WS}")
        E("    s_addc_u32 s69, s65, 0")
        E("    s_and_b32 s69, s69, 0xffff")
        E("    s_mov_b32 s70, 0x80000")
        E("    s_mov_b32 s71, 0x00020000")
        E("    s_lshl_b32 s66, s2, 2")
        E("    s_add_u32 s66, s66, s3")
        E("    s_lshl_b32 s66, s66, 7")
        E("    v_mov_b32 v254, s66")
    pstamp(30, True)
    pstamp(0)
    E("    s_cmp_lt_u32 s2, 256")
    E("    s_cbranch_scc1 prep_kv")
    srd(16, 4, 5, S * D * 2)
    srd_off(20, 14, 15, WS_XN, S * D * 2)
    E("    s_sub_u32 s33, s2, 256")
    E("    v_lshrrev_b32 v2, 6, v0")
    E("    v_and_b32 v3, 63, v0")
    E("    s_lshl_b32 s3, s33, 13")
    E("    v_lshlrev_b32 v1, 4, v3")
    E("    v_lshl_add_u32 v1, v2, 11, v1")
    E("    buffer_load_dwordx4 v[4:7], v1, s[16:19], s3 offen")
    E("    buffer_load_dwordx4 v[44:47], v1, s[16:19], s3 offen offset:1024")
    E("    s_lshr_b32 s50, s33, 3")
    E("    s_cmp_ge_u32 s50, 16")
    E("    s_cselect_b32 s52, s46, s44")
    E("    s_cselect_b32 s53, s47, s45")
    srd(56, 52, 53, D * F * 2)
    E("    s_and_b32 s52, s50, 15")
    E("    s_mul_i32 s52, s52, 32*2752")
    E("    v_lshrrev_b32 v112, 3, v0")
    E("    s_movk_i32 s53, 2752")
    E("    v_mul_lo_u32 v112, v112, s53")
    E("    v_and_b32 v113, 7, v0")
    E("    v_lshl_add_u32 v112, v113, 7, v112")
    E("    s_and_b32 s51, s2, 3")
    E("    s_mul_i32 s53, s51, 768")
    E("    s_cmp_eq_u32 s51, 3")
    E("    s_cselect_b32 s53, 2240, s53")
    E("    s_add_u32 s60, s52, s53")
    E("    buffer_load_dword v113, v112, s[56:59], s60 offen sc1")
    E("    s_lshr_b32 s30, s33, 4")
    E("    s_lshl_b32 s30, s30, 17")
    E("    s_and_b32 s31, s33, 15")
    E("    s_lshl_b32 s31, s31, 9")
    E("    s_add_u32 s30, s30, s31")
    E("    s_lshl_b32 s31, s33, 1")
    E("    v_lshrrev_b32 v16, 1, v2")
    E("    v_add_u32 v16, s31, v16")
    E("    v_and_b32 v16, 3, v16")
    E("    v_and_b32 v17, 3, v3")
    E("    v_xor_b32 v16, v16, v17")
    E("    v_lshlrev_b32 v2, 7, v2")
    E("    v_add_u32 v2, s30, v2")
    E("    v_lshrrev_b32 v17, 2, v3")
    E("    v_lshl_add_u32 v2, v17, 13, v2")
    E("    v_lshl_add_u32 v2, v16, 4, v2")
    E("    s_waitcnt vmcnt(1)")
    pstamp(1)

    def ln_body(o):
        global out
        saved = out
        out = []
        for i in range(4):
            E(f"    v_lshlrev_b32 v{o+8+2*i}, 16, v{o+4+i}")
            E(f"    v_and_b32 v{o+9+2*i}, s40, v{o+4+i}")
        E(f"    v_add_f32 v{o+16}, v{o+8}, v{o+9}")
        E(f"    v_add_f32 v{o+17}, v{o+10}, v{o+11}")
        E(f"    v_add_f32 v{o+18}, v{o+12}, v{o+13}")
        E(f"    v_add_f32 v{o+19}, v{o+14}, v{o+15}")
        E(f"    v_add_f32 v{o+16}, v{o+16}, v{o+17}")
        E(f"    v_add_f32 v{o+18}, v{o+18}, v{o+19}")
        E(f"    v_add_f32 v{o+16}, v{o+16}, v{o+18}")
        wave_reduce_add(o+16, o+17)
        E(f"    v_mul_f32 v{o+16}, 0x3b000000, v{o+16}")
        for i in range(8):
            E(f"    v_sub_f32 v{o+20+i}, v{o+8+i}, v{o+16}")
        E(f"    v_mul_f32 v{o+18}, v{o+20}, v{o+20}")
        E(f"    v_mul_f32 v{o+19}, v{o+21}, v{o+21}")
        for i in range(2, 8, 2):
            E(f"    v_fmac_f32 v{o+18}, v{o+20+i}, v{o+20+i}")
            E(f"    v_fmac_f32 v{o+19}, v{o+21+i}, v{o+21+i}")
        E(f"    v_add_f32 v{o+18}, v{o+18}, v{o+19}")
        wave_reduce_add(o+18, o+17)
        E(f"    v_mul_f32 v{o+18}, 0x3b000000, v{o+18}")
        round_pair(o+16, o+18, o+17, 40)
        E(f"    v_add_f32 v{o+18}, 0x3727c5ac, v{o+18}")
        E(f"    v_cvt_pk_bf16_f32 v{o+17}, v{o+18}, v{o+18}")
        E(f"    v_and_b32 v{o+18}, s40, v{o+17}")
        E(f"    v_sqrt_f32 v{o+19}, v{o+18}")
        E("    s_nop 0")
        E(f"    v_rcp_f32 v{o+28}, v{o+19}")
        E(f"    v_fma_f32 v{o+29}, -v{o+19}, v{o+19}, v{o+18}")
        E(f"    v_mul_f32 v{o+28}, 0.5, v{o+28}")
        E(f"    v_fma_f32 v{o+19}, v{o+29}, v{o+28}, v{o+19}")
        E(f"    v_cvt_pk_bf16_f32 v{o+17}, v{o+19}, v{o+19}")
        E(f"    v_and_b32 v{o+19}, s40, v{o+17}")
        E(f"    v_rcp_f32 v{o+28}, v{o+19}")
        for i in range(8):
            E(f"    v_sub_f32 v{o+20+i}, v{o+8+i}, v{o+16}")
        for i in range(0, 8, 2):
            round_pair(o+20 + i, o+21 + i, o+17, 40)
        for i in range(8):
            E(f"    v_mul_f32 v{o+8+i}, v{o+20+i}, v{o+28}")
        for i in range(8):
            E(f"    v_fma_f32 v{o+30+i}, -v{o+8+i}, v{o+19}, v{o+20+i}")
        for i in range(8):
            E(f"    v_fma_f32 v{o+8+i}, v{o+30+i}, v{o+28}, v{o+8+i}")
        for i in range(4):
            E(f"    v_cvt_pk_bf16_f32 v{o+4+i}, v{o+8+2*i}, v{o+9+2*i}")
        E(f"    buffer_store_dwordx4 v[{o+4}:{o+7}], v2, s[20:23], 0 offen offset:{64 if o else 0}")
        body = out
        out = saved
        return body

    ba, bb = ln_body(0), ln_body(40)
    for la, lb in zip(ba, bb):
        E(la)
        E(lb)
    pstamp(2)
    if DIAG:
        E("    s_waitcnt vmcnt(0)")
    pstamp(3)
    pstamp(31, True)
    E("    s_endpgm")
    E("prep_kv:")
    srd(16, 8, 9, S * D * 2)
    srd(20, 10, 11, S * D * 2)
    srd(24, 12, 13, D * 4 * 2)
    srd_off(28, 14, 15, WS_KVR, S * D * 2)
    srd(56, 48, 49, D * S * 2)
    E("    s_lshl_b32 s60, s2, 13")
    E("    v_and_b32 v112, 63, v0")
    E("    v_lshlrev_b32 v112, 7, v112")
    E("    s_mov_b32 s3, s2")
    E("    s_lshr_b32 s32, s3, 3")
    E("    s_and_b32 s33, s3, 7")
    E("    v_and_b32 v1, 31, v0")
    E("    v_lshrrev_b32 v2, 5, v0")
    E("    s_lshl_b32 s34, s32, 6")
    E("    v_lshlrev_b32 v2, 3, v2")
    E("    v_add_u32 v2, s34, v2")
    E("    s_lshl_b32 s35, s33, 5")
    E("    v_add_u32 v1, s35, v1")
    E("    v_lshlrev_b32 v3, 10, v2")
    E("    v_lshlrev_b32 v4, 2, v1")
    E("    v_add_u32 v3, v3, v4")
    E("    v_add_u32 v4, 4096, v3")
    E("    v_subrev_u32 v5, 3072, v3")
    E("    v_lshlrev_b32 v6, 4, v1")
    E("    buffer_load_dwordx4 v[8:11], v6, s[24:27], 0 offen")
    for j in range(3):
        E(f"    buffer_load_dword v{12+j}, v5, s[16:19], 0 offen offset:{1024*j}")
    for j in range(4):
        E(f"    buffer_load_dword v{15+j}, v3, s[16:19], 0 offen offset:{1024*j}")
    for j in range(4):
        E(f"    buffer_load_dword v{19+j}, v4, s[16:19], 0 offen offset:{1024*j}")
    for j in range(4):
        E(f"    buffer_load_dword v{24+j}, v3, s[20:23], 0 offen offset:{1024*j}")
    for j in range(4):
        E(f"    buffer_load_dword v{28+j}, v4, s[20:23], 0 offen offset:{1024*j}")
    E("    v_lshlrev_b32 v6, 13, v1")
    E("    v_sub_u32 v7, 2040, v2")
    E("    v_lshlrev_b32 v7, 1, v7")
    E("    v_add_u32 v6, v6, v7")
    E("    v_add_u32 v7, 4096, v6")
    E("    buffer_load_dword v113, v112, s[56:59], s60 offen sc1")
    E("    s_waitcnt vmcnt(1)")
    pstamp(1)
    for c in range(2):
        for d in range(2):
            E(f"    v_lshlrev_b32 v{32+4*c+2*d}, 16, v{8+2*c+d}")
            E(f"    v_and_b32 v{33+4*c+2*d}, s40, v{8+2*c+d}")
    for j in range(11):
        E(f"    v_lshlrev_b32 v{40+j}, 16, v{12+j}")
        E(f"    v_and_b32 v{52+j}, s40, v{12+j}")
    for j in range(8):
        E(f"    v_lshlrev_b32 v{64+j}, 16, v{24+j}")
        E(f"    v_and_b32 v{72+j}, s40, v{24+j}")
    for j in range(8):
        A0, A1, B0, B1, T = 96, 97, 98, 99, 100
        E(f"    v_mul_f32 v{A0}, v{40+j}, v35")
        E(f"    v_mul_f32 v{A1}, v{52+j}, v39")
        E(f"    v_mul_f32 v{B0}, v{41+j}, v34")
        E(f"    v_mul_f32 v{B1}, v{53+j}, v38")
        round_pair(A0, A1, T, 40)
        round_pair(B0, B1, T, 40)
        E(f"    v_add_f32 v{A0}, v{A0}, v{B0}")
        E(f"    v_add_f32 v{A1}, v{A1}, v{B1}")
        E(f"    v_mul_f32 v{B0}, v{42+j}, v33")
        E(f"    v_mul_f32 v{B1}, v{54+j}, v37")
        round_pair(A0, A1, T, 40)
        round_pair(B0, B1, T, 40)
        E(f"    v_add_f32 v{A0}, v{A0}, v{B0}")
        E(f"    v_add_f32 v{A1}, v{A1}, v{B1}")
        E(f"    v_mul_f32 v{B0}, v{43+j}, v32")
        E(f"    v_mul_f32 v{B1}, v{55+j}, v36")
        round_pair(A0, A1, T, 40)
        round_pair(B0, B1, T, 40)
        E(f"    v_add_f32 v{A0}, v{A0}, v{B0}")
        E(f"    v_add_f32 v{A1}, v{A1}, v{B1}")
        round_pair(A0, A1, T, 40)
        E(f"    v_mul_f32 v{80+j}, v{A0}, v{64+j}")
        E(f"    v_mul_f32 v{88+j}, v{A1}, v{72+j}")
    for c in range(2):
        for jj in range(4):
            E(f"    v_cvt_pk_bf16_f32 v{104+4*c+jj}, v{80+8*c+7-2*jj}, v{80+8*c+6-2*jj}")
    E("    buffer_store_dwordx4 v[104:107], v6, s[28:31], 0 offen")
    E("    buffer_store_dwordx4 v[108:111], v7, s[28:31], 0 offen")
    pstamp(2)
    if DIAG:
        E("    s_waitcnt vmcnt(0)")
    pstamp(3)
    pstamp(31, True)
    E("    s_endpgm")
    E("prep_done:")
    E("    s_endpgm")


COPY_BYTES = 4240
_order = [(1, 0), (0, 11), (2, 4), (5, 0), (4, 12), (3, 8), (6, 4), (7, 8)]
COPY_BASE = {}
_pos = 0
for _b, _beta in _order:
    while (_pos // 16) % 16 != _beta:
        _pos += 16
    COPY_BASE[_b] = _pos
    _pos += COPY_BYTES
KV_OFF = (_pos + 15) // 16 * 16
KVP = 80
CH_BYTES = (KV_OFF + 65 * KVP + 255) // 256 * 256
MAIN_LDS = max(2 * CH_BYTES, 81920)
assert MAIN_LDS <= 81920, MAIN_LDS


def gen_gemm1_path(nt):
    vm = VM()
    ACC = 128
    WF = 64
    XF = 112
    STG = 20480
    NB = 4
    nst = 16

    def dma_ops(st):
        buf = st % NB
        ops = []
        for j in range(2):
            def f(j=j):
                E(f"    s_add_u32 s38, s41, {st*8192 + j*1024}")
                E(f"    s_add_u32 m0, s41, {buf*STG + j*1024}")
                E("    s_nop 0")
                E(f"    buffer_load_dwordx4 v8, s[20:23], s38 offen lds")
                vm.issue(("dma", st))
            ops.append(f)
        for i in range(nt):
            def f(i=i):
                E(f"    s_add_u32 s38, s48, {st*32*2752}")
                E(f"    s_add_u32 m0, s43, {buf*STG + 8192 + i*1024}")
                E("    s_nop 0")
                E(f"    buffer_load_dwordx4 v{16+i}, s[52:55], s38 offen lds")
                vm.issue(("dma", st))
            ops.append(f)
        return ops

    P = 64 * nt
    LPR = 4 * nt
    E("    s_lshr_b32 s49, s3, 1")
    E("    s_cmp_eq_u32 s49, 1")
    E("    s_cselect_b32 s52, s44, s16")
    E("    s_cselect_b32 s53, s45, s17")
    E("    s_mov_b32 s54, s18")
    E("    s_mov_b32 s55, s19")
    E("    s_and_b32 s49, s3, 1")
    E("    s_mul_i32 s48, s49, 16*2752")
    E("    s_add_u32 s48, s48, s36")
    E(f"    s_mul_i32 s43, s3, {16*P}")
    E("    s_movk_i32 s49, 2752")
    for i in range(nt):
        E(f"    v_add_u32 v14, {64*i}, v1")
        if nt == 3:
            E("    v_mul_u32_u24 v15, 0x5556, v14")
            E("    v_lshrrev_b32 v15, 18, v15")
            E("    v_mul_u32_u24 v20, 12, v15")
        else:
            E("    v_lshrrev_b32 v15, 3, v14")
            E("    v_lshlrev_b32 v20, 3, v15")
        E("    v_sub_u32 v14, v14, v20")
        E("    v_mul_lo_u32 v15, v15, s49")
        E(f"    v_lshl_add_u32 v{16+i}, v14, 4, v15")
    E("    v_and_b32 v14, 15, v1")
    E("    v_lshrrev_b32 v15, 2, v14")
    E("    v_lshl_add_u32 v15, v13, 3, v15")
    E(f"    v_mul_u32_u24 v11, {P}, v15")
    E("    v_bfe_u32 v15, v1, 4, 1")
    E("    v_lshl_add_u32 v11, v15, 5, v11")
    E("    v_and_b32 v15, 3, v14")
    E("    v_lshl_add_u32 v11, v15, 3, v11")
    E("    v_add_u32 v15, 40960, v11")

    def fr_ops(setidx, buf, ks):
        ops = []
        x = XF + 4 * setidx
        ops.append(lambda: E(f"    ds_read_b128 v[{x}:{x+3}], v{4+ks} offset:{buf*STG}"))
        for mt in range(2 * nt):
            r = WF + 24 * setidx + 4 * mt
            base = (buf % 2) * STG + 8192 + (mt // nt) * 32 * P + ks * 16 * P + (mt % nt) * 64
            vb = 11 if buf < 2 else 15
            ops.append(lambda r=r, vb=vb, base=base: E(f"    ds_read_b64_tr_b16 v[{r}:{r+1}], v{vb} offset:{base}"))
            ops.append(lambda r=r, vb=vb, base=base: E(f"    ds_read_b64_tr_b16 v[{r+2}:{r+3}], v{vb} offset:{base+4*P}"))
        return ops

    def mfma_group(setidx, first, reads, dmas):
        x = XF + 4 * setidx
        reads = list(reads)
        dmas = list(dmas)
        n = 2 * nt
        rg = n // 2
        per = (len(reads) + rg - 1) // rg
        for mt in range(n):
            w = WF + 24 * setidx + 4 * mt
            a = ACC + 16 * mt
            c = "0" if first else f"v[{a}:{a+15}]"
            E(f"    v_mfma_f32_32x32x16_bf16 v[{a}:{a+15}], v[{w}:{w+3}], v[{x}:{x+3}], {c}")
            if mt < rg:
                for _ in range(per):
                    if reads:
                        reads.pop(0)()
            else:
                k = 1 if mt + 1 < n else len(dmas)
                for _ in range(k):
                    if dmas:
                        dmas.pop(0)()

    stamp(11, vm)
    for st in range(2):
        for f in dma_ops(st):
            f()
    E("    v_lshlrev_b32 v9, 7, v1")
    E("    buffer_load_dword v10, v9, s[20:23], s46 offen sc1")
    vm.issue("pf")
    stamp(12, vm)
    vm.wait(("dma", 0))
    stamp(13, vm)
    E("    s_barrier")
    stamp(1, vm)
    for f in fr_ops(0, 0, 0):
        f()
    for f in dma_ops(2):
        f()
    for st in range(nst):
        buf = st % NB
        dm = dma_ops(st + 3) if st + 3 < nst else []
        na = len(dm) // 2
        E("    s_waitcnt lgkmcnt(0)")
        mfma_group(0, st == 0, fr_ops(1, buf, 1), dm[:na])
        if st + 1 < nst:
            vm.wait(("dma", st + 1))
        E("    s_waitcnt lgkmcnt(0)")
        rd = []
        if st + 1 < nst:
            E("    s_barrier")
            if st % 2 == 1:
                stamp(2 + st // 2, vm)
            rd = fr_ops(0, (st + 1) % NB, 0)
        mfma_group(1, False, rd, dm[na:])
    stamp(10, vm)
    E("    s_nop 15")
    for tau in range(nt):
        G = ACC + 16 * tau
        U = ACC + 16 * (nt + tau)
        T = 14
        for j in range(0, 16, 2):
            round_pair(G + j, G + j + 1, T, 40)
            round_pair(U + j, U + j + 1, T, 40)
        for j in range(16):
            E(f"    v_mul_f32 v{G+j}, v{G+j}, v{U+j}")
        P = 16 + 8 * tau
        for j in range(8):
            E(f"    v_cvt_pk_bf16_f32 v{P+j}, v{G+2*j}, v{G+2*j+1}")
        E("    s_nop 1")
        for pair in range(2):
            q0 = P + 4 * pair
            E(f"    v_permlane32_swap_b32 v{q0}, v{q0+2}")
            E(f"    v_permlane32_swap_b32 v{q0+1}, v{q0+3}")
        for pair in range(2):
            q0 = P + 4 * pair
            E(f"    buffer_store_dwordx4 v[{q0}:{q0+3}], v12, s[24:27], s36 offen offset:{tau*64 + pair*32}")
    if DIAG:
        E("    s_waitcnt vmcnt(0)")
    stamp(14)
    stamp(31, real=True)
    E("    s_endpgm")


def gen_main():
    kernel_begin("main_kernel")
    E("    s_cmp_ge_u32 s2, 512")
    E("    s_cbranch_scc1 main_done")
    E("    s_load_dwordx4 s[4:7], s[0:1], 56")
    E("    s_load_dwordx4 s[8:11], s[0:1], 32")
    E("    s_load_dwordx2 s[12:13], s[0:1], 96")
    E("    s_load_dwordx2 s[64:65], s[0:1], 72")
    E("    s_mov_b32 s40, 0xffff0000")
    E("    v_and_b32 v1, 63, v0")
    E("    v_lshrrev_b32 v2, 6, v0")
    E("    s_nop 0")
    E("    v_readfirstlane_b32 s3, v2")
    E("    s_waitcnt lgkmcnt(0)")
    stamp_init(1, 12, 13)
    stamp(30, real=True)
    stamp(0)
    E("    s_cmp_lt_u32 s2, 256")
    E("    s_cbranch_scc1 main_conv")
    E("    s_setprio 1")
    E("    s_sub_u32 s42, s2, 256")
    E("    s_bfe_u32 s30, s42, 0x10002")
    E("    s_lshl_b32 s30, s30, 3")
    E("    s_lshr_b32 s31, s42, 5")
    E("    s_add_u32 s30, s30, s31")
    E("    s_and_b32 s31, s42, 3")
    E("    s_lshl_b32 s31, s31, 2")
    E("    s_bfe_u32 s43, s42, 0x20003")
    E("    s_add_u32 s31, s31, s43")
    srd(16, 4, 5, D * F * 2)
    srd(44, 6, 7, D * F * 2)
    E("    s_lshl_b32 s32, s30, 17")
    E(f"    s_add_u32 s32, s32, {WS_XN}")
    srd_off(20, 12, 13, "s32", 128 * 1024)
    srd_off(24, 12, 13, WS_H, H_BYTES)
    E("    v_and_b32 v3, 31, v1")
    E("    v_lshrrev_b32 v13, 5, v1")
    E("    s_lshl_b32 s33, s3, 5")
    E("    v_add_u32 v3, s33, v3")
    E("    s_lshl_b32 s32, s30, 7")
    E("    v_add_u32 v14, s32, v3")
    E(f"    s_movk_i32 s34, {HP}")
    E("    v_mul_lo_u32 v12, v14, s34")
    E("    v_lshl_add_u32 v12, v13, 4, v12")
    E("    v_bfe_u32 v14, v3, 2, 2")
    E("    v_xor_b32 v14, v14, v13")
    E("    v_lshlrev_b32 v14, 4, v14")
    E("    v_lshl_add_u32 v4, v3, 6, v14")
    E("    v_xor_b32 v5, 32, v4")
    E("    v_lshlrev_b32 v8, 4, v1")
    E("    s_lshl_b32 s46, s3, 2")
    E("    s_add_u32 s46, s46, s43")
    E("    s_lshl_b32 s46, s46, 13")
    E("    s_lshr_b32 s47, s42, 5")
    E("    s_lshl_b32 s41, s3, 11")
    E("    s_cmp_lt_u32 s31, 11")
    E("    s_cbranch_scc0 main_g2")
    E("    s_mul_i32 s36, s31, 192")
    gen_gemm1_path(3)
    E("main_g2:")
    E("    s_lshl_b32 s36, s31, 7")
    E("    s_add_u32 s36, s36, 704")
    gen_gemm1_path(2)

    E("main_conv:")
    vm = VM()
    E("    s_lshl_b32 s30, s2, 1")
    E("    s_lshr_b32 s31, s3, 1")
    E("    s_add_u32 s30, s30, s31")
    E("    s_and_b32 s32, s3, 1")
    E("    s_lshl_b32 s33, s30, 12")
    srd_off(16, 8, 9, "s33", 4096)
    E("    s_add_u32 s34, s33, %d" % WS_KVR)
    srd_off(20, 12, 13, "s34", 4096)
    E("    s_add_u32 s34, s33, %d" % WS_YT)
    srd_off(24, 12, 13, "s34", 4096)
    srd(44, 10, 11, D * 2)
    E(f"    s_mul_i32 s35, s31, {CH_BYTES}")
    E("    s_lshl_b32 s36, s32, 6")
    E("    v_add_u32 v3, s36, v1")
    E("    v_lshlrev_b32 v4, 5, v3")
    E("    v_subrev_u32 v4, 16, v4")
    E("    buffer_load_dwordx4 v[16:19], v4, s[16:19], 0 offen")
    E("    v_lshlrev_b32 v5, 5, v3")
    E("    buffer_load_dwordx4 v[20:23], v5, s[16:19], 0 offen")
    E("    buffer_load_dwordx4 v[24:27], v5, s[16:19], 0 offen offset:16")
    E("    v_lshlrev_b32 v6, 4, v3")
    E("    buffer_load_dwordx4 v[28:31], v6, s[20:23], 0 offen")
    E("    buffer_load_dwordx4 v[32:35], v6, s[20:23], 0 offen offset:2048")
    E("    s_lshl_b32 s36, s30, 1")
    E("    v_mov_b32 v7, s36")
    E("    buffer_load_ushort v9, v7, s[44:47], 0 offen")
    E("    v_mov_b32 v36, 0")
    E("    v_mov_b32 v37, 0")
    E("    v_mov_b32 v38, 0")
    E("    v_mov_b32 v39, 0")
    E("    v_lshlrev_b32 v7, 4, v1")
    E("    v_add_u32 v7, s35, v7")
    E("    s_mov_b64 exec, 0x7f")
    for b in range(8):
        E(f"    ds_write_b128 v7, v[36:39] offset:{COPY_BASE[b]}")
    E("    s_mov_b64 exec, 0xf")
    E(f"    ds_write_b128 v7, v[36:39] offset:{KV_OFF + 64*KVP}")
    E("    s_mov_b64 exec, -1")
    E("    v_lshlrev_b32 v7, 5, v3")
    E("    v_add_u32 v7, s35, v7")
    E("    v_lshrrev_b32 v8, 2, v3")
    E(f"    v_mul_u32_u24 v8, {KVP}, v8")
    E("    v_and_b32 v10, 3, v3")
    E("    v_lshl_add_u32 v8, v10, 4, v8")
    E("    v_add_u32 v8, s35, v8")
    E("    v_and_b32 v3, 31, v1")
    E("    v_lshrrev_b32 v4, 5, v1")
    E("    v_add_u32 v5, 1, v3")
    E("    v_and_b32 v6, 7, v5")
    E("    v_lshrrev_b32 v5, 3, v5")
    E("    v_sub_u32 v5, v5, v4")
    E("    v_add_u32 v5, 1, v5")
    E("    v_lshlrev_b32 v5, 4, v5")
    E("    v_mov_b32 v10, 0")
    for b in range(8):
        E(f"    v_cmp_eq_u32 vcc, {b}, v6")
        E(f"    v_mov_b32 v11, {COPY_BASE[b]}")
        E("    s_nop 0")
        E("    v_cndmask_b32 v10, v10, v11, vcc")
    E("    v_add_u32 v10, v10, v5")
    E("    v_add_u32 v10, s35, v10")
    E("    v_sub_u32 v5, 63, v3")
    E(f"    v_mul_u32_u24 v5, {KVP}, v5")
    E("    v_lshlrev_b32 v6, 4, v4")
    E("    v_sub_u32 v5, v5, v6")
    E(f"    s_add_u32 s36, s35, {KV_OFF + 16}")
    E("    v_add_u32 v11, s36, v5")
    E(f"    v_subrev_u32 v15, {32*KVP}, v11")
    E(f"    s_add_u32 s36, s36, {KVP*64}")
    E("    v_sub_u32 v12, s36, v6")
    E("    s_waitcnt vmcnt(3)")
    for u in range(2):
        e = 16 + 4 * u
        for b in range(8):
            off = COPY_BASE[b] + 112 + 16 * u
            if b % 2 == 0 and (b // 2) % 2 == 0:
                r = e + b // 2
                E(f"    ds_write_b128 v7, v[{r}:{r+3}] offset:{off}")
            else:
                t = 40 + 4 * ((u * 8 + b) % 4)
                for d in range(4):
                    if b % 2 == 0:
                        E(f"    v_mov_b32 v{t+d}, v{e + b//2 + d}")
                    else:
                        be = (b - 1) // 2
                        E(f"    v_alignbyte_b32 v{t+d}, v{e+be+d+1}, v{e+be+d}, 2")
                E(f"    ds_write_b128 v7, v[{t}:{t+3}] offset:{off}")
    E(f"    ds_write_b128 v7, v[24:27] offset:{COPY_BASE[0] + 112 + 32}")
    E("    s_waitcnt vmcnt(1)")
    E(f"    ds_write_b128 v8, v[28:31] offset:{KV_OFF}")
    E(f"    ds_write_b128 v8, v[32:35] offset:{KV_OFF + 32*KVP}")
    E("    s_waitcnt lgkmcnt(0)")
    stamp(1)
    E("    s_barrier")
    stamp(2)
    FR = 64
    ACC = 192

    def fr(setidx, slot):
        return FR + 64 * setidx + 4 * slot

    def op_A(setidx, slot, t):
        r = fr(setidx, slot)
        return lambda: E(f"    ds_read_b128 v[{r}:{r+3}], v10 offset:{32*(t+3)}")

    def ops_B(setidx, slot, d, c):
        def f():
            E(f"    v_add_u32 v13, {KVP*d}, v{11 if c == 0 else 15}")
            E("    v_min_u32 v13, v13, v12")
            for q in range(2):
                r = fr(setidx, slot + q)
                E(f"    ds_read_b128 v[{r}:{r+3}], v13 offset:{32*(1-q)}")
        return f

    def loads(it, setidx):
        kind, d0 = it
        ops = []
        if kind == "X":
            for e_ in range(2):
                for q in range(2):
                    ops.append(op_A(setidx, 2 * e_ + q, 2 * (d0 + e_) - q))
                for c in range(2):
                    ops.append(ops_B(setidx, 4 + 4 * e_ + 2 * c, d0 + e_, c))
        else:
            for e_ in range(4):
                for q in range(2):
                    ops.append(op_A(setidx, 2 * e_ + q, 2 * (d0 + e_) - q))
                ops.append(ops_B(setidx, 8 + 2 * e_, d0 + e_, 1))
        return ops

    def mfmas(it, setidx):
        kind, d0 = it
        lst = []
        if kind == "X":
            for e_ in range(2):
                for q in range(2):
                    for c in range(2):
                        lst.append((c, fr(setidx, 2 * e_ + q), fr(setidx, 4 + 4 * e_ + 2 * c + q)))
        else:
            for e_ in range(4):
                for q in range(2):
                    lst.append((1 + q, fr(setidx, 2 * e_ + q), fr(setidx, 8 + 2 * e_ + q)))
        return lst

    def conv_loop(its, pf_at):
        started = set()
        for f in loads(its[0], 0):
            f()
        for n, it in enumerate(its):
            E("    s_waitcnt lgkmcnt(0)")
            nxt = loads(its[n + 1], (n + 1) % 2) if n + 1 < len(its) else []
            per = (len(nxt) + 4) // 5
            ms = mfmas(it, n % 2)
            for k, (acc, a, b) in enumerate(ms):
                A = ACC + 16 * acc
                c = f"v[{A}:{A+15}]" if acc in started else "0"
                started.add(acc)
                E(f"    v_mfma_f32_32x32x16_bf16 v[{A}:{A+15}], v[{a}:{a+3}], v[{b}:{b+3}], {c}")
                for _ in range(per if k + 1 < len(ms) else len(nxt)):
                    if nxt:
                        nxt.pop(0)()
            if n == pf_at:
                srd(52, 64, 65, F * D * 2)
                E("    s_lshr_b32 s48, s2, 3")
                E("    s_mul_i32 s48, s48, 344*128")
                E("    v_lshlrev_b32 v60, 7, v0")
                E("    buffer_load_dword v61, v60, s[52:55], s48 offen sc1")
                E("    v_min_u32 v60, 87, v0")
                E("    v_lshlrev_b32 v60, 7, v60")
                E("    s_add_u32 s48, s48, 256*128")
                E("    buffer_load_dword v61, v60, s[52:55], s48 offen sc1")

    E("    s_cmp_eq_u32 s32, 0")
    E("    s_cbranch_scc0 conv_l1")
    conv_loop([("X", d) for d in range(0, 24, 2)], 4)
    E("    s_branch conv_le")
    E("conv_l1:")
    conv_loop([("X", d) for d in range(24, 32, 2)] + [("Y", d) for d in range(32, 64, 4)], 4)
    E("    s_nop 15")
    E("    s_nop 3")
    for j in range(16):
        E(f"    v_add_f32 v{ACC+16+j}, v{ACC+16+j}, v{ACC+32+j}")
    E("conv_le:")
    stamp(3)
    E("    s_barrier")
    stamp(4)
    E("    v_lshlrev_b32 v13, 4, v1")
    E("    v_add_u32 v13, s35, v13")
    E("    s_lshl_b32 s36, s32, 12")
    E("    v_add_u32 v14, s36, v13")
    E("    s_xor_b32 s36, s36, 4096")
    E("    v_add_u32 v13, s36, v13")
    E("    s_nop 7")
    E("    s_cmp_eq_u32 s32, 0")
    E("    s_cbranch_scc1 conv_hw0")
    for jq in range(4):
        E(f"    ds_write_b128 v13, v[{ACC+4*jq}:{ACC+4*jq+3}] offset:{1024*jq}")
    for j in range(16):
        E(f"    v_mov_b32 v{64+j}, v{ACC+16+j}")
    E("    s_branch conv_x")
    E("conv_hw0:")
    for jq in range(4):
        E(f"    ds_write_b128 v13, v[{ACC+16+4*jq}:{ACC+16+4*jq+3}] offset:{1024*jq}")
    for j in range(16):
        E(f"    v_mov_b32 v{64+j}, v{ACC+j}")
    E("conv_x:")
    E("    s_waitcnt lgkmcnt(0)")
    E("    s_barrier")
    for jq in range(4):
        E(f"    ds_read_b128 v[{80+4*jq}:{80+4*jq+3}], v14 offset:{1024*jq}")
    E("    v_sub_u32 v5, 63, v3")
    E(f"    v_mul_u32_u24 v5, {KVP}, v5")
    E("    v_lshlrev_b32 v6, 3, v4")
    E("    v_sub_u32 v5, v5, v6")
    E(f"    s_mul_i32 s36, s32, {32*KVP}")
    E(f"    s_sub_u32 s36, {KV_OFF + 8}, s36")
    E("    s_add_u32 s36, s36, s35")
    E("    v_add_u32 v5, s36, v5")
    for jq in range(4):
        E(f"    ds_read_b64 v[{96+2*jq}:{96+2*jq+1}], v5 offset:{16*(3-jq)}")
    E("    v_lshlrev_b32 v6, 6, v3")
    E("    v_lshl_add_u32 v6, v4, 3, v6")
    E("    s_lshl_b32 s36, s32, 11")
    E("    v_add_u32 v6, s36, v6")
    E("    s_waitcnt vmcnt(0)")
    E("    v_lshlrev_b32 v9, 16, v9")
    E("    s_waitcnt lgkmcnt(0)")
    for j in range(16):
        E(f"    v_add_f32 v{64+j}, v{64+j}, v{80+j}")
    for jq in range(4):
        k0, k1, k2, k3 = 104, 105, 106, 107
        E(f"    v_and_b32 v{k0}, s40, v{97+2*jq}")
        E(f"    v_lshlrev_b32 v{k1}, 16, v{97+2*jq}")
        E(f"    v_and_b32 v{k2}, s40, v{96+2*jq}")
        E(f"    v_lshlrev_b32 v{k3}, 16, v{96+2*jq}")
        for kk in (k0, k1, k2, k3):
            E(f"    v_mul_f32 v{kk}, v{kk}, v9")
        round_pair(k0, k1, 108, 40)
        round_pair(k2, k3, 108, 40)
        y = 64 + 4 * jq
        round_pair(y, y + 1, 108, 40)
        round_pair(y + 2, y + 3, 108, 40)
        for e_, kk in enumerate((k0, k1, k2, k3)):
            E(f"    v_add_f32 v{y+e_}, v{y+e_}, v{kk}")
        E(f"    v_cvt_pk_bf16_f32 v{110+2*jq}, v{y}, v{y+1}")
        E(f"    v_cvt_pk_bf16_f32 v{111+2*jq}, v{y+2}, v{y+3}")
        E(f"    buffer_store_dwordx2 v[{110+2*jq}:{111+2*jq}], v6, s[24:27], 0 offen offset:{16*jq}")
    E("    s_waitcnt vmcnt(0)")
    stamp(5)
    stamp(31, real=True)
    E("main_done:")
    E("    s_endpgm")


NSLOT = 4
SLOT = 32768
FIN_YOFF = NSLOT * SLOT
FIN_XOFF = FIN_YOFF + 8192
FIN_NOFF = FIN_XOFF + 8192
FIN_LDS = FIN_NOFF + 8192


def gen_fin():
    kernel_begin("fin_kernel")
    vm = VM()
    E("    s_cmp_ge_u32 s2, 256")
    E("    s_cbranch_scc1 fin_done")
    E("    s_load_dwordx2 s[4:5], s[0:1], 0")
    E("    s_load_dwordx4 s[8:11], s[0:1], 72")
    E("    s_load_dwordx2 s[12:13], s[0:1], 96")
    E("    s_mov_b32 s40, 0xffff0000")
    E("    v_and_b32 v1, 63, v0")
    E("    v_lshrrev_b32 v2, 6, v0")
    E("    s_nop 0")
    E("    v_readfirstlane_b32 s3, v2")
    E("    s_waitcnt lgkmcnt(0)")
    stamp_init(2, 12, 13)
    stamp(30, vm, real=True)
    stamp(0, vm)
    E("    s_and_b32 s30, s2, 7")
    E("    s_bfe_u32 s31, s2, 0x20003")
    E("    s_lshl_b32 s31, s31, 3")
    E("    s_add_u32 s30, s30, s31")
    E("    s_lshr_b32 s31, s2, 5")
    E("    s_and_b32 s32, s3, 1")
    E("    s_lshr_b32 s33, s3, 1")
    srd(16, 8, 9, F * D * 2)
    srd_off(20, 12, 13, WS_H, H_BYTES)
    E("    v_lshrrev_b32 v3, 3, v1")
    E("    s_lshl_b32 s34, s3, 5")
    E("    v_add_u32 v3, s34, v3")
    E("    v_lshlrev_b32 v10, 10, v3")
    E("    v_and_b32 v4, 7, v1")
    E("    v_bfe_u32 v5, v1, 4, 1")
    E("    v_lshlrev_b32 v5, 2, v5")
    E("    v_xor_b32 v4, v4, v5")
    E("    v_lshl_add_u32 v10, v4, 4, v10")
    E("    s_lshl_b32 s34, s31, 7")
    E("    v_add_u32 v10, s34, v10")
    E("    s_lshl_b32 s37, s3, 12")
    E("    v_lshrrev_b32 v3, 4, v1")
    E("    s_lshl_b32 s34, s30, 6")
    E("    s_lshl_b32 s35, s3, 4")
    E("    s_add_u32 s34, s34, s35")
    E("    v_add_u32 v4, s34, v3")
    E(f"    s_movk_i32 s35, {HP}")
    E("    v_mul_lo_u32 v4, v4, s35")
    E("    v_and_b32 v5, 15, v1")
    E("    v_xor_b32 v5, v5, v3")
    E("    v_lshl_add_u32 v16, v5, 4, v4")
    E("    v_xor_b32 v6, 4, v5")
    E("    v_lshl_add_u32 v17, v6, 4, v4")
    E("    v_xor_b32 v6, 8, v5")
    E("    v_lshl_add_u32 v18, v6, 4, v4")
    E("    v_xor_b32 v6, 12, v5")
    E("    v_lshl_add_u32 v19, v6, 4, v4")
    nch = 11

    def dma_ops(c):
        slot = c % NSLOT
        ops = []
        for j in range(4):
            def f(j=j):
                E(f"    s_mov_b32 s38, {256*c + 4*j*HP}")
                E(f"    s_add_u32 m0, s37, {slot*SLOT + j*1024}")
                E("    s_nop 0")
                E(f"    buffer_load_dwordx4 v{16+j}, s[20:23], s38 offen lds")
                vm.issue(("dma", c))
            ops.append(f)
        for j in range(4):
            def f(j=j):
                E(f"    s_mov_b32 s38, {(128*c + 8*j)*1024}")
                E(f"    s_add_u32 m0, s37, {slot*SLOT + 16384 + j*1024}")
                E("    s_nop 0")
                E("    buffer_load_dwordx4 v10, s[16:19], s38 offen lds")
                vm.issue(("dma", c))
            ops.append(f)
        return ops

    def issue_dma(c):
        for f in dma_ops(c):
            f()

    issue_dma(0)
    d1 = dma_ops(1)
    for f in d1[:4]:
        f()

    def h_touch():
        E("    s_lshr_b32 s34, s2, 3")
        E("    s_and_b32 s35, s34, 3")
        E("    s_lshl_b32 s35, s35, 3")
        E("    s_and_b32 s36, s2, 7")
        E("    s_add_u32 s35, s35, s36")
        E(f"    s_mul_i32 s35, s35, {64*HP}")
        E("    s_lshr_b32 s36, s34, 2")
        E("    s_mul_i32 s36, s36, 176*128")
        E("    s_add_u32 s35, s35, s36")
        E("    v_min_u32 v46, 175, v0")
        E("    v_lshlrev_b32 v46, 7, v46")
        E("    buffer_load_dword v38, v46, s[20:23], s35 offen sc1")
        vm.issue("pf")
    late = []
    srd(24, 4, 5, S * D * 2)
    srd_off(44, 12, 13, WS_XN, S * D * 2)
    srd_off(48, 12, 13, WS_YT, S * D * 2)
    srd(52, 10, 11, S * D * 2)
    E("    s_lshl_b32 s34, s3, 4")
    E("    v_add_u32 v3, s34, v1")
    E("    v_lshlrev_b32 v47, 10, v3")
    E("    s_lshl_b32 s34, s30, 16")
    E("    s_lshl_b32 s35, s31, 7")
    E("    s_add_u32 s64, s34, s35")
    E("    v_lshrrev_b32 v5, 5, v3")
    E("    v_lshlrev_b32 v5, 13, v5")
    E("    v_and_b32 v6, 31, v3")
    E("    v_lshl_add_u32 v48, v6, 7, v5")
    E("    s_lshr_b32 s35, s30, 1")
    E("    s_lshl_b32 s35, s35, 17")
    E("    s_and_b32 s36, s30, 1")
    E("    s_lshl_b32 s36, s36, 12")
    E("    s_add_u32 s35, s35, s36")
    E("    s_lshl_b32 s36, s31, 14")
    E("    s_add_u32 s65, s35, s36")
    E("    v_lshlrev_b32 v49, 12, v3")
    E("    s_lshl_b32 s36, s31, 18")
    E("    s_lshl_b32 s38, s30, 7")
    E("    s_add_u32 s66, s36, s38")

    def e_touch():
        E("    s_mov_b64 exec, 0xffff")
        E("    buffer_load_dword v38, v47, s[24:27], s64 offen sc1")
        E("    buffer_load_dword v38, v48, s[44:47], s65 offen sc1")
        E("    buffer_load_dword v38, v49, s[48:51], s66 offen sc1")
        E("    s_mov_b64 exec, -1")
        for _ in range(3):
            vm.issue("pf")
    E("    v_lshrrev_b32 v3, 3, v1")
    E("    s_lshl_b32 s34, s31, 6")
    E("    s_lshl_b32 s35, s3, 4")
    E("    s_add_u32 s34, s34, s35")
    E("    v_add_u32 v3, s34, v3")
    E("    v_lshlrev_b32 v9, 12, v3")
    E("    v_and_b32 v4, 7, v1")
    E("    v_lshl_add_u32 v9, v4, 4, v9")
    E("    s_lshl_b32 s34, s30, 7")
    E("    v_add_u32 v9, s34, v9")
    E("    s_lshl_b32 s35, s3, 11")
    E("    s_mov_b32 s39, s35")
    for j in range(2):
        def f(j=j):
            E(f"    s_add_u32 m0, s39, {FIN_YOFF + 1024*j}")
            E(f"    s_mov_b32 s38, {8*4096*j}")
            E(f"    buffer_load_dwordx4 v9, s[48:51], s38 offen lds")
            vm.issue("y")
        late.append(f)
    E("    v_and_b32 v3, 31, v1")
    E("    s_lshl_b32 s35, s32, 5")
    E("    v_add_u32 v3, s35, v3")
    E("    s_lshl_b32 s34, s30, 6")
    E("    v_add_u32 v6, s34, v3")
    E("    v_lshrrev_b32 v4, 5, v1")
    E("    v_lshlrev_b32 v13, 10, v6")
    E("    v_lshl_add_u32 v13, v4, 3, v13")
    E("    s_lshl_b32 s34, s31, 7")
    E("    s_lshl_b32 s35, s33, 6")
    E("    s_add_u32 s34, s34, s35")
    E("    v_add_u32 v13, s34, v13")
    XR, NR = 96, 104
    E("    v_lshrrev_b32 v5, 3, v1")
    E("    v_and_b32 v7, 7, v1")
    E("    v_xor_b32 v7, v7, v5")
    E("    v_lshlrev_b32 v40, 10, v5")
    E("    v_lshl_add_u32 v40, v7, 4, v40")
    E("    s_lshl_b32 s34, s30, 2")
    E("    s_add_u32 s34, s34, s3")
    E("    s_lshl_b32 s34, s34, 14")
    E("    s_lshl_b32 s35, s31, 7")
    E("    s_add_u32 s42, s34, s35")
    for j in range(2):
        def f(j=j):
            E(f"    s_add_u32 m0, s39, {FIN_XOFF + 1024*j}")
            E(f"    s_add_u32 s38, s42, {8192*j}")
            E(f"    buffer_load_dwordx4 v40, s[24:27], s38 offen lds")
            vm.issue("x")
        late.append(f)
    E("    v_lshlrev_b32 v41, 4, v1")
    E("    s_lshr_b32 s34, s30, 1")
    E("    s_lshl_b32 s34, s34, 17")
    E("    s_lshl_b32 s35, s31, 1")
    E("    s_add_u32 s35, s35, s33")
    E("    s_lshl_b32 s35, s35, 13")
    E("    s_add_u32 s34, s34, s35")
    E("    s_and_b32 s35, s30, 1")
    E("    s_lshl_b32 s35, s35, 12")
    E("    s_add_u32 s34, s34, s35")
    E("    s_lshl_b32 s35, s32, 11")
    E("    s_add_u32 s41, s34, s35")
    for j in range(2):
        def f(j=j):
            E(f"    s_add_u32 m0, s39, {FIN_NOFF + 1024*j}")
            E(f"    s_add_u32 s38, s41, {1024*j}")
            E(f"    buffer_load_dwordx4 v41, s[44:47], s38 offen lds")
            vm.issue("x")
        late.append(f)
    E("    v_and_b32 v5, 7, v3")
    E("    s_lshl_b32 s35, s33, 2")
    E("    v_xor_b32 v5, s35, v5")
    E("    v_lshlrev_b32 v42, 7, v3")
    E("    v_lshl_add_u32 v42, v5, 4, v42")
    E("    v_lshl_add_u32 v42, v4, 3, v42")
    E(f"    v_add_u32 v42, {FIN_XOFF}, v42")
    E("    v_bfe_u32 v5, v3, 2, 2")
    E("    v_lshlrev_b32 v43, 6, v3")
    E("    v_lshl_add_u32 v43, v5, 4, v43")
    E("    v_lshl_add_u32 v43, v4, 3, v43")
    E("    s_lshl_b32 s35, s33, 12")
    E(f"    s_add_u32 s35, s35, {FIN_NOFF}")
    E("    v_add_u32 v43, s35, v43")
    E("    v_and_b32 v5, 15, v1")
    E("    v_lshrrev_b32 v6, 2, v5")
    E("    v_lshl_add_u32 v6, v4, 3, v6")
    E("    v_lshlrev_b32 v11, 7, v6")
    E("    v_bfe_u32 v6, v1, 4, 1")
    E("    v_lshlrev_b32 v6, 5, v6")
    E("    v_and_b32 v7, 3, v5")
    E("    v_lshl_add_u32 v6, v7, 3, v6")
    E("    s_lshl_b32 s35, s33, 6")
    E("    v_add_u32 v6, s35, v6")
    E("    v_bfe_u32 v7, v1, 3, 1")
    E("    v_lshlrev_b32 v7, 6, v7")
    E("    v_xor_b32 v6, v6, v7")
    E("    v_add_u32 v11, v11, v6")
    E("    v_add_u32 v11, 16384, v11")
    E(f"    v_add_u32 v12, {2*SLOT}, v11")
    E("    v_and_b32 v6, 15, v3")
    E("    v_xor_b32 v6, v6, v4")
    E("    v_lshlrev_b32 v6, 4, v6")
    E("    v_lshl_add_u32 v20, v3, 8, v6")
    for ks in range(1, 8):
        E(f"    v_xor_b32 v{20+ks}, {32*ks}, v20")
    for ks in range(8):
        E(f"    v_add_u32 v{28+ks}, {2*SLOT}, v{20+ks}")
    ACC = 64
    FR = 112

    def fr_ops(setidx, slot, ks):
        r = FR + 64 * setidx + 8 * ks
        so = (slot % 2) * SLOT
        wb = 11 if slot < 2 else 12
        hb = (20 if slot < 2 else 28) + ks
        return [lambda: E(f"    ds_read_b64_tr_b16 v[{r}:{r+1}], v{wb} offset:{so + ks*2048}"),
                lambda: E(f"    ds_read_b64_tr_b16 v[{r+2}:{r+3}], v{wb} offset:{so + ks*2048+512}"),
                lambda: E(f"    ds_read_b128 v[{r+4}:{r+7}], v{hb} offset:{so}")]

    def nk_of(c):
        return 8 if c < 10 else 6

    vm.wait(("dma", 0))
    E("    s_barrier")
    stamp(1, vm)
    for ks in range(8):
        for f in fr_ops(0, 0, ks):
            f()
    for f in d1[4:]:
        f()
    h_touch()
    issue_dma(2)
    e_touch()
    for c in range(nch):
        if c + 1 < nch:
            vm.wait(("dma", c + 1))
        E("    s_waitcnt lgkmcnt(0)")
        rd = []
        dm = []
        if c + 1 < nch:
            E("    s_barrier")
            stamp(2 + c, vm)
            for ks in range(nk_of(c + 1)):
                rd += fr_ops((c + 1) % 2, (c + 1) % NSLOT, ks)
        if c + 3 < nch:
            dm = dma_ops(c + 3)
        if c == 6:
            dm = late + dm
        for ks in range(nk_of(c)):
            r = FR + 64 * (c % 2) + 8 * ks
            cc = "0" if (c == 0 and ks == 0) else f"v[{ACC}:{ACC+15}]"
            E(f"    v_mfma_f32_32x32x16_bf16 v[{ACC}:{ACC+15}], v[{r}:{r+3}], v[{r+4}:{r+7}], {cc}")
            last = ks + 1 == nk_of(c)
            for _ in range(len(rd) if last else 4):
                if rd:
                    rd.pop(0)()
            for _ in range(len(dm) if last else (2 if c == 6 else 1)):
                if dm:
                    dm.pop(0)()
    stamp(12, vm)
    E("    v_lshrrev_b32 v6, 2, v5")
    E("    v_lshl_add_u32 v6, v4, 2, v6")
    E("    s_lshl_b32 s35, s33, 5")
    E("    v_add_u32 v6, s35, v6")
    E("    v_lshlrev_b32 v14, 7, v6")
    E("    v_bfe_u32 v6, v1, 4, 1")
    E("    v_lshlrev_b32 v6, 5, v6")
    E("    v_and_b32 v7, 3, v5")
    E("    v_lshl_add_u32 v6, v7, 3, v6")
    E("    s_lshl_b32 s35, s32, 6")
    E("    v_add_u32 v6, s35, v6")
    E("    v_add_u32 v14, v14, v6")
    E(f"    v_add_u32 v14, {FIN_YOFF}, v14")
    YR = 24
    for jq in range(4):
        E(f"    ds_read_b64_tr_b16 v[{YR+2*jq}:{YR+2*jq+1}], v14 offset:{jq*1024}")
    for jq in range(4):
        E(f"    v_xor_b32 v44, {16*jq}, v42")
        E(f"    v_xor_b32 v45, {16*jq}, v43")
        E(f"    ds_read_b64 v[{XR+2*jq}:{XR+2*jq+1}], v44")
        E(f"    ds_read_b64 v[{NR+2*jq}:{NR+2*jq+1}], v45")
    vm.wait_all()
    E("    s_waitcnt lgkmcnt(0)")
    E("    s_nop 7")
    for jq in range(4):
        a = ACC + 4 * jq
        t = 36
        xs = [t, t + 1, t + 2, t + 3]
        ns = [t + 4, t + 5, t + 6, t + 7]
        ys = [t + 8, t + 9, t + 10, t + 11]
        for (dst, src) in ((xs, XR + 2 * jq), (ns, NR + 2 * jq), (ys, YR + 2 * jq)):
            E(f"    v_lshlrev_b32 v{dst[0]}, 16, v{src}")
            E(f"    v_and_b32 v{dst[1]}, s40, v{src}")
            E(f"    v_lshlrev_b32 v{dst[2]}, 16, v{src+1}")
            E(f"    v_and_b32 v{dst[3]}, s40, v{src+1}")
        for e_ in range(4):
            E(f"    v_mul_f32 v{ns[e_]}, v{ns[e_]}, v{ys[e_]}")
        round_pair(ns[0], ns[1], t + 12, 40)
        round_pair(ns[2], ns[3], t + 12, 40)
        for e_ in range(4):
            E(f"    v_add_f32 v{xs[e_]}, v{xs[e_]}, v{ns[e_]}")
        round_pair(xs[0], xs[1], t + 12, 40)
        round_pair(xs[2], xs[3], t + 12, 40)
        round_pair(a, a + 1, t + 12, 40)
        round_pair(a + 2, a + 3, t + 12, 40)
        for e_ in range(4):
            E(f"    v_add_f32 v{xs[e_]}, v{xs[e_]}, v{a+e_}")
        o = 52 + 2 * jq
        E(f"    v_cvt_pk_bf16_f32 v{o}, v{xs[0]}, v{xs[1]}")
        E(f"    v_cvt_pk_bf16_f32 v{o+1}, v{xs[2]}, v{xs[3]}")
        E(f"    buffer_store_dwordx2 v[{o}:{o+1}], v13, s[52:55], 0 offen offset:{16*jq}")
    if DIAG:
        E("    s_waitcnt vmcnt(0)")
    stamp(13)
    stamp(31, real=True)
    E("fin_done:")
    E("    s_endpgm")


def descriptor(name, vgpr, sgpr=96):
    E(f".amdhsa_kernel {name}")
    E(f"  .amdhsa_next_free_vgpr {vgpr}")
    E(f"  .amdhsa_next_free_sgpr {sgpr}")
    E(f"  .amdhsa_accum_offset {(vgpr + 3)//4*4}")
    E("  .amdhsa_group_segment_fixed_size 0")
    E("  .amdhsa_kernarg_size 104")
    E("  .amdhsa_user_sgpr_count 2")
    E("  .amdhsa_user_sgpr_kernarg_segment_ptr 1")
    E("  .amdhsa_system_sgpr_workgroup_id_x 1")
    E(".end_amdhsa_kernel")


def main():
    hdr = open("parallel_sum__ssm_conv_h3__glu_gated_bilinear__prompt.s.ref").read().splitlines()
    for l in hdr:
        if l.startswith("; Override") or l.startswith("; grid=") or l.startswith("; @launch"):
            continue
        if not l.startswith(";"):
            break
        E(l)
    E("; @launch kernel=prep_kernel grid=(512,1,1) block=(256,1,1) lds=0")
    E(f"; @launch kernel=main_kernel grid=(512,1,1) block=(256,1,1) lds={MAIN_LDS}")
    E(f"; @launch kernel=fin_kernel grid=(256,1,1) block=(256,1,1) lds={FIN_LDS}")
    E('.amdgcn_target "amdgcn-amd-amdhsa--gfx950"')
    E(".text")
    gen_prep()
    gen_main()
    gen_fin()
    E('.section .rodata,"a"')
    E(".p2align 6")
    descriptor("prep_kernel", 256 if DIAG else 116)
    E(".p2align 6")
    descriptor("main_kernel", 256 if DIAG else 240)
    E(".p2align 6")
    descriptor("fin_kernel", 256 if DIAG else 240)
    path = sys.argv[1] if len(sys.argv) > 1 else "parallel_sum__ssm_conv_h3__glu_gated_bilinear__prompt.s"
    open(path, "w").write("\n".join(out) + "\n")
    print("wrote", path, len(out), "lines; MAIN_LDS", MAIN_LDS, "FIN_LDS", FIN_LDS, "COPY_BASE", COPY_BASE, "KV_OFF", KV_OFF, "CH_BYTES", CH_BYTES)


main()
```

```python
import sys

S, D, F = 2048, 512, 1376
WS_XN = 0x000000
WS_KVR = 0x200000
WS_H = 0x400000
WS_YT = 0xA00000
WS_WT = 0xC00000
HP = 2816
H_BYTES = S * HP

out = []


def E(s=""):
    out.append(s)


class VM:
    def __init__(self):
        self.q = []

    def issue(self, tag):
        self.q.append(tag)

    def wait(self, tag):
        idx = -1
        for i, t in enumerate(self.q):
            if t == tag:
                idx = i
        if idx < 0:
            return
        n = len(self.q) - 1 - idx
        assert n <= 63, n
        E(f"    s_waitcnt vmcnt({n})")
        self.q = self.q[idx + 1:]

    def wait_all(self):
        E("    s_waitcnt vmcnt(0)")
        self.q = []


DIAG = len(sys.argv) > 2 and sys.argv[2] == "diag"
STAMP_WS = 0x2000000


def stamp_init(kidx, ws_lo, ws_hi):
    if not DIAG:
        return
    E(f"    s_add_u32 s56, s{ws_lo}, {STAMP_WS + kidx*1024*4*32*4}")
    E(f"    s_addc_u32 s57, s{ws_hi}, 0")
    E("    s_and_b32 s57, s57, 0xffff")
    E("    s_mov_b32 s58, 0x80000")
    E("    s_mov_b32 s59, 0x00020000")
    E("    s_lshl_b32 s60, s2, 2")
    E("    s_add_u32 s60, s60, s3")
    E("    s_lshl_b32 s60, s60, 7")
    E("    v_mov_b32 v254, s60")


def stamp(slot, vm=None, real=False):
    if not DIAG:
        return
    E("    s_waitcnt lgkmcnt(0)")
    E("    s_memrealtime s[62:63]" if real else "    s_memtime s[62:63]")
    E("    s_waitcnt lgkmcnt(0)")
    E("    v_mov_b32 v255, s62")
    E("    s_mov_b64 s[60:61], exec")
    E("    s_mov_b64 exec, 1")
    E(f"    buffer_store_dword v255, v254, s[56:59], 0 offen offset:{4*slot}")
    E("    s_mov_b64 exec, s[60:61]")
    if vm is not None:
        vm.issue("stamp")


def pstamp(slot, real=False):
    if not DIAG:
        return
    E("    s_waitcnt lgkmcnt(0)")
    E("    s_memrealtime s[72:73]" if real else "    s_memtime s[72:73]")
    E("    s_waitcnt lgkmcnt(0)")
    E("    v_mov_b32 v255, s72")
    E("    s_mov_b64 s[74:75], exec")
    E("    s_mov_b64 exec, 1")
    E(f"    buffer_store_dword v255, v254, s[68:71], 0 offen offset:{4*slot}")
    E("    s_mov_b64 exec, s[74:75]")


def srd(dst, lo, hi, nbytes):
    E(f"    s_mov_b32 s{dst}, s{lo}")
    E(f"    s_and_b32 s{dst+1}, s{hi}, 0xffff")
    E(f"    s_mov_b32 s{dst+2}, {nbytes}")
    E(f"    s_mov_b32 s{dst+3}, 0x00020000")


def srd_off(dst, lo, hi, off, nbytes):
    E(f"    s_add_u32 s{dst}, s{lo}, {off}")
    E(f"    s_addc_u32 s{dst+1}, s{hi}, 0")
    E(f"    s_and_b32 s{dst+1}, s{dst+1}, 0xffff")
    E(f"    s_mov_b32 s{dst+2}, {nbytes}")
    E(f"    s_mov_b32 s{dst+3}, 0x00020000")


def kernel_begin(name):
    E(f".globl {name}")
    E(".p2align 8")
    E(f".type {name},@function")
    E(f"{name}:")


def wave_reduce_add(v, t):
    E("    s_nop 1")
    E(f"    v_add_f32_dpp v{t}, v{v}, v{v} quad_perm:[1,0,3,2] row_mask:0xf bank_mask:0xf")
    E("    s_nop 1")
    E(f"    v_add_f32_dpp v{v}, v{t}, v{t} quad_perm:[2,3,0,1] row_mask:0xf bank_mask:0xf")
    E("    s_nop 1")
    E(f"    v_add_f32_dpp v{t}, v{v}, v{v} row_half_mirror row_mask:0xf bank_mask:0xf")
    E("    s_nop 1")
    E(f"    v_add_f32_dpp v{v}, v{t}, v{t} row_mirror row_mask:0xf bank_mask:0xf")
    E(f"    v_mov_b32 v{t}, v{v}")
    E("    s_nop 1")
    E(f"    v_permlane16_swap_b32 v{v}, v{t}")
    E("    s_nop 1")
    E(f"    v_add_f32 v{v}, v{v}, v{t}")
    E(f"    v_mov_b32 v{t}, v{v}")
    E("    s_nop 1")
    E(f"    v_permlane32_swap_b32 v{v}, v{t}")
    E("    s_nop 1")
    E(f"    v_add_f32 v{v}, v{v}, v{t}")


def round_pair(a, b, t, mask_sgpr):
    E(f"    v_cvt_pk_bf16_f32 v{t}, v{a}, v{b}")
    E(f"    v_lshlrev_b32 v{a}, 16, v{t}")
    E(f"    v_and_b32 v{b}, s{mask_sgpr}, v{t}")


def gen_prep():
    kernel_begin("prep_kernel")
    E("    s_cmp_ge_u32 s2, 512")
    E("    s_cbranch_scc1 prep_done")
    E("    s_load_dwordx2 s[4:5], s[0:1], 0")
    E("    s_load_dwordx4 s[8:11], s[0:1], 8")
    E("    s_load_dwordx2 s[12:13], s[0:1], 24")
    E("    s_load_dwordx2 s[14:15], s[0:1], 96")
    E("    s_load_dwordx4 s[44:47], s[0:1], 56")
    E("    s_load_dwordx2 s[48:49], s[0:1], 32")
    E("    s_mov_b32 s40, 0xffff0000")
    E("    s_waitcnt lgkmcnt(0)")
    if DIAG:
        E("    v_lshrrev_b32 v2, 6, v0")
        E("    s_nop 0")
        E("    v_readfirstlane_b32 s3, v2")
        E("    s_mov_b32 s64, s14")
        E("    s_mov_b32 s65, s15")
        E(f"    s_add_u32 s68, s64, {STAMP_WS}")
        E("    s_addc_u32 s69, s65, 0")
        E("    s_and_b32 s69, s69, 0xffff")
        E("    s_mov_b32 s70, 0x80000")
        E("    s_mov_b32 s71, 0x00020000")
        E("    s_lshl_b32 s66, s2, 2")
        E("    s_add_u32 s66, s66, s3")
        E("    s_lshl_b32 s66, s66, 7")
        E("    v_mov_b32 v254, s66")
    pstamp(30, True)
    pstamp(0)
    E("    s_cmp_lt_u32 s2, 256")
    E("    s_cbranch_scc1 prep_kv")
    srd(16, 4, 5, S * D * 2)
    srd_off(20, 14, 15, WS_XN, S * D * 2)
    E("    s_sub_u32 s33, s2, 256")
    E("    v_lshrrev_b32 v2, 6, v0")
    E("    v_and_b32 v3, 63, v0")
    E("    s_lshl_b32 s3, s33, 13")
    E("    v_lshlrev_b32 v1, 4, v3")
    E("    v_lshl_add_u32 v1, v2, 11, v1")
    E("    buffer_load_dwordx4 v[4:7], v1, s[16:19], s3 offen")
    E("    buffer_load_dwordx4 v[44:47], v1, s[16:19], s3 offen offset:1024")
    E("    s_lshr_b32 s50, s33, 3")
    E("    s_cmp_ge_u32 s50, 16")
    E("    s_cselect_b32 s52, s46, s44")
    E("    s_cselect_b32 s53, s47, s45")
    srd(56, 52, 53, D * F * 2)
    E("    s_and_b32 s52, s50, 15")
    E("    s_mul_i32 s52, s52, 32*2752")
    E("    v_lshrrev_b32 v112, 3, v0")
    E("    s_movk_i32 s53, 2752")
    E("    v_mul_lo_u32 v112, v112, s53")
    E("    v_and_b32 v113, 7, v0")
    E("    v_lshl_add_u32 v112, v113, 7, v112")
    E("    s_and_b32 s51, s2, 3")
    E("    s_mul_i32 s53, s51, 768")
    E("    s_cmp_eq_u32 s51, 3")
    E("    s_cselect_b32 s53, 2240, s53")
    E("    s_add_u32 s60, s52, s53")
    E("    buffer_load_dword v113, v112, s[56:59], s60 offen sc1")
    E("    s_lshr_b32 s30, s33, 4")
    E("    s_lshl_b32 s30, s30, 17")
    E("    s_and_b32 s31, s33, 15")
    E("    s_lshl_b32 s31, s31, 9")
    E("    s_add_u32 s30, s30, s31")
    E("    s_lshl_b32 s31, s33, 1")
    E("    v_lshrrev_b32 v16, 1, v2")
    E("    v_add_u32 v16, s31, v16")
    E("    v_and_b32 v16, 3, v16")
    E("    v_and_b32 v17, 3, v3")
    E("    v_xor_b32 v16, v16, v17")
    E("    v_lshlrev_b32 v2, 7, v2")
    E("    v_add_u32 v2, s30, v2")
    E("    v_lshrrev_b32 v17, 2, v3")
    E("    v_lshl_add_u32 v2, v17, 13, v2")
    E("    v_lshl_add_u32 v2, v16, 4, v2")
    E("    s_waitcnt vmcnt(1)")
    pstamp(1)

    def ln_body(o):
        global out
        saved = out
        out = []
        for i in range(4):
            E(f"    v_lshlrev_b32 v{o+8+2*i}, 16, v{o+4+i}")
            E(f"    v_and_b32 v{o+9+2*i}, s40, v{o+4+i}")
        E(f"    v_add_f32 v{o+16}, v{o+8}, v{o+9}")
        E(f"    v_add_f32 v{o+17}, v{o+10}, v{o+11}")
        E(f"    v_add_f32 v{o+18}, v{o+12}, v{o+13}")
        E(f"    v_add_f32 v{o+19}, v{o+14}, v{o+15}")
        E(f"    v_add_f32 v{o+16}, v{o+16}, v{o+17}")
        E(f"    v_add_f32 v{o+18}, v{o+18}, v{o+19}")
        E(f"    v_add_f32 v{o+16}, v{o+16}, v{o+18}")
        wave_reduce_add(o+16, o+17)
        E(f"    v_mul_f32 v{o+16}, 0x3b000000, v{o+16}")
        for i in range(8):
            E(f"    v_sub_f32 v{o+20+i}, v{o+8+i}, v{o+16}")
        E(f"    v_mul_f32 v{o+18}, v{o+20}, v{o+20}")
        E(f"    v_mul_f32 v{o+19}, v{o+21}, v{o+21}")
        for i in range(2, 8, 2):
            E(f"    v_fmac_f32 v{o+18}, v{o+20+i}, v{o+20+i}")
            E(f"    v_fmac_f32 v{o+19}, v{o+21+i}, v{o+21+i}")
        E(f"    v_add_f32 v{o+18}, v{o+18}, v{o+19}")
        wave_reduce_add(o+18, o+17)
        E(f"    v_mul_f32 v{o+18}, 0x3b000000, v{o+18}")
        round_pair(o+16, o+18, o+17, 40)
        E(f"    v_add_f32 v{o+18}, 0x3727c5ac, v{o+18}")
        E(f"    v_cvt_pk_bf16_f32 v{o+17}, v{o+18}, v{o+18}")
        E(f"    v_and_b32 v{o+18}, s40, v{o+17}")
        E(f"    v_sqrt_f32 v{o+19}, v{o+18}")
        E("    s_nop 0")
        E(f"    v_rcp_f32 v{o+28}, v{o+19}")
        E(f"    v_fma_f32 v{o+29}, -v{o+19}, v{o+19}, v{o+18}")
        E(f"    v_mul_f32 v{o+28}, 0.5, v{o+28}")
        E(f"    v_fma_f32 v{o+19}, v{o+29}, v{o+28}, v{o+19}")
        E(f"    v_cvt_pk_bf16_f32 v{o+17}, v{o+19}, v{o+19}")
        E(f"    v_and_b32 v{o+19}, s40, v{o+17}")
        E(f"    v_rcp_f32 v{o+28}, v{o+19}")
        for i in range(8):
            E(f"    v_sub_f32 v{o+20+i}, v{o+8+i}, v{o+16}")
        for i in range(0, 8, 2):
            round_pair(o+20 + i, o+21 + i, o+17, 40)
        for i in range(8):
            E(f"    v_mul_f32 v{o+8+i}, v{o+20+i}, v{o+28}")
        for i in range(8):
            E(f"    v_fma_f32 v{o+30+i}, -v{o+8+i}, v{o+19}, v{o+20+i}")
        for i in range(8):
            E(f"    v_fma_f32 v{o+8+i}, v{o+30+i}, v{o+28}, v{o+8+i}")
        for i in range(4):
            E(f"    v_cvt_pk_bf16_f32 v{o+4+i}, v{o+8+2*i}, v{o+9+2*i}")
        E(f"    buffer_store_dwordx4 v[{o+4}:{o+7}], v2, s[20:23], 0 offen offset:{64 if o else 0}")
        body = out
        out = saved
        return body

    ba, bb = ln_body(0), ln_body(40)
    for la, lb in zip(ba, bb):
        E(la)
        E(lb)
    pstamp(2)
    if DIAG:
        E("    s_waitcnt vmcnt(0)")
    pstamp(3)
    pstamp(31, True)
    E("    s_endpgm")
    E("prep_kv:")
    srd(16, 8, 9, S * D * 2)
    srd(20, 10, 11, S * D * 2)
    srd(24, 12, 13, D * 4 * 2)
    srd_off(28, 14, 15, WS_KVR, S * D * 2)
    srd(56, 48, 49, D * S * 2)
    E("    s_lshl_b32 s60, s2, 13")
    E("    v_and_b32 v112, 63, v0")
    E("    v_lshlrev_b32 v112, 7, v112")
    E("    s_mov_b32 s3, s2")
    E("    s_lshr_b32 s32, s3, 3")
    E("    s_and_b32 s33, s3, 7")
    E("    v_and_b32 v1, 31, v0")
    E("    v_lshrrev_b32 v2, 5, v0")
    E("    s_lshl_b32 s34, s32, 6")
    E("    v_lshlrev_b32 v2, 3, v2")
    E("    v_add_u32 v2, s34, v2")
    E("    s_lshl_b32 s35, s33, 5")
    E("    v_add_u32 v1, s35, v1")
    E("    v_lshlrev_b32 v3, 10, v2")
    E("    v_lshlrev_b32 v4, 2, v1")
    E("    v_add_u32 v3, v3, v4")
    E("    v_add_u32 v4, 4096, v3")
    E("    v_subrev_u32 v5, 3072, v3")
    E("    v_lshlrev_b32 v6, 4, v1")
    E("    buffer_load_dwordx4 v[8:11], v6, s[24:27], 0 offen")
    for j in range(3):
        E(f"    buffer_load_dword v{12+j}, v5, s[16:19], 0 offen offset:{1024*j}")
    for j in range(4):
        E(f"    buffer_load_dword v{15+j}, v3, s[16:19], 0 offen offset:{1024*j}")
    for j in range(4):
        E(f"    buffer_load_dword v{19+j}, v4, s[16:19], 0 offen offset:{1024*j}")
    for j in range(4):
        E(f"    buffer_load_dword v{24+j}, v3, s[20:23], 0 offen offset:{1024*j}")
    for j in range(4):
        E(f"    buffer_load_dword v{28+j}, v4, s[20:23], 0 offen offset:{1024*j}")
    E("    v_lshlrev_b32 v6, 13, v1")
    E("    v_sub_u32 v7, 2040, v2")
    E("    v_lshlrev_b32 v7, 1, v7")
    E("    v_add_u32 v6, v6, v7")
    E("    v_add_u32 v7, 4096, v6")
    E("    buffer_load_dword v113, v112, s[56:59], s60 offen sc1")
    E("    s_waitcnt vmcnt(1)")
    pstamp(1)
    for c in range(2):
        for d in range(2):
            E(f"    v_lshlrev_b32 v{32+4*c+2*d}, 16, v{8+2*c+d}")
            E(f"    v_and_b32 v{33+4*c+2*d}, s40, v{8+2*c+d}")
    for j in range(11):
        E(f"    v_lshlrev_b32 v{40+j}, 16, v{12+j}")
        E(f"    v_and_b32 v{52+j}, s40, v{12+j}")
    for j in range(8):
        E(f"    v_lshlrev_b32 v{64+j}, 16, v{24+j}")
        E(f"    v_and_b32 v{72+j}, s40, v{24+j}")
    for j in range(8):
        A0, A1, B0, B1, T = 96, 97, 98, 99, 100
        E(f"    v_mul_f32 v{A0}, v{40+j}, v35")
        E(f"    v_mul_f32 v{A1}, v{52+j}, v39")
        E(f"    v_mul_f32 v{B0}, v{41+j}, v34")
        E(f"    v_mul_f32 v{B1}, v{53+j}, v38")
        round_pair(A0, A1, T, 40)
        round_pair(B0, B1, T, 40)
        E(f"    v_add_f32 v{A0}, v{A0}, v{B0}")
        E(f"    v_add_f32 v{A1}, v{A1}, v{B1}")
        E(f"    v_mul_f32 v{B0}, v{42+j}, v33")
        E(f"    v_mul_f32 v{B1}, v{54+j}, v37")
        round_pair(A0, A1, T, 40)
        round_pair(B0, B1, T, 40)
        E(f"    v_add_f32 v{A0}, v{A0}, v{B0}")
        E(f"    v_add_f32 v{A1}, v{A1}, v{B1}")
        E(f"    v_mul_f32 v{B0}, v{43+j}, v32")
        E(f"    v_mul_f32 v{B1}, v{55+j}, v36")
        round_pair(A0, A1, T, 40)
        round_pair(B0, B1, T, 40)
        E(f"    v_add_f32 v{A0}, v{A0}, v{B0}")
        E(f"    v_add_f32 v{A1}, v{A1}, v{B1}")
        round_pair(A0, A1, T, 40)
        E(f"    v_mul_f32 v{80+j}, v{A0}, v{64+j}")
        E(f"    v_mul_f32 v{88+j}, v{A1}, v{72+j}")
    for c in range(2):
        for jj in range(4):
            E(f"    v_cvt_pk_bf16_f32 v{104+4*c+jj}, v{80+8*c+7-2*jj}, v{80+8*c+6-2*jj}")
    E("    buffer_store_dwordx4 v[104:107], v6, s[28:31], 0 offen")
    E("    buffer_store_dwordx4 v[108:111], v7, s[28:31], 0 offen")
    pstamp(2)
    if DIAG:
        E("    s_waitcnt vmcnt(0)")
    pstamp(3)
    pstamp(31, True)
    E("    s_endpgm")
    E("prep_done:")
    E("    s_endpgm")


COPY_BYTES = 4240
_order = [(1, 0), (0, 11), (2, 4), (5, 0), (4, 12), (3, 8), (6, 4), (7, 8)]
COPY_BASE = {}
_pos = 0
for _b, _beta in _order:
    while (_pos // 16) % 16 != _beta:
        _pos += 16
    COPY_BASE[_b] = _pos
    _pos += COPY_BYTES
KV_OFF = (_pos + 15) // 16 * 16
KVP = 80
CH_BYTES = (KV_OFF + 65 * KVP + 255) // 256 * 256
MAIN_LDS = max(2 * CH_BYTES, 81920)
assert MAIN_LDS <= 81920, MAIN_LDS


def gen_gemm1_path(nt):
    vm = VM()
    ACC = 128
    WF = 64
    XF = 112
    STG = 20480
    NB = 4
    nst = 16

    def dma_ops(st):
        buf = st % NB
        ops = []
        for j in range(2):
            def f(j=j):
                E(f"    s_add_u32 s38, s41, {st*8192 + j*1024}")
                E(f"    s_add_u32 m0, s41, {buf*STG + j*1024}")
                E("    s_nop 0")
                E(f"    buffer_load_dwordx4 v8, s[20:23], s38 offen lds")
                vm.issue(("dma", st))
            ops.append(f)
        for i in range(nt):
            def f(i=i):
                E(f"    s_add_u32 s38, s48, {st*32*2752}")
                E(f"    s_add_u32 m0, s43, {buf*STG + 8192 + i*1024}")
                E("    s_nop 0")
                E(f"    buffer_load_dwordx4 v{16+i}, s[52:55], s38 offen lds")
                vm.issue(("dma", st))
            ops.append(f)
        return ops

    P = 64 * nt
    LPR = 4 * nt
    E("    s_lshr_b32 s49, s3, 1")
    E("    s_cmp_eq_u32 s49, 1")
    E("    s_cselect_b32 s52, s44, s16")
    E("    s_cselect_b32 s53, s45, s17")
    E("    s_mov_b32 s54, s18")
    E("    s_mov_b32 s55, s19")
    E("    s_and_b32 s49, s3, 1")
    E("    s_mul_i32 s48, s49, 16*2752")
    E("    s_add_u32 s48, s48, s36")
    E(f"    s_mul_i32 s43, s3, {16*P}")
    E("    s_movk_i32 s49, 2752")
    for i in range(nt):
        E(f"    v_add_u32 v14, {64*i}, v1")
        if nt == 3:
            E("    v_mul_u32_u24 v15, 0x5556, v14")
            E("    v_lshrrev_b32 v15, 18, v15")
            E("    v_mul_u32_u24 v20, 12, v15")
        else:
            E("    v_lshrrev_b32 v15, 3, v14")
            E("    v_lshlrev_b32 v20, 3, v15")
        E("    v_sub_u32 v14, v14, v20")
        E("    v_mul_lo_u32 v15, v15, s49")
        E(f"    v_lshl_add_u32 v{16+i}, v14, 4, v15")
    E("    v_and_b32 v14, 15, v1")
    E("    v_lshrrev_b32 v15, 2, v14")
    E("    v_lshl_add_u32 v15, v13, 3, v15")
    E(f"    v_mul_u32_u24 v11, {P}, v15")
    E("    v_bfe_u32 v15, v1, 4, 1")
    E("    v_lshl_add_u32 v11, v15, 5, v11")
    E("    v_and_b32 v15, 3, v14")
    E("    v_lshl_add_u32 v11, v15, 3, v11")
    E("    v_add_u32 v15, 40960, v11")

    def fr_ops(setidx, buf, ks):
        ops = []
        x = XF + 4 * setidx
        ops.append(lambda: E(f"    ds_read_b128 v[{x}:{x+3}], v{4+ks} offset:{buf*STG}"))
        for mt in range(2 * nt):
            r = WF + 24 * setidx + 4 * mt
            base = (buf % 2) * STG + 8192 + (mt // nt) * 32 * P + ks * 16 * P + (mt % nt) * 64
            vb = 11 if buf < 2 else 15
            ops.append(lambda r=r, vb=vb, base=base: E(f"    ds_read_b64_tr_b16 v[{r}:{r+1}], v{vb} offset:{base}"))
            ops.append(lambda r=r, vb=vb, base=base: E(f"    ds_read_b64_tr_b16 v[{r+2}:{r+3}], v{vb} offset:{base+4*P}"))
        return ops

    def mfma_group(setidx, first, reads, dmas):
        x = XF + 4 * setidx
        reads = list(reads)
        dmas = list(dmas)
        n = 2 * nt
        rg = n // 2
        per = (len(reads) + rg - 1) // rg
        for mt in range(n):
            w = WF + 24 * setidx + 4 * mt
            a = ACC + 16 * mt
            c = "0" if first else f"v[{a}:{a+15}]"
            E(f"    v_mfma_f32_32x32x16_bf16 v[{a}:{a+15}], v[{w}:{w+3}], v[{x}:{x+3}], {c}")
            if mt < rg:
                for _ in range(per):
                    if reads:
                        reads.pop(0)()
            else:
                k = 1 if mt + 1 < n else len(dmas)
                for _ in range(k):
                    if dmas:
                        dmas.pop(0)()

    stamp(11, vm)
    for st in range(2):
        for f in dma_ops(st):
            f()
    E("    v_lshlrev_b32 v9, 7, v1")
    E("    buffer_load_dword v10, v9, s[20:23], s46 offen sc1")
    vm.issue("pf")
    stamp(12, vm)
    vm.wait(("dma", 0))
    stamp(13, vm)
    E("    s_barrier")
    stamp(1, vm)
    for f in fr_ops(0, 0, 0):
        f()
    for f in dma_ops(2):
        f()
    for st in range(nst):
        buf = st % NB
        dm = dma_ops(st + 3) if st + 3 < nst else []
        na = len(dm) // 2
        E("    s_waitcnt lgkmcnt(0)")
        mfma_group(0, st == 0, fr_ops(1, buf, 1), dm[:na])
        if st + 1 < nst:
            vm.wait(("dma", st + 1))
        E("    s_waitcnt lgkmcnt(0)")
        rd = []
        if st + 1 < nst:
            E("    s_barrier")
            if st % 2 == 1:
                stamp(2 + st // 2, vm)
            rd = fr_ops(0, (st + 1) % NB, 0)
        mfma_group(1, False, rd, dm[na:])
    stamp(10, vm)
    E("    s_nop 15")
    for tau in range(nt):
        G = ACC + 16 * tau
        U = ACC + 16 * (nt + tau)
        T = 14
        for j in range(0, 16, 2):
            round_pair(G + j, G + j + 1, T, 40)
            round_pair(U + j, U + j + 1, T, 40)
        for j in range(16):
            E(f"    v_mul_f32 v{G+j}, v{G+j}, v{U+j}")
        P = 16 + 8 * tau
        for j in range(8):
            E(f"    v_cvt_pk_bf16_f32 v{P+j}, v{G+2*j}, v{G+2*j+1}")
        E("    s_nop 1")
        for pair in range(2):
            q0 = P + 4 * pair
            E(f"    v_permlane32_swap_b32 v{q0}, v{q0+2}")
            E(f"    v_permlane32_swap_b32 v{q0+1}, v{q0+3}")
        for pair in range(2):
            q0 = P + 4 * pair
            E(f"    buffer_store_dwordx4 v[{q0}:{q0+3}], v12, s[24:27], s36 offen offset:{tau*64 + pair*32}")
    if DIAG:
        E("    s_waitcnt vmcnt(0)")
    stamp(14)
    stamp(31, real=True)
    E("    s_endpgm")


def gen_main():
    kernel_begin("main_kernel")
    E("    s_cmp_ge_u32 s2, 512")
    E("    s_cbranch_scc1 main_done")
    E("    s_load_dwordx4 s[4:7], s[0:1], 56")
    E("    s_load_dwordx4 s[8:11], s[0:1], 32")
    E("    s_load_dwordx2 s[12:13], s[0:1], 96")
    E("    s_load_dwordx2 s[64:65], s[0:1], 72")
    E("    s_mov_b32 s40, 0xffff0000")
    E("    v_and_b32 v1, 63, v0")
    E("    v_lshrrev_b32 v2, 6, v0")
    E("    s_nop 0")
    E("    v_readfirstlane_b32 s3, v2")
    E("    s_waitcnt lgkmcnt(0)")
    stamp_init(1, 12, 13)
    stamp(30, real=True)
    stamp(0)
    E("    s_cmp_lt_u32 s2, 256")
    E("    s_cbranch_scc1 main_conv")
    import os
    if os.environ.get("PRIO"):
        E(f"    s_setprio {os.environ['PRIO']}")
    E("    s_sub_u32 s42, s2, 256")
    E("    s_bfe_u32 s30, s42, 0x10002")
    E("    s_lshl_b32 s30, s30, 3")
    E("    s_lshr_b32 s31, s42, 5")
    E("    s_add_u32 s30, s30, s31")
    E("    s_and_b32 s31, s42, 3")
    E("    s_lshl_b32 s31, s31, 2")
    E("    s_bfe_u32 s43, s42, 0x20003")
    E("    s_add_u32 s31, s31, s43")
    srd(16, 4, 5, D * F * 2)
    srd(44, 6, 7, D * F * 2)
    E("    s_lshl_b32 s32, s30, 17")
    E(f"    s_add_u32 s32, s32, {WS_XN}")
    srd_off(20, 12, 13, "s32", 128 * 1024)
    srd_off(24, 12, 13, WS_H, H_BYTES)
    E("    v_and_b32 v3, 31, v1")
    E("    v_lshrrev_b32 v13, 5, v1")
    E("    s_lshl_b32 s33, s3, 5")
    E("    v_add_u32 v3, s33, v3")
    E("    s_lshl_b32 s32, s30, 7")
    E("    v_add_u32 v14, s32, v3")
    E(f"    s_movk_i32 s34, {HP}")
    E("    v_mul_lo_u32 v12, v14, s34")
    E("    v_lshl_add_u32 v12, v13, 4, v12")
    E("    v_bfe_u32 v14, v3, 2, 2")
    E("    v_xor_b32 v14, v14, v13")
    E("    v_lshlrev_b32 v14, 4, v14")
    E("    v_lshl_add_u32 v4, v3, 6, v14")
    E("    v_xor_b32 v5, 32, v4")
    E("    v_lshlrev_b32 v8, 4, v1")
    E("    s_lshl_b32 s46, s3, 2")
    E("    s_add_u32 s46, s46, s43")
    E("    s_lshl_b32 s46, s46, 13")
    E("    s_lshr_b32 s47, s42, 5")
    E("    s_lshl_b32 s41, s3, 11")
    E("    s_cmp_lt_u32 s31, 11")
    E("    s_cbranch_scc0 main_g2")
    E("    s_mul_i32 s36, s31, 192")
    gen_gemm1_path(3)
    E("main_g2:")
    E("    s_lshl_b32 s36, s31, 7")
    E("    s_add_u32 s36, s36, 704")
    gen_gemm1_path(2)

    E("main_conv:")
    vm = VM()
    E("    s_lshl_b32 s30, s2, 1")
    E("    s_lshr_b32 s31, s3, 1")
    E("    s_add_u32 s30, s30, s31")
    E("    s_and_b32 s32, s3, 1")
    E("    s_lshl_b32 s33, s30, 12")
    srd_off(16, 8, 9, "s33", 4096)
    E("    s_add_u32 s34, s33, %d" % WS_KVR)
    srd_off(20, 12, 13, "s34", 4096)
    E("    s_add_u32 s34, s33, %d" % WS_YT)
    srd_off(24, 12, 13, "s34", 4096)
    srd(44, 10, 11, D * 2)
    E(f"    s_mul_i32 s35, s31, {CH_BYTES}")
    E("    s_lshl_b32 s36, s32, 6")
    E("    v_add_u32 v3, s36, v1")
    E("    v_lshlrev_b32 v4, 5, v3")
    E("    v_subrev_u32 v4, 16, v4")
    E("    buffer_load_dwordx4 v[16:19], v4, s[16:19], 0 offen")
    E("    v_lshlrev_b32 v5, 5, v3")
    E("    buffer_load_dwordx4 v[20:23], v5, s[16:19], 0 offen")
    E("    buffer_load_dwordx4 v[24:27], v5, s[16:19], 0 offen offset:16")
    E("    v_lshlrev_b32 v6, 4, v3")
    E("    buffer_load_dwordx4 v[28:31], v6, s[20:23], 0 offen")
    E("    buffer_load_dwordx4 v[32:35], v6, s[20:23], 0 offen offset:2048")
    E("    s_lshl_b32 s36, s30, 1")
    E("    v_mov_b32 v7, s36")
    E("    buffer_load_ushort v9, v7, s[44:47], 0 offen")
    E("    v_mov_b32 v36, 0")
    E("    v_mov_b32 v37, 0")
    E("    v_mov_b32 v38, 0")
    E("    v_mov_b32 v39, 0")
    E("    v_lshlrev_b32 v7, 4, v1")
    E("    v_add_u32 v7, s35, v7")
    E("    s_mov_b64 exec, 0x7f")
    for b in range(8):
        E(f"    ds_write_b128 v7, v[36:39] offset:{COPY_BASE[b]}")
    E("    s_mov_b64 exec, 0xf")
    E(f"    ds_write_b128 v7, v[36:39] offset:{KV_OFF + 64*KVP}")
    E("    s_mov_b64 exec, -1")
    E("    v_lshlrev_b32 v7, 5, v3")
    E("    v_add_u32 v7, s35, v7")
    E("    v_lshrrev_b32 v8, 2, v3")
    E(f"    v_mul_u32_u24 v8, {KVP}, v8")
    E("    v_and_b32 v10, 3, v3")
    E("    v_lshl_add_u32 v8, v10, 4, v8")
    E("    v_add_u32 v8, s35, v8")
    E("    v_and_b32 v3, 31, v1")
    E("    v_lshrrev_b32 v4, 5, v1")
    E("    v_add_u32 v5, 1, v3")
    E("    v_and_b32 v6, 7, v5")
    E("    v_lshrrev_b32 v5, 3, v5")
    E("    v_sub_u32 v5, v5, v4")
    E("    v_add_u32 v5, 1, v5")
    E("    v_lshlrev_b32 v5, 4, v5")
    E("    v_mov_b32 v10, 0")
    for b in range(8):
        E(f"    v_cmp_eq_u32 vcc, {b}, v6")
        E(f"    v_mov_b32 v11, {COPY_BASE[b]}")
        E("    s_nop 0")
        E("    v_cndmask_b32 v10, v10, v11, vcc")
    E("    v_add_u32 v10, v10, v5")
    E("    v_add_u32 v10, s35, v10")
    E("    v_sub_u32 v5, 63, v3")
    E(f"    v_mul_u32_u24 v5, {KVP}, v5")
    E("    v_lshlrev_b32 v6, 4, v4")
    E("    v_sub_u32 v5, v5, v6")
    E(f"    s_add_u32 s36, s35, {KV_OFF + 16}")
    E("    v_add_u32 v11, s36, v5")
    E(f"    v_subrev_u32 v15, {32*KVP}, v11")
    E(f"    s_add_u32 s36, s36, {KVP*64}")
    E("    v_sub_u32 v12, s36, v6")
    E("    s_waitcnt vmcnt(3)")
    for u in range(2):
        e = 16 + 4 * u
        for b in range(8):
            off = COPY_BASE[b] + 112 + 16 * u
            if b % 2 == 0 and (b // 2) % 2 == 0:
                r = e + b // 2
                E(f"    ds_write_b128 v7, v[{r}:{r+3}] offset:{off}")
            else:
                t = 40 + 4 * ((u * 8 + b) % 4)
                for d in range(4):
                    if b % 2 == 0:
                        E(f"    v_mov_b32 v{t+d}, v{e + b//2 + d}")
                    else:
                        be = (b - 1) // 2
                        E(f"    v_alignbyte_b32 v{t+d}, v{e+be+d+1}, v{e+be+d}, 2")
                E(f"    ds_write_b128 v7, v[{t}:{t+3}] offset:{off}")
    E(f"    ds_write_b128 v7, v[24:27] offset:{COPY_BASE[0] + 112 + 32}")
    E("    s_waitcnt vmcnt(1)")
    E(f"    ds_write_b128 v8, v[28:31] offset:{KV_OFF}")
    E(f"    ds_write_b128 v8, v[32:35] offset:{KV_OFF + 32*KVP}")
    E("    s_waitcnt lgkmcnt(0)")
    stamp(1)
    E("    s_barrier")
    stamp(2)
    FR = 64
    ACC = 192

    def fr(setidx, slot):
        return FR + 64 * setidx + 4 * slot

    def op_A(setidx, slot, t):
        r = fr(setidx, slot)
        return lambda: E(f"    ds_read_b128 v[{r}:{r+3}], v10 offset:{32*(t+3)}")

    def ops_B(setidx, slot, d, c):
        def f():
            E(f"    v_add_u32 v13, {KVP*d}, v{11 if c == 0 else 15}")
            E("    v_min_u32 v13, v13, v12")
            for q in range(2):
                r = fr(setidx, slot + q)
                E(f"    ds_read_b128 v[{r}:{r+3}], v13 offset:{32*(1-q)}")
        return f

    def loads(it, setidx):
        kind, d0 = it
        ops = []
        if kind == "X":
            for e_ in range(2):
                for q in range(2):
                    ops.append(op_A(setidx, 2 * e_ + q, 2 * (d0 + e_) - q))
                for c in range(2):
                    ops.append(ops_B(setidx, 4 + 4 * e_ + 2 * c, d0 + e_, c))
        else:
            for e_ in range(4):
                for q in range(2):
                    ops.append(op_A(setidx, 2 * e_ + q, 2 * (d0 + e_) - q))
                ops.append(ops_B(setidx, 8 + 2 * e_, d0 + e_, 1))
        return ops

    def mfmas(it, setidx):
        kind, d0 = it
        lst = []
        if kind == "X":
            for e_ in range(2):
                for q in range(2):
                    for c in range(2):
                        lst.append((c, fr(setidx, 2 * e_ + q), fr(setidx, 4 + 4 * e_ + 2 * c + q)))
        else:
            for e_ in range(4):
                for q in range(2):
                    lst.append((1 + q, fr(setidx, 2 * e_ + q), fr(setidx, 8 + 2 * e_ + q)))
        return lst

    def conv_loop(its, pf_at):
        started = set()
        for f in loads(its[0], 0):
            f()
        for n, it in enumerate(its):
            E("    s_waitcnt lgkmcnt(0)")
            nxt = loads(its[n + 1], (n + 1) % 2) if n + 1 < len(its) else []
            per = (len(nxt) + 4) // 5
            ms = mfmas(it, n % 2)
            for k, (acc, a, b) in enumerate(ms):
                A = ACC + 16 * acc
                c = f"v[{A}:{A+15}]" if acc in started else "0"
                started.add(acc)
                E(f"    v_mfma_f32_32x32x16_bf16 v[{A}:{A+15}], v[{a}:{a+3}], v[{b}:{b+3}], {c}")
                for _ in range(per if k + 1 < len(ms) else len(nxt)):
                    if nxt:
                        nxt.pop(0)()
            if n == pf_at:
                srd(52, 64, 65, F * D * 2)
                E("    s_lshr_b32 s48, s2, 3")
                E("    s_mul_i32 s48, s48, 344*128")
                E("    v_lshlrev_b32 v60, 7, v0")
                E("    buffer_load_dword v61, v60, s[52:55], s48 offen sc1")
                E("    v_min_u32 v60, 87, v0")
                E("    v_lshlrev_b32 v60, 7, v60")
                E("    s_add_u32 s48, s48, 256*128")
                E("    buffer_load_dword v61, v60, s[52:55], s48 offen sc1")

    E("    s_cmp_eq_u32 s32, 0")
    E("    s_cbranch_scc0 conv_l1")
    conv_loop([("X", d) for d in range(0, 24, 2)], 4)
    E("    s_branch conv_le")
    E("conv_l1:")
    conv_loop([("X", d) for d in range(24, 32, 2)] + [("Y", d) for d in range(32, 64, 4)], 4)
    E("    s_nop 15")
    E("    s_nop 3")
    for j in range(16):
        E(f"    v_add_f32 v{ACC+16+j}, v{ACC+16+j}, v{ACC+32+j}")
    E("conv_le:")
    stamp(3)
    E("    s_barrier")
    stamp(4)
    E("    v_lshlrev_b32 v13, 4, v1")
    E("    v_add_u32 v13, s35, v13")
    E("    s_lshl_b32 s36, s32, 12")
    E("    v_add_u32 v14, s36, v13")
    E("    s_xor_b32 s36, s36, 4096")
    E("    v_add_u32 v13, s36, v13")
    E("    s_nop 7")
    E("    s_cmp_eq_u32 s32, 0")
    E("    s_cbranch_scc1 conv_hw0")
    for jq in range(4):
        E(f"    ds_write_b128 v13, v[{ACC+4*jq}:{ACC+4*jq+3}] offset:{1024*jq}")
    for j in range(16):
        E(f"    v_mov_b32 v{64+j}, v{ACC+16+j}")
    E("    s_branch conv_x")
    E("conv_hw0:")
    for jq in range(4):
        E(f"    ds_write_b128 v13, v[{ACC+16+4*jq}:{ACC+16+4*jq+3}] offset:{1024*jq}")
    for j in range(16):
        E(f"    v_mov_b32 v{64+j}, v{ACC+j}")
    E("conv_x:")
    E("    s_waitcnt lgkmcnt(0)")
    E("    s_barrier")
    for jq in range(4):
        E(f"    ds_read_b128 v[{80+4*jq}:{80+4*jq+3}], v14 offset:{1024*jq}")
    E("    v_sub_u32 v5, 63, v3")
    E(f"    v_mul_u32_u24 v5, {KVP}, v5")
    E("    v_lshlrev_b32 v6, 3, v4")
    E("    v_sub_u32 v5, v5, v6")
    E(f"    s_mul_i32 s36, s32, {32*KVP}")
    E(f"    s_sub_u32 s36, {KV_OFF + 8}, s36")
    E("    s_add_u32 s36, s36, s35")
    E("    v_add_u32 v5, s36, v5")
    for jq in range(4):
        E(f"    ds_read_b64 v[{96+2*jq}:{96+2*jq+1}], v5 offset:{16*(3-jq)}")
    E("    v_lshlrev_b32 v6, 6, v3")
    E("    v_lshl_add_u32 v6, v4, 3, v6")
    E("    s_lshl_b32 s36, s32, 11")
    E("    v_add_u32 v6, s36, v6")
    E("    s_waitcnt vmcnt(0)")
    E("    v_lshlrev_b32 v9, 16, v9")
    E("    s_waitcnt lgkmcnt(0)")
    for j in range(16):
        E(f"    v_add_f32 v{64+j}, v{64+j}, v{80+j}")
    for jq in range(4):
        k0, k1, k2, k3 = 104, 105, 106, 107
        E(f"    v_and_b32 v{k0}, s40, v{97+2*jq}")
        E(f"    v_lshlrev_b32 v{k1}, 16, v{97+2*jq}")
        E(f"    v_and_b32 v{k2}, s40, v{96+2*jq}")
        E(f"    v_lshlrev_b32 v{k3}, 16, v{96+2*jq}")
        for kk in (k0, k1, k2, k3):
            E(f"    v_mul_f32 v{kk}, v{kk}, v9")
        round_pair(k0, k1, 108, 40)
        round_pair(k2, k3, 108, 40)
        y = 64 + 4 * jq
        round_pair(y, y + 1, 108, 40)
        round_pair(y + 2, y + 3, 108, 40)
        for e_, kk in enumerate((k0, k1, k2, k3)):
            E(f"    v_add_f32 v{y+e_}, v{y+e_}, v{kk}")
        E(f"    v_cvt_pk_bf16_f32 v{110+2*jq}, v{y}, v{y+1}")
        E(f"    v_cvt_pk_bf16_f32 v{111+2*jq}, v{y+2}, v{y+3}")
        E(f"    buffer_store_dwordx2 v[{110+2*jq}:{111+2*jq}], v6, s[24:27], 0 offen offset:{16*jq}")
    E("    s_waitcnt vmcnt(0)")
    stamp(5)
    stamp(31, real=True)
    E("main_done:")
    E("    s_endpgm")


NSLOT = 4
SLOT = 32768
FIN_YOFF = NSLOT * SLOT
FIN_XOFF = FIN_YOFF + 8192
FIN_NOFF = FIN_XOFF + 8192
FIN_LDS = FIN_NOFF + 8192


def gen_fin():
    kernel_begin("fin_kernel")
    vm = VM()
    E("    s_cmp_ge_u32 s2, 256")
    E("    s_cbranch_scc1 fin_done")
    E("    s_load_dwordx2 s[4:5], s[0:1], 0")
    E("    s_load_dwordx4 s[8:11], s[0:1], 72")
    E("    s_load_dwordx2 s[12:13], s[0:1], 96")
    E("    s_mov_b32 s40, 0xffff0000")
    E("    v_and_b32 v1, 63, v0")
    E("    v_lshrrev_b32 v2, 6, v0")
    E("    s_nop 0")
    E("    v_readfirstlane_b32 s3, v2")
    E("    s_waitcnt lgkmcnt(0)")
    stamp_init(2, 12, 13)
    stamp(30, vm, real=True)
    stamp(0, vm)
    E("    s_and_b32 s30, s2, 7")
    E("    s_bfe_u32 s31, s2, 0x20003")
    E("    s_lshl_b32 s31, s31, 3")
    E("    s_add_u32 s30, s30, s31")
    E("    s_lshr_b32 s31, s2, 5")
    E("    s_and_b32 s32, s3, 1")
    E("    s_lshr_b32 s33, s3, 1")
    srd(16, 8, 9, F * D * 2)
    srd_off(20, 12, 13, WS_H, H_BYTES)
    E("    v_lshrrev_b32 v3, 3, v1")
    E("    s_lshl_b32 s34, s3, 5")
    E("    v_add_u32 v3, s34, v3")
    E("    v_lshlrev_b32 v10, 10, v3")
    E("    v_and_b32 v4, 7, v1")
    E("    v_bfe_u32 v5, v1, 4, 1")
    E("    v_lshlrev_b32 v5, 2, v5")
    E("    v_xor_b32 v4, v4, v5")
    E("    v_lshl_add_u32 v10, v4, 4, v10")
    E("    s_lshl_b32 s34, s31, 7")
    E("    v_add_u32 v10, s34, v10")
    E("    s_lshl_b32 s37, s3, 12")
    E("    v_lshrrev_b32 v3, 4, v1")
    E("    s_lshl_b32 s34, s30, 6")
    E("    s_lshl_b32 s35, s3, 4")
    E("    s_add_u32 s34, s34, s35")
    E("    v_add_u32 v4, s34, v3")
    E(f"    s_movk_i32 s35, {HP}")
    E("    v_mul_lo_u32 v4, v4, s35")
    E("    v_and_b32 v5, 15, v1")
    E("    v_xor_b32 v5, v5, v3")
    E("    v_lshl_add_u32 v16, v5, 4, v4")
    E("    v_xor_b32 v6, 4, v5")
    E("    v_lshl_add_u32 v17, v6, 4, v4")
    E("    v_xor_b32 v6, 8, v5")
    E("    v_lshl_add_u32 v18, v6, 4, v4")
    E("    v_xor_b32 v6, 12, v5")
    E("    v_lshl_add_u32 v19, v6, 4, v4")
    nch = 11

    def dma_ops(c):
        slot = c % NSLOT
        ops = []
        for j in range(4):
            def f(j=j):
                E(f"    s_mov_b32 s38, {256*c + 4*j*HP}")
                E(f"    s_add_u32 m0, s37, {slot*SLOT + j*1024}")
                E("    s_nop 0")
                E(f"    buffer_load_dwordx4 v{16+j}, s[20:23], s38 offen lds")
                vm.issue(("dma", c))
            ops.append(f)
        for j in range(4):
            def f(j=j):
                E(f"    s_mov_b32 s38, {(128*c + 8*j)*1024}")
                E(f"    s_add_u32 m0, s37, {slot*SLOT + 16384 + j*1024}")
                E("    s_nop 0")
                E("    buffer_load_dwordx4 v10, s[16:19], s38 offen lds")
                vm.issue(("dma", c))
            ops.append(f)
        return ops

    def issue_dma(c):
        for f in dma_ops(c):
            f()

    issue_dma(0)
    E("    s_lshr_b32 s34, s2, 3")
    E("    s_and_b32 s35, s34, 3")
    E("    s_lshl_b32 s35, s35, 3")
    E("    s_and_b32 s36, s2, 7")
    E("    s_add_u32 s35, s35, s36")
    E(f"    s_mul_i32 s35, s35, {64*HP}")
    E("    s_lshr_b32 s36, s34, 2")
    E("    s_mul_i32 s36, s36, 176*128")
    E("    s_add_u32 s35, s35, s36")
    E("    v_min_u32 v4, 175, v0")
    E("    v_lshlrev_b32 v4, 7, v4")
    E("    buffer_load_dword v38, v4, s[20:23], s35 offen sc1")
    vm.issue("pf")
    issue_dma(1)
    late = []
    srd(24, 4, 5, S * D * 2)
    srd_off(44, 12, 13, WS_XN, S * D * 2)
    srd_off(48, 12, 13, WS_YT, S * D * 2)
    srd(52, 10, 11, S * D * 2)
    E("    s_lshl_b32 s34, s3, 4")
    E("    v_add_u32 v3, s34, v1")
    E("    v_lshlrev_b32 v4, 10, v3")
    E("    s_lshl_b32 s34, s30, 16")
    E("    s_lshl_b32 s35, s31, 7")
    E("    s_add_u32 s34, s34, s35")
    E("    v_lshrrev_b32 v5, 5, v3")
    E("    v_lshlrev_b32 v5, 13, v5")
    E("    v_and_b32 v6, 31, v3")
    E("    v_lshl_add_u32 v5, v6, 7, v5")
    E("    s_lshr_b32 s35, s30, 1")
    E("    s_lshl_b32 s35, s35, 17")
    E("    s_and_b32 s36, s30, 1")
    E("    s_lshl_b32 s36, s36, 12")
    E("    s_add_u32 s35, s35, s36")
    E("    s_lshl_b32 s36, s31, 14")
    E("    s_add_u32 s35, s35, s36")
    E("    v_lshlrev_b32 v6, 12, v3")
    E("    s_lshl_b32 s36, s31, 18")
    E("    s_lshl_b32 s38, s30, 7")
    E("    s_add_u32 s36, s36, s38")
    E("    s_mov_b64 exec, 0xffff")
    E("    buffer_load_dword v38, v4, s[24:27], s34 offen sc1")
    E("    buffer_load_dword v38, v5, s[44:47], s35 offen sc1")
    E("    buffer_load_dword v38, v6, s[48:51], s36 offen sc1")
    E("    s_mov_b64 exec, -1")
    for _ in range(3):
        vm.issue("pf")
    E("    v_lshrrev_b32 v3, 3, v1")
    E("    s_lshl_b32 s34, s31, 6")
    E("    s_lshl_b32 s35, s3, 4")
    E("    s_add_u32 s34, s34, s35")
    E("    v_add_u32 v3, s34, v3")
    E("    v_lshlrev_b32 v9, 12, v3")
    E("    v_and_b32 v4, 7, v1")
    E("    v_lshl_add_u32 v9, v4, 4, v9")
    E("    s_lshl_b32 s34, s30, 7")
    E("    v_add_u32 v9, s34, v9")
    E("    s_lshl_b32 s35, s3, 11")
    E("    s_mov_b32 s39, s35")
    for j in range(2):
        def f(j=j):
            E(f"    s_add_u32 m0, s39, {FIN_YOFF + 1024*j}")
            E(f"    s_mov_b32 s38, {8*4096*j}")
            E(f"    buffer_load_dwordx4 v9, s[48:51], s38 offen lds")
            vm.issue("y")
        late.append(f)
    E("    v_and_b32 v3, 31, v1")
    E("    s_lshl_b32 s35, s32, 5")
    E("    v_add_u32 v3, s35, v3")
    E("    s_lshl_b32 s34, s30, 6")
    E("    v_add_u32 v6, s34, v3")
    E("    v_lshrrev_b32 v4, 5, v1")
    E("    v_lshlrev_b32 v13, 10, v6")
    E("    v_lshl_add_u32 v13, v4, 3, v13")
    E("    s_lshl_b32 s34, s31, 7")
    E("    s_lshl_b32 s35, s33, 6")
    E("    s_add_u32 s34, s34, s35")
    E("    v_add_u32 v13, s34, v13")
    XR, NR = 96, 104
    E("    v_lshrrev_b32 v5, 3, v1")
    E("    v_and_b32 v7, 7, v1")
    E("    v_xor_b32 v7, v7, v5")
    E("    v_lshlrev_b32 v40, 10, v5")
    E("    v_lshl_add_u32 v40, v7, 4, v40")
    E("    s_lshl_b32 s34, s30, 2")
    E("    s_add_u32 s34, s34, s3")
    E("    s_lshl_b32 s34, s34, 14")
    E("    s_lshl_b32 s35, s31, 7")
    E("    s_add_u32 s42, s34, s35")
    for j in range(2):
        def f(j=j):
            E(f"    s_add_u32 m0, s39, {FIN_XOFF + 1024*j}")
            E(f"    s_add_u32 s38, s42, {8192*j}")
            E(f"    buffer_load_dwordx4 v40, s[24:27], s38 offen lds")
            vm.issue("x")
        late.append(f)
    E("    v_lshlrev_b32 v41, 4, v1")
    E("    s_lshr_b32 s34, s30, 1")
    E("    s_lshl_b32 s34, s34, 17")
    E("    s_lshl_b32 s35, s31, 1")
    E("    s_add_u32 s35, s35, s33")
    E("    s_lshl_b32 s35, s35, 13")
    E("    s_add_u32 s34, s34, s35")
    E("    s_and_b32 s35, s30, 1")
    E("    s_lshl_b32 s35, s35, 12")
    E("    s_add_u32 s34, s34, s35")
    E("    s_lshl_b32 s35, s32, 11")
    E("    s_add_u32 s41, s34, s35")
    for j in range(2):
        def f(j=j):
            E(f"    s_add_u32 m0, s39, {FIN_NOFF + 1024*j}")
            E(f"    s_add_u32 s38, s41, {1024*j}")
            E(f"    buffer_load_dwordx4 v41, s[44:47], s38 offen lds")
            vm.issue("x")
        late.append(f)
    E("    v_and_b32 v5, 7, v3")
    E("    s_lshl_b32 s35, s33, 2")
    E("    v_xor_b32 v5, s35, v5")
    E("    v_lshlrev_b32 v42, 7, v3")
    E("    v_lshl_add_u32 v42, v5, 4, v42")
    E("    v_lshl_add_u32 v42, v4, 3, v42")
    E(f"    v_add_u32 v42, {FIN_XOFF}, v42")
    E("    v_bfe_u32 v5, v3, 2, 2")
    E("    v_lshlrev_b32 v43, 6, v3")
    E("    v_lshl_add_u32 v43, v5, 4, v43")
    E("    v_lshl_add_u32 v43, v4, 3, v43")
    E("    s_lshl_b32 s35, s33, 12")
    E(f"    s_add_u32 s35, s35, {FIN_NOFF}")
    E("    v_add_u32 v43, s35, v43")
    E("    v_and_b32 v5, 15, v1")
    E("    v_lshrrev_b32 v6, 2, v5")
    E("    v_lshl_add_u32 v6, v4, 3, v6")
    E("    v_lshlrev_b32 v11, 7, v6")
    E("    v_bfe_u32 v6, v1, 4, 1")
    E("    v_lshlrev_b32 v6, 5, v6")
    E("    v_and_b32 v7, 3, v5")
    E("    v_lshl_add_u32 v6, v7, 3, v6")
    E("    s_lshl_b32 s35, s33, 6")
    E("    v_add_u32 v6, s35, v6")
    E("    v_bfe_u32 v7, v1, 3, 1")
    E("    v_lshlrev_b32 v7, 6, v7")
    E("    v_xor_b32 v6, v6, v7")
    E("    v_add_u32 v11, v11, v6")
    E("    v_add_u32 v11, 16384, v11")
    E(f"    v_add_u32 v12, {2*SLOT}, v11")
    E("    v_and_b32 v6, 15, v3")
    E("    v_xor_b32 v6, v6, v4")
    E("    v_lshlrev_b32 v6, 4, v6")
    E("    v_lshl_add_u32 v20, v3, 8, v6")
    for ks in range(1, 8):
        E(f"    v_xor_b32 v{20+ks}, {32*ks}, v20")
    for ks in range(8):
        E(f"    v_add_u32 v{28+ks}, {2*SLOT}, v{20+ks}")
    ACC = 64
    FR = 112

    def fr_ops(setidx, slot, ks):
        r = FR + 64 * setidx + 8 * ks
        so = (slot % 2) * SLOT
        wb = 11 if slot < 2 else 12
        hb = (20 if slot < 2 else 28) + ks
        return [lambda: E(f"    ds_read_b64_tr_b16 v[{r}:{r+1}], v{wb} offset:{so + ks*2048}"),
                lambda: E(f"    ds_read_b64_tr_b16 v[{r+2}:{r+3}], v{wb} offset:{so + ks*2048+512}"),
                lambda: E(f"    ds_read_b128 v[{r+4}:{r+7}], v{hb} offset:{so}")]

    def nk_of(c):
        return 8 if c < 10 else 6

    vm.wait(("dma", 0))
    E("    s_barrier")
    stamp(1, vm)
    for ks in range(8):
        for f in fr_ops(0, 0, ks):
            f()
    issue_dma(2)
    for c in range(nch):
        if c + 1 < nch:
            vm.wait(("dma", c + 1))
        E("    s_waitcnt lgkmcnt(0)")
        rd = []
        dm = []
        if c + 1 < nch:
            E("    s_barrier")
            stamp(2 + c, vm)
            for ks in range(nk_of(c + 1)):
                rd += fr_ops((c + 1) % 2, (c + 1) % NSLOT, ks)
        if c + 3 < nch:
            dm = dma_ops(c + 3)
        if c == 6:
            dm = late + dm
        for ks in range(nk_of(c)):
            r = FR + 64 * (c % 2) + 8 * ks
            cc = "0" if (c == 0 and ks == 0) else f"v[{ACC}:{ACC+15}]"
            E(f"    v_mfma_f32_32x32x16_bf16 v[{ACC}:{ACC+15}], v[{r}:{r+3}], v[{r+4}:{r+7}], {cc}")
            last = ks + 1 == nk_of(c)
            for _ in range(len(rd) if last else 4):
                if rd:
                    rd.pop(0)()
            for _ in range(len(dm) if last else (2 if c == 6 else 1)):
                if dm:
                    dm.pop(0)()
    stamp(12, vm)
    E("    v_lshrrev_b32 v6, 2, v5")
    E("    v_lshl_add_u32 v6, v4, 2, v6")
    E("    s_lshl_b32 s35, s33, 5")
    E("    v_add_u32 v6, s35, v6")
    E("    v_lshlrev_b32 v14, 7, v6")
    E("    v_bfe_u32 v6, v1, 4, 1")
    E("    v_lshlrev_b32 v6, 5, v6")
    E("    v_and_b32 v7, 3, v5")
    E("    v_lshl_add_u32 v6, v7, 3, v6")
    E("    s_lshl_b32 s35, s32, 6")
    E("    v_add_u32 v6, s35, v6")
    E("    v_add_u32 v14, v14, v6")
    E(f"    v_add_u32 v14, {FIN_YOFF}, v14")
    YR = 24
    for jq in range(4):
        E(f"    ds_read_b64_tr_b16 v[{YR+2*jq}:{YR+2*jq+1}], v14 offset:{jq*1024}")
    for jq in range(4):
        E(f"    v_xor_b32 v44, {16*jq}, v42")
        E(f"    v_xor_b32 v45, {16*jq}, v43")
        E(f"    ds_read_b64 v[{XR+2*jq}:{XR+2*jq+1}], v44")
        E(f"    ds_read_b64 v[{NR+2*jq}:{NR+2*jq+1}], v45")
    vm.wait_all()
    E("    s_waitcnt lgkmcnt(0)")
    E("    s_nop 7")
    for jq in range(4):
        a = ACC + 4 * jq
        t = 36
        xs = [t, t + 1, t + 2, t + 3]
        ns = [t + 4, t + 5, t + 6, t + 7]
        ys = [t + 8, t + 9, t + 10, t + 11]
        for (dst, src) in ((xs, XR + 2 * jq), (ns, NR + 2 * jq), (ys, YR + 2 * jq)):
            E(f"    v_lshlrev_b32 v{dst[0]}, 16, v{src}")
            E(f"    v_and_b32 v{dst[1]}, s40, v{src}")
            E(f"    v_lshlrev_b32 v{dst[2]}, 16, v{src+1}")
            E(f"    v_and_b32 v{dst[3]}, s40, v{src+1}")
        for e_ in range(4):
            E(f"    v_mul_f32 v{ns[e_]}, v{ns[e_]}, v{ys[e_]}")
        round_pair(ns[0], ns[1], t + 12, 40)
        round_pair(ns[2], ns[3], t + 12, 40)
        for e_ in range(4):
            E(f"    v_add_f32 v{xs[e_]}, v{xs[e_]}, v{ns[e_]}")
        round_pair(xs[0], xs[1], t + 12, 40)
        round_pair(xs[2], xs[3], t + 12, 40)
        round_pair(a, a + 1, t + 12, 40)
        round_pair(a + 2, a + 3, t + 12, 40)
        for e_ in range(4):
            E(f"    v_add_f32 v{xs[e_]}, v{xs[e_]}, v{a+e_}")
        o = 52 + 2 * jq
        E(f"    v_cvt_pk_bf16_f32 v{o}, v{xs[0]}, v{xs[1]}")
        E(f"    v_cvt_pk_bf16_f32 v{o+1}, v{xs[2]}, v{xs[3]}")
        E(f"    buffer_store_dwordx2 v[{o}:{o+1}], v13, s[52:55], 0 offen offset:{16*jq}")
    if DIAG:
        E("    s_waitcnt vmcnt(0)")
    stamp(13)
    stamp(31, real=True)
    E("fin_done:")
    E("    s_endpgm")


def descriptor(name, vgpr, sgpr=96):
    E(f".amdhsa_kernel {name}")
    E(f"  .amdhsa_next_free_vgpr {vgpr}")
    E(f"  .amdhsa_next_free_sgpr {sgpr}")
    E(f"  .amdhsa_accum_offset {(vgpr + 3)//4*4}")
    E("  .amdhsa_group_segment_fixed_size 0")
    E("  .amdhsa_kernarg_size 104")
    E("  .amdhsa_user_sgpr_count 2")
    E("  .amdhsa_user_sgpr_kernarg_segment_ptr 1")
    E("  .amdhsa_system_sgpr_workgroup_id_x 1")
    E(".end_amdhsa_kernel")


def main():
    hdr = open("parallel_sum__ssm_conv_h3__glu_gated_bilinear__prompt.s.ref").read().splitlines()
    for l in hdr:
        if l.startswith("; Override") or l.startswith("; grid=") or l.startswith("; @launch"):
            continue
        if not l.startswith(";"):
            break
        E(l)
    E("; @launch kernel=prep_kernel grid=(512,1,1) block=(256,1,1) lds=0")
    E(f"; @launch kernel=main_kernel grid=(512,1,1) block=(256,1,1) lds={MAIN_LDS}")
    E(f"; @launch kernel=fin_kernel grid=(256,1,1) block=(256,1,1) lds={FIN_LDS}")
    E('.amdgcn_target "amdgcn-amd-amdhsa--gfx950"')
    E(".text")
    gen_prep()
    gen_main()
    gen_fin()
    E('.section .rodata,"a"')
    E(".p2align 6")
    descriptor("prep_kernel", 256 if DIAG else 116)
    E(".p2align 6")
    descriptor("main_kernel", 256 if DIAG else 240)
    E(".p2align 6")
    descriptor("fin_kernel", 256 if DIAG else 240)
    path = sys.argv[1] if len(sys.argv) > 1 else "parallel_sum__ssm_conv_h3__glu_gated_bilinear__prompt.s"
    open(path, "w").write("\n".join(out) + "\n")
    print("wrote", path, len(out), "lines; MAIN_LDS", MAIN_LDS, "FIN_LDS", FIN_LDS, "COPY_BASE", COPY_BASE, "KV_OFF", KV_OFF, "CH_BYTES", CH_BYTES)


main()
```

```python
import sys

S, D, F = 2048, 512, 1376
WS_XN = 0x000000
WS_KVR = 0x200000
WS_H = 0x400000
WS_YT = 0xA00000
WS_WT = 0xC00000
HP = 2816
H_BYTES = S * HP

out = []


def E(s=""):
    out.append(s)


class VM:
    def __init__(self):
        self.q = []

    def issue(self, tag):
        self.q.append(tag)

    def wait(self, tag):
        idx = -1
        for i, t in enumerate(self.q):
            if t == tag:
                idx = i
        if idx < 0:
            return
        n = len(self.q) - 1 - idx
        assert n <= 63, n
        E(f"    s_waitcnt vmcnt({n})")
        self.q = self.q[idx + 1:]

    def wait_all(self):
        E("    s_waitcnt vmcnt(0)")
        self.q = []


DIAG = len(sys.argv) > 2 and sys.argv[2] == "diag"
STAMP_WS = 0x2000000


def stamp_init(kidx, ws_lo, ws_hi):
    if not DIAG:
        return
    E(f"    s_add_u32 s56, s{ws_lo}, {STAMP_WS + kidx*1024*4*32*4}")
    E(f"    s_addc_u32 s57, s{ws_hi}, 0")
    E("    s_and_b32 s57, s57, 0xffff")
    E("    s_mov_b32 s58, 0x80000")
    E("    s_mov_b32 s59, 0x00020000")
    E("    s_lshl_b32 s60, s2, 2")
    E("    s_add_u32 s60, s60, s3")
    E("    s_lshl_b32 s60, s60, 7")
    E("    v_mov_b32 v254, s60")


def stamp(slot, vm=None, real=False):
    if not DIAG:
        return
    E("    s_waitcnt lgkmcnt(0)")
    E("    s_memrealtime s[62:63]" if real else "    s_memtime s[62:63]")
    E("    s_waitcnt lgkmcnt(0)")
    E("    v_mov_b32 v255, s62")
    E("    s_mov_b64 s[60:61], exec")
    E("    s_mov_b64 exec, 1")
    E(f"    buffer_store_dword v255, v254, s[56:59], 0 offen offset:{4*slot}")
    E("    s_mov_b64 exec, s[60:61]")
    if vm is not None:
        vm.issue("stamp")


def pstamp(slot, real=False):
    if not DIAG:
        return
    E("    s_waitcnt lgkmcnt(0)")
    E("    s_memrealtime s[72:73]" if real else "    s_memtime s[72:73]")
    E("    s_waitcnt lgkmcnt(0)")
    E("    v_mov_b32 v255, s72")
    E("    s_mov_b64 s[74:75], exec")
    E("    s_mov_b64 exec, 1")
    E(f"    buffer_store_dword v255, v254, s[68:71], 0 offen offset:{4*slot}")
    E("    s_mov_b64 exec, s[74:75]")


def srd(dst, lo, hi, nbytes):
    E(f"    s_mov_b32 s{dst}, s{lo}")
    E(f"    s_and_b32 s{dst+1}, s{hi}, 0xffff")
    E(f"    s_mov_b32 s{dst+2}, {nbytes}")
    E(f"    s_mov_b32 s{dst+3}, 0x00020000")


def srd_off(dst, lo, hi, off, nbytes):
    E(f"    s_add_u32 s{dst}, s{lo}, {off}")
    E(f"    s_addc_u32 s{dst+1}, s{hi}, 0")
    E(f"    s_and_b32 s{dst+1}, s{dst+1}, 0xffff")
    E(f"    s_mov_b32 s{dst+2}, {nbytes}")
    E(f"    s_mov_b32 s{dst+3}, 0x00020000")


def kernel_begin(name):
    E(f".globl {name}")
    E(".p2align 8")
    E(f".type {name},@function")
    E(f"{name}:")


def wave_reduce_add(v, t):
    E("    s_nop 1")
    E(f"    v_add_f32_dpp v{t}, v{v}, v{v} quad_perm:[1,0,3,2] row_mask:0xf bank_mask:0xf")
    E("    s_nop 1")
    E(f"    v_add_f32_dpp v{v}, v{t}, v{t} quad_perm:[2,3,0,1] row_mask:0xf bank_mask:0xf")
    E("    s_nop 1")
    E(f"    v_add_f32_dpp v{t}, v{v}, v{v} row_half_mirror row_mask:0xf bank_mask:0xf")
    E("    s_nop 1")
    E(f"    v_add_f32_dpp v{v}, v{t}, v{t} row_mirror row_mask:0xf bank_mask:0xf")
    E(f"    v_mov_b32 v{t}, v{v}")
    E("    s_nop 1")
    E(f"    v_permlane16_swap_b32 v{v}, v{t}")
    E("    s_nop 1")
    E(f"    v_add_f32 v{v}, v{v}, v{t}")
    E(f"    v_mov_b32 v{t}, v{v}")
    E("    s_nop 1")
    E(f"    v_permlane32_swap_b32 v{v}, v{t}")
    E("    s_nop 1")
    E(f"    v_add_f32 v{v}, v{v}, v{t}")


def round_pair(a, b, t, mask_sgpr):
    E(f"    v_cvt_pk_bf16_f32 v{t}, v{a}, v{b}")
    E(f"    v_lshlrev_b32 v{a}, 16, v{t}")
    E(f"    v_and_b32 v{b}, s{mask_sgpr}, v{t}")


def gen_prep():
    kernel_begin("prep_kernel")
    E("    s_cmp_ge_u32 s2, 512")
    E("    s_cbranch_scc1 prep_done")
    E("    s_load_dwordx2 s[4:5], s[0:1], 0")
    E("    s_load_dwordx4 s[8:11], s[0:1], 8")
    E("    s_load_dwordx2 s[12:13], s[0:1], 24")
    E("    s_load_dwordx2 s[14:15], s[0:1], 96")
    E("    s_load_dwordx4 s[44:47], s[0:1], 56")
    E("    s_load_dwordx2 s[48:49], s[0:1], 32")
    E("    s_mov_b32 s40, 0xffff0000")
    E("    s_waitcnt lgkmcnt(0)")
    if DIAG:
        E("    v_lshrrev_b32 v2, 6, v0")
        E("    s_nop 0")
        E("    v_readfirstlane_b32 s3, v2")
        E("    s_mov_b32 s64, s14")
        E("    s_mov_b32 s65, s15")
        E(f"    s_add_u32 s68, s64, {STAMP_WS}")
        E("    s_addc_u32 s69, s65, 0")
        E("    s_and_b32 s69, s69, 0xffff")
        E("    s_mov_b32 s70, 0x80000")
        E("    s_mov_b32 s71, 0x00020000")
        E("    s_lshl_b32 s66, s2, 2")
        E("    s_add_u32 s66, s66, s3")
        E("    s_lshl_b32 s66, s66, 7")
        E("    v_mov_b32 v254, s66")
    pstamp(30, True)
    pstamp(0)
    E("    s_cmp_lt_u32 s2, 256")
    E("    s_cbranch_scc1 prep_kv")
    srd(16, 4, 5, S * D * 2)
    srd_off(20, 14, 15, WS_XN, S * D * 2)
    E("    s_sub_u32 s33, s2, 256")
    E("    v_lshrrev_b32 v2, 6, v0")
    E("    v_and_b32 v3, 63, v0")
    E("    s_lshl_b32 s3, s33, 13")
    E("    v_lshlrev_b32 v1, 4, v3")
    E("    v_lshl_add_u32 v1, v2, 11, v1")
    E("    buffer_load_dwordx4 v[4:7], v1, s[16:19], s3 offen")
    E("    buffer_load_dwordx4 v[44:47], v1, s[16:19], s3 offen offset:1024")
    E("    s_lshr_b32 s50, s33, 3")
    E("    s_cmp_ge_u32 s50, 16")
    E("    s_cselect_b32 s52, s46, s44")
    E("    s_cselect_b32 s53, s47, s45")
    srd(56, 52, 53, D * F * 2)
    E("    s_and_b32 s52, s50, 15")
    E("    s_mul_i32 s52, s52, 32*2752")
    E("    v_lshrrev_b32 v112, 3, v0")
    E("    s_movk_i32 s53, 2752")
    E("    v_mul_lo_u32 v112, v112, s53")
    E("    v_and_b32 v113, 7, v0")
    E("    v_lshl_add_u32 v112, v113, 7, v112")
    E("    s_and_b32 s51, s2, 3")
    E("    s_mul_i32 s53, s51, 768")
    E("    s_cmp_eq_u32 s51, 3")
    E("    s_cselect_b32 s53, 2240, s53")
    E("    s_add_u32 s60, s52, s53")
    E("    buffer_load_dword v113, v112, s[56:59], s60 offen sc1")
    E("    s_lshr_b32 s30, s33, 4")
    E("    s_lshl_b32 s30, s30, 17")
    E("    s_and_b32 s31, s33, 15")
    E("    s_lshl_b32 s31, s31, 9")
    E("    s_add_u32 s30, s30, s31")
    E("    s_lshl_b32 s31, s33, 1")
    E("    v_lshrrev_b32 v16, 1, v2")
    E("    v_add_u32 v16, s31, v16")
    E("    v_and_b32 v16, 3, v16")
    E("    v_and_b32 v17, 3, v3")
    E("    v_xor_b32 v16, v16, v17")
    E("    v_lshlrev_b32 v2, 7, v2")
    E("    v_add_u32 v2, s30, v2")
    E("    v_lshrrev_b32 v17, 2, v3")
    E("    v_lshl_add_u32 v2, v17, 13, v2")
    E("    v_lshl_add_u32 v2, v16, 4, v2")
    E("    s_waitcnt vmcnt(1)")
    pstamp(1)

    def ln_body(o):
        global out
        saved = out
        out = []
        for i in range(4):
            E(f"    v_lshlrev_b32 v{o+8+2*i}, 16, v{o+4+i}")
            E(f"    v_and_b32 v{o+9+2*i}, s40, v{o+4+i}")
        E(f"    v_add_f32 v{o+16}, v{o+8}, v{o+9}")
        E(f"    v_add_f32 v{o+17}, v{o+10}, v{o+11}")
        E(f"    v_add_f32 v{o+18}, v{o+12}, v{o+13}")
        E(f"    v_add_f32 v{o+19}, v{o+14}, v{o+15}")
        E(f"    v_add_f32 v{o+16}, v{o+16}, v{o+17}")
        E(f"    v_add_f32 v{o+18}, v{o+18}, v{o+19}")
        E(f"    v_add_f32 v{o+16}, v{o+16}, v{o+18}")
        wave_reduce_add(o+16, o+17)
        E(f"    v_mul_f32 v{o+16}, 0x3b000000, v{o+16}")
        for i in range(8):
            E(f"    v_sub_f32 v{o+20+i}, v{o+8+i}, v{o+16}")
        E(f"    v_mul_f32 v{o+18}, v{o+20}, v{o+20}")
        E(f"    v_mul_f32 v{o+19}, v{o+21}, v{o+21}")
        for i in range(2, 8, 2):
            E(f"    v_fmac_f32 v{o+18}, v{o+20+i}, v{o+20+i}")
            E(f"    v_fmac_f32 v{o+19}, v{o+21+i}, v{o+21+i}")
        E(f"    v_add_f32 v{o+18}, v{o+18}, v{o+19}")
        wave_reduce_add(o+18, o+17)
        E(f"    v_mul_f32 v{o+18}, 0x3b000000, v{o+18}")
        round_pair(o+16, o+18, o+17, 40)
        E(f"    v_add_f32 v{o+18}, 0x3727c5ac, v{o+18}")
        E(f"    v_cvt_pk_bf16_f32 v{o+17}, v{o+18}, v{o+18}")
        E(f"    v_and_b32 v{o+18}, s40, v{o+17}")
        E(f"    v_sqrt_f32 v{o+19}, v{o+18}")
        E("    s_nop 0")
        E(f"    v_rcp_f32 v{o+28}, v{o+19}")
        E(f"    v_fma_f32 v{o+29}, -v{o+19}, v{o+19}, v{o+18}")
        E(f"    v_mul_f32 v{o+28}, 0.5, v{o+28}")
        E(f"    v_fma_f32 v{o+19}, v{o+29}, v{o+28}, v{o+19}")
        E(f"    v_cvt_pk_bf16_f32 v{o+17}, v{o+19}, v{o+19}")
        E(f"    v_and_b32 v{o+19}, s40, v{o+17}")
        E(f"    v_rcp_f32 v{o+28}, v{o+19}")
        for i in range(8):
            E(f"    v_sub_f32 v{o+20+i}, v{o+8+i}, v{o+16}")
        for i in range(0, 8, 2):
            round_pair(o+20 + i, o+21 + i, o+17, 40)
        for i in range(8):
            E(f"    v_mul_f32 v{o+8+i}, v{o+20+i}, v{o+28}")
        for i in range(8):
            E(f"    v_fma_f32 v{o+30+i}, -v{o+8+i}, v{o+19}, v{o+20+i}")
        for i in range(8):
            E(f"    v_fma_f32 v{o+8+i}, v{o+30+i}, v{o+28}, v{o+8+i}")
        for i in range(4):
            E(f"    v_cvt_pk_bf16_f32 v{o+4+i}, v{o+8+2*i}, v{o+9+2*i}")
        E(f"    buffer_store_dwordx4 v[{o+4}:{o+7}], v2, s[20:23], 0 offen offset:{64 if o else 0}")
        body = out
        out = saved
        return body

    ba, bb = ln_body(0), ln_body(40)
    for la, lb in zip(ba, bb):
        E(la)
        E(lb)
    pstamp(2)
    if DIAG:
        E("    s_waitcnt vmcnt(0)")
    pstamp(3)
    pstamp(31, True)
    E("    s_endpgm")
    E("prep_kv:")
    srd(16, 8, 9, S * D * 2)
    srd(20, 10, 11, S * D * 2)
    srd(24, 12, 13, D * 4 * 2)
    srd_off(28, 14, 15, WS_KVR, S * D * 2)
    srd(56, 48, 49, D * S * 2)
    E("    s_lshl_b32 s60, s2, 13")
    E("    v_and_b32 v112, 63, v0")
    E("    v_lshlrev_b32 v112, 7, v112")
    E("    s_mov_b32 s3, s2")
    E("    s_lshr_b32 s32, s3, 3")
    E("    s_and_b32 s33, s3, 7")
    E("    v_and_b32 v1, 31, v0")
    E("    v_lshrrev_b32 v2, 5, v0")
    E("    s_lshl_b32 s34, s32, 6")
    E("    v_lshlrev_b32 v2, 3, v2")
    E("    v_add_u32 v2, s34, v2")
    E("    s_lshl_b32 s35, s33, 5")
    E("    v_add_u32 v1, s35, v1")
    E("    v_lshlrev_b32 v3, 10, v2")
    E("    v_lshlrev_b32 v4, 2, v1")
    E("    v_add_u32 v3, v3, v4")
    E("    v_add_u32 v4, 4096, v3")
    E("    v_subrev_u32 v5, 3072, v3")
    E("    v_lshlrev_b32 v6, 4, v1")
    E("    buffer_load_dwordx4 v[8:11], v6, s[24:27], 0 offen")
    for j in range(3):
        E(f"    buffer_load_dword v{12+j}, v5, s[16:19], 0 offen offset:{1024*j}")
    for j in range(4):
        E(f"    buffer_load_dword v{15+j}, v3, s[16:19], 0 offen offset:{1024*j}")
    for j in range(4):
        E(f"    buffer_load_dword v{19+j}, v4, s[16:19], 0 offen offset:{1024*j}")
    for j in range(4):
        E(f"    buffer_load_dword v{24+j}, v3, s[20:23], 0 offen offset:{1024*j}")
    for j in range(4):
        E(f"    buffer_load_dword v{28+j}, v4, s[20:23], 0 offen offset:{1024*j}")
    E("    v_lshlrev_b32 v6, 13, v1")
    E("    v_sub_u32 v7, 2040, v2")
    E("    v_lshlrev_b32 v7, 1, v7")
    E("    v_add_u32 v6, v6, v7")
    E("    v_add_u32 v7, 4096, v6")
    E("    buffer_load_dword v113, v112, s[56:59], s60 offen sc1")
    E("    s_waitcnt vmcnt(1)")
    pstamp(1)
    for c in range(2):
        for d in range(2):
            E(f"    v_lshlrev_b32 v{32+4*c+2*d}, 16, v{8+2*c+d}")
            E(f"    v_and_b32 v{33+4*c+2*d}, s40, v{8+2*c+d}")
    for j in range(11):
        E(f"    v_lshlrev_b32 v{40+j}, 16, v{12+j}")
        E(f"    v_and_b32 v{52+j}, s40, v{12+j}")
    for j in range(8):
        E(f"    v_lshlrev_b32 v{64+j}, 16, v{24+j}")
        E(f"    v_and_b32 v{72+j}, s40, v{24+j}")
    for j in range(8):
        A0, A1, B0, B1, T = 96, 97, 98, 99, 100
        E(f"    v_mul_f32 v{A0}, v{40+j}, v35")
        E(f"    v_mul_f32 v{A1}, v{52+j}, v39")
        E(f"    v_mul_f32 v{B0}, v{41+j}, v34")
        E(f"    v_mul_f32 v{B1}, v{53+j}, v38")
        round_pair(A0, A1, T, 40)
        round_pair(B0, B1, T, 40)
        E(f"    v_add_f32 v{A0}, v{A0}, v{B0}")
        E(f"    v_add_f32 v{A1}, v{A1}, v{B1}")
        E(f"    v_mul_f32 v{B0}, v{42+j}, v33")
        E(f"    v_mul_f32 v{B1}, v{54+j}, v37")
        round_pair(A0, A1, T, 40)
        round_pair(B0, B1, T, 40)
        E(f"    v_add_f32 v{A0}, v{A0}, v{B0}")
        E(f"    v_add_f32 v{A1}, v{A1}, v{B1}")
        E(f"    v_mul_f32 v{B0}, v{43+j}, v32")
        E(f"    v_mul_f32 v{B1}, v{55+j}, v36")
        round_pair(A0, A1, T, 40)
        round_pair(B0, B1, T, 40)
        E(f"    v_add_f32 v{A0}, v{A0}, v{B0}")
        E(f"    v_add_f32 v{A1}, v{A1}, v{B1}")
        round_pair(A0, A1, T, 40)
        E(f"    v_mul_f32 v{80+j}, v{A0}, v{64+j}")
        E(f"    v_mul_f32 v{88+j}, v{A1}, v{72+j}")
    for c in range(2):
        for jj in range(4):
            E(f"    v_cvt_pk_bf16_f32 v{104+4*c+jj}, v{80+8*c+7-2*jj}, v{80+8*c+6-2*jj}")
    E("    buffer_store_dwordx4 v[104:107], v6, s[28:31], 0 offen")
    E("    buffer_store_dwordx4 v[108:111], v7, s[28:31], 0 offen")
    pstamp(2)
    if DIAG:
        E("    s_waitcnt vmcnt(0)")
    pstamp(3)
    pstamp(31, True)
    E("    s_endpgm")
    E("prep_done:")
    E("    s_endpgm")


COPY_BYTES = 4240
_order = [(1, 0), (0, 11), (2, 4), (5, 0), (4, 12), (3, 8), (6, 4), (7, 8)]
COPY_BASE = {}
_pos = 0
for _b, _beta in _order:
    while (_pos // 16) % 16 != _beta:
        _pos += 16
    COPY_BASE[_b] = _pos
    _pos += COPY_BYTES
KV_OFF = (_pos + 15) // 16 * 16
KVP = 80
CH_BYTES = (KV_OFF + 65 * KVP + 255) // 256 * 256
MAIN_LDS = max(2 * CH_BYTES, 81920)
assert MAIN_LDS <= 81920, MAIN_LDS


def gen_gemm1_path(nt):
    vm = VM()
    ACC = 128
    WF = 64
    XF = 112
    STG = 20480
    NB = 4
    nst = 16

    def dma_ops(st):
        buf = st % NB
        ops = []
        for j in range(2):
            def f(j=j):
                E(f"    s_add_u32 s38, s41, {st*8192 + j*1024}")
                E(f"    s_add_u32 m0, s41, {buf*STG + j*1024}")
                E("    s_nop 0")
                E(f"    buffer_load_dwordx4 v8, s[20:23], s38 offen lds")
                vm.issue(("dma", st))
            ops.append(f)
        for i in range(nt):
            def f(i=i):
                E(f"    s_add_u32 s38, s48, {st*32*2752}")
                E(f"    s_add_u32 m0, s43, {buf*STG + 8192 + i*1024}")
                E("    s_nop 0")
                E(f"    buffer_load_dwordx4 v{16+i}, s[52:55], s38 offen lds")
                vm.issue(("dma", st))
            ops.append(f)
        return ops

    P = 64 * nt
    LPR = 4 * nt
    E("    s_lshr_b32 s49, s3, 1")
    E("    s_cmp_eq_u32 s49, 1")
    E("    s_cselect_b32 s52, s44, s16")
    E("    s_cselect_b32 s53, s45, s17")
    E("    s_mov_b32 s54, s18")
    E("    s_mov_b32 s55, s19")
    E("    s_and_b32 s49, s3, 1")
    E("    s_mul_i32 s48, s49, 16*2752")
    E("    s_add_u32 s48, s48, s36")
    E(f"    s_mul_i32 s43, s3, {16*P}")
    E("    s_movk_i32 s49, 2752")
    for i in range(nt):
        E(f"    v_add_u32 v14, {64*i}, v1")
        if nt == 3:
            E("    v_mul_u32_u24 v15, 0x5556, v14")
            E("    v_lshrrev_b32 v15, 18, v15")
            E("    v_mul_u32_u24 v20, 12, v15")
        else:
            E("    v_lshrrev_b32 v15, 3, v14")
            E("    v_lshlrev_b32 v20, 3, v15")
        E("    v_sub_u32 v14, v14, v20")
        E("    v_mul_lo_u32 v15, v15, s49")
        E(f"    v_lshl_add_u32 v{16+i}, v14, 4, v15")
    E("    v_and_b32 v14, 15, v1")
    E("    v_lshrrev_b32 v15, 2, v14")
    E("    v_lshl_add_u32 v15, v13, 3, v15")
    E(f"    v_mul_u32_u24 v11, {P}, v15")
    E("    v_bfe_u32 v15, v1, 4, 1")
    E("    v_lshl_add_u32 v11, v15, 5, v11")
    E("    v_and_b32 v15, 3, v14")
    E("    v_lshl_add_u32 v11, v15, 3, v11")
    E("    v_add_u32 v15, 40960, v11")

    def fr_ops(setidx, buf, ks):
        ops = []
        x = XF + 4 * setidx
        ops.append(lambda: E(f"    ds_read_b128 v[{x}:{x+3}], v{4+ks} offset:{buf*STG}"))
        for mt in range(2 * nt):
            r = WF + 24 * setidx + 4 * mt
            base = (buf % 2) * STG + 8192 + (mt // nt) * 32 * P + ks * 16 * P + (mt % nt) * 64
            vb = 11 if buf < 2 else 15
            ops.append(lambda r=r, vb=vb, base=base: E(f"    ds_read_b64_tr_b16 v[{r}:{r+1}], v{vb} offset:{base}"))
            ops.append(lambda r=r, vb=vb, base=base: E(f"    ds_read_b64_tr_b16 v[{r+2}:{r+3}], v{vb} offset:{base+4*P}"))
        return ops

    def mfma_group(setidx, first, reads, dmas):
        x = XF + 4 * setidx
        reads = list(reads)
        dmas = list(dmas)
        n = 2 * nt
        rg = n // 2
        per = (len(reads) + rg - 1) // rg
        for mt in range(n):
            w = WF + 24 * setidx + 4 * mt
            a = ACC + 16 * mt
            c = "0" if first else f"v[{a}:{a+15}]"
            E(f"    v_mfma_f32_32x32x16_bf16 v[{a}:{a+15}], v[{w}:{w+3}], v[{x}:{x+3}], {c}")
            if mt < rg:
                for _ in range(per):
                    if reads:
                        reads.pop(0)()
            else:
                k = 1 if mt + 1 < n else len(dmas)
                for _ in range(k):
                    if dmas:
                        dmas.pop(0)()

    stamp(11, vm)
    for st in range(2):
        for f in dma_ops(st):
            f()
    E("    v_lshlrev_b32 v9, 7, v1")
    E("    buffer_load_dword v10, v9, s[20:23], s46 offen sc1")
    vm.issue("pf")
    stamp(12, vm)
    vm.wait(("dma", 0))
    stamp(13, vm)
    E("    s_barrier")
    stamp(1, vm)
    for f in fr_ops(0, 0, 0):
        f()
    for f in dma_ops(2):
        f()
    for st in range(nst):
        buf = st % NB
        dm = dma_ops(st + 3) if st + 3 < nst else []
        na = len(dm) // 2
        E("    s_waitcnt lgkmcnt(0)")
        mfma_group(0, st == 0, fr_ops(1, buf, 1), dm[:na])
        if st + 1 < nst:
            vm.wait(("dma", st + 1))
        E("    s_waitcnt lgkmcnt(0)")
        rd = []
        if st + 1 < nst:
            E("    s_barrier")
            if st % 2 == 1:
                stamp(2 + st // 2, vm)
            rd = fr_ops(0, (st + 1) % NB, 0)
        mfma_group(1, False, rd, dm[na:])
    stamp(10, vm)
    E("    s_nop 15")
    for tau in range(nt):
        G = ACC + 16 * tau
        U = ACC + 16 * (nt + tau)
        T = 14
        for j in range(0, 16, 2):
            round_pair(G + j, G + j + 1, T, 40)
            round_pair(U + j, U + j + 1, T, 40)
        for j in range(16):
            E(f"    v_mul_f32 v{G+j}, v{G+j}, v{U+j}")
        P = 16 + 8 * tau
        for j in range(8):
            E(f"    v_cvt_pk_bf16_f32 v{P+j}, v{G+2*j}, v{G+2*j+1}")
        E("    s_nop 1")
        for pair in range(2):
            q0 = P + 4 * pair
            E(f"    v_permlane32_swap_b32 v{q0}, v{q0+2}")
            E(f"    v_permlane32_swap_b32 v{q0+1}, v{q0+3}")
        for pair in range(2):
            q0 = P + 4 * pair
            E(f"    buffer_store_dwordx4 v[{q0}:{q0+3}], v12, s[24:27], s36 offen offset:{tau*64 + pair*32}")
    if DIAG:
        E("    s_waitcnt vmcnt(0)")
    stamp(14)
    stamp(31, real=True)
    E("    s_endpgm")


def gen_main():
    kernel_begin("main_kernel")
    E("    s_cmp_ge_u32 s2, 512")
    E("    s_cbranch_scc1 main_done")
    E("    s_load_dwordx4 s[4:7], s[0:1], 56")
    E("    s_load_dwordx4 s[8:11], s[0:1], 32")
    E("    s_load_dwordx2 s[12:13], s[0:1], 96")
    E("    s_load_dwordx2 s[64:65], s[0:1], 72")
    E("    s_load_dwordx2 s[66:67], s[0:1], 0")
    E("    s_mov_b32 s40, 0xffff0000")
    E("    v_and_b32 v1, 63, v0")
    E("    v_lshrrev_b32 v2, 6, v0")
    E("    s_nop 0")
    E("    v_readfirstlane_b32 s3, v2")
    E("    s_waitcnt lgkmcnt(0)")
    stamp_init(1, 12, 13)
    stamp(30, real=True)
    stamp(0)
    E("    s_cmp_lt_u32 s2, 256")
    E("    s_cbranch_scc1 main_conv")
    E("    s_setprio 1")
    E("    s_sub_u32 s42, s2, 256")
    E("    s_bfe_u32 s30, s42, 0x10002")
    E("    s_lshl_b32 s30, s30, 3")
    E("    s_lshr_b32 s31, s42, 5")
    E("    s_add_u32 s30, s30, s31")
    E("    s_and_b32 s31, s42, 3")
    E("    s_lshl_b32 s31, s31, 2")
    E("    s_bfe_u32 s43, s42, 0x20003")
    E("    s_add_u32 s31, s31, s43")
    srd(16, 4, 5, D * F * 2)
    srd(44, 6, 7, D * F * 2)
    E("    s_lshl_b32 s32, s30, 17")
    E(f"    s_add_u32 s32, s32, {WS_XN}")
    srd_off(20, 12, 13, "s32", 128 * 1024)
    srd_off(24, 12, 13, WS_H, H_BYTES)
    E("    v_and_b32 v3, 31, v1")
    E("    v_lshrrev_b32 v13, 5, v1")
    E("    s_lshl_b32 s33, s3, 5")
    E("    v_add_u32 v3, s33, v3")
    E("    s_lshl_b32 s32, s30, 7")
    E("    v_add_u32 v14, s32, v3")
    E(f"    s_movk_i32 s34, {HP}")
    E("    v_mul_lo_u32 v12, v14, s34")
    E("    v_lshl_add_u32 v12, v13, 4, v12")
    E("    v_bfe_u32 v14, v3, 2, 2")
    E("    v_xor_b32 v14, v14, v13")
    E("    v_lshlrev_b32 v14, 4, v14")
    E("    v_lshl_add_u32 v4, v3, 6, v14")
    E("    v_xor_b32 v5, 32, v4")
    E("    v_lshlrev_b32 v8, 4, v1")
    E("    s_lshl_b32 s46, s3, 2")
    E("    s_add_u32 s46, s46, s43")
    E("    s_lshl_b32 s46, s46, 13")
    E("    s_lshr_b32 s47, s42, 5")
    E("    s_lshl_b32 s41, s3, 11")
    E("    s_cmp_lt_u32 s31, 11")
    E("    s_cbranch_scc0 main_g2")
    E("    s_mul_i32 s36, s31, 192")
    gen_gemm1_path(3)
    E("main_g2:")
    E("    s_lshl_b32 s36, s31, 7")
    E("    s_add_u32 s36, s36, 704")
    gen_gemm1_path(2)

    E("main_conv:")
    vm = VM()
    E("    s_setprio 2")
    E("    s_lshl_b32 s30, s2, 1")
    E("    s_lshr_b32 s31, s3, 1")
    E("    s_add_u32 s30, s30, s31")
    E("    s_and_b32 s32, s3, 1")
    E("    s_lshl_b32 s33, s30, 12")
    srd_off(16, 8, 9, "s33", 4096)
    E("    s_add_u32 s34, s33, %d" % WS_KVR)
    srd_off(20, 12, 13, "s34", 4096)
    E("    s_add_u32 s34, s33, %d" % WS_YT)
    srd_off(24, 12, 13, "s34", 4096)
    srd(44, 10, 11, D * 2)
    E(f"    s_mul_i32 s35, s31, {CH_BYTES}")
    E("    s_lshl_b32 s36, s32, 6")
    E("    v_add_u32 v3, s36, v1")
    E("    v_lshlrev_b32 v4, 5, v3")
    E("    v_subrev_u32 v4, 16, v4")
    E("    buffer_load_dwordx4 v[16:19], v4, s[16:19], 0 offen")
    E("    v_lshlrev_b32 v5, 5, v3")
    E("    buffer_load_dwordx4 v[20:23], v5, s[16:19], 0 offen")
    E("    buffer_load_dwordx4 v[24:27], v5, s[16:19], 0 offen offset:16")
    E("    v_lshlrev_b32 v6, 4, v3")
    E("    buffer_load_dwordx4 v[28:31], v6, s[20:23], 0 offen")
    E("    buffer_load_dwordx4 v[32:35], v6, s[20:23], 0 offen offset:2048")
    E("    s_lshl_b32 s36, s30, 1")
    E("    v_mov_b32 v7, s36")
    E("    buffer_load_ushort v9, v7, s[44:47], 0 offen")
    E("    v_mov_b32 v36, 0")
    E("    v_mov_b32 v37, 0")
    E("    v_mov_b32 v38, 0")
    E("    v_mov_b32 v39, 0")
    E("    v_lshlrev_b32 v7, 4, v1")
    E("    v_add_u32 v7, s35, v7")
    E("    s_mov_b64 exec, 0x7f")
    for b in range(8):
        E(f"    ds_write_b128 v7, v[36:39] offset:{COPY_BASE[b]}")
    E("    s_mov_b64 exec, 0xf")
    E(f"    ds_write_b128 v7, v[36:39] offset:{KV_OFF + 64*KVP}")
    E("    s_mov_b64 exec, -1")
    E("    v_lshlrev_b32 v7, 5, v3")
    E("    v_add_u32 v7, s35, v7")
    E("    v_lshrrev_b32 v8, 2, v3")
    E(f"    v_mul_u32_u24 v8, {KVP}, v8")
    E("    v_and_b32 v10, 3, v3")
    E("    v_lshl_add_u32 v8, v10, 4, v8")
    E("    v_add_u32 v8, s35, v8")
    E("    v_and_b32 v3, 31, v1")
    E("    v_lshrrev_b32 v4, 5, v1")
    E("    v_add_u32 v5, 1, v3")
    E("    v_and_b32 v6, 7, v5")
    E("    v_lshrrev_b32 v5, 3, v5")
    E("    v_sub_u32 v5, v5, v4")
    E("    v_add_u32 v5, 1, v5")
    E("    v_lshlrev_b32 v5, 4, v5")
    E("    v_mov_b32 v10, 0")
    for b in range(8):
        E(f"    v_cmp_eq_u32 vcc, {b}, v6")
        E(f"    v_mov_b32 v11, {COPY_BASE[b]}")
        E("    s_nop 0")
        E("    v_cndmask_b32 v10, v10, v11, vcc")
    E("    v_add_u32 v10, v10, v5")
    E("    v_add_u32 v10, s35, v10")
    E("    v_sub_u32 v5, 63, v3")
    E(f"    v_mul_u32_u24 v5, {KVP}, v5")
    E("    v_lshlrev_b32 v6, 4, v4")
    E("    v_sub_u32 v5, v5, v6")
    E(f"    s_add_u32 s36, s35, {KV_OFF + 16}")
    E("    v_add_u32 v11, s36, v5")
    E(f"    v_subrev_u32 v15, {32*KVP}, v11")
    E(f"    s_add_u32 s36, s36, {KVP*64}")
    E("    v_sub_u32 v12, s36, v6")
    E("    s_waitcnt vmcnt(3)")
    for u in range(2):
        e = 16 + 4 * u
        for b in range(8):
            off = COPY_BASE[b] + 112 + 16 * u
            if b % 2 == 0 and (b // 2) % 2 == 0:
                r = e + b // 2
                E(f"    ds_write_b128 v7, v[{r}:{r+3}] offset:{off}")
            else:
                t = 40 + 4 * ((u * 8 + b) % 4)
                for d in range(4):
                    if b % 2 == 0:
                        E(f"    v_mov_b32 v{t+d}, v{e + b//2 + d}")
                    else:
                        be = (b - 1) // 2
                        E(f"    v_alignbyte_b32 v{t+d}, v{e+be+d+1}, v{e+be+d}, 2")
                E(f"    ds_write_b128 v7, v[{t}:{t+3}] offset:{off}")
    E(f"    ds_write_b128 v7, v[24:27] offset:{COPY_BASE[0] + 112 + 32}")
    E("    s_waitcnt vmcnt(1)")
    E(f"    ds_write_b128 v8, v[28:31] offset:{KV_OFF}")
    E(f"    ds_write_b128 v8, v[32:35] offset:{KV_OFF + 32*KVP}")
    E("    s_waitcnt lgkmcnt(0)")
    stamp(1)
    E("    s_barrier")
    E("    s_setprio 0")
    stamp(2)
    FR = 64
    ACC = 192

    def fr(setidx, slot):
        return FR + 64 * setidx + 4 * slot

    def op_A(setidx, slot, t):
        r = fr(setidx, slot)
        return lambda: E(f"    ds_read_b128 v[{r}:{r+3}], v10 offset:{32*(t+3)}")

    def ops_B(setidx, slot, d, c):
        def f():
            E(f"    v_add_u32 v13, {KVP*d}, v{11 if c == 0 else 15}")
            E("    v_min_u32 v13, v13, v12")
            for q in range(2):
                r = fr(setidx, slot + q)
                E(f"    ds_read_b128 v[{r}:{r+3}], v13 offset:{32*(1-q)}")
        return f

    def loads(it, setidx):
        kind, d0 = it
        ops = []
        if kind == "X":
            for e_ in range(2):
                for q in range(2):
                    ops.append(op_A(setidx, 2 * e_ + q, 2 * (d0 + e_) - q))
                for c in range(2):
                    ops.append(ops_B(setidx, 4 + 4 * e_ + 2 * c, d0 + e_, c))
        else:
            for e_ in range(4):
                for q in range(2):
                    ops.append(op_A(setidx, 2 * e_ + q, 2 * (d0 + e_) - q))
                ops.append(ops_B(setidx, 8 + 2 * e_, d0 + e_, 1))
        return ops

    def mfmas(it, setidx):
        kind, d0 = it
        lst = []
        if kind == "X":
            for e_ in range(2):
                for q in range(2):
                    for c in range(2):
                        lst.append((c, fr(setidx, 2 * e_ + q), fr(setidx, 4 + 4 * e_ + 2 * c + q)))
        else:
            for e_ in range(4):
                for q in range(2):
                    lst.append((1 + q, fr(setidx, 2 * e_ + q), fr(setidx, 8 + 2 * e_ + q)))
        return lst

    def conv_loop(its, pf_at):
        started = set()
        for f in loads(its[0], 0):
            f()
        for n, it in enumerate(its):
            E("    s_waitcnt lgkmcnt(0)")
            nxt = loads(its[n + 1], (n + 1) % 2) if n + 1 < len(its) else []
            per = (len(nxt) + 4) // 5
            ms = mfmas(it, n % 2)
            for k, (acc, a, b) in enumerate(ms):
                A = ACC + 16 * acc
                c = f"v[{A}:{A+15}]" if acc in started else "0"
                started.add(acc)
                E(f"    v_mfma_f32_32x32x16_bf16 v[{A}:{A+15}], v[{a}:{a+3}], v[{b}:{b+3}], {c}")
                for _ in range(per if k + 1 < len(ms) else len(nxt)):
                    if nxt:
                        nxt.pop(0)()
            if n == pf_at:
                srd(52, 64, 65, F * D * 2)
                E("    s_lshr_b32 s48, s2, 3")
                E("    s_mul_i32 s48, s48, 344*128")
                E("    v_lshlrev_b32 v60, 7, v0")
                E("    buffer_load_dword v61, v60, s[52:55], s48 offen sc1")
                E("    v_min_u32 v60, 87, v0")
                E("    v_lshlrev_b32 v60, 7, v60")
                E("    s_add_u32 s48, s48, 256*128")
                E("    buffer_load_dword v61, v60, s[52:55], s48 offen sc1")
                srd(52, 66, 67, S * D * 2)
                srd_off(68, 12, 13, WS_XN, S * D * 2)
                E("    s_lshr_b32 s48, s2, 3")
                E("    s_and_b32 s49, s48, 3")
                E("    s_lshl_b32 s49, s49, 3")
                E("    s_and_b32 s50, s2, 7")
                E("    s_add_u32 s49, s49, s50")
                E("    s_lshr_b32 s48, s48, 2")
                E("    s_lshl_b32 s50, s3, 4")
                E("    v_add_u32 v62, s50, v1")
                E("    v_lshrrev_b32 v60, 3, v62")
                E("    v_lshlrev_b32 v60, 10, v60")
                E("    v_and_b32 v63, 7, v62")
                E("    v_lshl_add_u32 v60, v63, 7, v60")
                E("    s_lshl_b32 s50, s49, 16")
                E("    s_lshl_b32 s51, s48, 13")
                E("    s_add_u32 s50, s50, s51")
                E("    v_lshrrev_b32 v63, 5, v62")
                E("    v_lshlrev_b32 v63, 13, v63")
                E("    v_and_b32 v62, 31, v62")
                E("    v_lshl_add_u32 v62, v62, 7, v63")
                E("    s_lshr_b32 s51, s49, 1")
                E("    s_lshl_b32 s51, s51, 17")
                E("    s_and_b32 s49, s49, 1")
                E("    s_lshl_b32 s49, s49, 12")
                E("    s_add_u32 s51, s51, s49")
                E("    s_lshl_b32 s48, s48, 14")
                E("    s_add_u32 s51, s51, s48")
                E("    s_mov_b64 exec, 0xffff")
                E("    buffer_load_dword v61, v60, s[52:55], s50 offen sc1")
                E("    buffer_load_dword v61, v62, s[68:71], s51 offen sc1")
                E("    s_mov_b64 exec, -1")

    E("    s_cmp_eq_u32 s32, 0")
    E("    s_cbranch_scc0 conv_l1")
    conv_loop([("X", d) for d in range(0, 24, 2)], 4)
    E("    s_branch conv_le")
    E("conv_l1:")
    conv_loop([("X", d) for d in range(24, 32, 2)] + [("Y", d) for d in range(32, 64, 4)], 4)
    E("    s_nop 15")
    E("    s_nop 3")
    for j in range(16):
        E(f"    v_add_f32 v{ACC+16+j}, v{ACC+16+j}, v{ACC+32+j}")
    E("conv_le:")
    E("    s_setprio 2")
    stamp(3)
    E("    s_barrier")
    stamp(4)
    E("    v_lshlrev_b32 v13, 4, v1")
    E("    v_add_u32 v13, s35, v13")
    E("    s_lshl_b32 s36, s32, 12")
    E("    v_add_u32 v14, s36, v13")
    E("    s_xor_b32 s36, s36, 4096")
    E("    v_add_u32 v13, s36, v13")
    E("    s_nop 7")
    E("    s_cmp_eq_u32 s32, 0")
    E("    s_cbranch_scc1 conv_hw0")
    for jq in range(4):
        E(f"    ds_write_b128 v13, v[{ACC+4*jq}:{ACC+4*jq+3}] offset:{1024*jq}")
    for j in range(16):
        E(f"    v_mov_b32 v{64+j}, v{ACC+16+j}")
    E("    s_branch conv_x")
    E("conv_hw0:")
    for jq in range(4):
        E(f"    ds_write_b128 v13, v[{ACC+16+4*jq}:{ACC+16+4*jq+3}] offset:{1024*jq}")
    for j in range(16):
        E(f"    v_mov_b32 v{64+j}, v{ACC+j}")
    E("conv_x:")
    E("    s_waitcnt lgkmcnt(0)")
    E("    s_barrier")
    for jq in range(4):
        E(f"    ds_read_b128 v[{80+4*jq}:{80+4*jq+3}], v14 offset:{1024*jq}")
    E("    v_sub_u32 v5, 63, v3")
    E(f"    v_mul_u32_u24 v5, {KVP}, v5")
    E("    v_lshlrev_b32 v6, 3, v4")
    E("    v_sub_u32 v5, v5, v6")
    E(f"    s_mul_i32 s36, s32, {32*KVP}")
    E(f"    s_sub_u32 s36, {KV_OFF + 8}, s36")
    E("    s_add_u32 s36, s36, s35")
    E("    v_add_u32 v5, s36, v5")
    for jq in range(4):
        E(f"    ds_read_b64 v[{96+2*jq}:{96+2*jq+1}], v5 offset:{16*(3-jq)}")
    E("    v_lshlrev_b32 v6, 6, v3")
    E("    v_lshl_add_u32 v6, v4, 3, v6")
    E("    s_lshl_b32 s36, s32, 11")
    E("    v_add_u32 v6, s36, v6")
    E("    s_waitcnt vmcnt(0)")
    E("    v_lshlrev_b32 v9, 16, v9")
    E("    s_waitcnt lgkmcnt(0)")
    for j in range(16):
        E(f"    v_add_f32 v{64+j}, v{64+j}, v{80+j}")
    for jq in range(4):
        k0, k1, k2, k3 = 104, 105, 106, 107
        E(f"    v_and_b32 v{k0}, s40, v{97+2*jq}")
        E(f"    v_lshlrev_b32 v{k1}, 16, v{97+2*jq}")
        E(f"    v_and_b32 v{k2}, s40, v{96+2*jq}")
        E(f"    v_lshlrev_b32 v{k3}, 16, v{96+2*jq}")
        for kk in (k0, k1, k2, k3):
            E(f"    v_mul_f32 v{kk}, v{kk}, v9")
        round_pair(k0, k1, 108, 40)
        round_pair(k2, k3, 108, 40)
        y = 64 + 4 * jq
        round_pair(y, y + 1, 108, 40)
        round_pair(y + 2, y + 3, 108, 40)
        for e_, kk in enumerate((k0, k1, k2, k3)):
            E(f"    v_add_f32 v{y+e_}, v{y+e_}, v{kk}")
        E(f"    v_cvt_pk_bf16_f32 v{110+2*jq}, v{y}, v{y+1}")
        E(f"    v_cvt_pk_bf16_f32 v{111+2*jq}, v{y+2}, v{y+3}")
        E(f"    buffer_store_dwordx2 v[{110+2*jq}:{111+2*jq}], v6, s[24:27], 0 offen offset:{16*jq}")
    E("    s_waitcnt vmcnt(0)")
    stamp(5)
    stamp(31, real=True)
    E("main_done:")
    E("    s_endpgm")


NSLOT = 4
SLOT = 32768
FIN_YOFF = NSLOT * SLOT
FIN_XOFF = FIN_YOFF + 8192
FIN_NOFF = FIN_XOFF + 8192
FIN_LDS = FIN_NOFF + 8192


def gen_fin():
    kernel_begin("fin_kernel")
    vm = VM()
    E("    s_cmp_ge_u32 s2, 256")
    E("    s_cbranch_scc1 fin_done")
    E("    s_load_dwordx2 s[4:5], s[0:1], 0")
    E("    s_load_dwordx4 s[8:11], s[0:1], 72")
    E("    s_load_dwordx2 s[12:13], s[0:1], 96")
    E("    s_mov_b32 s40, 0xffff0000")
    E("    v_and_b32 v1, 63, v0")
    E("    v_lshrrev_b32 v2, 6, v0")
    E("    s_nop 0")
    E("    v_readfirstlane_b32 s3, v2")
    E("    s_waitcnt lgkmcnt(0)")
    stamp_init(2, 12, 13)
    stamp(30, vm, real=True)
    stamp(0, vm)
    E("    s_and_b32 s30, s2, 7")
    E("    s_bfe_u32 s31, s2, 0x20003")
    E("    s_lshl_b32 s31, s31, 3")
    E("    s_add_u32 s30, s30, s31")
    E("    s_lshr_b32 s31, s2, 5")
    E("    s_and_b32 s32, s3, 1")
    E("    s_lshr_b32 s33, s3, 1")
    srd(16, 8, 9, F * D * 2)
    srd_off(20, 12, 13, WS_H, H_BYTES)
    E("    v_lshrrev_b32 v3, 3, v1")
    E("    s_lshl_b32 s34, s3, 5")
    E("    v_add_u32 v3, s34, v3")
    E("    v_lshlrev_b32 v10, 10, v3")
    E("    v_and_b32 v4, 7, v1")
    E("    v_bfe_u32 v5, v1, 4, 1")
    E("    v_lshlrev_b32 v5, 2, v5")
    E("    v_xor_b32 v4, v4, v5")
    E("    v_lshl_add_u32 v10, v4, 4, v10")
    E("    s_lshl_b32 s34, s31, 7")
    E("    v_add_u32 v10, s34, v10")
    E("    s_lshl_b32 s37, s3, 12")
    E("    v_lshrrev_b32 v3, 4, v1")
    E("    s_lshl_b32 s34, s30, 6")
    E("    s_lshl_b32 s35, s3, 4")
    E("    s_add_u32 s34, s34, s35")
    E("    v_add_u32 v4, s34, v3")
    E(f"    s_movk_i32 s35, {HP}")
    E("    v_mul_lo_u32 v4, v4, s35")
    E("    v_and_b32 v5, 15, v1")
    E("    v_xor_b32 v5, v5, v3")
    E("    v_lshl_add_u32 v16, v5, 4, v4")
    E("    v_xor_b32 v6, 4, v5")
    E("    v_lshl_add_u32 v17, v6, 4, v4")
    E("    v_xor_b32 v6, 8, v5")
    E("    v_lshl_add_u32 v18, v6, 4, v4")
    E("    v_xor_b32 v6, 12, v5")
    E("    v_lshl_add_u32 v19, v6, 4, v4")
    nch = 11

    def dma_ops(c):
        slot = c % NSLOT
        ops = []
        for j in range(4):
            def f(j=j):
                E(f"    s_mov_b32 s38, {256*c + 4*j*HP}")
                E(f"    s_add_u32 m0, s37, {slot*SLOT + j*1024}")
                E("    s_nop 0")
                E(f"    buffer_load_dwordx4 v{16+j}, s[20:23], s38 offen lds")
                vm.issue(("dma", c))
            ops.append(f)
        for j in range(4):
            def f(j=j):
                E(f"    s_mov_b32 s38, {(128*c + 8*j)*1024}")
                E(f"    s_add_u32 m0, s37, {slot*SLOT + 16384 + j*1024}")
                E("    s_nop 0")
                E("    buffer_load_dwordx4 v10, s[16:19], s38 offen lds")
                vm.issue(("dma", c))
            ops.append(f)
        return ops

    def issue_dma(c):
        for f in dma_ops(c):
            f()

    def h_touch():
        E("    s_lshr_b32 s34, s2, 3")
        E("    s_and_b32 s35, s34, 3")
        E("    s_lshl_b32 s35, s35, 3")
        E("    s_and_b32 s36, s2, 7")
        E("    s_add_u32 s35, s35, s36")
        E(f"    s_mul_i32 s35, s35, {64*HP}")
        E("    s_lshr_b32 s36, s34, 2")
        E("    s_mul_i32 s36, s36, 176*128")
        E("    s_add_u32 s35, s35, s36")
        E("    v_min_u32 v46, 175, v0")
        E("    v_lshlrev_b32 v46, 7, v46")
        E("    buffer_load_dword v38, v46, s[20:23], s35 offen sc1")
        vm.issue("pf")

    h_touch()
    issue_dma(0)
    d1 = dma_ops(1)
    for f in d1[:4]:
        f()

    late = []
    srd(24, 4, 5, S * D * 2)
    srd_off(44, 12, 13, WS_XN, S * D * 2)
    srd_off(48, 12, 13, WS_YT, S * D * 2)
    srd(52, 10, 11, S * D * 2)
    E("    s_lshl_b32 s34, s3, 4")
    E("    v_add_u32 v3, s34, v1")
    E("    v_lshlrev_b32 v47, 10, v3")
    E("    s_lshl_b32 s34, s30, 16")
    E("    s_lshl_b32 s35, s31, 7")
    E("    s_add_u32 s64, s34, s35")
    E("    v_lshrrev_b32 v5, 5, v3")
    E("    v_lshlrev_b32 v5, 13, v5")
    E("    v_and_b32 v6, 31, v3")
    E("    v_lshl_add_u32 v48, v6, 7, v5")
    E("    s_lshr_b32 s35, s30, 1")
    E("    s_lshl_b32 s35, s35, 17")
    E("    s_and_b32 s36, s30, 1")
    E("    s_lshl_b32 s36, s36, 12")
    E("    s_add_u32 s35, s35, s36")
    E("    s_lshl_b32 s36, s31, 14")
    E("    s_add_u32 s65, s35, s36")
    E("    v_lshlrev_b32 v49, 12, v3")
    E("    s_lshl_b32 s36, s31, 18")
    E("    s_lshl_b32 s38, s30, 7")
    E("    s_add_u32 s66, s36, s38")

    def e_touch():
        E("    s_mov_b64 exec, 0xffff")
        E("    buffer_load_dword v38, v49, s[48:51], s66 offen sc1")
        E("    s_mov_b64 exec, -1")
        vm.issue("pf")
    e_touch()
    E("    v_lshrrev_b32 v3, 3, v1")
    E("    s_lshl_b32 s34, s31, 6")
    E("    s_lshl_b32 s35, s3, 4")
    E("    s_add_u32 s34, s34, s35")
    E("    v_add_u32 v3, s34, v3")
    E("    v_lshlrev_b32 v9, 12, v3")
    E("    v_and_b32 v4, 7, v1")
    E("    v_lshl_add_u32 v9, v4, 4, v9")
    E("    s_lshl_b32 s34, s30, 7")
    E("    v_add_u32 v9, s34, v9")
    E("    s_lshl_b32 s35, s3, 11")
    E("    s_mov_b32 s39, s35")
    for j in range(2):
        def f(j=j):
            E(f"    s_add_u32 m0, s39, {FIN_YOFF + 1024*j}")
            E(f"    s_mov_b32 s38, {8*4096*j}")
            E(f"    buffer_load_dwordx4 v9, s[48:51], s38 offen lds")
            vm.issue("y")
        late.append(f)
    E("    v_and_b32 v3, 31, v1")
    E("    s_lshl_b32 s35, s32, 5")
    E("    v_add_u32 v3, s35, v3")
    E("    s_lshl_b32 s34, s30, 6")
    E("    v_add_u32 v6, s34, v3")
    E("    v_lshrrev_b32 v4, 5, v1")
    E("    v_lshlrev_b32 v13, 10, v6")
    E("    v_lshl_add_u32 v13, v4, 3, v13")
    E("    s_lshl_b32 s34, s31, 7")
    E("    s_lshl_b32 s35, s33, 6")
    E("    s_add_u32 s34, s34, s35")
    E("    v_add_u32 v13, s34, v13")
    XR, NR = 96, 104
    E("    v_lshrrev_b32 v5, 3, v1")
    E("    v_and_b32 v7, 7, v1")
    E("    v_xor_b32 v7, v7, v5")
    E("    v_lshlrev_b32 v40, 10, v5")
    E("    v_lshl_add_u32 v40, v7, 4, v40")
    E("    s_lshl_b32 s34, s30, 2")
    E("    s_add_u32 s34, s34, s3")
    E("    s_lshl_b32 s34, s34, 14")
    E("    s_lshl_b32 s35, s31, 7")
    E("    s_add_u32 s42, s34, s35")
    for j in range(2):
        def f(j=j):
            E(f"    s_add_u32 m0, s39, {FIN_XOFF + 1024*j}")
            E(f"    s_add_u32 s38, s42, {8192*j}")
            E(f"    buffer_load_dwordx4 v40, s[24:27], s38 offen lds")
            vm.issue("x")
        late.append(f)
    E("    v_lshlrev_b32 v41, 4, v1")
    E("    s_lshr_b32 s34, s30, 1")
    E("    s_lshl_b32 s34, s34, 17")
    E("    s_lshl_b32 s35, s31, 1")
    E("    s_add_u32 s35, s35, s33")
    E("    s_lshl_b32 s35, s35, 13")
    E("    s_add_u32 s34, s34, s35")
    E("    s_and_b32 s35, s30, 1")
    E("    s_lshl_b32 s35, s35, 12")
    E("    s_add_u32 s34, s34, s35")
    E("    s_lshl_b32 s35, s32, 11")
    E("    s_add_u32 s41, s34, s35")
    for j in range(2):
        def f(j=j):
            E(f"    s_add_u32 m0, s39, {FIN_NOFF + 1024*j}")
            E(f"    s_add_u32 s38, s41, {1024*j}")
            E(f"    buffer_load_dwordx4 v41, s[44:47], s38 offen lds")
            vm.issue("x")
        late.append(f)
    E("    v_and_b32 v5, 7, v3")
    E("    s_lshl_b32 s35, s33, 2")
    E("    v_xor_b32 v5, s35, v5")
    E("    v_lshlrev_b32 v42, 7, v3")
    E("    v_lshl_add_u32 v42, v5, 4, v42")
    E("    v_lshl_add_u32 v42, v4, 3, v42")
    E(f"    v_add_u32 v42, {FIN_XOFF}, v42")
    E("    v_bfe_u32 v5, v3, 2, 2")
    E("    v_lshlrev_b32 v43, 6, v3")
    E("    v_lshl_add_u32 v43, v5, 4, v43")
    E("    v_lshl_add_u32 v43, v4, 3, v43")
    E("    s_lshl_b32 s35, s33, 12")
    E(f"    s_add_u32 s35, s35, {FIN_NOFF}")
    E("    v_add_u32 v43, s35, v43")
    E("    v_and_b32 v5, 15, v1")
    E("    v_lshrrev_b32 v6, 2, v5")
    E("    v_lshl_add_u32 v6, v4, 3, v6")
    E("    v_lshlrev_b32 v11, 7, v6")
    E("    v_bfe_u32 v6, v1, 4, 1")
    E("    v_lshlrev_b32 v6, 5, v6")
    E("    v_and_b32 v7, 3, v5")
    E("    v_lshl_add_u32 v6, v7, 3, v6")
    E("    s_lshl_b32 s35, s33, 6")
    E("    v_add_u32 v6, s35, v6")
    E("    v_bfe_u32 v7, v1, 3, 1")
    E("    v_lshlrev_b32 v7, 6, v7")
    E("    v_xor_b32 v6, v6, v7")
    E("    v_add_u32 v11, v11, v6")
    E("    v_add_u32 v11, 16384, v11")
    E(f"    v_add_u32 v12, {2*SLOT}, v11")
    E("    v_and_b32 v6, 15, v3")
    E("    v_xor_b32 v6, v6, v4")
    E("    v_lshlrev_b32 v6, 4, v6")
    E("    v_lshl_add_u32 v20, v3, 8, v6")
    for ks in range(1, 8):
        E(f"    v_xor_b32 v{20+ks}, {32*ks}, v20")
    for ks in range(8):
        E(f"    v_add_u32 v{28+ks}, {2*SLOT}, v{20+ks}")
    ACC = 64
    FR = 112

    def fr_ops(setidx, slot, ks):
        r = FR + 64 * setidx + 8 * ks
        so = (slot % 2) * SLOT
        wb = 11 if slot < 2 else 12
        hb = (20 if slot < 2 else 28) + ks
        return [lambda: E(f"    ds_read_b64_tr_b16 v[{r}:{r+1}], v{wb} offset:{so + ks*2048}"),
                lambda: E(f"    ds_read_b64_tr_b16 v[{r+2}:{r+3}], v{wb} offset:{so + ks*2048+512}"),
                lambda: E(f"    ds_read_b128 v[{r+4}:{r+7}], v{hb} offset:{so}")]

    def nk_of(c):
        return 8 if c < 10 else 6

    E("    v_lshrrev_b32 v6, 2, v5")
    E("    v_lshl_add_u32 v6, v4, 2, v6")
    E("    s_lshl_b32 s35, s33, 5")
    E("    v_add_u32 v6, s35, v6")
    E("    v_lshlrev_b32 v14, 7, v6")
    E("    v_bfe_u32 v6, v1, 4, 1")
    E("    v_lshlrev_b32 v6, 5, v6")
    E("    v_and_b32 v7, 3, v5")
    E("    v_lshl_add_u32 v6, v7, 3, v6")
    E("    s_lshl_b32 s35, s32, 6")
    E("    v_add_u32 v6, s35, v6")
    E("    v_add_u32 v14, v14, v6")
    E(f"    v_add_u32 v14, {FIN_YOFF}, v14")
    YR = 50
    RS = 80

    def pre_reads():
        ops = []
        for jq in range(4):
            ops.append(lambda jq=jq: E(f"    ds_read_b64_tr_b16 v[{YR+2*jq}:{YR+2*jq+1}], v14 offset:{jq*1024}"))
        for jq in range(4):
            def f(jq=jq):
                E(f"    v_xor_b32 v44, {16*jq}, v42")
                E(f"    v_xor_b32 v45, {16*jq}, v43")
                E(f"    ds_read_b64 v[{XR+2*jq}:{XR+2*jq+1}], v44")
                E(f"    ds_read_b64 v[{NR+2*jq}:{NR+2*jq+1}], v45")
            ops.append(f)
        return ops

    def pre_valu():
        ops = []
        for jq in range(4):
            t = 36
            xs = [RS + 4 * jq + e_ for e_ in range(4)]
            ns = [t + 4, t + 5, t + 6, t + 7]
            ys = [t + 8, t + 9, t + 10, t + 11]

            def f1(jq=jq, xs=xs, ns=ns, ys=ys):
                for (dst, src) in ((xs, XR + 2 * jq), (ns, NR + 2 * jq), (ys, YR + 2 * jq)):
                    E(f"    v_lshlrev_b32 v{dst[0]}, 16, v{src}")
                    E(f"    v_and_b32 v{dst[1]}, s40, v{src}")
                    E(f"    v_lshlrev_b32 v{dst[2]}, 16, v{src+1}")
                    E(f"    v_and_b32 v{dst[3]}, s40, v{src+1}")
                for e_ in range(4):
                    E(f"    v_mul_f32 v{ns[e_]}, v{ns[e_]}, v{ys[e_]}")

            def f2(jq=jq, xs=xs, ns=ns, t=t):
                round_pair(ns[0], ns[1], t + 12, 40)
                round_pair(ns[2], ns[3], t + 12, 40)
                for e_ in range(4):
                    E(f"    v_add_f32 v{xs[e_]}, v{xs[e_]}, v{ns[e_]}")
                round_pair(xs[0], xs[1], t + 12, 40)
                round_pair(xs[2], xs[3], t + 12, 40)
            ops += [f1, f2]
        return ops

    vm.wait(("dma", 0))
    E("    s_barrier")
    stamp(1, vm)
    for ks in range(8):
        for f in fr_ops(0, 0, ks):
            f()
    for f in d1[4:]:
        f()
    issue_dma(2)
    for c in range(nch):
        if c + 1 < nch:
            vm.wait(("dma", c + 1))
        E("    s_waitcnt lgkmcnt(0)")
        rd = []
        dm = []
        if c + 1 < nch:
            E("    s_barrier")
            stamp(2 + c, vm)
            for ks in range(nk_of(c + 1)):
                rd += fr_ops((c + 1) % 2, (c + 1) % NSLOT, ks)
        if c + 3 < nch:
            dm = dma_ops(c + 3)
        if c == 6:
            dm = late + dm
        if c == 8:
            dm = pre_reads()
        if c == 9:
            dm = pre_valu()
        for ks in range(nk_of(c)):
            r = FR + 64 * (c % 2) + 8 * ks
            cc = "0" if (c == 0 and ks == 0) else f"v[{ACC}:{ACC+15}]"
            E(f"    v_mfma_f32_32x32x16_bf16 v[{ACC}:{ACC+15}], v[{r}:{r+3}], v[{r+4}:{r+7}], {cc}")
            last = ks + 1 == nk_of(c)
            for _ in range(len(rd) if last else 4):
                if rd:
                    rd.pop(0)()
            for _ in range(len(dm) if last else (2 if c == 6 else 1)):
                if dm:
                    dm.pop(0)()
    stamp(12, vm)
    E("    s_nop 15")
    E("    s_nop 3")
    for jq in range(4):
        a = ACC + 4 * jq
        xs = [RS + 4 * jq + e_ for e_ in range(4)]
        round_pair(a, a + 1, 48, 40)
        round_pair(a + 2, a + 3, 48, 40)
        for e_ in range(4):
            E(f"    v_add_f32 v{xs[e_]}, v{xs[e_]}, v{a+e_}")
        o = 52 + 2 * jq
        E(f"    v_cvt_pk_bf16_f32 v{o}, v{xs[0]}, v{xs[1]}")
        E(f"    v_cvt_pk_bf16_f32 v{o+1}, v{xs[2]}, v{xs[3]}")
        E(f"    buffer_store_dwordx2 v[{o}:{o+1}], v13, s[52:55], 0 offen offset:{16*jq}")
    if DIAG:
        E("    s_waitcnt vmcnt(0)")
    stamp(13)
    stamp(31, real=True)
    E("fin_done:")
    E("    s_endpgm")


def descriptor(name, vgpr, sgpr=96):
    E(f".amdhsa_kernel {name}")
    E(f"  .amdhsa_next_free_vgpr {vgpr}")
    E(f"  .amdhsa_next_free_sgpr {sgpr}")
    E(f"  .amdhsa_accum_offset {(vgpr + 3)//4*4}")
    E("  .amdhsa_group_segment_fixed_size 0")
    E("  .amdhsa_kernarg_size 104")
    E("  .amdhsa_user_sgpr_count 2")
    E("  .amdhsa_user_sgpr_kernarg_segment_ptr 1")
    E("  .amdhsa_system_sgpr_workgroup_id_x 1")
    E(".end_amdhsa_kernel")


def main():
    hdr = open("parallel_sum__ssm_conv_h3__glu_gated_bilinear__prompt.s.ref").read().splitlines()
    for l in hdr:
        if l.startswith("; Override") or l.startswith("; grid=") or l.startswith("; @launch"):
            continue
        if not l.startswith(";"):
            break
        E(l)
    E("; @launch kernel=prep_kernel grid=(512,1,1) block=(256,1,1) lds=0")
    E(f"; @launch kernel=main_kernel grid=(512,1,1) block=(256,1,1) lds={MAIN_LDS}")
    E(f"; @launch kernel=fin_kernel grid=(256,1,1) block=(256,1,1) lds={FIN_LDS}")
    E('.amdgcn_target "amdgcn-amd-amdhsa--gfx950"')
    E(".text")
    gen_prep()
    gen_main()
    gen_fin()
    E('.section .rodata,"a"')
    E(".p2align 6")
    descriptor("prep_kernel", 256 if DIAG else 116)
    E(".p2align 6")
    descriptor("main_kernel", 256 if DIAG else 240)
    E(".p2align 6")
    descriptor("fin_kernel", 256 if DIAG else 240)
    path = sys.argv[1] if len(sys.argv) > 1 else "parallel_sum__ssm_conv_h3__glu_gated_bilinear__prompt.s"
    open(path, "w").write("\n".join(out) + "\n")
    print("wrote", path, len(out), "lines; MAIN_LDS", MAIN_LDS, "FIN_LDS", FIN_LDS, "COPY_BASE", COPY_BASE, "KV_OFF", KV_OFF, "CH_BYTES", CH_BYTES)


main()
```

```python
import sys

S, D, F = 2048, 512, 1376
WS_XN = 0x000000
WS_KVR = 0x200000
WS_H = 0x400000
WS_YT = 0xA00000
WS_WT = 0xC00000
HP = 2816
H_BYTES = S * HP

out = []


def E(s=""):
    out.append(s)


class VM:
    def __init__(self):
        self.q = []

    def issue(self, tag):
        self.q.append(tag)

    def wait(self, tag):
        idx = -1
        for i, t in enumerate(self.q):
            if t == tag:
                idx = i
        if idx < 0:
            return
        n = len(self.q) - 1 - idx
        assert n <= 63, n
        E(f"    s_waitcnt vmcnt({n})")
        self.q = self.q[idx + 1:]

    def wait_all(self):
        E("    s_waitcnt vmcnt(0)")
        self.q = []


DIAG = len(sys.argv) > 2 and sys.argv[2] == "diag"
STAMP_WS = 0x2000000


def stamp_init(kidx, ws_lo, ws_hi):
    if not DIAG:
        return
    E(f"    s_add_u32 s56, s{ws_lo}, {STAMP_WS + kidx*1024*4*32*4}")
    E(f"    s_addc_u32 s57, s{ws_hi}, 0")
    E("    s_and_b32 s57, s57, 0xffff")
    E("    s_mov_b32 s58, 0x80000")
    E("    s_mov_b32 s59, 0x00020000")
    E("    s_lshl_b32 s60, s2, 2")
    E("    s_add_u32 s60, s60, s3")
    E("    s_lshl_b32 s60, s60, 7")
    E("    v_mov_b32 v254, s60")


def stamp(slot, vm=None, real=False):
    if not DIAG:
        return
    E("    s_waitcnt lgkmcnt(0)")
    E("    s_memrealtime s[62:63]" if real else "    s_memtime s[62:63]")
    E("    s_waitcnt lgkmcnt(0)")
    E("    v_mov_b32 v255, s62")
    E("    s_mov_b64 s[60:61], exec")
    E("    s_mov_b64 exec, 1")
    E(f"    buffer_store_dword v255, v254, s[56:59], 0 offen offset:{4*slot}")
    E("    s_mov_b64 exec, s[60:61]")
    if vm is not None:
        vm.issue("stamp")


def pstamp(slot, real=False):
    if not DIAG:
        return
    E("    s_waitcnt lgkmcnt(0)")
    E("    s_memrealtime s[72:73]" if real else "    s_memtime s[72:73]")
    E("    s_waitcnt lgkmcnt(0)")
    E("    v_mov_b32 v255, s72")
    E("    s_mov_b64 s[74:75], exec")
    E("    s_mov_b64 exec, 1")
    E(f"    buffer_store_dword v255, v254, s[68:71], 0 offen offset:{4*slot}")
    E("    s_mov_b64 exec, s[74:75]")


def srd(dst, lo, hi, nbytes):
    E(f"    s_mov_b32 s{dst}, s{lo}")
    E(f"    s_and_b32 s{dst+1}, s{hi}, 0xffff")
    E(f"    s_mov_b32 s{dst+2}, {nbytes}")
    E(f"    s_mov_b32 s{dst+3}, 0x00020000")


def srd_off(dst, lo, hi, off, nbytes):
    E(f"    s_add_u32 s{dst}, s{lo}, {off}")
    E(f"    s_addc_u32 s{dst+1}, s{hi}, 0")
    E(f"    s_and_b32 s{dst+1}, s{dst+1}, 0xffff")
    E(f"    s_mov_b32 s{dst+2}, {nbytes}")
    E(f"    s_mov_b32 s{dst+3}, 0x00020000")


def kernel_begin(name):
    E(f".globl {name}")
    E(".p2align 8")
    E(f".type {name},@function")
    E(f"{name}:")


def wave_reduce_add(v, t):
    E("    s_nop 1")
    E(f"    v_add_f32_dpp v{t}, v{v}, v{v} quad_perm:[1,0,3,2] row_mask:0xf bank_mask:0xf")
    E("    s_nop 1")
    E(f"    v_add_f32_dpp v{v}, v{t}, v{t} quad_perm:[2,3,0,1] row_mask:0xf bank_mask:0xf")
    E("    s_nop 1")
    E(f"    v_add_f32_dpp v{t}, v{v}, v{v} row_half_mirror row_mask:0xf bank_mask:0xf")
    E("    s_nop 1")
    E(f"    v_add_f32_dpp v{v}, v{t}, v{t} row_mirror row_mask:0xf bank_mask:0xf")
    E(f"    v_mov_b32 v{t}, v{v}")
    E("    s_nop 1")
    E(f"    v_permlane16_swap_b32 v{v}, v{t}")
    E("    s_nop 1")
    E(f"    v_add_f32 v{v}, v{v}, v{t}")
    E(f"    v_mov_b32 v{t}, v{v}")
    E("    s_nop 1")
    E(f"    v_permlane32_swap_b32 v{v}, v{t}")
    E("    s_nop 1")
    E(f"    v_add_f32 v{v}, v{v}, v{t}")


def round_pair(a, b, t, mask_sgpr):
    E(f"    v_cvt_pk_bf16_f32 v{t}, v{a}, v{b}")
    E(f"    v_lshlrev_b32 v{a}, 16, v{t}")
    E(f"    v_and_b32 v{b}, s{mask_sgpr}, v{t}")


def gen_prep():
    kernel_begin("prep_kernel")
    E("    s_cmp_ge_u32 s2, 512")
    E("    s_cbranch_scc1 prep_done")
    E("    s_load_dwordx2 s[4:5], s[0:1], 0")
    E("    s_load_dwordx4 s[8:11], s[0:1], 8")
    E("    s_load_dwordx2 s[12:13], s[0:1], 24")
    E("    s_load_dwordx2 s[14:15], s[0:1], 96")
    E("    s_load_dwordx4 s[44:47], s[0:1], 56")
    E("    s_load_dwordx2 s[48:49], s[0:1], 32")
    E("    s_mov_b32 s40, 0xffff0000")
    E("    s_waitcnt lgkmcnt(0)")
    if DIAG:
        E("    v_lshrrev_b32 v2, 6, v0")
        E("    s_nop 0")
        E("    v_readfirstlane_b32 s3, v2")
        E("    s_mov_b32 s64, s14")
        E("    s_mov_b32 s65, s15")
        E(f"    s_add_u32 s68, s64, {STAMP_WS}")
        E("    s_addc_u32 s69, s65, 0")
        E("    s_and_b32 s69, s69, 0xffff")
        E("    s_mov_b32 s70, 0x80000")
        E("    s_mov_b32 s71, 0x00020000")
        E("    s_lshl_b32 s66, s2, 2")
        E("    s_add_u32 s66, s66, s3")
        E("    s_lshl_b32 s66, s66, 7")
        E("    v_mov_b32 v254, s66")
    pstamp(30, True)
    pstamp(0)
    E("    s_cmp_lt_u32 s2, 256")
    E("    s_cbranch_scc1 prep_kv")
    srd(16, 4, 5, S * D * 2)
    srd_off(20, 14, 15, WS_XN, S * D * 2)
    E("    s_sub_u32 s33, s2, 256")
    E("    v_lshrrev_b32 v2, 6, v0")
    E("    v_and_b32 v3, 63, v0")
    E("    s_lshl_b32 s3, s33, 13")
    E("    v_lshlrev_b32 v1, 4, v3")
    E("    v_lshl_add_u32 v1, v2, 11, v1")
    E("    buffer_load_dwordx4 v[4:7], v1, s[16:19], s3 offen")
    E("    buffer_load_dwordx4 v[44:47], v1, s[16:19], s3 offen offset:1024")
    E("    s_lshr_b32 s50, s33, 3")
    E("    s_cmp_ge_u32 s50, 16")
    E("    s_cselect_b32 s52, s46, s44")
    E("    s_cselect_b32 s53, s47, s45")
    srd(56, 52, 53, D * F * 2)
    E("    s_and_b32 s52, s50, 15")
    E("    s_mul_i32 s52, s52, 32*2752")
    E("    v_lshrrev_b32 v112, 3, v0")
    E("    s_movk_i32 s53, 2752")
    E("    v_mul_lo_u32 v112, v112, s53")
    E("    v_and_b32 v113, 7, v0")
    E("    v_lshl_add_u32 v112, v113, 7, v112")
    E("    s_and_b32 s51, s2, 3")
    E("    s_mul_i32 s53, s51, 768")
    E("    s_cmp_eq_u32 s51, 3")
    E("    s_cselect_b32 s53, 2240, s53")
    E("    s_add_u32 s60, s52, s53")
    E("    buffer_load_dword v113, v112, s[56:59], s60 offen sc1")
    E("    s_lshr_b32 s30, s33, 4")
    E("    s_lshl_b32 s30, s30, 17")
    E("    s_and_b32 s31, s33, 15")
    E("    s_lshl_b32 s31, s31, 9")
    E("    s_add_u32 s30, s30, s31")
    E("    s_lshl_b32 s31, s33, 1")
    E("    v_lshrrev_b32 v16, 1, v2")
    E("    v_add_u32 v16, s31, v16")
    E("    v_and_b32 v16, 3, v16")
    E("    v_and_b32 v17, 3, v3")
    E("    v_xor_b32 v16, v16, v17")
    E("    v_lshlrev_b32 v2, 7, v2")
    E("    v_add_u32 v2, s30, v2")
    E("    v_lshrrev_b32 v17, 2, v3")
    E("    v_lshl_add_u32 v2, v17, 13, v2")
    E("    v_lshl_add_u32 v2, v16, 4, v2")
    E("    s_mov_b64 exec, 1")
    E("    buffer_load_dword v113, v2, s[20:23], 0 offen")
    E("    s_mov_b64 exec, -1")
    E("    s_waitcnt vmcnt(2)")
    pstamp(1)

    def ln_body(o):
        global out
        saved = out
        out = []
        for i in range(4):
            E(f"    v_lshlrev_b32 v{o+8+2*i}, 16, v{o+4+i}")
            E(f"    v_and_b32 v{o+9+2*i}, s40, v{o+4+i}")
        E(f"    v_add_f32 v{o+16}, v{o+8}, v{o+9}")
        E(f"    v_add_f32 v{o+17}, v{o+10}, v{o+11}")
        E(f"    v_add_f32 v{o+18}, v{o+12}, v{o+13}")
        E(f"    v_add_f32 v{o+19}, v{o+14}, v{o+15}")
        E(f"    v_add_f32 v{o+16}, v{o+16}, v{o+17}")
        E(f"    v_add_f32 v{o+18}, v{o+18}, v{o+19}")
        E(f"    v_add_f32 v{o+16}, v{o+16}, v{o+18}")
        wave_reduce_add(o+16, o+17)
        E(f"    v_mul_f32 v{o+16}, 0x3b000000, v{o+16}")
        for i in range(8):
            E(f"    v_sub_f32 v{o+20+i}, v{o+8+i}, v{o+16}")
        E(f"    v_mul_f32 v{o+18}, v{o+20}, v{o+20}")
        E(f"    v_mul_f32 v{o+19}, v{o+21}, v{o+21}")
        for i in range(2, 8, 2):
            E(f"    v_fmac_f32 v{o+18}, v{o+20+i}, v{o+20+i}")
            E(f"    v_fmac_f32 v{o+19}, v{o+21+i}, v{o+21+i}")
        E(f"    v_add_f32 v{o+18}, v{o+18}, v{o+19}")
        wave_reduce_add(o+18, o+17)
        E(f"    v_mul_f32 v{o+18}, 0x3b000000, v{o+18}")
        round_pair(o+16, o+18, o+17, 40)
        E(f"    v_add_f32 v{o+18}, 0x3727c5ac, v{o+18}")
        E(f"    v_cvt_pk_bf16_f32 v{o+17}, v{o+18}, v{o+18}")
        E(f"    v_and_b32 v{o+18}, s40, v{o+17}")
        E(f"    v_sqrt_f32 v{o+19}, v{o+18}")
        E("    s_nop 0")
        E(f"    v_rcp_f32 v{o+28}, v{o+19}")
        E(f"    v_fma_f32 v{o+29}, -v{o+19}, v{o+19}, v{o+18}")
        E(f"    v_mul_f32 v{o+28}, 0.5, v{o+28}")
        E(f"    v_fma_f32 v{o+19}, v{o+29}, v{o+28}, v{o+19}")
        E(f"    v_cvt_pk_bf16_f32 v{o+17}, v{o+19}, v{o+19}")
        E(f"    v_and_b32 v{o+19}, s40, v{o+17}")
        E(f"    v_rcp_f32 v{o+28}, v{o+19}")
        for i in range(8):
            E(f"    v_sub_f32 v{o+20+i}, v{o+8+i}, v{o+16}")
        for i in range(0, 8, 2):
            round_pair(o+20 + i, o+21 + i, o+17, 40)
        for i in range(8):
            E(f"    v_mul_f32 v{o+8+i}, v{o+20+i}, v{o+28}")
        for i in range(8):
            E(f"    v_fma_f32 v{o+30+i}, -v{o+8+i}, v{o+19}, v{o+20+i}")
        for i in range(8):
            E(f"    v_fma_f32 v{o+8+i}, v{o+30+i}, v{o+28}, v{o+8+i}")
        for i in range(4):
            E(f"    v_cvt_pk_bf16_f32 v{o+4+i}, v{o+8+2*i}, v{o+9+2*i}")
        E(f"    buffer_store_dwordx4 v[{o+4}:{o+7}], v2, s[20:23], 0 offen offset:{64 if o else 0}")
        body = out
        out = saved
        return body

    ba, bb = ln_body(0), ln_body(40)
    for la, lb in zip(ba, bb):
        E(la)
        E(lb)
    pstamp(2)
    if DIAG:
        E("    s_waitcnt vmcnt(0)")
    pstamp(3)
    pstamp(31, True)
    E("    s_endpgm")
    E("prep_kv:")
    srd(16, 8, 9, S * D * 2)
    srd(20, 10, 11, S * D * 2)
    srd(24, 12, 13, D * 4 * 2)
    srd_off(28, 14, 15, WS_KVR, S * D * 2)
    srd(56, 48, 49, D * S * 2)
    E("    s_lshl_b32 s60, s2, 13")
    E("    v_and_b32 v112, 63, v0")
    E("    v_lshlrev_b32 v112, 7, v112")
    E("    s_mov_b32 s3, s2")
    E("    s_lshr_b32 s32, s3, 3")
    E("    s_and_b32 s33, s3, 7")
    E("    v_and_b32 v1, 31, v0")
    E("    v_lshrrev_b32 v2, 5, v0")
    E("    s_lshl_b32 s34, s32, 6")
    E("    v_lshlrev_b32 v2, 3, v2")
    E("    v_add_u32 v2, s34, v2")
    E("    s_lshl_b32 s35, s33, 5")
    E("    v_add_u32 v1, s35, v1")
    E("    v_lshlrev_b32 v3, 10, v2")
    E("    v_lshlrev_b32 v4, 2, v1")
    E("    v_add_u32 v3, v3, v4")
    E("    v_add_u32 v4, 4096, v3")
    E("    v_subrev_u32 v5, 3072, v3")
    E("    v_lshlrev_b32 v6, 4, v1")
    E("    buffer_load_dwordx4 v[8:11], v6, s[24:27], 0 offen")
    for j in range(3):
        E(f"    buffer_load_dword v{12+j}, v5, s[16:19], 0 offen offset:{1024*j}")
    for j in range(4):
        E(f"    buffer_load_dword v{15+j}, v3, s[16:19], 0 offen offset:{1024*j}")
    for j in range(4):
        E(f"    buffer_load_dword v{19+j}, v4, s[16:19], 0 offen offset:{1024*j}")
    for j in range(4):
        E(f"    buffer_load_dword v{24+j}, v3, s[20:23], 0 offen offset:{1024*j}")
    for j in range(4):
        E(f"    buffer_load_dword v{28+j}, v4, s[20:23], 0 offen offset:{1024*j}")
    E("    v_lshlrev_b32 v6, 13, v1")
    E("    v_sub_u32 v7, 2040, v2")
    E("    v_lshlrev_b32 v7, 1, v7")
    E("    v_add_u32 v6, v6, v7")
    E("    v_add_u32 v7, 4096, v6")
    E("    buffer_load_dword v113, v112, s[56:59], s60 offen sc1")
    E("    s_mov_b64 exec, 1")
    E("    buffer_load_dword v113, v6, s[28:31], 0 offen")
    E("    s_mov_b64 exec, -1")
    E("    s_waitcnt vmcnt(2)")
    pstamp(1)
    for c in range(2):
        for d in range(2):
            E(f"    v_lshlrev_b32 v{32+4*c+2*d}, 16, v{8+2*c+d}")
            E(f"    v_and_b32 v{33+4*c+2*d}, s40, v{8+2*c+d}")
    for j in range(11):
        E(f"    v_lshlrev_b32 v{40+j}, 16, v{12+j}")
        E(f"    v_and_b32 v{52+j}, s40, v{12+j}")
    for j in range(8):
        E(f"    v_lshlrev_b32 v{64+j}, 16, v{24+j}")
        E(f"    v_and_b32 v{72+j}, s40, v{24+j}")
    for j in range(8):
        A0, A1, B0, B1, T = 96, 97, 98, 99, 100
        E(f"    v_mul_f32 v{A0}, v{40+j}, v35")
        E(f"    v_mul_f32 v{A1}, v{52+j}, v39")
        E(f"    v_mul_f32 v{B0}, v{41+j}, v34")
        E(f"    v_mul_f32 v{B1}, v{53+j}, v38")
        round_pair(A0, A1, T, 40)
        round_pair(B0, B1, T, 40)
        E(f"    v_add_f32 v{A0}, v{A0}, v{B0}")
        E(f"    v_add_f32 v{A1}, v{A1}, v{B1}")
        E(f"    v_mul_f32 v{B0}, v{42+j}, v33")
        E(f"    v_mul_f32 v{B1}, v{54+j}, v37")
        round_pair(A0, A1, T, 40)
        round_pair(B0, B1, T, 40)
        E(f"    v_add_f32 v{A0}, v{A0}, v{B0}")
        E(f"    v_add_f32 v{A1}, v{A1}, v{B1}")
        E(f"    v_mul_f32 v{B0}, v{43+j}, v32")
        E(f"    v_mul_f32 v{B1}, v{55+j}, v36")
        round_pair(A0, A1, T, 40)
        round_pair(B0, B1, T, 40)
        E(f"    v_add_f32 v{A0}, v{A0}, v{B0}")
        E(f"    v_add_f32 v{A1}, v{A1}, v{B1}")
        round_pair(A0, A1, T, 40)
        E(f"    v_mul_f32 v{80+j}, v{A0}, v{64+j}")
        E(f"    v_mul_f32 v{88+j}, v{A1}, v{72+j}")
    for c in range(2):
        for jj in range(4):
            E(f"    v_cvt_pk_bf16_f32 v{104+4*c+jj}, v{80+8*c+7-2*jj}, v{80+8*c+6-2*jj}")
    E("    buffer_store_dwordx4 v[104:107], v6, s[28:31], 0 offen")
    E("    buffer_store_dwordx4 v[108:111], v7, s[28:31], 0 offen")
    pstamp(2)
    if DIAG:
        E("    s_waitcnt vmcnt(0)")
    pstamp(3)
    pstamp(31, True)
    E("    s_endpgm")
    E("prep_done:")
    E("    s_endpgm")


COPY_BYTES = 4240
_order = [(1, 0), (0, 11), (2, 4), (5, 0), (4, 12), (3, 8), (6, 4), (7, 8)]
COPY_BASE = {}
_pos = 0
for _b, _beta in _order:
    while (_pos // 16) % 16 != _beta:
        _pos += 16
    COPY_BASE[_b] = _pos
    _pos += COPY_BYTES
KV_OFF = (_pos + 15) // 16 * 16
KVP = 80
CH_BYTES = (KV_OFF + 65 * KVP + 255) // 256 * 256
MAIN_LDS = max(2 * CH_BYTES, 81920)
assert MAIN_LDS <= 81920, MAIN_LDS


def gen_gemm1_path(nt):
    vm = VM()
    ACC = 128
    WF = 64
    XF = 112
    STG = 20480
    NB = 4
    nst = 16

    def dma_ops(st):
        buf = st % NB
        ops = []
        for j in range(2):
            def f(j=j):
                E(f"    s_add_u32 s38, s41, {st*8192 + j*1024}")
                E(f"    s_add_u32 m0, s41, {buf*STG + j*1024}")
                E("    s_nop 0")
                E(f"    buffer_load_dwordx4 v8, s[20:23], s38 offen lds")
                vm.issue(("dma", st))
            ops.append(f)
        for i in range(nt):
            def f(i=i):
                E(f"    s_add_u32 s38, s48, {st*32*2752}")
                E(f"    s_add_u32 m0, s43, {buf*STG + 8192 + i*1024}")
                E("    s_nop 0")
                E(f"    buffer_load_dwordx4 v{16+i}, s[52:55], s38 offen lds")
                vm.issue(("dma", st))
            ops.append(f)
        return ops

    P = 64 * nt
    LPR = 4 * nt
    E("    s_lshr_b32 s49, s3, 1")
    E("    s_cmp_eq_u32 s49, 1")
    E("    s_cselect_b32 s52, s44, s16")
    E("    s_cselect_b32 s53, s45, s17")
    E("    s_mov_b32 s54, s18")
    E("    s_mov_b32 s55, s19")
    E("    s_and_b32 s49, s3, 1")
    E("    s_mul_i32 s48, s49, 16*2752")
    E("    s_add_u32 s48, s48, s36")
    E(f"    s_mul_i32 s43, s3, {16*P}")
    E("    s_movk_i32 s49, 2752")
    for i in range(nt):
        E(f"    v_add_u32 v14, {64*i}, v1")
        if nt == 3:
            E("    v_mul_u32_u24 v15, 0x5556, v14")
            E("    v_lshrrev_b32 v15, 18, v15")
            E("    v_mul_u32_u24 v20, 12, v15")
        else:
            E("    v_lshrrev_b32 v15, 3, v14")
            E("    v_lshlrev_b32 v20, 3, v15")
        E("    v_sub_u32 v14, v14, v20")
        E("    v_mul_lo_u32 v15, v15, s49")
        E(f"    v_lshl_add_u32 v{16+i}, v14, 4, v15")
    E("    v_and_b32 v14, 15, v1")
    E("    v_lshrrev_b32 v15, 2, v14")
    E("    v_lshl_add_u32 v15, v13, 3, v15")
    E(f"    v_mul_u32_u24 v11, {P}, v15")
    E("    v_bfe_u32 v15, v1, 4, 1")
    E("    v_lshl_add_u32 v11, v15, 5, v11")
    E("    v_and_b32 v15, 3, v14")
    E("    v_lshl_add_u32 v11, v15, 3, v11")
    E("    v_add_u32 v15, 40960, v11")

    def fr_ops(setidx, buf, ks):
        ops = []
        x = XF + 4 * setidx
        ops.append(lambda: E(f"    ds_read_b128 v[{x}:{x+3}], v{4+ks} offset:{buf*STG}"))
        for mt in range(2 * nt):
            r = WF + 24 * setidx + 4 * mt
            base = (buf % 2) * STG + 8192 + (mt // nt) * 32 * P + ks * 16 * P + (mt % nt) * 64
            vb = 11 if buf < 2 else 15
            ops.append(lambda r=r, vb=vb, base=base: E(f"    ds_read_b64_tr_b16 v[{r}:{r+1}], v{vb} offset:{base}"))
            ops.append(lambda r=r, vb=vb, base=base: E(f"    ds_read_b64_tr_b16 v[{r+2}:{r+3}], v{vb} offset:{base+4*P}"))
        return ops

    def mfma_group(setidx, first, reads, dmas):
        x = XF + 4 * setidx
        reads = list(reads)
        dmas = list(dmas)
        n = 2 * nt
        rg = n // 2
        per = (len(reads) + rg - 1) // rg
        for mt in range(n):
            w = WF + 24 * setidx + 4 * mt
            a = ACC + 16 * mt
            c = "0" if first else f"v[{a}:{a+15}]"
            E(f"    v_mfma_f32_32x32x16_bf16 v[{a}:{a+15}], v[{w}:{w+3}], v[{x}:{x+3}], {c}")
            if mt < rg:
                for _ in range(per):
                    if reads:
                        reads.pop(0)()
            else:
                k = 1 if mt + 1 < n else len(dmas)
                for _ in range(k):
                    if dmas:
                        dmas.pop(0)()

    stamp(11, vm)
    for st in range(2):
        for f in dma_ops(st):
            f()
    E("    v_lshlrev_b32 v9, 7, v1")
    E("    buffer_load_dword v10, v9, s[20:23], s46 offen sc1")
    vm.issue("pf")
    E("    s_mov_b64 exec, 1")
    E("    buffer_load_dword v10, v12, s[24:27], s36 offen")
    E("    s_mov_b64 exec, -1")
    vm.issue("pf")
    stamp(12, vm)
    vm.wait(("dma", 0))
    stamp(13, vm)
    E("    s_barrier")
    stamp(1, vm)
    for f in fr_ops(0, 0, 0):
        f()
    for f in dma_ops(2):
        f()
    for st in range(nst):
        buf = st % NB
        dm = dma_ops(st + 3) if st + 3 < nst else []
        na = len(dm) // 2
        E("    s_waitcnt lgkmcnt(0)")
        mfma_group(0, st == 0, fr_ops(1, buf, 1), dm[:na])
        if st + 1 < nst:
            vm.wait(("dma", st + 1))
        E("    s_waitcnt lgkmcnt(0)")
        rd = []
        if st + 1 < nst:
            E("    s_barrier")
            if st % 2 == 1:
                stamp(2 + st // 2, vm)
            rd = fr_ops(0, (st + 1) % NB, 0)
        mfma_group(1, False, rd, dm[na:])
    stamp(10, vm)
    E("    s_nop 15")
    for tau in range(nt):
        G = ACC + 16 * tau
        U = ACC + 16 * (nt + tau)
        T = 14
        for j in range(0, 16, 2):
            round_pair(G + j, G + j + 1, T, 40)
            round_pair(U + j, U + j + 1, T, 40)
        for j in range(16):
            E(f"    v_mul_f32 v{G+j}, v{G+j}, v{U+j}")
        P = 16 + 8 * tau
        for j in range(8):
            E(f"    v_cvt_pk_bf16_f32 v{P+j}, v{G+2*j}, v{G+2*j+1}")
        E("    s_nop 1")
        for pair in range(2):
            q0 = P + 4 * pair
            E(f"    v_permlane32_swap_b32 v{q0}, v{q0+2}")
            E(f"    v_permlane32_swap_b32 v{q0+1}, v{q0+3}")
        for pair in range(2):
            q0 = P + 4 * pair
            E(f"    buffer_store_dwordx4 v[{q0}:{q0+3}], v12, s[24:27], s36 offen offset:{tau*64 + pair*32}")
    if DIAG:
        E("    s_waitcnt vmcnt(0)")
    stamp(14)
    stamp(31, real=True)
    E("    s_endpgm")


def gen_main():
    kernel_begin("main_kernel")
    E("    s_cmp_ge_u32 s2, 512")
    E("    s_cbranch_scc1 main_done")
    E("    s_load_dwordx4 s[4:7], s[0:1], 56")
    E("    s_load_dwordx4 s[8:11], s[0:1], 32")
    E("    s_load_dwordx2 s[12:13], s[0:1], 96")
    E("    s_load_dwordx2 s[64:65], s[0:1], 72")
    E("    s_load_dwordx2 s[66:67], s[0:1], 0")
    E("    s_mov_b32 s40, 0xffff0000")
    E("    v_and_b32 v1, 63, v0")
    E("    v_lshrrev_b32 v2, 6, v0")
    E("    s_nop 0")
    E("    v_readfirstlane_b32 s3, v2")
    E("    s_waitcnt lgkmcnt(0)")
    stamp_init(1, 12, 13)
    stamp(30, real=True)
    stamp(0)
    E("    s_cmp_lt_u32 s2, 256")
    E("    s_cbranch_scc1 main_conv")
    E("    s_setprio 1")
    E("    s_sub_u32 s42, s2, 256")
    E("    s_bfe_u32 s30, s42, 0x10002")
    E("    s_lshl_b32 s30, s30, 3")
    E("    s_lshr_b32 s31, s42, 5")
    E("    s_add_u32 s30, s30, s31")
    E("    s_and_b32 s31, s42, 3")
    E("    s_lshl_b32 s31, s31, 2")
    E("    s_bfe_u32 s43, s42, 0x20003")
    E("    s_add_u32 s31, s31, s43")
    srd(16, 4, 5, D * F * 2)
    srd(44, 6, 7, D * F * 2)
    E("    s_lshl_b32 s32, s30, 17")
    E(f"    s_add_u32 s32, s32, {WS_XN}")
    srd_off(20, 12, 13, "s32", 128 * 1024)
    srd_off(24, 12, 13, WS_H, H_BYTES)
    E("    v_and_b32 v3, 31, v1")
    E("    v_lshrrev_b32 v13, 5, v1")
    E("    s_lshl_b32 s33, s3, 5")
    E("    v_add_u32 v3, s33, v3")
    E("    s_lshl_b32 s32, s30, 7")
    E("    v_add_u32 v14, s32, v3")
    E(f"    s_movk_i32 s34, {HP}")
    E("    v_mul_lo_u32 v12, v14, s34")
    E("    v_lshl_add_u32 v12, v13, 4, v12")
    E("    v_bfe_u32 v14, v3, 2, 2")
    E("    v_xor_b32 v14, v14, v13")
    E("    v_lshlrev_b32 v14, 4, v14")
    E("    v_lshl_add_u32 v4, v3, 6, v14")
    E("    v_xor_b32 v5, 32, v4")
    E("    v_lshlrev_b32 v8, 4, v1")
    E("    s_lshl_b32 s46, s3, 2")
    E("    s_add_u32 s46, s46, s43")
    E("    s_lshl_b32 s46, s46, 13")
    E("    s_lshr_b32 s47, s42, 5")
    E("    s_lshl_b32 s41, s3, 11")
    E("    s_cmp_lt_u32 s31, 11")
    E("    s_cbranch_scc0 main_g2")
    E("    s_mul_i32 s36, s31, 192")
    gen_gemm1_path(3)
    E("main_g2:")
    E("    s_lshl_b32 s36, s31, 7")
    E("    s_add_u32 s36, s36, 704")
    gen_gemm1_path(2)

    E("main_conv:")
    vm = VM()
    E("    s_setprio 2")
    E("    s_lshl_b32 s30, s2, 1")
    E("    s_lshr_b32 s31, s3, 1")
    E("    s_add_u32 s30, s30, s31")
    E("    s_and_b32 s32, s3, 1")
    E("    s_lshl_b32 s33, s30, 12")
    srd_off(16, 8, 9, "s33", 4096)
    E("    s_add_u32 s34, s33, %d" % WS_KVR)
    srd_off(20, 12, 13, "s34", 4096)
    E("    s_add_u32 s34, s33, %d" % WS_YT)
    srd_off(24, 12, 13, "s34", 4096)
    srd(44, 10, 11, D * 2)
    E(f"    s_mul_i32 s35, s31, {CH_BYTES}")
    E("    s_lshl_b32 s36, s32, 6")
    E("    v_add_u32 v3, s36, v1")
    E("    v_lshlrev_b32 v4, 5, v3")
    E("    v_subrev_u32 v4, 16, v4")
    E("    buffer_load_dwordx4 v[16:19], v4, s[16:19], 0 offen")
    E("    v_lshlrev_b32 v5, 5, v3")
    E("    buffer_load_dwordx4 v[20:23], v5, s[16:19], 0 offen")
    E("    buffer_load_dwordx4 v[24:27], v5, s[16:19], 0 offen offset:16")
    E("    v_lshlrev_b32 v6, 4, v3")
    E("    buffer_load_dwordx4 v[28:31], v6, s[20:23], 0 offen")
    E("    buffer_load_dwordx4 v[32:35], v6, s[20:23], 0 offen offset:2048")
    E("    s_lshl_b32 s36, s30, 1")
    E("    v_mov_b32 v7, s36")
    E("    buffer_load_ushort v9, v7, s[44:47], 0 offen")
    E("    s_mov_b64 exec, 1")
    E("    buffer_load_dword v61, v1, s[24:27], 0 offen")
    E("    s_mov_b64 exec, -1")
    E("    v_mov_b32 v36, 0")
    E("    v_mov_b32 v37, 0")
    E("    v_mov_b32 v38, 0")
    E("    v_mov_b32 v39, 0")
    E("    v_lshlrev_b32 v7, 4, v1")
    E("    v_add_u32 v7, s35, v7")
    E("    s_mov_b64 exec, 0x7f")
    for b in range(8):
        E(f"    ds_write_b128 v7, v[36:39] offset:{COPY_BASE[b]}")
    E("    s_mov_b64 exec, 0xf")
    E(f"    ds_write_b128 v7, v[36:39] offset:{KV_OFF + 64*KVP}")
    E("    s_mov_b64 exec, -1")
    E("    v_lshlrev_b32 v7, 5, v3")
    E("    v_add_u32 v7, s35, v7")
    E("    v_lshrrev_b32 v8, 2, v3")
    E(f"    v_mul_u32_u24 v8, {KVP}, v8")
    E("    v_and_b32 v10, 3, v3")
    E("    v_lshl_add_u32 v8, v10, 4, v8")
    E("    v_add_u32 v8, s35, v8")
    E("    v_and_b32 v3, 31, v1")
    E("    v_lshrrev_b32 v4, 5, v1")
    E("    v_add_u32 v5, 1, v3")
    E("    v_and_b32 v6, 7, v5")
    E("    v_lshrrev_b32 v5, 3, v5")
    E("    v_sub_u32 v5, v5, v4")
    E("    v_add_u32 v5, 1, v5")
    E("    v_lshlrev_b32 v5, 4, v5")
    E("    v_mov_b32 v10, 0")
    for b in range(8):
        E(f"    v_cmp_eq_u32 vcc, {b}, v6")
        E(f"    v_mov_b32 v11, {COPY_BASE[b]}")
        E("    s_nop 0")
        E("    v_cndmask_b32 v10, v10, v11, vcc")
    E("    v_add_u32 v10, v10, v5")
    E("    v_add_u32 v10, s35, v10")
    E("    v_sub_u32 v5, 63, v3")
    E(f"    v_mul_u32_u24 v5, {KVP}, v5")
    E("    v_lshlrev_b32 v6, 4, v4")
    E("    v_sub_u32 v5, v5, v6")
    E(f"    s_add_u32 s36, s35, {KV_OFF + 16}")
    E("    v_add_u32 v11, s36, v5")
    E(f"    v_subrev_u32 v15, {32*KVP}, v11")
    E(f"    s_add_u32 s36, s36, {KVP*64}")
    E("    v_sub_u32 v12, s36, v6")
    E("    s_waitcnt vmcnt(4)")
    for u in range(2):
        e = 16 + 4 * u
        for b in range(8):
            off = COPY_BASE[b] + 112 + 16 * u
            if b % 2 == 0 and (b // 2) % 2 == 0:
                r = e + b // 2
                E(f"    ds_write_b128 v7, v[{r}:{r+3}] offset:{off}")
            else:
                t = 40 + 4 * ((u * 8 + b) % 4)
                for d in range(4):
                    if b % 2 == 0:
                        E(f"    v_mov_b32 v{t+d}, v{e + b//2 + d}")
                    else:
                        be = (b - 1) // 2
                        E(f"    v_alignbyte_b32 v{t+d}, v{e+be+d+1}, v{e+be+d}, 2")
                E(f"    ds_write_b128 v7, v[{t}:{t+3}] offset:{off}")
    E(f"    ds_write_b128 v7, v[24:27] offset:{COPY_BASE[0] + 112 + 32}")
    E("    s_waitcnt vmcnt(2)")
    E(f"    ds_write_b128 v8, v[28:31] offset:{KV_OFF}")
    E(f"    ds_write_b128 v8, v[32:35] offset:{KV_OFF + 32*KVP}")
    E("    s_waitcnt lgkmcnt(0)")
    stamp(1)
    E("    s_barrier")
    E("    s_setprio 0")
    stamp(2)
    FR = 64
    ACC = 192

    def fr(setidx, slot):
        return FR + 64 * setidx + 4 * slot

    def op_A(setidx, slot, t):
        r = fr(setidx, slot)
        return lambda: E(f"    ds_read_b128 v[{r}:{r+3}], v10 offset:{32*(t+3)}")

    def ops_B(setidx, slot, d, c):
        def f():
            E(f"    v_add_u32 v13, {KVP*d}, v{11 if c == 0 else 15}")
            E("    v_min_u32 v13, v13, v12")
            for q in range(2):
                r = fr(setidx, slot + q)
                E(f"    ds_read_b128 v[{r}:{r+3}], v13 offset:{32*(1-q)}")
        return f

    def loads(it, setidx):
        kind, d0 = it
        ops = []
        if kind == "X":
            for e_ in range(2):
                for q in range(2):
                    ops.append(op_A(setidx, 2 * e_ + q, 2 * (d0 + e_) - q))
                for c in range(2):
                    ops.append(ops_B(setidx, 4 + 4 * e_ + 2 * c, d0 + e_, c))
        else:
            for e_ in range(4):
                for q in range(2):
                    ops.append(op_A(setidx, 2 * e_ + q, 2 * (d0 + e_) - q))
                ops.append(ops_B(setidx, 8 + 2 * e_, d0 + e_, 1))
        return ops

    def mfmas(it, setidx):
        kind, d0 = it
        lst = []
        if kind == "X":
            for e_ in range(2):
                for q in range(2):
                    for c in range(2):
                        lst.append((c, fr(setidx, 2 * e_ + q), fr(setidx, 4 + 4 * e_ + 2 * c + q)))
        else:
            for e_ in range(4):
                for q in range(2):
                    lst.append((1 + q, fr(setidx, 2 * e_ + q), fr(setidx, 8 + 2 * e_ + q)))
        return lst

    def conv_loop(its, pf_at):
        started = set()
        for f in loads(its[0], 0):
            f()
        for n, it in enumerate(its):
            E("    s_waitcnt lgkmcnt(0)")
            nxt = loads(its[n + 1], (n + 1) % 2) if n + 1 < len(its) else []
            per = (len(nxt) + 4) // 5
            ms = mfmas(it, n % 2)
            for k, (acc, a, b) in enumerate(ms):
                A = ACC + 16 * acc
                c = f"v[{A}:{A+15}]" if acc in started else "0"
                started.add(acc)
                E(f"    v_mfma_f32_32x32x16_bf16 v[{A}:{A+15}], v[{a}:{a+3}], v[{b}:{b+3}], {c}")
                for _ in range(per if k + 1 < len(ms) else len(nxt)):
                    if nxt:
                        nxt.pop(0)()
            if n == pf_at:
                srd(52, 64, 65, F * D * 2)
                E("    s_lshr_b32 s48, s2, 3")
                E("    s_mul_i32 s48, s48, 344*128")
                E("    v_lshlrev_b32 v60, 7, v0")
                E("    buffer_load_dword v61, v60, s[52:55], s48 offen sc1")
                E("    v_min_u32 v60, 87, v0")
                E("    v_lshlrev_b32 v60, 7, v60")
                E("    s_add_u32 s48, s48, 256*128")
                E("    buffer_load_dword v61, v60, s[52:55], s48 offen sc1")
                srd(52, 66, 67, S * D * 2)
                srd_off(68, 12, 13, WS_XN, S * D * 2)
                E("    s_lshr_b32 s48, s2, 3")
                E("    s_and_b32 s49, s48, 3")
                E("    s_lshl_b32 s49, s49, 3")
                E("    s_and_b32 s50, s2, 7")
                E("    s_add_u32 s49, s49, s50")
                E("    s_lshr_b32 s48, s48, 2")
                E("    s_lshl_b32 s50, s3, 4")
                E("    v_add_u32 v62, s50, v1")
                E("    v_lshrrev_b32 v60, 3, v62")
                E("    v_lshlrev_b32 v60, 10, v60")
                E("    v_and_b32 v63, 7, v62")
                E("    v_lshl_add_u32 v60, v63, 7, v60")
                E("    s_lshl_b32 s50, s49, 16")
                E("    s_lshl_b32 s51, s48, 13")
                E("    s_add_u32 s50, s50, s51")
                E("    v_lshrrev_b32 v63, 5, v62")
                E("    v_lshlrev_b32 v63, 13, v63")
                E("    v_and_b32 v62, 31, v62")
                E("    v_lshl_add_u32 v62, v62, 7, v63")
                E("    s_lshr_b32 s51, s49, 1")
                E("    s_lshl_b32 s51, s51, 17")
                E("    s_and_b32 s49, s49, 1")
                E("    s_lshl_b32 s49, s49, 12")
                E("    s_add_u32 s51, s51, s49")
                E("    s_lshl_b32 s48, s48, 14")
                E("    s_add_u32 s51, s51, s48")
                E("    s_mov_b64 exec, 0xffff")
                E("    buffer_load_dword v61, v60, s[52:55], s50 offen sc1")
                E("    buffer_load_dword v61, v62, s[68:71], s51 offen sc1")
                E("    s_mov_b64 exec, -1")

    E("    s_cmp_eq_u32 s32, 0")
    E("    s_cbranch_scc0 conv_l1")
    conv_loop([("X", d) for d in range(0, 24, 2)], 4)
    E("    s_branch conv_le")
    E("conv_l1:")
    conv_loop([("X", d) for d in range(24, 32, 2)] + [("Y", d) for d in range(32, 64, 4)], 4)
    E("    s_nop 15")
    E("    s_nop 3")
    for j in range(16):
        E(f"    v_add_f32 v{ACC+16+j}, v{ACC+16+j}, v{ACC+32+j}")
    E("conv_le:")
    E("    s_setprio 2")
    stamp(3)
    E("    s_barrier")
    stamp(4)
    E("    v_lshlrev_b32 v13, 4, v1")
    E("    v_add_u32 v13, s35, v13")
    E("    s_lshl_b32 s36, s32, 12")
    E("    v_add_u32 v14, s36, v13")
    E("    s_xor_b32 s36, s36, 4096")
    E("    v_add_u32 v13, s36, v13")
    E("    s_nop 7")
    E("    s_cmp_eq_u32 s32, 0")
    E("    s_cbranch_scc1 conv_hw0")
    for jq in range(4):
        E(f"    ds_write_b128 v13, v[{ACC+4*jq}:{ACC+4*jq+3}] offset:{1024*jq}")
    for j in range(16):
        E(f"    v_mov_b32 v{64+j}, v{ACC+16+j}")
    E("    s_branch conv_x")
    E("conv_hw0:")
    for jq in range(4):
        E(f"    ds_write_b128 v13, v[{ACC+16+4*jq}:{ACC+16+4*jq+3}] offset:{1024*jq}")
    for j in range(16):
        E(f"    v_mov_b32 v{64+j}, v{ACC+j}")
    E("conv_x:")
    E("    s_waitcnt lgkmcnt(0)")
    E("    s_barrier")
    for jq in range(4):
        E(f"    ds_read_b128 v[{80+4*jq}:{80+4*jq+3}], v14 offset:{1024*jq}")
    E("    v_sub_u32 v5, 63, v3")
    E(f"    v_mul_u32_u24 v5, {KVP}, v5")
    E("    v_lshlrev_b32 v6, 3, v4")
    E("    v_sub_u32 v5, v5, v6")
    E(f"    s_mul_i32 s36, s32, {32*KVP}")
    E(f"    s_sub_u32 s36, {KV_OFF + 8}, s36")
    E("    s_add_u32 s36, s36, s35")
    E("    v_add_u32 v5, s36, v5")
    for jq in range(4):
        E(f"    ds_read_b64 v[{96+2*jq}:{96+2*jq+1}], v5 offset:{16*(3-jq)}")
    E("    v_lshlrev_b32 v6, 6, v3")
    E("    v_lshl_add_u32 v6, v4, 3, v6")
    E("    s_lshl_b32 s36, s32, 11")
    E("    v_add_u32 v6, s36, v6")
    E("    s_waitcnt vmcnt(0)")
    E("    v_lshlrev_b32 v9, 16, v9")
    E("    s_waitcnt lgkmcnt(0)")
    for j in range(16):
        E(f"    v_add_f32 v{64+j}, v{64+j}, v{80+j}")
    for jq in range(4):
        k0, k1, k2, k3 = 104, 105, 106, 107
        E(f"    v_and_b32 v{k0}, s40, v{97+2*jq}")
        E(f"    v_lshlrev_b32 v{k1}, 16, v{97+2*jq}")
        E(f"    v_and_b32 v{k2}, s40, v{96+2*jq}")
        E(f"    v_lshlrev_b32 v{k3}, 16, v{96+2*jq}")
        for kk in (k0, k1, k2, k3):
            E(f"    v_mul_f32 v{kk}, v{kk}, v9")
        round_pair(k0, k1, 108, 40)
        round_pair(k2, k3, 108, 40)
        y = 64 + 4 * jq
        round_pair(y, y + 1, 108, 40)
        round_pair(y + 2, y + 3, 108, 40)
        for e_, kk in enumerate((k0, k1, k2, k3)):
            E(f"    v_add_f32 v{y+e_}, v{y+e_}, v{kk}")
        E(f"    v_cvt_pk_bf16_f32 v{110+2*jq}, v{y}, v{y+1}")
        E(f"    v_cvt_pk_bf16_f32 v{111+2*jq}, v{y+2}, v{y+3}")
        E(f"    buffer_store_dwordx2 v[{110+2*jq}:{111+2*jq}], v6, s[24:27], 0 offen offset:{16*jq}")
    E("    s_waitcnt vmcnt(0)")
    stamp(5)
    stamp(31, real=True)
    E("main_done:")
    E("    s_endpgm")


NSLOT = 4
SLOT = 32768
FIN_YOFF = NSLOT * SLOT
FIN_XOFF = FIN_YOFF + 8192
FIN_NOFF = FIN_XOFF + 8192
FIN_LDS = FIN_NOFF + 8192


def gen_fin():
    kernel_begin("fin_kernel")
    vm = VM()
    E("    s_cmp_ge_u32 s2, 256")
    E("    s_cbranch_scc1 fin_done")
    E("    s_load_dwordx2 s[4:5], s[0:1], 0")
    E("    s_load_dwordx4 s[8:11], s[0:1], 72")
    E("    s_load_dwordx2 s[12:13], s[0:1], 96")
    E("    s_mov_b32 s40, 0xffff0000")
    E("    v_and_b32 v1, 63, v0")
    E("    v_lshrrev_b32 v2, 6, v0")
    E("    s_nop 0")
    E("    v_readfirstlane_b32 s3, v2")
    E("    s_waitcnt lgkmcnt(0)")
    stamp_init(2, 12, 13)
    stamp(30, vm, real=True)
    stamp(0, vm)
    E("    s_and_b32 s30, s2, 7")
    E("    s_bfe_u32 s31, s2, 0x20003")
    E("    s_lshl_b32 s31, s31, 3")
    E("    s_add_u32 s30, s30, s31")
    E("    s_lshr_b32 s31, s2, 5")
    E("    s_and_b32 s32, s3, 1")
    E("    s_lshr_b32 s33, s3, 1")
    srd(16, 8, 9, F * D * 2)
    srd_off(20, 12, 13, WS_H, H_BYTES)
    E("    v_lshrrev_b32 v3, 3, v1")
    E("    s_lshl_b32 s34, s3, 5")
    E("    v_add_u32 v3, s34, v3")
    E("    v_lshlrev_b32 v10, 10, v3")
    E("    v_and_b32 v4, 7, v1")
    E("    v_bfe_u32 v5, v1, 4, 1")
    E("    v_lshlrev_b32 v5, 2, v5")
    E("    v_xor_b32 v4, v4, v5")
    E("    v_lshl_add_u32 v10, v4, 4, v10")
    E("    s_lshl_b32 s34, s31, 7")
    E("    v_add_u32 v10, s34, v10")
    E("    s_lshl_b32 s37, s3, 12")
    E("    v_lshrrev_b32 v3, 4, v1")
    E("    s_lshl_b32 s34, s30, 6")
    E("    s_lshl_b32 s35, s3, 4")
    E("    s_add_u32 s34, s34, s35")
    E("    v_add_u32 v4, s34, v3")
    E(f"    s_movk_i32 s35, {HP}")
    E("    v_mul_lo_u32 v4, v4, s35")
    E("    v_and_b32 v5, 15, v1")
    E("    v_xor_b32 v5, v5, v3")
    E("    v_lshl_add_u32 v16, v5, 4, v4")
    E("    v_xor_b32 v6, 4, v5")
    E("    v_lshl_add_u32 v17, v6, 4, v4")
    E("    v_xor_b32 v6, 8, v5")
    E("    v_lshl_add_u32 v18, v6, 4, v4")
    E("    v_xor_b32 v6, 12, v5")
    E("    v_lshl_add_u32 v19, v6, 4, v4")
    nch = 11

    def dma_ops(c):
        slot = c % NSLOT
        ops = []
        for j in range(4):
            def f(j=j):
                E(f"    s_mov_b32 s38, {256*c + 4*j*HP}")
                E(f"    s_add_u32 m0, s37, {slot*SLOT + j*1024}")
                E("    s_nop 0")
                E(f"    buffer_load_dwordx4 v{16+j}, s[20:23], s38 offen lds")
                vm.issue(("dma", c))
            ops.append(f)
        for j in range(4):
            def f(j=j):
                E(f"    s_mov_b32 s38, {(128*c + 8*j)*1024}")
                E(f"    s_add_u32 m0, s37, {slot*SLOT + 16384 + j*1024}")
                E("    s_nop 0")
                E("    buffer_load_dwordx4 v10, s[16:19], s38 offen lds")
                vm.issue(("dma", c))
            ops.append(f)
        return ops

    def issue_dma(c):
        for f in dma_ops(c):
            f()

    def h_touch():
        E("    s_lshr_b32 s34, s2, 3")
        E("    s_and_b32 s35, s34, 3")
        E("    s_lshl_b32 s35, s35, 3")
        E("    s_and_b32 s36, s2, 7")
        E("    s_add_u32 s35, s35, s36")
        E(f"    s_mul_i32 s35, s35, {64*HP}")
        E("    s_lshr_b32 s36, s34, 2")
        E("    s_mul_i32 s36, s36, 176*128")
        E("    s_add_u32 s35, s35, s36")
        E("    v_min_u32 v46, 175, v0")
        E("    v_lshlrev_b32 v46, 7, v46")
        E("    buffer_load_dword v38, v46, s[20:23], s35 offen sc1")
        vm.issue("pf")

    h_touch()
    issue_dma(0)
    d1 = dma_ops(1)
    for f in d1[:4]:
        f()

    late = []
    srd(24, 4, 5, S * D * 2)
    srd_off(44, 12, 13, WS_XN, S * D * 2)
    srd_off(48, 12, 13, WS_YT, S * D * 2)
    srd(52, 10, 11, S * D * 2)
    E("    s_lshl_b32 s34, s3, 4")
    E("    v_add_u32 v3, s34, v1")
    E("    v_lshlrev_b32 v47, 10, v3")
    E("    s_lshl_b32 s34, s30, 16")
    E("    s_lshl_b32 s35, s31, 7")
    E("    s_add_u32 s64, s34, s35")
    E("    v_lshrrev_b32 v5, 5, v3")
    E("    v_lshlrev_b32 v5, 13, v5")
    E("    v_and_b32 v6, 31, v3")
    E("    v_lshl_add_u32 v48, v6, 7, v5")
    E("    s_lshr_b32 s35, s30, 1")
    E("    s_lshl_b32 s35, s35, 17")
    E("    s_and_b32 s36, s30, 1")
    E("    s_lshl_b32 s36, s36, 12")
    E("    s_add_u32 s35, s35, s36")
    E("    s_lshl_b32 s36, s31, 14")
    E("    s_add_u32 s65, s35, s36")
    E("    v_lshlrev_b32 v49, 12, v3")
    E("    s_lshl_b32 s36, s31, 18")
    E("    s_lshl_b32 s38, s30, 7")
    E("    s_add_u32 s66, s36, s38")

    def e_touch():
        E("    s_mov_b64 exec, 0xffff")
        E("    buffer_load_dword v38, v49, s[48:51], s66 offen sc1")
        E("    s_mov_b64 exec, -1")
        vm.issue("pf")
    e_touch()
    E("    v_lshrrev_b32 v3, 3, v1")
    E("    s_lshl_b32 s34, s31, 6")
    E("    s_lshl_b32 s35, s3, 4")
    E("    s_add_u32 s34, s34, s35")
    E("    v_add_u32 v3, s34, v3")
    E("    v_lshlrev_b32 v9, 12, v3")
    E("    v_and_b32 v4, 7, v1")
    E("    v_lshl_add_u32 v9, v4, 4, v9")
    E("    s_lshl_b32 s34, s30, 7")
    E("    v_add_u32 v9, s34, v9")
    E("    s_lshl_b32 s35, s3, 11")
    E("    s_mov_b32 s39, s35")
    for j in range(2):
        def f(j=j):
            E(f"    s_add_u32 m0, s39, {FIN_YOFF + 1024*j}")
            E(f"    s_mov_b32 s38, {8*4096*j}")
            E(f"    buffer_load_dwordx4 v9, s[48:51], s38 offen lds")
            vm.issue("y")
        late.append(f)
    E("    v_and_b32 v3, 31, v1")
    E("    s_lshl_b32 s35, s32, 5")
    E("    v_add_u32 v3, s35, v3")
    E("    s_lshl_b32 s34, s30, 6")
    E("    v_add_u32 v6, s34, v3")
    E("    v_lshrrev_b32 v4, 5, v1")
    E("    v_lshlrev_b32 v13, 10, v6")
    E("    v_lshl_add_u32 v13, v4, 3, v13")
    E("    s_lshl_b32 s34, s31, 7")
    E("    s_lshl_b32 s35, s33, 6")
    E("    s_add_u32 s34, s34, s35")
    E("    v_add_u32 v13, s34, v13")
    XR, NR = 96, 104
    E("    v_lshrrev_b32 v5, 3, v1")
    E("    v_and_b32 v7, 7, v1")
    E("    v_xor_b32 v7, v7, v5")
    E("    v_lshlrev_b32 v40, 10, v5")
    E("    v_lshl_add_u32 v40, v7, 4, v40")
    E("    s_lshl_b32 s34, s30, 2")
    E("    s_add_u32 s34, s34, s3")
    E("    s_lshl_b32 s34, s34, 14")
    E("    s_lshl_b32 s35, s31, 7")
    E("    s_add_u32 s42, s34, s35")
    for j in range(2):
        def f(j=j):
            E(f"    s_add_u32 m0, s39, {FIN_XOFF + 1024*j}")
            E(f"    s_add_u32 s38, s42, {8192*j}")
            E(f"    buffer_load_dwordx4 v40, s[24:27], s38 offen lds")
            vm.issue("x")
        late.append(f)
    E("    v_lshlrev_b32 v41, 4, v1")
    E("    s_lshr_b32 s34, s30, 1")
    E("    s_lshl_b32 s34, s34, 17")
    E("    s_lshl_b32 s35, s31, 1")
    E("    s_add_u32 s35, s35, s33")
    E("    s_lshl_b32 s35, s35, 13")
    E("    s_add_u32 s34, s34, s35")
    E("    s_and_b32 s35, s30, 1")
    E("    s_lshl_b32 s35, s35, 12")
    E("    s_add_u32 s34, s34, s35")
    E("    s_lshl_b32 s35, s32, 11")
    E("    s_add_u32 s41, s34, s35")
    for j in range(2):
        def f(j=j):
            E(f"    s_add_u32 m0, s39, {FIN_NOFF + 1024*j}")
            E(f"    s_add_u32 s38, s41, {1024*j}")
            E(f"    buffer_load_dwordx4 v41, s[44:47], s38 offen lds")
            vm.issue("x")
        late.append(f)
    E("    v_and_b32 v5, 7, v3")
    E("    s_lshl_b32 s35, s33, 2")
    E("    v_xor_b32 v5, s35, v5")
    E("    v_lshlrev_b32 v42, 7, v3")
    E("    v_lshl_add_u32 v42, v5, 4, v42")
    E("    v_lshl_add_u32 v42, v4, 3, v42")
    E(f"    v_add_u32 v42, {FIN_XOFF}, v42")
    E("    v_bfe_u32 v5, v3, 2, 2")
    E("    v_lshlrev_b32 v43, 6, v3")
    E("    v_lshl_add_u32 v43, v5, 4, v43")
    E("    v_lshl_add_u32 v43, v4, 3, v43")
    E("    s_lshl_b32 s35, s33, 12")
    E(f"    s_add_u32 s35, s35, {FIN_NOFF}")
    E("    v_add_u32 v43, s35, v43")
    E("    v_and_b32 v5, 15, v1")
    E("    v_lshrrev_b32 v6, 2, v5")
    E("    v_lshl_add_u32 v6, v4, 3, v6")
    E("    v_lshlrev_b32 v11, 7, v6")
    E("    v_bfe_u32 v6, v1, 4, 1")
    E("    v_lshlrev_b32 v6, 5, v6")
    E("    v_and_b32 v7, 3, v5")
    E("    v_lshl_add_u32 v6, v7, 3, v6")
    E("    s_lshl_b32 s35, s33, 6")
    E("    v_add_u32 v6, s35, v6")
    E("    v_bfe_u32 v7, v1, 3, 1")
    E("    v_lshlrev_b32 v7, 6, v7")
    E("    v_xor_b32 v6, v6, v7")
    E("    v_add_u32 v11, v11, v6")
    E("    v_add_u32 v11, 16384, v11")
    E(f"    v_add_u32 v12, {2*SLOT}, v11")
    E("    v_and_b32 v6, 15, v3")
    E("    v_xor_b32 v6, v6, v4")
    E("    v_lshlrev_b32 v6, 4, v6")
    E("    v_lshl_add_u32 v20, v3, 8, v6")
    for ks in range(1, 8):
        E(f"    v_xor_b32 v{20+ks}, {32*ks}, v20")
    for ks in range(8):
        E(f"    v_add_u32 v{28+ks}, {2*SLOT}, v{20+ks}")
    ACC = 64
    FR = 112

    def fr_ops(setidx, slot, ks):
        r = FR + 64 * setidx + 8 * ks
        so = (slot % 2) * SLOT
        wb = 11 if slot < 2 else 12
        hb = (20 if slot < 2 else 28) + ks
        return [lambda: E(f"    ds_read_b64_tr_b16 v[{r}:{r+1}], v{wb} offset:{so + ks*2048}"),
                lambda: E(f"    ds_read_b64_tr_b16 v[{r+2}:{r+3}], v{wb} offset:{so + ks*2048+512}"),
                lambda: E(f"    ds_read_b128 v[{r+4}:{r+7}], v{hb} offset:{so}")]

    def nk_of(c):
        return 8 if c < 10 else 6

    E("    v_lshrrev_b32 v6, 2, v5")
    E("    v_lshl_add_u32 v6, v4, 2, v6")
    E("    s_lshl_b32 s35, s33, 5")
    E("    v_add_u32 v6, s35, v6")
    E("    v_lshlrev_b32 v14, 7, v6")
    E("    v_bfe_u32 v6, v1, 4, 1")
    E("    v_lshlrev_b32 v6, 5, v6")
    E("    v_and_b32 v7, 3, v5")
    E("    v_lshl_add_u32 v6, v7, 3, v6")
    E("    s_lshl_b32 s35, s32, 6")
    E("    v_add_u32 v6, s35, v6")
    E("    v_add_u32 v14, v14, v6")
    E(f"    v_add_u32 v14, {FIN_YOFF}, v14")
    YR = 50
    RS = 80

    def pre_reads():
        ops = []
        for jq in range(4):
            ops.append(lambda jq=jq: E(f"    ds_read_b64_tr_b16 v[{YR+2*jq}:{YR+2*jq+1}], v14 offset:{jq*1024}"))
        for jq in range(4):
            def f(jq=jq):
                E(f"    v_xor_b32 v44, {16*jq}, v42")
                E(f"    v_xor_b32 v45, {16*jq}, v43")
                E(f"    ds_read_b64 v[{XR+2*jq}:{XR+2*jq+1}], v44")
                E(f"    ds_read_b64 v[{NR+2*jq}:{NR+2*jq+1}], v45")
            ops.append(f)
        return ops

    def pre_valu():
        ops = []
        for jq in range(4):
            t = 36
            xs = [RS + 4 * jq + e_ for e_ in range(4)]
            ns = [t + 4, t + 5, t + 6, t + 7]
            ys = [t + 8, t + 9, t + 10, t + 11]

            def f1(jq=jq, xs=xs, ns=ns, ys=ys):
                for (dst, src) in ((xs, XR + 2 * jq), (ns, NR + 2 * jq), (ys, YR + 2 * jq)):
                    E(f"    v_lshlrev_b32 v{dst[0]}, 16, v{src}")
                    E(f"    v_and_b32 v{dst[1]}, s40, v{src}")
                    E(f"    v_lshlrev_b32 v{dst[2]}, 16, v{src+1}")
                    E(f"    v_and_b32 v{dst[3]}, s40, v{src+1}")
                for e_ in range(4):
                    E(f"    v_mul_f32 v{ns[e_]}, v{ns[e_]}, v{ys[e_]}")

            def f2(jq=jq, xs=xs, ns=ns, t=t):
                round_pair(ns[0], ns[1], t + 12, 40)
                round_pair(ns[2], ns[3], t + 12, 40)
                for e_ in range(4):
                    E(f"    v_add_f32 v{xs[e_]}, v{xs[e_]}, v{ns[e_]}")
                round_pair(xs[0], xs[1], t + 12, 40)
                round_pair(xs[2], xs[3], t + 12, 40)
            ops += [f1, f2]
        return ops

    vm.wait(("dma", 0))
    E("    s_barrier")
    stamp(1, vm)
    for ks in range(8):
        for f in fr_ops(0, 0, ks):
            f()
    for f in d1[4:]:
        f()
    issue_dma(2)
    E("    s_mov_b64 exec, 1")
    E("    buffer_load_dword v38, v13, s[52:55], 0 offen")
    E("    s_mov_b64 exec, -1")
    vm.issue("pf")
    for c in range(nch):
        if c + 1 < nch:
            vm.wait(("dma", c + 1))
        E("    s_waitcnt lgkmcnt(0)")
        rd = []
        dm = []
        if c + 1 < nch:
            E("    s_barrier")
            stamp(2 + c, vm)
            for ks in range(nk_of(c + 1)):
                rd += fr_ops((c + 1) % 2, (c + 1) % NSLOT, ks)
        if c + 3 < nch:
            dm = dma_ops(c + 3)
        if c == 6:
            dm = late + dm
        if c == 8:
            dm = pre_reads()
        if c == 9:
            dm = pre_valu()
        for ks in range(nk_of(c)):
            r = FR + 64 * (c % 2) + 8 * ks
            cc = "0" if (c == 0 and ks == 0) else f"v[{ACC}:{ACC+15}]"
            E(f"    v_mfma_f32_32x32x16_bf16 v[{ACC}:{ACC+15}], v[{r}:{r+3}], v[{r+4}:{r+7}], {cc}")
            last = ks + 1 == nk_of(c)
            for _ in range(len(rd) if last else 4):
                if rd:
                    rd.pop(0)()
            for _ in range(len(dm) if last else (2 if c == 6 else 1)):
                if dm:
                    dm.pop(0)()
    stamp(12, vm)
    E("    s_nop 15")
    E("    s_nop 3")
    for jq in range(4):
        a = ACC + 4 * jq
        xs = [RS + 4 * jq + e_ for e_ in range(4)]
        round_pair(a, a + 1, 48, 40)
        round_pair(a + 2, a + 3, 48, 40)
        for e_ in range(4):
            E(f"    v_add_f32 v{xs[e_]}, v{xs[e_]}, v{a+e_}")
        o = 52 + 2 * jq
        E(f"    v_cvt_pk_bf16_f32 v{o}, v{xs[0]}, v{xs[1]}")
        E(f"    v_cvt_pk_bf16_f32 v{o+1}, v{xs[2]}, v{xs[3]}")
        E(f"    buffer_store_dwordx2 v[{o}:{o+1}], v13, s[52:55], 0 offen offset:{16*jq}")
    if DIAG:
        E("    s_waitcnt vmcnt(0)")
    stamp(13)
    stamp(31, real=True)
    E("fin_done:")
    E("    s_endpgm")


def descriptor(name, vgpr, sgpr=96):
    E(f".amdhsa_kernel {name}")
    E(f"  .amdhsa_next_free_vgpr {vgpr}")
    E(f"  .amdhsa_next_free_sgpr {sgpr}")
    E(f"  .amdhsa_accum_offset {(vgpr + 3)//4*4}")
    E("  .amdhsa_group_segment_fixed_size 0")
    E("  .amdhsa_kernarg_size 104")
    E("  .amdhsa_user_sgpr_count 2")
    E("  .amdhsa_user_sgpr_kernarg_segment_ptr 1")
    E("  .amdhsa_system_sgpr_workgroup_id_x 1")
    E(".end_amdhsa_kernel")


def main():
    hdr = open("parallel_sum__ssm_conv_h3__glu_gated_bilinear__prompt.s.ref").read().splitlines()
    for l in hdr:
        if l.startswith("; Override") or l.startswith("; grid=") or l.startswith("; @launch"):
            continue
        if not l.startswith(";"):
            break
        E(l)
    E("; @launch kernel=prep_kernel grid=(512,1,1) block=(256,1,1) lds=0")
    E(f"; @launch kernel=main_kernel grid=(512,1,1) block=(256,1,1) lds={MAIN_LDS}")
    E(f"; @launch kernel=fin_kernel grid=(256,1,1) block=(256,1,1) lds={FIN_LDS}")
    E('.amdgcn_target "amdgcn-amd-amdhsa--gfx950"')
    E(".text")
    gen_prep()
    gen_main()
    gen_fin()
    E('.section .rodata,"a"')
    E(".p2align 6")
    descriptor("prep_kernel", 256 if DIAG else 116)
    E(".p2align 6")
    descriptor("main_kernel", 256 if DIAG else 240)
    E(".p2align 6")
    descriptor("fin_kernel", 256 if DIAG else 240)
    path = sys.argv[1] if len(sys.argv) > 1 else "parallel_sum__ssm_conv_h3__glu_gated_bilinear__prompt.s"
    open(path, "w").write("\n".join(out) + "\n")
    print("wrote", path, len(out), "lines; MAIN_LDS", MAIN_LDS, "FIN_LDS", FIN_LDS, "COPY_BASE", COPY_BASE, "KV_OFF", KV_OFF, "CH_BYTES", CH_BYTES)


main()
```

```python
import sys, os

S, D, F = 2048, 512, 1376
WS_XN = 0x000000
WS_KVR = 0x200000
WS_H = 0x400000
WS_YT = 0xA00000
WS_FLAG = 0xC00000
FX_OFF = 0x0000
FK_OFF = 0x2000
FH_OFF = 0x4000
FY_OFF = 0x6000
FSH = int(os.environ.get("FSH", "4"))
FLAG_BYTES = 0x8000 << FSH
HB = 86 * 1024
H_BYTES = 64 * HB
KNAME = "parallel_sum__ssm_conv_h3__glu_gated_bilinear__prompt_kernel"
POLL_LIMIT = 200000

out = []


def E(s=""):
    out.append(s)


class VM:
    def __init__(self):
        self.q = []

    def issue(self, tag):
        self.q.append(tag)

    def wait(self, tag):
        idx = -1
        for i, t in enumerate(self.q):
            if t == tag:
                idx = i
        if idx < 0:
            return
        n = len(self.q) - 1 - idx
        assert n <= 63, n
        E(f"    s_waitcnt vmcnt({n})")
        self.q = self.q[idx + 1:]

    def wait_all(self):
        E("    s_waitcnt vmcnt(0)")
        self.q = []


DIAG = len(sys.argv) > 2 and sys.argv[2] == "diag"
STAMP_WS = 0x2000000


def stamp_init():
    if not DIAG:
        return
    E(f"    s_add_u32 s96, s88, {STAMP_WS}")
    E("    s_addc_u32 s97, s89, 0")
    E("    s_and_b32 s97, s97, 0xffff")
    E("    s_mov_b32 s98, 0x80000")
    E("    s_mov_b32 s99, 0x00020000")
    E("    s_lshl_b32 s100, s2, 2")
    E("    s_add_u32 s100, s100, s3")
    E("    s_lshl_b32 s100, s100, 7")
    E("    v_mov_b32 v254, s100")


def stamp(slot, vm=None):
    if not DIAG:
        return
    E("    s_waitcnt lgkmcnt(0)")
    E("    s_memrealtime s[100:101]")
    E("    s_waitcnt lgkmcnt(0)")
    E("    v_mov_b32 v255, s100")
    E("    s_mov_b64 s[94:95], exec")
    E("    s_mov_b64 exec, 1")
    E(f"    buffer_store_dword v255, v254, s[96:99], 0 offen offset:{4*slot}")
    E("    s_mov_b64 exec, s[94:95]")
    if vm is not None:
        vm.issue("stamp")


def stampval(slot, sg, vm=None):
    if not DIAG:
        return
    E(f"    v_mov_b32 v255, {sg}")
    E("    s_mov_b64 s[94:95], exec")
    E("    s_mov_b64 exec, 1")
    E(f"    buffer_store_dword v255, v254, s[96:99], 0 offen offset:{4*slot}")
    E("    s_mov_b64 exec, s[94:95]")
    if vm is not None:
        vm.issue("stamp")


def srd(dst, lo, hi, nbytes):
    E(f"    s_mov_b32 s{dst}, s{lo}")
    E(f"    s_and_b32 s{dst+1}, s{hi}, 0xffff")
    E(f"    s_mov_b32 s{dst+2}, {nbytes}")
    E(f"    s_mov_b32 s{dst+3}, 0x00020000")


def srd_off(dst, lo, hi, off, nbytes):
    E(f"    s_add_u32 s{dst}, s{lo}, {off}")
    E(f"    s_addc_u32 s{dst+1}, s{hi}, 0")
    E(f"    s_and_b32 s{dst+1}, s{dst+1}, 0xffff")
    E(f"    s_mov_b32 s{dst+2}, {nbytes}")
    E(f"    s_mov_b32 s{dst+3}, 0x00020000")


def wave_reduce_add(v, t):
    E("    s_nop 1")
    E(f"    v_add_f32_dpp v{t}, v{v}, v{v} quad_perm:[1,0,3,2] row_mask:0xf bank_mask:0xf")
    E("    s_nop 1")
    E(f"    v_add_f32_dpp v{v}, v{t}, v{t} quad_perm:[2,3,0,1] row_mask:0xf bank_mask:0xf")
    E("    s_nop 1")
    E(f"    v_add_f32_dpp v{t}, v{v}, v{v} row_half_mirror row_mask:0xf bank_mask:0xf")
    E("    s_nop 1")
    E(f"    v_add_f32_dpp v{v}, v{t}, v{t} row_mirror row_mask:0xf bank_mask:0xf")
    E(f"    v_mov_b32 v{t}, v{v}")
    E("    s_nop 1")
    E(f"    v_permlane16_swap_b32 v{v}, v{t}")
    E("    s_nop 1")
    E(f"    v_add_f32 v{v}, v{v}, v{t}")
    E(f"    v_mov_b32 v{t}, v{v}")
    E("    s_nop 1")
    E(f"    v_permlane32_swap_b32 v{v}, v{t}")
    E("    s_nop 1")
    E(f"    v_add_f32 v{v}, v{v}, v{t}")


def round_pair(a, b, t, mask_sgpr):
    E(f"    v_cvt_pk_bf16_f32 v{t}, v{a}, v{b}")
    E(f"    v_lshlrev_b32 v{a}, 16, v{t}")
    E(f"    v_and_b32 v{b}, s{mask_sgpr}, v{t}")


PA, PB, TK, VL8 = 248, 250, 252, 247
_lbl = [0]


def token_issue(vm):
    E(f"    buffer_load_dwordx2 v[{TK}:{TK+1}], off, s[60:63], 0")
    vm.issue("tok")


def token_get(vm):
    _lbl[0] += 1
    n = _lbl[0]
    vm.wait("tok")
    E(f"    s_mov_b32 s92, {POLL_LIMIT}")
    E(f"tok_l{n}:")
    E(f"    v_readfirstlane_b32 s90, v{TK}")
    E(f"    v_readfirstlane_b32 s91, v{TK+1}")
    E("    s_cmp_lg_u32 s90, 0")
    E(f"    s_cbranch_scc1 tok_d{n}")
    E(f"    buffer_load_dwordx2 v[{TK}:{TK+1}], off, s[60:63], 0 sc0 sc1")
    E("    s_waitcnt vmcnt(0)")
    E("    s_sub_u32 s92, s92, 1")
    E("    s_cmp_lg_u32 s92, 0")
    E(f"    s_cbranch_scc1 tok_l{n}")
    E(f"tok_d{n}:")


def flag_store(vm, soff):
    E(f"    s_lshl_b32 s93, {soff}, {FSH}")
    E("    s_mov_b64 exec, 1")
    E(f"    buffer_store_dwordx2 v[{TK}:{TK+1}], off, s[56:59], s93 sc0 sc1")
    E("    s_mov_b64 exec, -1")
    vm.issue("flag")


POLL_SLEEP = int(os.environ.get("PS", "4"))


def poll(vm, soff, mask, gap=6):
    _lbl[0] += 1
    n = _lbl[0]
    if mask == "0xffffffff":
        E("    s_mov_b32 exec_hi, 0")
    else:
        E(f"    s_mov_b64 exec, {mask}")
    E(f"    s_mov_b32 s92, {POLL_LIMIT}")
    E(f"    s_lshl_b32 s93, {soff}, {FSH}")
    E(f"poll_l{n}:")
    E(f"    buffer_load_dwordx2 v[{PA}:{PA+1}], v{VL8}, s[56:59], s93 offen sc0 sc1")
    E("    s_waitcnt vmcnt(0)")
    E(f"    v_cmp_ne_u64 vcc, s[90:91], v[{PA}:{PA+1}]")
    E("    s_cmp_eq_u64 vcc, 0")
    E(f"    s_cbranch_scc1 poll_d{n}")
    E("    s_mov_b64 exec, vcc")
    E(f"    s_sleep {POLL_SLEEP}")
    E("    s_sub_u32 s92, s92, 1")
    E("    s_cmp_lg_u32 s92, 0")
    E(f"    s_cbranch_scc1 poll_l{n}")
    E(f"poll_d{n}:")
    E("    s_mov_b64 exec, -1")
    vm.q = []


def w_touch(lo, hi, sr, vt):
    srd(44, lo, hi, D * F * 2)
    E(f"    s_lshl_b32 s38, {sr}, 2")
    E("    s_add_u32 s38, s38, s3")
    E("    s_mul_i32 s38, s38, 4*2752")
    E(f"    v_lshrrev_b32 v{vt}, 4, v1")
    E(f"    v_mul_u32_u24 v{vt}, 2752, v{vt}")
    E(f"    v_and_b32 v{vt+1}, 15, v1")
    E(f"    v_min_u32 v{vt+1}, 12, v{vt+1}")
    E(f"    v_lshlrev_b32 v{vt+1}, 7, v{vt+1}")
    E("    s_and_b32 s39, s2, 1")
    E("    s_mul_i32 s39, s39, 1536")
    E(f"    v_add_u32 v{vt+1}, s39, v{vt+1}")
    E(f"    v_min_u32 v{vt+1}, 2750, v{vt+1}")
    E(f"    v_add_u32 v{vt}, v{vt}, v{vt+1}")
    TM = os.environ.get("TM", "plain")
    if TM == "none":
        E("    s_mov_b64 exec, 1")
        E(f"    buffer_load_ushort v{vt+1}, v{vt}, s[44:47], s38 offen")
        E("    s_mov_b64 exec, -1")
    else:
        E(f"    buffer_load_ushort v{vt+1}, v{vt}, s[44:47], s38 offen {TM if TM != 'plain' else ''}")


RING = 73728
TOFF = RING


def ln_body(o):
    global out
    saved = out
    out = []
    for i in range(4):
        E(f"    v_lshlrev_b32 v{o+8+2*i}, 16, v{o+4+i}")
        E(f"    v_and_b32 v{o+9+2*i}, s40, v{o+4+i}")
    E(f"    v_add_f32 v{o+16}, v{o+8}, v{o+9}")
    E(f"    v_add_f32 v{o+17}, v{o+10}, v{o+11}")
    E(f"    v_add_f32 v{o+18}, v{o+12}, v{o+13}")
    E(f"    v_add_f32 v{o+19}, v{o+14}, v{o+15}")
    E(f"    v_add_f32 v{o+16}, v{o+16}, v{o+17}")
    E(f"    v_add_f32 v{o+18}, v{o+18}, v{o+19}")
    E(f"    v_add_f32 v{o+16}, v{o+16}, v{o+18}")
    wave_reduce_add(o+16, o+17)
    E(f"    v_mul_f32 v{o+16}, 0x3b000000, v{o+16}")
    for i in range(8):
        E(f"    v_sub_f32 v{o+20+i}, v{o+8+i}, v{o+16}")
    E(f"    v_mul_f32 v{o+18}, v{o+20}, v{o+20}")
    E(f"    v_mul_f32 v{o+19}, v{o+21}, v{o+21}")
    for i in range(2, 8, 2):
        E(f"    v_fmac_f32 v{o+18}, v{o+20+i}, v{o+20+i}")
        E(f"    v_fmac_f32 v{o+19}, v{o+21+i}, v{o+21+i}")
    E(f"    v_add_f32 v{o+18}, v{o+18}, v{o+19}")
    wave_reduce_add(o+18, o+17)
    E(f"    v_mul_f32 v{o+18}, 0x3b000000, v{o+18}")
    round_pair(o+16, o+18, o+17, 40)
    E(f"    v_add_f32 v{o+18}, 0x3727c5ac, v{o+18}")
    E(f"    v_cvt_pk_bf16_f32 v{o+17}, v{o+18}, v{o+18}")
    E(f"    v_and_b32 v{o+18}, s40, v{o+17}")
    E(f"    v_sqrt_f32 v{o+19}, v{o+18}")
    E("    s_nop 0")
    E(f"    v_rcp_f32 v{o+28}, v{o+19}")
    E(f"    v_fma_f32 v{o+29}, -v{o+19}, v{o+19}, v{o+18}")
    E(f"    v_mul_f32 v{o+28}, 0.5, v{o+28}")
    E(f"    v_fma_f32 v{o+19}, v{o+29}, v{o+28}, v{o+19}")
    E(f"    v_cvt_pk_bf16_f32 v{o+17}, v{o+19}, v{o+19}")
    E(f"    v_and_b32 v{o+19}, s40, v{o+17}")
    E(f"    v_rcp_f32 v{o+28}, v{o+19}")
    for i in range(8):
        E(f"    v_sub_f32 v{o+20+i}, v{o+8+i}, v{o+16}")
    for i in range(0, 8, 2):
        round_pair(o+20 + i, o+21 + i, o+17, 40)
    for i in range(8):
        E(f"    v_mul_f32 v{o+8+i}, v{o+20+i}, v{o+28}")
    for i in range(8):
        E(f"    v_fma_f32 v{o+30+i}, -v{o+8+i}, v{o+19}, v{o+20+i}")
    for i in range(8):
        E(f"    v_fma_f32 v{o+8+i}, v{o+30+i}, v{o+28}, v{o+8+i}")
    for i in range(4):
        E(f"    v_cvt_pk_bf16_f32 v{o+4+i}, v{o+8+2*i}, v{o+9+2*i}")
    body = out
    out = saved
    return body


def gen_gtype_path(nt, vm0):
    vm = VM()
    vm.q = list(vm0.q)
    ACC = 144
    WF = 32
    XR = 80
    P = 64 * nt
    STG = 64 * P
    NB = RING // STG
    nst = 16
    OA, OB = 140, 180

    def dma_ops(st):
        buf = st % NB
        ops = []
        for i in range(nt):
            def f(i=i):
                E(f"    s_add_u32 s38, s48, {st*32*2752}")
                E(f"    s_add_u32 m0, s43, {buf*STG + i*1024}")
                E("    s_nop 0")
                E(f"    buffer_load_dwordx4 v{16+i}, s[52:55], s38 offen lds")
                vm.issue(("dma", st))
            ops.append(f)
        return ops

    def xn_load(k):
        r = XR + 4 * (k % 16)
        E(f"    s_add_u32 s38, s41, {k*1024}")
        E(f"    buffer_load_dwordx4 v[{r}:{r+3}], v8, s[20:23], s38 offen")
        vm.issue(("xn", k))

    E("    s_lshr_b32 s49, s3, 1")
    E("    s_cmp_eq_u32 s49, 1")
    E("    s_cselect_b32 s52, s80, s78")
    E("    s_cselect_b32 s53, s81, s79")
    E("    s_and_b32 s53, s53, 0xffff")
    E(f"    s_mov_b32 s54, {D*F*2}")
    E("    s_mov_b32 s55, 0x00020000")
    E("    s_and_b32 s49, s3, 1")
    E("    s_mul_i32 s48, s49, 16*2752")
    E("    s_add_u32 s48, s48, s36")
    E(f"    s_mul_i32 s43, s3, {16*P}")
    E("    s_movk_i32 s49, 2752")
    for i in range(nt):
        E(f"    v_add_u32 v14, {64*i}, v1")
        if nt == 3:
            E("    v_mul_u32_u24 v15, 0x5556, v14")
            E("    v_lshrrev_b32 v15, 18, v15")
            E("    v_mul_u32_u24 v20, 12, v15")
        else:
            E("    v_lshrrev_b32 v15, 3, v14")
            E("    v_lshlrev_b32 v20, 3, v15")
        E("    v_sub_u32 v14, v14, v20")
        E("    v_mul_lo_u32 v15, v15, s49")
        E(f"    v_lshl_add_u32 v{16+i}, v14, 4, v15")
    NPRE = int(os.environ.get('NPRE', '0'))
    for st in range(NPRE):
        for f in dma_ops(st):
            f()
    E("    v_and_b32 v14, 15, v1")
    E("    v_lshrrev_b32 v15, 2, v14")
    E("    v_lshl_add_u32 v15, v13, 3, v15")
    E(f"    v_mul_u32_u24 v11, {P}, v15")
    E("    v_bfe_u32 v15, v1, 4, 1")
    E("    v_lshl_add_u32 v11, v15, 5, v11")
    E("    v_and_b32 v15, 3, v14")
    E("    v_lshl_add_u32 v11, v15, 3, v11")
    E(f"    v_add_u32 v15, {RING//2}, v11")
    vm.wait("x")
    stamp(1, vm)
    token_issue(vm)
    ba, bb = ln_body(OA), ln_body(OB)
    pre = [f for st in range(NPRE, NB) for f in dma_ops(st)]
    step = max(1, (len(ba) - 8) // len(pre))
    for n, (la, lb) in enumerate(zip(ba, bb)):
        E(la)
        E(lb)
        if n % step == 0 and pre:
            pre.pop(0)()
    assert not pre
    E(f"    ds_write_b128 v5, v[{OA+4}:{OA+7}]")
    E(f"    ds_write_b128 v9, v[{OB+4}:{OB+7}]")
    E("    s_waitcnt lgkmcnt(0)")
    E("    s_barrier")
    E(f"    ds_read_b128 v[{OA+4}:{OA+7}], v7")
    E(f"    ds_read_b128 v[{OB+4}:{OB+7}], v7 offset:4096")
    E("    s_waitcnt lgkmcnt(1)")
    E(f"    buffer_store_dwordx4 v[{OA+4}:{OA+7}], v6, s[20:23], s34 offen sc0 sc1")
    vm.issue("xst")
    E("    s_add_u32 s38, s34, 16384")
    E("    s_waitcnt lgkmcnt(0)")
    E(f"    buffer_store_dwordx4 v[{OB+4}:{OB+7}], v6, s[20:23], s38 offen sc0 sc1")
    vm.issue("xst")
    stamp(2, vm)
    token_get(vm)
    stamp(11, vm)
    stampval(20, "s92", vm)
    vm.wait("xst")
    stamp(3, vm)
    flag_store(vm, "s35")
    vm.wait(("dma", NB - 1))
    stamp(12, vm)
    E("    s_barrier")
    stamp(13, vm)
    poll(vm, "s37", "0xffff")
    stampval(21, "s92", vm)
    stamp(4, vm)
    E("    s_and_b32 s38, s31, 7")
    E("    s_lshl_b32 s38, s38, 12")
    E("    s_add_u32 s38, s38, s41")
    E("    v_lshlrev_b32 v21, 7, v1")
    E("    s_mov_b32 exec_hi, 0")
    E("    buffer_load_dword v10, v21, s[20:23], s38 offen")
    E("    s_mov_b64 exec, -1")
    vm.issue("pf")
    for k in range(16):
        xn_load(k)

    def fr_ops(setidx, buf, ks):
        ops = []
        for mt in range(2 * nt):
            r = WF + 24 * setidx + 4 * mt
            base = buf * STG + (mt // nt) * 32 * P + ks * 16 * P + (mt % nt) * 64
            vb = 11
            if base >= RING // 2:
                base -= RING // 2
                vb = 15
            ops.append(lambda r=r, vb=vb, base=base: E(f"    ds_read_b64_tr_b16 v[{r}:{r+1}], v{vb} offset:{base}"))
            ops.append(lambda r=r, vb=vb, base=base: E(f"    ds_read_b64_tr_b16 v[{r+2}:{r+3}], v{vb} offset:{base+4*P}"))
        return ops

    def mfma_group(setidx, k, reads, dmas):
        x = XR + 4 * (k % 16)
        reads = list(reads)
        dmas = list(dmas)
        n = 2 * nt
        rg = n // 2
        per = (len(reads) + rg - 1) // rg
        for mt in range(n):
            w = WF + 24 * setidx + 4 * mt
            a = ACC + 16 * mt
            c = "0" if k == 0 else f"v[{a}:{a+15}]"
            E(f"    v_mfma_f32_32x32x16_bf16 v[{a}:{a+15}], v[{w}:{w+3}], v[{x}:{x+3}], {c}")
            if mt < rg:
                for _ in range(per):
                    if reads:
                        reads.pop(0)()
            else:
                kk = 1 if mt + 1 < n else len(dmas)
                for _ in range(kk):
                    if dmas:
                        dmas.pop(0)()
        if k + 16 < 32:
            xn_load(k + 16)

    for f in fr_ops(0, 0, 0):
        f()
    for st in range(nst):
        buf = st % NB
        dm = dma_ops(st + NB - 1) if (st >= 1 and st + NB - 1 < nst) else []
        na = len(dm) // 2
        vm.wait(("xn", 2 * st))
        E("    s_waitcnt lgkmcnt(0)")
        mfma_group(0, 2 * st, fr_ops(1, buf, 1), dm[:na])
        if st + 1 < nst:
            vm.wait(("dma", st + 1))
        vm.wait(("xn", 2 * st + 1))
        E("    s_waitcnt lgkmcnt(0)")
        rd = []
        if st + 1 < nst:
            E("    s_barrier")
            if st % 4 == 3:
                stamp(5 + st // 4, vm)
            rd = fr_ops(0, (st + 1) % NB, 0)
        mfma_group(1, 2 * st + 1, rd, dm[na:])
    stamp(8, vm)
    E("    s_nop 15")
    for tau in range(nt):
        G = ACC + 16 * tau
        U = ACC + 16 * (nt + tau)
        T = 14
        for j in range(0, 16, 2):
            round_pair(G + j, G + j + 1, T, 40)
            round_pair(U + j, U + j + 1, T, 40)
        for j in range(16):
            E(f"    v_mul_f32 v{G+j}, v{G+j}, v{U+j}")
        PK = 32 + 8 * tau
        for j in range(8):
            E(f"    v_cvt_pk_bf16_f32 v{PK+j}, v{G+2*j}, v{G+2*j+1}")
        E("    s_nop 1")
        for pair in range(2):
            q0 = PK + 4 * pair
            E(f"    v_permlane32_swap_b32 v{q0}, v{q0+2}")
            E(f"    v_permlane32_swap_b32 v{q0+1}, v{q0+3}")
        E(f"    s_add_u32 s38, s42, {tau*2048}")
        for pair in range(2):
            q0 = PK + 4 * pair
            E(f"    buffer_store_dwordx4 v[{q0}:{q0+3}], v8, s[24:27], s38 offen offset:{pair*1024} sc0 sc1")
    stamp(9)
    E("    s_waitcnt vmcnt(0)")
    stamp(10)
    flag_store(vm, "s39")
    stamp(31)
    E("    s_endpgm")


def gen_gtype():
    vm = VM()
    E("    s_setprio 1")
    E("    s_sub_u32 s42, s2, 256")
    E("    s_lshr_b32 s33, s42, 3")
    E("    s_bfe_u32 s30, s42, 0x20001")
    E("    s_lshl_b32 s30, s30, 2")
    E("    s_lshr_b32 s31, s33, 3")
    E("    s_add_u32 s30, s30, s31")
    E("    s_and_b32 s31, s42, 1")
    E("    s_lshl_b32 s31, s31, 3")
    E("    s_and_b32 s34, s33, 7")
    E("    s_add_u32 s31, s31, s34")
    srd(16, 64, 65, S * D * 2)
    E("    s_lshl_b32 s32, s30, 17")
    E("    s_lshl_b32 s34, s31, 13")
    E("    s_add_u32 s32, s32, s34")
    E("    v_lshlrev_b32 v8, 4, v1")
    E("    v_lshl_add_u32 v4, v2, 11, v8")
    E("    buffer_load_dwordx4 v[144:147], v4, s[16:19], s32 offen")
    E("    buffer_load_dwordx4 v[184:187], v4, s[16:19], s32 offen offset:1024")
    vm.issue("x")
    vm.issue("x")
    w_touch(80, 81, "s33", 21)
    vm.issue("pf")
    srd_off(20, 88, 89, WS_XN, S * D * 2)
    srd_off(24, 88, 89, WS_H, H_BYTES)
    E("    v_lshrrev_b32 v13, 5, v1")
    E("    v_and_b32 v14, 7, v1")
    E("    v_lshlrev_b32 v15, 1, v2")
    E("    v_xor_b32 v14, v14, v15")
    E("    v_lshlrev_b32 v14, 4, v14")
    E("    v_lshl_add_u32 v5, v1, 7, v14")
    E(f"    v_add_u32 v5, {TOFF}, v5")
    E("    v_xor_b32 v9, 16, v5")
    E("    v_lshrrev_b32 v14, 3, v0")
    E("    v_and_b32 v15, 7, v0")
    E("    v_lshlrev_b32 v6, 9, v14")
    E("    v_lshl_add_u32 v6, v15, 4, v6")
    E("    v_and_b32 v20, 7, v14")
    E("    v_xor_b32 v20, v20, v15")
    E("    v_lshlrev_b32 v20, 4, v20")
    E("    v_lshl_add_u32 v7, v14, 7, v20")
    E(f"    v_add_u32 v7, {TOFF}, v7")
    E("    s_lshl_b32 s36, s30, 2")
    E("    s_lshr_b32 s34, s31, 2")
    E("    s_add_u32 s35, s36, s34")
    E("    s_lshl_b32 s34, s35, 15")
    E("    s_and_b32 s37, s31, 3")
    E("    s_lshl_b32 s38, s37, 7")
    E("    s_add_u32 s34, s34, s38")
    E("    s_lshl_b32 s35, s35, 7")
    E("    s_lshl_b32 s38, s37, 5")
    E("    s_add_u32 s35, s35, s38")
    E("    s_lshl_b32 s38, s3, 3")
    E("    s_add_u32 s35, s35, s38")
    if FX_OFF:
        E(f"    s_add_u32 s35, s35, {FX_OFF}")
    E("    s_add_u32 s36, s36, s3")
    E("    s_lshl_b32 s37, s36, 7")
    if FX_OFF:
        E(f"    s_add_u32 s37, s37, {FX_OFF}")
    E("    s_lshl_b32 s41, s36, 15")
    E("    s_lshl_b32 s39, s36, 7")
    E("    s_lshl_b32 s38, s31, 3")
    E("    s_add_u32 s39, s39, s38")
    E(f"    s_add_u32 s39, s39, {FH_OFF}")
    E(f"    s_mul_i32 s42, s36, {HB}")
    E("    s_cmp_lt_u32 s31, 11")
    E("    s_cbranch_scc0 g_path2")
    E("    s_mul_i32 s36, s31, 192")
    E("    s_mul_i32 s38, s31, 3*2048")
    E("    s_add_u32 s42, s42, s38")
    gen_gtype_path(3, vm)
    E("g_path2:")
    E("    s_lshl_b32 s36, s31, 7")
    E("    s_add_u32 s36, s36, 704")
    E("    s_lshl_b32 s38, s36, 5")
    E("    s_add_u32 s42, s42, s38")
    gen_gtype_path(2, vm)


COPY_BYTES = 4240
_order = [(1, 0), (0, 11), (2, 4), (5, 0), (4, 12), (3, 8), (6, 4), (7, 8)]
COPY_BASE = {}
_pos = 0
for _b, _beta in _order:
    while (_pos // 16) % 16 != _beta:
        _pos += 16
    COPY_BASE[_b] = _pos
    _pos += COPY_BYTES
KV_OFF = (_pos + 15) // 16 * 16
KVP = 80
CH_BYTES = (KV_OFF + 65 * KVP + 255) // 256 * 256
LDS_BYTES = 81920
TB_OFF = (KV_OFF + 127) // 128 * 128
assert TB_OFF + 4096 <= KV_OFF + 64 * KVP
assert 2 * CH_BYTES <= LDS_BYTES


def gen_ctype():
    vm = VM()
    E("c_type:")
    E("    s_setprio 2")
    E("    s_or_b32 s34, s2, s3")
    E("    s_cmp_eq_u32 s34, 0")
    E("    s_cbranch_scc0 c_notok")
    E("    s_or_b32 s90, s90, 1")
    E(f"    v_mov_b32 v{TK}, s90")
    E(f"    v_mov_b32 v{TK+1}, s91")
    E("    s_mov_b64 exec, 1")
    E(f"    buffer_store_dwordx2 v[{TK}:{TK+1}], off, s[60:63], 0 sc0 sc1")
    E("    s_mov_b64 exec, -1")
    E("c_notok:")
    srd(16, 66, 67, S * D * 2)
    srd(20, 68, 69, S * D * 2)
    srd(24, 70, 71, D * 4 * 2)
    E("    s_lshr_b32 s32, s2, 3")
    E("    s_and_b32 s33, s2, 7")
    E("    v_and_b32 v10, 31, v0")
    E("    v_lshrrev_b32 v11, 5, v0")
    E("    s_lshl_b32 s34, s32, 6")
    E("    v_lshlrev_b32 v3, 3, v11")
    E("    v_add_u32 v3, s34, v3")
    E("    s_lshl_b32 s35, s33, 5")
    E("    v_add_u32 v6, s35, v10")
    E("    v_lshlrev_b32 v3, 10, v3")
    E("    v_lshl_add_u32 v3, v6, 2, v3")
    E("    v_add_u32 v4, 4096, v3")
    E("    v_subrev_u32 v5, 3072, v3")
    E("    v_lshlrev_b32 v6, 4, v6")
    for j in range(3):
        E(f"    buffer_load_dword v{132+j}, v5, s[16:19], 0 offen offset:{1024*j}")
    for j in range(4):
        E(f"    buffer_load_dword v{135+j}, v3, s[16:19], 0 offen offset:{1024*j}")
    for j in range(4):
        E(f"    buffer_load_dword v{139+j}, v4, s[16:19], 0 offen offset:{1024*j}")
    for j in range(4):
        E(f"    buffer_load_dword v{144+j}, v3, s[20:23], 0 offen offset:{1024*j}")
    for j in range(4):
        E(f"    buffer_load_dword v{148+j}, v4, s[20:23], 0 offen offset:{1024*j}")
    E("    buffer_load_dwordx4 v[128:131], v6, s[24:27], 0 offen")
    for _ in range(20):
        vm.issue("kv")
    E("    s_lshr_b32 s31, s3, 1")
    E("    s_lshl_b32 s30, s33, 6")
    E("    s_lshl_b32 s34, s32, 1")
    E("    s_add_u32 s30, s30, s34")
    E("    s_add_u32 s30, s30, s31")
    E("    s_mov_b32 s50, s32")
    E("    s_mov_b32 s51, s33")
    E("    s_and_b32 s32, s3, 1")
    E("    s_lshl_b32 s33, s30, 12")
    srd_off(44, 72, 73, "s33", 4096)
    E(f"    s_mul_i32 s35, s31, {CH_BYTES}")
    E("    s_lshl_b32 s36, s32, 6")
    E("    v_add_u32 v3, s36, v1")
    E("    v_lshlrev_b32 v4, 5, v3")
    E("    v_subrev_u32 v5, 16, v4")
    E("    buffer_load_dwordx4 v[16:19], v5, s[44:47], 0 offen")
    E("    buffer_load_dwordx4 v[20:23], v4, s[44:47], 0 offen")
    E("    buffer_load_dwordx4 v[24:27], v4, s[44:47], 0 offen offset:16")
    for _ in range(3):
        vm.issue("kf")
    srd(44, 74, 75, D * 2)
    E("    s_lshl_b32 s36, s30, 1")
    E("    v_mov_b32 v7, s36")
    E("    buffer_load_ushort v9, v7, s[44:47], 0 offen")
    vm.issue("kf")
    w_touch(78, 79, "s50", 29)
    vm.issue("pf")
    srd_off(8, 88, 89, WS_KVR, S * D * 2)
    E("    v_lshrrev_b32 v12, 4, v10")
    E(f"    v_mul_u32_u24 v12, {CH_BYTES}, v12")
    E("    v_and_b32 v13, 15, v10")
    E("    v_lshl_add_u32 v12, v13, 8, v12")
    E("    v_sub_u32 v13, 7, v11")
    E("    v_and_b32 v14, 7, v10")
    E("    v_xor_b32 v13, v13, v14")
    E("    v_lshl_add_u32 v12, v13, 4, v12")
    E(f"    v_add_u32 v12, {TB_OFF}, v12")
    E("    v_lshrrev_b32 v13, 3, v1")
    E("    v_and_b32 v14, 7, v1")
    E("    v_lshrrev_b32 v15, 4, v1")
    E("    v_xor_b32 v15, v15, v14")
    E("    v_lshlrev_b32 v15, 4, v15")
    E("    v_lshl_add_u32 v15, v13, 7, v15")
    E(f"    s_mul_i32 s36, s31, {CH_BYTES}")
    E("    s_lshl_b32 s37, s32, 11")
    E("    s_add_u32 s36, s36, s37")
    E(f"    s_add_u32 s36, s36, {TB_OFF}")
    E("    v_add_u32 v15, s36, v15")
    E("    v_xor_b32 v28, 64, v15")
    E("    v_lshlrev_b32 v13, 12, v13")
    E("    v_lshl_add_u32 v13, v14, 4, v13")
    E("    s_lshl_b32 s36, s51, 18")
    E("    s_lshl_b32 s37, s3, 16")
    E("    s_add_u32 s36, s36, s37")
    E("    s_lshl_b32 s37, s50, 7")
    E("    s_sub_u32 s37, 3968, s37")
    E("    s_add_u32 s48, s36, s37")
    E("    s_lshl_b32 s36, s51, 10")
    E(f"    s_add_u32 s36, s36, {FK_OFF}")
    E("    s_lshl_b32 s37, s3, 8")
    E("    s_add_u32 s49, s36, s37")
    E("    s_lshl_b32 s37, s50, 3")
    E("    s_add_u32 s49, s49, s37")
    E("    s_lshr_b32 s37, s50, 3")
    E("    s_lshl_b32 s37, s37, 8")
    E("    s_add_u32 s41, s36, s37")
    vm.wait("kv")
    stamp(1, vm)
    token_issue(vm)
    for c in range(2):
        for d in range(2):
            E(f"    v_lshlrev_b32 v{32+4*c+2*d}, 16, v{128+2*c+d}")
            E(f"    v_and_b32 v{33+4*c+2*d}, s40, v{128+2*c+d}")
    for j in range(11):
        E(f"    v_lshlrev_b32 v{40+j}, 16, v{132+j}")
        E(f"    v_and_b32 v{52+j}, s40, v{132+j}")
    for j in range(8):
        E(f"    v_lshlrev_b32 v{64+j}, 16, v{144+j}")
        E(f"    v_and_b32 v{72+j}, s40, v{144+j}")
    for j in range(8):
        A0, A1, B0, B1, T = 96, 97, 98, 99, 100
        E(f"    v_mul_f32 v{A0}, v{40+j}, v35")
        E(f"    v_mul_f32 v{A1}, v{52+j}, v39")
        E(f"    v_mul_f32 v{B0}, v{41+j}, v34")
        E(f"    v_mul_f32 v{B1}, v{53+j}, v38")
        round_pair(A0, A1, T, 40)
        round_pair(B0, B1, T, 40)
        E(f"    v_add_f32 v{A0}, v{A0}, v{B0}")
        E(f"    v_add_f32 v{A1}, v{A1}, v{B1}")
        E(f"    v_mul_f32 v{B0}, v{42+j}, v33")
        E(f"    v_mul_f32 v{B1}, v{54+j}, v37")
        round_pair(A0, A1, T, 40)
        round_pair(B0, B1, T, 40)
        E(f"    v_add_f32 v{A0}, v{A0}, v{B0}")
        E(f"    v_add_f32 v{A1}, v{A1}, v{B1}")
        E(f"    v_mul_f32 v{B0}, v{43+j}, v32")
        E(f"    v_mul_f32 v{B1}, v{55+j}, v36")
        round_pair(A0, A1, T, 40)
        round_pair(B0, B1, T, 40)
        E(f"    v_add_f32 v{A0}, v{A0}, v{B0}")
        E(f"    v_add_f32 v{A1}, v{A1}, v{B1}")
        round_pair(A0, A1, T, 40)
        E(f"    v_mul_f32 v{80+j}, v{A0}, v{64+j}")
        E(f"    v_mul_f32 v{88+j}, v{A1}, v{72+j}")
    for c in range(2):
        for jj in range(4):
            E(f"    v_cvt_pk_bf16_f32 v{104+4*c+jj}, v{80+8*c+7-2*jj}, v{80+8*c+6-2*jj}")
    E("    ds_write_b128 v12, v[104:107]")
    E("    ds_write_b128 v12, v[108:111] offset:128")
    E("    s_waitcnt lgkmcnt(0)")
    E("    s_barrier")
    E("    ds_read_b128 v[104:107], v15")
    E("    ds_read_b128 v[108:111], v28 offset:1024")
    E("    s_add_u32 s36, s48, 32768")
    E("    s_waitcnt lgkmcnt(1)")
    E("    buffer_store_dwordx4 v[104:107], v13, s[8:11], s48 offen sc0 sc1")
    E("    s_waitcnt lgkmcnt(0)")
    E("    buffer_store_dwordx4 v[108:111], v13, s[8:11], s36 offen sc0 sc1")
    vm.issue("kst")
    vm.issue("kst")
    stamp(2, vm)
    E("    s_barrier")
    E("    s_add_u32 s34, s33, %d" % WS_KVR)
    srd_off(20, 88, 89, "s34", 4096)
    E("    s_add_u32 s34, s33, %d" % WS_YT)
    srd_off(24, 88, 89, "s34", 4096)
    E("    v_mov_b32 v36, 0")
    E("    v_mov_b32 v37, 0")
    E("    v_mov_b32 v38, 0")
    E("    v_mov_b32 v39, 0")
    E("    v_lshlrev_b32 v7, 4, v1")
    E("    v_add_u32 v7, s35, v7")
    E("    s_mov_b64 exec, 0x7f")
    for b in range(8):
        E(f"    ds_write_b128 v7, v[36:39] offset:{COPY_BASE[b]}")
    E("    s_mov_b64 exec, 0xf")
    E(f"    ds_write_b128 v7, v[36:39] offset:{KV_OFF + 64*KVP}")
    E("    s_mov_b64 exec, -1")
    E("    v_lshlrev_b32 v6, 4, v3")
    E("    v_lshlrev_b32 v7, 5, v3")
    E("    v_add_u32 v7, s35, v7")
    E("    v_lshrrev_b32 v8, 2, v3")
    E(f"    v_mul_u32_u24 v8, {KVP}, v8")
    E("    v_and_b32 v10, 3, v3")
    E("    v_lshl_add_u32 v8, v10, 4, v8")
    E("    v_add_u32 v8, s35, v8")
    E("    v_and_b32 v3, 31, v1")
    E("    v_lshrrev_b32 v4, 5, v1")
    E("    v_add_u32 v5, 1, v3")
    E("    v_and_b32 v14, 7, v5")
    E("    v_lshrrev_b32 v5, 3, v5")
    E("    v_sub_u32 v5, v5, v4")
    E("    v_add_u32 v5, 1, v5")
    E("    v_lshlrev_b32 v5, 4, v5")
    E("    v_mov_b32 v10, 0")
    for b in range(8):
        E(f"    v_cmp_eq_u32 vcc, {b}, v14")
        E(f"    v_mov_b32 v11, {COPY_BASE[b]}")
        E("    s_nop 0")
        E("    v_cndmask_b32 v10, v10, v11, vcc")
    E("    v_add_u32 v10, v10, v5")
    E("    v_add_u32 v10, s35, v10")
    E("    v_sub_u32 v5, 63, v3")
    E(f"    v_mul_u32_u24 v5, {KVP}, v5")
    E("    v_lshlrev_b32 v14, 4, v4")
    E("    v_sub_u32 v5, v5, v14")
    E(f"    s_add_u32 s36, s35, {KV_OFF + 16}")
    E("    v_add_u32 v11, s36, v5")
    E(f"    v_subrev_u32 v15, {32*KVP}, v11")
    E(f"    s_add_u32 s36, s36, {KVP*64}")
    E("    v_sub_u32 v12, s36, v14")
    vm.wait("kf")
    for u in range(2):
        e = 16 + 4 * u
        for b in range(8):
            off = COPY_BASE[b] + 112 + 16 * u
            if b % 2 == 0 and (b // 2) % 2 == 0:
                r = e + b // 2
                E(f"    ds_write_b128 v7, v[{r}:{r+3}] offset:{off}")
            else:
                t = 40 + 4 * ((u * 8 + b) % 4)
                for d in range(4):
                    if b % 2 == 0:
                        E(f"    v_mov_b32 v{t+d}, v{e + b//2 + d}")
                    else:
                        be = (b - 1) // 2
                        E(f"    v_alignbyte_b32 v{t+d}, v{e+be+d+1}, v{e+be+d}, 2")
                E(f"    ds_write_b128 v7, v[{t}:{t+3}] offset:{off}")
    E(f"    ds_write_b128 v7, v[24:27] offset:{COPY_BASE[0] + 112 + 32}")
    token_get(vm)
    stampval(20, "s92", vm)
    vm.wait("kst")
    stamp(3, vm)
    flag_store(vm, "s49")
    poll(vm, "s41", "0xffffffff")
    stampval(21, "s92", vm)
    stamp(4, vm)
    E("    buffer_load_dwordx4 v[28:31], v6, s[20:23], 0 offen")
    E("    buffer_load_dwordx4 v[32:35], v6, s[20:23], 0 offen offset:2048")
    E("    s_waitcnt vmcnt(1)")
    E(f"    ds_write_b128 v8, v[28:31] offset:{KV_OFF}")
    E("    s_waitcnt vmcnt(0)")
    E(f"    ds_write_b128 v8, v[32:35] offset:{KV_OFF + 32*KVP}")
    vm.q = []
    E("    s_waitcnt lgkmcnt(0)")
    E("    s_barrier")
    stamp(5)
    FR = 64
    ACC = 192

    def fr(setidx, slot):
        return FR + 64 * setidx + 4 * slot

    def op_A(setidx, slot, t):
        r = fr(setidx, slot)
        return lambda: E(f"    ds_read_b128 v[{r}:{r+3}], v10 offset:{32*(t+3)}")

    def ops_B(setidx, slot, d, c):
        def f():
            E(f"    v_add_u32 v13, {KVP*d}, v{11 if c == 0 else 15}")
            E("    v_min_u32 v13, v13, v12")
            for q in range(2):
                r = fr(setidx, slot + q)
                E(f"    ds_read_b128 v[{r}:{r+3}], v13 offset:{32*(1-q)}")
        return f

    def loads(it, setidx):
        kind, d0 = it
        ops = []
        if kind == "X":
            for e_ in range(2):
                for q in range(2):
                    ops.append(op_A(setidx, 2 * e_ + q, 2 * (d0 + e_) - q))
                for c in range(2):
                    ops.append(ops_B(setidx, 4 + 4 * e_ + 2 * c, d0 + e_, c))
        else:
            for e_ in range(4):
                for q in range(2):
                    ops.append(op_A(setidx, 2 * e_ + q, 2 * (d0 + e_) - q))
                ops.append(ops_B(setidx, 8 + 2 * e_, d0 + e_, 1))
        return ops

    def mfmas(it, setidx):
        kind, d0 = it
        lst = []
        if kind == "X":
            for e_ in range(2):
                for q in range(2):
                    for c in range(2):
                        lst.append((c, fr(setidx, 2 * e_ + q), fr(setidx, 4 + 4 * e_ + 2 * c + q)))
        else:
            for e_ in range(4):
                for q in range(2):
                    lst.append((1 + q, fr(setidx, 2 * e_ + q), fr(setidx, 8 + 2 * e_ + q)))
        return lst

    def conv_loop(its, pf_at):
        started = set()
        for f in loads(its[0], 0):
            f()
        for n, it in enumerate(its):
            E("    s_waitcnt lgkmcnt(0)")
            nxt = loads(its[n + 1], (n + 1) % 2) if n + 1 < len(its) else []
            per = (len(nxt) + 4) // 5
            ms = mfmas(it, n % 2)
            for k, (acc, a, b) in enumerate(ms):
                A = ACC + 16 * acc
                c = f"v[{A}:{A+15}]" if acc in started else "0"
                started.add(acc)
                E(f"    v_mfma_f32_32x32x16_bf16 v[{A}:{A+15}], v[{a}:{a+3}], v[{b}:{b+3}], {c}")
                for _ in range(per if k + 1 < len(ms) else len(nxt)):
                    if nxt:
                        nxt.pop(0)()
            if n == pf_at:
                srd(52, 82, 83, F * D * 2)
                E("    s_mul_i32 s48, s50, 344*128")
                E("    v_lshlrev_b32 v60, 7, v0")
                E("    buffer_load_dword v61, v60, s[52:55], s48 offen")
                E("    v_min_u32 v60, 87, v0")
                E("    v_lshlrev_b32 v60, 7, v60")
                E("    s_add_u32 s48, s48, 256*128")
                E("    buffer_load_dword v61, v60, s[52:55], s48 offen")

    E("    s_cmp_eq_u32 s32, 0")
    E("    s_cbranch_scc0 conv_l1")
    conv_loop([("X", d) for d in range(0, 24, 2)], 0)
    E("    s_branch conv_le")
    E("conv_l1:")
    conv_loop([("X", d) for d in range(24, 32, 2)] + [("Y", d) for d in range(32, 64, 4)], 0)
    E("    s_nop 15")
    E("    s_nop 3")
    for j in range(16):
        E(f"    v_add_f32 v{ACC+16+j}, v{ACC+16+j}, v{ACC+32+j}")
    E("conv_le:")
    stamp(6)
    E("    s_barrier")
    E("    v_lshlrev_b32 v13, 4, v1")
    E("    v_add_u32 v13, s35, v13")
    E("    s_lshl_b32 s36, s32, 12")
    E("    v_add_u32 v14, s36, v13")
    E("    s_xor_b32 s36, s36, 4096")
    E("    v_add_u32 v13, s36, v13")
    E("    s_nop 7")
    E("    s_cmp_eq_u32 s32, 0")
    E("    s_cbranch_scc1 conv_hw0")
    for jq in range(4):
        E(f"    ds_write_b128 v13, v[{ACC+4*jq}:{ACC+4*jq+3}] offset:{1024*jq}")
    for j in range(16):
        E(f"    v_mov_b32 v{64+j}, v{ACC+16+j}")
    E("    s_branch conv_x")
    E("conv_hw0:")
    for jq in range(4):
        E(f"    ds_write_b128 v13, v[{ACC+16+4*jq}:{ACC+16+4*jq+3}] offset:{1024*jq}")
    for j in range(16):
        E(f"    v_mov_b32 v{64+j}, v{ACC+j}")
    E("conv_x:")
    E("    s_waitcnt lgkmcnt(0)")
    E("    s_barrier")
    for jq in range(4):
        E(f"    ds_read_b128 v[{80+4*jq}:{80+4*jq+3}], v14 offset:{1024*jq}")
    E("    v_sub_u32 v5, 63, v3")
    E(f"    v_mul_u32_u24 v5, {KVP}, v5")
    E("    v_lshlrev_b32 v6, 3, v4")
    E("    v_sub_u32 v5, v5, v6")
    E(f"    s_mul_i32 s36, s32, {32*KVP}")
    E(f"    s_sub_u32 s36, {KV_OFF + 8}, s36")
    E("    s_add_u32 s36, s36, s35")
    E("    v_add_u32 v5, s36, v5")
    for jq in range(4):
        E(f"    ds_read_b64 v[{96+2*jq}:{96+2*jq+1}], v5 offset:{16*(3-jq)}")
    E("    v_lshlrev_b32 v6, 6, v3")
    E("    v_lshl_add_u32 v6, v4, 3, v6")
    E("    s_lshl_b32 s36, s32, 11")
    E("    v_add_u32 v6, s36, v6")
    E("    v_lshlrev_b32 v9, 16, v9")
    E("    s_waitcnt lgkmcnt(0)")
    E("    s_barrier")
    for j in range(16):
        E(f"    v_add_f32 v{64+j}, v{64+j}, v{80+j}")
    vm.q = ["pf", "pf"]
    for jq in range(4):
        k0, k1, k2, k3 = 104, 105, 106, 107
        E(f"    v_and_b32 v{k0}, s40, v{97+2*jq}")
        E(f"    v_lshlrev_b32 v{k1}, 16, v{97+2*jq}")
        E(f"    v_and_b32 v{k2}, s40, v{96+2*jq}")
        E(f"    v_lshlrev_b32 v{k3}, 16, v{96+2*jq}")
        for kk in (k0, k1, k2, k3):
            E(f"    v_mul_f32 v{kk}, v{kk}, v9")
        round_pair(k0, k1, 108, 40)
        round_pair(k2, k3, 108, 40)
        y = 64 + 4 * jq
        round_pair(y, y + 1, 108, 40)
        round_pair(y + 2, y + 3, 108, 40)
        for e_, kk in enumerate((k0, k1, k2, k3)):
            E(f"    v_add_f32 v{y+e_}, v{y+e_}, v{kk}")
        E(f"    v_cvt_pk_bf16_f32 v{110+2*jq}, v{y}, v{y+1}")
        E(f"    v_cvt_pk_bf16_f32 v{111+2*jq}, v{y+2}, v{y+3}")
        E(f"    buffer_store_dwordx2 v[{110+2*jq}:{111+2*jq}], v6, s[24:27], 0 offen offset:{16*jq} sc0 sc1")
        vm.issue("yst")
    stamp(7, vm)
    E("    s_lshl_b32 s36, s32, 12")
    E("    s_lshl_b32 s37, s30, 3")
    E("    s_add_u32 s49, s36, s37")
    E(f"    s_add_u32 s49, s49, {FY_OFF}")
    gen_phase_c(vm)


def gen_phase_c(vm):
    RS = 16
    WT = 32
    HF = 48
    NH = 5
    WREG = 88
    NR = 12
    ACC = 184
    ACC = 183 - 0
    ACC = 184
    NK = 22
    REG = 20480
    global VL8
    E(f"    v_mov_b32 v15, v{VL8}")
    VL8_saved = VL8
    VL8 = 15
    E("    s_and_b32 s30, s50, 3")
    E("    s_lshl_b32 s31, s51, 2")
    E("    s_add_u32 s30, s30, s31")
    E("    s_lshr_b32 s31, s50, 2")
    E("    s_and_b32 s32, s3, 1")
    E("    s_lshr_b32 s33, s3, 1")
    srd(16, 82, 83, F * D * 2)
    srd_off(20, 88, 89, WS_H, H_BYTES)
    E("    s_mul_i32 s34, s3, 22")
    E("    s_cmp_eq_u32 s3, 3")
    E("    s_cselect_b32 s34, 65, s34")
    E("    v_lshrrev_b32 v3, 3, v1")
    E("    v_lshlrev_b32 v10, 10, v3")
    E("    v_and_b32 v4, 7, v1")
    E("    v_bfe_u32 v5, v1, 4, 1")
    E("    v_lshlrev_b32 v5, 2, v5")
    E("    v_xor_b32 v4, v4, v5")
    E("    v_lshl_add_u32 v10, v4, 4, v10")
    E("    s_lshl_b32 s35, s31, 7")
    E("    v_add_u32 v10, s35, v10")
    E("    s_lshl_b32 s41, s34, 14")
    E(f"    s_mul_i32 s37, s3, {REG}")

    def wdma(i, slot):
        for j in range(2):
            E(f"    s_add_u32 s38, s41, {(16*i + 8*j)*1024}")
            E(f"    s_add_u32 m0, s37, {slot*2048 + j*1024}")
            E("    s_nop 0")
            E("    buffer_load_dwordx4 v10, s[16:19], s38 offen lds")
            vm.issue(("w", i))

    for i in range(10):
        wdma(i, i)
    E("    v_lshrrev_b32 v4, 5, v1")
    E("    v_and_b32 v5, 15, v1")
    E("    v_lshrrev_b32 v6, 2, v5")
    E("    v_lshl_add_u32 v6, v4, 3, v6")
    E("    v_lshlrev_b32 v11, 7, v6")
    E("    v_bfe_u32 v6, v1, 4, 1")
    E("    v_lshlrev_b32 v6, 5, v6")
    E("    v_and_b32 v7, 3, v5")
    E("    v_lshl_add_u32 v6, v7, 3, v6")
    E("    v_bfe_u32 v7, v1, 3, 1")
    E("    v_lshlrev_b32 v7, 6, v7")
    E("    v_xor_b32 v6, v6, v7")
    E("    v_add_u32 v11, v11, v6")
    E("    v_add_u32 v11, s37, v11")
    E("    v_xor_b32 v12, 64, v11")

    def wread(dst, slot):
        for wd in range(2):
            r = dst + 4 * wd
            E(f"    ds_read_b64_tr_b16 v[{r}:{r+1}], v{11+wd} offset:{slot*2048}")
            E(f"    ds_read_b64_tr_b16 v[{r+2}:{r+3}], v{11+wd} offset:{slot*2048+512}")

    srd(24, 64, 65, S * D * 2)
    srd_off(44, 88, 89, WS_XN, S * D * 2)
    srd_off(4, 88, 89, WS_YT, S * D * 2)
    srd(52, 84, 85, S * D * 2)
    E("    v_and_b32 v3, 31, v1")
    E("    v_lshlrev_b32 v13, 10, v3")
    E("    v_lshl_add_u32 v13, v4, 3, v13")
    E("    s_lshl_b32 s35, s30, 1")
    E("    s_add_u32 s35, s35, s32")
    E("    s_lshl_b32 s36, s35, 15")
    E("    s_lshl_b32 s38, s31, 7")
    E("    s_add_u32 s36, s36, s38")
    E("    s_lshl_b32 s38, s33, 6")
    E("    s_add_u32 s36, s36, s38")
    E("    v_add_u32 v13, s36, v13")
    XT, NT, YR = HF, HF + 8, HF + 16
    for q in range(4):
        E(f"    buffer_load_dwordx2 v[{XT+2*q}:{XT+2*q+1}], v13, s[24:27], 0 offen offset:{16*q}")
        vm.issue("x")
    vm.wait("yst")
    flag_store(vm, "s49")
    stamp(8, vm)
    for i in range(10):
        vm.wait(("w", i))
        wread(WREG + 8 * i, i)
        if i == 1:
            E("    s_waitcnt lgkmcnt(0)")
            wdma(10, 0)
            wdma(11, 1)
    E("    s_waitcnt lgkmcnt(0)")
    for i in range(12, 20):
        wdma(i, i - 10)
    for i in (10, 11):
        vm.wait(("w", i))
        wread(WREG + 8 * i, i - 10)
    E("    s_waitcnt lgkmcnt(0)")
    wdma(21, 1)
    stamp(9, vm)
    E("    s_lshl_b32 s36, s35, 7")
    if FX_OFF:
        E(f"    s_add_u32 s36, s36, {FX_OFF}")
    poll(vm, "s36", "0xffff", gap=0)
    E("    v_lshlrev_b32 v6, 4, v3")
    E("    v_lshl_add_u32 v6, v4, 3, v6")
    E("    s_lshl_b32 s36, s35, 15")
    E("    s_lshl_b32 s38, s31, 12")
    E("    s_add_u32 s36, s36, s38")
    E("    s_lshl_b32 s38, s33, 11")
    E("    s_add_u32 s36, s36, s38")
    for q in range(4):
        E(f"    buffer_load_dwordx2 v[{NT+2*q}:{NT+2*q+1}], v6, s[44:47], s36 offen offset:{512*q}")
        vm.issue("xn")
    E("    s_lshr_b32 s36, s30, 4")
    E("    s_lshl_b32 s36, s36, 12")
    E("    s_lshl_b32 s38, s31, 9")
    E("    s_add_u32 s36, s36, s38")
    E("    s_lshl_b32 s38, s33, 8")
    E("    s_add_u32 s36, s36, s38")
    E(f"    s_add_u32 s36, s36, {FY_OFF}")
    E("    v_lshrrev_b32 v6, 2, v1")
    E("    v_lshlrev_b32 v6, 12, v6")
    E("    v_and_b32 v7, 3, v1")
    E("    v_lshl_add_u32 v6, v7, 4, v6")
    E("    s_lshl_b32 s38, s31, 1")
    E("    s_add_u32 s38, s38, s33")
    E("    s_lshl_b32 s38, s38, 17")
    E("    s_lshl_b32 s39, s35, 6")
    E("    s_add_u32 s39, s39, s38")
    E("    v_lshrrev_b32 v7, 2, v5")
    E("    v_lshl_add_u32 v7, v4, 2, v7")
    E("    v_lshlrev_b32 v14, 6, v7")
    E("    v_bfe_u32 v7, v1, 4, 1")
    E("    v_lshl_add_u32 v14, v7, 5, v14")
    E("    v_and_b32 v7, 3, v5")
    E("    v_lshl_add_u32 v14, v7, 3, v14")
    E("    v_add_u32 v14, s37, v14")
    poll(vm, "s36", "0xffffffff")
    stamp(10, vm)
    for j in range(2):
        E(f"    s_add_u32 s38, s39, {16*4096*j}")
        E(f"    s_add_u32 m0, s37, {1024*j}")
        E("    s_nop 0")
        E("    buffer_load_dwordx4 v6, s[4:7], s38 offen lds")
        vm.issue("y")
    vm.wait("y")
    for q in range(4):
        E(f"    ds_read_b64_tr_b16 v[{YR+2*q}:{YR+2*q+1}], v14 offset:{q*512}")
    E("    s_waitcnt lgkmcnt(0)")
    wdma(20, 0)
    for q in range(4):
        t = HF + 24
        xs = [RS + 4 * q + e_ for e_ in range(4)]
        ns = [t + e_ for e_ in range(4)]
        ys = [t + 4 + e_ for e_ in range(4)]
        for (dst, src) in ((xs, XT + 2 * q), (ns, NT + 2 * q), (ys, YR + 2 * q)):
            E(f"    v_lshlrev_b32 v{dst[0]}, 16, v{src}")
            E(f"    v_and_b32 v{dst[1]}, s40, v{src}")
            E(f"    v_lshlrev_b32 v{dst[2]}, 16, v{src+1}")
            E(f"    v_and_b32 v{dst[3]}, s40, v{src+1}")
        for e_ in range(4):
            E(f"    v_mul_f32 v{ns[e_]}, v{ns[e_]}, v{ys[e_]}")
        round_pair(ns[0], ns[1], t + 8, 40)
        round_pair(ns[2], ns[3], t + 8, 40)
        for e_ in range(4):
            E(f"    v_add_f32 v{xs[e_]}, v{xs[e_]}, v{ns[e_]}")
        round_pair(xs[0], xs[1], t + 8, 40)
        round_pair(xs[2], xs[3], t + 8, 40)
    E("    s_lshl_b32 s36, s30, 8")
    E(f"    s_add_u32 s36, s36, {FH_OFF}")
    masks = []
    for lo, hi in ((0, 3), (3, 7), (7, 10), (10, 15)):
        m16 = ((1 << (hi + 1)) - 1) & ~((1 << lo) - 1)
        masks.append(m16 | (m16 << 16))
    E(f"    s_mov_b32 s44, {masks[0]:#x}")
    for w in range(1, 4):
        E(f"    s_cmp_eq_u32 s3, {w}")
        E(f"    s_cselect_b32 s44, {masks[w]:#x}, s44")
    E("    s_mov_b32 s45, 0")
    E(f"    s_mul_i32 s42, s30, {2*HB}")
    E("    s_lshl_b32 s38, s34, 10")
    E("    s_add_u32 s42, s42, s38")
    E(f"    s_add_u32 s43, s42, {HB}")
    E("    v_lshlrev_b32 v8, 4, v1")
    stamp(11, vm)
    poll(vm, "s36", "s[44:45]")
    stamp(12, vm)

    def hload(i):
        r = HF + 8 * (i % NH)
        if i % 4 == 0 and i:
            E("    s_add_u32 s42, s42, 4096")
            E("    s_add_u32 s43, s43, 4096")
        off = (i % 4) * 1024
        if i == NK - 1:
            assert off == 1024
            E("    s_cmp_lt_u32 s3, 2")
            E("    s_cselect_b32 s38, 1024, 0")
            E("    s_add_u32 s42, s42, s38")
            E("    s_add_u32 s43, s43, s38")
            off = 0
        for e_ in range(2):
            E(f"    buffer_load_dwordx4 v[{r+4*e_}:{r+4*e_+3}], v8, s[20:23], s{42+e_} offen offset:{off}")
            vm.issue(("h", i))

    E("    s_mul_i32 s38, s31, 44")
    E("    v_add_u32 v6, s38, v1")
    E("    v_cmp_le_u32 vcc, 176, v6")
    E("    v_subrev_u32 v7, 176, v6")
    E("    v_cndmask_b32 v6, v6, v7, vcc")
    E("    s_cmp_lt_u32 s3, 2")
    E("    s_cselect_b32 s38, 8, 0")
    E("    s_add_u32 s38, s38, 167")
    E("    v_min_u32 v6, s38, v6")
    E("    v_lshlrev_b32 v6, 7, v6")
    E(f"    v_mov_b32 v7, {HB}")
    E("    v_cndmask_b32 v7, 0, v7, vcc")
    E("    v_add_u32 v6, v6, v7")
    E("    s_mov_b32 exec_hi, 0xfff")
    E("    buffer_load_dword v7, v6, s[20:23], s42 offen")
    E("    s_mov_b64 exec, -1")
    vm.issue("pf")
    for i in range(NH):
        hload(i)

    def wsrc(i):
        return WREG + 8 * i if i < NR else WT + 8 * (i % 2)

    def wslot(i):
        return i - 10 if i < 20 else i - 20

    for i in range(NK):
        if i == NK - 1:
            E("    s_cmp_ge_u32 s3, 2")
            E("    s_cbranch_scc1 pc_skip")
        vm.wait(("h", i))
        if i >= NR:
            E("    s_waitcnt lgkmcnt(0)")
        if NR <= i + 1 < NK:
            wread(WT + 8 * ((i + 1) % 2), wslot(i + 1))
        h = HF + 8 * (i % NH)
        w = wsrc(i)
        for wd in range(2):
            for wm in range(2):
                a = ACC + 16 * (2 * wd + wm)
                c = "0" if i == 0 else f"v[{a}:{a+15}]"
                E(f"    v_mfma_f32_32x32x16_bf16 v[{a}:{a+15}], v[{w+4*wd}:{w+4*wd+3}], v[{h+4*wm}:{h+4*wm+3}], {c}")
        if i + NH < NK:
            hload(i + NH)
    E("pc_skip:")
    stamp(13)
    E("    s_waitcnt vmcnt(0) lgkmcnt(0)")
    E("    v_add_u32 v6, s37, v8")
    E("    s_lshl_b32 s36, s3, 12")
    E("    v_add_u32 v7, s36, v8")
    E("    s_nop 15")
    E("    s_nop 3")
    for q in range(4):
        for jq in range(4):
            a = ACC + 16 * q + 4 * jq
            E(f"    ds_write_b128 v6, v[{a}:{a+3}] offset:{q*4096 + jq*1024}")
    E("    s_waitcnt lgkmcnt(0)")
    E("    s_barrier")
    PS = WREG
    for w in range(4):
        for jq in range(4):
            r = PS + 16 * w + 4 * jq
            E(f"    ds_read_b128 v[{r}:{r+3}], v7 offset:{w*REG + jq*1024}")
    E("    s_waitcnt lgkmcnt(8)")
    for j in range(16):
        E(f"    v_add_f32 v{PS+j}, v{PS+j}, v{PS+16+j}")
    E("    s_waitcnt lgkmcnt(0)")
    for j in range(16):
        E(f"    v_add_f32 v{PS+32+j}, v{PS+32+j}, v{PS+48+j}")
    for j in range(16):
        E(f"    v_add_f32 v{PS+j}, v{PS+j}, v{PS+32+j}")
    for jq in range(4):
        a = PS + 4 * jq
        xs = [RS + 4 * jq + e_ for e_ in range(4)]
        round_pair(a, a + 1, 48, 40)
        round_pair(a + 2, a + 3, 48, 40)
        for e_ in range(4):
            E(f"    v_add_f32 v{xs[e_]}, v{xs[e_]}, v{a+e_}")
        o = 52 + 2 * jq
        E(f"    v_cvt_pk_bf16_f32 v{o}, v{xs[0]}, v{xs[1]}")
        E(f"    v_cvt_pk_bf16_f32 v{o+1}, v{xs[2]}, v{xs[3]}")
        E(f"    buffer_store_dwordx2 v[{o}:{o+1}], v13, s[52:55], 0 offen offset:{16*jq}")
    if DIAG:
        E("    s_waitcnt vmcnt(0)")
    stamp(31)
    E("    s_endpgm")
    VL8 = VL8_saved


def gen_kernel():
    E(f".globl {KNAME}")
    E(".p2align 8")
    E(f".type {KNAME},@function")
    E(f"{KNAME}:")
    E("    s_cmp_ge_u32 s2, 512")
    E("    s_cbranch_scc1 k_done")
    E("    s_load_dwordx16 s[64:79], s[0:1], 0")
    E("    s_load_dwordx8 s[80:87], s[0:1], 64")
    E("    s_load_dwordx2 s[88:89], s[0:1], 96")
    E("    s_memrealtime s[90:91]")
    E("    s_mov_b32 s40, 0xffff0000")
    E("    v_and_b32 v1, 63, v0")
    E("    v_lshrrev_b32 v2, 6, v0")
    E(f"    v_lshlrev_b32 v{VL8}, {3+FSH}, v1")
    E("    v_readfirstlane_b32 s3, v2")
    E("    s_waitcnt lgkmcnt(0)")
    stamp_init()
    stamp(0)
    srd_off(56, 88, 89, WS_FLAG, FLAG_BYTES)
    srd(60, 86, 87, 256)
    E("    s_cmp_lt_u32 s2, 256")
    E("    s_cbranch_scc1 c_type")
    gen_gtype()
    gen_ctype()
    E("k_done:")
    E("    s_endpgm")


def main():
    hdr = open("parallel_sum__ssm_conv_h3__glu_gated_bilinear__prompt.s.ref").read().splitlines()
    for l in hdr:
        if l.startswith("; Override") or l.startswith("; grid=") or l.startswith("; @launch"):
            continue
        if not l.startswith(";"):
            break
        E(l)
    E(f"; @launch grid=(512,1,1) block=(256,1,1) lds={LDS_BYTES}")
    E('.amdgcn_target "amdgcn-amd-amdhsa--gfx950"')
    E(".text")
    gen_kernel()
    E('.section .rodata,"a"')
    E(".p2align 6")
    E(f".amdhsa_kernel {KNAME}")
    E("  .amdhsa_next_free_vgpr 256")
    E("  .amdhsa_next_free_sgpr 102")
    E("  .amdhsa_accum_offset 256")
    E("  .amdhsa_group_segment_fixed_size 0")
    E("  .amdhsa_kernarg_size 104")
    E("  .amdhsa_user_sgpr_count 2")
    E("  .amdhsa_user_sgpr_kernarg_segment_ptr 1")
    E("  .amdhsa_system_sgpr_workgroup_id_x 1")
    E(".end_amdhsa_kernel")
    path = sys.argv[1] if len(sys.argv) > 1 else "fused.s"
    open(path, "w").write("\n".join(out) + "\n")
    print("wrote", path, len(out), "lines")


main()
```

```python
import sys, os

S, D, F = 2048, 512, 1376
WS_XN = 0x000000
WS_KVR = 0x200000
WS_H = 0x400000
WS_YT = 0xA00000
WS_FLAG = 0xC00000
FX_OFF = 0x0000
FK_OFF = 0x2000
FH_OFF = 0x4000
FY_OFF = 0x6000
FSH = int(os.environ.get("FSH", "4"))
FG_OFF = 0x8000
FLAG_BYTES = 0x9000 << FSH
HS = int(os.environ.get("HS", "10"))
HB = 86 * 1024
H_BYTES = 64 * HB
KNAME = "parallel_sum__ssm_conv_h3__glu_gated_bilinear__prompt_kernel"
POLL_LIMIT = 200000

out = []


def E(s=""):
    out.append(s)


class VM:
    def __init__(self):
        self.q = []

    def issue(self, tag):
        self.q.append(tag)

    def wait(self, tag):
        idx = -1
        for i, t in enumerate(self.q):
            if t == tag:
                idx = i
        if idx < 0:
            return
        n = len(self.q) - 1 - idx
        assert n <= 63, n
        E(f"    s_waitcnt vmcnt({n})")
        self.q = self.q[idx + 1:]

    def wait_all(self):
        E("    s_waitcnt vmcnt(0)")
        self.q = []


DIAG = len(sys.argv) > 2 and sys.argv[2] == "diag"
STAMP_WS = 0x2000000


def stamp_init():
    if not DIAG:
        return
    E(f"    s_add_u32 s96, s88, {STAMP_WS}")
    E("    s_addc_u32 s97, s89, 0")
    E("    s_and_b32 s97, s97, 0xffff")
    E("    s_mov_b32 s98, 0x80000")
    E("    s_mov_b32 s99, 0x00020000")
    E("    s_lshl_b32 s100, s2, 2")
    E("    s_add_u32 s100, s100, s3")
    E("    s_lshl_b32 s100, s100, 7")
    E("    v_mov_b32 v254, s100")


def stamp(slot, vm=None):
    if not DIAG:
        return
    E("    s_waitcnt lgkmcnt(0)")
    E("    s_memrealtime s[100:101]")
    E("    s_waitcnt lgkmcnt(0)")
    E("    v_mov_b32 v255, s100")
    E("    s_mov_b64 s[94:95], exec")
    E("    s_mov_b64 exec, 1")
    E(f"    buffer_store_dword v255, v254, s[96:99], 0 offen offset:{4*slot}")
    E("    s_mov_b64 exec, s[94:95]")
    if vm is not None:
        vm.issue("stamp")


def stampval(slot, sg, vm=None):
    if not DIAG:
        return
    E(f"    v_mov_b32 v255, {sg}")
    E("    s_mov_b64 s[94:95], exec")
    E("    s_mov_b64 exec, 1")
    E(f"    buffer_store_dword v255, v254, s[96:99], 0 offen offset:{4*slot}")
    E("    s_mov_b64 exec, s[94:95]")
    if vm is not None:
        vm.issue("stamp")


def srd(dst, lo, hi, nbytes):
    E(f"    s_mov_b32 s{dst}, s{lo}")
    E(f"    s_and_b32 s{dst+1}, s{hi}, 0xffff")
    E(f"    s_mov_b32 s{dst+2}, {nbytes}")
    E(f"    s_mov_b32 s{dst+3}, 0x00020000")


def srd_off(dst, lo, hi, off, nbytes):
    E(f"    s_add_u32 s{dst}, s{lo}, {off}")
    E(f"    s_addc_u32 s{dst+1}, s{hi}, 0")
    E(f"    s_and_b32 s{dst+1}, s{dst+1}, 0xffff")
    E(f"    s_mov_b32 s{dst+2}, {nbytes}")
    E(f"    s_mov_b32 s{dst+3}, 0x00020000")


def wave_reduce_add(v, t):
    E("    s_nop 1")
    E(f"    v_add_f32_dpp v{t}, v{v}, v{v} quad_perm:[1,0,3,2] row_mask:0xf bank_mask:0xf")
    E("    s_nop 1")
    E(f"    v_add_f32_dpp v{v}, v{t}, v{t} quad_perm:[2,3,0,1] row_mask:0xf bank_mask:0xf")
    E("    s_nop 1")
    E(f"    v_add_f32_dpp v{t}, v{v}, v{v} row_half_mirror row_mask:0xf bank_mask:0xf")
    E("    s_nop 1")
    E(f"    v_add_f32_dpp v{v}, v{t}, v{t} row_mirror row_mask:0xf bank_mask:0xf")
    E(f"    v_mov_b32 v{t}, v{v}")
    E("    s_nop 1")
    E(f"    v_permlane16_swap_b32 v{v}, v{t}")
    E("    s_nop 1")
    E(f"    v_add_f32 v{v}, v{v}, v{t}")
    E(f"    v_mov_b32 v{t}, v{v}")
    E("    s_nop 1")
    E(f"    v_permlane32_swap_b32 v{v}, v{t}")
    E("    s_nop 1")
    E(f"    v_add_f32 v{v}, v{v}, v{t}")


def round_pair(a, b, t, mask_sgpr):
    E(f"    v_cvt_pk_bf16_f32 v{t}, v{a}, v{b}")
    E(f"    v_lshlrev_b32 v{a}, 16, v{t}")
    E(f"    v_and_b32 v{b}, s{mask_sgpr}, v{t}")


PA, PB, TK, VL8 = 248, 250, 252, 247
_lbl = [0]


def token_issue(vm):
    E(f"    buffer_load_dwordx2 v[{TK}:{TK+1}], off, s[60:63], 0")
    vm.issue("tok")


def token_get(vm):
    _lbl[0] += 1
    n = _lbl[0]
    vm.wait("tok")
    E(f"    s_mov_b32 s92, {POLL_LIMIT}")
    E(f"tok_l{n}:")
    E(f"    v_readfirstlane_b32 s90, v{TK}")
    E(f"    v_readfirstlane_b32 s91, v{TK+1}")
    E("    s_cmp_lg_u32 s90, 0")
    E(f"    s_cbranch_scc1 tok_d{n}")
    E(f"    buffer_load_dwordx2 v[{TK}:{TK+1}], off, s[60:63], 0 sc0 sc1")
    E("    s_waitcnt vmcnt(0)")
    E("    s_sub_u32 s92, s92, 1")
    E("    s_cmp_lg_u32 s92, 0")
    E(f"    s_cbranch_scc1 tok_l{n}")
    E(f"tok_d{n}:")


def flag_store(vm, soff):
    E(f"    s_lshl_b32 s93, {soff}, {FSH}")
    E("    s_mov_b64 exec, 1")
    E(f"    buffer_store_dwordx2 v[{TK}:{TK+1}], off, s[56:59], s93 sc0 sc1")
    E("    s_mov_b64 exec, -1")
    vm.issue("flag")


POLL_SLEEP = int(os.environ.get("PS", "4"))


def poll(vm, soff, mask, gap=6):
    _lbl[0] += 1
    n = _lbl[0]
    if mask == "0xffffffff":
        E("    s_mov_b32 exec_hi, 0")
    else:
        E(f"    s_mov_b64 exec, {mask}")
    E(f"    s_mov_b32 s92, {POLL_LIMIT}")
    E(f"    s_lshl_b32 s93, {soff}, {FSH}")
    E(f"poll_l{n}:")
    E(f"    buffer_load_dwordx2 v[{PA}:{PA+1}], v{VL8}, s[56:59], s93 offen sc0 sc1")
    E("    s_waitcnt vmcnt(0)")
    E(f"    v_cmp_ne_u64 vcc, s[90:91], v[{PA}:{PA+1}]")
    E("    s_cmp_eq_u64 vcc, 0")
    E(f"    s_cbranch_scc1 poll_d{n}")
    E("    s_mov_b64 exec, vcc")
    E(f"    s_sleep {POLL_SLEEP}")
    E("    s_sub_u32 s92, s92, 1")
    E("    s_cmp_lg_u32 s92, 0")
    E(f"    s_cbranch_scc1 poll_l{n}")
    E(f"poll_d{n}:")
    E("    s_mov_b64 exec, -1")
    vm.q = []


TG = int(os.environ.get("TG", "128"))


def w_touch(vm, lo, hi, sr, vt):
    srd(44, lo, hi, D * F * 2)
    E(f"    s_lshl_b32 s38, {sr}, 2")
    E("    s_add_u32 s38, s38, s3")
    E("    s_mul_i32 s38, s38, 4*2752")
    sh = 4 if TG == 128 else 5
    E(f"    v_lshrrev_b32 v{vt}, {sh}, v1")
    E(f"    v_mul_u32_u24 v{vt}, 2752, v{vt}")
    E(f"    v_and_b32 v{vt+1}, {(1 << sh) - 1}, v1")
    E(f"    v_min_u32 v{vt+1}, {12 if TG == 128 else 24}, v{vt+1}")
    E(f"    v_lshlrev_b32 v{vt+1}, {7 if TG == 128 else 6}, v{vt+1}")
    E("    s_and_b32 s93, s2, 1")
    E("    s_mul_i32 s93, s93, 1536")
    E(f"    v_add_u32 v{vt+1}, s93, v{vt+1}")
    E(f"    v_min_u32 v{vt+1}, 2750, v{vt+1}")
    E(f"    v_add_u32 v{vt}, v{vt}, v{vt+1}")
    E(f"    buffer_load_ushort v{vt+1}, v{vt}, s[44:47], s38 offen")
    vm.issue("pf")
    if TG == 64:
        E("    s_add_u32 s38, s38, 2*2752")
        E(f"    buffer_load_ushort v{vt+1}, v{vt}, s[44:47], s38 offen")
        vm.issue("pf")


RING = 73728
TOFF = RING


def ln_body(o):
    global out
    saved = out
    out = []
    for i in range(4):
        E(f"    v_lshlrev_b32 v{o+8+2*i}, 16, v{o+4+i}")
        E(f"    v_and_b32 v{o+9+2*i}, s40, v{o+4+i}")
    E(f"    v_add_f32 v{o+16}, v{o+8}, v{o+9}")
    E(f"    v_add_f32 v{o+17}, v{o+10}, v{o+11}")
    E(f"    v_add_f32 v{o+18}, v{o+12}, v{o+13}")
    E(f"    v_add_f32 v{o+19}, v{o+14}, v{o+15}")
    E(f"    v_add_f32 v{o+16}, v{o+16}, v{o+17}")
    E(f"    v_add_f32 v{o+18}, v{o+18}, v{o+19}")
    E(f"    v_add_f32 v{o+16}, v{o+16}, v{o+18}")
    wave_reduce_add(o+16, o+17)
    E(f"    v_mul_f32 v{o+16}, 0x3b000000, v{o+16}")
    for i in range(8):
        E(f"    v_sub_f32 v{o+20+i}, v{o+8+i}, v{o+16}")
    E(f"    v_mul_f32 v{o+18}, v{o+20}, v{o+20}")
    E(f"    v_mul_f32 v{o+19}, v{o+21}, v{o+21}")
    for i in range(2, 8, 2):
        E(f"    v_fmac_f32 v{o+18}, v{o+20+i}, v{o+20+i}")
        E(f"    v_fmac_f32 v{o+19}, v{o+21+i}, v{o+21+i}")
    E(f"    v_add_f32 v{o+18}, v{o+18}, v{o+19}")
    wave_reduce_add(o+18, o+17)
    E(f"    v_mul_f32 v{o+18}, 0x3b000000, v{o+18}")
    round_pair(o+16, o+18, o+17, 40)
    E(f"    v_add_f32 v{o+18}, 0x3727c5ac, v{o+18}")
    E(f"    v_cvt_pk_bf16_f32 v{o+17}, v{o+18}, v{o+18}")
    E(f"    v_and_b32 v{o+18}, s40, v{o+17}")
    E(f"    v_sqrt_f32 v{o+19}, v{o+18}")
    E("    s_nop 0")
    E(f"    v_rcp_f32 v{o+28}, v{o+19}")
    E(f"    v_fma_f32 v{o+29}, -v{o+19}, v{o+19}, v{o+18}")
    E(f"    v_mul_f32 v{o+28}, 0.5, v{o+28}")
    E(f"    v_fma_f32 v{o+19}, v{o+29}, v{o+28}, v{o+19}")
    E(f"    v_cvt_pk_bf16_f32 v{o+17}, v{o+19}, v{o+19}")
    E(f"    v_and_b32 v{o+19}, s40, v{o+17}")
    E(f"    v_rcp_f32 v{o+28}, v{o+19}")
    for i in range(8):
        E(f"    v_sub_f32 v{o+20+i}, v{o+8+i}, v{o+16}")
    for i in range(0, 8, 2):
        round_pair(o+20 + i, o+21 + i, o+17, 40)
    for i in range(8):
        E(f"    v_mul_f32 v{o+8+i}, v{o+20+i}, v{o+28}")
    for i in range(8):
        E(f"    v_fma_f32 v{o+30+i}, -v{o+8+i}, v{o+19}, v{o+20+i}")
    for i in range(8):
        E(f"    v_fma_f32 v{o+8+i}, v{o+30+i}, v{o+28}, v{o+8+i}")
    for i in range(4):
        E(f"    v_cvt_pk_bf16_f32 v{o+4+i}, v{o+8+2*i}, v{o+9+2*i}")
    body = out
    out = saved
    return body


def gen_gtype_path(nt, vm0):
    vm = VM()
    vm.q = list(vm0.q)
    ACC = 144
    WF = 32
    XR = 80
    P = 64 * nt
    STG = 64 * P
    NB = RING // STG
    nst = 16
    OA, OB = 140, 180
    XLA = int(os.environ.get("XLA", "8"))

    def dma_ops(st):
        buf = st % NB
        ops = []
        for i in range(nt):
            def f(i=i):
                E(f"    s_add_u32 s38, s48, {st*32*2752}")
                E(f"    s_add_u32 m0, s43, {buf*STG + i*1024}")
                E("    s_nop 0")
                E(f"    buffer_load_dwordx4 v{16+i}, s[52:55], s38 offen lds")
                vm.issue(("dma", st))
            ops.append(f)
        return ops

    def xn_load(k):
        r = XR + 4 * (k % 16)
        E(f"    s_add_u32 s38, s41, {k*1024}")
        E(f"    buffer_load_dwordx4 v[{r}:{r+3}], v8, s[20:23], s38 offen")
        vm.issue(("xn", k))

    E("    s_lshr_b32 s49, s3, 1")
    E("    s_cmp_eq_u32 s49, 1")
    E("    s_cselect_b32 s52, s80, s78")
    E("    s_cselect_b32 s53, s81, s79")
    E("    s_and_b32 s53, s53, 0xffff")
    E(f"    s_mov_b32 s54, {D*F*2}")
    E("    s_mov_b32 s55, 0x00020000")
    E("    s_and_b32 s49, s3, 1")
    E("    s_mul_i32 s48, s49, 16*2752")
    E("    s_add_u32 s48, s48, s36")
    E(f"    s_mul_i32 s43, s3, {16*P}")
    E("    s_movk_i32 s49, 2752")
    for i in range(nt):
        E(f"    v_add_u32 v14, {64*i}, v1")
        if nt == 3:
            E("    v_mul_u32_u24 v15, 0x5556, v14")
            E("    v_lshrrev_b32 v15, 18, v15")
            E("    v_mul_u32_u24 v20, 12, v15")
        else:
            E("    v_lshrrev_b32 v15, 3, v14")
            E("    v_lshlrev_b32 v20, 3, v15")
        E("    v_sub_u32 v14, v14, v20")
        E("    v_mul_lo_u32 v15, v15, s49")
        E(f"    v_lshl_add_u32 v{16+i}, v14, 4, v15")
    NPRE = int(os.environ.get('NPRE', '0'))
    for st in range(NPRE):
        for f in dma_ops(st):
            f()
    E("    v_and_b32 v14, 15, v1")
    E("    v_lshrrev_b32 v15, 2, v14")
    E("    v_lshl_add_u32 v15, v13, 3, v15")
    E(f"    v_mul_u32_u24 v11, {P}, v15")
    E("    v_bfe_u32 v15, v1, 4, 1")
    E("    v_lshl_add_u32 v11, v15, 5, v11")
    E("    v_and_b32 v15, 3, v14")
    E("    v_lshl_add_u32 v11, v15, 3, v11")
    E(f"    v_add_u32 v15, {RING//2}, v11")
    vm.wait("x")
    stamp(1, vm)
    token_issue(vm)
    w_touch(vm, 80, 81, "s33", 21)
    ba, bb = ln_body(OA), ln_body(OB)
    PFM = os.environ.get("PF", "post")
    pre = [f for st in range(NPRE, NB) for f in dma_ops(st)] if PFM == "ln" else []
    step = max(1, (len(ba) - 8) // max(1, len(pre)))
    for n, (la, lb) in enumerate(zip(ba, bb)):
        E(la)
        E(lb)
        if n % step == 0 and pre:
            pre.pop(0)()
    assert not pre
    E(f"    ds_write_b128 v5, v[{OA+4}:{OA+7}]")
    E(f"    ds_write_b128 v9, v[{OB+4}:{OB+7}]")
    E("    s_waitcnt lgkmcnt(0)")
    E("    s_barrier")
    E(f"    ds_read_b128 v[{OA+4}:{OA+7}], v7")
    E(f"    ds_read_b128 v[{OB+4}:{OB+7}], v7 offset:4096")
    E("    s_waitcnt lgkmcnt(1)")
    E(f"    buffer_store_dwordx4 v[{OA+4}:{OA+7}], v6, s[20:23], s34 offen sc0 sc1")
    vm.issue("xst")
    E("    s_add_u32 s38, s34, 16384")
    E("    s_waitcnt lgkmcnt(0)")
    E(f"    buffer_store_dwordx4 v[{OB+4}:{OB+7}], v6, s[20:23], s38 offen sc0 sc1")
    vm.issue("xst")
    stamp(2, vm)
    token_get(vm)
    stamp(11, vm)
    stampval(20, "s92", vm)
    vm.wait("xst")
    stamp(3, vm)
    flag_store(vm, "s35")
    SPW = NB // 3
    E("    s_cmp_eq_u32 s3, 0")
    E(f"    s_cbranch_scc1 g{nt}_poll")
    srd(44, 78, 79, D * F * 2)
    srd(4, 80, 81, D * F * 2)
    E("    s_sub_u32 s49, s3, 1")
    E(f"    s_mul_i32 s50, s49, {SPW*32*2752}")
    E("    s_add_u32 s50, s50, s36")
    E(f"    s_mul_i32 s51, s49, {SPW*STG}")
    for j in range(SPW):
        for p_ in range(4):
            for i in range(nt):
                E(f"    s_add_u32 s38, s50, {j*32*2752 + (p_ & 1)*16*2752}")
                E(f"    s_add_u32 m0, s51, {j*STG + p_*16*P + i*1024}")
                E("    s_nop 0")
                E(f"    buffer_load_dwordx4 v{16+i}, s[{44 if p_ < 2 else 4}:{47 if p_ < 2 else 7}], s38 offen lds")
    E("    s_waitcnt vmcnt(0)")
    E(f"    s_branch g{nt}_join")
    E(f"g{nt}_poll:")
    poll(vm, "s37", "-1")
    stampval(21, "s92")
    E(f"g{nt}_join:")
    stamp(12)
    E("    s_barrier")
    stamp(4)
    vm.q = []
    E("    s_and_b32 s38, s31, 7")
    E("    s_lshl_b32 s38, s38, 12")
    E("    s_add_u32 s38, s38, s41")
    E("    v_lshlrev_b32 v21, 7, v1")
    E("    s_mov_b32 exec_hi, 0")
    E("    buffer_load_dword v10, v21, s[20:23], s38 offen")
    E("    s_mov_b64 exec, -1")
    vm.issue("pf")
    for k in range(XLA):
        xn_load(k)
    stamp(13, vm)

    def fr_ops(setidx, buf, ks):
        ops = []
        for mt in range(2 * nt):
            r = WF + 24 * setidx + 4 * mt
            base = buf * STG + (mt // nt) * 32 * P + ks * 16 * P + (mt % nt) * 64
            vb = 11
            if base >= RING // 2:
                base -= RING // 2
                vb = 15
            ops.append(lambda r=r, vb=vb, base=base: E(f"    ds_read_b64_tr_b16 v[{r}:{r+1}], v{vb} offset:{base}"))
            ops.append(lambda r=r, vb=vb, base=base: E(f"    ds_read_b64_tr_b16 v[{r+2}:{r+3}], v{vb} offset:{base+4*P}"))
        return ops

    def mfma_group(setidx, k, reads, dmas):
        x = XR + 4 * (k % 16)
        reads = list(reads)
        dmas = list(dmas)
        n = 2 * nt
        rg = n // 2
        per = (len(reads) + rg - 1) // rg
        for mt in range(n):
            w = WF + 24 * setidx + 4 * mt
            a = ACC + 16 * mt
            c = "0" if k == 0 else f"v[{a}:{a+15}]"
            E(f"    v_mfma_f32_32x32x16_bf16 v[{a}:{a+15}], v[{w}:{w+3}], v[{x}:{x+3}], {c}")
            if mt < rg:
                for _ in range(per):
                    if reads:
                        reads.pop(0)()
            else:
                kk = 1 if mt + 1 < n else len(dmas)
                for _ in range(kk):
                    if dmas:
                        dmas.pop(0)()
        if k + XLA < 32:
            xn_load(k + XLA)

    for f in fr_ops(0, 0, 0):
        f()
    for st in range(nst):
        buf = st % NB
        dm = dma_ops(st + NB - 1) if (st >= 1 and st + NB - 1 < nst) else []
        na = len(dm) // 2
        vm.wait(("xn", 2 * st))
        E("    s_waitcnt lgkmcnt(0)")
        mfma_group(0, 2 * st, fr_ops(1, buf, 1), dm[:na])
        if st + 1 < nst:
            vm.wait(("dma", st + 1))
        vm.wait(("xn", 2 * st + 1))
        E("    s_waitcnt lgkmcnt(0)")
        rd = []
        if st + 1 < nst:
            E("    s_barrier")
            if st % 4 == 3:
                stamp(5 + st // 4, vm)
            elif st < 8:
                stamp(22 + st, vm)
            rd = fr_ops(0, (st + 1) % NB, 0)
        mfma_group(1, 2 * st + 1, rd, dm[na:])
    stamp(8, vm)
    E("    s_setprio 3")
    E("    s_nop 15")
    for tau in range(nt):
        G = ACC + 16 * tau
        U = ACC + 16 * (nt + tau)
        T = 14
        for j in range(0, 16, 2):
            round_pair(G + j, G + j + 1, T, 40)
            round_pair(U + j, U + j + 1, T, 40)
        for j in range(16):
            E(f"    v_mul_f32 v{G+j}, v{G+j}, v{U+j}")
        PK = 32 + 8 * tau
        for j in range(8):
            E(f"    v_cvt_pk_bf16_f32 v{PK+j}, v{G+2*j}, v{G+2*j+1}")
        E("    s_nop 1")
        for pair in range(2):
            q0 = PK + 4 * pair
            E(f"    v_permlane32_swap_b32 v{q0}, v{q0+2}")
            E(f"    v_permlane32_swap_b32 v{q0+1}, v{q0+3}")
        E(f"    s_add_u32 s38, s42, {tau*2048}")
        for pair in range(2):
            q0 = PK + 4 * pair
            E(f"    buffer_store_dwordx4 v[{q0}:{q0+3}], v8, s[24:27], s38 offen offset:{pair*1024} sc0 sc1")
    stamp(9)
    E("    s_waitcnt vmcnt(0)")
    stamp(10)
    flag_store(vm, "s39")
    stamp(31)
    E("    s_endpgm")


def gen_gtype():
    vm = VM()
    E("    s_setprio 1")
    E("    s_sub_u32 s42, s2, 256")
    E("    s_lshr_b32 s33, s42, 3")
    E("    s_bfe_u32 s30, s42, 0x20001")
    E("    s_lshl_b32 s30, s30, 2")
    E("    s_lshr_b32 s31, s33, 3")
    E("    s_add_u32 s30, s30, s31")
    E("    s_and_b32 s31, s42, 1")
    E("    s_lshl_b32 s31, s31, 3")
    E("    s_and_b32 s34, s33, 7")
    E("    s_add_u32 s31, s31, s34")
    srd(16, 64, 65, S * D * 2)
    E("    s_lshl_b32 s32, s30, 17")
    E("    s_lshl_b32 s34, s31, 13")
    E("    s_add_u32 s32, s32, s34")
    E("    v_lshlrev_b32 v8, 4, v1")
    E("    v_lshl_add_u32 v4, v2, 11, v8")
    E("    buffer_load_dwordx4 v[144:147], v4, s[16:19], s32 offen")
    E("    buffer_load_dwordx4 v[184:187], v4, s[16:19], s32 offen offset:1024")
    vm.issue("x")
    vm.issue("x")
    srd_off(20, 88, 89, WS_XN, S * D * 2)
    srd_off(24, 88, 89, WS_H, H_BYTES)
    E("    v_lshrrev_b32 v13, 5, v1")
    E("    v_and_b32 v14, 7, v1")
    E("    v_lshlrev_b32 v15, 1, v2")
    E("    v_xor_b32 v14, v14, v15")
    E("    v_lshlrev_b32 v14, 4, v14")
    E("    v_lshl_add_u32 v5, v1, 7, v14")
    E(f"    v_add_u32 v5, {TOFF}, v5")
    E("    v_xor_b32 v9, 16, v5")
    E("    v_lshrrev_b32 v14, 3, v0")
    E("    v_and_b32 v15, 7, v0")
    E("    v_lshlrev_b32 v6, 9, v14")
    E("    v_lshl_add_u32 v6, v15, 4, v6")
    E("    v_and_b32 v20, 7, v14")
    E("    v_xor_b32 v20, v20, v15")
    E("    v_lshlrev_b32 v20, 4, v20")
    E("    v_lshl_add_u32 v7, v14, 7, v20")
    E(f"    v_add_u32 v7, {TOFF}, v7")
    E("    s_lshl_b32 s36, s30, 2")
    E("    s_lshr_b32 s34, s31, 2")
    E("    s_add_u32 s35, s36, s34")
    E("    s_lshl_b32 s34, s35, 15")
    E("    s_and_b32 s37, s31, 3")
    E("    s_lshl_b32 s38, s37, 7")
    E("    s_add_u32 s34, s34, s38")
    E("    s_lshl_b32 s35, s35, 7")
    E("    s_lshl_b32 s38, s37, 5")
    E("    s_add_u32 s35, s35, s38")
    E("    s_lshl_b32 s38, s3, 3")
    E("    s_add_u32 s35, s35, s38")
    if FX_OFF:
        E(f"    s_add_u32 s35, s35, {FX_OFF}")
    E("    s_lshl_b32 s37, s36, 7")
    E("    s_add_u32 s36, s36, s3")
    if FX_OFF:
        E(f"    s_add_u32 s37, s37, {FX_OFF}")
    E("    s_lshl_b32 s41, s36, 15")
    E("    s_lshl_b32 s39, s36, 7")
    E("    s_lshl_b32 s38, s31, 3")
    E("    s_add_u32 s39, s39, s38")
    E(f"    s_add_u32 s39, s39, {FH_OFF}")
    E(f"    s_mul_i32 s42, s36, {HB}")
    E("    s_cmp_lt_u32 s31, 11")
    E("    s_cbranch_scc0 g_path2")
    E("    s_mul_i32 s36, s31, 192")
    E("    s_mul_i32 s38, s31, 3*2048")
    E("    s_add_u32 s42, s42, s38")
    gen_gtype_path(3, vm)
    E("g_path2:")
    E("    s_lshl_b32 s36, s31, 7")
    E("    s_add_u32 s36, s36, 704")
    E("    s_lshl_b32 s38, s36, 5")
    E("    s_add_u32 s42, s42, s38")
    gen_gtype_path(2, vm)


COPY_BYTES = 4240
_order = [(1, 0), (0, 11), (2, 4), (5, 0), (4, 12), (3, 8), (6, 4), (7, 8)]
COPY_BASE = {}
_pos = 0
for _b, _beta in _order:
    while (_pos // 16) % 16 != _beta:
        _pos += 16
    COPY_BASE[_b] = _pos
    _pos += COPY_BYTES
KV_OFF = (_pos + 15) // 16 * 16
KVP = 80
CH_BYTES = (KV_OFF + 65 * KVP + 255) // 256 * 256
LDS_BYTES = 81920
TB_OFF = (KV_OFF + 127) // 128 * 128
assert TB_OFF + 4096 <= KV_OFF + 64 * KVP
assert 2 * CH_BYTES <= LDS_BYTES


def gen_ctype():
    vm = VM()
    E("c_type:")
    E("    s_setprio 2")
    E("    s_or_b32 s34, s2, s3")
    E("    s_cmp_eq_u32 s34, 0")
    E("    s_cbranch_scc0 c_notok")
    E("    s_or_b32 s90, s90, 1")
    E(f"    v_mov_b32 v{TK}, s90")
    E(f"    v_mov_b32 v{TK+1}, s91")
    E("    s_mov_b64 exec, 1")
    E(f"    buffer_store_dwordx2 v[{TK}:{TK+1}], off, s[60:63], 0 sc0 sc1")
    E("    s_mov_b64 exec, -1")
    E("c_notok:")
    srd(16, 66, 67, S * D * 2)
    srd(20, 68, 69, S * D * 2)
    srd(24, 70, 71, D * 4 * 2)
    E("    s_lshr_b32 s32, s2, 3")
    E("    s_and_b32 s33, s2, 7")
    E("    v_and_b32 v10, 31, v0")
    E("    v_lshrrev_b32 v11, 5, v0")
    E("    s_lshl_b32 s34, s32, 6")
    E("    v_lshlrev_b32 v3, 3, v11")
    E("    v_add_u32 v3, s34, v3")
    E("    s_lshl_b32 s35, s33, 5")
    E("    v_add_u32 v6, s35, v10")
    E("    v_lshlrev_b32 v3, 10, v3")
    E("    v_lshl_add_u32 v3, v6, 2, v3")
    E("    v_add_u32 v4, 4096, v3")
    E("    v_subrev_u32 v5, 3072, v3")
    E("    v_lshlrev_b32 v6, 4, v6")
    for j in range(3):
        E(f"    buffer_load_dword v{132+j}, v5, s[16:19], 0 offen offset:{1024*j}")
    for j in range(4):
        E(f"    buffer_load_dword v{135+j}, v3, s[16:19], 0 offen offset:{1024*j}")
    for j in range(4):
        E(f"    buffer_load_dword v{139+j}, v4, s[16:19], 0 offen offset:{1024*j}")
    for j in range(4):
        E(f"    buffer_load_dword v{144+j}, v3, s[20:23], 0 offen offset:{1024*j}")
    for j in range(4):
        E(f"    buffer_load_dword v{148+j}, v4, s[20:23], 0 offen offset:{1024*j}")
    E("    buffer_load_dwordx4 v[128:131], v6, s[24:27], 0 offen")
    for _ in range(20):
        vm.issue("kv")
    E("    s_lshr_b32 s31, s3, 1")
    E("    s_lshl_b32 s30, s33, 6")
    E("    s_lshl_b32 s34, s32, 1")
    E("    s_add_u32 s30, s30, s34")
    E("    s_add_u32 s30, s30, s31")
    E("    s_mov_b32 s50, s32")
    E("    s_mov_b32 s51, s33")
    E("    s_and_b32 s32, s3, 1")
    E("    s_lshl_b32 s33, s30, 12")
    srd_off(44, 72, 73, "s33", 4096)
    E(f"    s_mul_i32 s35, s31, {CH_BYTES}")
    E("    s_lshl_b32 s36, s32, 6")
    E("    v_add_u32 v3, s36, v1")
    E("    v_lshlrev_b32 v4, 5, v3")
    E("    v_subrev_u32 v5, 16, v4")
    E("    buffer_load_dwordx4 v[16:19], v5, s[44:47], 0 offen")
    E("    buffer_load_dwordx4 v[20:23], v4, s[44:47], 0 offen")
    E("    buffer_load_dwordx4 v[24:27], v4, s[44:47], 0 offen offset:16")
    for _ in range(3):
        vm.issue("kf")
    srd(44, 74, 75, D * 2)
    E("    s_lshl_b32 s36, s30, 1")
    E("    v_mov_b32 v7, s36")
    E("    buffer_load_ushort v9, v7, s[44:47], 0 offen")
    vm.issue("kf")
    srd_off(8, 88, 89, WS_KVR, S * D * 2)
    E("    v_lshrrev_b32 v12, 4, v10")
    E(f"    v_mul_u32_u24 v12, {CH_BYTES}, v12")
    E("    v_and_b32 v13, 15, v10")
    E("    v_lshl_add_u32 v12, v13, 8, v12")
    E("    v_sub_u32 v13, 7, v11")
    E("    v_and_b32 v14, 7, v10")
    E("    v_xor_b32 v13, v13, v14")
    E("    v_lshl_add_u32 v12, v13, 4, v12")
    E(f"    v_add_u32 v12, {TB_OFF}, v12")
    E("    v_lshrrev_b32 v13, 3, v1")
    E("    v_and_b32 v14, 7, v1")
    E("    v_lshrrev_b32 v15, 4, v1")
    E("    v_xor_b32 v15, v15, v14")
    E("    v_lshlrev_b32 v15, 4, v15")
    E("    v_lshl_add_u32 v15, v13, 7, v15")
    E(f"    s_mul_i32 s36, s31, {CH_BYTES}")
    E("    s_lshl_b32 s37, s32, 11")
    E("    s_add_u32 s36, s36, s37")
    E(f"    s_add_u32 s36, s36, {TB_OFF}")
    E("    v_add_u32 v15, s36, v15")
    E("    v_xor_b32 v28, 64, v15")
    E("    v_lshlrev_b32 v13, 12, v13")
    E("    v_lshl_add_u32 v13, v14, 4, v13")
    E("    s_lshl_b32 s36, s51, 18")
    E("    s_lshl_b32 s37, s3, 16")
    E("    s_add_u32 s36, s36, s37")
    E("    s_lshl_b32 s37, s50, 7")
    E("    s_sub_u32 s37, 3968, s37")
    E("    s_add_u32 s48, s36, s37")
    E("    s_lshl_b32 s36, s51, 10")
    E(f"    s_add_u32 s36, s36, {FK_OFF}")
    E("    s_lshl_b32 s37, s3, 8")
    E("    s_add_u32 s49, s36, s37")
    E("    s_lshl_b32 s37, s50, 3")
    E("    s_add_u32 s49, s49, s37")
    E("    s_lshr_b32 s37, s50, 3")
    E("    s_lshl_b32 s37, s37, 8")
    E("    s_add_u32 s41, s36, s37")
    vm.wait("kv")
    stamp(1, vm)
    token_issue(vm)
    w_touch(vm, 78, 79, "s50", 29)
    for c in range(2):
        for d in range(2):
            E(f"    v_lshlrev_b32 v{32+4*c+2*d}, 16, v{128+2*c+d}")
            E(f"    v_and_b32 v{33+4*c+2*d}, s40, v{128+2*c+d}")
    for j in range(11):
        E(f"    v_lshlrev_b32 v{40+j}, 16, v{132+j}")
        E(f"    v_and_b32 v{52+j}, s40, v{132+j}")
    for j in range(8):
        E(f"    v_lshlrev_b32 v{64+j}, 16, v{144+j}")
        E(f"    v_and_b32 v{72+j}, s40, v{144+j}")
    for j in range(8):
        A0, A1, B0, B1, T = 96, 97, 98, 99, 100
        E(f"    v_mul_f32 v{A0}, v{40+j}, v35")
        E(f"    v_mul_f32 v{A1}, v{52+j}, v39")
        E(f"    v_mul_f32 v{B0}, v{41+j}, v34")
        E(f"    v_mul_f32 v{B1}, v{53+j}, v38")
        round_pair(A0, A1, T, 40)
        round_pair(B0, B1, T, 40)
        E(f"    v_add_f32 v{A0}, v{A0}, v{B0}")
        E(f"    v_add_f32 v{A1}, v{A1}, v{B1}")
        E(f"    v_mul_f32 v{B0}, v{42+j}, v33")
        E(f"    v_mul_f32 v{B1}, v{54+j}, v37")
        round_pair(A0, A1, T, 40)
        round_pair(B0, B1, T, 40)
        E(f"    v_add_f32 v{A0}, v{A0}, v{B0}")
        E(f"    v_add_f32 v{A1}, v{A1}, v{B1}")
        E(f"    v_mul_f32 v{B0}, v{43+j}, v32")
        E(f"    v_mul_f32 v{B1}, v{55+j}, v36")
        round_pair(A0, A1, T, 40)
        round_pair(B0, B1, T, 40)
        E(f"    v_add_f32 v{A0}, v{A0}, v{B0}")
        E(f"    v_add_f32 v{A1}, v{A1}, v{B1}")
        round_pair(A0, A1, T, 40)
        E(f"    v_mul_f32 v{80+j}, v{A0}, v{64+j}")
        E(f"    v_mul_f32 v{88+j}, v{A1}, v{72+j}")
    for c in range(2):
        for jj in range(4):
            E(f"    v_cvt_pk_bf16_f32 v{104+4*c+jj}, v{80+8*c+7-2*jj}, v{80+8*c+6-2*jj}")
    E("    ds_write_b128 v12, v[104:107]")
    E("    ds_write_b128 v12, v[108:111] offset:128")
    E("    s_waitcnt lgkmcnt(0)")
    E("    s_barrier")
    E("    ds_read_b128 v[104:107], v15")
    E("    ds_read_b128 v[108:111], v28 offset:1024")
    E("    s_add_u32 s36, s48, 32768")
    E("    s_waitcnt lgkmcnt(1)")
    E("    buffer_store_dwordx4 v[104:107], v13, s[8:11], s48 offen sc0 sc1")
    E("    s_waitcnt lgkmcnt(0)")
    E("    buffer_store_dwordx4 v[108:111], v13, s[8:11], s36 offen sc0 sc1")
    vm.issue("kst")
    vm.issue("kst")
    stamp(2, vm)
    E("    s_barrier")
    E("    s_add_u32 s34, s33, %d" % WS_KVR)
    srd_off(20, 88, 89, "s34", 4096)
    E("    s_add_u32 s34, s33, %d" % WS_YT)
    srd_off(24, 88, 89, "s34", 4096)
    E("    v_mov_b32 v36, 0")
    E("    v_mov_b32 v37, 0")
    E("    v_mov_b32 v38, 0")
    E("    v_mov_b32 v39, 0")
    E("    v_lshlrev_b32 v7, 4, v1")
    E("    v_add_u32 v7, s35, v7")
    E("    s_mov_b64 exec, 0x7f")
    for b in range(8):
        E(f"    ds_write_b128 v7, v[36:39] offset:{COPY_BASE[b]}")
    E("    s_mov_b64 exec, 0xf")
    E(f"    ds_write_b128 v7, v[36:39] offset:{KV_OFF + 64*KVP}")
    E("    s_mov_b64 exec, -1")
    E("    v_lshlrev_b32 v6, 4, v3")
    E("    v_lshlrev_b32 v7, 5, v3")
    E("    v_add_u32 v7, s35, v7")
    E("    v_lshrrev_b32 v8, 2, v3")
    E(f"    v_mul_u32_u24 v8, {KVP}, v8")
    E("    v_and_b32 v10, 3, v3")
    E("    v_lshl_add_u32 v8, v10, 4, v8")
    E("    v_add_u32 v8, s35, v8")
    E("    v_and_b32 v3, 31, v1")
    E("    v_lshrrev_b32 v4, 5, v1")
    E("    v_add_u32 v5, 1, v3")
    E("    v_and_b32 v14, 7, v5")
    E("    v_lshrrev_b32 v5, 3, v5")
    E("    v_sub_u32 v5, v5, v4")
    E("    v_add_u32 v5, 1, v5")
    E("    v_lshlrev_b32 v5, 4, v5")
    E("    v_mov_b32 v10, 0")
    for b in range(8):
        E(f"    v_cmp_eq_u32 vcc, {b}, v14")
        E(f"    v_mov_b32 v11, {COPY_BASE[b]}")
        E("    s_nop 0")
        E("    v_cndmask_b32 v10, v10, v11, vcc")
    E("    v_add_u32 v10, v10, v5")
    E("    v_add_u32 v10, s35, v10")
    E("    v_sub_u32 v5, 63, v3")
    E(f"    v_mul_u32_u24 v5, {KVP}, v5")
    E("    v_lshlrev_b32 v14, 4, v4")
    E("    v_sub_u32 v5, v5, v14")
    E(f"    s_add_u32 s36, s35, {KV_OFF + 16}")
    E("    v_add_u32 v11, s36, v5")
    E(f"    v_subrev_u32 v15, {32*KVP}, v11")
    E(f"    s_add_u32 s36, s36, {KVP*64}")
    E("    v_sub_u32 v12, s36, v14")
    vm.wait("kf")
    for u in range(2):
        e = 16 + 4 * u
        for b in range(8):
            off = COPY_BASE[b] + 112 + 16 * u
            if b % 2 == 0 and (b // 2) % 2 == 0:
                r = e + b // 2
                E(f"    ds_write_b128 v7, v[{r}:{r+3}] offset:{off}")
            else:
                t = 40 + 4 * ((u * 8 + b) % 4)
                for d in range(4):
                    if b % 2 == 0:
                        E(f"    v_mov_b32 v{t+d}, v{e + b//2 + d}")
                    else:
                        be = (b - 1) // 2
                        E(f"    v_alignbyte_b32 v{t+d}, v{e+be+d+1}, v{e+be+d}, 2")
                E(f"    ds_write_b128 v7, v[{t}:{t+3}] offset:{off}")
    E(f"    ds_write_b128 v7, v[24:27] offset:{COPY_BASE[0] + 112 + 32}")
    token_get(vm)
    stampval(20, "s92", vm)
    vm.wait("kst")
    stamp(3, vm)
    flag_store(vm, "s49")
    poll(vm, "s41", "0xffffffff")
    stampval(21, "s92", vm)
    stamp(4, vm)
    E("    buffer_load_dwordx4 v[28:31], v6, s[20:23], 0 offen")
    E("    buffer_load_dwordx4 v[32:35], v6, s[20:23], 0 offen offset:2048")
    E("    s_waitcnt vmcnt(1)")
    E(f"    ds_write_b128 v8, v[28:31] offset:{KV_OFF}")
    E("    s_waitcnt vmcnt(0)")
    E(f"    ds_write_b128 v8, v[32:35] offset:{KV_OFF + 32*KVP}")
    vm.q = []
    E("    s_waitcnt lgkmcnt(0)")
    E("    s_barrier")
    stamp(5)
    FR = 64
    ACC = 192

    def fr(setidx, slot):
        return FR + 64 * setidx + 4 * slot

    def op_A(setidx, slot, t):
        r = fr(setidx, slot)
        return lambda: E(f"    ds_read_b128 v[{r}:{r+3}], v10 offset:{32*(t+3)}")

    def ops_B(setidx, slot, d, c):
        def f():
            E(f"    v_add_u32 v13, {KVP*d}, v{11 if c == 0 else 15}")
            E("    v_min_u32 v13, v13, v12")
            for q in range(2):
                r = fr(setidx, slot + q)
                E(f"    ds_read_b128 v[{r}:{r+3}], v13 offset:{32*(1-q)}")
        return f

    def loads(it, setidx):
        kind, d0 = it
        ops = []
        if kind == "X":
            for e_ in range(2):
                for q in range(2):
                    ops.append(op_A(setidx, 2 * e_ + q, 2 * (d0 + e_) - q))
                for c in range(2):
                    ops.append(ops_B(setidx, 4 + 4 * e_ + 2 * c, d0 + e_, c))
        else:
            for e_ in range(4):
                for q in range(2):
                    ops.append(op_A(setidx, 2 * e_ + q, 2 * (d0 + e_) - q))
                ops.append(ops_B(setidx, 8 + 2 * e_, d0 + e_, 1))
        return ops

    def mfmas(it, setidx):
        kind, d0 = it
        lst = []
        if kind == "X":
            for e_ in range(2):
                for q in range(2):
                    for c in range(2):
                        lst.append((c, fr(setidx, 2 * e_ + q), fr(setidx, 4 + 4 * e_ + 2 * c + q)))
        else:
            for e_ in range(4):
                for q in range(2):
                    lst.append((1 + q, fr(setidx, 2 * e_ + q), fr(setidx, 8 + 2 * e_ + q)))
        return lst

    def conv_loop(its, pf_at):
        started = set()
        for f in loads(its[0], 0):
            f()
        for n, it in enumerate(its):
            E("    s_waitcnt lgkmcnt(0)")
            nxt = loads(its[n + 1], (n + 1) % 2) if n + 1 < len(its) else []
            per = (len(nxt) + 4) // 5
            ms = mfmas(it, n % 2)
            for k, (acc, a, b) in enumerate(ms):
                A = ACC + 16 * acc
                c = f"v[{A}:{A+15}]" if acc in started else "0"
                started.add(acc)
                E(f"    v_mfma_f32_32x32x16_bf16 v[{A}:{A+15}], v[{a}:{a+3}], v[{b}:{b+3}], {c}")
                for _ in range(per if k + 1 < len(ms) else len(nxt)):
                    if nxt:
                        nxt.pop(0)()
            if n == pf_at:
                srd(52, 82, 83, F * D * 2)
                E("    s_mul_i32 s48, s50, 344*128")
                E("    v_lshlrev_b32 v60, 7, v0")
                E("    buffer_load_dword v61, v60, s[52:55], s48 offen")
                E("    v_min_u32 v60, 87, v0")
                E("    v_lshlrev_b32 v60, 7, v60")
                E("    s_add_u32 s48, s48, 256*128")
                E("    buffer_load_dword v61, v60, s[52:55], s48 offen")

    E("    s_cmp_eq_u32 s32, 0")
    E("    s_cbranch_scc0 conv_l1")
    conv_loop([("X", d) for d in range(0, 24, 2)], 0)
    E("    s_branch conv_le")
    E("conv_l1:")
    conv_loop([("X", d) for d in range(24, 32, 2)] + [("Y", d) for d in range(32, 64, 4)], 0)
    E("    s_nop 15")
    E("    s_nop 3")
    for j in range(16):
        E(f"    v_add_f32 v{ACC+16+j}, v{ACC+16+j}, v{ACC+32+j}")
    E("conv_le:")
    stamp(6)
    E("    s_barrier")
    E("    v_lshlrev_b32 v13, 4, v1")
    E("    v_add_u32 v13, s35, v13")
    E("    s_lshl_b32 s36, s32, 12")
    E("    v_add_u32 v14, s36, v13")
    E("    s_xor_b32 s36, s36, 4096")
    E("    v_add_u32 v13, s36, v13")
    E("    s_nop 7")
    E("    s_cmp_eq_u32 s32, 0")
    E("    s_cbranch_scc1 conv_hw0")
    for jq in range(4):
        E(f"    ds_write_b128 v13, v[{ACC+4*jq}:{ACC+4*jq+3}] offset:{1024*jq}")
    for j in range(16):
        E(f"    v_mov_b32 v{64+j}, v{ACC+16+j}")
    E("    s_branch conv_x")
    E("conv_hw0:")
    for jq in range(4):
        E(f"    ds_write_b128 v13, v[{ACC+16+4*jq}:{ACC+16+4*jq+3}] offset:{1024*jq}")
    for j in range(16):
        E(f"    v_mov_b32 v{64+j}, v{ACC+j}")
    E("conv_x:")
    E("    s_waitcnt lgkmcnt(0)")
    E("    s_barrier")
    for jq in range(4):
        E(f"    ds_read_b128 v[{80+4*jq}:{80+4*jq+3}], v14 offset:{1024*jq}")
    E("    v_sub_u32 v5, 63, v3")
    E(f"    v_mul_u32_u24 v5, {KVP}, v5")
    E("    v_lshlrev_b32 v6, 3, v4")
    E("    v_sub_u32 v5, v5, v6")
    E(f"    s_mul_i32 s36, s32, {32*KVP}")
    E(f"    s_sub_u32 s36, {KV_OFF + 8}, s36")
    E("    s_add_u32 s36, s36, s35")
    E("    v_add_u32 v5, s36, v5")
    for jq in range(4):
        E(f"    ds_read_b64 v[{96+2*jq}:{96+2*jq+1}], v5 offset:{16*(3-jq)}")
    E("    v_lshlrev_b32 v6, 6, v3")
    E("    v_lshl_add_u32 v6, v4, 3, v6")
    E("    s_mul_i32 s36, s3, 20480")
    E("    v_add_u32 v6, s36, v6")
    E("    v_lshlrev_b32 v7, 4, v1")
    E("    v_add_u32 v8, s36, v7")
    E("    s_lshl_b32 s37, s32, 11")
    E("    v_lshlrev_b32 v9, 16, v9")
    E("    s_waitcnt lgkmcnt(0)")
    E("    s_barrier")
    for j in range(16):
        E(f"    v_add_f32 v{64+j}, v{64+j}, v{80+j}")
    vm.q = ["pf", "pf"]
    for jq in range(4):
        k0, k1, k2, k3 = 104, 105, 106, 107
        E(f"    v_and_b32 v{k0}, s40, v{97+2*jq}")
        E(f"    v_lshlrev_b32 v{k1}, 16, v{97+2*jq}")
        E(f"    v_and_b32 v{k2}, s40, v{96+2*jq}")
        E(f"    v_lshlrev_b32 v{k3}, 16, v{96+2*jq}")
        for kk in (k0, k1, k2, k3):
            E(f"    v_mul_f32 v{kk}, v{kk}, v9")
        round_pair(k0, k1, 108, 40)
        round_pair(k2, k3, 108, 40)
        y = 64 + 4 * jq
        round_pair(y, y + 1, 108, 40)
        round_pair(y + 2, y + 3, 108, 40)
        for e_, kk in enumerate((k0, k1, k2, k3)):
            E(f"    v_add_f32 v{y+e_}, v{y+e_}, v{kk}")
        E(f"    v_cvt_pk_bf16_f32 v{110+2*jq}, v{y}, v{y+1}")
        E(f"    v_cvt_pk_bf16_f32 v{111+2*jq}, v{y+2}, v{y+3}")
        E(f"    ds_write_b64 v6, v[{110+2*jq}:{111+2*jq}] offset:{16*jq}")
    E("    s_waitcnt lgkmcnt(0)")
    E("    ds_read_b128 v[104:107], v8")
    E("    ds_read_b128 v[108:111], v8 offset:1024")
    E("    s_waitcnt lgkmcnt(1)")
    E("    buffer_store_dwordx4 v[104:107], v7, s[24:27], s37 offen sc0 sc1")
    E("    s_waitcnt lgkmcnt(0)")
    E("    buffer_store_dwordx4 v[108:111], v7, s[24:27], s37 offen offset:1024 sc0 sc1")
    vm.issue("yst")
    vm.issue("yst")
    stamp(7, vm)
    E("    s_lshl_b32 s36, s32, 12")
    E("    s_lshl_b32 s37, s30, 3")
    E("    s_add_u32 s49, s36, s37")
    E(f"    s_add_u32 s49, s49, {FY_OFF}")
    gen_phase_c(vm)


def gen_phase_c(vm):
    RS = 16
    WT = 32
    HF = 48
    NH = 5
    WREG = 88
    NR = 12
    ACC = 184
    ACC = 183 - 0
    ACC = 184
    NK = 22
    REG = 20480
    global VL8
    E(f"    v_mov_b32 v15, v{VL8}")
    VL8_saved = VL8
    VL8 = 15
    E("    s_and_b32 s30, s50, 3")
    E("    s_lshl_b32 s31, s51, 2")
    E("    s_add_u32 s30, s30, s31")
    E("    s_lshr_b32 s31, s50, 2")
    E("    s_and_b32 s32, s3, 1")
    E("    s_lshr_b32 s33, s3, 1")
    srd(16, 82, 83, F * D * 2)
    srd_off(20, 88, 89, WS_H, H_BYTES)
    E("    s_mul_i32 s34, s3, 22")
    E("    s_cmp_eq_u32 s3, 3")
    E("    s_cselect_b32 s34, 65, s34")
    E("    v_lshrrev_b32 v3, 3, v1")
    E("    v_lshlrev_b32 v10, 10, v3")
    E("    v_and_b32 v4, 7, v1")
    E("    v_bfe_u32 v5, v1, 4, 1")
    E("    v_lshlrev_b32 v5, 2, v5")
    E("    v_xor_b32 v4, v4, v5")
    E("    v_lshl_add_u32 v10, v4, 4, v10")
    E("    s_lshl_b32 s35, s31, 7")
    E("    v_add_u32 v10, s35, v10")
    E("    s_lshl_b32 s41, s34, 14")
    E(f"    s_mul_i32 s37, s3, {REG}")

    def wdma(i, slot):
        for j in range(2):
            E(f"    s_add_u32 s38, s41, {(16*i + 8*j)*1024}")
            E(f"    s_add_u32 m0, s37, {slot*2048 + j*1024}")
            E("    s_nop 0")
            E("    buffer_load_dwordx4 v10, s[16:19], s38 offen lds")
            vm.issue(("w", i))

    E("    v_lshrrev_b32 v4, 5, v1")
    E("    v_and_b32 v5, 15, v1")
    E("    v_lshrrev_b32 v6, 2, v5")
    E("    v_lshl_add_u32 v6, v4, 3, v6")
    E("    v_lshlrev_b32 v11, 7, v6")
    E("    v_bfe_u32 v6, v1, 4, 1")
    E("    v_lshlrev_b32 v6, 5, v6")
    E("    v_and_b32 v7, 3, v5")
    E("    v_lshl_add_u32 v6, v7, 3, v6")
    E("    v_bfe_u32 v7, v1, 3, 1")
    E("    v_lshlrev_b32 v7, 6, v7")
    E("    v_xor_b32 v6, v6, v7")
    E("    v_add_u32 v11, v11, v6")
    E("    v_add_u32 v11, s37, v11")
    E("    v_xor_b32 v12, 64, v11")

    def wread(dst, slot):
        for wd in range(2):
            r = dst + 4 * wd
            E(f"    ds_read_b64_tr_b16 v[{r}:{r+1}], v{11+wd} offset:{slot*2048}")
            E(f"    ds_read_b64_tr_b16 v[{r+2}:{r+3}], v{11+wd} offset:{slot*2048+512}")

    srd(24, 64, 65, S * D * 2)
    srd_off(44, 88, 89, WS_XN, S * D * 2)
    srd_off(4, 88, 89, WS_YT, S * D * 2)
    srd(52, 84, 85, S * D * 2)
    E("    v_and_b32 v3, 31, v1")
    E("    v_lshlrev_b32 v13, 10, v3")
    E("    v_lshl_add_u32 v13, v4, 3, v13")
    E("    s_lshl_b32 s35, s30, 1")
    E("    s_add_u32 s35, s35, s32")
    E("    s_lshl_b32 s36, s35, 15")
    E("    s_lshl_b32 s38, s31, 7")
    E("    s_add_u32 s36, s36, s38")
    E("    s_lshl_b32 s38, s33, 6")
    E("    s_add_u32 s36, s36, s38")
    E("    v_add_u32 v13, s36, v13")
    XT, NT, YR = HF, HF + 8, HF + 16
    for q in range(4):
        E(f"    buffer_load_dwordx2 v[{XT+2*q}:{XT+2*q+1}], v13, s[24:27], 0 offen offset:{16*q}")
        vm.issue("x")
    vm.wait("yst")
    flag_store(vm, "s49")
    stamp(8, vm)
    E("    s_setprio 0")
    PACE = int(os.environ.get("PACE", "3"))

    def pace():
        if PACE:
            E(f"    s_sleep {PACE}")
    for i in range(12):
        if i >= 10:
            E("    s_waitcnt lgkmcnt(0)")
        wdma(i, i % 10)
        pace()
        if i >= 2:
            vm.wait(("w", i - 2))
            wread(WREG + 8 * (i - 2), i - 2)
    for i in (10, 11):
        vm.wait(("w", i))
        wread(WREG + 8 * i, i - 10)
    E("    s_waitcnt lgkmcnt(0)")
    stamp(9, vm)
    E("    s_lshl_b32 s36, s35, 7")
    if FX_OFF:
        E(f"    s_add_u32 s36, s36, {FX_OFF}")
    poll(vm, "s36", "0xffff", gap=0)
    E("    v_lshlrev_b32 v6, 4, v3")
    E("    v_lshl_add_u32 v6, v4, 3, v6")
    E("    s_lshl_b32 s36, s35, 15")
    E("    s_lshl_b32 s38, s31, 12")
    E("    s_add_u32 s36, s36, s38")
    E("    s_lshl_b32 s38, s33, 11")
    E("    s_add_u32 s36, s36, s38")
    for q in range(4):
        E(f"    buffer_load_dwordx2 v[{NT+2*q}:{NT+2*q+1}], v6, s[44:47], s36 offen offset:{512*q}")
        vm.issue("xn")
    E("    s_lshr_b32 s36, s30, 4")
    E("    s_lshl_b32 s36, s36, 12")
    E("    s_lshl_b32 s38, s31, 9")
    E("    s_add_u32 s36, s36, s38")
    E("    s_lshl_b32 s38, s33, 8")
    E("    s_add_u32 s36, s36, s38")
    E(f"    s_add_u32 s36, s36, {FY_OFF}")
    E("    v_lshrrev_b32 v6, 2, v1")
    E("    v_lshlrev_b32 v6, 12, v6")
    E("    v_and_b32 v7, 3, v1")
    E("    v_lshl_add_u32 v6, v7, 4, v6")
    E("    s_lshl_b32 s38, s31, 1")
    E("    s_add_u32 s38, s38, s33")
    E("    s_lshl_b32 s38, s38, 17")
    E("    s_lshl_b32 s39, s35, 6")
    E("    s_add_u32 s39, s39, s38")
    E("    v_lshrrev_b32 v7, 2, v5")
    E("    v_lshl_add_u32 v7, v4, 2, v7")
    E("    v_lshlrev_b32 v14, 6, v7")
    E("    v_bfe_u32 v7, v1, 4, 1")
    E("    v_lshl_add_u32 v14, v7, 5, v14")
    E("    v_and_b32 v7, 3, v5")
    E("    v_lshl_add_u32 v14, v7, 3, v14")
    E("    v_add_u32 v14, s37, v14")
    poll(vm, "s36", "0xffffffff")
    stamp(10, vm)
    for j in range(2):
        E(f"    s_add_u32 s38, s39, {16*4096*j}")
        E(f"    s_add_u32 m0, s37, {1024*j}")
        E("    s_nop 0")
        E("    buffer_load_dwordx4 v6, s[4:7], s38 offen lds")
        vm.issue("y")
    vm.wait("y")
    for q in range(4):
        E(f"    ds_read_b64_tr_b16 v[{YR+2*q}:{YR+2*q+1}], v14 offset:{q*512}")
    E("    s_waitcnt lgkmcnt(0)")
    for q in range(4):
        t = HF + 24
        xs = [RS + 4 * q + e_ for e_ in range(4)]
        ns = [t + e_ for e_ in range(4)]
        ys = [t + 4 + e_ for e_ in range(4)]
        for (dst, src) in ((xs, XT + 2 * q), (ns, NT + 2 * q), (ys, YR + 2 * q)):
            E(f"    v_lshlrev_b32 v{dst[0]}, 16, v{src}")
            E(f"    v_and_b32 v{dst[1]}, s40, v{src}")
            E(f"    v_lshlrev_b32 v{dst[2]}, 16, v{src+1}")
            E(f"    v_and_b32 v{dst[3]}, s40, v{src+1}")
        for e_ in range(4):
            E(f"    v_mul_f32 v{ns[e_]}, v{ns[e_]}, v{ys[e_]}")
        round_pair(ns[0], ns[1], t + 8, 40)
        round_pair(ns[2], ns[3], t + 8, 40)
        for e_ in range(4):
            E(f"    v_add_f32 v{xs[e_]}, v{xs[e_]}, v{ns[e_]}")
        round_pair(xs[0], xs[1], t + 8, 40)
        round_pair(xs[2], xs[3], t + 8, 40)
    stamp(14, vm)
    for i in range(12, 22):
        wdma(i, i - 10 if i < 20 else i - 20)
        pace()
    E("    s_lshl_b32 s36, s30, 8")
    E(f"    s_add_u32 s36, s36, {FH_OFF}")
    masks = []
    for lo, hi in ((0, 3), (3, 7), (7, 10), (10, 15)):
        m16 = ((1 << (hi + 1)) - 1) & ~((1 << lo) - 1)
        masks.append(m16 | (m16 << 16))
    E(f"    s_mov_b32 s44, {masks[0]:#x}")
    for w in range(1, 4):
        E(f"    s_cmp_eq_u32 s3, {w}")
        E(f"    s_cselect_b32 s44, {masks[w]:#x}, s44")
    E("    s_mov_b32 s45, 0")
    E(f"    s_mul_i32 s42, s30, {2*HB}")
    E("    s_lshl_b32 s38, s34, 10")
    E("    s_add_u32 s42, s42, s38")
    E(f"    s_add_u32 s43, s42, {HB}")
    E("    v_lshlrev_b32 v8, 4, v1")
    stamp(11, vm)
    poll(vm, "s36", "s[44:45]")
    stamp(12, vm)

    def hload(i):
        r = HF + 8 * (i % NH)
        if i % 4 == 0 and i:
            E("    s_add_u32 s42, s42, 4096")
            E("    s_add_u32 s43, s43, 4096")
        off = (i % 4) * 1024
        if i == NK - 1:
            assert off == 1024
            E("    s_cmp_lt_u32 s3, 2")
            E("    s_cselect_b32 s38, 1024, 0")
            E("    s_add_u32 s42, s42, s38")
            E("    s_add_u32 s43, s43, s38")
            off = 0
        for e_ in range(2):
            E(f"    buffer_load_dwordx4 v[{r+4*e_}:{r+4*e_+3}], v8, s[20:23], s{42+e_} offen offset:{off}")
            vm.issue(("h", i))

    E("    s_mul_i32 s38, s31, 44")
    E("    v_add_u32 v6, s38, v1")
    E("    v_cmp_le_u32 vcc, 176, v6")
    E("    v_subrev_u32 v7, 176, v6")
    E("    v_cndmask_b32 v6, v6, v7, vcc")
    E("    s_cmp_lt_u32 s3, 2")
    E("    s_cselect_b32 s38, 8, 0")
    E("    s_add_u32 s38, s38, 167")
    E("    v_min_u32 v6, s38, v6")
    E("    v_lshlrev_b32 v6, 7, v6")
    E(f"    v_mov_b32 v7, {HB}")
    E("    v_cndmask_b32 v7, 0, v7, vcc")
    E("    v_add_u32 v6, v6, v7")
    E("    s_mov_b32 exec_hi, 0xfff")
    E("    buffer_load_dword v7, v6, s[20:23], s42 offen")
    E("    s_mov_b64 exec, -1")
    vm.issue("pf")
    for i in range(NH):
        hload(i)

    def wsrc(i):
        return WREG + 8 * i if i < NR else WT + 8 * (i % 2)

    def wslot(i):
        return i - 10 if i < 20 else i - 20

    for i in range(NK):
        if i == NK - 1:
            E("    s_cmp_ge_u32 s3, 2")
            E("    s_cbranch_scc1 pc_skip")
        vm.wait(("h", i))
        if i >= NR:
            E("    s_waitcnt lgkmcnt(0)")
        if NR <= i + 1 < NK:
            wread(WT + 8 * ((i + 1) % 2), wslot(i + 1))
        h = HF + 8 * (i % NH)
        w = wsrc(i)
        for wd in range(2):
            for wm in range(2):
                a = ACC + 16 * (2 * wd + wm)
                c = "0" if i == 0 else f"v[{a}:{a+15}]"
                E(f"    v_mfma_f32_32x32x16_bf16 v[{a}:{a+15}], v[{w+4*wd}:{w+4*wd+3}], v[{h+4*wm}:{h+4*wm+3}], {c}")
        if i + NH < NK:
            hload(i + NH)
    E("pc_skip:")
    stamp(13)
    E("    s_waitcnt vmcnt(0) lgkmcnt(0)")
    E("    v_add_u32 v6, s37, v8")
    E("    s_lshl_b32 s36, s3, 12")
    E("    v_add_u32 v7, s36, v8")
    E("    s_nop 15")
    E("    s_nop 3")
    for q in range(4):
        for jq in range(4):
            a = ACC + 16 * q + 4 * jq
            E(f"    ds_write_b128 v6, v[{a}:{a+3}] offset:{q*4096 + jq*1024}")
    E("    s_waitcnt lgkmcnt(0)")
    E("    s_barrier")
    PS = WREG
    for w in range(4):
        for jq in range(4):
            r = PS + 16 * w + 4 * jq
            E(f"    ds_read_b128 v[{r}:{r+3}], v7 offset:{w*REG + jq*1024}")
    E("    s_waitcnt lgkmcnt(8)")
    for j in range(16):
        E(f"    v_add_f32 v{PS+j}, v{PS+j}, v{PS+16+j}")
    E("    s_waitcnt lgkmcnt(0)")
    for j in range(16):
        E(f"    v_add_f32 v{PS+32+j}, v{PS+32+j}, v{PS+48+j}")
    for j in range(16):
        E(f"    v_add_f32 v{PS+j}, v{PS+j}, v{PS+32+j}")
    for jq in range(4):
        a = PS + 4 * jq
        xs = [RS + 4 * jq + e_ for e_ in range(4)]
        round_pair(a, a + 1, 48, 40)
        round_pair(a + 2, a + 3, 48, 40)
        for e_ in range(4):
            E(f"    v_add_f32 v{xs[e_]}, v{xs[e_]}, v{a+e_}")
        o = 52 + 2 * jq
        E(f"    v_cvt_pk_bf16_f32 v{o}, v{xs[0]}, v{xs[1]}")
        E(f"    v_cvt_pk_bf16_f32 v{o+1}, v{xs[2]}, v{xs[3]}")
        E(f"    buffer_store_dwordx2 v[{o}:{o+1}], v13, s[52:55], 0 offen offset:{16*jq}")
    if DIAG:
        E("    s_waitcnt vmcnt(0)")
    stamp(31)
    E("    s_endpgm")
    VL8 = VL8_saved


def gen_kernel():
    E(f".globl {KNAME}")
    E(".p2align 8")
    E(f".type {KNAME},@function")
    E(f"{KNAME}:")
    E("    s_cmp_ge_u32 s2, 512")
    E("    s_cbranch_scc1 k_done")
    E("    s_load_dwordx16 s[64:79], s[0:1], 0")
    E("    s_load_dwordx8 s[80:87], s[0:1], 64")
    E("    s_load_dwordx2 s[88:89], s[0:1], 96")
    E("    s_memrealtime s[90:91]")
    E("    s_mov_b32 s40, 0xffff0000")
    E("    v_and_b32 v1, 63, v0")
    E("    v_lshrrev_b32 v2, 6, v0")
    E(f"    v_lshlrev_b32 v{VL8}, {3+FSH}, v1")
    E("    v_readfirstlane_b32 s3, v2")
    E("    s_waitcnt lgkmcnt(0)")
    stamp_init()
    stamp(0)
    srd_off(56, 88, 89, WS_FLAG, FLAG_BYTES)
    srd(60, 86, 87, 256)
    E("    s_cmp_lt_u32 s2, 256")
    E("    s_cbranch_scc1 c_type")
    gen_gtype()
    gen_ctype()
    E("k_done:")
    E("    s_endpgm")


def main():
    hdr = open("parallel_sum__ssm_conv_h3__glu_gated_bilinear__prompt.s.ref").read().splitlines()
    for l in hdr:
        if l.startswith("; Override") or l.startswith("; grid=") or l.startswith("; @launch"):
            continue
        if not l.startswith(";"):
            break
        E(l)
    E(f"; @launch grid=(512,1,1) block=(256,1,1) lds={LDS_BYTES}")
    E('.amdgcn_target "amdgcn-amd-amdhsa--gfx950"')
    E(".text")
    gen_kernel()
    E('.section .rodata,"a"')
    E(".p2align 6")
    E(f".amdhsa_kernel {KNAME}")
    E("  .amdhsa_next_free_vgpr 256")
    E("  .amdhsa_next_free_sgpr 102")
    E("  .amdhsa_accum_offset 256")
    E("  .amdhsa_group_segment_fixed_size 0")
    E("  .amdhsa_kernarg_size 104")
    E("  .amdhsa_user_sgpr_count 2")
    E("  .amdhsa_user_sgpr_kernarg_segment_ptr 1")
    E("  .amdhsa_system_sgpr_workgroup_id_x 1")
    E(".end_amdhsa_kernel")
    path = sys.argv[1] if len(sys.argv) > 1 else "fused.s"
    open(path, "w").write("\n".join(out) + "\n")
    print("wrote", path, len(out), "lines")


main()
```

```python
import sys, os

S, D, F = 2048, 512, 1376
WS_XN = 0x000000
WS_KVR = 0x200000
WS_H = 0x400000
WS_YT = 0xA00000
WS_FLAG = 0xC00000
FX_OFF = 0x0000
FK_OFF = 0x2000
FH_OFF = 0x4000
FY_OFF = 0x6000
FSH = int(os.environ.get("FSH", "4"))
FG_OFF = 0x8000
FLAG_BYTES = 0x9000 << FSH
HS = int(os.environ.get("HS", "10"))
HB = 86 * 1024
H_BYTES = 64 * HB
KNAME = "parallel_sum__ssm_conv_h3__glu_gated_bilinear__prompt_kernel"
POLL_LIMIT = 200000

out = []


def E(s=""):
    out.append(s)


class VM:
    def __init__(self):
        self.q = []

    def issue(self, tag):
        self.q.append(tag)

    def wait(self, tag):
        idx = -1
        for i, t in enumerate(self.q):
            if t == tag:
                idx = i
        if idx < 0:
            return
        n = len(self.q) - 1 - idx
        assert n <= 63, n
        E(f"    s_waitcnt vmcnt({n})")
        self.q = self.q[idx + 1:]

    def wait_all(self):
        E("    s_waitcnt vmcnt(0)")
        self.q = []


DIAG = len(sys.argv) > 2 and sys.argv[2] == "diag"
STAMP_WS = 0x2000000


def stamp_init():
    if not DIAG:
        return
    E(f"    s_add_u32 s96, s88, {STAMP_WS}")
    E("    s_addc_u32 s97, s89, 0")
    E("    s_and_b32 s97, s97, 0xffff")
    E("    s_mov_b32 s98, 0x80000")
    E("    s_mov_b32 s99, 0x00020000")
    E("    s_lshl_b32 s100, s2, 2")
    E("    s_add_u32 s100, s100, s3")
    E("    s_lshl_b32 s100, s100, 7")
    E("    v_mov_b32 v254, s100")


def stamp(slot, vm=None):
    if not DIAG:
        return
    E("    s_waitcnt lgkmcnt(0)")
    E("    s_memrealtime s[100:101]")
    E("    s_waitcnt lgkmcnt(0)")
    E("    v_mov_b32 v255, s100")
    E("    s_mov_b64 s[94:95], exec")
    E("    s_mov_b64 exec, 1")
    E(f"    buffer_store_dword v255, v254, s[96:99], 0 offen offset:{4*slot}")
    E("    s_mov_b64 exec, s[94:95]")
    if vm is not None:
        vm.issue("stamp")


def stampclk(slot, vm=None):
    if not DIAG:
        return
    E("    s_waitcnt lgkmcnt(0)")
    E("    s_memtime s[100:101]")
    E("    s_waitcnt lgkmcnt(0)")
    stampval(slot, "s100", vm)


def stampval(slot, sg, vm=None):
    if not DIAG:
        return
    E(f"    v_mov_b32 v255, {sg}")
    E("    s_mov_b64 s[94:95], exec")
    E("    s_mov_b64 exec, 1")
    E(f"    buffer_store_dword v255, v254, s[96:99], 0 offen offset:{4*slot}")
    E("    s_mov_b64 exec, s[94:95]")
    if vm is not None:
        vm.issue("stamp")


def srd(dst, lo, hi, nbytes):
    E(f"    s_mov_b32 s{dst}, s{lo}")
    E(f"    s_and_b32 s{dst+1}, s{hi}, 0xffff")
    E(f"    s_mov_b32 s{dst+2}, {nbytes}")
    E(f"    s_mov_b32 s{dst+3}, 0x00020000")


def srd_off(dst, lo, hi, off, nbytes):
    E(f"    s_add_u32 s{dst}, s{lo}, {off}")
    E(f"    s_addc_u32 s{dst+1}, s{hi}, 0")
    E(f"    s_and_b32 s{dst+1}, s{dst+1}, 0xffff")
    E(f"    s_mov_b32 s{dst+2}, {nbytes}")
    E(f"    s_mov_b32 s{dst+3}, 0x00020000")


def wave_reduce_add(v, t):
    E("    s_nop 1")
    E(f"    v_add_f32_dpp v{t}, v{v}, v{v} quad_perm:[1,0,3,2] row_mask:0xf bank_mask:0xf")
    E("    s_nop 1")
    E(f"    v_add_f32_dpp v{v}, v{t}, v{t} quad_perm:[2,3,0,1] row_mask:0xf bank_mask:0xf")
    E("    s_nop 1")
    E(f"    v_add_f32_dpp v{t}, v{v}, v{v} row_half_mirror row_mask:0xf bank_mask:0xf")
    E("    s_nop 1")
    E(f"    v_add_f32_dpp v{v}, v{t}, v{t} row_mirror row_mask:0xf bank_mask:0xf")
    E(f"    v_mov_b32 v{t}, v{v}")
    E("    s_nop 1")
    E(f"    v_permlane16_swap_b32 v{v}, v{t}")
    E("    s_nop 1")
    E(f"    v_add_f32 v{v}, v{v}, v{t}")
    E(f"    v_mov_b32 v{t}, v{v}")
    E("    s_nop 1")
    E(f"    v_permlane32_swap_b32 v{v}, v{t}")
    E("    s_nop 1")
    E(f"    v_add_f32 v{v}, v{v}, v{t}")


def round_pair(a, b, t, mask_sgpr):
    E(f"    v_cvt_pk_bf16_f32 v{t}, v{a}, v{b}")
    E(f"    v_lshlrev_b32 v{a}, 16, v{t}")
    E(f"    v_and_b32 v{b}, s{mask_sgpr}, v{t}")


PA, PB, TK, VL8 = 248, 250, 252, 247
_lbl = [0]


def token_issue(vm):
    E(f"    buffer_load_dwordx2 v[{TK}:{TK+1}], off, s[60:63], 0")
    vm.issue("tok")


def token_get(vm):
    _lbl[0] += 1
    n = _lbl[0]
    vm.wait("tok")
    E(f"    s_mov_b32 s92, {POLL_LIMIT}")
    E(f"tok_l{n}:")
    E(f"    v_readfirstlane_b32 s90, v{TK}")
    E(f"    v_readfirstlane_b32 s91, v{TK+1}")
    E("    s_cmp_lg_u32 s90, 0")
    E(f"    s_cbranch_scc1 tok_d{n}")
    E(f"    buffer_load_dwordx2 v[{TK}:{TK+1}], off, s[60:63], 0 sc0 sc1")
    E("    s_waitcnt vmcnt(0)")
    E("    s_sub_u32 s92, s92, 1")
    E("    s_cmp_lg_u32 s92, 0")
    E(f"    s_cbranch_scc1 tok_l{n}")
    E(f"tok_d{n}:")


def flag_store(vm, soff):
    E(f"    s_lshl_b32 s93, {soff}, {FSH}")
    E("    s_mov_b64 exec, 1")
    E(f"    buffer_store_dwordx2 v[{TK}:{TK+1}], off, s[56:59], s93 sc0 sc1")
    E("    s_mov_b64 exec, -1")
    vm.issue("flag")


POLL_SLEEP = int(os.environ.get("PS", "4"))


def poll(vm, soff, mask, gap=6):
    _lbl[0] += 1
    n = _lbl[0]
    if mask == "0xffffffff":
        E("    s_mov_b32 exec_hi, 0")
    else:
        E(f"    s_mov_b64 exec, {mask}")
    E(f"    s_mov_b32 s92, {POLL_LIMIT}")
    E(f"    s_lshl_b32 s93, {soff}, {FSH}")
    E(f"poll_l{n}:")
    E(f"    buffer_load_dwordx2 v[{PA}:{PA+1}], v{VL8}, s[56:59], s93 offen sc0 sc1")
    E("    s_waitcnt vmcnt(0)")
    E(f"    v_cmp_ne_u64 vcc, s[90:91], v[{PA}:{PA+1}]")
    E("    s_cmp_eq_u64 vcc, 0")
    E(f"    s_cbranch_scc1 poll_d{n}")
    E("    s_mov_b64 exec, vcc")
    E(f"    s_sleep {POLL_SLEEP}")
    E("    s_sub_u32 s92, s92, 1")
    E("    s_cmp_lg_u32 s92, 0")
    E(f"    s_cbranch_scc1 poll_l{n}")
    E(f"poll_d{n}:")
    E("    s_mov_b64 exec, -1")
    vm.q = []


TG = int(os.environ.get("TG", "128"))


def w_touch(vm, lo, hi, sr, vt):
    srd(44, lo, hi, D * F * 2)
    E(f"    s_lshl_b32 s38, {sr}, 2")
    E("    s_add_u32 s38, s38, s3")
    E("    s_mul_i32 s38, s38, 4*2752")
    sh = 4 if TG == 128 else 5
    E(f"    v_lshrrev_b32 v{vt}, {sh}, v1")
    E(f"    v_mul_u32_u24 v{vt}, 2752, v{vt}")
    E(f"    v_and_b32 v{vt+1}, {(1 << sh) - 1}, v1")
    E(f"    v_min_u32 v{vt+1}, {12 if TG == 128 else 24}, v{vt+1}")
    E(f"    v_lshlrev_b32 v{vt+1}, {7 if TG == 128 else 6}, v{vt+1}")
    E("    s_and_b32 s93, s2, 1")
    E("    s_mul_i32 s93, s93, 1536")
    E(f"    v_add_u32 v{vt+1}, s93, v{vt+1}")
    E(f"    v_min_u32 v{vt+1}, 2750, v{vt+1}")
    E(f"    v_add_u32 v{vt}, v{vt}, v{vt+1}")
    E(f"    buffer_load_ushort v{vt+1}, v{vt}, s[44:47], s38 offen")
    vm.issue("pf")
    if TG == 64:
        E("    s_add_u32 s38, s38, 2*2752")
        E(f"    buffer_load_ushort v{vt+1}, v{vt}, s[44:47], s38 offen")
        vm.issue("pf")


RING = 61440
STAGE_OFF = 61440
STAT_OFF = 77824
GACC = 88
SLOT0 = 184
NSLOT = 8
REG = 20480
S_LO, S_HI, S_ONE = 4, 5, 6
GPRIO = int(os.environ.get("GPRIO", "2"))
CPRIO = int(os.environ.get("CPRIO", "1"))
TOUCH = os.environ.get("TOUCH", "x")
NWE = int(os.environ.get("NWE", "3"))
WD_AT = os.environ.get("WD_AT", "conv")


def xreg(p, a):
    if p == 0:
        return GACC + 4 * a
    if p == 1:
        return GACC + 8 if a == 0 else 248
    if p < 2 + NSLOT:
        return SLOT0 + 8 * (p - 2) + 4 * a
    return GACC + 12 + 8 * (p - 2 - NSLOT) + 4 * a


def xreg2(p, a):
    if p < 2 + NSLOT:
        return xreg(p, a)
    return SLOT0 + 8 * ((p - 2) % NSLOT) + 4 * a


CUR_VM = [None]


def norm_ops(p, a):
    R = xreg2(p, a)
    T = 24
    NM = 20 + a
    RC = 22 + a
    ops = []
    for d in range(4):
        ops.append(f"    v_lshlrev_b32 v{T+2*d}, 16, v{R+d}")
        ops.append(f"    v_and_b32 v{T+2*d+1}, s40, v{R+d}")
    for j in range(8):
        ops.append(f"    v_add_f32 v{T+j}, v{T+j}, v{NM}")
    for j in range(8):
        ops.append(f"    v_cvt_pk_bf16_f32 v{T+j}, 0, v{T+j}")
    for j in range(8):
        ops.append(f"    v_mul_f32 v{T+j}, v{T+j}, v{RC}")
    for d in range(4):
        ops.append(f"    v_cvt_pk_bf16_f32 v{R+d}, v{T+2*d}, v{T+2*d+1}")
    if os.environ.get("DBG") == "1":
        ops.append("    s_nop 7")
    if os.environ.get("DUMP"):
        ops.append(f"    s_add_u32 s28, s7, {(2*p+a)*1024}\n    buffer_store_dwordx4 v[{R}:{R+3}], v8, s[12:15], s28 offen")
    ops.append(f"    ds_write_b128 v{6+a}, v[{R}:{R+3}] offset:{(p % 2) * 2048}")
    XP = os.environ.get("XP", "")
    if p >= 2:
        if "d" in XP:
            ops = [o for o in ops if "v_dot2" not in o]
        if "p" in XP:
            ops = [o for o in ops if "v_pk_mul" not in o]
        if "c" in XP:
            ops = [o for o in ops if "v_cvt" not in o]
        if "s" in XP:
            ops = [o for o in ops if "v_lshl" not in o and "v_and" not in o]
        if "v" in XP:
            ops = [o for o in ops if "ds_write" in o]

    def mk(s):
        def f():
            E(s)
            if "buffer_store" in s:
                CUR_VM[0].issue("dump")
        return f
    return [mk(s) for s in ops]


def wslot(i):
    if i < 10:
        return i
    if i < 12:
        return i - 10
    if i < 20:
        return 21 - i
    return i - 20


def wdma_ops(vm, i):
    ops = []
    for j in range(2):
        def f(j=j):
            E(f"    s_add_u32 s38, s41, {(16*i + 8*j)*1024}")
            E(f"    s_add_u32 m0, s37, {wslot(i)*2048 + j*1024}")
            E("    s_nop 0")
            E("    buffer_load_dwordx4 v10, s[8:11], s38 offen lds")
            vm.issue(("w", i))
        ops.append(f)
    return ops


def gen_gtype_path(nt, vm0):
    vm = VM()
    vm.q = list(vm0.q)
    CUR_VM[0] = vm
    ACC = GACC
    WF = 32
    XF = 80
    P = 64 * nt
    STG = 64 * P
    NB = RING // STG
    nst = 16

    def dma_ops(st):
        buf = st % NB
        ops = []
        for i in range(nt):
            def f(i=i):
                E(f"    s_add_u32 s38, s48, {(st % 2 if 'w' in os.environ.get('XP','') else st)*32*2752}")
                E(f"    s_add_u32 m0, s43, {buf*STG + i*1024}")
                E("    s_nop 0")
                E(f"    buffer_load_dwordx4 v{16+i}, s[52:55], s38 offen lds")
                vm.issue(("dma", st))
            ops.append(f)
        return ops

    def reload_ops(p):
        ops = []
        for a in range(2):
            def f(a=a):
                r = xreg2(p, a)
                E(f"    buffer_load_dwordx4 v[{r}:{r+3}], v{4+a}, s[16:19], s32 offen offset:{64*p}")
                vm.issue(("xr", p))
            ops.append(f)
        return ops

    E("    s_lshr_b32 s49, s3, 1")
    E("    s_cmp_eq_u32 s49, 1")
    E("    s_cselect_b32 s52, s80, s78")
    E("    s_cselect_b32 s53, s81, s79")
    E("    s_and_b32 s53, s53, 0xffff")
    E(f"    s_mov_b32 s54, {D*F*2}")
    E("    s_mov_b32 s55, 0x00020000")
    E("    s_and_b32 s49, s3, 1")
    E("    s_mul_i32 s48, s49, 16*2752")
    E("    s_add_u32 s48, s48, s36")
    E(f"    s_mul_i32 s43, s3, {16*P}")
    E("    s_movk_i32 s49, 2752")
    for i in range(nt):
        E(f"    v_add_u32 v14, {64*i}, v1")
        if nt == 3:
            E("    v_mul_u32_u24 v15, 0x5556, v14")
            E("    v_lshrrev_b32 v15, 18, v15")
            E("    v_mul_u32_u24 v20, 12, v15")
        else:
            E("    v_lshrrev_b32 v15, 3, v14")
            E("    v_lshlrev_b32 v20, 3, v15")
        E("    v_sub_u32 v14, v14, v20")
        E("    v_mul_lo_u32 v15, v15, s49")
        E(f"    v_lshl_add_u32 v{16+i}, v14, 4, v15")
    for st in range(NB):
        for f in dma_ops(st):
            f()
    if TOUCH == "early":
        w_touch(vm, 80, 81, "s33", 252)
    E("    v_and_b32 v14, 15, v1")
    E("    v_lshrrev_b32 v15, 2, v14")
    E("    v_lshl_add_u32 v15, v13, 3, v15")
    E(f"    v_mul_u32_u24 v11, {P}, v15")
    E("    v_bfe_u32 v15, v1, 4, 1")
    E("    v_lshl_add_u32 v11, v15, 5, v11")
    E("    v_and_b32 v15, 3, v14")
    E("    v_lshl_add_u32 v11, v15, 3, v11")
    SA = WF
    for j in range(8):
        E(f"    v_mov_b32 v{SA+j}, 0")
    if os.environ.get("DBG") == "3":
        vm.wait_all()
    for p in range(16):
        if p % 2 == 0:
            vm.wait(("x", p + 1))
            if p == 0:
                stamp(1, vm)
        for a in range(2):
            R = xreg(p, a)
            for d in range(4):
                E(f"    v_dot2c_f32_bf16 v{SA+2*a+d%2}, s{S_ONE}, v{R+d}")
                E(f"    v_dot2c_f32_bf16 v{SA+4+2*a+d%2}, v{R+d}, v{R+d}")
    stamp(2, vm)
    if TOUCH != "early":
        w_touch(vm, 80, 81, "s33", 252)
    E("    s_nop 3")
    for j in range(4):
        E(f"    v_add_f32 v{SA+8+j}, v{SA+2*j}, v{SA+2*j+1}")
    E("    s_nop 1")
    for j in range(4):
        E(f"    v_add_f32_dpp v{SA+j}, v{SA+8+j}, v{SA+8+j} quad_perm:[1,0,3,2] row_mask:0xf bank_mask:0xf")
    E("    s_nop 1")
    for j in range(4):
        E(f"    v_add_f32_dpp v{SA+8+j}, v{SA+j}, v{SA+j} quad_perm:[2,3,0,1] row_mask:0xf bank_mask:0xf")
    for j in range(4):
        E(f"    v_mul_f32 v{SA+8+j}, 0x3b000000, v{SA+8+j}")
    for a in range(2):
        E(f"    v_fma_f32 v{SA+10+a}, -v{SA+8+a}, v{SA+8+a}, v{SA+10+a}")
    for a in range(2):
        E(f"    v_max_f32 v{SA+10+a}, 0, v{SA+10+a}")
    round_pair(SA + 8, SA + 9, SA, 40)
    round_pair(SA + 10, SA + 11, SA + 1, 40)
    for a in range(2):
        E(f"    v_add_f32 v{SA+10+a}, 0x3727c5ac, v{SA+10+a}")
    round_pair(SA + 10, SA + 11, SA, 40)
    for a in range(2):
        E(f"    v_sqrt_f32 v{SA+10+a}, v{SA+10+a}")
    for a in range(2):
        E(f"    v_sub_f32 v{20+a}, 0, v{SA+8+a}")
        E(f"    v_sub_f32 v{SA+4+2*a}, 0, v{SA+8+a}")
    round_pair(SA + 10, SA + 11, SA, 40)
    for a in range(2):
        E(f"    v_rcp_f32 v{SA+5+2*a}, v{SA+10+a}")
    E("    v_lshlrev_b32 v14, 1, v1")
    E("    s_lshl_b32 s38, s3, 8")
    E(f"    s_add_u32 s38, s38, {STAT_OFF}")
    E("    v_add_u32 v14, s38, v14")
    for a in range(2):
        E(f"    v_mov_b32 v{22+a}, v{SA+5+2*a}")
    E("    s_mov_b32 exec_lo, 0x11111111")
    E("    s_mov_b32 exec_hi, 0x11111111")
    E(f"    ds_write_b64 v14, v[{SA+4}:{SA+5}]")
    E(f"    ds_write_b64 v14, v[{SA+6}:{SA+7}] offset:128")
    E("    s_mov_b64 exec, -1")
    for (p, a) in ((0, 0), (0, 1), (1, 0)):
        for f in norm_ops(p, a):
            f()
    stamp(3, vm)
    vm.wait(("dma", 0))
    E("    s_waitcnt lgkmcnt(0)")
    E("    s_barrier")
    stamp(4, vm)
    stampclk(16, vm)
    E("    s_lshr_b32 s38, s31, 3")
    E("    s_lshl_b32 s38, s38, 1")
    E("    s_and_b32 s49, s3, 1")
    E("    s_add_u32 s38, s38, s49")
    E("    s_lshl_b32 s38, s38, 8")
    E(f"    s_add_u32 s38, s38, {STAT_OFF}")
    E("    v_and_b32 v14, 31, v1")
    E("    v_lshlrev_b32 v14, 3, v14")
    E("    v_add_u32 v14, s38, v14")
    E("    ds_read_b64 v[2:3], v14")

    dq = []

    def ds(tag, text):
        def f():
            E(text)
            dq.append(tag)
        return f

    def ds_wait(tags):
        idx = max([i for i, t in enumerate(dq) if t in tags], default=-1)
        if idx < 0:
            return
        n = len(dq) - 1 - idx
        E(f"    s_waitcnt lgkmcnt({min(n, 15)})")
        del dq[:idx + 1]

    def fr_ops(k, mt):
        setidx, buf, ks = k % 2, (k // 2) % NB, k % 2
        ops = []
        if mt == 0:
            x = XF + 4 * (k % 2)
            ops.append(ds(("x", k), f"    ds_read_b128 v[{x}:{x+3}], v{9+ks} offset:{((k//2) % 2)*2048}"))
        r = WF + 24 * setidx + 4 * mt
        base = buf * STG + (mt // nt) * 32 * P + ks * 16 * P + (mt % nt) * 64
        ops.append(ds(("w", k, mt), f"    ds_read_b64_tr_b16 v[{r}:{r+1}], v11 offset:{base}"))
        ops.append(ds(("w", k, mt), f"    ds_read_b64_tr_b16 v[{r+2}:{r+3}], v11 offset:{base+4*P}"))
        return ops

    WSTEP = int(os.environ.get("WSTEP", "2"))

    def mfma_group(k, fill):
        x = XF + 4 * (k % 2)
        fill = list(fill)
        n = 2 * nt
        for mt in range(n):
            w = WF + 24 * (k % 2) + 4 * mt
            a = ACC + 16 * mt
            c = "0" if k == 0 else f"v[{a}:{a+15}]"
            if mt % WSTEP == 0:
                ds_wait([("x", k)] + [("w", k, m2) for m2 in range(mt, min(n, mt + WSTEP))])
            E(f"    v_mfma_f32_32x32x16_bf16 v[{a}:{a+15}], v[{w}:{w+3}], v[{x}:{x+3}], {c}")
            if k + 1 < 32:
                for f in fr_ops(k + 1, mt):
                    f()
            per = (len(fill) + (n - mt) - 1) // (n - mt)
            for _ in range(per):
                if fill:
                    fill.pop(0)()

    dq.append("stat")
    for mt in range(2 * nt):
        for f in fr_ops(0, mt):
            f()
    for k in range(32):
        st = k // 2
        if k % 2 == 1 and st + 1 < nst:
            vm.wait(("dma", st + 1))
        if k == 31:
            E("    s_waitcnt lgkmcnt(0)")
            del dq[:]
        if k % 2 == 1:
            if 'b' not in os.environ.get('XP','') or k == 31:
                E("    s_barrier")
            if st % 4 == 3 and st < 15 and DIAG:
                stamp(5 + st // 4, vm)
                stampclk(17 + st // 4, vm)
                del dq[:]
        mem = []
        if k >= 3:
            s_ = (k - 3) // 2
            if s_ + NB < nst and 'n' not in os.environ.get('XP',''):
                d = dma_ops(s_ + NB)
                h_ = (nt + 1) // 2
                mem += d[:h_] if k % 2 == 1 else d[h_:]
        if k % 2 == 1:
            q = (k + 1) // 2
            if 2 <= q and q + NSLOT < 16:
                mem += reload_ops(q + NSLOT)
        q, a = ((k + 3) // 2, 0) if k % 2 == 1 else ((k + 2) // 2, 1)
        nrm = []
        if q < 16:
            if q >= 2 + NSLOT and a == 0:
                vm.wait(("xr", q))
            nrm = norm_ops(q, a)
            last = nrm[-1]
            nrm[-1] = lambda last=last: (last(), dq.append("wr"))
        if k == 31:
            E("    s_setprio 3")
            srd(8, 82, 83, F * D * 2)
            E("    s_mul_i32 s34, s3, 22")
            E("    s_cmp_eq_u32 s3, 3")
            E("    s_cselect_b32 s34, 65, s34")
            E("    s_lshl_b32 s41, s34, 14")
            E(f"    s_mul_i32 s37, s3, {REG}")
            E("    v_lshrrev_b32 v14, 3, v1")
            E("    v_lshlrev_b32 v10, 10, v14")
            E("    v_and_b32 v14, 7, v1")
            E("    v_bfe_u32 v15, v1, 4, 1")
            E("    v_lshlrev_b32 v15, 2, v15")
            E("    v_xor_b32 v14, v14, v15")
            E("    v_lshl_add_u32 v10, v14, 4, v10")
            E("    s_and_b32 s35, s31, 7")
            E("    s_lshl_b32 s35, s35, 7")
            E("    v_add_u32 v10, s35, v10")
            token_issue(vm)
            for i in range(NWE):
                mem += wdma_ops(vm, i)
        mixed = []
        stepm = max(1, len(nrm) // (len(mem) + 1))
        for n_, f in enumerate(nrm):
            mixed.append(f)
            if mem and (n_ + 1) % stepm == 0 and n_ + 1 < len(nrm):
                mixed.append(mem.pop(0))
        mixed += mem
        mfma_group(k, mixed)
    stamp(8, vm)
    E("    s_nop 15")
    for tau in range(nt):
        G = ACC + 16 * tau
        U = ACC + 16 * (nt + tau)
        T = 14
        for j in range(16):
            E(f"    v_cvt_pk_bf16_f32 v{G+j}, 0, v{G+j}")
            E(f"    v_cvt_pk_bf16_f32 v{U+j}, 0, v{U+j}")
        for j in range(16):
            E(f"    v_mul_f32 v{G+j}, v{G+j}, v{U+j}")
        PK = 32 + 8 * tau
        for j in range(8):
            E(f"    v_cvt_pk_bf16_f32 v{PK+j}, v{G+2*j}, v{G+2*j+1}")
        E("    s_nop 1")
        for pair in range(2):
            q0 = PK + 4 * pair
            E(f"    v_permlane32_swap_b32 v{q0}, v{q0+2}")
            E(f"    v_permlane32_swap_b32 v{q0+1}, v{q0+3}")
        E(f"    s_add_u32 s38, s42, {tau*2048}")
        for pair in range(2):
            q0 = PK + 4 * pair
            E(f"    buffer_store_dwordx4 v[{q0}:{q0+3}], v8, s[24:27], s38 offen offset:{pair*1024} sc0 sc1")
            vm.issue("hst")
    stamp(9, vm)
    token_get(vm)
    for i in range(NWE, 10):
        for f in wdma_ops(vm, i):
            f()
    vm.wait("hst")
    flag_store(vm, "s39")
    stamp(10, vm)
    E("    s_branch phase_c")


def gen_gtype():
    vm = VM()
    E(f"    s_setprio {GPRIO}")
    E("    s_or_b32 s34, s2, s3")
    E("    s_cmp_eq_u32 s34, 0")
    E("    s_cbranch_scc0 g_notok")
    E("    s_or_b32 s90, s90, 1")
    E(f"    v_mov_b32 v{TK}, s90")
    E(f"    v_mov_b32 v{TK+1}, s91")
    E("    s_mov_b64 exec, 1")
    E(f"    buffer_store_dwordx2 v[{TK}:{TK+1}], off, s[60:63], 0 sc0 sc1")
    E("    s_mov_b64 exec, -1")
    E("g_notok:")
    E("    s_lshr_b32 s33, s2, 3")
    E("    s_bfe_u32 s30, s2, 0x20001")
    E("    s_lshl_b32 s30, s30, 2")
    E("    s_lshr_b32 s31, s33, 3")
    E("    s_add_u32 s30, s30, s31")
    E("    s_and_b32 s31, s2, 1")
    E("    s_lshl_b32 s31, s31, 3")
    E("    s_and_b32 s34, s33, 7")
    E("    s_add_u32 s31, s31, s34")
    srd(16, 64, 65, S * D * 2)
    E("    s_lshl_b32 s32, s30, 17")
    E("    s_lshl_b32 s34, s3, 15")
    E("    s_add_u32 s32, s32, s34")
    E("    v_lshrrev_b32 v12, 2, v1")
    E("    v_and_b32 v13, 3, v1")
    E("    v_lshlrev_b32 v4, 10, v12")
    E("    v_lshl_add_u32 v4, v13, 4, v4")
    E("    v_add_u32 v5, 16384, v4")
    for p in range(16):
        for a in range(2):
            r = xreg(p, a)
            E(f"    buffer_load_dwordx4 v[{r}:{r+3}], v{4+a}, s[16:19], s32 offen offset:{64*p}")
            vm.issue(("x", p))
    srd_off(24, 88, 89, WS_H, H_BYTES)
    if os.environ.get("DUMP"):
        srd_off(12, 88, 89, 0x4000000, 0x4000000)
        E("    s_lshl_b32 s7, s2, 2")
        E("    s_add_u32 s7, s7, s3")
        E("    s_lshl_b32 s7, s7, 15")
    E(f"    s_mov_b32 s{S_LO}, 0x00003f80")
    E(f"    s_mov_b32 s{S_HI}, 0x3f800000")
    E(f"    s_mov_b32 s{S_ONE}, 0x3f803f80")
    E("    v_lshlrev_b32 v8, 4, v1")
    E("    s_lshl_b32 s34, s3, 12")
    E(f"    s_add_u32 s34, s34, {STAGE_OFF}")
    E("    v_lshl_add_u32 v14, v13, 2, v12")
    E("    v_lshlrev_b32 v14, 4, v14")
    E("    v_lshl_add_u32 v14, v13, 9, v14")
    E("    v_add_u32 v6, s34, v14")
    E("    v_xor_b32 v7, 256, v6")
    E("    v_lshrrev_b32 v13, 5, v1")
    E("    v_and_b32 v14, 31, v1")
    E("    v_lshl_add_u32 v14, v13, 2, v14")
    E("    v_add_u32 v15, 8, v14")
    E("    v_and_b32 v14, 31, v14")
    E("    v_and_b32 v15, 31, v15")
    E("    v_lshlrev_b32 v14, 4, v14")
    E("    v_lshlrev_b32 v15, 4, v15")
    E("    v_lshl_add_u32 v14, v13, 9, v14")
    E("    v_lshl_add_u32 v15, v13, 9, v15")
    E("    v_add_u32 v9, s34, v14")
    E("    s_add_u32 s34, s34, 1024")
    E("    v_add_u32 v10, s34, v15")
    E("    s_lshl_b32 s36, s30, 2")
    E("    s_add_u32 s36, s36, s3")
    E("    s_lshl_b32 s39, s36, 7")
    E("    s_lshl_b32 s38, s31, 3")
    E("    s_add_u32 s39, s39, s38")
    E(f"    s_add_u32 s39, s39, {FH_OFF}")
    E(f"    s_mul_i32 s42, s36, {HB}")
    E("    s_cmp_lt_u32 s31, 11")
    E("    s_cbranch_scc0 g_path2")
    E("    s_mul_i32 s36, s31, 192")
    E("    s_mul_i32 s38, s31, 3*2048")
    E("    s_add_u32 s42, s42, s38")
    gen_gtype_path(3, vm)
    E("g_path2:")
    E("    s_lshl_b32 s36, s31, 7")
    E("    s_add_u32 s36, s36, 704")
    E("    s_lshl_b32 s38, s36, 5")
    E("    s_add_u32 s42, s42, s38")
    gen_gtype_path(2, vm)
    gen_phase_c()


COPY_BYTES = 4240
_order = [(1, 0), (0, 11), (2, 4), (5, 0), (4, 12), (3, 8), (6, 4), (7, 8)]
COPY_BASE = {}
_pos = 0
for _b, _beta in _order:
    while (_pos // 16) % 16 != _beta:
        _pos += 16
    COPY_BASE[_b] = _pos
    _pos += COPY_BYTES
KV_OFF = (_pos + 15) // 16 * 16
KVP = 80
CH_BYTES = (KV_OFF + 65 * KVP + 255) // 256 * 256
LDS_BYTES = 81920
TB_OFF = (KV_OFF + 127) // 128 * 128
assert TB_OFF + 4096 <= KV_OFF + 64 * KVP
assert 2 * CH_BYTES <= LDS_BYTES


def wd_touch(vt):
    srd(52, 82, 83, F * D * 2)
    E("    s_mul_i32 s93, s50, 344*128")
    E(f"    v_lshlrev_b32 v{vt}, 7, v0")
    E(f"    buffer_load_dword v{vt+1}, v{vt}, s[52:55], s93 offen")
    E(f"    v_min_u32 v{vt}, 87, v0")
    E(f"    v_lshlrev_b32 v{vt}, 7, v{vt}")
    E("    s_add_u32 s93, s93, 256*128")
    E(f"    buffer_load_dword v{vt+1}, v{vt}, s[52:55], s93 offen")


def gen_ctype():
    vm = VM()
    E("c_type:")
    if 'g' in os.environ.get('XP', ''):
        E("    s_endpgm")
    E(f"    s_setprio {CPRIO}")
    E("    s_sub_u32 s2, s2, 256")
    srd(16, 66, 67, S * D * 2)
    srd(20, 68, 69, S * D * 2)
    srd(24, 70, 71, D * 4 * 2)
    E("    s_lshr_b32 s32, s2, 3")
    E("    s_and_b32 s33, s2, 7")
    E("    v_and_b32 v10, 31, v0")
    E("    v_lshrrev_b32 v11, 5, v0")
    E("    s_lshl_b32 s34, s32, 6")
    E("    v_lshlrev_b32 v3, 3, v11")
    E("    v_add_u32 v3, s34, v3")
    E("    s_lshl_b32 s35, s33, 5")
    E("    v_add_u32 v6, s35, v10")
    E("    v_lshlrev_b32 v3, 10, v3")
    E("    v_lshl_add_u32 v3, v6, 2, v3")
    E("    v_add_u32 v4, 4096, v3")
    E("    v_subrev_u32 v5, 3072, v3")
    E("    v_lshlrev_b32 v6, 4, v6")
    for j in range(3):
        E(f"    buffer_load_dword v{132+j}, v5, s[16:19], 0 offen offset:{1024*j}")
    for j in range(4):
        E(f"    buffer_load_dword v{135+j}, v3, s[16:19], 0 offen offset:{1024*j}")
    for j in range(4):
        E(f"    buffer_load_dword v{139+j}, v4, s[16:19], 0 offen offset:{1024*j}")
    for j in range(4):
        E(f"    buffer_load_dword v{144+j}, v3, s[20:23], 0 offen offset:{1024*j}")
    for j in range(4):
        E(f"    buffer_load_dword v{148+j}, v4, s[20:23], 0 offen offset:{1024*j}")
    E("    buffer_load_dwordx4 v[128:131], v6, s[24:27], 0 offen")
    for _ in range(20):
        vm.issue("kv")
    E("    s_lshr_b32 s31, s3, 1")
    E("    s_lshl_b32 s30, s33, 6")
    E("    s_lshl_b32 s34, s32, 1")
    E("    s_add_u32 s30, s30, s34")
    E("    s_add_u32 s30, s30, s31")
    E("    s_mov_b32 s50, s32")
    E("    s_mov_b32 s51, s33")
    E("    s_and_b32 s32, s3, 1")
    E("    s_lshl_b32 s33, s30, 12")
    srd_off(44, 72, 73, "s33", 4096)
    E(f"    s_mul_i32 s35, s31, {CH_BYTES}")
    E("    s_lshl_b32 s36, s32, 6")
    E("    v_add_u32 v3, s36, v1")
    E("    v_lshlrev_b32 v4, 5, v3")
    E("    v_subrev_u32 v5, 16, v4")
    E("    buffer_load_dwordx4 v[16:19], v5, s[44:47], 0 offen")
    E("    buffer_load_dwordx4 v[20:23], v4, s[44:47], 0 offen")
    E("    buffer_load_dwordx4 v[24:27], v4, s[44:47], 0 offen offset:16")
    for _ in range(3):
        vm.issue("kf")
    srd(44, 74, 75, D * 2)
    E("    s_lshl_b32 s36, s30, 1")
    E("    v_mov_b32 v7, s36")
    E("    buffer_load_ushort v9, v7, s[44:47], 0 offen")
    vm.issue("kf")
    srd_off(8, 88, 89, WS_KVR, S * D * 2)
    E("    v_lshrrev_b32 v12, 4, v10")
    E(f"    v_mul_u32_u24 v12, {CH_BYTES}, v12")
    E("    v_and_b32 v13, 15, v10")
    E("    v_lshl_add_u32 v12, v13, 8, v12")
    E("    v_sub_u32 v13, 7, v11")
    E("    v_and_b32 v14, 7, v10")
    E("    v_xor_b32 v13, v13, v14")
    E("    v_lshl_add_u32 v12, v13, 4, v12")
    E(f"    v_add_u32 v12, {TB_OFF}, v12")
    E("    v_lshrrev_b32 v13, 3, v1")
    E("    v_and_b32 v14, 7, v1")
    E("    v_lshrrev_b32 v15, 4, v1")
    E("    v_xor_b32 v15, v15, v14")
    E("    v_lshlrev_b32 v15, 4, v15")
    E("    v_lshl_add_u32 v15, v13, 7, v15")
    E(f"    s_mul_i32 s36, s31, {CH_BYTES}")
    E("    s_lshl_b32 s37, s32, 11")
    E("    s_add_u32 s36, s36, s37")
    E(f"    s_add_u32 s36, s36, {TB_OFF}")
    E("    v_add_u32 v15, s36, v15")
    E("    v_xor_b32 v28, 64, v15")
    E("    v_lshlrev_b32 v13, 12, v13")
    E("    v_lshl_add_u32 v13, v14, 4, v13")
    E("    s_lshl_b32 s36, s51, 18")
    E("    s_lshl_b32 s37, s3, 16")
    E("    s_add_u32 s36, s36, s37")
    E("    s_lshl_b32 s37, s50, 7")
    E("    s_sub_u32 s37, 3968, s37")
    E("    s_add_u32 s48, s36, s37")
    E("    s_lshl_b32 s36, s51, 10")
    E(f"    s_add_u32 s36, s36, {FK_OFF}")
    E("    s_lshl_b32 s37, s3, 8")
    E("    s_add_u32 s49, s36, s37")
    E("    s_lshl_b32 s37, s50, 3")
    E("    s_add_u32 s49, s49, s37")
    E("    s_lshr_b32 s37, s50, 3")
    E("    s_lshl_b32 s37, s37, 8")
    E("    s_add_u32 s41, s36, s37")
    vm.wait("kv")
    stamp(1, vm)
    token_issue(vm)
    w_touch(vm, 78, 79, "s50", 29)
    if WD_AT == "early":
        wd_touch(244)
        vm.issue("pf")
        vm.issue("pf")
    for c in range(2):
        for d in range(2):
            E(f"    v_lshlrev_b32 v{32+4*c+2*d}, 16, v{128+2*c+d}")
            E(f"    v_and_b32 v{33+4*c+2*d}, s40, v{128+2*c+d}")
    for j in range(11):
        E(f"    v_lshlrev_b32 v{40+j}, 16, v{132+j}")
        E(f"    v_and_b32 v{52+j}, s40, v{132+j}")
    for j in range(8):
        E(f"    v_lshlrev_b32 v{64+j}, 16, v{144+j}")
        E(f"    v_and_b32 v{72+j}, s40, v{144+j}")
    for j in range(8):
        A0, A1, B0, B1, T = 96, 97, 98, 99, 100
        E(f"    v_mul_f32 v{A0}, v{40+j}, v35")
        E(f"    v_mul_f32 v{A1}, v{52+j}, v39")
        E(f"    v_mul_f32 v{B0}, v{41+j}, v34")
        E(f"    v_mul_f32 v{B1}, v{53+j}, v38")
        round_pair(A0, A1, T, 40)
        round_pair(B0, B1, T, 40)
        E(f"    v_add_f32 v{A0}, v{A0}, v{B0}")
        E(f"    v_add_f32 v{A1}, v{A1}, v{B1}")
        E(f"    v_mul_f32 v{B0}, v{42+j}, v33")
        E(f"    v_mul_f32 v{B1}, v{54+j}, v37")
        round_pair(A0, A1, T, 40)
        round_pair(B0, B1, T, 40)
        E(f"    v_add_f32 v{A0}, v{A0}, v{B0}")
        E(f"    v_add_f32 v{A1}, v{A1}, v{B1}")
        E(f"    v_mul_f32 v{B0}, v{43+j}, v32")
        E(f"    v_mul_f32 v{B1}, v{55+j}, v36")
        round_pair(A0, A1, T, 40)
        round_pair(B0, B1, T, 40)
        E(f"    v_add_f32 v{A0}, v{A0}, v{B0}")
        E(f"    v_add_f32 v{A1}, v{A1}, v{B1}")
        round_pair(A0, A1, T, 40)
        E(f"    v_mul_f32 v{80+j}, v{A0}, v{64+j}")
        E(f"    v_mul_f32 v{88+j}, v{A1}, v{72+j}")
    for c in range(2):
        for jj in range(4):
            E(f"    v_cvt_pk_bf16_f32 v{104+4*c+jj}, v{80+8*c+7-2*jj}, v{80+8*c+6-2*jj}")
    E("    ds_write_b128 v12, v[104:107]")
    E("    ds_write_b128 v12, v[108:111] offset:128")
    E("    s_waitcnt lgkmcnt(0)")
    E("    s_barrier")
    E("    ds_read_b128 v[104:107], v15")
    E("    ds_read_b128 v[108:111], v28 offset:1024")
    E("    s_add_u32 s36, s48, 32768")
    E("    s_waitcnt lgkmcnt(1)")
    E("    buffer_store_dwordx4 v[104:107], v13, s[8:11], s48 offen sc0 sc1")
    E("    s_waitcnt lgkmcnt(0)")
    E("    buffer_store_dwordx4 v[108:111], v13, s[8:11], s36 offen sc0 sc1")
    vm.issue("kst")
    vm.issue("kst")
    stamp(2, vm)
    E("    s_barrier")
    E("    s_add_u32 s34, s33, %d" % WS_KVR)
    srd_off(20, 88, 89, "s34", 4096)
    E("    s_add_u32 s34, s33, %d" % WS_YT)
    srd_off(24, 88, 89, "s34", 4096)
    E("    v_mov_b32 v36, 0")
    E("    v_mov_b32 v37, 0")
    E("    v_mov_b32 v38, 0")
    E("    v_mov_b32 v39, 0")
    E("    v_lshlrev_b32 v7, 4, v1")
    E("    v_add_u32 v7, s35, v7")
    E("    s_mov_b64 exec, 0x7f")
    for b in range(8):
        E(f"    ds_write_b128 v7, v[36:39] offset:{COPY_BASE[b]}")
    E("    s_mov_b64 exec, 0xf")
    E(f"    ds_write_b128 v7, v[36:39] offset:{KV_OFF + 64*KVP}")
    E("    s_mov_b64 exec, -1")
    E("    v_lshlrev_b32 v6, 4, v3")
    E("    v_lshlrev_b32 v7, 5, v3")
    E("    v_add_u32 v7, s35, v7")
    E("    v_lshrrev_b32 v8, 2, v3")
    E(f"    v_mul_u32_u24 v8, {KVP}, v8")
    E("    v_and_b32 v10, 3, v3")
    E("    v_lshl_add_u32 v8, v10, 4, v8")
    E("    v_add_u32 v8, s35, v8")
    E("    v_and_b32 v3, 31, v1")
    E("    v_lshrrev_b32 v4, 5, v1")
    E("    v_add_u32 v5, 1, v3")
    E("    v_and_b32 v14, 7, v5")
    E("    v_lshrrev_b32 v5, 3, v5")
    E("    v_sub_u32 v5, v5, v4")
    E("    v_add_u32 v5, 1, v5")
    E("    v_lshlrev_b32 v5, 4, v5")
    E("    v_mov_b32 v10, 0")
    for b in range(8):
        E(f"    v_cmp_eq_u32 vcc, {b}, v14")
        E(f"    v_mov_b32 v11, {COPY_BASE[b]}")
        E("    s_nop 0")
        E("    v_cndmask_b32 v10, v10, v11, vcc")
    E("    v_add_u32 v10, v10, v5")
    E("    v_add_u32 v10, s35, v10")
    E("    v_sub_u32 v5, 63, v3")
    E(f"    v_mul_u32_u24 v5, {KVP}, v5")
    E("    v_lshlrev_b32 v14, 4, v4")
    E("    v_sub_u32 v5, v5, v14")
    E(f"    s_add_u32 s36, s35, {KV_OFF + 16}")
    E("    v_add_u32 v11, s36, v5")
    E(f"    v_subrev_u32 v15, {32*KVP}, v11")
    E(f"    s_add_u32 s36, s36, {KVP*64}")
    E("    v_sub_u32 v12, s36, v14")
    vm.wait("kf")
    for u in range(2):
        e = 16 + 4 * u
        for b in range(8):
            off = COPY_BASE[b] + 112 + 16 * u
            if b % 2 == 0 and (b // 2) % 2 == 0:
                r = e + b // 2
                E(f"    ds_write_b128 v7, v[{r}:{r+3}] offset:{off}")
            else:
                t = 40 + 4 * ((u * 8 + b) % 4)
                for d in range(4):
                    if b % 2 == 0:
                        E(f"    v_mov_b32 v{t+d}, v{e + b//2 + d}")
                    else:
                        be = (b - 1) // 2
                        E(f"    v_alignbyte_b32 v{t+d}, v{e+be+d+1}, v{e+be+d}, 2")
                E(f"    ds_write_b128 v7, v[{t}:{t+3}] offset:{off}")
    E(f"    ds_write_b128 v7, v[24:27] offset:{COPY_BASE[0] + 112 + 32}")
    token_get(vm)
    stampval(20, "s92", vm)
    vm.wait("kst")
    stamp(3, vm)
    flag_store(vm, "s49")
    poll(vm, "s41", "0xffffffff")
    stampval(21, "s92", vm)
    stamp(4, vm)
    E("    buffer_load_dwordx4 v[28:31], v6, s[20:23], 0 offen")
    E("    buffer_load_dwordx4 v[32:35], v6, s[20:23], 0 offen offset:2048")
    E("    s_waitcnt vmcnt(1)")
    E(f"    ds_write_b128 v8, v[28:31] offset:{KV_OFF}")
    E("    s_waitcnt vmcnt(0)")
    E(f"    ds_write_b128 v8, v[32:35] offset:{KV_OFF + 32*KVP}")
    vm.q = []
    E("    s_waitcnt lgkmcnt(0)")
    E("    s_barrier")
    stamp(5)
    FR = 64
    ACC = 192

    def fr(setidx, slot):
        return FR + 64 * setidx + 4 * slot

    def op_A(setidx, slot, t):
        r = fr(setidx, slot)
        return lambda: E(f"    ds_read_b128 v[{r}:{r+3}], v10 offset:{32*(t+3)}")

    def ops_B(setidx, slot, d, c):
        def f():
            E(f"    v_add_u32 v13, {KVP*d}, v{11 if c == 0 else 15}")
            E("    v_min_u32 v13, v13, v12")
            for q in range(2):
                r = fr(setidx, slot + q)
                E(f"    ds_read_b128 v[{r}:{r+3}], v13 offset:{32*(1-q)}")
        return f

    def loads(it, setidx):
        kind, d0 = it
        ops = []
        if kind == "X":
            for e_ in range(2):
                for q in range(2):
                    ops.append(op_A(setidx, 2 * e_ + q, 2 * (d0 + e_) - q))
                for c in range(2):
                    ops.append(ops_B(setidx, 4 + 4 * e_ + 2 * c, d0 + e_, c))
        else:
            for e_ in range(4):
                for q in range(2):
                    ops.append(op_A(setidx, 2 * e_ + q, 2 * (d0 + e_) - q))
                ops.append(ops_B(setidx, 8 + 2 * e_, d0 + e_, 1))
        return ops

    def mfmas(it, setidx):
        kind, d0 = it
        lst = []
        if kind == "X":
            for e_ in range(2):
                for q in range(2):
                    for c in range(2):
                        lst.append((c, fr(setidx, 2 * e_ + q), fr(setidx, 4 + 4 * e_ + 2 * c + q)))
        else:
            for e_ in range(4):
                for q in range(2):
                    lst.append((1 + q, fr(setidx, 2 * e_ + q), fr(setidx, 8 + 2 * e_ + q)))
        return lst

    def conv_loop(its, pf_at):
        started = set()
        for f in loads(its[0], 0):
            f()
        for n, it in enumerate(its):
            E("    s_waitcnt lgkmcnt(0)")
            nxt = loads(its[n + 1], (n + 1) % 2) if n + 1 < len(its) else []
            per = (len(nxt) + 4) // 5
            ms = mfmas(it, n % 2)
            for k, (acc, a, b) in enumerate(ms):
                A = ACC + 16 * acc
                c = f"v[{A}:{A+15}]" if acc in started else "0"
                started.add(acc)
                E(f"    v_mfma_f32_32x32x16_bf16 v[{A}:{A+15}], v[{a}:{a+3}], v[{b}:{b+3}], {c}")
                for _ in range(per if k + 1 < len(ms) else len(nxt)):
                    if nxt:
                        nxt.pop(0)()
            if n == pf_at and WD_AT == "conv":
                wd_touch(60)

    E("    s_cmp_eq_u32 s32, 0")
    E("    s_cbranch_scc0 conv_l1")
    conv_loop([("X", d) for d in range(0, 24, 2)], 0)
    E("    s_branch conv_le")
    E("conv_l1:")
    conv_loop([("X", d) for d in range(24, 32, 2)] + [("Y", d) for d in range(32, 64, 4)], 0)
    E("    s_nop 15")
    E("    s_nop 3")
    for j in range(16):
        E(f"    v_add_f32 v{ACC+16+j}, v{ACC+16+j}, v{ACC+32+j}")
    E("conv_le:")
    stamp(6)
    E("    s_barrier")
    E("    v_lshlrev_b32 v13, 4, v1")
    E("    v_add_u32 v13, s35, v13")
    E("    s_lshl_b32 s36, s32, 12")
    E("    v_add_u32 v14, s36, v13")
    E("    s_xor_b32 s36, s36, 4096")
    E("    v_add_u32 v13, s36, v13")
    E("    s_nop 7")
    E("    s_cmp_eq_u32 s32, 0")
    E("    s_cbranch_scc1 conv_hw0")
    for jq in range(4):
        E(f"    ds_write_b128 v13, v[{ACC+4*jq}:{ACC+4*jq+3}] offset:{1024*jq}")
    for j in range(16):
        E(f"    v_mov_b32 v{64+j}, v{ACC+16+j}")
    E("    s_branch conv_x")
    E("conv_hw0:")
    for jq in range(4):
        E(f"    ds_write_b128 v13, v[{ACC+16+4*jq}:{ACC+16+4*jq+3}] offset:{1024*jq}")
    for j in range(16):
        E(f"    v_mov_b32 v{64+j}, v{ACC+j}")
    E("conv_x:")
    E("    s_waitcnt lgkmcnt(0)")
    E("    s_barrier")
    for jq in range(4):
        E(f"    ds_read_b128 v[{80+4*jq}:{80+4*jq+3}], v14 offset:{1024*jq}")
    E("    v_sub_u32 v5, 63, v3")
    E(f"    v_mul_u32_u24 v5, {KVP}, v5")
    E("    v_lshlrev_b32 v6, 3, v4")
    E("    v_sub_u32 v5, v5, v6")
    E(f"    s_mul_i32 s36, s32, {32*KVP}")
    E(f"    s_sub_u32 s36, {KV_OFF + 8}, s36")
    E("    s_add_u32 s36, s36, s35")
    E("    v_add_u32 v5, s36, v5")
    for jq in range(4):
        E(f"    ds_read_b64 v[{96+2*jq}:{96+2*jq+1}], v5 offset:{16*(3-jq)}")
    E("    v_lshlrev_b32 v6, 6, v3")
    E("    v_lshl_add_u32 v6, v4, 3, v6")
    E("    s_mul_i32 s36, s3, 20480")
    E("    v_add_u32 v6, s36, v6")
    E("    v_lshlrev_b32 v7, 4, v1")
    E("    v_add_u32 v8, s36, v7")
    E("    s_lshl_b32 s37, s32, 11")
    E("    v_lshlrev_b32 v9, 16, v9")
    E("    s_waitcnt lgkmcnt(0)")
    E("    s_barrier")
    for j in range(16):
        E(f"    v_add_f32 v{64+j}, v{64+j}, v{80+j}")
    vm.q = ["pf", "pf"]
    for jq in range(4):
        k0, k1, k2, k3 = 104, 105, 106, 107
        E(f"    v_and_b32 v{k0}, s40, v{97+2*jq}")
        E(f"    v_lshlrev_b32 v{k1}, 16, v{97+2*jq}")
        E(f"    v_and_b32 v{k2}, s40, v{96+2*jq}")
        E(f"    v_lshlrev_b32 v{k3}, 16, v{96+2*jq}")
        for kk in (k0, k1, k2, k3):
            E(f"    v_mul_f32 v{kk}, v{kk}, v9")
        round_pair(k0, k1, 108, 40)
        round_pair(k2, k3, 108, 40)
        y = 64 + 4 * jq
        round_pair(y, y + 1, 108, 40)
        round_pair(y + 2, y + 3, 108, 40)
        for e_, kk in enumerate((k0, k1, k2, k3)):
            E(f"    v_add_f32 v{y+e_}, v{y+e_}, v{kk}")
        E(f"    v_cvt_pk_bf16_f32 v{110+2*jq}, v{y}, v{y+1}")
        E(f"    v_cvt_pk_bf16_f32 v{111+2*jq}, v{y+2}, v{y+3}")
        E(f"    ds_write_b64 v6, v[{110+2*jq}:{111+2*jq}] offset:{16*jq}")
    E("    s_waitcnt lgkmcnt(0)")
    E("    ds_read_b128 v[104:107], v8")
    E("    ds_read_b128 v[108:111], v8 offset:1024")
    E("    s_waitcnt lgkmcnt(1)")
    E("    buffer_store_dwordx4 v[104:107], v7, s[24:27], s37 offen sc0 sc1")
    E("    s_waitcnt lgkmcnt(0)")
    E("    buffer_store_dwordx4 v[108:111], v7, s[24:27], s37 offen offset:1024 sc0 sc1")
    vm.issue("yst")
    vm.issue("yst")
    stamp(7, vm)
    E("    s_lshl_b32 s36, s32, 12")
    E("    s_lshl_b32 s37, s30, 3")
    E("    s_add_u32 s49, s36, s37")
    E(f"    s_add_u32 s49, s49, {FY_OFF}")
    E("    s_waitcnt vmcnt(0)")
    flag_store(vm, "s49")
    stamp(8)
    E("    s_endpgm")


def gen_phase_c():
    vm = VM()
    vm.q = [("w", i) for i in range(NWE, 10) for _ in range(2)] + ["flag"] + (["stamp"] if DIAG else [])
    XT = 16
    NT = 24
    WT = 32
    HF = 48
    NH = 5
    WREG = 88
    NR = 12
    ACC = 184
    NK = 22
    YSLOT = wslot(12)
    global VL8
    VL8_saved = VL8
    VL8 = 15
    E("phase_c:")
    E(f"    v_lshlrev_b32 v15, {3+FSH}, v1")
    E("    s_lshl_b32 s30, s30, 1")
    E("    s_lshr_b32 s35, s31, 3")
    E("    s_add_u32 s30, s30, s35")
    E("    s_and_b32 s31, s31, 7")
    E("    s_and_b32 s32, s3, 1")
    E("    s_lshr_b32 s33, s3, 1")
    srd_off(20, 88, 89, WS_H, H_BYTES)
    srd_off(44, 88, 89, WS_YT, S * D * 2)
    srd(52, 84, 85, S * D * 2)
    E("    v_lshrrev_b32 v4, 5, v1")
    E("    v_and_b32 v9, 31, v1")
    E("    v_lshlrev_b32 v13, 10, v9")
    E("    v_lshl_add_u32 v13, v4, 3, v13")
    E("    s_lshl_b32 s35, s30, 1")
    E("    s_add_u32 s35, s35, s32")
    E("    s_lshl_b32 s36, s35, 15")
    E("    s_lshl_b32 s38, s31, 7")
    E("    s_add_u32 s36, s36, s38")
    E("    s_lshl_b32 s38, s33, 6")
    E("    s_add_u32 s36, s36, s38")
    E("    v_add_u32 v13, s36, v13")
    for q in range(4):
        E(f"    buffer_load_dwordx2 v[{XT+2*q}:{XT+2*q+1}], v13, s[16:19], 0 offen offset:{16*q}")
        vm.issue("x")
    E("    v_and_b32 v5, 15, v1")
    E("    v_lshrrev_b32 v6, 2, v5")
    E("    v_lshl_add_u32 v6, v4, 3, v6")
    E("    v_lshlrev_b32 v11, 7, v6")
    E("    v_bfe_u32 v6, v1, 4, 1")
    E("    v_lshlrev_b32 v6, 5, v6")
    E("    v_and_b32 v7, 3, v5")
    E("    v_lshl_add_u32 v6, v7, 3, v6")
    E("    v_bfe_u32 v7, v1, 3, 1")
    E("    v_lshlrev_b32 v7, 6, v7")
    E("    v_xor_b32 v6, v6, v7")
    E("    v_add_u32 v11, v11, v6")
    E("    v_add_u32 v11, s37, v11")
    E("    v_xor_b32 v12, 64, v11")

    def wread(dst, slot):
        for wd in range(2):
            r = dst + 4 * wd
            E(f"    ds_read_b64_tr_b16 v[{r}:{r+1}], v{11+wd} offset:{slot*2048}")
            E(f"    ds_read_b64_tr_b16 v[{r+2}:{r+3}], v{11+wd} offset:{slot*2048+512}")

    order = [0, 1, 9, 8, 7, 6, 5, 4, 3, 2]
    for i in order:
        vm.wait(("w", i))
        wread(WREG + 8 * i, i)
    for n, i in enumerate(range(10, 20)):
        assert wslot(i) == order[n]
        E(f"    s_waitcnt lgkmcnt({min(15, 4*(9-n))})")
        for f in wdma_ops(vm, i):
            f()
    E("    s_lshr_b32 s49, s30, 4")
    E("    s_lshl_b32 s49, s49, 12")
    E("    s_lshl_b32 s38, s31, 9")
    E("    s_add_u32 s49, s49, s38")
    E("    s_lshl_b32 s38, s33, 8")
    E("    s_add_u32 s49, s49, s38")
    E(f"    s_add_u32 s49, s49, {FY_OFF}")
    E("    v_lshrrev_b32 v0, 2, v1")
    E("    v_lshlrev_b32 v0, 12, v0")
    E("    v_and_b32 v7, 3, v1")
    E("    v_lshl_add_u32 v0, v7, 4, v0")
    E("    s_lshl_b32 s38, s31, 1")
    E("    s_add_u32 s38, s38, s33")
    E("    s_lshl_b32 s38, s38, 17")
    E("    s_lshl_b32 s39, s35, 6")
    E("    s_add_u32 s39, s39, s38")
    E("    v_lshrrev_b32 v7, 2, v5")
    E("    v_lshl_add_u32 v7, v4, 2, v7")
    E("    v_lshlrev_b32 v14, 6, v7")
    E("    v_bfe_u32 v7, v1, 4, 1")
    E("    v_lshl_add_u32 v14, v7, 5, v14")
    E("    v_and_b32 v7, 3, v5")
    E("    v_lshl_add_u32 v14, v7, 3, v14")
    E("    v_add_u32 v14, s37, v14")
    vm.wait("x")
    T = HF
    for d in range(8):
        E(f"    v_lshlrev_b32 v{T+2*d}, 16, v{XT+d}")
        E(f"    v_and_b32 v{T+2*d+1}, s40, v{XT+d}")
    for j in range(16):
        E(f"    v_add_f32 v{T+j}, v{T+j}, v2")
    for j in range(16):
        E(f"    v_cvt_pk_bf16_f32 v{T+j}, 0, v{T+j}")
    for j in range(16):
        E(f"    v_mul_f32 v{T+j}, v{T+j}, v3")
    for d in range(8):
        E(f"    v_cvt_pk_bf16_f32 v{NT+d}, v{T+2*d}, v{T+2*d+1}")
    for i in (10, 11):
        vm.wait(("w", i))
        wread(WREG + 8 * i, wslot(i))
    E("    s_waitcnt lgkmcnt(0)")
    for i in (20, 21):
        for f in wdma_ops(vm, i):
            f()
    E("    s_lshl_b32 s36, s30, 8")
    E(f"    s_add_u32 s36, s36, {FH_OFF}")
    masks = []
    for lo, hi in ((0, 3), (3, 7), (7, 10), (10, 15)):
        m16 = ((1 << (hi + 1)) - 1) & ~((1 << lo) - 1)
        masks.append(m16 | (m16 << 16))
    E(f"    s_mov_b32 s50, {masks[0]:#x}")
    for w in range(1, 4):
        E(f"    s_cmp_eq_u32 s3, {w}")
        E(f"    s_cselect_b32 s50, {masks[w]:#x}, s50")
    E("    s_mov_b32 s51, 0")
    E(f"    s_mul_i32 s42, s30, {2*HB}")
    E("    s_lshl_b32 s38, s34, 10")
    E("    s_add_u32 s42, s42, s38")
    E(f"    s_add_u32 s43, s42, {HB}")
    E("    s_mul_i32 s38, s31, 44")
    E("    v_add_u32 v6, s38, v1")
    E("    v_cmp_le_u32 vcc, 176, v6")
    E("    v_subrev_u32 v7, 176, v6")
    E("    v_cndmask_b32 v6, v6, v7, vcc")
    E("    s_cmp_lt_u32 s3, 2")
    E("    s_cselect_b32 s38, 8, 0")
    E("    s_add_u32 s38, s38, 167")
    E("    v_min_u32 v6, s38, v6")
    E("    v_lshlrev_b32 v6, 7, v6")
    E(f"    v_mov_b32 v7, {HB}")
    E("    v_cndmask_b32 v7, 0, v7, vcc")
    E("    v_add_u32 v6, v6, v7")
    stamp(11, vm)
    poll(vm, "s36", "s[50:51]")
    stampval(21, "s92", vm)
    stamp(12, vm)

    def hload(i):
        r = HF + 8 * (i % NH)
        if i % 4 == 0 and i:
            E("    s_add_u32 s42, s42, 4096")
            E("    s_add_u32 s43, s43, 4096")
        off = (i % 4) * 1024
        if i == NK - 1:
            assert off == 1024
            E("    s_cmp_lt_u32 s3, 2")
            E("    s_cselect_b32 s38, 1024, 0")
            E("    s_add_u32 s42, s42, s38")
            E("    s_add_u32 s43, s43, s38")
            off = 0
        for e_ in range(2):
            E(f"    buffer_load_dwordx4 v[{r+4*e_}:{r+4*e_+3}], v8, s[20:23], s{42+e_} offen offset:{off}")
            vm.issue(("h", i))

    E("    s_mov_b32 exec_hi, 0xfff")
    E("    buffer_load_dword v7, v6, s[20:23], s42 offen")
    E("    s_mov_b64 exec, -1")
    vm.issue("pf")
    for i in range(NH):
        hload(i)

    def wsrc(i):
        return WREG + 8 * i if i < NR else WT + 8 * (i % 2)

    FYI = int(os.environ.get("FYI", "6"))
    for i in range(NK):
        if i == NK - 1:
            E("    s_cmp_ge_u32 s3, 2")
            E("    s_cbranch_scc1 pc_skip")
        vm.wait(("h", i))
        if i >= NR:
            E("    s_waitcnt lgkmcnt(0)")
        if NR <= i + 1 < NK:
            wread(WT + 8 * ((i + 1) % 2), wslot(i + 1))
        h = HF + 8 * (i % NH)
        w = wsrc(i)
        for wd in range(2):
            for wm in range(2):
                a = ACC + 16 * (2 * wd + wm)
                c = "0" if i == 0 else f"v[{a}:{a+15}]"
                E(f"    v_mfma_f32_32x32x16_bf16 v[{a}:{a+15}], v[{w+4*wd}:{w+4*wd+3}], v[{h+4*wm}:{h+4*wm+3}], {c}")
        if i + NH < NK:
            hload(i + NH)
        if i == FYI:
            E(f"    s_lshl_b32 s93, s49, {FSH}")
            E("    s_mov_b32 exec_hi, 0")
            E(f"    buffer_load_dwordx2 v[{PA}:{PA+1}], v{VL8}, s[56:59], s93 offen sc0 sc1")
            E("    s_mov_b64 exec, -1")
            vm.issue("fy")
        if i == 12:
            vm.wait("fy")
            E("    s_mov_b32 exec_hi, 0")
            E(f"    v_cmp_ne_u64 vcc, s[90:91], v[{PA}:{PA+1}]")
            E("    s_mov_b64 exec, -1")
            E("    s_cmp_eq_u64 vcc, 0")
            E("    s_cbranch_scc1 fy_ok")
            if 'g' in os.environ.get('XP', ''):
                E("    s_branch fy_ok")
            q_saved = list(vm.q)
            poll(vm, "s49", "0xffffffff")
            vm.q = q_saved
            E("fy_ok:")
            stamp(14, vm)
            for j in range(2):
                E(f"    s_add_u32 s38, s39, {16*4096*j}")
                E(f"    s_add_u32 m0, s37, {YSLOT*2048 + 1024*j}")
                E("    s_nop 0")
                E("    buffer_load_dwordx4 v0, s[44:47], s38 offen lds")
                vm.issue("y")
    E("pc_skip:")
    stamp(13)
    E("    s_waitcnt vmcnt(0) lgkmcnt(0)")
    E("    v_add_u32 v6, s37, v8")
    E("    s_lshl_b32 s36, s3, 12")
    E("    v_add_u32 v7, s36, v8")
    YR = HF
    for q in range(4):
        E(f"    ds_read_b64_tr_b16 v[{YR+2*q}:{YR+2*q+1}], v14 offset:{YSLOT*2048 + q*512}")
    E("    s_nop 15")
    for q in range(4):
        for jq in range(4):
            a = ACC + 16 * q + 4 * jq
            E(f"    ds_write_b128 v6, v[{a}:{a+3}] offset:{q*4096 + jq*1024}")
    E("    s_waitcnt lgkmcnt(0)")
    E("    s_barrier")
    PS = WREG
    for w in range(4):
        for jq in range(4):
            r = PS + 16 * w + 4 * jq
            E(f"    ds_read_b128 v[{r}:{r+3}], v7 offset:{w*REG + jq*1024}")
    RS = 56
    for q in range(4):
        t = 72
        xs = [RS + 4 * q + e_ for e_ in range(4)]
        ns = [t + e_ for e_ in range(4)]
        ys = [t + 4 + e_ for e_ in range(4)]
        for (dst, src) in ((xs, XT + 2 * q), (ns, NT + 2 * q), (ys, YR + 2 * q)):
            E(f"    v_lshlrev_b32 v{dst[0]}, 16, v{src}")
            E(f"    v_and_b32 v{dst[1]}, s40, v{src}")
            E(f"    v_lshlrev_b32 v{dst[2]}, 16, v{src+1}")
            E(f"    v_and_b32 v{dst[3]}, s40, v{src+1}")
        for e_ in (0, 2):
            E(f"    v_pk_mul_f32 v[{ns[e_]}:{ns[e_]+1}], v[{ns[e_]}:{ns[e_]+1}], v[{ys[e_]}:{ys[e_]+1}]")
        round_pair(ns[0], ns[1], t + 8, 40)
        round_pair(ns[2], ns[3], t + 8, 40)
        for e_ in (0, 2):
            E(f"    v_pk_add_f32 v[{xs[e_]}:{xs[e_]+1}], v[{xs[e_]}:{xs[e_]+1}], v[{ns[e_]}:{ns[e_]+1}]")
        round_pair(xs[0], xs[1], t + 8, 40)
        round_pair(xs[2], xs[3], t + 8, 40)
    E("    s_waitcnt lgkmcnt(8)")
    for j in range(0, 16, 2):
        E(f"    v_pk_add_f32 v[{PS+j}:{PS+j+1}], v[{PS+j}:{PS+j+1}], v[{PS+16+j}:{PS+16+j+1}]")
    E("    s_waitcnt lgkmcnt(0)")
    for j in range(0, 16, 2):
        E(f"    v_pk_add_f32 v[{PS+32+j}:{PS+32+j+1}], v[{PS+32+j}:{PS+32+j+1}], v[{PS+48+j}:{PS+48+j+1}]")
    for j in range(0, 16, 2):
        E(f"    v_pk_add_f32 v[{PS+j}:{PS+j+1}], v[{PS+j}:{PS+j+1}], v[{PS+32+j}:{PS+32+j+1}]")
    for jq in range(4):
        a = PS + 4 * jq
        xs = [RS + 4 * jq + e_ for e_ in range(4)]
        round_pair(a, a + 1, 72, 40)
        round_pair(a + 2, a + 3, 72, 40)
        for e_ in (0, 2):
            E(f"    v_pk_add_f32 v[{xs[e_]}:{xs[e_]+1}], v[{xs[e_]}:{xs[e_]+1}], v[{a+e_}:{a+e_+1}]")
        o = 76 + 2 * jq
        E(f"    v_cvt_pk_bf16_f32 v{o}, v{xs[0]}, v{xs[1]}")
        E(f"    v_cvt_pk_bf16_f32 v{o+1}, v{xs[2]}, v{xs[3]}")
        E(f"    buffer_store_dwordx2 v[{o}:{o+1}], v13, s[52:55], 0 offen offset:{16*jq}")
    if DIAG:
        E("    s_waitcnt vmcnt(0)")
    stamp(31)
    E("    s_endpgm")
    VL8 = VL8_saved


def gen_kernel():
    E(f".globl {KNAME}")
    E(".p2align 8")
    E(f".type {KNAME},@function")
    E(f"{KNAME}:")
    E("    s_cmp_ge_u32 s2, 512")
    E("    s_cbranch_scc1 k_done")
    E("    s_load_dwordx16 s[64:79], s[0:1], 0")
    E("    s_load_dwordx8 s[80:87], s[0:1], 64")
    E("    s_load_dwordx2 s[88:89], s[0:1], 96")
    E("    s_memrealtime s[90:91]")
    E("    s_mov_b32 s40, 0xffff0000")
    E("    v_and_b32 v1, 63, v0")
    E("    v_lshrrev_b32 v2, 6, v0")
    E(f"    v_lshlrev_b32 v{VL8}, {3+FSH}, v1")
    E("    v_readfirstlane_b32 s3, v2")
    E("    s_waitcnt lgkmcnt(0)")
    stamp_init()
    stamp(0)
    srd_off(56, 88, 89, WS_FLAG, FLAG_BYTES)
    srd(60, 86, 87, 256)
    E("    s_cmp_ge_u32 s2, 256")
    E("    s_cbranch_scc1 c_type")
    gen_gtype()
    gen_ctype()
    E("k_done:")
    E("    s_endpgm")


def main():
    hdr = open("parallel_sum__ssm_conv_h3__glu_gated_bilinear__prompt.s.ref").read().splitlines()
    for l in hdr:
        if l.startswith("; Override") or l.startswith("; grid=") or l.startswith("; @launch"):
            continue
        if not l.startswith(";"):
            break
        E(l)
    E(f"; @launch grid=(512,1,1) block=(256,1,1) lds={LDS_BYTES}")
    E('.amdgcn_target "amdgcn-amd-amdhsa--gfx950"')
    E(".text")
    gen_kernel()
    E('.section .rodata,"a"')
    E(".p2align 6")
    E(f".amdhsa_kernel {KNAME}")
    E("  .amdhsa_next_free_vgpr 256")
    E("  .amdhsa_next_free_sgpr 102")
    E("  .amdhsa_accum_offset 256")
    E("  .amdhsa_group_segment_fixed_size 0")
    E("  .amdhsa_kernarg_size 104")
    E("  .amdhsa_user_sgpr_count 2")
    E("  .amdhsa_user_sgpr_kernarg_segment_ptr 1")
    E("  .amdhsa_system_sgpr_workgroup_id_x 1")
    E(".end_amdhsa_kernel")
    path = sys.argv[1] if len(sys.argv) > 1 else "fused.s"
    open(path, "w").write("\n".join(out) + "\n")
    print("wrote", path, len(out), "lines")


main()
```

```python
import sys, os

S, D, F = 2048, 512, 1376
WS_XN = 0x000000
WS_KVR = 0x200000
WS_H = 0x400000
WS_YT = 0xA00000
WS_FLAG = 0xC00000
WS_KVA = 0xE00000
FX_OFF = 0x0000
FK_OFF = 0x2000
FH_OFF = 0x4000
FY_OFF = 0x6000
FSH = int(os.environ.get("FSH", "4"))
FG_OFF = 0x8000
FLAG_BYTES = 0x9000 << FSH
HS = int(os.environ.get("HS", "10"))
HB = 86 * 1024
H_BYTES = 64 * HB
KNAME = "parallel_sum__ssm_conv_h3__glu_gated_bilinear__prompt_kernel"
POLL_LIMIT = 200000

out = []


def E(s=""):
    out.append(s)


class VM:
    def __init__(self):
        self.q = []

    def issue(self, tag):
        self.q.append(tag)

    def wait(self, tag):
        idx = -1
        for i, t in enumerate(self.q):
            if t == tag:
                idx = i
        if idx < 0:
            return
        n = len(self.q) - 1 - idx
        assert n <= 63, n
        E(f"    s_waitcnt vmcnt({n})")
        self.q = self.q[idx + 1:]

    def wait_all(self):
        E("    s_waitcnt vmcnt(0)")
        self.q = []


DIAG = len(sys.argv) > 2 and sys.argv[2] == "diag"
STAMP_WS = 0x2000000


def stamp_init():
    if not DIAG:
        return
    E(f"    s_add_u32 s96, s88, {STAMP_WS}")
    E("    s_addc_u32 s97, s89, 0")
    E("    s_and_b32 s97, s97, 0xffff")
    E("    s_mov_b32 s98, 0x80000")
    E("    s_mov_b32 s99, 0x00020000")
    E("    s_lshl_b32 s100, s2, 2")
    E("    s_add_u32 s100, s100, s3")
    E("    s_lshl_b32 s100, s100, 7")
    E("    v_mov_b32 v254, s100")


def stamp(slot, vm=None):
    if not DIAG:
        return
    E("    s_waitcnt lgkmcnt(0)")
    E("    s_memrealtime s[100:101]")
    E("    s_waitcnt lgkmcnt(0)")
    E("    v_mov_b32 v255, s100")
    E("    s_mov_b64 s[94:95], exec")
    E("    s_mov_b64 exec, 1")
    E(f"    buffer_store_dword v255, v254, s[96:99], 0 offen offset:{4*slot}")
    E("    s_mov_b64 exec, s[94:95]")
    if vm is not None:
        vm.issue("stamp")


def stampclk(slot, vm=None):
    if not DIAG:
        return
    E("    s_waitcnt lgkmcnt(0)")
    E("    s_memtime s[100:101]")
    E("    s_waitcnt lgkmcnt(0)")
    stampval(slot, "s100", vm)


def stampval(slot, sg, vm=None):
    if not DIAG:
        return
    E(f"    v_mov_b32 v255, {sg}")
    E("    s_mov_b64 s[94:95], exec")
    E("    s_mov_b64 exec, 1")
    E(f"    buffer_store_dword v255, v254, s[96:99], 0 offen offset:{4*slot}")
    E("    s_mov_b64 exec, s[94:95]")
    if vm is not None:
        vm.issue("stamp")


def srd(dst, lo, hi, nbytes):
    E(f"    s_mov_b32 s{dst}, s{lo}")
    E(f"    s_and_b32 s{dst+1}, s{hi}, 0xffff")
    E(f"    s_mov_b32 s{dst+2}, {nbytes}")
    E(f"    s_mov_b32 s{dst+3}, 0x00020000")


def srd_off(dst, lo, hi, off, nbytes):
    E(f"    s_add_u32 s{dst}, s{lo}, {off}")
    E(f"    s_addc_u32 s{dst+1}, s{hi}, 0")
    E(f"    s_and_b32 s{dst+1}, s{dst+1}, 0xffff")
    E(f"    s_mov_b32 s{dst+2}, {nbytes}")
    E(f"    s_mov_b32 s{dst+3}, 0x00020000")


def wave_reduce_add(v, t):
    E("    s_nop 1")
    E(f"    v_add_f32_dpp v{t}, v{v}, v{v} quad_perm:[1,0,3,2] row_mask:0xf bank_mask:0xf")
    E("    s_nop 1")
    E(f"    v_add_f32_dpp v{v}, v{t}, v{t} quad_perm:[2,3,0,1] row_mask:0xf bank_mask:0xf")
    E("    s_nop 1")
    E(f"    v_add_f32_dpp v{t}, v{v}, v{v} row_half_mirror row_mask:0xf bank_mask:0xf")
    E("    s_nop 1")
    E(f"    v_add_f32_dpp v{v}, v{t}, v{t} row_mirror row_mask:0xf bank_mask:0xf")
    E(f"    v_mov_b32 v{t}, v{v}")
    E("    s_nop 1")
    E(f"    v_permlane16_swap_b32 v{v}, v{t}")
    E("    s_nop 1")
    E(f"    v_add_f32 v{v}, v{v}, v{t}")
    E(f"    v_mov_b32 v{t}, v{v}")
    E("    s_nop 1")
    E(f"    v_permlane32_swap_b32 v{v}, v{t}")
    E("    s_nop 1")
    E(f"    v_add_f32 v{v}, v{v}, v{t}")


def round_pair(a, b, t, mask_sgpr):
    E(f"    v_cvt_pk_bf16_f32 v{t}, v{a}, v{b}")
    E(f"    v_lshlrev_b32 v{a}, 16, v{t}")
    E(f"    v_and_b32 v{b}, s{mask_sgpr}, v{t}")


PA, PB, TK, VL8 = 248, 250, 252, 247
_lbl = [0]


def token_issue(vm):
    E(f"    buffer_load_dwordx2 v[{TK}:{TK+1}], off, s[60:63], 0")
    vm.issue("tok")


def token_get(vm):
    _lbl[0] += 1
    n = _lbl[0]
    vm.wait("tok")
    E(f"    s_mov_b32 s92, {POLL_LIMIT}")
    E(f"tok_l{n}:")
    E(f"    v_readfirstlane_b32 s90, v{TK}")
    E(f"    v_readfirstlane_b32 s91, v{TK+1}")
    E("    s_cmp_lg_u32 s90, 0")
    E(f"    s_cbranch_scc1 tok_d{n}")
    E(f"    buffer_load_dwordx2 v[{TK}:{TK+1}], off, s[60:63], 0 sc0 sc1")
    E("    s_waitcnt vmcnt(0)")
    E("    s_sub_u32 s92, s92, 1")
    E("    s_cmp_lg_u32 s92, 0")
    E(f"    s_cbranch_scc1 tok_l{n}")
    E(f"tok_d{n}:")


def flag_store(vm, soff):
    E(f"    s_lshl_b32 s93, {soff}, {FSH}")
    E("    s_mov_b64 exec, 1")
    E(f"    buffer_store_dwordx2 v[{TK}:{TK+1}], off, s[56:59], s93 sc0 sc1")
    E("    s_mov_b64 exec, -1")
    vm.issue("flag")


POLL_SLEEP = int(os.environ.get("PS", "4"))


def poll(vm, soff, mask, gap=6):
    _lbl[0] += 1
    n = _lbl[0]
    if mask == "0xffffffff":
        E("    s_mov_b32 exec_hi, 0")
    else:
        E(f"    s_mov_b64 exec, {mask}")
    E(f"    s_mov_b32 s92, {POLL_LIMIT}")
    E(f"    s_lshl_b32 s93, {soff}, {FSH}")
    E(f"poll_l{n}:")
    E(f"    buffer_load_dwordx2 v[{PA}:{PA+1}], v{VL8}, s[56:59], s93 offen sc0 sc1")
    E("    s_waitcnt vmcnt(0)")
    E(f"    v_cmp_ne_u64 vcc, s[90:91], v[{PA}:{PA+1}]")
    E("    s_cmp_eq_u64 vcc, 0")
    E(f"    s_cbranch_scc1 poll_d{n}")
    E("    s_mov_b64 exec, vcc")
    E(f"    s_sleep {POLL_SLEEP}")
    E("    s_sub_u32 s92, s92, 1")
    E("    s_cmp_lg_u32 s92, 0")
    E(f"    s_cbranch_scc1 poll_l{n}")
    E(f"poll_d{n}:")
    E("    s_mov_b64 exec, -1")
    vm.q = []


TG = int(os.environ.get("TG", "128"))


def w_touch(vm, lo, hi, sr, vt):
    srd(44, lo, hi, D * F * 2)
    E(f"    s_lshl_b32 s38, {sr}, 2")
    E("    s_add_u32 s38, s38, s3")
    E("    s_mul_i32 s38, s38, 4*2752")
    sh = 4 if TG == 128 else 5
    E(f"    v_lshrrev_b32 v{vt}, {sh}, v1")
    E(f"    v_mul_u32_u24 v{vt}, 2752, v{vt}")
    E(f"    v_and_b32 v{vt+1}, {(1 << sh) - 1}, v1")
    E(f"    v_min_u32 v{vt+1}, {12 if TG == 128 else 24}, v{vt+1}")
    E(f"    v_lshlrev_b32 v{vt+1}, {7 if TG == 128 else 6}, v{vt+1}")
    E("    s_and_b32 s93, s2, 1")
    E("    s_mul_i32 s93, s93, 1536")
    E(f"    v_add_u32 v{vt+1}, s93, v{vt+1}")
    E(f"    v_min_u32 v{vt+1}, 2750, v{vt+1}")
    E(f"    v_add_u32 v{vt}, v{vt}, v{vt+1}")
    E(f"    buffer_load_ushort v{vt+1}, v{vt}, s[44:47], s38 offen")
    vm.issue("pf")
    if TG == 64:
        E("    s_add_u32 s38, s38, 2*2752")
        E(f"    buffer_load_ushort v{vt+1}, v{vt}, s[44:47], s38 offen")
        vm.issue("pf")


WS_ST = 0x000000
S_ONE = 6
GPRIO = int(os.environ.get("GPRIO", "2"))
GPRIO2 = int(os.environ.get("GPRIO2", "3"))
CPRIO = int(os.environ.get("CPRIO", "3"))
KFL = int(os.environ.get("KFL", "1"))
ROT = int(os.environ.get("ROT", "1"))
CPRIO2 = int(os.environ.get("CPRIO2", "1"))
TOUCH = os.environ.get("TOUCH", "none")
CFIRST = int(os.environ.get("CFIRST", "1"))
WD_AT = os.environ.get("WD_AT", "g")
WDK = int(os.environ.get("WDK", "24"))
NBI = int(os.environ.get("NBI", "9"))
PUBK = int(os.environ.get("PUBK", "6"))
GRC = int(os.environ.get("GRC", "30"))
GRK = int(os.environ.get("GRK", "24"))
FYI = int(os.environ.get("FYI", "6"))
HI = 40960
GR1, XA, WA, CA, WDV, XDV, DDV, GRV, GR2 = 4, 9, 11, 12, 21, 24, 26, 27, 28
WF, XF, GACC, CS, SEL, CT, PUB = 32, 80, 88, 184, 196, 200, 212
WREG = [216, 224, 232, 240, 32, 40]
NPRE = 6
XROW = 6


def la(reg, off):
    if off >= HI:
        return f"v{reg+6} offset:{off-HI}"
    return f"v{reg} offset:{off}"


def wslot(i):
    if i < 10:
        return i
    if i < 20:
        return i - 10
    return i - 19


def wdma_ops(vm, i):
    ops = []
    for j in range(2):
        def f(j=j):
            E(f"    s_add_u32 s38, s41, {(16*i + 8*j)*1024}")
            E(f"    s_add_u32 m0, s37, {wslot(i)*8192 + j*1024}")
            E("    s_nop 0")
            E(f"    buffer_load_dwordx4 v{DDV}, s[8:11], s38 offen lds")
            vm.issue(("w", i))
        ops.append(f)
    return ops


def wread(dst, slot):
    for wd in range(2):
        r = dst + 4 * wd
        E(f"    ds_read_b64_tr_b16 v[{r}:{r+1}], {la(11+wd, slot*8192)}")
        E(f"    ds_read_b64_tr_b16 v[{r+2}:{r+3}], {la(11+wd, slot*8192+512)}")


def gen_gtype_path(nt, vm0):
    vm = VM()
    vm.q = list(vm0.q)
    ACC = GACC
    P = 64 * nt
    CH = 16 * P + 2048
    STG = 4 * CH
    NB = LDS_BYTES // STG
    nst = 16
    n = 2 * nt
    NCS = n // 2

    def buf(st):
        return st % NB if nt == 3 else (st + 4) % NB

    def dma_ops(st):
        ops = []
        for i in range(nt):
            def f(i=i):
                if i == 0:
                    if st:
                        E(f"    s_add_u32 s48, s48, {32*2752}")
                        E("    s_cmp_ge_u32 s48, s49")
                        E(f"    s_cselect_b32 s38, {16*32*2752}, 0")
                        E("    s_sub_u32 s48, s48, s38")
                    E(f"    s_add_u32 m0, s43, {buf(st)*STG}")
                    E("    s_nop 0")
                E(f"    buffer_load_dwordx4 v{WDV+i}, s[52:55], s48 offen offset:{1024*i} lds")
                vm.issue(("dma", st))
            ops.append(f)
        xo = []
        for a in range(2):
            def f(a=a):
                if a == 0:
                    if st:
                        E("    s_add_u32 s32, s32, 64")
                        E("    s_bitset0_b32 s32, 10")
                    E(f"    s_add_u32 m0, s43, {buf(st)*STG + 16*P}")
                    E("    s_nop 0")
                E(f"    buffer_load_dwordx4 v{XDV+a}, s[16:19], s32 offen offset:{1024*a} lds")
                vm.issue(("dma", st))
            xo.append(f)
        return xo + ops

    E(f"    s_mul_i32 s43, s3, {CH}")
    d0 = dma_ops(0)
    d0[0]()
    d0[1]()
    E("    s_lshr_b32 s49, s3, 1")
    E("    s_cmp_eq_u32 s49, 1")
    E("    s_cselect_b32 s52, s80, s78")
    E("    s_cselect_b32 s53, s81, s79")
    E("    s_and_b32 s53, s53, 0xffff")
    E(f"    s_mov_b32 s54, {D*F*2}")
    E("    s_mov_b32 s55, 0x00020000")
    E("    s_and_b32 s49, s3, 1")
    E("    s_mul_i32 s48, s49, 16*2752")
    E("    s_add_u32 s48, s48, s36")
    E("    s_movk_i32 s49, 2752")
    for i in range(nt):
        E(f"    v_add_u32 v14, {64*i}, v1")
        if nt == 3:
            E("    v_mul_u32_u24 v15, 0x5556, v14")
            E("    v_lshrrev_b32 v15, 18, v15")
            E("    v_mul_u32_u24 v20, 12, v15")
        else:
            E("    v_lshrrev_b32 v15, 3, v14")
            E("    v_lshlrev_b32 v20, 3, v15")
        E("    v_sub_u32 v14, v14, v20")
        E("    v_mul_lo_u32 v15, v15, s49")
        E(f"    v_lshl_add_u32 v{WDV+i}, v14, 4, v15")
        if i:
            E(f"    v_subrev_u32 v{WDV+i}, {1024*i}, v{WDV+i}")
    E(f"    s_add_u32 s49, s48, {16*32*2752}")
    E(f"    s_mul_i32 s38, s29, {32*2752}")
    E("    s_add_u32 s48, s48, s38")
    for f in d0[2:]:
        f()
    nxt_st = 1
    while nxt_st < min(NB, NBI):
        for f in dma_ops(nxt_st):
            f()
        nxt_st += 1
    E("    v_lshrrev_b32 v13, 5, v1")
    E("    v_and_b32 v14, 15, v1")
    E("    v_lshrrev_b32 v15, 2, v14")
    E("    v_lshl_add_u32 v15, v13, 3, v15")
    E(f"    v_mul_u32_u24 v{WA}, {P}, v15")
    E("    v_bfe_u32 v15, v1, 4, 1")
    E(f"    v_lshl_add_u32 v{WA}, v15, 5, v{WA}")
    E("    v_and_b32 v15, 3, v14")
    E(f"    v_lshl_add_u32 v{WA}, v15, 3, v{WA}")
    E("    v_and_b32 v14, 31, v1")
    E("    v_bfe_u32 v15, v1, 2, 2")
    E("    v_xor_b32 v15, v15, v13")
    E("    v_lshlrev_b32 v15, 4, v15")
    E("    v_lshl_add_u32 v15, v14, 6, v15")
    E(f"    s_add_u32 s38, s43, {16*P}")
    E(f"    v_add_u32 v{XA}, s38, v15")
    E(f"    v_xor_b32 v{XA+1}, 32, v{XA}")
    E(f"    v_lshlrev_b32 v{GRV}, 4, v14")

    def woff(ks, mt):
        return (2 * (mt // nt) + ks) * CH + (mt % nt) * 64

    for j in range(NCS):
        offs = [woff((w + 4 * j) // n, (w + 4 * j) % n) for w in range(4)]
        E(f"    s_mov_b32 s38, {offs[0]}")
        for w in range(1, 4):
            E(f"    s_cmp_eq_u32 s3, {w}")
            E(f"    s_cselect_b32 s38, {offs[w]}, s38")
        E(f"    v_add_u32 v{CA+j}, s38, v{WA}")
    for r_ in range(XA, CA + NCS):
        E(f"    v_add_u32 v{r_+6}, {HI}, v{r_}")
    E("    v_lshrrev_b32 v2, 2, v1")
    E("    v_lshrrev_b32 v3, 4, v1")
    E("    v_xor_b32 v2, v2, v3")
    E("    v_and_b32 v2, 1, v2")
    E("    v_cmp_eq_u32 vcc, 0, v2")
    E(f"    v_mov_b32 v3, s{S_ONE}")
    E("    s_nop 0")
    for j in range(4):
        E(f"    v_cndmask_b32 v{SEL+j}, 0, v3, vcc")
    R, SA = 88, 96
    for j in range(4):
        E(f"    v_mov_b32 v{SA+j}, 0")
    vm.wait("st")
    stamp(1, vm)
    for d in range(8):
        E(f"    v_dot2c_f32_bf16 v{SA+d%2}, s{S_ONE}, v{R+d}")
        E(f"    v_dot2c_f32_bf16 v{SA+2+d%2}, v{R+d}, v{R+d}")
    E("    s_nop 3")
    a_, b_ = SA + 4, SA + 6
    for j in range(2):
        E(f"    v_add_f32 v{a_+j}, v{SA+2*j}, v{SA+2*j+1}")
    for ctl in ("quad_perm:[1,0,3,2]", "quad_perm:[2,3,0,1]", "row_half_mirror", "row_mirror"):
        E("    s_nop 1")
        for j in range(2):
            E(f"    v_add_f32_dpp v{b_+j}, v{a_+j}, v{a_+j} {ctl} row_mask:0xf bank_mask:0xf")
        a_, b_ = b_, a_
    for j in range(2):
        E(f"    v_mov_b32 v{b_+j}, v{a_+j}")
    E("    s_nop 1")
    for j in range(2):
        E(f"    v_permlane16_swap_b32 v{a_+j}, v{b_+j}")
    E("    s_nop 1")
    for j in range(2):
        E(f"    v_add_f32 v{a_+j}, v{a_+j}, v{b_+j}")
    M, V_ = a_, a_ + 1
    E(f"    v_mul_f32 v{M}, 0x3b000000, v{M}")
    E(f"    v_mul_f32 v{V_}, 0x3b000000, v{V_}")
    E(f"    v_fma_f32 v{V_}, -v{M}, v{M}, v{V_}")
    E(f"    v_max_f32 v{V_}, 0, v{V_}")
    E(f"    v_cvt_pk_bf16_f32 v{M}, 0, v{M}")
    E(f"    v_cvt_pk_bf16_f32 v{V_}, 0, v{V_}")
    E(f"    v_add_f32 v{V_}, 0x3727c5ac, v{V_}")
    E(f"    v_cvt_pk_bf16_f32 v{V_}, 0, v{V_}")
    E(f"    v_sqrt_f32 v{V_}, v{V_}")
    E(f"    v_sub_f32 v{PUB}, 0, v{M}")
    E(f"    v_cvt_pk_bf16_f32 v{V_}, 0, v{V_}")
    E(f"    v_rcp_f32 v{PUB+1}, v{V_}")
    while nxt_st < NB:
        for f in dma_ops(nxt_st):
            f()
        nxt_st += 1
    token_issue(vm)
    stamp(3, vm)
    vm.wait(("dma", 0))
    E("    s_barrier")
    stamp(4, vm)
    stampclk(16, vm)

    dq = []

    def ds(tag, text):
        def f():
            E(text)
            dq.append(tag)
        return f

    def ds_wait(tags):
        idx = max([i for i, t in enumerate(dq) if t in tags], default=-1)
        if idx < 0:
            return
        m_ = len(dq) - 1 - idx
        E(f"    s_waitcnt lgkmcnt({min(m_, 15)})")
        if m_ <= 15:
            del dq[:idx + 1]
        else:
            del dq[:len(dq) - 15]

    def fr_ops(k):
        setidx, bo, ks = k % 2, buf(k // 2) * STG, k % 2
        x = XF + 4 * (k % 2)
        ops = [ds(("x", k), f"    ds_read_b128 v[{x}:{x+3}], {la(XA+ks, bo)}")]
        for mt in order(k):
            r = WF + 24 * setidx + 4 * mt
            base = bo + woff(ks, mt)
            ops.append(ds(("w", k, mt), f"    ds_read_b64_tr_b16 v[{r}:{r+1}], {la(WA, base)}"))
            ops.append(ds(("w", k, mt), f"    ds_read_b64_tr_b16 v[{r+2}:{r+3}], {la(WA, base+4*P)}"))
        return ops

    def cs_reads(st):
        bo = buf(st) * STG
        ops = []
        for j in range(NCS):
            r = CT + 4 * j
            ops.append(ds(("c", st, j), f"    ds_read_b64_tr_b16 v[{r}:{r+1}], {la(CA+j, bo)}"))
            ops.append(ds(("c", st, j), f"    ds_read_b64_tr_b16 v[{r+2}:{r+3}], {la(CA+j, bo+4*P)}"))
        return ops

    def cs_mfma(st, j):
        def f():
            ds_wait([("c", st, j)])
            a = CS + 4 * j
            c = "0" if st == 0 else f"v[{a}:{a+3}]"
            E(f"    v_mfma_f32_16x16x32_bf16 v[{a}:{a+3}], v[{SEL}:{SEL+3}], v[{CT+4*j}:{CT+4*j+3}], {c}")
        return f

    def order(k):
        if k == 31:
            return [m_ for t in range(nt) for m_ in (t, nt + t)]
        return list(range(n))

    def publish():
        token_get(vm)
        E(f"    v_mov_b32 v{PUB+2}, s90")
        E(f"    v_mov_b32 v{PUB+3}, s91")
        E("    v_lshrrev_b32 v2, 1, v1")
        E("    s_mov_b32 exec_lo, 1")
        E("    s_mov_b32 exec_hi, 1")
        E(f"    buffer_store_dwordx4 v[{PUB}:{PUB+3}], v2, s[12:15], s35 offen sc0 sc1")
        E("    s_mov_b64 exec, -1")
        vm.issue("pub")

    def gr_load():
        E(f"    buffer_load_dwordx4 v[{GR1}:{GR1+3}], v{GRV}, s[12:15], s46 offen sc0 sc1")
        E(f"    buffer_load_dwordx4 v[{GR2}:{GR2+3}], v{GRV}, s[12:15], s47 offen sc0 sc1")

    def gr_issue():
        gr_load()
        vm.issue("gr")
        vm.issue("gr")

    def gr_check():
        _lbl[0] += 1
        L = _lbl[0]
        vm.wait("gr")
        E(f"    s_mov_b32 s92, {POLL_LIMIT}")
        E(f"gr_l{L}:")
        E(f"    v_cmp_ne_u64 vcc, s[90:91], v[{GR1+2}:{GR1+3}]")
        E(f"    v_cmp_ne_u64 s[44:45], s[90:91], v[{GR2+2}:{GR2+3}]")
        E("    s_nop 0")
        E("    s_or_b64 vcc, vcc, s[44:45]")
        E(f"    s_cbranch_scc0 gr_d{L}")
        gr_load()
        E("    s_waitcnt vmcnt(0)")
        E("    s_sub_u32 s92, s92, 1")
        E("    s_cmp_lg_u32 s92, 0")
        E(f"    s_cbranch_scc1 gr_l{L}")
        E(f"gr_d{L}:")
        stampval(20, "s92", vm)

    WSTEP = int(os.environ.get("WSTEP", "2"))

    def mm(k, mt):
        x = XF + 4 * (k % 2)
        w = WF + 24 * (k % 2) + 4 * mt
        a = ACC + 16 * mt
        c = "0" if k == 0 else f"v[{a}:{a+15}]"
        E(f"    v_mfma_f32_32x32x16_bf16 v[{a}:{a+15}], v[{w}:{w+3}], v[{x}:{x+3}], {c}")

    def mfma_group(k, slots):
        od = order(k)
        for s_, mt in enumerate(od):
            if s_ % WSTEP == 0:
                ds_wait([("x", k)] + [("w", k, m2) for m2 in od[s_:s_ + WSTEP]])
            mm(k, mt)
            for f in slots[s_]:
                f()

    for f in fr_ops(0) + cs_reads(0):
        f()
    pend = []
    wd_next = 0
    for k in range(31):
        st = k // 2
        if k % 2 == 1:
            vm.wait(("dma", st + 1))
            E("    s_waitcnt lgkmcnt(0)")
            del dq[:]
            E("    s_barrier")
            if st % 4 == 3 and st < 15 and DIAG:
                stamp(5 + st // 4, vm)
                stampclk(17 + st // 4, vm)
            if st in (0, 1, 2, 4, 5, 6) and DIAG:
                stamp(22 + st, vm)
            assert not pend
            if st + NB < nst:
                if 'n' not in os.environ.get('XP', ''):
                    pend += dma_ops(st + NB)
            else:
                free = (buf(st) + 1) * STG
                while wd_next < NPRE and (wd_next + 1) * 8192 <= free:
                    pend += wdma_ops(vm, wd_next)
                    wd_next += 1
        slots = [[] for _ in range(n)]
        rd = fr_ops(k + 1)
        nrs = n - 2 if nt == 3 else n - 1
        for s_ in range(nrs):
            cnt = (len(rd) + (nrs - s_) - 1) // (nrs - s_)
            slots[s_] += rd[:cnt]
            rd = rd[cnt:]
        if k % 2 == 1:
            cr = cs_reads(st + 1)
            h_ = len(cr) // 2 if nt == 3 else 0
            slots[n - 2] += cr[:h_]
            slots[n - 1] += cr[h_:]
        else:
            for j in range(NCS):
                slots[(2 * j + 1) if k < 30 else j].append(cs_mfma(st, j))
        cnt = (len(pend) + 1) // 2 if k % 2 == 1 else len(pend)
        ms = list(range(1, n, 2)) if k % 2 == 1 else list(range(0, n, 2))
        for i_ in range(cnt):
            slots[ms[i_ % len(ms)]].append(None)
        for s_ in range(n):
            slots[s_] = [f if f is not None else 0 for f in slots[s_]]
        for s_ in range(n):
            for i_, f in enumerate(slots[s_]):
                if f == 0:
                    slots[s_][i_] = pend.pop(0)
        if k == PUBK:
            slots[n - 1].append(publish)
        if k == GRK:
            slots[n - 1].append(gr_issue)
        if k == WDK and WD_AT == "g":
            def wdt():
                E("    s_mul_i32 s38, s33, 344*128")
                E("    v_lshlrev_b32 v2, 7, v0")
                E(f"    buffer_load_dword v{PUB}, v2, s[8:11], s38 offen")
                E("    v_min_u32 v3, 87, v0")
                E("    v_lshlrev_b32 v3, 7, v3")
                E("    s_add_u32 s38, s38, 256*128")
                E(f"    buffer_load_dword v{PUB+1}, v3, s[8:11], s38 offen")
                vm.issue("pf")
                vm.issue("pf")
            slots[n - 1].append(wdt)
        if k == GRC:
            slots[n - 1 if k < 30 else 0].append(gr_check)
        if k == 30:
            def xw():
                E("    v_and_b32 v2, 31, v1")
                E("    v_lshrrev_b32 v3, 5, v1")
                E("    v_lshlrev_b32 v2, 2, v2")
                E("    v_lshl_add_u32 v2, v3, 11, v2")
                for j in range(NCS):
                    offs = [((w + 4 * j) % n) * 256 + ((w + 4 * j) // n) * 128 for w in range(4)]
                    E(f"    s_mov_b32 s38, {offs[0]}")
                    for w in range(1, 4):
                        E(f"    s_cmp_eq_u32 s3, {w}")
                        E(f"    s_cselect_b32 s38, {offs[w]}, s38")
                    E(f"    v_add_u32 v{CA+j}, s38, v2")
            slots[n - 2 if nt == 3 else 1].append(xw)

            def xw2():
                if nt == 2:
                    E("    s_nop 3")
                for j in range(NCS):
                    for c2 in range(2):
                        E(f"    ds_write_b32 v{CA+j}, v{CS+4*j} offset:{XROW*8192 + c2*4096}")
                        dq.append("xw")
            slots[n - 1].append(xw2)
        mfma_group(k, slots)
    assert wd_next == NPRE and not pend
    E("    s_waitcnt lgkmcnt(0)")
    del dq[:]
    E("    s_barrier")
    E(f"    s_setprio {GPRIO2}")
    E("    v_lshlrev_b32 v2, 2, v1")
    E("    v_add_u32 v2, s37, v2")
    CV = CS
    od = order(31)
    for mt in od:
        E(f"    ds_read_b32 v{CV+mt}, v2 offset:{XROW*8192 + mt*256}")
    BM = 194
    T0 = 190

    def split_ops(pos, mt):
        c = CV + mt
        q = CT + 2 * pos
        return [f"    v_and_b32 v{T0}, s40, v{c}",
                f"    v_sub_f32 v{c}, v{c}, v{T0}",
                f"    v_and_b32 v{T0+1}, s40, v{c}",
                f"    v_sub_f32 v{c}, v{c}, v{T0+1}",
                f"    v_cvt_pk_bf16_f32 v{q}, v{T0}, v{T0+1}",
                f"    v_cvt_pk_bf16_f32 v{q+1}, v{c}, 0"]

    def corr(pos, mt):
        q = CT + 4 * (pos // 2)
        b = BM + 2 if pos % 2 == 0 else BM
        a = ACC + 16 * mt
        E(f"    v_mfma_f32_32x32x16_bf16 v[{a}:{a+15}], v[{q}:{q+3}], v[{b}:{b+3}], v[{a}:{a+15}]")

    def epi_ops(tau):
        G = ACC + 16 * tau
        U = ACC + 16 * (nt + tau)
        PK = 56 + 8 * ((tau + 2) % 3)
        o = []
        for j in range(16):
            o.append(f"    v_mul_f32 v{G+j}, v{G+j}, v{GR1+1}")
        for j in range(16):
            o.append(f"    v_mul_f32 v{U+j}, v{U+j}, v{GR1+1}")
        for j in range(16):
            o.append(f"    v_cvt_pk_bf16_f32 v{G+j}, 0, v{G+j}")
            o.append(f"    v_cvt_pk_bf16_f32 v{U+j}, 0, v{U+j}")
        for j in range(16):
            o.append(f"    v_mul_f32 v{G+j}, v{G+j}, v{U+j}")
        for j in range(8):
            o.append(f"    v_cvt_pk_bf16_f32 v{U+j}, v{G+2*j}, v{G+2*j+1}")
        o.append("    s_nop 1")
        for pair in range(2):
            q0 = U + 4 * pair
            o.append(f"    v_permlane32_swap_b32 v{q0}, v{q0+2}")
            o.append(f"    v_permlane32_swap_b32 v{q0+1}, v{q0+3}")
        o.append(f"    s_add_u32 s38, s42, {tau*2048}")
        for pair in range(2):
            q0 = U + 4 * pair
            o.append(f"    buffer_store_dwordx4 v[{q0}:{q0+3}], v8, s[24:27], s38 offen offset:{pair*1024} sc0 sc1")
        return o

    def emit(lst, cnt):
        for _ in range(min(cnt, len(lst))):
            t = lst.pop(0)
            E(t)
            if "buffer_store" in t:
                vm.issue("hst")

    pre = [f"    v_mov_b32 v{BM+j}, 0" for j in (0, 1, 4, 5)]
    pre += [f"    v_cvt_pk_bf16_f32 v{BM+j}, v{GR1}, v{GR1}" for j in (2, 3)]
    sp = []
    for pos, mt in enumerate(od):
        sp.append(f"    s_waitcnt lgkmcnt({n-1-pos})")
        sp += split_ops(pos, mt)
    mm(31, od[0])
    emit(pre, 6)
    mm(31, od[1])
    emit(sp, 7)
    mm(31, od[2])
    emit(sp, 7)
    mm(31, od[3])
    emit(sp, 7)
    corr(0, od[0])
    emit(sp, 7)
    corr(1, od[1])
    stamp(8, vm)
    if nt == 3:
        emit(sp, 7)
        mm(31, od[4])
        emit(sp, 7)
        mm(31, od[5])
        ep = epi_ops(0)
        emit(ep, 7)
        for pos in range(2, 6):
            corr(pos, od[pos])
            emit(ep, 7)
        emit(ep, 999)
        for tau in (1, 2):
            emit(epi_ops(tau), 999)
    else:
        E("    s_nop 1")
        corr(2, od[2])
        corr(3, od[3])
        E("    s_nop 7")
        for tau in (0, 1):
            emit(epi_ops(tau), 999)
    stamp(9, vm)
    for i in range(NPRE, 10):
        for f in wdma_ops(vm, i):
            f()
    E("    v_lshrrev_b32 v3, 5, v1")
    E("    v_and_b32 v5, 15, v1")
    E("    v_lshrrev_b32 v6, 2, v5")
    E("    v_lshl_add_u32 v6, v3, 3, v6")
    E("    v_lshlrev_b32 v11, 7, v6")
    E("    v_bfe_u32 v6, v1, 4, 1")
    E("    v_lshlrev_b32 v6, 5, v6")
    E("    v_and_b32 v7, 3, v5")
    E("    v_lshl_add_u32 v6, v7, 3, v6")
    E("    v_bfe_u32 v7, v1, 3, 1")
    E("    v_lshlrev_b32 v7, 6, v7")
    E("    v_xor_b32 v6, v6, v7")
    E("    v_add_u32 v11, v11, v6")
    E("    v_add_u32 v11, s37, v11")
    E("    v_xor_b32 v12, 64, v11")
    E(f"    v_add_u32 v17, {HI}, v11")
    E(f"    v_add_u32 v18, {HI}, v12")
    vm.wait(("w", NPRE - 1))
    for i in range(NPRE):
        wread(WREG[i], i)
    E("    s_branch phase_c")


def token_publish():
    E("    s_or_b32 s34, s2, s3")
    E("    s_cmp_eq_u32 s34, 0")
    E("    s_cbranch_scc0 g_notok")
    E("    s_or_b32 s90, s90, 1")
    E(f"    v_mov_b32 v{TK}, s90")
    E(f"    v_mov_b32 v{TK+1}, s91")
    E("    s_mov_b64 exec, 1")
    E(f"    buffer_store_dwordx2 v[{TK}:{TK+1}], off, s[60:63], 0 sc0 sc1")
    E("    s_mov_b64 exec, -1")
    E("g_notok:")


def gen_gtype():
    vm = VM()
    E(f"    s_setprio {GPRIO}")
    if CFIRST:
        E("    s_sub_u32 s2, s2, 256")
    else:
        token_publish()
    E("    s_lshr_b32 s33, s2, 3")
    E("    s_bfe_u32 s30, s2, 0x20001")
    E("    s_lshl_b32 s30, s30, 2")
    E("    s_lshr_b32 s31, s33, 3")
    E("    s_add_u32 s30, s30, s31")
    E("    s_and_b32 s31, s2, 1")
    E("    s_lshl_b32 s31, s31, 3")
    E("    s_and_b32 s34, s33, 7")
    E("    s_add_u32 s31, s31, s34")
    srd(16, 64, 65, S * D * 2)
    E("    s_lshl_b32 s35, s30, 7")
    E("    s_lshl_b32 s34, s31, 3")
    E("    s_add_u32 s35, s35, s34")
    E("    s_lshl_b32 s34, s3, 1")
    E("    s_add_u32 s35, s35, s34")
    E("    s_lshl_b32 s34, s35, 10")
    E("    v_lshrrev_b32 v12, 5, v1")
    E("    v_and_b32 v13, 31, v1")
    E("    v_lshlrev_b32 v13, 4, v13")
    E("    v_lshl_add_u32 v12, v12, 10, v13")
    E("    buffer_load_dwordx4 v[88:91], v12, s[16:19], s34 offen")
    E("    buffer_load_dwordx4 v[92:95], v12, s[16:19], s34 offen offset:512")
    vm.issue("st")
    vm.issue("st")
    E("    s_lshl_b32 s35, s35, 4")
    E("    s_lshl_b32 s32, s30, 17")
    E("    s_lshl_b32 s34, s3, 15")
    E("    s_add_u32 s32, s32, s34")
    E("    s_lshr_b32 s46, s32, 6")
    E("    v_lshrrev_b32 v12, 2, v1")
    E("    v_lshrrev_b32 v13, 4, v1")
    E("    v_xor_b32 v13, v13, v1")
    E("    v_and_b32 v13, 3, v13")
    E("    v_lshlrev_b32 v13, 4, v13")
    E(f"    v_lshl_add_u32 v{XDV}, v12, 10, v13")
    E(f"    v_add_u32 v{XDV+1}, {16384-1024}, v{XDV}")
    E("    s_and_b32 s29, s33, 7")
    E("    s_lshr_b32 s34, s33, 3")
    E("    s_lshl_b32 s34, s34, 1")
    if ROT == 1:
        E("    s_add_u32 s29, s29, s34")
    E("    s_lshl_b32 s29, s29, 1")
    E("    s_and_b32 s29, s29, 15" if ROT else "    s_mov_b32 s29, 0")
    E("    s_lshl_b32 s34, s29, 6")
    E("    s_add_u32 s32, s32, s34")
    srd_off(24, 88, 89, WS_H, H_BYTES)
    srd_off(12, 88, 89, WS_ST, S * 16)
    E(f"    s_mov_b32 s{S_ONE}, 0x3f803f80")
    E("    v_lshlrev_b32 v8, 4, v1")
    E("    s_lshl_b32 s47, s30, 11")
    E("    s_lshr_b32 s34, s31, 3")
    E("    s_lshl_b32 s34, s34, 10")
    E("    s_add_u32 s47, s47, s34")
    E("    s_and_b32 s34, s3, 1")
    E("    s_lshl_b32 s34, s34, 9")
    E("    s_add_u32 s47, s47, s34")
    srd(8, 82, 83, F * D * 2)
    E("    s_mul_i32 s51, s3, 22")
    E("    s_cmp_eq_u32 s3, 3")
    E("    s_cselect_b32 s51, 65, s51")
    E("    s_lshl_b32 s41, s51, 14")
    E("    s_lshl_b32 s37, s3, 11")
    E("    v_lshrrev_b32 v14, 3, v1")
    E(f"    v_lshlrev_b32 v{DDV}, 10, v14")
    E("    v_and_b32 v14, 7, v1")
    E("    v_bfe_u32 v15, v1, 4, 1")
    E("    v_lshlrev_b32 v15, 2, v15")
    E("    v_xor_b32 v14, v14, v15")
    E(f"    v_lshl_add_u32 v{DDV}, v14, 4, v{DDV}")
    E("    s_and_b32 s34, s31, 7")
    E("    s_lshl_b32 s34, s34, 7")
    E(f"    v_add_u32 v{DDV}, s34, v{DDV}")
    E("    s_lshl_b32 s36, s30, 2")
    E("    s_add_u32 s36, s36, s3")
    E("    s_lshl_b32 s39, s36, 7")
    E("    s_lshl_b32 s38, s31, 3")
    E("    s_add_u32 s39, s39, s38")
    E(f"    s_add_u32 s39, s39, {FH_OFF}")
    E(f"    s_mul_i32 s42, s36, {HB}")
    E("    s_cmp_lt_u32 s31, 11")
    E("    s_cbranch_scc0 g_path2")
    E("    s_mul_i32 s36, s31, 192")
    E("    s_mul_i32 s38, s31, 3*2048")
    E("    s_add_u32 s42, s42, s38")
    gen_gtype_path(3, vm)
    E("g_path2:")
    E("    s_lshl_b32 s36, s31, 7")
    E("    s_add_u32 s36, s36, 704")
    E("    s_lshl_b32 s38, s36, 5")
    E("    s_add_u32 s42, s42, s38")
    gen_gtype_path(2, vm)
    gen_phase_c()


COPY_BYTES = 4240
_order = [(1, 0), (0, 11), (2, 4), (5, 0), (4, 12), (3, 8), (6, 4), (7, 8)]
COPY_BASE = {}
_pos = 0
for _b, _beta in _order:
    while (_pos // 16) % 16 != _beta:
        _pos += 16
    COPY_BASE[_b] = _pos
    _pos += COPY_BYTES
KV_OFF = (_pos + 15) // 16 * 16
KVP = 80
CH_BYTES = (KV_OFF + 65 * KVP + 255) // 256 * 256
LDS_BYTES = 81920
TB_OFF = (KV_OFF + 127) // 128 * 128
assert TB_OFF + 4096 <= KV_OFF + 64 * KVP
assert 2 * CH_BYTES <= LDS_BYTES


def wd_touch(vt):
    srd(52, 82, 83, F * D * 2)
    E("    s_mul_i32 s93, s50, 344*128")
    E(f"    v_lshlrev_b32 v{vt}, 7, v0")
    E(f"    buffer_load_dword v{vt+1}, v{vt}, s[52:55], s93 offen")
    E(f"    v_min_u32 v{vt}, 87, v0")
    E(f"    v_lshlrev_b32 v{vt}, 7, v{vt}")
    E("    s_add_u32 s93, s93, 256*128")
    E(f"    buffer_load_dword v{vt+1}, v{vt}, s[52:55], s93 offen")


def gen_ctype():
    vm = VM()
    E("c_type:")
    E(f"    s_setprio {CPRIO}")
    if CFIRST:
        token_publish()
    if 'g' in os.environ.get('XP', ''):
        E("    s_endpgm")
    if CFIRST:
        pass
    else:
        E("    s_sub_u32 s2, s2, 256")
    srd(16, 66, 67, S * D * 2)
    srd(20, 68, 69, S * D * 2)
    srd(24, 70, 71, D * 4 * 2)
    E("    s_lshr_b32 s32, s2, 3")
    E("    s_and_b32 s33, s2, 7")
    E("    v_and_b32 v10, 31, v0")
    E("    v_lshrrev_b32 v11, 5, v0")
    E("    s_lshl_b32 s34, s32, 6")
    E("    v_lshlrev_b32 v3, 3, v11")
    E("    v_add_u32 v3, s34, v3")
    E("    s_lshl_b32 s35, s33, 5")
    E("    v_add_u32 v6, s35, v10")
    E("    v_lshlrev_b32 v3, 10, v3")
    E("    v_lshl_add_u32 v3, v6, 2, v3")
    E("    v_add_u32 v4, 4096, v3")
    E("    v_subrev_u32 v5, 3072, v3")
    E("    v_lshlrev_b32 v6, 4, v6")
    for j in range(3):
        E(f"    buffer_load_dword v{132+j}, v5, s[16:19], 0 offen offset:{1024*j}")
    for j in range(4):
        E(f"    buffer_load_dword v{135+j}, v3, s[16:19], 0 offen offset:{1024*j}")
    for j in range(4):
        E(f"    buffer_load_dword v{139+j}, v4, s[16:19], 0 offen offset:{1024*j}")
    for j in range(4):
        E(f"    buffer_load_dword v{144+j}, v3, s[20:23], 0 offen offset:{1024*j}")
    for j in range(4):
        E(f"    buffer_load_dword v{148+j}, v4, s[20:23], 0 offen offset:{1024*j}")
    E("    buffer_load_dwordx4 v[128:131], v6, s[24:27], 0 offen")
    for _ in range(20):
        vm.issue("kv")
    E("    s_lshr_b32 s31, s3, 1")
    E("    s_lshl_b32 s30, s33, 6")
    E("    s_lshl_b32 s34, s32, 1")
    E("    s_add_u32 s30, s30, s34")
    E("    s_add_u32 s30, s30, s31")
    E("    s_mov_b32 s50, s32")
    E("    s_mov_b32 s51, s33")
    E("    s_and_b32 s32, s3, 1")
    E("    s_lshl_b32 s33, s30, 12")
    srd_off(44, 72, 73, "s33", 4096)
    E(f"    s_mul_i32 s35, s31, {CH_BYTES}")
    E("    s_lshl_b32 s36, s32, 6")
    E("    v_add_u32 v3, s36, v1")
    E("    v_lshlrev_b32 v4, 5, v3")
    E("    v_subrev_u32 v5, 16, v4")
    def kf_loads():
        srd_off(44, 72, 73, "s33", 4096)
        E("    buffer_load_dwordx4 v[16:19], v5, s[44:47], 0 offen")
        E("    buffer_load_dwordx4 v[20:23], v4, s[44:47], 0 offen")
        E("    buffer_load_dwordx4 v[24:27], v4, s[44:47], 0 offen offset:16")
        for _ in range(3):
            vm.issue("kf")
        srd(44, 74, 75, D * 2)
        E("    s_lshl_b32 s36, s30, 1")
        E("    v_mov_b32 v7, s36")
        E("    buffer_load_ushort v9, v7, s[44:47], 0 offen")
        vm.issue("kf")
    if not KFL:
        kf_loads()
    srd_off(8, 88, 89, WS_KVR, S * D * 2)
    srd_off(12, 88, 89, WS_KVA, S * D * 2)
    E("    s_getreg_b32 s6, hwreg(HW_REG_XCC_ID, 0, 4)")
    E("    v_lshrrev_b32 v12, 4, v10")
    E(f"    v_mul_u32_u24 v12, {CH_BYTES}, v12")
    E("    v_and_b32 v13, 15, v10")
    E("    v_lshl_add_u32 v12, v13, 8, v12")
    E("    v_sub_u32 v13, 7, v11")
    E("    v_and_b32 v14, 7, v10")
    E("    v_xor_b32 v13, v13, v14")
    E("    v_lshl_add_u32 v12, v13, 4, v12")
    E(f"    v_add_u32 v12, {TB_OFF}, v12")
    E("    v_lshrrev_b32 v13, 3, v1")
    E("    v_and_b32 v14, 7, v1")
    E("    v_lshrrev_b32 v15, 4, v1")
    E("    v_xor_b32 v15, v15, v14")
    E("    v_lshlrev_b32 v15, 4, v15")
    E("    v_lshl_add_u32 v15, v13, 7, v15")
    E(f"    s_mul_i32 s36, s31, {CH_BYTES}")
    E("    s_lshl_b32 s37, s32, 11")
    E("    s_add_u32 s36, s36, s37")
    E(f"    s_add_u32 s36, s36, {TB_OFF}")
    E("    v_add_u32 v15, s36, v15")
    E("    v_xor_b32 v28, 64, v15")
    E("    v_lshlrev_b32 v13, 12, v13")
    E("    v_lshl_add_u32 v13, v14, 4, v13")
    E("    s_lshl_b32 s36, s51, 18")
    E("    s_lshl_b32 s37, s3, 16")
    E("    s_add_u32 s36, s36, s37")
    E("    s_lshl_b32 s37, s50, 7")
    E("    s_sub_u32 s37, 3968, s37")
    E("    s_add_u32 s48, s36, s37")
    E("    s_lshl_b32 s36, s51, 10")
    E(f"    s_add_u32 s36, s36, {FK_OFF}")
    E("    s_lshl_b32 s37, s3, 8")
    E("    s_add_u32 s49, s36, s37")
    E("    s_lshl_b32 s37, s50, 3")
    E("    s_add_u32 s49, s49, s37")
    E("    s_lshr_b32 s37, s50, 3")
    E("    s_lshl_b32 s37, s37, 8")
    E("    s_add_u32 s41, s36, s37")
    vm.wait("kv")
    stamp(1, vm)
    token_issue(vm)
    if KFL:
        kf_loads()
    if TOUCH != "none":
        w_touch(vm, 78, 79, "s50", 29)
    if WD_AT == "early":
        wd_touch(244)
        vm.issue("pf")
        vm.issue("pf")
    for c in range(2):
        for d in range(2):
            E(f"    v_lshlrev_b32 v{32+4*c+2*d}, 16, v{128+2*c+d}")
            E(f"    v_and_b32 v{33+4*c+2*d}, s40, v{128+2*c+d}")
    for j in range(11):
        E(f"    v_lshlrev_b32 v{40+j}, 16, v{132+j}")
        E(f"    v_and_b32 v{52+j}, s40, v{132+j}")
    for j in range(8):
        E(f"    v_lshlrev_b32 v{64+j}, 16, v{144+j}")
        E(f"    v_and_b32 v{72+j}, s40, v{144+j}")
    for j in range(8):
        A0, A1, B0, B1, T = 96, 97, 98, 99, 100
        E(f"    v_mul_f32 v{A0}, v{40+j}, v35")
        E(f"    v_mul_f32 v{A1}, v{52+j}, v39")
        E(f"    v_mul_f32 v{B0}, v{41+j}, v34")
        E(f"    v_mul_f32 v{B1}, v{53+j}, v38")
        round_pair(A0, A1, T, 40)
        round_pair(B0, B1, T, 40)
        E(f"    v_add_f32 v{A0}, v{A0}, v{B0}")
        E(f"    v_add_f32 v{A1}, v{A1}, v{B1}")
        E(f"    v_mul_f32 v{B0}, v{42+j}, v33")
        E(f"    v_mul_f32 v{B1}, v{54+j}, v37")
        round_pair(A0, A1, T, 40)
        round_pair(B0, B1, T, 40)
        E(f"    v_add_f32 v{A0}, v{A0}, v{B0}")
        E(f"    v_add_f32 v{A1}, v{A1}, v{B1}")
        E(f"    v_mul_f32 v{B0}, v{43+j}, v32")
        E(f"    v_mul_f32 v{B1}, v{55+j}, v36")
        round_pair(A0, A1, T, 40)
        round_pair(B0, B1, T, 40)
        E(f"    v_add_f32 v{A0}, v{A0}, v{B0}")
        E(f"    v_add_f32 v{A1}, v{A1}, v{B1}")
        round_pair(A0, A1, T, 40)
        E(f"    v_mul_f32 v{80+j}, v{A0}, v{64+j}")
        E(f"    v_mul_f32 v{88+j}, v{A1}, v{72+j}")
    for c in range(2):
        for jj in range(4):
            E(f"    v_cvt_pk_bf16_f32 v{104+4*c+jj}, v{80+8*c+7-2*jj}, v{80+8*c+6-2*jj}")
    E("    ds_write_b128 v12, v[104:107]")
    E("    ds_write_b128 v12, v[108:111] offset:128")
    E("    s_waitcnt lgkmcnt(0)")
    E("    s_barrier")
    E("    ds_read_b128 v[104:107], v15")
    E("    ds_read_b128 v[108:111], v28 offset:1024")
    E("    s_add_u32 s43, s48, 32768")
    E("    s_waitcnt lgkmcnt(1)")
    E("    buffer_store_dwordx4 v[104:107], v13, s[12:15], s48 offen")
    E("    s_waitcnt lgkmcnt(0)")
    E("    buffer_store_dwordx4 v[108:111], v13, s[12:15], s43 offen")
    vm.issue("kst")
    vm.issue("kst")
    stamp(2, vm)
    E("    s_barrier")
    E("    s_add_u32 s34, s33, %d" % WS_KVR)
    srd_off(20, 88, 89, "s34", 4096)
    E("    s_add_u32 s34, s33, %d" % WS_YT)
    srd_off(24, 88, 89, "s34", 4096)
    E("    v_mov_b32 v36, 0")
    E("    v_mov_b32 v37, 0")
    E("    v_mov_b32 v38, 0")
    E("    v_mov_b32 v39, 0")
    E("    v_lshlrev_b32 v7, 4, v1")
    E("    v_add_u32 v7, s35, v7")
    E("    s_mov_b64 exec, 0x7f")
    for b in range(8):
        E(f"    ds_write_b128 v7, v[36:39] offset:{COPY_BASE[b]}")
    E("    s_mov_b64 exec, 0xf")
    E(f"    ds_write_b128 v7, v[36:39] offset:{KV_OFF + 64*KVP}")
    E("    s_mov_b64 exec, -1")
    E("    v_lshlrev_b32 v6, 4, v3")
    E("    v_lshlrev_b32 v7, 5, v3")
    E("    v_add_u32 v7, s35, v7")
    E("    v_lshrrev_b32 v8, 2, v3")
    E(f"    v_mul_u32_u24 v8, {KVP}, v8")
    E("    v_and_b32 v10, 3, v3")
    E("    v_lshl_add_u32 v8, v10, 4, v8")
    E("    v_add_u32 v8, s35, v8")
    E("    v_and_b32 v3, 31, v1")
    E("    v_lshrrev_b32 v4, 5, v1")
    E("    v_add_u32 v5, 1, v3")
    E("    v_and_b32 v14, 7, v5")
    E("    v_lshrrev_b32 v5, 3, v5")
    E("    v_sub_u32 v5, v5, v4")
    E("    v_add_u32 v5, 1, v5")
    E("    v_lshlrev_b32 v5, 4, v5")
    E("    v_mov_b32 v10, 0")
    for b in range(8):
        E(f"    v_cmp_eq_u32 vcc, {b}, v14")
        E(f"    v_mov_b32 v11, {COPY_BASE[b]}")
        E("    s_nop 0")
        E("    v_cndmask_b32 v10, v10, v11, vcc")
    E("    v_add_u32 v10, v10, v5")
    E("    v_add_u32 v10, s35, v10")
    E("    v_sub_u32 v5, 63, v3")
    E(f"    v_mul_u32_u24 v5, {KVP}, v5")
    E("    v_lshlrev_b32 v14, 4, v4")
    E("    v_sub_u32 v5, v5, v14")
    E(f"    s_add_u32 s36, s35, {KV_OFF + 16}")
    E("    v_add_u32 v11, s36, v5")
    E(f"    v_subrev_u32 v15, {32*KVP}, v11")
    E(f"    s_add_u32 s36, s36, {KVP*64}")
    E("    v_sub_u32 v12, s36, v14")
    token_get(vm)
    stampval(20, "s92", vm)
    E("    s_add_u32 s6, s6, 1")
    E("    s_lshl_b32 s6, s6, 24")
    E("    s_mov_b32 s4, s90")
    E("    s_xor_b32 s5, s91, s6")
    E("    v_mov_b32 v244, s4")
    E("    v_mov_b32 v245, s5")
    E(f"    s_sub_u32 s93, s49, {FK_OFF}")
    E(f"    s_lshl_b32 s93, s93, {FSH}")
    vm.wait("kst")
    E("    s_mov_b64 exec, 1")
    E("    buffer_store_dwordx2 v[244:245], off, s[56:59], s93")
    E("    s_mov_b64 exec, -1")
    vm.issue("flag")
    stamp(3, vm)
    for u in range(2):
        e = 16 + 4 * u
        for b in range(8):
            off = COPY_BASE[b] + 112 + 16 * u
            if b % 2 == 0 and (b // 2) % 2 == 0:
                r = e + b // 2
                E(f"    ds_write_b128 v7, v[{r}:{r+3}] offset:{off}")
            else:
                t = 40 + 4 * ((u * 8 + b) % 4)
                for d in range(4):
                    if b % 2 == 0:
                        E(f"    v_mov_b32 v{t+d}, v{e + b//2 + d}")
                    else:
                        be = (b - 1) // 2
                        E(f"    v_alignbyte_b32 v{t+d}, v{e+be+d+1}, v{e+be+d}, 2")
                E(f"    ds_write_b128 v7, v[{t}:{t+3}] offset:{off}")
    E(f"    ds_write_b128 v7, v[24:27] offset:{COPY_BASE[0] + 112 + 32}")
    E(f"    s_setprio {CPRIO2}")
    stamp(9, vm)

    def slow_stores():
        E("    buffer_store_dwordx4 v[104:107], v13, s[8:11], s48 offen sc0 sc1")
        E("    buffer_store_dwordx4 v[108:111], v13, s[8:11], s43 offen sc0 sc1")

    NF = int(os.environ.get("NF", "12"))
    E(f"    s_mov_b32 s92, {POLL_LIMIT}")
    E("    s_mov_b32 s28, 0")
    E(f"    s_sub_u32 s46, s41, {FK_OFF}")
    E(f"    s_lshl_b32 s46, s46, {FSH}")
    E(f"    s_lshl_b32 s47, s41, {FSH}")
    E("    s_mov_b32 exec_hi, 0")
    E("pk_l:")
    E(f"    buffer_load_dwordx2 v[{PA}:{PA+1}], v{VL8}, s[56:59], s46 offen sc0 sc1")
    E("    s_waitcnt vmcnt(0)")
    E(f"    v_cmp_ne_u64 vcc, s[4:5], v[{PA}:{PA+1}]")
    E("    s_cmp_eq_u64 vcc, 0")
    E("    s_cbranch_scc1 pk_fast")
    E(f"    s_cmp_gt_u32 s92, {POLL_LIMIT - NF}")
    E("    s_cbranch_scc1 pk_next")
    E("    s_cmp_lg_u32 s28, 0")
    E("    s_cbranch_scc1 pk_sb")
    E("    s_mov_b64 exec, -1")
    slow_stores()
    E("    s_waitcnt vmcnt(0)")
    flag_store(vm, "s49")
    E("    s_mov_b32 s28, 1")
    E("    s_mov_b32 exec_hi, 0")
    E("pk_sb:")
    E(f"    buffer_load_dwordx2 v[{PA}:{PA+1}], v{VL8}, s[56:59], s47 offen sc0 sc1")
    E("    s_waitcnt vmcnt(0)")
    E(f"    v_cmp_ne_u64 vcc, s[90:91], v[{PA}:{PA+1}]")
    E("    s_cmp_eq_u64 vcc, 0")
    E("    s_cbranch_scc1 pk_join")
    E("pk_next:")
    E(f"    s_sleep {int(os.environ.get('PSK', '2'))}")
    E("    s_sub_u32 s92, s92, 1")
    E("    s_cmp_lg_u32 s92, 0")
    E("    s_cbranch_scc1 pk_l")
    E("    s_branch pk_join")
    E("pk_fast:")
    E(f"    s_add_u32 s20, s20, {WS_KVA - WS_KVR}")
    E("    s_addc_u32 s21, s21, 0")
    E("    s_and_b32 s21, s21, 0xffff")
    E("pk_join:")
    E("    s_mov_b64 exec, -1")
    stampval(21, "s92", vm)
    stamp(4, vm)
    E("    buffer_load_dwordx4 v[28:31], v6, s[20:23], 0 offen")
    E("    buffer_load_dwordx4 v[32:35], v6, s[20:23], 0 offen offset:2048")
    E("    v_mov_b32 v246, v13")
    E("    s_waitcnt vmcnt(1)")
    E(f"    ds_write_b128 v8, v[28:31] offset:{KV_OFF}")
    E("    s_waitcnt vmcnt(0)")
    E(f"    ds_write_b128 v8, v[32:35] offset:{KV_OFF + 32*KVP}")
    stamp(10)
    vm.q = []
    E("    s_waitcnt lgkmcnt(0)")
    E("    s_barrier")
    stamp(5)
    FR = 64
    ACC = 192

    def fr(setidx, slot):
        return FR + 64 * setidx + 4 * slot

    def op_A(setidx, slot, t):
        r = fr(setidx, slot)
        return lambda: E(f"    ds_read_b128 v[{r}:{r+3}], v10 offset:{32*(t+3)}")

    def ops_B(setidx, slot, d, c):
        def f():
            E(f"    v_add_u32 v13, {KVP*d}, v{11 if c == 0 else 15}")
            E("    v_min_u32 v13, v13, v12")
            for q in range(2):
                r = fr(setidx, slot + q)
                E(f"    ds_read_b128 v[{r}:{r+3}], v13 offset:{32*(1-q)}")
        return f

    def loads(it, setidx):
        kind, d0 = it
        ops = []
        if kind == "X":
            for e_ in range(2):
                for q in range(2):
                    ops.append(op_A(setidx, 2 * e_ + q, 2 * (d0 + e_) - q))
                for c in range(2):
                    ops.append(ops_B(setidx, 4 + 4 * e_ + 2 * c, d0 + e_, c))
        else:
            for e_ in range(4):
                for q in range(2):
                    ops.append(op_A(setidx, 2 * e_ + q, 2 * (d0 + e_) - q))
                ops.append(ops_B(setidx, 8 + 2 * e_, d0 + e_, 1))
        return ops

    def mfmas(it, setidx):
        kind, d0 = it
        lst = []
        if kind == "X":
            for e_ in range(2):
                for q in range(2):
                    for c in range(2):
                        lst.append((c, fr(setidx, 2 * e_ + q), fr(setidx, 4 + 4 * e_ + 2 * c + q)))
        else:
            for e_ in range(4):
                for q in range(2):
                    lst.append((1 + q, fr(setidx, 2 * e_ + q), fr(setidx, 8 + 2 * e_ + q)))
        return lst

    def conv_loop(its, pf_at):
        started = set()
        for f in loads(its[0], 0):
            f()
        for n, it in enumerate(its):
            E("    s_waitcnt lgkmcnt(0)")
            nxt = loads(its[n + 1], (n + 1) % 2) if n + 1 < len(its) else []
            per = (len(nxt) + 4) // 5
            ms = mfmas(it, n % 2)
            for k, (acc, a, b) in enumerate(ms):
                A = ACC + 16 * acc
                c = f"v[{A}:{A+15}]" if acc in started else "0"
                started.add(acc)
                E(f"    v_mfma_f32_32x32x16_bf16 v[{A}:{A+15}], v[{a}:{a+3}], v[{b}:{b+3}], {c}")
                for _ in range(per if k + 1 < len(ms) else len(nxt)):
                    if nxt:
                        nxt.pop(0)()
            if n == pf_at and WD_AT == "conv":
                wd_touch(60)

    E("    s_cmp_eq_u32 s32, 0")
    E("    s_cbranch_scc0 conv_l1")
    conv_loop([("X", d) for d in range(0, 24, 2)], 0)
    E("    s_branch conv_le")
    E("conv_l1:")
    conv_loop([("X", d) for d in range(24, 32, 2)] + [("Y", d) for d in range(32, 64, 4)], 0)
    E("    s_nop 15")
    E("    s_nop 3")
    for j in range(16):
        E(f"    v_add_f32 v{ACC+16+j}, v{ACC+16+j}, v{ACC+32+j}")
    E("conv_le:")
    stamp(6)
    E("    s_barrier")
    E("    v_lshlrev_b32 v13, 4, v1")
    E("    v_add_u32 v13, s35, v13")
    E("    s_lshl_b32 s36, s32, 12")
    E("    v_add_u32 v14, s36, v13")
    E("    s_xor_b32 s36, s36, 4096")
    E("    v_add_u32 v13, s36, v13")
    E("    s_nop 7")
    E("    s_cmp_eq_u32 s32, 0")
    E("    s_cbranch_scc1 conv_hw0")
    for jq in range(4):
        E(f"    ds_write_b128 v13, v[{ACC+4*jq}:{ACC+4*jq+3}] offset:{1024*jq}")
    for j in range(16):
        E(f"    v_mov_b32 v{64+j}, v{ACC+16+j}")
    E("    s_branch conv_x")
    E("conv_hw0:")
    for jq in range(4):
        E(f"    ds_write_b128 v13, v[{ACC+16+4*jq}:{ACC+16+4*jq+3}] offset:{1024*jq}")
    for j in range(16):
        E(f"    v_mov_b32 v{64+j}, v{ACC+j}")
    E("conv_x:")
    E("    s_waitcnt lgkmcnt(0)")
    E("    s_barrier")
    for jq in range(4):
        E(f"    ds_read_b128 v[{80+4*jq}:{80+4*jq+3}], v14 offset:{1024*jq}")
    E("    v_sub_u32 v5, 63, v3")
    E(f"    v_mul_u32_u24 v5, {KVP}, v5")
    E("    v_lshlrev_b32 v6, 3, v4")
    E("    v_sub_u32 v5, v5, v6")
    E(f"    s_mul_i32 s36, s32, {32*KVP}")
    E(f"    s_sub_u32 s36, {KV_OFF + 8}, s36")
    E("    s_add_u32 s36, s36, s35")
    E("    v_add_u32 v5, s36, v5")
    for jq in range(4):
        E(f"    ds_read_b64 v[{96+2*jq}:{96+2*jq+1}], v5 offset:{16*(3-jq)}")
    E("    v_lshlrev_b32 v6, 6, v3")
    E("    v_lshl_add_u32 v6, v4, 3, v6")
    E("    s_mul_i32 s36, s3, 20480")
    E("    v_add_u32 v6, s36, v6")
    E("    v_lshlrev_b32 v7, 4, v1")
    E("    v_add_u32 v8, s36, v7")
    E("    s_lshl_b32 s37, s32, 11")
    E("    v_lshlrev_b32 v9, 16, v9")
    E("    s_waitcnt lgkmcnt(0)")
    E("    s_barrier")
    for j in range(16):
        E(f"    v_add_f32 v{64+j}, v{64+j}, v{80+j}")
    vm.q = ["pf", "pf"]
    for jq in range(4):
        k0, k1, k2, k3 = 104, 105, 106, 107
        E(f"    v_and_b32 v{k0}, s40, v{97+2*jq}")
        E(f"    v_lshlrev_b32 v{k1}, 16, v{97+2*jq}")
        E(f"    v_and_b32 v{k2}, s40, v{96+2*jq}")
        E(f"    v_lshlrev_b32 v{k3}, 16, v{96+2*jq}")
        for kk in (k0, k1, k2, k3):
            E(f"    v_mul_f32 v{kk}, v{kk}, v9")
        round_pair(k0, k1, 108, 40)
        round_pair(k2, k3, 108, 40)
        y = 64 + 4 * jq
        round_pair(y, y + 1, 108, 40)
        round_pair(y + 2, y + 3, 108, 40)
        for e_, kk in enumerate((k0, k1, k2, k3)):
            E(f"    v_add_f32 v{y+e_}, v{y+e_}, v{kk}")
        E(f"    v_cvt_pk_bf16_f32 v{110+2*jq}, v{y}, v{y+1}")
        E(f"    v_cvt_pk_bf16_f32 v{111+2*jq}, v{y+2}, v{y+3}")
        E(f"    ds_write_b64 v6, v[{110+2*jq}:{111+2*jq}] offset:{16*jq}")
    E("    s_waitcnt lgkmcnt(0)")
    E("    ds_read_b128 v[104:107], v8")
    E("    ds_read_b128 v[108:111], v8 offset:1024")
    E("    s_waitcnt lgkmcnt(1)")
    E("    buffer_store_dwordx4 v[104:107], v7, s[24:27], s37 offen sc0 sc1")
    E("    s_waitcnt lgkmcnt(0)")
    E("    buffer_store_dwordx4 v[108:111], v7, s[24:27], s37 offen offset:1024 sc0 sc1")
    vm.issue("yst")
    vm.issue("yst")
    stamp(7, vm)
    E("    s_lshl_b32 s36, s32, 12")
    E("    s_lshl_b32 s37, s30, 3")
    E("    s_add_u32 s47, s36, s37")
    E(f"    s_add_u32 s47, s47, {FY_OFF}")
    E("    s_waitcnt vmcnt(0)")
    flag_store(vm, "s47")
    stamp(8)
    E("    s_cmp_lg_u32 s28, 0")
    E("    s_cbranch_scc1 k_done")
    E("    v_mov_b32 v13, v246")
    E("    buffer_load_dwordx4 v[104:107], v13, s[12:15], s48 offen sc0 sc1")
    E("    buffer_load_dwordx4 v[108:111], v13, s[12:15], s43 offen sc0 sc1")
    E("    s_waitcnt vmcnt(0)")
    slow_stores()
    E("    s_waitcnt vmcnt(0)")
    flag_store(vm, "s49")
    E("    s_endpgm")


def gen_phase_c():
    vm = VM()
    vm.q = ["hst"] + (["stamp"] if DIAG else []) + [("w", i) for i in range(NPRE, 10) for _ in range(2)]
    WT = 48
    XT = 64
    NT = 72
    ACC = 88
    HB0 = [152 + 8 * j for j in range(8)] + [80]
    NH = int(os.environ.get("NH", "9"))
    NK = 22
    YSLOT = 0
    RSL = 2
    global VL8
    VL8_saved = VL8
    VL8 = 15
    E("phase_c:")
    E(f"    v_lshlrev_b32 v15, {3+FSH}, v1")
    E("    s_lshl_b32 s30, s30, 1")
    E("    s_lshr_b32 s35, s31, 3")
    E("    s_add_u32 s30, s30, s35")
    E("    s_and_b32 s31, s31, 7")
    E("    s_and_b32 s32, s3, 1")
    E("    s_lshr_b32 s33, s3, 1")
    E("    v_and_b32 v9, 31, v1")
    E("    v_lshlrev_b32 v13, 10, v9")
    E("    v_lshl_add_u32 v13, v3, 3, v13")
    E("    s_lshl_b32 s35, s30, 1")
    E("    s_add_u32 s35, s35, s32")
    E("    s_lshl_b32 s36, s35, 15")
    E("    s_lshl_b32 s38, s31, 7")
    E("    s_add_u32 s36, s36, s38")
    E("    s_lshl_b32 s38, s33, 6")
    E("    s_add_u32 s36, s36, s38")
    E("    v_add_u32 v13, s36, v13")
    for q in range(4):
        E(f"    buffer_load_dwordx2 v[{XT+2*q}:{XT+2*q+1}], v13, s[16:19], 0 offen offset:{16*q}")
        vm.issue("x")
    srd_off(20, 88, 89, WS_H, H_BYTES)
    srd_off(44, 88, 89, WS_YT, S * D * 2)
    srd(52, 84, 85, S * D * 2)
    E("    s_lshr_b32 s49, s30, 4")
    E("    s_lshl_b32 s49, s49, 12")
    E("    s_lshl_b32 s38, s31, 9")
    E("    s_add_u32 s49, s49, s38")
    E("    s_lshl_b32 s38, s33, 8")
    E("    s_add_u32 s49, s49, s38")
    E(f"    s_add_u32 s49, s49, {FY_OFF}")
    E("    v_lshrrev_b32 v0, 2, v1")
    E("    v_lshlrev_b32 v0, 12, v0")
    E("    v_and_b32 v7, 3, v1")
    E("    v_lshl_add_u32 v0, v7, 4, v0")
    E("    s_lshl_b32 s38, s31, 1")
    E("    s_add_u32 s38, s38, s33")
    E("    s_lshl_b32 s38, s38, 17")
    E("    s_lshl_b32 s48, s35, 6")
    E("    s_add_u32 s48, s48, s38")
    E("    v_lshrrev_b32 v7, 2, v5")
    E("    v_lshl_add_u32 v7, v3, 2, v7")
    E("    v_lshlrev_b32 v14, 6, v7")
    E("    v_bfe_u32 v7, v1, 4, 1")
    E("    v_lshl_add_u32 v14, v7, 5, v14")
    E("    v_and_b32 v7, 3, v5")
    E("    v_lshl_add_u32 v14, v7, 3, v14")
    E("    v_add_u32 v14, s37, v14")
    E(f"    s_mul_i32 s42, s30, {2*HB}")
    E("    s_lshl_b32 s38, s51, 10")
    E("    s_add_u32 s42, s42, s38")
    E(f"    s_add_u32 s43, s42, {HB}")
    E("    s_lshl_b32 s36, s30, 8")
    E(f"    s_add_u32 s36, s36, {FH_OFF}")
    masks = []
    for lo, hi in ((0, 3), (3, 7), (7, 10), (10, 15)):
        m16 = ((1 << (hi + 1)) - 1) & ~((1 << lo) - 1)
        masks.append(m16 | (m16 << 16))
    E(f"    s_mov_b32 s50, {masks[0]:#x}")
    for w in range(1, 4):
        E(f"    s_cmp_eq_u32 s3, {w}")
        E(f"    s_cselect_b32 s50, {masks[w]:#x}, s50")
    E("    s_mov_b32 s51, 0")
    E("    s_mul_i32 s38, s31, 44")
    E("    v_add_u32 v6, s38, v1")
    E("    v_cmp_le_u32 vcc, 176, v6")
    E("    v_subrev_u32 v7, 176, v6")
    E("    v_cndmask_b32 v6, v6, v7, vcc")
    E("    s_cmp_lt_u32 s3, 2")
    E("    s_cselect_b32 s38, 8, 0")
    E("    s_add_u32 s38, s38, 167")
    E("    v_min_u32 v6, s38, v6")
    E("    v_lshlrev_b32 v6, 7, v6")
    E(f"    v_mov_b32 v7, {HB}")
    E("    v_cndmask_b32 v7, 0, v7, vcc")
    E("    v_add_u32 v6, v6, v7")
    vm.wait("hst")
    flag_store(vm, "s39")
    stamp(10, vm)
    E("    s_waitcnt lgkmcnt(0)")
    for i in range(10, 10 + NPRE):
        for f in wdma_ops(vm, i):
            f()
    vm.wait("x")
    T = ACC
    for d in range(8):
        E(f"    v_lshlrev_b32 v{T+2*d}, 16, v{XT+d}")
        E(f"    v_and_b32 v{T+2*d+1}, s40, v{XT+d}")
    for j in range(16):
        E(f"    v_add_f32 v{T+j}, v{T+j}, v{GR2}")
    for j in range(16):
        E(f"    v_cvt_pk_bf16_f32 v{T+j}, 0, v{T+j}")
    for j in range(16):
        E(f"    v_mul_f32 v{T+j}, v{T+j}, v{GR2+1}")
    for d in range(8):
        E(f"    v_cvt_pk_bf16_f32 v{NT+d}, v{T+2*d}, v{T+2*d+1}")
    stamp(11, vm)
    poll(vm, "s36", "s[50:51]")
    stampval(21, "s92", vm)
    stamp(12, vm)

    hreg = {}

    def hload(i, r):
        hreg[i] = r
        if i % 4 == 0 and i:
            E("    s_add_u32 s42, s42, 4096")
            E("    s_add_u32 s43, s43, 4096")
        off = (i % 4) * 1024
        if i == NK - 1:
            assert off == 1024
            E("    s_cmp_lt_u32 s3, 2")
            E("    s_cselect_b32 s38, 1024, 0")
            E("    s_add_u32 s42, s42, s38")
            E("    s_add_u32 s43, s43, s38")
            off = 0
        for e_ in range(2):
            E(f"    buffer_load_dwordx4 v[{r+4*e_}:{r+4*e_+3}], v8, s[20:23], s{42+e_} offen offset:{off}")
            vm.issue(("h", i))

    if int(os.environ.get("HT", "1")):
        E("    s_mov_b32 exec_hi, 0xfff")
        E("    buffer_load_dword v7, v6, s[20:23], s42 offen")
        E("    s_mov_b64 exec, -1")
        vm.issue("pf")
    for i in range(NH):
        hload(i, HB0[i])
    hn = NH

    def wsrc(i):
        return WREG[i] if i < NPRE else WT + 8 * (i % 2)

    def y_dma():
        for j in range(2):
            E(f"    s_add_u32 s38, s48, {16*4096*j}")
            E(f"    s_add_u32 m0, s37, {YSLOT*8192 + 1024*j}")
            E("    s_nop 0")
            E("    buffer_load_dwordx4 v0, s[44:47], s38 offen lds")

    FYC = int(os.environ.get("FYC", "14"))
    for i in range(NK):
        if i == NK - 1:
            E("    s_cmp_ge_u32 s3, 2")
            E("    s_cbranch_scc1 pc_skip")
        vm.wait(("h", i))
        if i in (0, 4, 8):
            stamp({0: 2, 4: 29, 8: 30}[i], vm)
        if i >= NPRE:
            E("    s_waitcnt lgkmcnt(0)")
        if NPRE <= i + 1 < NK:
            vm.wait(("w", i + 1))
            wread(WT + 8 * ((i + 1) % 2), wslot(i + 1))
        h = hreg[i]
        w = wsrc(i)
        for wd in range(2):
            for wm in range(2):
                a = ACC + 16 * (2 * wd + wm)
                c = "0" if i == 0 else f"v[{a}:{a+15}]"
                E(f"    v_mfma_f32_32x32x16_bf16 v[{a}:{a+15}], v[{w+4*wd}:{w+4*wd+3}], v[{h+4*wm}:{h+4*wm+3}], {c}")
        for r in [h] + ([w] if i < NPRE else []):
            if hn < NK:
                hload(hn, r)
                hn += 1
        if NPRE <= i < 10:
            for f in wdma_ops(vm, i + 10):
                f()
        if i in (11, 12):
            for f in wdma_ops(vm, i + 9):
                f()
        if i == FYI:
            E(f"    s_lshl_b32 s93, s49, {FSH}")
            E("    s_mov_b32 exec_hi, 0")
            E(f"    buffer_load_dwordx2 v[{PA}:{PA+1}], v{VL8}, s[56:59], s93 offen sc0 sc1")
            E("    s_mov_b64 exec, -1")
            vm.issue("fy")
        if i == FYC:
            vm.wait("fy")
            E("    s_mov_b32 exec_hi, 0")
            E(f"    v_cmp_ne_u64 vcc, s[90:91], v[{PA}:{PA+1}]")
            E("    s_mov_b64 exec, -1")
            E("    s_cmp_eq_u64 vcc, 0")
            E("    s_cselect_b32 s28, 1, 0")
            E("    s_cbranch_scc0 fy_no")
            y_dma()
            E("fy_no:")
            stamp(14, vm)
    E("pc_skip:")
    stamp(13)
    E("    s_waitcnt vmcnt(0) lgkmcnt(0)")
    E("    v_add_u32 v6, s37, v8")
    E(f"    v_add_u32 v6, {RSL*8192}, v6")
    E("    s_lshl_b32 s36, s3, 14")
    E(f"    s_add_u32 s36, s36, {RSL*8192}")
    E("    v_add_u32 v7, s36, v8")
    YR = 32
    PS = 152
    RS = 216
    TT = 232

    def y_read():
        for q in range(4):
            E(f"    ds_read_b64_tr_b16 v[{YR+2*q}:{YR+2*q+1}], v14 offset:{YSLOT*8192 + q*512}")

    def acc_out():
        for q in range(4):
            for jq in range(4):
                a = ACC + 16 * q + 4 * jq
                E(f"    ds_write_b128 v6, v[{a}:{a+3}] offset:{(2*q + jq//2)*8192 + (jq%2)*1024}")
        E("    s_waitcnt lgkmcnt(0)")
        E("    s_barrier")
        for w in range(4):
            for jq in range(4):
                r = PS + 16 * w + 4 * jq
                E(f"    ds_read_b128 v[{r}:{r+3}], v7 offset:{(jq//2)*8192 + w*2048 + (jq%2)*1024}")

    def a_term():
        for q in range(4):
            t = TT
            xs = [RS + 4 * q + e_ for e_ in range(4)]
            ns = [t + e_ for e_ in range(4)]
            ys = [t + 4 + e_ for e_ in range(4)]
            for (dst, src) in ((xs, XT + 2 * q), (ns, NT + 2 * q), (ys, YR + 2 * q)):
                E(f"    v_lshlrev_b32 v{dst[0]}, 16, v{src}")
                E(f"    v_and_b32 v{dst[1]}, s40, v{src}")
                E(f"    v_lshlrev_b32 v{dst[2]}, 16, v{src+1}")
                E(f"    v_and_b32 v{dst[3]}, s40, v{src+1}")
            for e_ in (0, 2):
                E(f"    v_pk_mul_f32 v[{ns[e_]}:{ns[e_]+1}], v[{ns[e_]}:{ns[e_]+1}], v[{ys[e_]}:{ys[e_]+1}]")
            for e_ in range(4):
                E(f"    v_cvt_pk_bf16_f32 v{ns[e_]}, 0, v{ns[e_]}")
            for e_ in (0, 2):
                E(f"    v_pk_add_f32 v[{xs[e_]}:{xs[e_]+1}], v[{xs[e_]}:{xs[e_]+1}], v[{ns[e_]}:{ns[e_]+1}]")
            for e_ in range(4):
                E(f"    v_cvt_pk_bf16_f32 v{xs[e_]}, 0, v{xs[e_]}")

    def b_sum():
        E("    s_waitcnt lgkmcnt(8)")
        for j in range(0, 16, 2):
            E(f"    v_pk_add_f32 v[{PS+j}:{PS+j+1}], v[{PS+j}:{PS+j+1}], v[{PS+16+j}:{PS+16+j+1}]")
        E("    s_waitcnt lgkmcnt(0)")
        for j in range(0, 16, 2):
            E(f"    v_pk_add_f32 v[{PS+32+j}:{PS+32+j+1}], v[{PS+32+j}:{PS+32+j+1}], v[{PS+48+j}:{PS+48+j+1}]")
        for j in range(0, 16, 2):
            E(f"    v_pk_add_f32 v[{PS+j}:{PS+j+1}], v[{PS+j}:{PS+j+1}], v[{PS+32+j}:{PS+32+j+1}]")
        for j in range(16):
            E(f"    v_cvt_pk_bf16_f32 v{PS+j}, 0, v{PS+j}")

    E("    s_cmp_eq_u32 s28, 0")
    E("    s_cbranch_scc1 fin_slow")
    y_read()
    E("    s_nop 7")
    acc_out()
    a_term()
    b_sum()
    E("    s_branch fin_out")
    E("fin_slow:")
    E("    s_nop 7")
    acc_out()
    b_sum()
    if 'g' not in os.environ.get('XP', ''):
        poll(vm, "s49", "0xffffffff")
    stamp(15)
    y_dma()
    E("    s_waitcnt vmcnt(0)")
    y_read()
    E("    s_waitcnt lgkmcnt(0)")
    a_term()
    E("fin_out:")
    for jq in range(4):
        a = PS + 4 * jq
        xs = [RS + 4 * jq + e_ for e_ in range(4)]
        for e_ in (0, 2):
            E(f"    v_pk_add_f32 v[{xs[e_]}:{xs[e_]+1}], v[{xs[e_]}:{xs[e_]+1}], v[{a+e_}:{a+e_+1}]")
        o = TT + 2 * jq
        E(f"    v_cvt_pk_bf16_f32 v{o}, v{xs[0]}, v{xs[1]}")
        E(f"    v_cvt_pk_bf16_f32 v{o+1}, v{xs[2]}, v{xs[3]}")
        E(f"    buffer_store_dwordx2 v[{o}:{o+1}], v13, s[52:55], 0 offen offset:{16*jq}")
    if DIAG:
        E("    s_waitcnt vmcnt(0)")
    stamp(31)
    E("    s_endpgm")
    VL8 = VL8_saved


def gen_kernel():
    E(f".globl {KNAME}")
    E(".p2align 8")
    E(f".type {KNAME},@function")
    E(f"{KNAME}:")
    E("    s_cmp_ge_u32 s2, 512")
    E("    s_cbranch_scc1 k_done")
    E("    s_load_dwordx16 s[64:79], s[0:1], 0")
    E("    s_load_dwordx8 s[80:87], s[0:1], 64")
    E("    s_load_dwordx2 s[88:89], s[0:1], 96")
    E("    s_memrealtime s[90:91]")
    E("    s_mov_b32 s40, 0xffff0000")
    E("    v_and_b32 v1, 63, v0")
    E("    v_lshrrev_b32 v2, 6, v0")
    E(f"    v_lshlrev_b32 v{VL8}, {3+FSH}, v1")
    E("    v_readfirstlane_b32 s3, v2")
    E("    s_waitcnt lgkmcnt(0)")
    stamp_init()
    stamp(0)
    srd_off(56, 88, 89, WS_FLAG, FLAG_BYTES)
    srd(60, 86, 87, 256)
    E("    s_cmp_lt_u32 s2, 256" if CFIRST else "    s_cmp_ge_u32 s2, 256")
    E("    s_cbranch_scc1 c_type")
    gen_gtype()
    gen_ctype()
    E("k_done:")
    E("    s_endpgm")


def main():
    hdr = open("parallel_sum__ssm_conv_h3__glu_gated_bilinear__prompt.s.ref").read().splitlines()
    for l in hdr:
        if l.startswith("; Override") or l.startswith("; grid=") or l.startswith("; @launch"):
            continue
        if not l.startswith(";"):
            break
        E(l)
    E(f"; @launch grid=(512,1,1) block=(256,1,1) lds={LDS_BYTES}")
    E('.amdgcn_target "amdgcn-amd-amdhsa--gfx950"')
    E(".text")
    gen_kernel()
    E('.section .rodata,"a"')
    E(".p2align 6")
    E(f".amdhsa_kernel {KNAME}")
    E("  .amdhsa_next_free_vgpr 256")
    E("  .amdhsa_next_free_sgpr 102")
    E("  .amdhsa_accum_offset 256")
    E("  .amdhsa_group_segment_fixed_size 0")
    E("  .amdhsa_kernarg_size 104")
    E("  .amdhsa_user_sgpr_count 2")
    E("  .amdhsa_user_sgpr_kernarg_segment_ptr 1")
    E("  .amdhsa_system_sgpr_workgroup_id_x 1")
    E(".end_amdhsa_kernel")
    path = sys.argv[1] if len(sys.argv) > 1 else "fused.s"
    open(path, "w").write("\n".join(out) + "\n")
    print("wrote", path, len(out), "lines")


main()
```

```python
import sys, os

S, D, F = 2048, 512, 1376
WS_XN = 0x000000
WS_KVR = 0x200000
WS_H = 0x400000
WS_YT = 0xA00000
WS_FLAG = 0xC00000
WS_KVA = 0xE00000
FX_OFF = 0x0000
FK_OFF = 0x2000
FH_OFF = 0x4000
FY_OFF = 0x6000
FSH = int(os.environ.get("FSH", "4"))
FG_OFF = 0x8000
FLAG_BYTES = 0x9000 << FSH
HS = int(os.environ.get("HS", "10"))
HB = 86 * 1024
H_BYTES = 64 * HB
KNAME = "parallel_sum__ssm_conv_h3__glu_gated_bilinear__prompt_kernel"
POLL_LIMIT = 200000

out = []


def E(s=""):
    out.append(s)


class VM:
    def __init__(self):
        self.q = []

    def issue(self, tag):
        self.q.append(tag)

    def wait(self, tag):
        idx = -1
        for i, t in enumerate(self.q):
            if t == tag:
                idx = i
        if idx < 0:
            return
        n = len(self.q) - 1 - idx
        assert n <= 63, n
        E(f"    s_waitcnt vmcnt({n})")
        self.q = self.q[idx + 1:]

    def wait_all(self):
        E("    s_waitcnt vmcnt(0)")
        self.q = []


DIAG = len(sys.argv) > 2 and sys.argv[2] == "diag"
STAMP_WS = 0x2000000


def stamp_init():
    if not DIAG:
        return
    E(f"    s_add_u32 s96, s88, {STAMP_WS}")
    E("    s_addc_u32 s97, s89, 0")
    E("    s_and_b32 s97, s97, 0xffff")
    E("    s_mov_b32 s98, 0x80000")
    E("    s_mov_b32 s99, 0x00020000")
    E("    s_lshl_b32 s100, s2, 2")
    E("    s_add_u32 s100, s100, s3")
    E("    s_lshl_b32 s100, s100, 7")
    E("    v_mov_b32 v254, s100")


def stamp(slot, vm=None):
    if not DIAG:
        return
    E("    s_waitcnt lgkmcnt(0)")
    E("    s_memrealtime s[100:101]")
    E("    s_waitcnt lgkmcnt(0)")
    E("    v_mov_b32 v255, s100")
    E("    s_mov_b64 s[94:95], exec")
    E("    s_mov_b64 exec, 1")
    E(f"    buffer_store_dword v255, v254, s[96:99], 0 offen offset:{4*slot}")
    E("    s_mov_b64 exec, s[94:95]")
    if vm is not None:
        vm.issue("stamp")


def stampclk(slot, vm=None):
    if not DIAG:
        return
    E("    s_waitcnt lgkmcnt(0)")
    E("    s_memtime s[100:101]")
    E("    s_waitcnt lgkmcnt(0)")
    stampval(slot, "s100", vm)


def stampval(slot, sg, vm=None):
    if not DIAG:
        return
    E(f"    v_mov_b32 v255, {sg}")
    E("    s_mov_b64 s[94:95], exec")
    E("    s_mov_b64 exec, 1")
    E(f"    buffer_store_dword v255, v254, s[96:99], 0 offen offset:{4*slot}")
    E("    s_mov_b64 exec, s[94:95]")
    if vm is not None:
        vm.issue("stamp")


def srd(dst, lo, hi, nbytes):
    E(f"    s_mov_b32 s{dst}, s{lo}")
    E(f"    s_and_b32 s{dst+1}, s{hi}, 0xffff")
    E(f"    s_mov_b32 s{dst+2}, {nbytes}")
    E(f"    s_mov_b32 s{dst+3}, 0x00020000")


def srd_off(dst, lo, hi, off, nbytes):
    E(f"    s_add_u32 s{dst}, s{lo}, {off}")
    E(f"    s_addc_u32 s{dst+1}, s{hi}, 0")
    E(f"    s_and_b32 s{dst+1}, s{dst+1}, 0xffff")
    E(f"    s_mov_b32 s{dst+2}, {nbytes}")
    E(f"    s_mov_b32 s{dst+3}, 0x00020000")


def wave_reduce_add(v, t):
    E("    s_nop 1")
    E(f"    v_add_f32_dpp v{t}, v{v}, v{v} quad_perm:[1,0,3,2] row_mask:0xf bank_mask:0xf")
    E("    s_nop 1")
    E(f"    v_add_f32_dpp v{v}, v{t}, v{t} quad_perm:[2,3,0,1] row_mask:0xf bank_mask:0xf")
    E("    s_nop 1")
    E(f"    v_add_f32_dpp v{t}, v{v}, v{v} row_half_mirror row_mask:0xf bank_mask:0xf")
    E("    s_nop 1")
    E(f"    v_add_f32_dpp v{v}, v{t}, v{t} row_mirror row_mask:0xf bank_mask:0xf")
    E(f"    v_mov_b32 v{t}, v{v}")
    E("    s_nop 1")
    E(f"    v_permlane16_swap_b32 v{v}, v{t}")
    E("    s_nop 1")
    E(f"    v_add_f32 v{v}, v{v}, v{t}")
    E(f"    v_mov_b32 v{t}, v{v}")
    E("    s_nop 1")
    E(f"    v_permlane32_swap_b32 v{v}, v{t}")
    E("    s_nop 1")
    E(f"    v_add_f32 v{v}, v{v}, v{t}")


def round_pair(a, b, t, mask_sgpr):
    E(f"    v_cvt_pk_bf16_f32 v{t}, v{a}, v{b}")
    E(f"    v_lshlrev_b32 v{a}, 16, v{t}")
    E(f"    v_and_b32 v{b}, s{mask_sgpr}, v{t}")


PA, PB, TK, VL8 = 248, 250, 252, 247
_lbl = [0]


def token_issue(vm):
    E(f"    buffer_load_dwordx2 v[{TK}:{TK+1}], off, s[60:63], 0")
    vm.issue("tok")


def token_get(vm):
    _lbl[0] += 1
    n = _lbl[0]
    vm.wait("tok")
    E(f"    s_mov_b32 s92, {POLL_LIMIT}")
    E(f"tok_l{n}:")
    E(f"    v_readfirstlane_b32 s90, v{TK}")
    E(f"    v_readfirstlane_b32 s91, v{TK+1}")
    E("    s_cmp_lg_u32 s90, 0")
    E(f"    s_cbranch_scc1 tok_d{n}")
    E(f"    buffer_load_dwordx2 v[{TK}:{TK+1}], off, s[60:63], 0 sc0 sc1")
    E("    s_waitcnt vmcnt(0)")
    E("    s_sub_u32 s92, s92, 1")
    E("    s_cmp_lg_u32 s92, 0")
    E(f"    s_cbranch_scc1 tok_l{n}")
    E(f"tok_d{n}:")


def flag_store(vm, soff):
    E(f"    s_lshl_b32 s93, {soff}, {FSH}")
    E("    s_mov_b64 exec, 1")
    E(f"    buffer_store_dwordx2 v[{TK}:{TK+1}], off, s[56:59], s93 sc0 sc1")
    E("    s_mov_b64 exec, -1")
    vm.issue("flag")


POLL_SLEEP = int(os.environ.get("PS", "4"))


def poll(vm, soff, mask, gap=6):
    _lbl[0] += 1
    n = _lbl[0]
    if mask == "0xffffffff":
        E("    s_mov_b32 exec_hi, 0")
    else:
        E(f"    s_mov_b64 exec, {mask}")
    E(f"    s_mov_b32 s92, {POLL_LIMIT}")
    E(f"    s_lshl_b32 s93, {soff}, {FSH}")
    E(f"poll_l{n}:")
    E(f"    buffer_load_dwordx2 v[{PA}:{PA+1}], v{VL8}, s[56:59], s93 offen sc0 sc1")
    E("    s_waitcnt vmcnt(0)")
    E(f"    v_cmp_ne_u64 vcc, s[90:91], v[{PA}:{PA+1}]")
    E("    s_cmp_eq_u64 vcc, 0")
    E(f"    s_cbranch_scc1 poll_d{n}")
    E("    s_mov_b64 exec, vcc")
    E(f"    s_sleep {POLL_SLEEP}")
    E("    s_sub_u32 s92, s92, 1")
    E("    s_cmp_lg_u32 s92, 0")
    E(f"    s_cbranch_scc1 poll_l{n}")
    E(f"poll_d{n}:")
    E("    s_mov_b64 exec, -1")
    vm.q = []


TG = int(os.environ.get("TG", "128"))


def w_touch(vm, lo, hi, sr, vt):
    srd(44, lo, hi, D * F * 2)
    E(f"    s_lshl_b32 s38, {sr}, 2")
    E("    s_add_u32 s38, s38, s3")
    E("    s_mul_i32 s38, s38, 4*2752")
    sh = 4 if TG == 128 else 5
    E(f"    v_lshrrev_b32 v{vt}, {sh}, v1")
    E(f"    v_mul_u32_u24 v{vt}, 2752, v{vt}")
    E(f"    v_and_b32 v{vt+1}, {(1 << sh) - 1}, v1")
    E(f"    v_min_u32 v{vt+1}, {12 if TG == 128 else 24}, v{vt+1}")
    E(f"    v_lshlrev_b32 v{vt+1}, {7 if TG == 128 else 6}, v{vt+1}")
    E("    s_and_b32 s93, s2, 1")
    E("    s_mul_i32 s93, s93, 1536")
    E(f"    v_add_u32 v{vt+1}, s93, v{vt+1}")
    E(f"    v_min_u32 v{vt+1}, 2750, v{vt+1}")
    E(f"    v_add_u32 v{vt}, v{vt}, v{vt+1}")
    E(f"    buffer_load_ushort v{vt+1}, v{vt}, s[44:47], s38 offen")
    vm.issue("pf")
    if TG == 64:
        E("    s_add_u32 s38, s38, 2*2752")
        E(f"    buffer_load_ushort v{vt+1}, v{vt}, s[44:47], s38 offen")
        vm.issue("pf")


WS_ST = 0x000000
S_ONE = 6
GPRIO = int(os.environ.get("GPRIO", "3"))
GPRIO2 = int(os.environ.get("GPRIO2", "3"))
CPRIO = int(os.environ.get("CPRIO", "1"))
KFL = int(os.environ.get("KFL", "1"))
ROT = int(os.environ.get("ROT", "1"))
CPRIO2 = int(os.environ.get("CPRIO2", "0"))
TOUCH = os.environ.get("TOUCH", "none")
CFIRST = int(os.environ.get("CFIRST", "0"))
WD_AT = os.environ.get("WD_AT", "g")
WDK = int(os.environ.get("WDK", "30"))
NBI = int(os.environ.get("NBI", "9"))
PUBK = int(os.environ.get("PUBK", "6"))
GRC = int(os.environ.get("GRC", "30"))
GRK = int(os.environ.get("GRK", "24"))
FYI = int(os.environ.get("FYI", "6"))
WLATE = int(os.environ.get("WLATE", "0"))
WDK2 = int(os.environ.get("WDK2", os.environ.get("WDK", "30")))
HI = 40960
GR1, XA, WA, CA, WDV, XDV, DDV, GRV, GR2 = 4, 9, 11, 12, 21, 24, 26, 27, 28
WF, XF, GACC, CS, SEL, CT, PUB = 32, 80, 88, 184, 196, 200, 212
WREG = [216, 224, 232, 240, 32, 40]
NPRE = 6
XROW = 6


def la(reg, off):
    if off >= HI:
        return f"v{reg+6} offset:{off-HI}"
    return f"v{reg} offset:{off}"


def wslot(i):
    if i < 10:
        return i
    if i < 20:
        return i - 10
    return i - 19


def wdma_ops(vm, i):
    ops = []
    for j in range(2):
        def f(j=j):
            E(f"    s_add_u32 s38, s41, {(16*i + 8*j)*1024}")
            E(f"    s_add_u32 m0, s37, {wslot(i)*8192 + j*1024}")
            E("    s_nop 0")
            E(f"    buffer_load_dwordx4 v{DDV}, s[8:11], s38 offen lds")
            vm.issue(("w", i))
        ops.append(f)
    return ops


def wread(dst, slot):
    for wd in range(2):
        r = dst + 4 * wd
        E(f"    ds_read_b64_tr_b16 v[{r}:{r+1}], {la(11+wd, slot*8192)}")
        E(f"    ds_read_b64_tr_b16 v[{r+2}:{r+3}], {la(11+wd, slot*8192+512)}")


def gen_gtype_path(nt, vm0):
    vm = VM()
    vm.q = list(vm0.q)
    ACC = GACC
    P = 64 * nt
    CH = 16 * P + 2048
    STG = 4 * CH
    NB = LDS_BYTES // STG
    nst = 16
    n = 2 * nt
    NCS = n // 2

    def buf(st):
        return st % NB if nt == 3 else (st + 4) % NB

    def dma_ops(st):
        ops = []
        for i in range(nt):
            def f(i=i):
                if i == 0:
                    if st:
                        E(f"    s_add_u32 s48, s48, {32*2752}")
                        E("    s_cmp_ge_u32 s48, s49")
                        E(f"    s_cselect_b32 s38, {16*32*2752}, 0")
                        E("    s_sub_u32 s48, s48, s38")
                    E(f"    s_add_u32 m0, s43, {buf(st)*STG}")
                    E("    s_nop 0")
                E(f"    buffer_load_dwordx4 v{WDV+i}, s[52:55], s48 offen offset:{1024*i} lds")
                vm.issue(("dma", st))
            ops.append(f)
        xo = []
        for a in range(2):
            def f(a=a):
                if a == 0:
                    if st:
                        E("    s_add_u32 s32, s32, 64")
                        E("    s_bitset0_b32 s32, 10")
                    E(f"    s_add_u32 m0, s43, {buf(st)*STG + 16*P}")
                    E("    s_nop 0")
                E(f"    buffer_load_dwordx4 v{XDV+a}, s[16:19], s32 offen offset:{1024*a} lds")
                vm.issue(("dma", st))
            xo.append(f)
        return xo + ops

    E(f"    s_mul_i32 s43, s3, {CH}")
    d0 = dma_ops(0)
    d0[0]()
    d0[1]()
    E("    s_lshr_b32 s49, s3, 1")
    E("    s_cmp_eq_u32 s49, 1")
    E("    s_cselect_b32 s52, s80, s78")
    E("    s_cselect_b32 s53, s81, s79")
    E("    s_and_b32 s53, s53, 0xffff")
    E(f"    s_mov_b32 s54, {D*F*2}")
    E("    s_mov_b32 s55, 0x00020000")
    E("    s_and_b32 s49, s3, 1")
    E("    s_mul_i32 s48, s49, 16*2752")
    E("    s_add_u32 s48, s48, s36")
    E("    s_movk_i32 s49, 2752")
    for i in range(nt):
        E(f"    v_add_u32 v14, {64*i}, v1")
        if nt == 3:
            E("    v_mul_u32_u24 v15, 0x5556, v14")
            E("    v_lshrrev_b32 v15, 18, v15")
            E("    v_mul_u32_u24 v20, 12, v15")
        else:
            E("    v_lshrrev_b32 v15, 3, v14")
            E("    v_lshlrev_b32 v20, 3, v15")
        E("    v_sub_u32 v14, v14, v20")
        E("    v_mul_lo_u32 v15, v15, s49")
        E(f"    v_lshl_add_u32 v{WDV+i}, v14, 4, v15")
        if i:
            E(f"    v_subrev_u32 v{WDV+i}, {1024*i}, v{WDV+i}")
    E(f"    s_add_u32 s49, s48, {16*32*2752}")
    E(f"    s_mul_i32 s38, s29, {32*2752}")
    E("    s_add_u32 s48, s48, s38")
    for f in d0[2:]:
        f()
    nxt_st = 1
    while nxt_st < min(NB, NBI):
        for f in dma_ops(nxt_st):
            f()
        nxt_st += 1
    E("    v_lshrrev_b32 v13, 5, v1")
    E("    v_and_b32 v14, 15, v1")
    E("    v_lshrrev_b32 v15, 2, v14")
    E("    v_lshl_add_u32 v15, v13, 3, v15")
    E(f"    v_mul_u32_u24 v{WA}, {P}, v15")
    E("    v_bfe_u32 v15, v1, 4, 1")
    E(f"    v_lshl_add_u32 v{WA}, v15, 5, v{WA}")
    E("    v_and_b32 v15, 3, v14")
    E(f"    v_lshl_add_u32 v{WA}, v15, 3, v{WA}")
    E("    v_and_b32 v14, 31, v1")
    E("    v_bfe_u32 v15, v1, 2, 2")
    E("    v_xor_b32 v15, v15, v13")
    E("    v_lshlrev_b32 v15, 4, v15")
    E("    v_lshl_add_u32 v15, v14, 6, v15")
    E(f"    s_add_u32 s38, s43, {16*P}")
    E(f"    v_add_u32 v{XA}, s38, v15")
    E(f"    v_xor_b32 v{XA+1}, 32, v{XA}")
    E(f"    v_lshlrev_b32 v{GRV}, 4, v14")

    def woff(ks, mt):
        return (2 * (mt // nt) + ks) * CH + (mt % nt) * 64

    for j in range(NCS):
        offs = [woff((w + 4 * j) // n, (w + 4 * j) % n) for w in range(4)]
        E(f"    s_mov_b32 s38, {offs[0]}")
        for w in range(1, 4):
            E(f"    s_cmp_eq_u32 s3, {w}")
            E(f"    s_cselect_b32 s38, {offs[w]}, s38")
        E(f"    v_add_u32 v{CA+j}, s38, v{WA}")
    for r_ in range(XA, CA + NCS):
        E(f"    v_add_u32 v{r_+6}, {HI}, v{r_}")
    E("    v_lshrrev_b32 v2, 2, v1")
    E("    v_lshrrev_b32 v3, 4, v1")
    E("    v_xor_b32 v2, v2, v3")
    E("    v_and_b32 v2, 1, v2")
    E("    v_cmp_eq_u32 vcc, 0, v2")
    E(f"    v_mov_b32 v3, s{S_ONE}")
    E("    s_nop 0")
    for j in range(4):
        E(f"    v_cndmask_b32 v{SEL+j}, 0, v3, vcc")
    R, SA = 88, 96
    for j in range(4):
        E(f"    v_mov_b32 v{SA+j}, 0")
    vm.wait("st")
    stamp(1, vm)
    for d in range(8):
        E(f"    v_dot2c_f32_bf16 v{SA+d%2}, s{S_ONE}, v{R+d}")
        E(f"    v_dot2c_f32_bf16 v{SA+2+d%2}, v{R+d}, v{R+d}")
    E("    s_nop 3")
    a_, b_ = SA + 4, SA + 6
    for j in range(2):
        E(f"    v_add_f32 v{a_+j}, v{SA+2*j}, v{SA+2*j+1}")
    for ctl in ("quad_perm:[1,0,3,2]", "quad_perm:[2,3,0,1]", "row_half_mirror", "row_mirror"):
        E("    s_nop 1")
        for j in range(2):
            E(f"    v_add_f32_dpp v{b_+j}, v{a_+j}, v{a_+j} {ctl} row_mask:0xf bank_mask:0xf")
        a_, b_ = b_, a_
    for j in range(2):
        E(f"    v_mov_b32 v{b_+j}, v{a_+j}")
    E("    s_nop 1")
    for j in range(2):
        E(f"    v_permlane16_swap_b32 v{a_+j}, v{b_+j}")
    E("    s_nop 1")
    for j in range(2):
        E(f"    v_add_f32 v{a_+j}, v{a_+j}, v{b_+j}")
    M, V_ = a_, a_ + 1
    E(f"    v_mul_f32 v{M}, 0x3b000000, v{M}")
    E(f"    v_mul_f32 v{V_}, 0x3b000000, v{V_}")
    E(f"    v_fma_f32 v{V_}, -v{M}, v{M}, v{V_}")
    E(f"    v_max_f32 v{V_}, 0, v{V_}")
    E(f"    v_cvt_pk_bf16_f32 v{M}, 0, v{M}")
    E(f"    v_cvt_pk_bf16_f32 v{V_}, 0, v{V_}")
    E(f"    v_add_f32 v{V_}, 0x3727c5ac, v{V_}")
    E(f"    v_cvt_pk_bf16_f32 v{V_}, 0, v{V_}")
    E(f"    v_sqrt_f32 v{V_}, v{V_}")
    E(f"    v_sub_f32 v{PUB}, 0, v{M}")
    E(f"    v_cvt_pk_bf16_f32 v{V_}, 0, v{V_}")
    E(f"    v_rcp_f32 v{PUB+1}, v{V_}")
    while nxt_st < NB:
        for f in dma_ops(nxt_st):
            f()
        nxt_st += 1
    token_issue(vm)
    stamp(3, vm)
    vm.wait(("dma", 0))
    E("    s_barrier")
    stamp(4, vm)
    stampclk(16, vm)

    dq = []

    def ds(tag, text):
        def f():
            E(text)
            dq.append(tag)
        return f

    def ds_wait(tags):
        idx = max([i for i, t in enumerate(dq) if t in tags], default=-1)
        if idx < 0:
            return
        m_ = len(dq) - 1 - idx
        E(f"    s_waitcnt lgkmcnt({min(m_, 15)})")
        if m_ <= 15:
            del dq[:idx + 1]
        else:
            del dq[:len(dq) - 15]

    def fr_ops(k):
        setidx, bo, ks = k % 2, buf(k // 2) * STG, k % 2
        x = XF + 4 * (k % 2)
        ops = [ds(("x", k), f"    ds_read_b128 v[{x}:{x+3}], {la(XA+ks, bo)}")]
        for mt in order(k):
            r = WF + 24 * setidx + 4 * mt
            base = bo + woff(ks, mt)
            ops.append(ds(("w", k, mt), f"    ds_read_b64_tr_b16 v[{r}:{r+1}], {la(WA, base)}"))
            ops.append(ds(("w", k, mt), f"    ds_read_b64_tr_b16 v[{r+2}:{r+3}], {la(WA, base+4*P)}"))
        return ops

    def cs_reads(st):
        bo = buf(st) * STG
        ops = []
        for j in range(NCS):
            r = CT + 4 * j
            ops.append(ds(("c", st, j), f"    ds_read_b64_tr_b16 v[{r}:{r+1}], {la(CA+j, bo)}"))
            ops.append(ds(("c", st, j), f"    ds_read_b64_tr_b16 v[{r+2}:{r+3}], {la(CA+j, bo+4*P)}"))
        return ops

    def cs_mfma(st, j):
        def f():
            ds_wait([("c", st, j)])
            a = CS + 4 * j
            c = "0" if st == 0 else f"v[{a}:{a+3}]"
            E(f"    v_mfma_f32_16x16x32_bf16 v[{a}:{a+3}], v[{SEL}:{SEL+3}], v[{CT+4*j}:{CT+4*j+3}], {c}")
        return f

    def order(k):
        if k == 31:
            return [m_ for t in range(nt) for m_ in (t, nt + t)]
        return list(range(n))

    def publish():
        token_get(vm)
        E(f"    v_mov_b32 v{PUB+2}, s90")
        E(f"    v_mov_b32 v{PUB+3}, s91")
        E("    v_lshrrev_b32 v2, 1, v1")
        E("    s_mov_b32 exec_lo, 1")
        E("    s_mov_b32 exec_hi, 1")
        E(f"    buffer_store_dwordx4 v[{PUB}:{PUB+3}], v2, s[12:15], s35 offen sc0 sc1")
        E("    s_mov_b64 exec, -1")
        vm.issue("pub")

    def gr_load():
        E(f"    buffer_load_dwordx4 v[{GR1}:{GR1+3}], v{GRV}, s[12:15], s46 offen sc0 sc1")
        E(f"    buffer_load_dwordx4 v[{GR2}:{GR2+3}], v{GRV}, s[12:15], s47 offen sc0 sc1")

    def gr_issue():
        gr_load()
        vm.issue("gr")
        vm.issue("gr")

    def gr_check():
        _lbl[0] += 1
        L = _lbl[0]
        vm.wait("gr")
        E(f"    s_mov_b32 s92, {POLL_LIMIT}")
        E(f"gr_l{L}:")
        E(f"    v_cmp_ne_u64 vcc, s[90:91], v[{GR1+2}:{GR1+3}]")
        E(f"    v_cmp_ne_u64 s[44:45], s[90:91], v[{GR2+2}:{GR2+3}]")
        E("    s_nop 0")
        E("    s_or_b64 vcc, vcc, s[44:45]")
        E(f"    s_cbranch_scc0 gr_d{L}")
        gr_load()
        E("    s_waitcnt vmcnt(0)")
        E("    s_sub_u32 s92, s92, 1")
        E("    s_cmp_lg_u32 s92, 0")
        E(f"    s_cbranch_scc1 gr_l{L}")
        E(f"gr_d{L}:")
        stampval(20, "s92", vm)

    WSTEP = int(os.environ.get("WSTEP", "2"))

    def mm(k, mt):
        x = XF + 4 * (k % 2)
        w = WF + 24 * (k % 2) + 4 * mt
        a = ACC + 16 * mt
        c = "0" if k == 0 else f"v[{a}:{a+15}]"
        E(f"    v_mfma_f32_32x32x16_bf16 v[{a}:{a+15}], v[{w}:{w+3}], v[{x}:{x+3}], {c}")

    def mfma_group(k, slots):
        od = order(k)
        for s_, mt in enumerate(od):
            if s_ % WSTEP == 0:
                ds_wait([("x", k)] + [("w", k, m2) for m2 in od[s_:s_ + WSTEP]])
            mm(k, mt)
            for f in slots[s_]:
                f()

    for f in fr_ops(0) + cs_reads(0):
        f()
    pend = []
    wd_next = 0
    for k in range(31):
        st = k // 2
        if k % 2 == 1:
            vm.wait(("dma", st + 1))
            E("    s_waitcnt lgkmcnt(0)")
            del dq[:]
            E("    s_barrier")
            if st % 4 == 3 and st < 15 and DIAG:
                stamp(5 + st // 4, vm)
                stampclk(17 + st // 4, vm)
            if st in (0, 1, 2, 4, 5, 6) and DIAG:
                stamp(22 + st, vm)
            assert not pend
            if st + NB < nst:
                if 'n' not in os.environ.get('XP', ''):
                    pend += dma_ops(st + NB)
            else:
                free = (buf(st) + 1) * STG
                while wd_next < NPRE and (wd_next + 1) * 8192 <= free and not WLATE:
                    pend += wdma_ops(vm, wd_next)
                    wd_next += 1
        slots = [[] for _ in range(n)]
        rd = fr_ops(k + 1)
        nrs = n - 2 if nt == 3 else n - 1
        for s_ in range(nrs):
            cnt = (len(rd) + (nrs - s_) - 1) // (nrs - s_)
            slots[s_] += rd[:cnt]
            rd = rd[cnt:]
        if k % 2 == 1:
            cr = cs_reads(st + 1)
            h_ = len(cr) // 2 if nt == 3 else 0
            slots[n - 2] += cr[:h_]
            slots[n - 1] += cr[h_:]
        else:
            for j in range(NCS):
                slots[(2 * j + 1) if k < 30 else j].append(cs_mfma(st, j))
        cnt = (len(pend) + 1) // 2 if k % 2 == 1 else len(pend)
        ms = list(range(1, n, 2)) if k % 2 == 1 else list(range(0, n, 2))
        for i_ in range(cnt):
            slots[ms[i_ % len(ms)]].append(None)
        for s_ in range(n):
            slots[s_] = [f if f is not None else 0 for f in slots[s_]]
        for s_ in range(n):
            for i_, f in enumerate(slots[s_]):
                if f == 0:
                    slots[s_][i_] = pend.pop(0)
        if k == PUBK:
            slots[n - 1].append(publish)
        if k == GRK:
            slots[n - 1].append(gr_issue)
        if k == (WDK if nt == 3 else WDK2) and WD_AT == "g":
            def wdt():
                E("    s_mul_i32 s38, s33, 344*128")
                E("    v_lshlrev_b32 v2, 7, v0")
                E(f"    buffer_load_dword v{PUB}, v2, s[8:11], s38 offen")
                E("    v_min_u32 v3, 87, v0")
                E("    v_lshlrev_b32 v3, 7, v3")
                E("    s_add_u32 s38, s38, 256*128")
                E(f"    buffer_load_dword v{PUB+1}, v3, s[8:11], s38 offen")
                vm.issue("pf")
                vm.issue("pf")
            slots[n - 1].append(wdt)
        if k == GRC:
            slots[n - 1 if k < 30 else 0].append(gr_check)
        if k == 30:
            def xw():
                E("    v_and_b32 v2, 31, v1")
                E("    v_lshrrev_b32 v3, 5, v1")
                E("    v_lshlrev_b32 v2, 2, v2")
                E("    v_lshl_add_u32 v2, v3, 11, v2")
                for j in range(NCS):
                    offs = [((w + 4 * j) % n) * 256 + ((w + 4 * j) // n) * 128 for w in range(4)]
                    E(f"    s_mov_b32 s38, {offs[0]}")
                    for w in range(1, 4):
                        E(f"    s_cmp_eq_u32 s3, {w}")
                        E(f"    s_cselect_b32 s38, {offs[w]}, s38")
                    E(f"    v_add_u32 v{CA+j}, s38, v2")
            slots[n - 2 if nt == 3 else 1].append(xw)

            def xw2():
                if nt == 2:
                    E("    s_nop 3")
                for j in range(NCS):
                    for c2 in range(2):
                        E(f"    ds_write_b32 v{CA+j}, v{CS+4*j} offset:{XROW*8192 + c2*4096}")
                        dq.append("xw")
            slots[n - 1].append(xw2)
        mfma_group(k, slots)
    assert (wd_next == NPRE or WLATE) and not pend
    E("    s_waitcnt lgkmcnt(0)")
    del dq[:]
    E("    s_barrier")
    E(f"    s_setprio {GPRIO2}")
    E("    v_lshlrev_b32 v2, 2, v1")
    E("    v_add_u32 v2, s37, v2")
    CV = CS
    od = order(31)
    for mt in od:
        E(f"    ds_read_b32 v{CV+mt}, v2 offset:{XROW*8192 + mt*256}")
    BM = 194
    T0 = 190

    def split_ops(pos, mt):
        c = CV + mt
        q = CT + 2 * pos
        return [f"    v_and_b32 v{T0}, s40, v{c}",
                f"    v_sub_f32 v{c}, v{c}, v{T0}",
                f"    v_and_b32 v{T0+1}, s40, v{c}",
                f"    v_sub_f32 v{c}, v{c}, v{T0+1}",
                f"    v_cvt_pk_bf16_f32 v{q}, v{T0}, v{T0+1}",
                f"    v_cvt_pk_bf16_f32 v{q+1}, v{c}, 0"]

    def corr(pos, mt):
        q = CT + 4 * (pos // 2)
        b = BM + 2 if pos % 2 == 0 else BM
        a = ACC + 16 * mt
        E(f"    v_mfma_f32_32x32x16_bf16 v[{a}:{a+15}], v[{q}:{q+3}], v[{b}:{b+3}], v[{a}:{a+15}]")

    def epi_ops(tau):
        G = ACC + 16 * tau
        U = ACC + 16 * (nt + tau)
        PK = 56 + 8 * ((tau + 2) % 3)
        o = []
        for j in range(16):
            o.append(f"    v_mul_f32 v{G+j}, v{G+j}, v{GR1+1}")
        for j in range(16):
            o.append(f"    v_mul_f32 v{U+j}, v{U+j}, v{GR1+1}")
        for j in range(16):
            o.append(f"    v_cvt_pk_bf16_f32 v{G+j}, 0, v{G+j}")
            o.append(f"    v_cvt_pk_bf16_f32 v{U+j}, 0, v{U+j}")
        for j in range(16):
            o.append(f"    v_mul_f32 v{G+j}, v{G+j}, v{U+j}")
        for j in range(8):
            o.append(f"    v_cvt_pk_bf16_f32 v{U+j}, v{G+2*j}, v{G+2*j+1}")
        o.append("    s_nop 1")
        for pair in range(2):
            q0 = U + 4 * pair
            o.append(f"    v_permlane32_swap_b32 v{q0}, v{q0+2}")
            o.append(f"    v_permlane32_swap_b32 v{q0+1}, v{q0+3}")
        o.append(f"    s_add_u32 s38, s42, {tau*2048}")
        for pair in range(2):
            q0 = U + 4 * pair
            o.append(f"    buffer_store_dwordx4 v[{q0}:{q0+3}], v8, s[24:27], s38 offen offset:{pair*1024} sc0 sc1")
        return o

    def emit(lst, cnt):
        for _ in range(min(cnt, len(lst))):
            t = lst.pop(0)
            E(t)
            if "buffer_store" in t:
                vm.issue("hst")

    pre = [f"    v_mov_b32 v{BM+j}, 0" for j in (0, 1, 4, 5)]
    pre += [f"    v_cvt_pk_bf16_f32 v{BM+j}, v{GR1}, v{GR1}" for j in (2, 3)]
    sp = []
    for pos, mt in enumerate(od):
        sp.append(f"    s_waitcnt lgkmcnt({n-1-pos})")
        sp += split_ops(pos, mt)
    mm(31, od[0])
    emit(pre, 6)
    mm(31, od[1])
    emit(sp, 7)
    mm(31, od[2])
    emit(sp, 7)
    mm(31, od[3])
    emit(sp, 7)
    corr(0, od[0])
    emit(sp, 7)
    corr(1, od[1])
    stamp(8, vm)
    if nt == 3:
        emit(sp, 7)
        mm(31, od[4])
        emit(sp, 7)
        mm(31, od[5])
        ep = epi_ops(0)
        emit(ep, 7)
        for pos in range(2, 6):
            corr(pos, od[pos])
            emit(ep, 7)
        emit(ep, 999)
        for tau in (1, 2):
            emit(epi_ops(tau), 999)
    else:
        E("    s_nop 1")
        corr(2, od[2])
        corr(3, od[3])
        E("    s_nop 7")
        for tau in (0, 1):
            emit(epi_ops(tau), 999)
    stamp(9, vm)
    for i in range(0 if WLATE else NPRE, 10):
        for f in wdma_ops(vm, i):
            f()
    E("    v_lshrrev_b32 v3, 5, v1")
    E("    v_and_b32 v5, 15, v1")
    E("    v_lshrrev_b32 v6, 2, v5")
    E("    v_lshl_add_u32 v6, v3, 3, v6")
    E("    v_lshlrev_b32 v11, 7, v6")
    E("    v_bfe_u32 v6, v1, 4, 1")
    E("    v_lshlrev_b32 v6, 5, v6")
    E("    v_and_b32 v7, 3, v5")
    E("    v_lshl_add_u32 v6, v7, 3, v6")
    E("    v_bfe_u32 v7, v1, 3, 1")
    E("    v_lshlrev_b32 v7, 6, v7")
    E("    v_xor_b32 v6, v6, v7")
    E("    v_add_u32 v11, v11, v6")
    E("    v_add_u32 v11, s37, v11")
    E("    v_xor_b32 v12, 64, v11")
    E(f"    v_add_u32 v17, {HI}, v11")
    E(f"    v_add_u32 v18, {HI}, v12")
    if WLATE:
        vm.wait("hst")
        flag_store(vm, "s39")
        stamp(10, vm)
    vm.wait(("w", NPRE - 1))
    for i in range(NPRE):
        wread(WREG[i], i)
    E("    s_branch phase_c")


def token_publish():
    E("    s_or_b32 s34, s2, s3")
    E("    s_cmp_eq_u32 s34, 0")
    E("    s_cbranch_scc0 g_notok")
    E("    s_or_b32 s90, s90, 1")
    E(f"    v_mov_b32 v{TK}, s90")
    E(f"    v_mov_b32 v{TK+1}, s91")
    E("    s_mov_b64 exec, 1")
    E(f"    buffer_store_dwordx2 v[{TK}:{TK+1}], off, s[60:63], 0 sc0 sc1")
    E("    s_mov_b64 exec, -1")
    E("g_notok:")


def gen_gtype():
    vm = VM()
    E(f"    s_setprio {GPRIO}")
    if CFIRST:
        E("    s_sub_u32 s2, s2, 256")
    else:
        token_publish()
    E("    s_lshr_b32 s33, s2, 3")
    E("    s_bfe_u32 s30, s2, 0x20001")
    E("    s_lshl_b32 s30, s30, 2")
    E("    s_lshr_b32 s31, s33, 3")
    E("    s_add_u32 s30, s30, s31")
    E("    s_and_b32 s31, s2, 1")
    E("    s_lshl_b32 s31, s31, 3")
    E("    s_and_b32 s34, s33, 7")
    E("    s_add_u32 s31, s31, s34")
    srd(16, 64, 65, S * D * 2)
    E("    s_lshl_b32 s35, s30, 7")
    E("    s_lshl_b32 s34, s31, 3")
    E("    s_add_u32 s35, s35, s34")
    E("    s_lshl_b32 s34, s3, 1")
    E("    s_add_u32 s35, s35, s34")
    E("    s_lshl_b32 s34, s35, 10")
    E("    v_lshrrev_b32 v12, 5, v1")
    E("    v_and_b32 v13, 31, v1")
    E("    v_lshlrev_b32 v13, 4, v13")
    E("    v_lshl_add_u32 v12, v12, 10, v13")
    E("    buffer_load_dwordx4 v[88:91], v12, s[16:19], s34 offen")
    E("    buffer_load_dwordx4 v[92:95], v12, s[16:19], s34 offen offset:512")
    vm.issue("st")
    vm.issue("st")
    E("    s_lshl_b32 s35, s35, 4")
    E("    s_lshl_b32 s32, s30, 17")
    E("    s_lshl_b32 s34, s3, 15")
    E("    s_add_u32 s32, s32, s34")
    E("    s_lshr_b32 s46, s32, 6")
    E("    v_lshrrev_b32 v12, 2, v1")
    E("    v_lshrrev_b32 v13, 4, v1")
    E("    v_xor_b32 v13, v13, v1")
    E("    v_and_b32 v13, 3, v13")
    E("    v_lshlrev_b32 v13, 4, v13")
    E(f"    v_lshl_add_u32 v{XDV}, v12, 10, v13")
    E(f"    v_add_u32 v{XDV+1}, {16384-1024}, v{XDV}")
    E("    s_and_b32 s29, s33, 7")
    E("    s_lshr_b32 s34, s33, 3")
    E("    s_lshl_b32 s34, s34, 1")
    if ROT == 1:
        E("    s_add_u32 s29, s29, s34")
    E("    s_lshl_b32 s29, s29, 1")
    E("    s_and_b32 s29, s29, 15" if ROT else "    s_mov_b32 s29, 0")
    E("    s_lshl_b32 s34, s29, 6")
    E("    s_add_u32 s32, s32, s34")
    srd_off(24, 88, 89, WS_H, H_BYTES)
    srd_off(12, 88, 89, WS_ST, S * 16)
    E(f"    s_mov_b32 s{S_ONE}, 0x3f803f80")
    E("    v_lshlrev_b32 v8, 4, v1")
    E("    s_lshl_b32 s47, s30, 11")
    E("    s_lshr_b32 s34, s31, 3")
    E("    s_lshl_b32 s34, s34, 10")
    E("    s_add_u32 s47, s47, s34")
    E("    s_and_b32 s34, s3, 1")
    E("    s_lshl_b32 s34, s34, 9")
    E("    s_add_u32 s47, s47, s34")
    srd(8, 82, 83, F * D * 2)
    E("    s_mul_i32 s51, s3, 22")
    E("    s_cmp_eq_u32 s3, 3")
    E("    s_cselect_b32 s51, 65, s51")
    E("    s_lshl_b32 s41, s51, 14")
    E("    s_lshl_b32 s37, s3, 11")
    E("    v_lshrrev_b32 v14, 3, v1")
    E(f"    v_lshlrev_b32 v{DDV}, 10, v14")
    E("    v_and_b32 v14, 7, v1")
    E("    v_bfe_u32 v15, v1, 4, 1")
    E("    v_lshlrev_b32 v15, 2, v15")
    E("    v_xor_b32 v14, v14, v15")
    E(f"    v_lshl_add_u32 v{DDV}, v14, 4, v{DDV}")
    E("    s_and_b32 s34, s31, 7")
    E("    s_lshl_b32 s34, s34, 7")
    E(f"    v_add_u32 v{DDV}, s34, v{DDV}")
    E("    s_lshl_b32 s36, s30, 2")
    E("    s_add_u32 s36, s36, s3")
    E("    s_lshl_b32 s39, s36, 7")
    E("    s_lshl_b32 s38, s31, 3")
    E("    s_add_u32 s39, s39, s38")
    E(f"    s_add_u32 s39, s39, {FH_OFF}")
    E(f"    s_mul_i32 s42, s36, {HB}")
    E("    s_cmp_lt_u32 s31, 11")
    E("    s_cbranch_scc0 g_path2")
    E("    s_mul_i32 s36, s31, 192")
    E("    s_mul_i32 s38, s31, 3*2048")
    E("    s_add_u32 s42, s42, s38")
    gen_gtype_path(3, vm)
    E("g_path2:")
    E("    s_lshl_b32 s36, s31, 7")
    E("    s_add_u32 s36, s36, 704")
    E("    s_lshl_b32 s38, s36, 5")
    E("    s_add_u32 s42, s42, s38")
    gen_gtype_path(2, vm)
    gen_phase_c()


COPY_BYTES = 4240
_order = [(1, 0), (0, 11), (2, 4), (5, 0), (4, 12), (3, 8), (6, 4), (7, 8)]
COPY_BASE = {}
_pos = 0
for _b, _beta in _order:
    while (_pos // 16) % 16 != _beta:
        _pos += 16
    COPY_BASE[_b] = _pos
    _pos += COPY_BYTES
KV_OFF = (_pos + 15) // 16 * 16
KVP = 80
CH_BYTES = (KV_OFF + 65 * KVP + 255) // 256 * 256
LDS_BYTES = 81920
TB_OFF = (KV_OFF + 127) // 128 * 128
assert TB_OFF + 4096 <= KV_OFF + 64 * KVP
assert 2 * CH_BYTES <= LDS_BYTES


def wd_touch(vt):
    srd(52, 82, 83, F * D * 2)
    E("    s_mul_i32 s93, s50, 344*128")
    E(f"    v_lshlrev_b32 v{vt}, 7, v0")
    E(f"    buffer_load_dword v{vt+1}, v{vt}, s[52:55], s93 offen")
    E(f"    v_min_u32 v{vt}, 87, v0")
    E(f"    v_lshlrev_b32 v{vt}, 7, v{vt}")
    E("    s_add_u32 s93, s93, 256*128")
    E(f"    buffer_load_dword v{vt+1}, v{vt}, s[52:55], s93 offen")


def gen_ctype():
    vm = VM()
    E("c_type:")
    E(f"    s_setprio {CPRIO}")
    if CFIRST:
        token_publish()
    if 'g' in os.environ.get('XP', ''):
        E("    s_endpgm")
    if CFIRST:
        pass
    else:
        E("    s_sub_u32 s2, s2, 256")
    srd(16, 66, 67, S * D * 2)
    srd(20, 68, 69, S * D * 2)
    srd(24, 70, 71, D * 4 * 2)
    E("    s_lshr_b32 s32, s2, 3")
    E("    s_and_b32 s33, s2, 7")
    E("    v_and_b32 v10, 31, v0")
    E("    v_lshrrev_b32 v11, 5, v0")
    E("    s_lshl_b32 s34, s32, 6")
    E("    v_lshlrev_b32 v3, 3, v11")
    E("    v_add_u32 v3, s34, v3")
    E("    s_lshl_b32 s35, s33, 5")
    E("    v_add_u32 v6, s35, v10")
    E("    v_lshlrev_b32 v3, 10, v3")
    E("    v_lshl_add_u32 v3, v6, 2, v3")
    E("    v_add_u32 v4, 4096, v3")
    E("    v_subrev_u32 v5, 3072, v3")
    E("    v_lshlrev_b32 v6, 4, v6")
    for j in range(3):
        E(f"    buffer_load_dword v{132+j}, v5, s[16:19], 0 offen offset:{1024*j}")
    for j in range(4):
        E(f"    buffer_load_dword v{135+j}, v3, s[16:19], 0 offen offset:{1024*j}")
    for j in range(4):
        E(f"    buffer_load_dword v{139+j}, v4, s[16:19], 0 offen offset:{1024*j}")
    for j in range(4):
        E(f"    buffer_load_dword v{144+j}, v3, s[20:23], 0 offen offset:{1024*j}")
    for j in range(4):
        E(f"    buffer_load_dword v{148+j}, v4, s[20:23], 0 offen offset:{1024*j}")
    E("    buffer_load_dwordx4 v[128:131], v6, s[24:27], 0 offen")
    for _ in range(20):
        vm.issue("kv")
    E("    s_lshr_b32 s31, s3, 1")
    E("    s_lshl_b32 s30, s33, 6")
    E("    s_lshl_b32 s34, s32, 1")
    E("    s_add_u32 s30, s30, s34")
    E("    s_add_u32 s30, s30, s31")
    E("    s_mov_b32 s50, s32")
    E("    s_mov_b32 s51, s33")
    E("    s_and_b32 s32, s3, 1")
    E("    s_lshl_b32 s33, s30, 12")
    srd_off(44, 72, 73, "s33", 4096)
    E(f"    s_mul_i32 s35, s31, {CH_BYTES}")
    E("    s_lshl_b32 s36, s32, 6")
    E("    v_add_u32 v3, s36, v1")
    E("    v_lshlrev_b32 v4, 5, v3")
    E("    v_subrev_u32 v5, 16, v4")
    def kf_loads():
        srd_off(44, 72, 73, "s33", 4096)
        E("    buffer_load_dwordx4 v[16:19], v5, s[44:47], 0 offen")
        E("    buffer_load_dwordx4 v[20:23], v4, s[44:47], 0 offen")
        E("    buffer_load_dwordx4 v[24:27], v4, s[44:47], 0 offen offset:16")
        for _ in range(3):
            vm.issue("kf")
        srd(44, 74, 75, D * 2)
        E("    s_lshl_b32 s36, s30, 1")
        E("    v_mov_b32 v7, s36")
        E("    buffer_load_ushort v9, v7, s[44:47], 0 offen")
        vm.issue("kf")
    if not KFL:
        kf_loads()
    srd_off(8, 88, 89, WS_KVR, S * D * 2)
    srd_off(12, 88, 89, WS_KVA, S * D * 2)
    E("    s_getreg_b32 s6, hwreg(HW_REG_XCC_ID, 0, 4)")
    E("    v_lshrrev_b32 v12, 4, v10")
    E(f"    v_mul_u32_u24 v12, {CH_BYTES}, v12")
    E("    v_and_b32 v13, 15, v10")
    E("    v_lshl_add_u32 v12, v13, 8, v12")
    E("    v_sub_u32 v13, 7, v11")
    E("    v_and_b32 v14, 7, v10")
    E("    v_xor_b32 v13, v13, v14")
    E("    v_lshl_add_u32 v12, v13, 4, v12")
    E(f"    v_add_u32 v12, {TB_OFF}, v12")
    E("    v_lshrrev_b32 v13, 3, v1")
    E("    v_and_b32 v14, 7, v1")
    E("    v_lshrrev_b32 v15, 4, v1")
    E("    v_xor_b32 v15, v15, v14")
    E("    v_lshlrev_b32 v15, 4, v15")
    E("    v_lshl_add_u32 v15, v13, 7, v15")
    E(f"    s_mul_i32 s36, s31, {CH_BYTES}")
    E("    s_lshl_b32 s37, s32, 11")
    E("    s_add_u32 s36, s36, s37")
    E(f"    s_add_u32 s36, s36, {TB_OFF}")
    E("    v_add_u32 v15, s36, v15")
    E("    v_xor_b32 v28, 64, v15")
    E("    v_lshlrev_b32 v13, 12, v13")
    E("    v_lshl_add_u32 v13, v14, 4, v13")
    E("    s_lshl_b32 s36, s51, 18")
    E("    s_lshl_b32 s37, s3, 16")
    E("    s_add_u32 s36, s36, s37")
    E("    s_lshl_b32 s37, s50, 7")
    E("    s_sub_u32 s37, 3968, s37")
    E("    s_add_u32 s48, s36, s37")
    E("    s_lshl_b32 s36, s51, 10")
    E(f"    s_add_u32 s36, s36, {FK_OFF}")
    E("    s_lshl_b32 s37, s3, 8")
    E("    s_add_u32 s49, s36, s37")
    E("    s_lshl_b32 s37, s50, 3")
    E("    s_add_u32 s49, s49, s37")
    E("    s_lshr_b32 s37, s50, 3")
    E("    s_lshl_b32 s37, s37, 8")
    E("    s_add_u32 s41, s36, s37")
    vm.wait("kv")
    stamp(1, vm)
    token_issue(vm)
    if KFL:
        kf_loads()
    if TOUCH != "none":
        w_touch(vm, 78, 79, "s50", 29)
    if WD_AT == "early":
        wd_touch(244)
        vm.issue("pf")
        vm.issue("pf")
    for c in range(2):
        for d in range(2):
            E(f"    v_lshlrev_b32 v{32+4*c+2*d}, 16, v{128+2*c+d}")
            E(f"    v_and_b32 v{33+4*c+2*d}, s40, v{128+2*c+d}")
    for j in range(11):
        E(f"    v_lshlrev_b32 v{40+j}, 16, v{132+j}")
        E(f"    v_and_b32 v{52+j}, s40, v{132+j}")
    for j in range(8):
        E(f"    v_lshlrev_b32 v{64+j}, 16, v{144+j}")
        E(f"    v_and_b32 v{72+j}, s40, v{144+j}")
    for j in range(8):
        A0, A1, B0, B1, T = 96, 97, 98, 99, 100
        E(f"    v_mul_f32 v{A0}, v{40+j}, v35")
        E(f"    v_mul_f32 v{A1}, v{52+j}, v39")
        E(f"    v_mul_f32 v{B0}, v{41+j}, v34")
        E(f"    v_mul_f32 v{B1}, v{53+j}, v38")
        round_pair(A0, A1, T, 40)
        round_pair(B0, B1, T, 40)
        E(f"    v_add_f32 v{A0}, v{A0}, v{B0}")
        E(f"    v_add_f32 v{A1}, v{A1}, v{B1}")
        E(f"    v_mul_f32 v{B0}, v{42+j}, v33")
        E(f"    v_mul_f32 v{B1}, v{54+j}, v37")
        round_pair(A0, A1, T, 40)
        round_pair(B0, B1, T, 40)
        E(f"    v_add_f32 v{A0}, v{A0}, v{B0}")
        E(f"    v_add_f32 v{A1}, v{A1}, v{B1}")
        E(f"    v_mul_f32 v{B0}, v{43+j}, v32")
        E(f"    v_mul_f32 v{B1}, v{55+j}, v36")
        round_pair(A0, A1, T, 40)
        round_pair(B0, B1, T, 40)
        E(f"    v_add_f32 v{A0}, v{A0}, v{B0}")
        E(f"    v_add_f32 v{A1}, v{A1}, v{B1}")
        round_pair(A0, A1, T, 40)
        E(f"    v_mul_f32 v{80+j}, v{A0}, v{64+j}")
        E(f"    v_mul_f32 v{88+j}, v{A1}, v{72+j}")
    for c in range(2):
        for jj in range(4):
            E(f"    v_cvt_pk_bf16_f32 v{104+4*c+jj}, v{80+8*c+7-2*jj}, v{80+8*c+6-2*jj}")
    E("    ds_write_b128 v12, v[104:107]")
    E("    ds_write_b128 v12, v[108:111] offset:128")
    E("    s_waitcnt lgkmcnt(0)")
    E("    s_barrier")
    E("    ds_read_b128 v[104:107], v15")
    E("    ds_read_b128 v[108:111], v28 offset:1024")
    E("    s_add_u32 s43, s48, 32768")
    E("    s_waitcnt lgkmcnt(1)")
    E("    buffer_store_dwordx4 v[104:107], v13, s[12:15], s48 offen")
    E("    s_waitcnt lgkmcnt(0)")
    E("    buffer_store_dwordx4 v[108:111], v13, s[12:15], s43 offen")
    vm.issue("kst")
    vm.issue("kst")
    stamp(2, vm)
    E("    s_barrier")
    E("    s_add_u32 s34, s33, %d" % WS_KVR)
    srd_off(20, 88, 89, "s34", 4096)
    E("    s_add_u32 s34, s33, %d" % WS_YT)
    srd_off(24, 88, 89, "s34", 4096)
    E("    v_mov_b32 v36, 0")
    E("    v_mov_b32 v37, 0")
    E("    v_mov_b32 v38, 0")
    E("    v_mov_b32 v39, 0")
    E("    v_lshlrev_b32 v7, 4, v1")
    E("    v_add_u32 v7, s35, v7")
    E("    s_mov_b64 exec, 0x7f")
    for b in range(8):
        E(f"    ds_write_b128 v7, v[36:39] offset:{COPY_BASE[b]}")
    E("    s_mov_b64 exec, 0xf")
    E(f"    ds_write_b128 v7, v[36:39] offset:{KV_OFF + 64*KVP}")
    E("    s_mov_b64 exec, -1")
    E("    v_lshlrev_b32 v6, 4, v3")
    E("    v_lshlrev_b32 v7, 5, v3")
    E("    v_add_u32 v7, s35, v7")
    E("    v_lshrrev_b32 v8, 2, v3")
    E(f"    v_mul_u32_u24 v8, {KVP}, v8")
    E("    v_and_b32 v10, 3, v3")
    E("    v_lshl_add_u32 v8, v10, 4, v8")
    E("    v_add_u32 v8, s35, v8")
    E("    v_and_b32 v3, 31, v1")
    E("    v_lshrrev_b32 v4, 5, v1")
    E("    v_add_u32 v5, 1, v3")
    E("    v_and_b32 v14, 7, v5")
    E("    v_lshrrev_b32 v5, 3, v5")
    E("    v_sub_u32 v5, v5, v4")
    E("    v_add_u32 v5, 1, v5")
    E("    v_lshlrev_b32 v5, 4, v5")
    E("    v_mov_b32 v10, 0")
    for b in range(8):
        E(f"    v_cmp_eq_u32 vcc, {b}, v14")
        E(f"    v_mov_b32 v11, {COPY_BASE[b]}")
        E("    s_nop 0")
        E("    v_cndmask_b32 v10, v10, v11, vcc")
    E("    v_add_u32 v10, v10, v5")
    E("    v_add_u32 v10, s35, v10")
    E("    v_sub_u32 v5, 63, v3")
    E(f"    v_mul_u32_u24 v5, {KVP}, v5")
    E("    v_lshlrev_b32 v14, 4, v4")
    E("    v_sub_u32 v5, v5, v14")
    E(f"    s_add_u32 s36, s35, {KV_OFF + 16}")
    E("    v_add_u32 v11, s36, v5")
    E(f"    v_subrev_u32 v15, {32*KVP}, v11")
    E(f"    s_add_u32 s36, s36, {KVP*64}")
    E("    v_sub_u32 v12, s36, v14")
    token_get(vm)
    stampval(20, "s92", vm)
    E("    s_add_u32 s6, s6, 1")
    E("    s_lshl_b32 s6, s6, 24")
    E("    s_mov_b32 s4, s90")
    E("    s_xor_b32 s5, s91, s6")
    E("    v_mov_b32 v244, s4")
    E("    v_mov_b32 v245, s5")
    E(f"    s_sub_u32 s93, s49, {FK_OFF}")
    E(f"    s_lshl_b32 s93, s93, {FSH}")
    vm.wait("kst")
    E("    s_mov_b64 exec, 1")
    E("    buffer_store_dwordx2 v[244:245], off, s[56:59], s93")
    E("    s_mov_b64 exec, -1")
    vm.issue("flag")
    stamp(3, vm)
    for u in range(2):
        e = 16 + 4 * u
        for b in range(8):
            off = COPY_BASE[b] + 112 + 16 * u
            if b % 2 == 0 and (b // 2) % 2 == 0:
                r = e + b // 2
                E(f"    ds_write_b128 v7, v[{r}:{r+3}] offset:{off}")
            else:
                t = 40 + 4 * ((u * 8 + b) % 4)
                for d in range(4):
                    if b % 2 == 0:
                        E(f"    v_mov_b32 v{t+d}, v{e + b//2 + d}")
                    else:
                        be = (b - 1) // 2
                        E(f"    v_alignbyte_b32 v{t+d}, v{e+be+d+1}, v{e+be+d}, 2")
                E(f"    ds_write_b128 v7, v[{t}:{t+3}] offset:{off}")
    E(f"    ds_write_b128 v7, v[24:27] offset:{COPY_BASE[0] + 112 + 32}")
    E(f"    s_setprio {CPRIO2}")
    stamp(9, vm)

    def slow_stores():
        E("    buffer_store_dwordx4 v[104:107], v13, s[8:11], s48 offen sc0 sc1")
        E("    buffer_store_dwordx4 v[108:111], v13, s[8:11], s43 offen sc0 sc1")

    NF = int(os.environ.get("NF", "12"))
    E(f"    s_mov_b32 s92, {POLL_LIMIT}")
    E("    s_mov_b32 s28, 0")
    E(f"    s_sub_u32 s46, s41, {FK_OFF}")
    E(f"    s_lshl_b32 s46, s46, {FSH}")
    E(f"    s_lshl_b32 s47, s41, {FSH}")
    E("    s_mov_b32 exec_hi, 0")
    E("pk_l:")
    E(f"    buffer_load_dwordx2 v[{PA}:{PA+1}], v{VL8}, s[56:59], s46 offen sc0 sc1")
    E("    s_waitcnt vmcnt(0)")
    E(f"    v_cmp_ne_u64 vcc, s[4:5], v[{PA}:{PA+1}]")
    E("    s_cmp_eq_u64 vcc, 0")
    E("    s_cbranch_scc1 pk_fast")
    E(f"    s_cmp_gt_u32 s92, {POLL_LIMIT - NF}")
    E("    s_cbranch_scc1 pk_next")
    E("    s_cmp_lg_u32 s28, 0")
    E("    s_cbranch_scc1 pk_sb")
    E("    s_mov_b64 exec, -1")
    slow_stores()
    E("    s_waitcnt vmcnt(0)")
    flag_store(vm, "s49")
    E("    s_mov_b32 s28, 1")
    E("    s_mov_b32 exec_hi, 0")
    E("pk_sb:")
    E(f"    buffer_load_dwordx2 v[{PA}:{PA+1}], v{VL8}, s[56:59], s47 offen sc0 sc1")
    E("    s_waitcnt vmcnt(0)")
    E(f"    v_cmp_ne_u64 vcc, s[90:91], v[{PA}:{PA+1}]")
    E("    s_cmp_eq_u64 vcc, 0")
    E("    s_cbranch_scc1 pk_join")
    E("pk_next:")
    E(f"    s_sleep {int(os.environ.get('PSK', '2'))}")
    E("    s_sub_u32 s92, s92, 1")
    E("    s_cmp_lg_u32 s92, 0")
    E("    s_cbranch_scc1 pk_l")
    E("    s_branch pk_join")
    E("pk_fast:")
    E(f"    s_add_u32 s20, s20, {WS_KVA - WS_KVR}")
    E("    s_addc_u32 s21, s21, 0")
    E("    s_and_b32 s21, s21, 0xffff")
    E("pk_join:")
    E("    s_mov_b64 exec, -1")
    stampval(21, "s92", vm)
    stamp(4, vm)
    E("    buffer_load_dwordx4 v[28:31], v6, s[20:23], 0 offen")
    E("    buffer_load_dwordx4 v[32:35], v6, s[20:23], 0 offen offset:2048")
    E("    v_mov_b32 v246, v13")
    E("    s_waitcnt vmcnt(1)")
    E(f"    ds_write_b128 v8, v[28:31] offset:{KV_OFF}")
    E("    s_waitcnt vmcnt(0)")
    E(f"    ds_write_b128 v8, v[32:35] offset:{KV_OFF + 32*KVP}")
    stamp(10)
    vm.q = []
    E("    s_waitcnt lgkmcnt(0)")
    E("    s_barrier")
    stamp(5)
    FR = 64
    ACC = 192

    def fr(setidx, slot):
        return FR + 64 * setidx + 4 * slot

    def op_A(setidx, slot, t):
        r = fr(setidx, slot)
        return lambda: E(f"    ds_read_b128 v[{r}:{r+3}], v10 offset:{32*(t+3)}")

    def ops_B(setidx, slot, d, c):
        def f():
            E(f"    v_add_u32 v13, {KVP*d}, v{11 if c == 0 else 15}")
            E("    v_min_u32 v13, v13, v12")
            for q in range(2):
                r = fr(setidx, slot + q)
                E(f"    ds_read_b128 v[{r}:{r+3}], v13 offset:{32*(1-q)}")
        return f

    def loads(it, setidx):
        kind, d0 = it
        ops = []
        if kind == "X":
            for e_ in range(2):
                for q in range(2):
                    ops.append(op_A(setidx, 2 * e_ + q, 2 * (d0 + e_) - q))
                for c in range(2):
                    ops.append(ops_B(setidx, 4 + 4 * e_ + 2 * c, d0 + e_, c))
        else:
            for e_ in range(4):
                for q in range(2):
                    ops.append(op_A(setidx, 2 * e_ + q, 2 * (d0 + e_) - q))
                ops.append(ops_B(setidx, 8 + 2 * e_, d0 + e_, 1))
        return ops

    def mfmas(it, setidx):
        kind, d0 = it
        lst = []
        if kind == "X":
            for e_ in range(2):
                for q in range(2):
                    for c in range(2):
                        lst.append((c, fr(setidx, 2 * e_ + q), fr(setidx, 4 + 4 * e_ + 2 * c + q)))
        else:
            for e_ in range(4):
                for q in range(2):
                    lst.append((1 + q, fr(setidx, 2 * e_ + q), fr(setidx, 8 + 2 * e_ + q)))
        return lst

    def conv_loop(its, pf_at):
        started = set()
        for f in loads(its[0], 0):
            f()
        for n, it in enumerate(its):
            E("    s_waitcnt lgkmcnt(0)")
            nxt = loads(its[n + 1], (n + 1) % 2) if n + 1 < len(its) else []
            per = (len(nxt) + 4) // 5
            ms = mfmas(it, n % 2)
            for k, (acc, a, b) in enumerate(ms):
                A = ACC + 16 * acc
                c = f"v[{A}:{A+15}]" if acc in started else "0"
                started.add(acc)
                E(f"    v_mfma_f32_32x32x16_bf16 v[{A}:{A+15}], v[{a}:{a+3}], v[{b}:{b+3}], {c}")
                for _ in range(per if k + 1 < len(ms) else len(nxt)):
                    if nxt:
                        nxt.pop(0)()
            if n == pf_at and WD_AT == "conv":
                wd_touch(60)

    E("    s_cmp_eq_u32 s32, 0")
    E("    s_cbranch_scc0 conv_l1")
    conv_loop([("X", d) for d in range(0, 24, 2)], 0)
    E("    s_branch conv_le")
    E("conv_l1:")
    conv_loop([("X", d) for d in range(24, 32, 2)] + [("Y", d) for d in range(32, 64, 4)], 0)
    E("    s_nop 15")
    E("    s_nop 3")
    for j in range(16):
        E(f"    v_add_f32 v{ACC+16+j}, v{ACC+16+j}, v{ACC+32+j}")
    E("conv_le:")
    stamp(6)
    E("    s_barrier")
    E("    v_lshlrev_b32 v13, 4, v1")
    E("    v_add_u32 v13, s35, v13")
    E("    s_lshl_b32 s36, s32, 12")
    E("    v_add_u32 v14, s36, v13")
    E("    s_xor_b32 s36, s36, 4096")
    E("    v_add_u32 v13, s36, v13")
    E("    s_nop 7")
    E("    s_cmp_eq_u32 s32, 0")
    E("    s_cbranch_scc1 conv_hw0")
    for jq in range(4):
        E(f"    ds_write_b128 v13, v[{ACC+4*jq}:{ACC+4*jq+3}] offset:{1024*jq}")
    for j in range(16):
        E(f"    v_mov_b32 v{64+j}, v{ACC+16+j}")
    E("    s_branch conv_x")
    E("conv_hw0:")
    for jq in range(4):
        E(f"    ds_write_b128 v13, v[{ACC+16+4*jq}:{ACC+16+4*jq+3}] offset:{1024*jq}")
    for j in range(16):
        E(f"    v_mov_b32 v{64+j}, v{ACC+j}")
    E("conv_x:")
    E("    s_waitcnt lgkmcnt(0)")
    E("    s_barrier")
    for jq in range(4):
        E(f"    ds_read_b128 v[{80+4*jq}:{80+4*jq+3}], v14 offset:{1024*jq}")
    E("    v_sub_u32 v5, 63, v3")
    E(f"    v_mul_u32_u24 v5, {KVP}, v5")
    E("    v_lshlrev_b32 v6, 3, v4")
    E("    v_sub_u32 v5, v5, v6")
    E(f"    s_mul_i32 s36, s32, {32*KVP}")
    E(f"    s_sub_u32 s36, {KV_OFF + 8}, s36")
    E("    s_add_u32 s36, s36, s35")
    E("    v_add_u32 v5, s36, v5")
    for jq in range(4):
        E(f"    ds_read_b64 v[{96+2*jq}:{96+2*jq+1}], v5 offset:{16*(3-jq)}")
    E("    v_lshlrev_b32 v6, 6, v3")
    E("    v_lshl_add_u32 v6, v4, 3, v6")
    E("    s_mul_i32 s36, s3, 20480")
    E("    v_add_u32 v6, s36, v6")
    E("    v_lshlrev_b32 v7, 4, v1")
    E("    v_add_u32 v8, s36, v7")
    E("    s_lshl_b32 s37, s32, 11")
    E("    v_lshlrev_b32 v9, 16, v9")
    E("    s_waitcnt lgkmcnt(0)")
    E("    s_barrier")
    for j in range(16):
        E(f"    v_add_f32 v{64+j}, v{64+j}, v{80+j}")
    vm.q = ["pf", "pf"]
    for jq in range(4):
        k0, k1, k2, k3 = 104, 105, 106, 107
        E(f"    v_and_b32 v{k0}, s40, v{97+2*jq}")
        E(f"    v_lshlrev_b32 v{k1}, 16, v{97+2*jq}")
        E(f"    v_and_b32 v{k2}, s40, v{96+2*jq}")
        E(f"    v_lshlrev_b32 v{k3}, 16, v{96+2*jq}")
        for kk in (k0, k1, k2, k3):
            E(f"    v_mul_f32 v{kk}, v{kk}, v9")
        round_pair(k0, k1, 108, 40)
        round_pair(k2, k3, 108, 40)
        y = 64 + 4 * jq
        round_pair(y, y + 1, 108, 40)
        round_pair(y + 2, y + 3, 108, 40)
        for e_, kk in enumerate((k0, k1, k2, k3)):
            E(f"    v_add_f32 v{y+e_}, v{y+e_}, v{kk}")
        E(f"    v_cvt_pk_bf16_f32 v{110+2*jq}, v{y}, v{y+1}")
        E(f"    v_cvt_pk_bf16_f32 v{111+2*jq}, v{y+2}, v{y+3}")
        E(f"    ds_write_b64 v6, v[{110+2*jq}:{111+2*jq}] offset:{16*jq}")
    E("    s_waitcnt lgkmcnt(0)")
    E("    ds_read_b128 v[104:107], v8")
    E("    ds_read_b128 v[108:111], v8 offset:1024")
    E("    s_waitcnt lgkmcnt(1)")
    E("    buffer_store_dwordx4 v[104:107], v7, s[24:27], s37 offen sc0 sc1")
    E("    s_waitcnt lgkmcnt(0)")
    E("    buffer_store_dwordx4 v[108:111], v7, s[24:27], s37 offen offset:1024 sc0 sc1")
    vm.issue("yst")
    vm.issue("yst")
    stamp(7, vm)
    E("    s_lshl_b32 s36, s32, 12")
    E("    s_lshl_b32 s37, s30, 3")
    E("    s_add_u32 s47, s36, s37")
    E(f"    s_add_u32 s47, s47, {FY_OFF}")
    E("    s_waitcnt vmcnt(0)")
    flag_store(vm, "s47")
    stamp(8)
    E("    s_cmp_lg_u32 s28, 0")
    E("    s_cbranch_scc1 k_done")
    E("    v_mov_b32 v13, v246")
    E("    buffer_load_dwordx4 v[104:107], v13, s[12:15], s48 offen sc0 sc1")
    E("    buffer_load_dwordx4 v[108:111], v13, s[12:15], s43 offen sc0 sc1")
    E("    s_waitcnt vmcnt(0)")
    slow_stores()
    E("    s_waitcnt vmcnt(0)")
    flag_store(vm, "s49")
    E("    s_endpgm")


def gen_phase_c():
    vm = VM()
    vm.q = ["hst"] + (["stamp"] if DIAG else []) + [("w", i) for i in range(NPRE, 10) for _ in range(2)]
    if WLATE:
        vm.q = [("w", i) for i in range(NPRE, 10) for _ in range(2)] + ["flag"] + (["stamp"] if DIAG else [])
    WT = 48
    XT = 64
    NT = 72
    ACC = 88
    HB0 = [152 + 8 * j for j in range(8)] + [80]
    NH = int(os.environ.get("NH", "9"))
    NK = 22
    YSLOT = 0
    RSL = 2
    global VL8
    VL8_saved = VL8
    VL8 = 15
    E("phase_c:")
    E(f"    v_lshlrev_b32 v15, {3+FSH}, v1")
    E("    s_lshl_b32 s30, s30, 1")
    E("    s_lshr_b32 s35, s31, 3")
    E("    s_add_u32 s30, s30, s35")
    E("    s_and_b32 s31, s31, 7")
    E("    s_and_b32 s32, s3, 1")
    E("    s_lshr_b32 s33, s3, 1")
    E("    v_and_b32 v9, 31, v1")
    E("    v_lshlrev_b32 v13, 10, v9")
    E("    v_lshl_add_u32 v13, v3, 3, v13")
    E("    s_lshl_b32 s35, s30, 1")
    E("    s_add_u32 s35, s35, s32")
    E("    s_lshl_b32 s36, s35, 15")
    E("    s_lshl_b32 s38, s31, 7")
    E("    s_add_u32 s36, s36, s38")
    E("    s_lshl_b32 s38, s33, 6")
    E("    s_add_u32 s36, s36, s38")
    E("    v_add_u32 v13, s36, v13")
    for q in range(4):
        E(f"    buffer_load_dwordx2 v[{XT+2*q}:{XT+2*q+1}], v13, s[16:19], 0 offen offset:{16*q}")
        vm.issue("x")
    srd_off(20, 88, 89, WS_H, H_BYTES)
    srd_off(44, 88, 89, WS_YT, S * D * 2)
    srd(52, 84, 85, S * D * 2)
    E("    s_lshr_b32 s49, s30, 4")
    E("    s_lshl_b32 s49, s49, 12")
    E("    s_lshl_b32 s38, s31, 9")
    E("    s_add_u32 s49, s49, s38")
    E("    s_lshl_b32 s38, s33, 8")
    E("    s_add_u32 s49, s49, s38")
    E(f"    s_add_u32 s49, s49, {FY_OFF}")
    E("    v_lshrrev_b32 v0, 2, v1")
    E("    v_lshlrev_b32 v0, 12, v0")
    E("    v_and_b32 v7, 3, v1")
    E("    v_lshl_add_u32 v0, v7, 4, v0")
    E("    s_lshl_b32 s38, s31, 1")
    E("    s_add_u32 s38, s38, s33")
    E("    s_lshl_b32 s38, s38, 17")
    E("    s_lshl_b32 s48, s35, 6")
    E("    s_add_u32 s48, s48, s38")
    E("    v_lshrrev_b32 v7, 2, v5")
    E("    v_lshl_add_u32 v7, v3, 2, v7")
    E("    v_lshlrev_b32 v14, 6, v7")
    E("    v_bfe_u32 v7, v1, 4, 1")
    E("    v_lshl_add_u32 v14, v7, 5, v14")
    E("    v_and_b32 v7, 3, v5")
    E("    v_lshl_add_u32 v14, v7, 3, v14")
    E("    v_add_u32 v14, s37, v14")
    E(f"    s_mul_i32 s42, s30, {2*HB}")
    E("    s_lshl_b32 s38, s51, 10")
    E("    s_add_u32 s42, s42, s38")
    E(f"    s_add_u32 s43, s42, {HB}")
    E("    s_lshl_b32 s36, s30, 8")
    E(f"    s_add_u32 s36, s36, {FH_OFF}")
    masks = []
    for lo, hi in ((0, 3), (3, 7), (7, 10), (10, 15)):
        m16 = ((1 << (hi + 1)) - 1) & ~((1 << lo) - 1)
        masks.append(m16 | (m16 << 16))
    E(f"    s_mov_b32 s50, {masks[0]:#x}")
    for w in range(1, 4):
        E(f"    s_cmp_eq_u32 s3, {w}")
        E(f"    s_cselect_b32 s50, {masks[w]:#x}, s50")
    E("    s_mov_b32 s51, 0")
    E("    s_mul_i32 s38, s31, 44")
    E("    v_add_u32 v6, s38, v1")
    E("    v_cmp_le_u32 vcc, 176, v6")
    E("    v_subrev_u32 v7, 176, v6")
    E("    v_cndmask_b32 v6, v6, v7, vcc")
    E("    s_cmp_lt_u32 s3, 2")
    E("    s_cselect_b32 s38, 8, 0")
    E("    s_add_u32 s38, s38, 167")
    E("    v_min_u32 v6, s38, v6")
    E("    v_lshlrev_b32 v6, 7, v6")
    E(f"    v_mov_b32 v7, {HB}")
    E("    v_cndmask_b32 v7, 0, v7, vcc")
    E("    v_add_u32 v6, v6, v7")
    if not WLATE:
        vm.wait("hst")
        flag_store(vm, "s39")
        stamp(10, vm)
    E("    s_waitcnt lgkmcnt(0)")
    for i in range(10, 10 + NPRE):
        for f in wdma_ops(vm, i):
            f()
    vm.wait("x")
    T = ACC
    for d in range(8):
        E(f"    v_lshlrev_b32 v{T+2*d}, 16, v{XT+d}")
        E(f"    v_and_b32 v{T+2*d+1}, s40, v{XT+d}")
    for j in range(16):
        E(f"    v_add_f32 v{T+j}, v{T+j}, v{GR2}")
    for j in range(16):
        E(f"    v_cvt_pk_bf16_f32 v{T+j}, 0, v{T+j}")
    for j in range(16):
        E(f"    v_mul_f32 v{T+j}, v{T+j}, v{GR2+1}")
    for d in range(8):
        E(f"    v_cvt_pk_bf16_f32 v{NT+d}, v{T+2*d}, v{T+2*d+1}")
    stamp(11, vm)
    poll(vm, "s36", "s[50:51]")
    stampval(21, "s92", vm)
    stamp(12, vm)

    hreg = {}

    def hload(i, r):
        hreg[i] = r
        if i % 4 == 0 and i:
            E("    s_add_u32 s42, s42, 4096")
            E("    s_add_u32 s43, s43, 4096")
        off = (i % 4) * 1024
        if i == NK - 1:
            assert off == 1024
            E("    s_cmp_lt_u32 s3, 2")
            E("    s_cselect_b32 s38, 1024, 0")
            E("    s_add_u32 s42, s42, s38")
            E("    s_add_u32 s43, s43, s38")
            off = 0
        for e_ in range(2):
            E(f"    buffer_load_dwordx4 v[{r+4*e_}:{r+4*e_+3}], v8, s[20:23], s{42+e_} offen offset:{off}")
            vm.issue(("h", i))

    if int(os.environ.get("HT", "1")):
        E("    s_mov_b32 exec_hi, 0xfff")
        E("    buffer_load_dword v7, v6, s[20:23], s42 offen")
        E("    s_mov_b64 exec, -1")
        vm.issue("pf")
    for i in range(NH):
        hload(i, HB0[i])
    hn = NH

    def wsrc(i):
        return WREG[i] if i < NPRE else WT + 8 * (i % 2)

    def y_dma():
        for j in range(2):
            E(f"    s_add_u32 s38, s48, {16*4096*j}")
            E(f"    s_add_u32 m0, s37, {YSLOT*8192 + 1024*j}")
            E("    s_nop 0")
            E("    buffer_load_dwordx4 v0, s[44:47], s38 offen lds")

    FYC = int(os.environ.get("FYC", "14"))
    for i in range(NK):
        if i == NK - 1:
            E("    s_cmp_ge_u32 s3, 2")
            E("    s_cbranch_scc1 pc_skip")
        vm.wait(("h", i))
        if i in (0, 4, 8):
            stamp({0: 2, 4: 29, 8: 30}[i], vm)
        if i >= NPRE:
            E("    s_waitcnt lgkmcnt(0)")
        if NPRE <= i + 1 < NK:
            vm.wait(("w", i + 1))
            wread(WT + 8 * ((i + 1) % 2), wslot(i + 1))
        h = hreg[i]
        w = wsrc(i)
        for wd in range(2):
            for wm in range(2):
                a = ACC + 16 * (2 * wd + wm)
                c = "0" if i == 0 else f"v[{a}:{a+15}]"
                E(f"    v_mfma_f32_32x32x16_bf16 v[{a}:{a+15}], v[{w+4*wd}:{w+4*wd+3}], v[{h+4*wm}:{h+4*wm+3}], {c}")
        for r in [h] + ([w] if i < NPRE else []):
            if hn < NK:
                hload(hn, r)
                hn += 1
        if NPRE <= i < 10:
            for f in wdma_ops(vm, i + 10):
                f()
        if i in (11, 12):
            for f in wdma_ops(vm, i + 9):
                f()
        if i == FYI:
            E(f"    s_lshl_b32 s93, s49, {FSH}")
            E("    s_mov_b32 exec_hi, 0")
            E(f"    buffer_load_dwordx2 v[{PA}:{PA+1}], v{VL8}, s[56:59], s93 offen sc0 sc1")
            E("    s_mov_b64 exec, -1")
            vm.issue("fy")
        if i == FYC:
            vm.wait("fy")
            E("    s_mov_b32 exec_hi, 0")
            E(f"    v_cmp_ne_u64 vcc, s[90:91], v[{PA}:{PA+1}]")
            E("    s_mov_b64 exec, -1")
            E("    s_cmp_eq_u64 vcc, 0")
            E("    s_cselect_b32 s28, 1, 0")
            E("    s_cbranch_scc0 fy_no")
            y_dma()
            E("fy_no:")
            stamp(14, vm)
    E("pc_skip:")
    stamp(13)
    E("    s_waitcnt vmcnt(0) lgkmcnt(0)")
    E("    v_add_u32 v6, s37, v8")
    E(f"    v_add_u32 v6, {RSL*8192}, v6")
    E("    s_lshl_b32 s36, s3, 14")
    E(f"    s_add_u32 s36, s36, {RSL*8192}")
    E("    v_add_u32 v7, s36, v8")
    YR = 32
    PS = 152
    RS = 216
    TT = 232

    def y_read():
        for q in range(4):
            E(f"    ds_read_b64_tr_b16 v[{YR+2*q}:{YR+2*q+1}], v14 offset:{YSLOT*8192 + q*512}")

    def acc_out():
        for q in range(4):
            for jq in range(4):
                a = ACC + 16 * q + 4 * jq
                E(f"    ds_write_b128 v6, v[{a}:{a+3}] offset:{(2*q + jq//2)*8192 + (jq%2)*1024}")
        E("    s_waitcnt lgkmcnt(0)")
        E("    s_barrier")
        for w in range(4):
            for jq in range(4):
                r = PS + 16 * w + 4 * jq
                E(f"    ds_read_b128 v[{r}:{r+3}], v7 offset:{(jq//2)*8192 + w*2048 + (jq%2)*1024}")

    def a_term():
        for q in range(4):
            t = TT
            xs = [RS + 4 * q + e_ for e_ in range(4)]
            ns = [t + e_ for e_ in range(4)]
            ys = [t + 4 + e_ for e_ in range(4)]
            for (dst, src) in ((xs, XT + 2 * q), (ns, NT + 2 * q), (ys, YR + 2 * q)):
                E(f"    v_lshlrev_b32 v{dst[0]}, 16, v{src}")
                E(f"    v_and_b32 v{dst[1]}, s40, v{src}")
                E(f"    v_lshlrev_b32 v{dst[2]}, 16, v{src+1}")
                E(f"    v_and_b32 v{dst[3]}, s40, v{src+1}")
            for e_ in (0, 2):
                E(f"    v_pk_mul_f32 v[{ns[e_]}:{ns[e_]+1}], v[{ns[e_]}:{ns[e_]+1}], v[{ys[e_]}:{ys[e_]+1}]")
            for e_ in range(4):
                E(f"    v_cvt_pk_bf16_f32 v{ns[e_]}, 0, v{ns[e_]}")
            for e_ in (0, 2):
                E(f"    v_pk_add_f32 v[{xs[e_]}:{xs[e_]+1}], v[{xs[e_]}:{xs[e_]+1}], v[{ns[e_]}:{ns[e_]+1}]")
            for e_ in range(4):
                E(f"    v_cvt_pk_bf16_f32 v{xs[e_]}, 0, v{xs[e_]}")

    def b_sum():
        E("    s_waitcnt lgkmcnt(8)")
        for j in range(0, 16, 2):
            E(f"    v_pk_add_f32 v[{PS+j}:{PS+j+1}], v[{PS+j}:{PS+j+1}], v[{PS+16+j}:{PS+16+j+1}]")
        E("    s_waitcnt lgkmcnt(0)")
        for j in range(0, 16, 2):
            E(f"    v_pk_add_f32 v[{PS+32+j}:{PS+32+j+1}], v[{PS+32+j}:{PS+32+j+1}], v[{PS+48+j}:{PS+48+j+1}]")
        for j in range(0, 16, 2):
            E(f"    v_pk_add_f32 v[{PS+j}:{PS+j+1}], v[{PS+j}:{PS+j+1}], v[{PS+32+j}:{PS+32+j+1}]")
        for j in range(16):
            E(f"    v_cvt_pk_bf16_f32 v{PS+j}, 0, v{PS+j}")

    E("    s_cmp_eq_u32 s28, 0")
    E("    s_cbranch_scc1 fin_slow")
    y_read()
    E("    s_nop 7")
    acc_out()
    a_term()
    b_sum()
    E("    s_branch fin_out")
    E("fin_slow:")
    E("    s_nop 7")
    acc_out()
    b_sum()
    if 'g' not in os.environ.get('XP', ''):
        poll(vm, "s49", "0xffffffff")
    stamp(15)
    y_dma()
    E("    s_waitcnt vmcnt(0)")
    y_read()
    E("    s_waitcnt lgkmcnt(0)")
    a_term()
    E("fin_out:")
    for jq in range(4):
        a = PS + 4 * jq
        xs = [RS + 4 * jq + e_ for e_ in range(4)]
        for e_ in (0, 2):
            E(f"    v_pk_add_f32 v[{xs[e_]}:{xs[e_]+1}], v[{xs[e_]}:{xs[e_]+1}], v[{a+e_}:{a+e_+1}]")
        o = TT + 2 * jq
        E(f"    v_cvt_pk_bf16_f32 v{o}, v{xs[0]}, v{xs[1]}")
        E(f"    v_cvt_pk_bf16_f32 v{o+1}, v{xs[2]}, v{xs[3]}")
        E(f"    buffer_store_dwordx2 v[{o}:{o+1}], v13, s[52:55], 0 offen offset:{16*jq}")
    if DIAG:
        E("    s_waitcnt vmcnt(0)")
    stamp(31)
    E("    s_endpgm")
    VL8 = VL8_saved


def gen_kernel():
    E(f".globl {KNAME}")
    E(".p2align 8")
    E(f".type {KNAME},@function")
    E(f"{KNAME}:")
    E("    s_cmp_ge_u32 s2, 512")
    E("    s_cbranch_scc1 k_done")
    E("    s_load_dwordx16 s[64:79], s[0:1], 0")
    E("    s_load_dwordx8 s[80:87], s[0:1], 64")
    E("    s_load_dwordx2 s[88:89], s[0:1], 96")
    E("    s_memrealtime s[90:91]")
    E("    s_mov_b32 s40, 0xffff0000")
    E("    v_and_b32 v1, 63, v0")
    E("    v_lshrrev_b32 v2, 6, v0")
    E(f"    v_lshlrev_b32 v{VL8}, {3+FSH}, v1")
    E("    v_readfirstlane_b32 s3, v2")
    E("    s_waitcnt lgkmcnt(0)")
    stamp_init()
    stamp(0)
    srd_off(56, 88, 89, WS_FLAG, FLAG_BYTES)
    srd(60, 86, 87, 256)
    E("    s_cmp_lt_u32 s2, 256" if CFIRST else "    s_cmp_ge_u32 s2, 256")
    E("    s_cbranch_scc1 c_type")
    gen_gtype()
    gen_ctype()
    E("k_done:")
    E("    s_endpgm")


def main():
    hdr = open("parallel_sum__ssm_conv_h3__glu_gated_bilinear__prompt.s.ref").read().splitlines()
    for l in hdr:
        if l.startswith("; Override") or l.startswith("; grid=") or l.startswith("; @launch"):
            continue
        if not l.startswith(";"):
            break
        E(l)
    E(f"; @launch grid=(512,1,1) block=(256,1,1) lds={LDS_BYTES}")
    E('.amdgcn_target "amdgcn-amd-amdhsa--gfx950"')
    E(".text")
    gen_kernel()
    E('.section .rodata,"a"')
    E(".p2align 6")
    E(f".amdhsa_kernel {KNAME}")
    E("  .amdhsa_next_free_vgpr 256")
    E("  .amdhsa_next_free_sgpr 102")
    E("  .amdhsa_accum_offset 256")
    E("  .amdhsa_group_segment_fixed_size 0")
    E("  .amdhsa_kernarg_size 104")
    E("  .amdhsa_user_sgpr_count 2")
    E("  .amdhsa_user_sgpr_kernarg_segment_ptr 1")
    E("  .amdhsa_system_sgpr_workgroup_id_x 1")
    E(".end_amdhsa_kernel")
    path = sys.argv[1] if len(sys.argv) > 1 else "fused.s"
    open(path, "w").write("\n".join(out) + "\n")
    print("wrote", path, len(out), "lines")


main()
```

```python
import sys, os

S, D, F = 2048, 512, 1376
WS_XN = 0x000000
WS_KVR = 0x200000
WS_H = 0x400000
WS_YT = 0xA00000
WS_FLAG = 0xC00000
WS_KVA = 0xE00000
FX_OFF = 0x0000
FK_OFF = 0x2000
FH_OFF = 0x4000
FY_OFF = 0x6000
FSH = int(os.environ.get("FSH", "4"))
FG_OFF = 0x8000
FLAG_BYTES = 0x9000 << FSH
HS = int(os.environ.get("HS", "10"))
HB = 86 * 1024
H_BYTES = 64 * HB
KNAME = "parallel_sum__ssm_conv_h3__glu_gated_bilinear__prompt_kernel"
POLL_LIMIT = 200000

out = []


def E(s=""):
    out.append(s)


class VM:
    def __init__(self):
        self.q = []

    def issue(self, tag):
        self.q.append(tag)

    def wait(self, tag):
        idx = -1
        for i, t in enumerate(self.q):
            if t == tag:
                idx = i
        if idx < 0:
            return
        n = len(self.q) - 1 - idx
        assert n <= 63, n
        E(f"    s_waitcnt vmcnt({n})")
        self.q = self.q[idx + 1:]

    def wait_all(self):
        E("    s_waitcnt vmcnt(0)")
        self.q = []


DIAG = len(sys.argv) > 2 and sys.argv[2] == "diag"
STAMP_WS = 0x2000000


def stamp_init():
    if not DIAG:
        return
    E(f"    s_add_u32 s96, s88, {STAMP_WS}")
    E("    s_addc_u32 s97, s89, 0")
    E("    s_and_b32 s97, s97, 0xffff")
    E("    s_mov_b32 s98, 0x80000")
    E("    s_mov_b32 s99, 0x00020000")
    E("    s_lshl_b32 s100, s2, 2")
    E("    s_add_u32 s100, s100, s3")
    E("    s_lshl_b32 s100, s100, 7")
    E("    v_mov_b32 v254, s100")


def stamp(slot, vm=None):
    if not DIAG:
        return
    E("    s_waitcnt lgkmcnt(0)")
    E("    s_memrealtime s[100:101]")
    E("    s_waitcnt lgkmcnt(0)")
    E("    v_mov_b32 v255, s100")
    E("    s_mov_b64 s[94:95], exec")
    E("    s_mov_b64 exec, 1")
    E(f"    buffer_store_dword v255, v254, s[96:99], 0 offen offset:{4*slot}")
    E("    s_mov_b64 exec, s[94:95]")
    if vm is not None:
        vm.issue("stamp")


def stampclk(slot, vm=None):
    if not DIAG:
        return
    E("    s_waitcnt lgkmcnt(0)")
    E("    s_memtime s[100:101]")
    E("    s_waitcnt lgkmcnt(0)")
    stampval(slot, "s100", vm)


def stampval(slot, sg, vm=None):
    if not DIAG:
        return
    E(f"    v_mov_b32 v255, {sg}")
    E("    s_mov_b64 s[94:95], exec")
    E("    s_mov_b64 exec, 1")
    E(f"    buffer_store_dword v255, v254, s[96:99], 0 offen offset:{4*slot}")
    E("    s_mov_b64 exec, s[94:95]")
    if vm is not None:
        vm.issue("stamp")


def srd(dst, lo, hi, nbytes):
    E(f"    s_mov_b32 s{dst}, s{lo}")
    E(f"    s_and_b32 s{dst+1}, s{hi}, 0xffff")
    E(f"    s_mov_b32 s{dst+2}, {nbytes}")
    E(f"    s_mov_b32 s{dst+3}, 0x00020000")


def srd_off(dst, lo, hi, off, nbytes):
    E(f"    s_add_u32 s{dst}, s{lo}, {off}")
    E(f"    s_addc_u32 s{dst+1}, s{hi}, 0")
    E(f"    s_and_b32 s{dst+1}, s{dst+1}, 0xffff")
    E(f"    s_mov_b32 s{dst+2}, {nbytes}")
    E(f"    s_mov_b32 s{dst+3}, 0x00020000")


def wave_reduce_add(v, t):
    E("    s_nop 1")
    E(f"    v_add_f32_dpp v{t}, v{v}, v{v} quad_perm:[1,0,3,2] row_mask:0xf bank_mask:0xf")
    E("    s_nop 1")
    E(f"    v_add_f32_dpp v{v}, v{t}, v{t} quad_perm:[2,3,0,1] row_mask:0xf bank_mask:0xf")
    E("    s_nop 1")
    E(f"    v_add_f32_dpp v{t}, v{v}, v{v} row_half_mirror row_mask:0xf bank_mask:0xf")
    E("    s_nop 1")
    E(f"    v_add_f32_dpp v{v}, v{t}, v{t} row_mirror row_mask:0xf bank_mask:0xf")
    E(f"    v_mov_b32 v{t}, v{v}")
    E("    s_nop 1")
    E(f"    v_permlane16_swap_b32 v{v}, v{t}")
    E("    s_nop 1")
    E(f"    v_add_f32 v{v}, v{v}, v{t}")
    E(f"    v_mov_b32 v{t}, v{v}")
    E("    s_nop 1")
    E(f"    v_permlane32_swap_b32 v{v}, v{t}")
    E("    s_nop 1")
    E(f"    v_add_f32 v{v}, v{v}, v{t}")


def round_pair(a, b, t, mask_sgpr):
    E(f"    v_cvt_pk_bf16_f32 v{t}, v{a}, v{b}")
    E(f"    v_lshlrev_b32 v{a}, 16, v{t}")
    E(f"    v_and_b32 v{b}, s{mask_sgpr}, v{t}")


PA, PB, TK, VL8 = 248, 250, 252, 247
_lbl = [0]


def token_issue(vm):
    E(f"    buffer_load_dwordx2 v[{TK}:{TK+1}], off, s[60:63], 0")
    vm.issue("tok")


def token_get(vm):
    _lbl[0] += 1
    n = _lbl[0]
    vm.wait("tok")
    E(f"    s_mov_b32 s92, {POLL_LIMIT}")
    E(f"tok_l{n}:")
    E(f"    v_readfirstlane_b32 s90, v{TK}")
    E(f"    v_readfirstlane_b32 s91, v{TK+1}")
    E("    s_cmp_lg_u32 s90, 0")
    E(f"    s_cbranch_scc1 tok_d{n}")
    E(f"    buffer_load_dwordx2 v[{TK}:{TK+1}], off, s[60:63], 0 sc0 sc1")
    E("    s_waitcnt vmcnt(0)")
    E("    s_sub_u32 s92, s92, 1")
    E("    s_cmp_lg_u32 s92, 0")
    E(f"    s_cbranch_scc1 tok_l{n}")
    E(f"tok_d{n}:")


def flag_store(vm, soff):
    E(f"    s_lshl_b32 s93, {soff}, {FSH}")
    E("    s_mov_b64 exec, 1")
    E(f"    buffer_store_dwordx2 v[{TK}:{TK+1}], off, s[56:59], s93 sc0 sc1")
    E("    s_mov_b64 exec, -1")
    vm.issue("flag")


POLL_SLEEP = int(os.environ.get("PS", "4"))


def poll(vm, soff, mask, gap=6):
    _lbl[0] += 1
    n = _lbl[0]
    if mask == "0xffffffff":
        E("    s_mov_b32 exec_hi, 0")
    else:
        E(f"    s_mov_b64 exec, {mask}")
    E(f"    s_mov_b32 s92, {POLL_LIMIT}")
    E(f"    s_lshl_b32 s93, {soff}, {FSH}")
    E(f"poll_l{n}:")
    E(f"    buffer_load_dwordx2 v[{PA}:{PA+1}], v{VL8}, s[56:59], s93 offen sc0 sc1")
    E("    s_waitcnt vmcnt(0)")
    E(f"    v_cmp_ne_u64 vcc, s[90:91], v[{PA}:{PA+1}]")
    E("    s_cmp_eq_u64 vcc, 0")
    E(f"    s_cbranch_scc1 poll_d{n}")
    E("    s_mov_b64 exec, vcc")
    E(f"    s_sleep {POLL_SLEEP}")
    E("    s_sub_u32 s92, s92, 1")
    E("    s_cmp_lg_u32 s92, 0")
    E(f"    s_cbranch_scc1 poll_l{n}")
    E(f"poll_d{n}:")
    E("    s_mov_b64 exec, -1")
    vm.q = []


TG = int(os.environ.get("TG", "128"))


def w_touch(vm, lo, hi, sr, vt):
    srd(44, lo, hi, D * F * 2)
    E(f"    s_lshl_b32 s38, {sr}, 2")
    E("    s_add_u32 s38, s38, s3")
    E("    s_mul_i32 s38, s38, 4*2752")
    sh = 4 if TG == 128 else 5
    E(f"    v_lshrrev_b32 v{vt}, {sh}, v1")
    E(f"    v_mul_u32_u24 v{vt}, 2752, v{vt}")
    E(f"    v_and_b32 v{vt+1}, {(1 << sh) - 1}, v1")
    E(f"    v_min_u32 v{vt+1}, {12 if TG == 128 else 24}, v{vt+1}")
    E(f"    v_lshlrev_b32 v{vt+1}, {7 if TG == 128 else 6}, v{vt+1}")
    E("    s_and_b32 s93, s2, 1")
    E("    s_mul_i32 s93, s93, 1536")
    E(f"    v_add_u32 v{vt+1}, s93, v{vt+1}")
    E(f"    v_min_u32 v{vt+1}, 2750, v{vt+1}")
    E(f"    v_add_u32 v{vt}, v{vt}, v{vt+1}")
    E(f"    buffer_load_ushort v{vt+1}, v{vt}, s[44:47], s38 offen")
    vm.issue("pf")
    if TG == 64:
        E("    s_add_u32 s38, s38, 2*2752")
        E(f"    buffer_load_ushort v{vt+1}, v{vt}, s[44:47], s38 offen")
        vm.issue("pf")


WS_ST = 0x000000
S_ONE = 6
GPRIO = int(os.environ.get("GPRIO", "3"))
GPRIO2 = int(os.environ.get("GPRIO2", "3"))
CPRIO = int(os.environ.get("CPRIO", "1"))
KFL = int(os.environ.get("KFL", "1"))
ROT = int(os.environ.get("ROT", "1"))
CPRIO2 = int(os.environ.get("CPRIO2", "0"))
TOUCH = os.environ.get("TOUCH", "none")
CFIRST = int(os.environ.get("CFIRST", "0"))
WD_AT = os.environ.get("WD_AT", "g")
WDK = int(os.environ.get("WDK", "30"))
NBI = int(os.environ.get("NBI", "9"))
PUBK = int(os.environ.get("PUBK", "6"))
GRC = int(os.environ.get("GRC", "30"))
GRK = int(os.environ.get("GRK", "24"))
FYI = int(os.environ.get("FYI", "6"))
WLATE = int(os.environ.get("WLATE", "0"))
WDK2 = int(os.environ.get("WDK2", os.environ.get("WDK", "30")))
CX = int(os.environ.get("CX", "0"))
RP = int(os.environ.get("RP", "-3"))
MAP = int(os.environ.get("MAP", "0"))
HI = 40960
GR1, XA, WA, CA, WDV, XDV, DDV, GRV, GR2 = 4, 9, 11, 12, 21, 24, 26, 27, 28
WF, XF, GACC, CS, SEL, CT, PUB = 32, 80, 88, 184, 196, 200, 212
WREG = [216, 224, 232, 240, 32, 40]
NPRE = 6
XROW = 6


def la(reg, off):
    if off >= HI:
        return f"v{reg+6} offset:{off-HI}"
    return f"v{reg} offset:{off}"


def wslot(i):
    if i < 10:
        return i
    if i < 20:
        return i - 10
    return i - 19


def wdma_ops(vm, i):
    ops = []
    for j in range(2):
        def f(j=j):
            E(f"    s_add_u32 s38, s41, {(16*i + 8*j)*1024}")
            E(f"    s_add_u32 m0, s37, {wslot(i)*8192 + j*1024}")
            E("    s_nop 0")
            E(f"    buffer_load_dwordx4 v{DDV}, s[8:11], s38 offen lds")
            vm.issue(("w", i))
        ops.append(f)
    return ops


def wread(dst, slot):
    for wd in range(2):
        r = dst + 4 * wd
        E(f"    ds_read_b64_tr_b16 v[{r}:{r+1}], {la(11+wd, slot*8192)}")
        E(f"    ds_read_b64_tr_b16 v[{r+2}:{r+3}], {la(11+wd, slot*8192+512)}")


def gen_gtype_path(nt, vm0):
    vm = VM()
    vm.q = list(vm0.q)
    ACC = GACC
    P = 64 * nt
    CH = 16 * P + 2048
    STG = 4 * CH
    NB = LDS_BYTES // STG
    nst = 16
    n = 2 * nt
    NCS = n // 2

    def buf(st):
        return st % NB if nt == 3 else (st + 4) % NB

    def dma_ops(st):
        ops = []
        for i in range(nt):
            def f(i=i):
                if i == 0:
                    if st:
                        E(f"    s_add_u32 s48, s48, {32*2752}")
                        E("    s_cmp_ge_u32 s48, s49")
                        E(f"    s_cselect_b32 s38, {16*32*2752}, 0")
                        E("    s_sub_u32 s48, s48, s38")
                    E(f"    s_add_u32 m0, s43, {buf(st)*STG}")
                    E("    s_nop 0")
                E(f"    buffer_load_dwordx4 v{WDV+i}, s[52:55], s48 offen offset:{1024*i} lds")
                vm.issue(("dma", st))
            ops.append(f)
        xo = []
        for a in range(2):
            def f(a=a):
                if a == 0:
                    if st:
                        E("    s_add_u32 s32, s32, 64")
                        E("    s_bitset0_b32 s32, 10")
                    E(f"    s_add_u32 m0, s43, {buf(st)*STG + 16*P}")
                    E("    s_nop 0")
                E(f"    buffer_load_dwordx4 v{XDV+a}, s[16:19], s32 offen offset:{1024*a} lds")
                vm.issue(("dma", st))
            xo.append(f)
        return xo + ops

    E(f"    s_mul_i32 s43, s3, {CH}")
    d0 = dma_ops(0)
    d0[0]()
    d0[1]()
    E("    s_lshr_b32 s49, s3, 1")
    E("    s_cmp_eq_u32 s49, 1")
    E("    s_cselect_b32 s52, s80, s78")
    E("    s_cselect_b32 s53, s81, s79")
    E("    s_and_b32 s53, s53, 0xffff")
    E(f"    s_mov_b32 s54, {D*F*2}")
    E("    s_mov_b32 s55, 0x00020000")
    E("    s_and_b32 s49, s3, 1")
    E("    s_mul_i32 s48, s49, 16*2752")
    E("    s_add_u32 s48, s48, s36")
    E("    s_movk_i32 s49, 2752")
    for i in range(nt):
        E(f"    v_add_u32 v14, {64*i}, v1")
        if nt == 3:
            E("    v_mul_u32_u24 v15, 0x5556, v14")
            E("    v_lshrrev_b32 v15, 18, v15")
            E("    v_mul_u32_u24 v20, 12, v15")
        else:
            E("    v_lshrrev_b32 v15, 3, v14")
            E("    v_lshlrev_b32 v20, 3, v15")
        E("    v_sub_u32 v14, v14, v20")
        E("    v_mul_lo_u32 v15, v15, s49")
        E(f"    v_lshl_add_u32 v{WDV+i}, v14, 4, v15")
        if i:
            E(f"    v_subrev_u32 v{WDV+i}, {1024*i}, v{WDV+i}")
    E(f"    s_add_u32 s49, s48, {16*32*2752}")
    E(f"    s_mul_i32 s38, s29, {32*2752}")
    E("    s_add_u32 s48, s48, s38")
    for f in d0[2:]:
        f()
    nxt_st = 1
    while nxt_st < min(NB, NBI):
        for f in dma_ops(nxt_st):
            f()
        nxt_st += 1
    E("    v_lshrrev_b32 v13, 5, v1")
    E("    v_and_b32 v14, 15, v1")
    E("    v_lshrrev_b32 v15, 2, v14")
    E("    v_lshl_add_u32 v15, v13, 3, v15")
    E(f"    v_mul_u32_u24 v{WA}, {P}, v15")
    E("    v_bfe_u32 v15, v1, 4, 1")
    E(f"    v_lshl_add_u32 v{WA}, v15, 5, v{WA}")
    E("    v_and_b32 v15, 3, v14")
    E(f"    v_lshl_add_u32 v{WA}, v15, 3, v{WA}")
    E("    v_and_b32 v14, 31, v1")
    E("    v_bfe_u32 v15, v1, 2, 2")
    E("    v_xor_b32 v15, v15, v13")
    E("    v_lshlrev_b32 v15, 4, v15")
    E("    v_lshl_add_u32 v15, v14, 6, v15")
    E(f"    s_add_u32 s38, s43, {16*P}")
    E(f"    v_add_u32 v{XA}, s38, v15")
    E(f"    v_xor_b32 v{XA+1}, 32, v{XA}")
    E(f"    v_lshlrev_b32 v{GRV}, 4, v14")

    def woff(ks, mt):
        return (2 * (mt // nt) + ks) * CH + (mt % nt) * 64

    for j in range(NCS):
        offs = [woff((w + 4 * j) // n, (w + 4 * j) % n) for w in range(4)]
        E(f"    s_mov_b32 s38, {offs[0]}")
        for w in range(1, 4):
            E(f"    s_cmp_eq_u32 s3, {w}")
            E(f"    s_cselect_b32 s38, {offs[w]}, s38")
        E(f"    v_add_u32 v{CA+j}, s38, v{WA}")
    for r_ in range(XA, CA + NCS):
        E(f"    v_add_u32 v{r_+6}, {HI}, v{r_}")
    E("    v_lshrrev_b32 v2, 2, v1")
    E("    v_lshrrev_b32 v3, 4, v1")
    E("    v_xor_b32 v2, v2, v3")
    E("    v_and_b32 v2, 1, v2")
    E("    v_cmp_eq_u32 vcc, 0, v2")
    E(f"    v_mov_b32 v3, s{S_ONE}")
    E("    s_nop 0")
    for j in range(4):
        E(f"    v_cndmask_b32 v{SEL+j}, 0, v3, vcc")
    R, SA = 88, 96
    for j in range(4):
        E(f"    v_mov_b32 v{SA+j}, 0")
    vm.wait("st")
    stamp(1, vm)
    for d in range(8):
        E(f"    v_dot2c_f32_bf16 v{SA+d%2}, s{S_ONE}, v{R+d}")
        E(f"    v_dot2c_f32_bf16 v{SA+2+d%2}, v{R+d}, v{R+d}")
    E("    s_nop 3")
    a_, b_ = SA + 4, SA + 6
    for j in range(2):
        E(f"    v_add_f32 v{a_+j}, v{SA+2*j}, v{SA+2*j+1}")
    for ctl in ("quad_perm:[1,0,3,2]", "quad_perm:[2,3,0,1]", "row_half_mirror", "row_mirror"):
        E("    s_nop 1")
        for j in range(2):
            E(f"    v_add_f32_dpp v{b_+j}, v{a_+j}, v{a_+j} {ctl} row_mask:0xf bank_mask:0xf")
        a_, b_ = b_, a_
    for j in range(2):
        E(f"    v_mov_b32 v{b_+j}, v{a_+j}")
    E("    s_nop 1")
    for j in range(2):
        E(f"    v_permlane16_swap_b32 v{a_+j}, v{b_+j}")
    E("    s_nop 1")
    for j in range(2):
        E(f"    v_add_f32 v{a_+j}, v{a_+j}, v{b_+j}")
    M, V_ = a_, a_ + 1
    E(f"    v_mul_f32 v{M}, 0x3b000000, v{M}")
    E(f"    v_mul_f32 v{V_}, 0x3b000000, v{V_}")
    E(f"    v_fma_f32 v{V_}, -v{M}, v{M}, v{V_}")
    E(f"    v_max_f32 v{V_}, 0, v{V_}")
    E(f"    v_cvt_pk_bf16_f32 v{M}, 0, v{M}")
    E(f"    v_cvt_pk_bf16_f32 v{V_}, 0, v{V_}")
    E(f"    v_add_f32 v{V_}, 0x3727c5ac, v{V_}")
    E(f"    v_cvt_pk_bf16_f32 v{V_}, 0, v{V_}")
    E(f"    v_sqrt_f32 v{V_}, v{V_}")
    E(f"    v_sub_f32 v{PUB}, 0, v{M}")
    E(f"    v_cvt_pk_bf16_f32 v{V_}, 0, v{V_}")
    E(f"    v_rcp_f32 v{PUB+1}, v{V_}")
    while nxt_st < NB:
        for f in dma_ops(nxt_st):
            f()
        nxt_st += 1
    token_issue(vm)
    stamp(3, vm)
    vm.wait(("dma", 0))
    E("    s_barrier")
    stamp(4, vm)
    stampclk(16, vm)

    dq = []

    def ds(tag, text):
        def f():
            E(text)
            dq.append(tag)
        return f

    def ds_wait(tags):
        idx = max([i for i, t in enumerate(dq) if t in tags], default=-1)
        if idx < 0:
            return
        m_ = len(dq) - 1 - idx
        E(f"    s_waitcnt lgkmcnt({min(m_, 15)})")
        if m_ <= 15:
            del dq[:idx + 1]
        else:
            del dq[:len(dq) - 15]

    def fr_ops(k):
        setidx, bo, ks = k % 2, buf(k // 2) * STG, k % 2
        x = XF + 4 * (k % 2)
        ops = [ds(("x", k), f"    ds_read_b128 v[{x}:{x+3}], {la(XA+ks, bo)}")]
        for mt in order(k):
            r = WF + 24 * setidx + 4 * mt
            base = bo + woff(ks, mt)
            ops.append(ds(("w", k, mt), f"    ds_read_b64_tr_b16 v[{r}:{r+1}], {la(WA, base)}"))
            ops.append(ds(("w", k, mt), f"    ds_read_b64_tr_b16 v[{r+2}:{r+3}], {la(WA, base+4*P)}"))
        return ops

    def cs_reads(st):
        bo = buf(st) * STG
        ops = []
        for j in range(NCS):
            r = CT + 4 * j
            ops.append(ds(("c", st, j), f"    ds_read_b64_tr_b16 v[{r}:{r+1}], {la(CA+j, bo)}"))
            ops.append(ds(("c", st, j), f"    ds_read_b64_tr_b16 v[{r+2}:{r+3}], {la(CA+j, bo+4*P)}"))
        return ops

    def cs_mfma(st, j):
        def f():
            ds_wait([("c", st, j)])
            a = CS + 4 * j
            c = "0" if st == 0 else f"v[{a}:{a+3}]"
            E(f"    v_mfma_f32_16x16x32_bf16 v[{a}:{a+3}], v[{SEL}:{SEL+3}], v[{CT+4*j}:{CT+4*j+3}], {c}")
        return f

    def order(k):
        if k == 31:
            return [m_ for t in range(nt) for m_ in (t, nt + t)]
        return list(range(n))

    def publish():
        token_get(vm)
        E(f"    v_mov_b32 v{PUB+2}, s90")
        E(f"    v_mov_b32 v{PUB+3}, s91")
        E("    v_lshrrev_b32 v2, 1, v1")
        E("    s_mov_b32 exec_lo, 1")
        E("    s_mov_b32 exec_hi, 1")
        E(f"    buffer_store_dwordx4 v[{PUB}:{PUB+3}], v2, s[12:15], s35 offen sc0 sc1")
        E("    s_mov_b64 exec, -1")
        vm.issue("pub")

    def gr_load():
        E(f"    buffer_load_dwordx4 v[{GR1}:{GR1+3}], v{GRV}, s[12:15], s46 offen sc0 sc1")
        E(f"    buffer_load_dwordx4 v[{GR2}:{GR2+3}], v{GRV}, s[12:15], s47 offen sc0 sc1")

    def gr_issue():
        gr_load()
        vm.issue("gr")
        vm.issue("gr")

    def gr_check():
        _lbl[0] += 1
        L = _lbl[0]
        vm.wait("gr")
        E(f"    s_mov_b32 s92, {POLL_LIMIT}")
        E(f"gr_l{L}:")
        E(f"    v_cmp_ne_u64 vcc, s[90:91], v[{GR1+2}:{GR1+3}]")
        E(f"    v_cmp_ne_u64 s[44:45], s[90:91], v[{GR2+2}:{GR2+3}]")
        E("    s_nop 0")
        E("    s_or_b64 vcc, vcc, s[44:45]")
        E(f"    s_cbranch_scc0 gr_d{L}")
        gr_load()
        E("    s_waitcnt vmcnt(0)")
        E("    s_sub_u32 s92, s92, 1")
        E("    s_cmp_lg_u32 s92, 0")
        E(f"    s_cbranch_scc1 gr_l{L}")
        E(f"gr_d{L}:")
        stampval(20, "s92", vm)

    WSTEP = int(os.environ.get("WSTEP", "2"))

    def mm(k, mt):
        x = XF + 4 * (k % 2)
        w = WF + 24 * (k % 2) + 4 * mt
        a = ACC + 16 * mt
        c = "0" if k == 0 else f"v[{a}:{a+15}]"
        E(f"    v_mfma_f32_32x32x16_bf16 v[{a}:{a+15}], v[{w}:{w+3}], v[{x}:{x+3}], {c}")

    def mfma_group(k, slots):
        od = order(k)
        for s_, mt in enumerate(od):
            if s_ % WSTEP == 0:
                ds_wait([("x", k)] + [("w", k, m2) for m2 in od[s_:s_ + WSTEP]])
            mm(k, mt)
            for f in slots[s_]:
                f()

    for f in fr_ops(0) + cs_reads(0):
        f()
    pend = []
    wd_next = 0
    for k in range(31):
        st = k // 2
        if k % 2 == 1:
            vm.wait(("dma", st + 1))
            E("    s_waitcnt lgkmcnt(0)")
            del dq[:]
            E("    s_barrier")
            if st % 4 == 3 and st < 15 and DIAG:
                stamp(5 + st // 4, vm)
                stampclk(17 + st // 4, vm)
            if st in (0, 1, 2, 4, 5, 6) and DIAG:
                stamp(22 + st, vm)
            assert not pend
            if st + NB < nst:
                if 'n' not in os.environ.get('XP', ''):
                    pend += dma_ops(st + NB)
            else:
                free = (buf(st) + 1) * STG
                while wd_next < NPRE and (wd_next + 1) * 8192 <= free and not WLATE:
                    pend += wdma_ops(vm, wd_next)
                    wd_next += 1
        slots = [[] for _ in range(n)]
        rd = fr_ops(k + 1)
        nrs = n - 2 if nt == 3 else n - 1
        for s_ in range(nrs):
            cnt = (len(rd) + (nrs - s_) - 1) // (nrs - s_)
            slots[s_] += rd[:cnt]
            rd = rd[cnt:]
        if k % 2 == 1:
            cr = cs_reads(st + 1)
            h_ = len(cr) // 2 if nt == 3 else 0
            slots[n - 2] += cr[:h_]
            slots[n - 1] += cr[h_:]
        else:
            for j in range(NCS):
                slots[(2 * j + 1) if k < 30 else j].append(cs_mfma(st, j))
        cnt = (len(pend) + 1) // 2 if k % 2 == 1 else len(pend)
        ms = list(range(1, n, 2)) if k % 2 == 1 else list(range(0, n, 2))
        for i_ in range(cnt):
            slots[ms[i_ % len(ms)]].append(None)
        for s_ in range(n):
            slots[s_] = [f if f is not None else 0 for f in slots[s_]]
        for s_ in range(n):
            for i_, f in enumerate(slots[s_]):
                if f == 0:
                    slots[s_][i_] = pend.pop(0)
        if k == PUBK:
            slots[n - 1].append(publish)
        if k == GRK:
            slots[n - 1].append(gr_issue)
        if k == (WDK if nt == 3 else WDK2) and WD_AT == "g":
            def wdt():
                E("    s_mul_i32 s38, s33, 344*128")
                E("    v_lshlrev_b32 v2, 7, v0")
                E(f"    buffer_load_dword v{PUB}, v2, s[8:11], s38 offen")
                E("    v_min_u32 v3, 87, v0")
                E("    v_lshlrev_b32 v3, 7, v3")
                E("    s_add_u32 s38, s38, 256*128")
                E(f"    buffer_load_dword v{PUB+1}, v3, s[8:11], s38 offen")
                vm.issue("pf")
                vm.issue("pf")
            slots[n - 1].append(wdt)
        if k == GRC:
            slots[n - 1 if k < 30 else 0].append(gr_check)
        if k == 30:
            def xw():
                E("    v_and_b32 v2, 31, v1")
                E("    v_lshrrev_b32 v3, 5, v1")
                E("    v_lshlrev_b32 v2, 2, v2")
                E("    v_lshl_add_u32 v2, v3, 11, v2")
                for j in range(NCS):
                    offs = [((w + 4 * j) % n) * 256 + ((w + 4 * j) // n) * 128 for w in range(4)]
                    E(f"    s_mov_b32 s38, {offs[0]}")
                    for w in range(1, 4):
                        E(f"    s_cmp_eq_u32 s3, {w}")
                        E(f"    s_cselect_b32 s38, {offs[w]}, s38")
                    E(f"    v_add_u32 v{CA+j}, s38, v2")
            slots[n - 2 if nt == 3 else 1].append(xw)

            def xw2():
                if nt == 2:
                    E("    s_nop 3")
                for j in range(NCS):
                    for c2 in range(2):
                        E(f"    ds_write_b32 v{CA+j}, v{CS+4*j} offset:{XROW*8192 + c2*4096}")
                        dq.append("xw")
            slots[n - 1].append(xw2)
        mfma_group(k, slots)
    assert (wd_next == NPRE or WLATE) and not pend
    E("    s_waitcnt lgkmcnt(0)")
    del dq[:]
    E("    s_barrier")
    E(f"    s_setprio {GPRIO2}")
    E("    v_lshlrev_b32 v2, 2, v1")
    E("    v_add_u32 v2, s37, v2")
    CV = CS
    od = order(31)
    for mt in od:
        E(f"    ds_read_b32 v{CV+mt}, v2 offset:{XROW*8192 + mt*256}")
    BM = 194
    T0 = 190

    def split_ops(pos, mt):
        c = CV + mt
        q = CT + 2 * pos
        return [f"    v_and_b32 v{T0}, s40, v{c}",
                f"    v_sub_f32 v{c}, v{c}, v{T0}",
                f"    v_and_b32 v{T0+1}, s40, v{c}",
                f"    v_sub_f32 v{c}, v{c}, v{T0+1}",
                f"    v_cvt_pk_bf16_f32 v{q}, v{T0}, v{T0+1}",
                f"    v_cvt_pk_bf16_f32 v{q+1}, v{c}, 0"]

    def corr(pos, mt):
        q = CT + 4 * (pos // 2)
        b = BM + 2 if pos % 2 == 0 else BM
        a = ACC + 16 * mt
        E(f"    v_mfma_f32_32x32x16_bf16 v[{a}:{a+15}], v[{q}:{q+3}], v[{b}:{b+3}], v[{a}:{a+15}]")

    def epi_ops(tau):
        G = ACC + 16 * tau
        U = ACC + 16 * (nt + tau)
        PK = 56 + 8 * ((tau + 2) % 3)
        o = []
        for j in range(16):
            o.append(f"    v_mul_f32 v{G+j}, v{G+j}, v{GR1+1}")
        for j in range(16):
            o.append(f"    v_mul_f32 v{U+j}, v{U+j}, v{GR1+1}")
        for j in range(16):
            o.append(f"    v_cvt_pk_bf16_f32 v{G+j}, 0, v{G+j}")
            o.append(f"    v_cvt_pk_bf16_f32 v{U+j}, 0, v{U+j}")
        for j in range(16):
            o.append(f"    v_mul_f32 v{G+j}, v{G+j}, v{U+j}")
        for j in range(8):
            o.append(f"    v_cvt_pk_bf16_f32 v{U+j}, v{G+2*j}, v{G+2*j+1}")
        o.append("    s_nop 1")
        for pair in range(2):
            q0 = U + 4 * pair
            o.append(f"    v_permlane32_swap_b32 v{q0}, v{q0+2}")
            o.append(f"    v_permlane32_swap_b32 v{q0+1}, v{q0+3}")
        o.append(f"    s_add_u32 s38, s42, {tau*2048}")
        for pair in range(2):
            q0 = U + 4 * pair
            o.append(f"    buffer_store_dwordx4 v[{q0}:{q0+3}], v8, s[24:27], s38 offen offset:{pair*1024} sc0 sc1")
        return o

    def emit(lst, cnt):
        for _ in range(min(cnt, len(lst))):
            t = lst.pop(0)
            E(t)
            if "buffer_store" in t:
                vm.issue("hst")

    pre = [f"    v_mov_b32 v{BM+j}, 0" for j in (0, 1, 4, 5)]
    pre += [f"    v_cvt_pk_bf16_f32 v{BM+j}, v{GR1}, v{GR1}" for j in (2, 3)]
    sp = []
    for pos, mt in enumerate(od):
        sp.append(f"    s_waitcnt lgkmcnt({n-1-pos})")
        sp += split_ops(pos, mt)
    mm(31, od[0])
    emit(pre, 6)
    mm(31, od[1])
    emit(sp, 7)
    mm(31, od[2])
    emit(sp, 7)
    mm(31, od[3])
    emit(sp, 7)
    corr(0, od[0])
    emit(sp, 7)
    corr(1, od[1])
    stamp(8, vm)
    if nt == 3:
        emit(sp, 7)
        mm(31, od[4])
        emit(sp, 7)
        mm(31, od[5])
        ep = epi_ops(0)
        emit(ep, 7)
        for pos in range(2, 6):
            corr(pos, od[pos])
            emit(ep, 7)
        emit(ep, 999)
        for tau in (1, 2):
            emit(epi_ops(tau), 999)
    else:
        E("    s_nop 1")
        corr(2, od[2])
        corr(3, od[3])
        E("    s_nop 7")
        for tau in (0, 1):
            emit(epi_ops(tau), 999)
    stamp(9, vm)
    for i in range(0 if WLATE else NPRE, 10):
        for f in wdma_ops(vm, i):
            f()
    E("    v_lshrrev_b32 v3, 5, v1")
    E("    v_and_b32 v5, 15, v1")
    E("    v_lshrrev_b32 v6, 2, v5")
    E("    v_lshl_add_u32 v6, v3, 3, v6")
    E("    v_lshlrev_b32 v11, 7, v6")
    E("    v_bfe_u32 v6, v1, 4, 1")
    E("    v_lshlrev_b32 v6, 5, v6")
    E("    v_and_b32 v7, 3, v5")
    E("    v_lshl_add_u32 v6, v7, 3, v6")
    E("    v_bfe_u32 v7, v1, 3, 1")
    E("    v_lshlrev_b32 v7, 6, v7")
    E("    v_xor_b32 v6, v6, v7")
    E("    v_add_u32 v11, v11, v6")
    E("    v_add_u32 v11, s37, v11")
    E("    v_xor_b32 v12, 64, v11")
    E(f"    v_add_u32 v17, {HI}, v11")
    E(f"    v_add_u32 v18, {HI}, v12")
    if WLATE:
        vm.wait("hst")
        flag_store(vm, "s39")
        stamp(10, vm)
    vm.wait(("w", NPRE - 1))
    for i in range(NPRE):
        wread(WREG[i], i)
    E("    s_branch phase_c")


def token_publish():
    E("    s_or_b32 s34, s2, s3")
    E("    s_cmp_eq_u32 s34, 0")
    E("    s_cbranch_scc0 g_notok")
    E("    s_or_b32 s90, s90, 1")
    E(f"    v_mov_b32 v{TK}, s90")
    E(f"    v_mov_b32 v{TK+1}, s91")
    E("    s_mov_b64 exec, 1")
    E(f"    buffer_store_dwordx2 v[{TK}:{TK+1}], off, s[60:63], 0 sc0 sc1")
    E("    s_mov_b64 exec, -1")
    E("g_notok:")


def gen_gtype():
    vm = VM()
    E(f"    s_setprio {GPRIO}")
    if CFIRST:
        E("    s_sub_u32 s2, s2, 256")
    else:
        token_publish()
    E("    s_lshr_b32 s33, s2, 3")
    if MAP:
        E("    ; map1")
        E("    s_and_b32 s30, s2, 4")
        E("    s_lshl_b32 s30, s30, 1")
        E("    s_lshr_b32 s31, s33, 2")
        E("    s_add_u32 s30, s30, s31")
        E("    s_and_b32 s31, s2, 3")
        E("    s_lshl_b32 s31, s31, 2")
        E("    s_and_b32 s34, s33, 3")
        E("    s_add_u32 s31, s31, s34")
        E("    s_and_b32 s4, s2, 7")
        E("    s_lshl_b32 s4, s4, 2")
        E("    s_lshr_b32 s34, s33, 3")
        E("    s_add_u32 s4, s4, s34")
    else:
        E("    s_bfe_u32 s30, s2, 0x20001")
        E("    s_lshl_b32 s30, s30, 2")
        E("    s_lshr_b32 s31, s33, 3")
        E("    s_add_u32 s30, s30, s31")
        E("    s_and_b32 s31, s2, 1")
        E("    s_lshl_b32 s31, s31, 3")
        E("    s_and_b32 s34, s33, 7")
        E("    s_add_u32 s31, s31, s34")
    srd(16, 64, 65, S * D * 2)
    E("    s_lshl_b32 s35, s30, 7")
    E("    s_lshl_b32 s34, s31, 3")
    E("    s_add_u32 s35, s35, s34")
    E("    s_lshl_b32 s34, s3, 1")
    E("    s_add_u32 s35, s35, s34")
    E("    s_lshl_b32 s34, s35, 10")
    E("    v_lshrrev_b32 v12, 5, v1")
    E("    v_and_b32 v13, 31, v1")
    E("    v_lshlrev_b32 v13, 4, v13")
    E("    v_lshl_add_u32 v12, v12, 10, v13")
    E("    buffer_load_dwordx4 v[88:91], v12, s[16:19], s34 offen")
    E("    buffer_load_dwordx4 v[92:95], v12, s[16:19], s34 offen offset:512")
    vm.issue("st")
    vm.issue("st")
    E("    s_lshl_b32 s35, s35, 4")
    E("    s_lshl_b32 s32, s30, 17")
    E("    s_lshl_b32 s34, s3, 15")
    E("    s_add_u32 s32, s32, s34")
    E("    s_lshr_b32 s46, s32, 6")
    E("    v_lshrrev_b32 v12, 2, v1")
    E("    v_lshrrev_b32 v13, 4, v1")
    E("    v_xor_b32 v13, v13, v1")
    E("    v_and_b32 v13, 3, v13")
    E("    v_lshlrev_b32 v13, 4, v13")
    E(f"    v_lshl_add_u32 v{XDV}, v12, 10, v13")
    E(f"    v_add_u32 v{XDV+1}, {16384-1024}, v{XDV}")
    if MAP:
        E("    s_lshr_b32 s29, s33, 2")
        E("    s_and_b32 s34, s33, 3")
    else:
        E("    s_and_b32 s29, s33, 7")
        E("    s_lshr_b32 s34, s33, 3")
    E("    s_lshl_b32 s34, s34, 1")
    if ROT == 1:
        E("    s_add_u32 s29, s29, s34")
    E("    s_lshl_b32 s29, s29, 1")
    E("    s_and_b32 s29, s29, 15" if ROT else "    s_mov_b32 s29, 0")
    E("    s_lshl_b32 s34, s29, 6")
    E("    s_add_u32 s32, s32, s34")
    srd_off(24, 88, 89, WS_H, H_BYTES)
    srd_off(12, 88, 89, WS_ST, S * 16)
    E(f"    s_mov_b32 s{S_ONE}, 0x3f803f80")
    E("    v_lshlrev_b32 v8, 4, v1")
    if MAP:
        E("    s_lshl_b32 s47, s4, 10")
    else:
        E("    s_lshl_b32 s47, s30, 11")
        E("    s_lshr_b32 s34, s31, 3")
        E("    s_lshl_b32 s34, s34, 10")
        E("    s_add_u32 s47, s47, s34")
    E("    s_and_b32 s34, s3, 1")
    E("    s_lshl_b32 s34, s34, 9")
    E("    s_add_u32 s47, s47, s34")
    srd(8, 82, 83, F * D * 2)
    E("    s_mul_i32 s51, s3, 22")
    E("    s_cmp_eq_u32 s3, 3")
    E("    s_cselect_b32 s51, 65, s51")
    E("    s_lshl_b32 s41, s51, 14")
    E("    s_lshl_b32 s37, s3, 11")
    E("    v_lshrrev_b32 v14, 3, v1")
    E(f"    v_lshlrev_b32 v{DDV}, 10, v14")
    E("    v_and_b32 v14, 7, v1")
    E("    v_bfe_u32 v15, v1, 4, 1")
    E("    v_lshlrev_b32 v15, 2, v15")
    E("    v_xor_b32 v14, v14, v15")
    E(f"    v_lshl_add_u32 v{DDV}, v14, 4, v{DDV}")
    E("    s_and_b32 s34, s33, 7")
    E("    s_lshl_b32 s34, s34, 7")
    E(f"    v_add_u32 v{DDV}, s34, v{DDV}")
    E("    s_lshl_b32 s36, s30, 2")
    E("    s_add_u32 s36, s36, s3")
    E("    s_lshl_b32 s39, s36, 7")
    E("    s_lshl_b32 s38, s31, 3")
    E("    s_add_u32 s39, s39, s38")
    E(f"    s_add_u32 s39, s39, {FH_OFF}")
    E(f"    s_mul_i32 s42, s36, {HB}")
    if MAP == 2:
        E("    ; map2")
        E("    s_mul_i32 s36, s31, 3")
        E("    s_add_u32 s38, s31, 1")
        E("    s_lshr_b32 s38, s38, 4")
        E("    s_sub_u32 s36, s36, s38")
        E("    s_lshr_b32 s38, s31, 2")
        E("    s_sub_u32 s36, s36, s38")
        E("    s_lshl_b32 s36, s36, 6")
        E("    s_lshl_b32 s38, s36, 5")
        E("    s_add_u32 s42, s42, s38")
        E("    s_bitcmp1_b32 0xc888, s31")
        E("    s_cbranch_scc1 g_path2")
        gen_gtype_path(3, vm)
        E("g_path2:")
        gen_gtype_path(2, vm)
        gen_phase_c()
        return
    E("    s_cmp_lt_u32 s31, 11")
    E("    s_cbranch_scc0 g_path2")
    E("    s_mul_i32 s36, s31, 192")
    E("    s_mul_i32 s38, s31, 3*2048")
    E("    s_add_u32 s42, s42, s38")
    gen_gtype_path(3, vm)
    E("g_path2:")
    E("    s_lshl_b32 s36, s31, 7")
    E("    s_add_u32 s36, s36, 704")
    E("    s_lshl_b32 s38, s36, 5")
    E("    s_add_u32 s42, s42, s38")
    gen_gtype_path(2, vm)
    gen_phase_c()


COPY_BYTES = 4240
_order = [(1, 0), (0, 11), (2, 4), (5, 0), (4, 12), (3, 8), (6, 4), (7, 8)]
COPY_BASE = {}
_pos = 0
for _b, _beta in _order:
    while (_pos // 16) % 16 != _beta:
        _pos += 16
    COPY_BASE[_b] = _pos
    _pos += COPY_BYTES
KV_OFF = (_pos + 15) // 16 * 16
KVP = 80
CH_BYTES = (KV_OFF + 65 * KVP + 255) // 256 * 256
LDS_BYTES = 81920
TB_OFF = (KV_OFF + 127) // 128 * 128
assert TB_OFF + 4096 <= KV_OFF + 64 * KVP
assert 2 * CH_BYTES <= LDS_BYTES


def wd_touch(vt):
    srd(52, 82, 83, F * D * 2)
    E("    s_mul_i32 s93, s50, 344*128")
    E(f"    v_lshlrev_b32 v{vt}, 7, v0")
    E(f"    buffer_load_dword v{vt+1}, v{vt}, s[52:55], s93 offen")
    E(f"    v_min_u32 v{vt}, 87, v0")
    E(f"    v_lshlrev_b32 v{vt}, 7, v{vt}")
    E("    s_add_u32 s93, s93, 256*128")
    E(f"    buffer_load_dword v{vt+1}, v{vt}, s[52:55], s93 offen")


def gen_ctype():
    vm = VM()
    E("c_type:")
    E(f"    s_setprio {CPRIO}")
    if CFIRST:
        token_publish()
    if 'g' in os.environ.get('XP', ''):
        E("    s_endpgm")
    if CFIRST:
        pass
    else:
        E("    s_sub_u32 s2, s2, 256")
    srd(16, 66, 67, S * D * 2)
    srd(20, 68, 69, S * D * 2)
    srd(24, 70, 71, D * 4 * 2)
    E("    s_lshr_b32 s32, s2, 3")
    E("    s_and_b32 s33, s2, 7")
    E("    v_and_b32 v10, 31, v0")
    E("    v_lshrrev_b32 v11, 5, v0")
    E("    s_lshl_b32 s34, s32, 6")
    E("    v_lshlrev_b32 v3, 3, v11")
    E("    v_add_u32 v3, s34, v3")
    E("    s_lshl_b32 s35, s33, 5")
    E("    v_add_u32 v6, s35, v10")
    E("    v_lshlrev_b32 v3, 10, v3")
    E("    v_lshl_add_u32 v3, v6, 2, v3")
    E("    v_add_u32 v4, 4096, v3")
    E("    v_subrev_u32 v5, 3072, v3")
    E("    v_lshlrev_b32 v6, 4, v6")
    for j in range(3):
        E(f"    buffer_load_dword v{132+j}, v5, s[16:19], 0 offen offset:{1024*j}")
    for j in range(4):
        E(f"    buffer_load_dword v{135+j}, v3, s[16:19], 0 offen offset:{1024*j}")
    for j in range(4):
        E(f"    buffer_load_dword v{139+j}, v4, s[16:19], 0 offen offset:{1024*j}")
    for j in range(4):
        E(f"    buffer_load_dword v{144+j}, v3, s[20:23], 0 offen offset:{1024*j}")
    for j in range(4):
        E(f"    buffer_load_dword v{148+j}, v4, s[20:23], 0 offen offset:{1024*j}")
    E("    buffer_load_dwordx4 v[128:131], v6, s[24:27], 0 offen")
    for _ in range(20):
        vm.issue("kv")
    E("    s_lshr_b32 s31, s3, 1")
    E("    s_lshl_b32 s30, s33, 6")
    E("    s_lshl_b32 s34, s32, 1")
    E("    s_add_u32 s30, s30, s34")
    E("    s_add_u32 s30, s30, s31")
    E("    s_mov_b32 s50, s32")
    E("    s_mov_b32 s51, s33")
    E("    s_and_b32 s32, s3, 1")
    E("    s_lshl_b32 s33, s30, 12")
    srd_off(44, 72, 73, "s33", 4096)
    E(f"    s_mul_i32 s35, s31, {CH_BYTES}")
    E("    s_lshl_b32 s36, s32, 6")
    E("    v_add_u32 v3, s36, v1")
    E("    v_lshlrev_b32 v4, 5, v3")
    E("    v_subrev_u32 v5, 16, v4")
    def kf_loads():
        srd_off(44, 72, 73, "s33", 4096)
        E("    buffer_load_dwordx4 v[16:19], v5, s[44:47], 0 offen")
        E("    buffer_load_dwordx4 v[20:23], v4, s[44:47], 0 offen")
        E("    buffer_load_dwordx4 v[24:27], v4, s[44:47], 0 offen offset:16")
        for _ in range(3):
            vm.issue("kf")
        srd(44, 74, 75, D * 2)
        E("    s_lshl_b32 s36, s30, 1")
        E("    v_mov_b32 v7, s36")
        E("    buffer_load_ushort v9, v7, s[44:47], 0 offen")
        vm.issue("kf")
    if not KFL:
        kf_loads()
    srd_off(8, 88, 89, WS_KVR, S * D * 2)
    srd_off(12, 88, 89, WS_KVA, S * D * 2)
    E("    s_getreg_b32 s6, hwreg(HW_REG_XCC_ID, 0, 4)")
    E("    v_lshrrev_b32 v12, 4, v10")
    E(f"    v_mul_u32_u24 v12, {CH_BYTES}, v12")
    E("    v_and_b32 v13, 15, v10")
    E("    v_lshl_add_u32 v12, v13, 8, v12")
    E("    v_sub_u32 v13, 7, v11")
    E("    v_and_b32 v14, 7, v10")
    E("    v_xor_b32 v13, v13, v14")
    E("    v_lshl_add_u32 v12, v13, 4, v12")
    E(f"    v_add_u32 v12, {TB_OFF}, v12")
    E("    v_lshrrev_b32 v13, 3, v1")
    E("    v_and_b32 v14, 7, v1")
    E("    v_lshrrev_b32 v15, 4, v1")
    E("    v_xor_b32 v15, v15, v14")
    E("    v_lshlrev_b32 v15, 4, v15")
    E("    v_lshl_add_u32 v15, v13, 7, v15")
    E(f"    s_mul_i32 s36, s31, {CH_BYTES}")
    E("    s_lshl_b32 s37, s32, 11")
    E("    s_add_u32 s36, s36, s37")
    E(f"    s_add_u32 s36, s36, {TB_OFF}")
    E("    v_add_u32 v15, s36, v15")
    E("    v_xor_b32 v28, 64, v15")
    E("    v_lshlrev_b32 v13, 12, v13")
    E("    v_lshl_add_u32 v13, v14, 4, v13")
    E("    s_lshl_b32 s36, s51, 18")
    E("    s_lshl_b32 s37, s3, 16")
    E("    s_add_u32 s36, s36, s37")
    E("    s_lshl_b32 s37, s50, 7")
    E("    s_sub_u32 s37, 3968, s37")
    E("    s_add_u32 s48, s36, s37")
    E("    s_lshl_b32 s36, s51, 10")
    E(f"    s_add_u32 s36, s36, {FK_OFF}")
    E("    s_lshl_b32 s37, s3, 8")
    E("    s_add_u32 s49, s36, s37")
    E("    s_lshl_b32 s37, s50, 3")
    E("    s_add_u32 s49, s49, s37")
    E("    s_lshr_b32 s37, s50, 3")
    E("    s_lshl_b32 s37, s37, 8")
    E("    s_add_u32 s41, s36, s37")
    vm.wait("kv")
    stamp(1, vm)
    token_issue(vm)
    if KFL:
        kf_loads()
    if TOUCH != "none":
        w_touch(vm, 78, 79, "s50", 29)
    if WD_AT == "early":
        wd_touch(244)
        vm.issue("pf")
        vm.issue("pf")
    if CX == 1:
        E("    s_waitcnt vmcnt(0)")
        E("    s_endpgm")
    for c in range(2):
        for d in range(2):
            E(f"    v_lshlrev_b32 v{32+4*c+2*d}, 16, v{128+2*c+d}")
            E(f"    v_and_b32 v{33+4*c+2*d}, s40, v{128+2*c+d}")
    for j in range(11):
        E(f"    v_lshlrev_b32 v{40+j}, 16, v{132+j}")
        E(f"    v_and_b32 v{52+j}, s40, v{132+j}")
    for j in range(8):
        E(f"    v_lshlrev_b32 v{64+j}, 16, v{144+j}")
        E(f"    v_and_b32 v{72+j}, s40, v{144+j}")
    for j in range(8):
        A0, A1, B0, B1, T = 96, 97, 98, 99, 100
        E(f"    v_mul_f32 v{A0}, v{40+j}, v35")
        E(f"    v_mul_f32 v{A1}, v{52+j}, v39")
        E(f"    v_mul_f32 v{B0}, v{41+j}, v34")
        E(f"    v_mul_f32 v{B1}, v{53+j}, v38")
        round_pair(A0, A1, T, 40)
        round_pair(B0, B1, T, 40)
        E(f"    v_add_f32 v{A0}, v{A0}, v{B0}")
        E(f"    v_add_f32 v{A1}, v{A1}, v{B1}")
        E(f"    v_mul_f32 v{B0}, v{42+j}, v33")
        E(f"    v_mul_f32 v{B1}, v{54+j}, v37")
        round_pair(A0, A1, T, 40)
        round_pair(B0, B1, T, 40)
        E(f"    v_add_f32 v{A0}, v{A0}, v{B0}")
        E(f"    v_add_f32 v{A1}, v{A1}, v{B1}")
        E(f"    v_mul_f32 v{B0}, v{43+j}, v32")
        E(f"    v_mul_f32 v{B1}, v{55+j}, v36")
        round_pair(A0, A1, T, 40)
        round_pair(B0, B1, T, 40)
        E(f"    v_add_f32 v{A0}, v{A0}, v{B0}")
        E(f"    v_add_f32 v{A1}, v{A1}, v{B1}")
        round_pair(A0, A1, T, 40)
        E(f"    v_mul_f32 v{80+j}, v{A0}, v{64+j}")
        E(f"    v_mul_f32 v{88+j}, v{A1}, v{72+j}")
    for c in range(2):
        for jj in range(4):
            E(f"    v_cvt_pk_bf16_f32 v{104+4*c+jj}, v{80+8*c+7-2*jj}, v{80+8*c+6-2*jj}")
    if CX == 2:
        E("    s_waitcnt vmcnt(0)")
        E("    s_endpgm")
    E("    ds_write_b128 v12, v[104:107]")
    E("    ds_write_b128 v12, v[108:111] offset:128")
    E("    s_waitcnt lgkmcnt(0)")
    E("    s_barrier")
    E("    ds_read_b128 v[104:107], v15")
    E("    ds_read_b128 v[108:111], v28 offset:1024")
    E("    s_add_u32 s43, s48, 32768")
    E("    s_waitcnt lgkmcnt(1)")
    E("    buffer_store_dwordx4 v[104:107], v13, s[12:15], s48 offen")
    E("    s_waitcnt lgkmcnt(0)")
    E("    buffer_store_dwordx4 v[108:111], v13, s[12:15], s43 offen")
    vm.issue("kst")
    vm.issue("kst")
    stamp(2, vm)
    E("    s_barrier")
    E("    s_add_u32 s34, s33, %d" % WS_KVR)
    srd_off(20, 88, 89, "s34", 4096)
    E("    s_add_u32 s34, s33, %d" % WS_YT)
    srd_off(24, 88, 89, "s34", 4096)
    E("    v_mov_b32 v36, 0")
    E("    v_mov_b32 v37, 0")
    E("    v_mov_b32 v38, 0")
    E("    v_mov_b32 v39, 0")
    E("    v_lshlrev_b32 v7, 4, v1")
    E("    v_add_u32 v7, s35, v7")
    E("    s_mov_b64 exec, 0x7f")
    for b in range(8):
        E(f"    ds_write_b128 v7, v[36:39] offset:{COPY_BASE[b]}")
    E("    s_mov_b64 exec, 0xf")
    E(f"    ds_write_b128 v7, v[36:39] offset:{KV_OFF + 64*KVP}")
    E("    s_mov_b64 exec, -1")
    E("    v_lshlrev_b32 v6, 4, v3")
    E("    v_lshlrev_b32 v7, 5, v3")
    E("    v_add_u32 v7, s35, v7")
    E("    v_lshrrev_b32 v8, 2, v3")
    E(f"    v_mul_u32_u24 v8, {KVP}, v8")
    E("    v_and_b32 v10, 3, v3")
    E("    v_lshl_add_u32 v8, v10, 4, v8")
    E("    v_add_u32 v8, s35, v8")
    E("    v_and_b32 v3, 31, v1")
    E("    v_lshrrev_b32 v4, 5, v1")
    E("    v_add_u32 v5, 1, v3")
    E("    v_and_b32 v14, 7, v5")
    E("    v_lshrrev_b32 v5, 3, v5")
    E("    v_sub_u32 v5, v5, v4")
    E("    v_add_u32 v5, 1, v5")
    E("    v_lshlrev_b32 v5, 4, v5")
    E("    v_mov_b32 v10, 0")
    for b in range(8):
        E(f"    v_cmp_eq_u32 vcc, {b}, v14")
        E(f"    v_mov_b32 v11, {COPY_BASE[b]}")
        E("    s_nop 0")
        E("    v_cndmask_b32 v10, v10, v11, vcc")
    E("    v_add_u32 v10, v10, v5")
    E("    v_add_u32 v10, s35, v10")
    E("    v_sub_u32 v5, 63, v3")
    E(f"    v_mul_u32_u24 v5, {KVP}, v5")
    E("    v_lshlrev_b32 v14, 4, v4")
    E("    v_sub_u32 v5, v5, v14")
    E(f"    s_add_u32 s36, s35, {KV_OFF + 16}")
    E("    v_add_u32 v11, s36, v5")
    E(f"    v_subrev_u32 v15, {32*KVP}, v11")
    E(f"    s_add_u32 s36, s36, {KVP*64}")
    E("    v_sub_u32 v12, s36, v14")
    token_get(vm)
    stampval(20, "s92", vm)
    E("    s_add_u32 s6, s6, 1")
    E("    s_lshl_b32 s6, s6, 24")
    E("    s_mov_b32 s4, s90")
    E("    s_xor_b32 s5, s91, s6")
    E("    v_mov_b32 v244, s4")
    E("    v_mov_b32 v245, s5")
    E(f"    s_sub_u32 s93, s49, {FK_OFF}")
    E(f"    s_lshl_b32 s93, s93, {FSH}")
    vm.wait("kst")
    E("    s_mov_b64 exec, 1")
    E("    buffer_store_dwordx2 v[244:245], off, s[56:59], s93")
    E("    s_mov_b64 exec, -1")
    vm.issue("flag")
    stamp(3, vm)
    if CX == 3:
        E("    s_waitcnt vmcnt(0)")
        E("    s_endpgm")
    for u in range(2):
        e = 16 + 4 * u
        for b in range(8):
            off = COPY_BASE[b] + 112 + 16 * u
            if b % 2 == 0 and (b // 2) % 2 == 0:
                r = e + b // 2
                E(f"    ds_write_b128 v7, v[{r}:{r+3}] offset:{off}")
            else:
                t = 40 + 4 * ((u * 8 + b) % 4)
                for d in range(4):
                    if b % 2 == 0:
                        E(f"    v_mov_b32 v{t+d}, v{e + b//2 + d}")
                    else:
                        be = (b - 1) // 2
                        E(f"    v_alignbyte_b32 v{t+d}, v{e+be+d+1}, v{e+be+d}, 2")
                E(f"    ds_write_b128 v7, v[{t}:{t+3}] offset:{off}")
    E(f"    ds_write_b128 v7, v[24:27] offset:{COPY_BASE[0] + 112 + 32}")
    E(f"    s_setprio {CPRIO2}")
    stamp(9, vm)
    if CX == 4:
        E("    s_waitcnt vmcnt(0)")
        E("    s_endpgm")

    def slow_stores():
        E("    buffer_store_dwordx4 v[104:107], v13, s[8:11], s48 offen sc0 sc1")
        E("    buffer_store_dwordx4 v[108:111], v13, s[8:11], s43 offen sc0 sc1")

    NF = int(os.environ.get("NF", "12"))
    E(f"    s_mov_b32 s92, {POLL_LIMIT}")
    E("    s_mov_b32 s28, 0")
    E(f"    s_sub_u32 s46, s41, {FK_OFF}")
    E(f"    s_lshl_b32 s46, s46, {FSH}")
    E(f"    s_lshl_b32 s47, s41, {FSH}")
    E("    s_mov_b32 exec_hi, 0")
    E("pk_l:")
    E(f"    buffer_load_dwordx2 v[{PA}:{PA+1}], v{VL8}, s[56:59], s46 offen sc0 sc1")
    E("    s_waitcnt vmcnt(0)")
    E(f"    v_cmp_ne_u64 vcc, s[4:5], v[{PA}:{PA+1}]")
    E("    s_cmp_eq_u64 vcc, 0")
    E("    s_cbranch_scc1 pk_fast")
    E(f"    s_cmp_gt_u32 s92, {POLL_LIMIT - NF}")
    E("    s_cbranch_scc1 pk_next")
    E("    s_cmp_lg_u32 s28, 0")
    E("    s_cbranch_scc1 pk_sb")
    E("    s_mov_b64 exec, -1")
    slow_stores()
    E("    s_waitcnt vmcnt(0)")
    flag_store(vm, "s49")
    E("    s_mov_b32 s28, 1")
    E("    s_mov_b32 exec_hi, 0")
    E("pk_sb:")
    E(f"    buffer_load_dwordx2 v[{PA}:{PA+1}], v{VL8}, s[56:59], s47 offen sc0 sc1")
    E("    s_waitcnt vmcnt(0)")
    E(f"    v_cmp_ne_u64 vcc, s[90:91], v[{PA}:{PA+1}]")
    E("    s_cmp_eq_u64 vcc, 0")
    E("    s_cbranch_scc1 pk_join")
    E("pk_next:")
    E(f"    s_sleep {int(os.environ.get('PSK', '2'))}")
    E("    s_sub_u32 s92, s92, 1")
    E("    s_cmp_lg_u32 s92, 0")
    E("    s_cbranch_scc1 pk_l")
    E("    s_branch pk_join")
    E("pk_fast:")
    E(f"    s_add_u32 s20, s20, {WS_KVA - WS_KVR}")
    E("    s_addc_u32 s21, s21, 0")
    E("    s_and_b32 s21, s21, 0xffff")
    E("pk_join:")
    E("    s_mov_b64 exec, -1")
    stampval(21, "s92", vm)
    stamp(4, vm)
    E("    buffer_load_dwordx4 v[28:31], v6, s[20:23], 0 offen")
    E("    buffer_load_dwordx4 v[32:35], v6, s[20:23], 0 offen offset:2048")
    E("    v_mov_b32 v246, v13")
    if RP >= 0:
        for j in range(8):
            E(f"    v_mov_b32 v{56+j}, v{104+j}")
    E("    s_waitcnt vmcnt(1)")
    E(f"    ds_write_b128 v8, v[28:31] offset:{KV_OFF}")
    E("    s_waitcnt vmcnt(0)")
    E(f"    ds_write_b128 v8, v[32:35] offset:{KV_OFF + 32*KVP}")
    if RP == -1:
        slow_stores()
    stamp(10)
    vm.q = []
    E("    s_waitcnt lgkmcnt(0)")
    E("    s_barrier")
    stamp(5)
    if CX == 5:
        E("    s_waitcnt vmcnt(0)")
        E("    s_endpgm")
    FR = 64
    ACC = 192

    def fr(setidx, slot):
        return FR + 64 * setidx + 4 * slot

    def op_A(setidx, slot, t):
        r = fr(setidx, slot)
        return lambda: E(f"    ds_read_b128 v[{r}:{r+3}], v10 offset:{32*(t+3)}")

    def ops_B(setidx, slot, d, c):
        def f():
            E(f"    v_add_u32 v13, {KVP*d}, v{11 if c == 0 else 15}")
            E("    v_min_u32 v13, v13, v12")
            for q in range(2):
                r = fr(setidx, slot + q)
                E(f"    ds_read_b128 v[{r}:{r+3}], v13 offset:{32*(1-q)}")
        return f

    def loads(it, setidx):
        kind, d0 = it
        ops = []
        if kind == "X":
            for e_ in range(2):
                for q in range(2):
                    ops.append(op_A(setidx, 2 * e_ + q, 2 * (d0 + e_) - q))
                for c in range(2):
                    ops.append(ops_B(setidx, 4 + 4 * e_ + 2 * c, d0 + e_, c))
        else:
            for e_ in range(4):
                for q in range(2):
                    ops.append(op_A(setidx, 2 * e_ + q, 2 * (d0 + e_) - q))
                ops.append(ops_B(setidx, 8 + 2 * e_, d0 + e_, 1))
        return ops

    def mfmas(it, setidx):
        kind, d0 = it
        lst = []
        if kind == "X":
            for e_ in range(2):
                for q in range(2):
                    for c in range(2):
                        lst.append((c, fr(setidx, 2 * e_ + q), fr(setidx, 4 + 4 * e_ + 2 * c + q)))
        else:
            for e_ in range(4):
                for q in range(2):
                    lst.append((1 + q, fr(setidx, 2 * e_ + q), fr(setidx, 8 + 2 * e_ + q)))
        return lst

    def conv_loop(its, pf_at):
        started = set()
        for f in loads(its[0], 0):
            f()
        for n, it in enumerate(its):
            E("    s_waitcnt lgkmcnt(0)")
            nxt = loads(its[n + 1], (n + 1) % 2) if n + 1 < len(its) else []
            per = (len(nxt) + 4) // 5
            ms = mfmas(it, n % 2)
            for k, (acc, a, b) in enumerate(ms):
                A = ACC + 16 * acc
                c = f"v[{A}:{A+15}]" if acc in started else "0"
                started.add(acc)
                E(f"    v_mfma_f32_32x32x16_bf16 v[{A}:{A+15}], v[{a}:{a+3}], v[{b}:{b+3}], {c}")
                for _ in range(per if k + 1 < len(ms) else len(nxt)):
                    if nxt:
                        nxt.pop(0)()
            if n == RP:
                E("    buffer_store_dwordx4 v[56:59], v246, s[8:11], s48 offen sc0 sc1")
                E("    buffer_store_dwordx4 v[60:63], v246, s[8:11], s43 offen sc0 sc1")
            if n == pf_at and WD_AT == "conv":
                wd_touch(60)

    E("    s_cmp_eq_u32 s32, 0")
    E("    s_cbranch_scc0 conv_l1")
    conv_loop([("X", d) for d in range(0, 24, 2)], 0)
    E("    s_branch conv_le")
    E("conv_l1:")
    conv_loop([("X", d) for d in range(24, 32, 2)] + [("Y", d) for d in range(32, 64, 4)], 0)
    E("    s_nop 15")
    E("    s_nop 3")
    for j in range(16):
        E(f"    v_add_f32 v{ACC+16+j}, v{ACC+16+j}, v{ACC+32+j}")
    E("conv_le:")
    stamp(6)
    if CX == 6:
        E("    s_waitcnt vmcnt(0)")
        E("    s_endpgm")
    E("    s_barrier")
    E("    v_lshlrev_b32 v13, 4, v1")
    E("    v_add_u32 v13, s35, v13")
    E("    s_lshl_b32 s36, s32, 12")
    E("    v_add_u32 v14, s36, v13")
    E("    s_xor_b32 s36, s36, 4096")
    E("    v_add_u32 v13, s36, v13")
    E("    s_nop 7")
    E("    s_cmp_eq_u32 s32, 0")
    E("    s_cbranch_scc1 conv_hw0")
    for jq in range(4):
        E(f"    ds_write_b128 v13, v[{ACC+4*jq}:{ACC+4*jq+3}] offset:{1024*jq}")
    for j in range(16):
        E(f"    v_mov_b32 v{64+j}, v{ACC+16+j}")
    E("    s_branch conv_x")
    E("conv_hw0:")
    for jq in range(4):
        E(f"    ds_write_b128 v13, v[{ACC+16+4*jq}:{ACC+16+4*jq+3}] offset:{1024*jq}")
    for j in range(16):
        E(f"    v_mov_b32 v{64+j}, v{ACC+j}")
    E("conv_x:")
    E("    s_waitcnt lgkmcnt(0)")
    E("    s_barrier")
    for jq in range(4):
        E(f"    ds_read_b128 v[{80+4*jq}:{80+4*jq+3}], v14 offset:{1024*jq}")
    E("    v_sub_u32 v5, 63, v3")
    E(f"    v_mul_u32_u24 v5, {KVP}, v5")
    E("    v_lshlrev_b32 v6, 3, v4")
    E("    v_sub_u32 v5, v5, v6")
    E(f"    s_mul_i32 s36, s32, {32*KVP}")
    E(f"    s_sub_u32 s36, {KV_OFF + 8}, s36")
    E("    s_add_u32 s36, s36, s35")
    E("    v_add_u32 v5, s36, v5")
    for jq in range(4):
        E(f"    ds_read_b64 v[{96+2*jq}:{96+2*jq+1}], v5 offset:{16*(3-jq)}")
    E("    v_lshlrev_b32 v6, 6, v3")
    E("    v_lshl_add_u32 v6, v4, 3, v6")
    E("    s_mul_i32 s36, s3, 20480")
    E("    v_add_u32 v6, s36, v6")
    E("    v_lshlrev_b32 v7, 4, v1")
    E("    v_add_u32 v8, s36, v7")
    E("    s_lshl_b32 s37, s32, 11")
    E("    v_lshlrev_b32 v9, 16, v9")
    E("    s_waitcnt lgkmcnt(0)")
    E("    s_barrier")
    for j in range(16):
        E(f"    v_add_f32 v{64+j}, v{64+j}, v{80+j}")
    vm.q = ["pf", "pf"]
    for jq in range(4):
        k0, k1, k2, k3 = 104, 105, 106, 107
        E(f"    v_and_b32 v{k0}, s40, v{97+2*jq}")
        E(f"    v_lshlrev_b32 v{k1}, 16, v{97+2*jq}")
        E(f"    v_and_b32 v{k2}, s40, v{96+2*jq}")
        E(f"    v_lshlrev_b32 v{k3}, 16, v{96+2*jq}")
        for kk in (k0, k1, k2, k3):
            E(f"    v_mul_f32 v{kk}, v{kk}, v9")
        round_pair(k0, k1, 108, 40)
        round_pair(k2, k3, 108, 40)
        y = 64 + 4 * jq
        round_pair(y, y + 1, 108, 40)
        round_pair(y + 2, y + 3, 108, 40)
        for e_, kk in enumerate((k0, k1, k2, k3)):
            E(f"    v_add_f32 v{y+e_}, v{y+e_}, v{kk}")
        E(f"    v_cvt_pk_bf16_f32 v{110+2*jq}, v{y}, v{y+1}")
        E(f"    v_cvt_pk_bf16_f32 v{111+2*jq}, v{y+2}, v{y+3}")
        E(f"    ds_write_b64 v6, v[{110+2*jq}:{111+2*jq}] offset:{16*jq}")
    E("    s_waitcnt lgkmcnt(0)")
    E("    ds_read_b128 v[104:107], v8")
    E("    ds_read_b128 v[108:111], v8 offset:1024")
    E("    s_waitcnt lgkmcnt(1)")
    E("    buffer_store_dwordx4 v[104:107], v7, s[24:27], s37 offen sc0 sc1")
    E("    s_waitcnt lgkmcnt(0)")
    E("    buffer_store_dwordx4 v[108:111], v7, s[24:27], s37 offen offset:1024 sc0 sc1")
    vm.issue("yst")
    vm.issue("yst")
    stamp(7, vm)
    E("    s_lshl_b32 s36, s32, 12")
    E("    s_lshl_b32 s37, s30, 3")
    E("    s_add_u32 s47, s36, s37")
    E(f"    s_add_u32 s47, s47, {FY_OFF}")
    E("    s_waitcnt vmcnt(0)")
    flag_store(vm, "s47")
    stamp(8)
    if RP == -3:
        E("    s_endpgm")
        return
    E("    s_cmp_lg_u32 s28, 0")
    E("    s_cbranch_scc1 k_done")
    if RP == -2:
        E("    v_mov_b32 v13, v246")
        E("    buffer_load_dwordx4 v[104:107], v13, s[12:15], s48 offen sc0 sc1")
        E("    buffer_load_dwordx4 v[108:111], v13, s[12:15], s43 offen sc0 sc1")
        E("    s_waitcnt vmcnt(0)")
        slow_stores()
        E("    s_waitcnt vmcnt(0)")
    flag_store(vm, "s49")
    E("    s_endpgm")


def gen_phase_c():
    vm = VM()
    vm.q = ["hst"] + (["stamp"] if DIAG else []) + [("w", i) for i in range(NPRE, 10) for _ in range(2)]
    if WLATE:
        vm.q = [("w", i) for i in range(NPRE, 10) for _ in range(2)] + ["flag"] + (["stamp"] if DIAG else [])
    WT = 48
    XT = 64
    NT = 72
    ACC = 88
    HB0 = [152 + 8 * j for j in range(8)] + [80]
    NH = int(os.environ.get("NH", "9"))
    NK = 22
    YSLOT = 0
    RSL = 2
    global VL8
    VL8_saved = VL8
    VL8 = 15
    E("phase_c:")
    E(f"    v_lshlrev_b32 v15, {3+FSH}, v1")
    if MAP:
        E("    s_mov_b32 s30, s4")
    else:
        E("    s_lshl_b32 s30, s30, 1")
        E("    s_lshr_b32 s35, s31, 3")
        E("    s_add_u32 s30, s30, s35")
    E("    s_and_b32 s31, s33, 7")
    E("    s_and_b32 s32, s3, 1")
    E("    s_lshr_b32 s33, s3, 1")
    E("    v_and_b32 v9, 31, v1")
    E("    v_lshlrev_b32 v13, 10, v9")
    E("    v_lshl_add_u32 v13, v3, 3, v13")
    E("    s_lshl_b32 s35, s30, 1")
    E("    s_add_u32 s35, s35, s32")
    E("    s_lshl_b32 s36, s35, 15")
    E("    s_lshl_b32 s38, s31, 7")
    E("    s_add_u32 s36, s36, s38")
    E("    s_lshl_b32 s38, s33, 6")
    E("    s_add_u32 s36, s36, s38")
    E("    v_add_u32 v13, s36, v13")
    for q in range(4):
        E(f"    buffer_load_dwordx2 v[{XT+2*q}:{XT+2*q+1}], v13, s[16:19], 0 offen offset:{16*q}")
        vm.issue("x")
    srd_off(20, 88, 89, WS_H, H_BYTES)
    srd_off(44, 88, 89, WS_YT, S * D * 2)
    srd(52, 84, 85, S * D * 2)
    E("    s_lshr_b32 s49, s30, 4")
    E("    s_lshl_b32 s49, s49, 12")
    E("    s_lshl_b32 s38, s31, 9")
    E("    s_add_u32 s49, s49, s38")
    E("    s_lshl_b32 s38, s33, 8")
    E("    s_add_u32 s49, s49, s38")
    E(f"    s_add_u32 s49, s49, {FY_OFF}")
    E("    v_lshrrev_b32 v0, 2, v1")
    E("    v_lshlrev_b32 v0, 12, v0")
    E("    v_and_b32 v7, 3, v1")
    E("    v_lshl_add_u32 v0, v7, 4, v0")
    E("    s_lshl_b32 s38, s31, 1")
    E("    s_add_u32 s38, s38, s33")
    E("    s_lshl_b32 s38, s38, 17")
    E("    s_lshl_b32 s48, s35, 6")
    E("    s_add_u32 s48, s48, s38")
    E("    v_lshrrev_b32 v7, 2, v5")
    E("    v_lshl_add_u32 v7, v3, 2, v7")
    E("    v_lshlrev_b32 v14, 6, v7")
    E("    v_bfe_u32 v7, v1, 4, 1")
    E("    v_lshl_add_u32 v14, v7, 5, v14")
    E("    v_and_b32 v7, 3, v5")
    E("    v_lshl_add_u32 v14, v7, 3, v14")
    E("    v_add_u32 v14, s37, v14")
    E(f"    s_mul_i32 s42, s30, {2*HB}")
    E("    s_lshl_b32 s38, s51, 10")
    E("    s_add_u32 s42, s42, s38")
    E(f"    s_add_u32 s43, s42, {HB}")
    E("    s_lshl_b32 s36, s30, 8")
    E(f"    s_add_u32 s36, s36, {FH_OFF}")
    masks = []
    for lo, hi in (((0, 3), (4, 7), (8, 11), (11, 15)) if MAP == 2 else ((0, 3), (3, 7), (7, 10), (10, 15))):
        m16 = ((1 << (hi + 1)) - 1) & ~((1 << lo) - 1)
        masks.append(m16 | (m16 << 16))
    E(f"    s_mov_b32 s50, {masks[0]:#x}")
    for w in range(1, 4):
        E(f"    s_cmp_eq_u32 s3, {w}")
        E(f"    s_cselect_b32 s50, {masks[w]:#x}, s50")
    E("    s_mov_b32 s51, 0")
    E("    s_mul_i32 s38, s31, 44")
    E("    v_add_u32 v6, s38, v1")
    E("    v_cmp_le_u32 vcc, 176, v6")
    E("    v_subrev_u32 v7, 176, v6")
    E("    v_cndmask_b32 v6, v6, v7, vcc")
    E("    s_cmp_lt_u32 s3, 2")
    E("    s_cselect_b32 s38, 8, 0")
    E("    s_add_u32 s38, s38, 167")
    E("    v_min_u32 v6, s38, v6")
    E("    v_lshlrev_b32 v6, 7, v6")
    E(f"    v_mov_b32 v7, {HB}")
    E("    v_cndmask_b32 v7, 0, v7, vcc")
    E("    v_add_u32 v6, v6, v7")
    if not WLATE:
        vm.wait("hst")
        flag_store(vm, "s39")
        stamp(10, vm)
    E("    s_waitcnt lgkmcnt(0)")
    for i in range(10, 10 + NPRE):
        for f in wdma_ops(vm, i):
            f()
    vm.wait("x")
    T = ACC
    for d in range(8):
        E(f"    v_lshlrev_b32 v{T+2*d}, 16, v{XT+d}")
        E(f"    v_and_b32 v{T+2*d+1}, s40, v{XT+d}")
    for j in range(16):
        E(f"    v_add_f32 v{T+j}, v{T+j}, v{GR2}")
    for j in range(16):
        E(f"    v_cvt_pk_bf16_f32 v{T+j}, 0, v{T+j}")
    for j in range(16):
        E(f"    v_mul_f32 v{T+j}, v{T+j}, v{GR2+1}")
    for d in range(8):
        E(f"    v_cvt_pk_bf16_f32 v{NT+d}, v{T+2*d}, v{T+2*d+1}")
    stamp(11, vm)
    poll(vm, "s36", "s[50:51]")
    stampval(21, "s92", vm)
    stamp(12, vm)

    hreg = {}

    def hload(i, r):
        hreg[i] = r
        if i % 4 == 0 and i:
            E("    s_add_u32 s42, s42, 4096")
            E("    s_add_u32 s43, s43, 4096")
        off = (i % 4) * 1024
        if i == NK - 1:
            assert off == 1024
            E("    s_cmp_lt_u32 s3, 2")
            E("    s_cselect_b32 s38, 1024, 0")
            E("    s_add_u32 s42, s42, s38")
            E("    s_add_u32 s43, s43, s38")
            off = 0
        for e_ in range(2):
            E(f"    buffer_load_dwordx4 v[{r+4*e_}:{r+4*e_+3}], v8, s[20:23], s{42+e_} offen offset:{off}")
            vm.issue(("h", i))

    if int(os.environ.get("HT", "1")):
        E("    s_mov_b32 exec_hi, 0xfff")
        E("    buffer_load_dword v7, v6, s[20:23], s42 offen")
        E("    s_mov_b64 exec, -1")
        vm.issue("pf")
    for i in range(NH):
        hload(i, HB0[i])
    hn = NH

    def wsrc(i):
        return WREG[i] if i < NPRE else WT + 8 * (i % 2)

    def y_dma():
        for j in range(2):
            E(f"    s_add_u32 s38, s48, {16*4096*j}")
            E(f"    s_add_u32 m0, s37, {YSLOT*8192 + 1024*j}")
            E("    s_nop 0")
            E("    buffer_load_dwordx4 v0, s[44:47], s38 offen lds")

    FYC = int(os.environ.get("FYC", "14"))
    for i in range(NK):
        if i == NK - 1:
            E("    s_cmp_ge_u32 s3, 2")
            E("    s_cbranch_scc1 pc_skip")
        vm.wait(("h", i))
        if i in (0, 4, 8):
            stamp({0: 2, 4: 29, 8: 30}[i], vm)
        if i >= NPRE:
            E("    s_waitcnt lgkmcnt(0)")
        if NPRE <= i + 1 < NK:
            vm.wait(("w", i + 1))
            wread(WT + 8 * ((i + 1) % 2), wslot(i + 1))
        h = hreg[i]
        w = wsrc(i)
        for wd in range(2):
            for wm in range(2):
                a = ACC + 16 * (2 * wd + wm)
                c = "0" if i == 0 else f"v[{a}:{a+15}]"
                E(f"    v_mfma_f32_32x32x16_bf16 v[{a}:{a+15}], v[{w+4*wd}:{w+4*wd+3}], v[{h+4*wm}:{h+4*wm+3}], {c}")
        for r in [h] + ([w] if i < NPRE else []):
            if hn < NK:
                hload(hn, r)
                hn += 1
        if NPRE <= i < 10:
            for f in wdma_ops(vm, i + 10):
                f()
        if i in (11, 12):
            for f in wdma_ops(vm, i + 9):
                f()
        if i == FYI:
            E(f"    s_lshl_b32 s93, s49, {FSH}")
            E("    s_mov_b32 exec_hi, 0")
            E(f"    buffer_load_dwordx2 v[{PA}:{PA+1}], v{VL8}, s[56:59], s93 offen sc0 sc1")
            E("    s_mov_b64 exec, -1")
            vm.issue("fy")
        if i == FYC:
            vm.wait("fy")
            E("    s_mov_b32 exec_hi, 0")
            E(f"    v_cmp_ne_u64 vcc, s[90:91], v[{PA}:{PA+1}]")
            E("    s_mov_b64 exec, -1")
            E("    s_cmp_eq_u64 vcc, 0")
            E("    s_cselect_b32 s28, 1, 0")
            E("    s_cbranch_scc0 fy_no")
            y_dma()
            E("fy_no:")
            stamp(14, vm)
    E("pc_skip:")
    stamp(13)
    E("    s_waitcnt vmcnt(0) lgkmcnt(0)")
    E("    v_add_u32 v6, s37, v8")
    E(f"    v_add_u32 v6, {RSL*8192}, v6")
    E("    s_lshl_b32 s36, s3, 14")
    E(f"    s_add_u32 s36, s36, {RSL*8192}")
    E("    v_add_u32 v7, s36, v8")
    YR = 32
    PS = 152
    RS = 216
    TT = 232

    def y_read():
        for q in range(4):
            E(f"    ds_read_b64_tr_b16 v[{YR+2*q}:{YR+2*q+1}], v14 offset:{YSLOT*8192 + q*512}")

    def acc_out():
        for q in range(4):
            for jq in range(4):
                a = ACC + 16 * q + 4 * jq
                E(f"    ds_write_b128 v6, v[{a}:{a+3}] offset:{(2*q + jq//2)*8192 + (jq%2)*1024}")
        E("    s_waitcnt lgkmcnt(0)")
        E("    s_barrier")
        for w in range(4):
            for jq in range(4):
                r = PS + 16 * w + 4 * jq
                E(f"    ds_read_b128 v[{r}:{r+3}], v7 offset:{(jq//2)*8192 + w*2048 + (jq%2)*1024}")

    def a_term():
        for q in range(4):
            t = TT
            xs = [RS + 4 * q + e_ for e_ in range(4)]
            ns = [t + e_ for e_ in range(4)]
            ys = [t + 4 + e_ for e_ in range(4)]
            for (dst, src) in ((xs, XT + 2 * q), (ns, NT + 2 * q), (ys, YR + 2 * q)):
                E(f"    v_lshlrev_b32 v{dst[0]}, 16, v{src}")
                E(f"    v_and_b32 v{dst[1]}, s40, v{src}")
                E(f"    v_lshlrev_b32 v{dst[2]}, 16, v{src+1}")
                E(f"    v_and_b32 v{dst[3]}, s40, v{src+1}")
            for e_ in (0, 2):
                E(f"    v_pk_mul_f32 v[{ns[e_]}:{ns[e_]+1}], v[{ns[e_]}:{ns[e_]+1}], v[{ys[e_]}:{ys[e_]+1}]")
            for e_ in range(4):
                E(f"    v_cvt_pk_bf16_f32 v{ns[e_]}, 0, v{ns[e_]}")
            for e_ in (0, 2):
                E(f"    v_pk_add_f32 v[{xs[e_]}:{xs[e_]+1}], v[{xs[e_]}:{xs[e_]+1}], v[{ns[e_]}:{ns[e_]+1}]")
            for e_ in range(4):
                E(f"    v_cvt_pk_bf16_f32 v{xs[e_]}, 0, v{xs[e_]}")

    def b_sum():
        E("    s_waitcnt lgkmcnt(8)")
        for j in range(0, 16, 2):
            E(f"    v_pk_add_f32 v[{PS+j}:{PS+j+1}], v[{PS+j}:{PS+j+1}], v[{PS+16+j}:{PS+16+j+1}]")
        E("    s_waitcnt lgkmcnt(0)")
        for j in range(0, 16, 2):
            E(f"    v_pk_add_f32 v[{PS+32+j}:{PS+32+j+1}], v[{PS+32+j}:{PS+32+j+1}], v[{PS+48+j}:{PS+48+j+1}]")
        for j in range(0, 16, 2):
            E(f"    v_pk_add_f32 v[{PS+j}:{PS+j+1}], v[{PS+j}:{PS+j+1}], v[{PS+32+j}:{PS+32+j+1}]")
        for j in range(16):
            E(f"    v_cvt_pk_bf16_f32 v{PS+j}, 0, v{PS+j}")

    E("    s_cmp_eq_u32 s28, 0")
    E("    s_cbranch_scc1 fin_slow")
    y_read()
    E("    s_nop 7")
    acc_out()
    a_term()
    b_sum()
    E("    s_branch fin_out")
    E("fin_slow:")
    E("    s_nop 7")
    acc_out()
    b_sum()
    if 'g' not in os.environ.get('XP', '') and not CX:
        poll(vm, "s49", "0xffffffff")
    stamp(15)
    y_dma()
    E("    s_waitcnt vmcnt(0)")
    y_read()
    E("    s_waitcnt lgkmcnt(0)")
    a_term()
    E("fin_out:")
    for jq in range(4):
        a = PS + 4 * jq
        xs = [RS + 4 * jq + e_ for e_ in range(4)]
        for e_ in (0, 2):
            E(f"    v_pk_add_f32 v[{xs[e_]}:{xs[e_]+1}], v[{xs[e_]}:{xs[e_]+1}], v[{a+e_}:{a+e_+1}]")
        o = TT + 2 * jq
        E(f"    v_cvt_pk_bf16_f32 v{o}, v{xs[0]}, v{xs[1]}")
        E(f"    v_cvt_pk_bf16_f32 v{o+1}, v{xs[2]}, v{xs[3]}")
        E(f"    buffer_store_dwordx2 v[{o}:{o+1}], v13, s[52:55], 0 offen offset:{16*jq}")
    if DIAG:
        E("    s_waitcnt vmcnt(0)")
    stamp(31)
    E("    s_endpgm")
    VL8 = VL8_saved


def gen_kernel():
    E(f".globl {KNAME}")
    E(".p2align 8")
    E(f".type {KNAME},@function")
    E(f"{KNAME}:")
    E("    s_cmp_ge_u32 s2, 512")
    E("    s_cbranch_scc1 k_done")
    E("    s_load_dwordx16 s[64:79], s[0:1], 0")
    E("    s_load_dwordx8 s[80:87], s[0:1], 64")
    E("    s_load_dwordx2 s[88:89], s[0:1], 96")
    E("    s_memrealtime s[90:91]")
    E("    s_mov_b32 s40, 0xffff0000")
    E("    v_and_b32 v1, 63, v0")
    E("    v_lshrrev_b32 v2, 6, v0")
    E(f"    v_lshlrev_b32 v{VL8}, {3+FSH}, v1")
    E("    v_readfirstlane_b32 s3, v2")
    E("    s_waitcnt lgkmcnt(0)")
    stamp_init()
    stamp(0)
    srd_off(56, 88, 89, WS_FLAG, FLAG_BYTES)
    srd(60, 86, 87, 256)
    E("    s_cmp_lt_u32 s2, 256" if CFIRST else "    s_cmp_ge_u32 s2, 256")
    E("    s_cbranch_scc1 c_type")
    gen_gtype()
    gen_ctype()
    E("k_done:")
    E("    s_endpgm")


def main():
    hdr = open("parallel_sum__ssm_conv_h3__glu_gated_bilinear__prompt.s.ref").read().splitlines()
    for l in hdr:
        if l.startswith("; Override") or l.startswith("; grid=") or l.startswith("; @launch"):
            continue
        if not l.startswith(";"):
            break
        E(l)
    E(f"; @launch grid=(512,1,1) block=(256,1,1) lds={LDS_BYTES}")
    E('.amdgcn_target "amdgcn-amd-amdhsa--gfx950"')
    E(".text")
    gen_kernel()
    E('.section .rodata,"a"')
    E(".p2align 6")
    E(f".amdhsa_kernel {KNAME}")
    E("  .amdhsa_next_free_vgpr 256")
    E("  .amdhsa_next_free_sgpr 102")
    E("  .amdhsa_accum_offset 256")
    E("  .amdhsa_group_segment_fixed_size 0")
    E("  .amdhsa_kernarg_size 104")
    E("  .amdhsa_user_sgpr_count 2")
    E("  .amdhsa_user_sgpr_kernarg_segment_ptr 1")
    E("  .amdhsa_system_sgpr_workgroup_id_x 1")
    E(".end_amdhsa_kernel")
    path = sys.argv[1] if len(sys.argv) > 1 else "fused.s"
    open(path, "w").write("\n".join(out) + "\n")
    print("wrote", path, len(out), "lines")


main()
```

```python
import sys, os

S, D, F = 2048, 512, 1376
WS_XN = 0x000000
WS_KVR = 0x200000
WS_H = 0x400000
WS_YT = 0xA00000
WS_FLAG = 0xC00000
WS_KVA = 0xE00000
FX_OFF = 0x0000
FK_OFF = 0x2000
FH_OFF = 0x4000
FY_OFF = 0x6000
FSH = int(os.environ.get("FSH", "4"))
FG_OFF = 0x8000
FLAG_BYTES = 0x9000 << FSH
HS = int(os.environ.get("HS", "10"))
HB = 86 * 1024
H_BYTES = 64 * HB
KNAME = "parallel_sum__ssm_conv_h3__glu_gated_bilinear__prompt_kernel"
POLL_LIMIT = 200000

out = []


def E(s=""):
    out.append(s)


class VM:
    def __init__(self):
        self.q = []

    def issue(self, tag):
        self.q.append(tag)

    def wait(self, tag):
        idx = -1
        for i, t in enumerate(self.q):
            if t == tag:
                idx = i
        if idx < 0:
            return
        n = len(self.q) - 1 - idx
        assert n <= 63, n
        E(f"    s_waitcnt vmcnt({n})")
        self.q = self.q[idx + 1:]

    def wait_all(self):
        E("    s_waitcnt vmcnt(0)")
        self.q = []


DIAG = len(sys.argv) > 2 and sys.argv[2] == "diag"
STAMP_WS = 0x2000000


def stamp_init():
    if not DIAG:
        return
    E(f"    s_add_u32 s96, s88, {STAMP_WS}")
    E("    s_addc_u32 s97, s89, 0")
    E("    s_and_b32 s97, s97, 0xffff")
    E("    s_mov_b32 s98, 0x80000")
    E("    s_mov_b32 s99, 0x00020000")
    E("    s_lshl_b32 s100, s2, 2")
    E("    s_add_u32 s100, s100, s3")
    E("    s_lshl_b32 s100, s100, 7")
    E("    v_mov_b32 v254, s100")


def stamp(slot, vm=None):
    if not DIAG:
        return
    E("    s_waitcnt lgkmcnt(0)")
    E("    s_memrealtime s[100:101]")
    E("    s_waitcnt lgkmcnt(0)")
    E("    v_mov_b32 v255, s100")
    E("    s_mov_b64 s[94:95], exec")
    E("    s_mov_b64 exec, 1")
    E(f"    buffer_store_dword v255, v254, s[96:99], 0 offen offset:{4*slot}")
    E("    s_mov_b64 exec, s[94:95]")
    if vm is not None:
        vm.issue("stamp")


def stampclk(slot, vm=None):
    if not DIAG:
        return
    E("    s_waitcnt lgkmcnt(0)")
    E("    s_memtime s[100:101]")
    E("    s_waitcnt lgkmcnt(0)")
    stampval(slot, "s100", vm)


def stampval(slot, sg, vm=None):
    if not DIAG:
        return
    E(f"    v_mov_b32 v255, {sg}")
    E("    s_mov_b64 s[94:95], exec")
    E("    s_mov_b64 exec, 1")
    E(f"    buffer_store_dword v255, v254, s[96:99], 0 offen offset:{4*slot}")
    E("    s_mov_b64 exec, s[94:95]")
    if vm is not None:
        vm.issue("stamp")


def srd(dst, lo, hi, nbytes):
    E(f"    s_mov_b32 s{dst}, s{lo}")
    E(f"    s_and_b32 s{dst+1}, s{hi}, 0xffff")
    E(f"    s_mov_b32 s{dst+2}, {nbytes}")
    E(f"    s_mov_b32 s{dst+3}, 0x00020000")


def srd_off(dst, lo, hi, off, nbytes):
    E(f"    s_add_u32 s{dst}, s{lo}, {off}")
    E(f"    s_addc_u32 s{dst+1}, s{hi}, 0")
    E(f"    s_and_b32 s{dst+1}, s{dst+1}, 0xffff")
    E(f"    s_mov_b32 s{dst+2}, {nbytes}")
    E(f"    s_mov_b32 s{dst+3}, 0x00020000")


def wave_reduce_add(v, t):
    E("    s_nop 1")
    E(f"    v_add_f32_dpp v{t}, v{v}, v{v} quad_perm:[1,0,3,2] row_mask:0xf bank_mask:0xf")
    E("    s_nop 1")
    E(f"    v_add_f32_dpp v{v}, v{t}, v{t} quad_perm:[2,3,0,1] row_mask:0xf bank_mask:0xf")
    E("    s_nop 1")
    E(f"    v_add_f32_dpp v{t}, v{v}, v{v} row_half_mirror row_mask:0xf bank_mask:0xf")
    E("    s_nop 1")
    E(f"    v_add_f32_dpp v{v}, v{t}, v{t} row_mirror row_mask:0xf bank_mask:0xf")
    E(f"    v_mov_b32 v{t}, v{v}")
    E("    s_nop 1")
    E(f"    v_permlane16_swap_b32 v{v}, v{t}")
    E("    s_nop 1")
    E(f"    v_add_f32 v{v}, v{v}, v{t}")
    E(f"    v_mov_b32 v{t}, v{v}")
    E("    s_nop 1")
    E(f"    v_permlane32_swap_b32 v{v}, v{t}")
    E("    s_nop 1")
    E(f"    v_add_f32 v{v}, v{v}, v{t}")


def round_pair(a, b, t, mask_sgpr):
    E(f"    v_cvt_pk_bf16_f32 v{t}, v{a}, v{b}")
    E(f"    v_lshlrev_b32 v{a}, 16, v{t}")
    E(f"    v_and_b32 v{b}, s{mask_sgpr}, v{t}")


PA, PB, TK, VL8 = 248, 250, 252, 247
_lbl = [0]


def token_issue(vm):
    E(f"    buffer_load_dwordx2 v[{TK}:{TK+1}], off, s[60:63], 0")
    vm.issue("tok")


def token_get(vm):
    _lbl[0] += 1
    n = _lbl[0]
    vm.wait("tok")
    E(f"    s_mov_b32 s92, {POLL_LIMIT}")
    E(f"tok_l{n}:")
    E(f"    v_readfirstlane_b32 s90, v{TK}")
    E(f"    v_readfirstlane_b32 s91, v{TK+1}")
    E("    s_cmp_lg_u32 s90, 0")
    E(f"    s_cbranch_scc1 tok_d{n}")
    E(f"    buffer_load_dwordx2 v[{TK}:{TK+1}], off, s[60:63], 0 sc0 sc1")
    E("    s_waitcnt vmcnt(0)")
    E("    s_sub_u32 s92, s92, 1")
    E("    s_cmp_lg_u32 s92, 0")
    E(f"    s_cbranch_scc1 tok_l{n}")
    E(f"tok_d{n}:")


def flag_store(vm, soff):
    E(f"    s_lshl_b32 s93, {soff}, {FSH}")
    E("    s_mov_b64 exec, 1")
    E(f"    buffer_store_dwordx2 v[{TK}:{TK+1}], off, s[56:59], s93 sc0 sc1")
    E("    s_mov_b64 exec, -1")
    vm.issue("flag")


POLL_SLEEP = int(os.environ.get("PS", "4"))


def poll(vm, soff, mask, gap=6):
    _lbl[0] += 1
    n = _lbl[0]
    if mask == "0xffffffff":
        E("    s_mov_b32 exec_hi, 0")
    else:
        E(f"    s_mov_b64 exec, {mask}")
    E(f"    s_mov_b32 s92, {POLL_LIMIT}")
    E(f"    s_lshl_b32 s93, {soff}, {FSH}")
    E(f"poll_l{n}:")
    E(f"    buffer_load_dwordx2 v[{PA}:{PA+1}], v{VL8}, s[56:59], s93 offen sc0 sc1")
    E("    s_waitcnt vmcnt(0)")
    E(f"    v_cmp_ne_u64 vcc, s[90:91], v[{PA}:{PA+1}]")
    E("    s_cmp_eq_u64 vcc, 0")
    E(f"    s_cbranch_scc1 poll_d{n}")
    E("    s_mov_b64 exec, vcc")
    E(f"    s_sleep {POLL_SLEEP}")
    E("    s_sub_u32 s92, s92, 1")
    E("    s_cmp_lg_u32 s92, 0")
    E(f"    s_cbranch_scc1 poll_l{n}")
    E(f"poll_d{n}:")
    E("    s_mov_b64 exec, -1")
    vm.q = []


TG = int(os.environ.get("TG", "128"))


def w_touch(vm, lo, hi, sr, vt):
    srd(44, lo, hi, D * F * 2)
    E(f"    s_lshl_b32 s38, {sr}, 2")
    E("    s_add_u32 s38, s38, s3")
    E("    s_mul_i32 s38, s38, 4*2752")
    sh = 4 if TG == 128 else 5
    E(f"    v_lshrrev_b32 v{vt}, {sh}, v1")
    E(f"    v_mul_u32_u24 v{vt}, 2752, v{vt}")
    E(f"    v_and_b32 v{vt+1}, {(1 << sh) - 1}, v1")
    E(f"    v_min_u32 v{vt+1}, {12 if TG == 128 else 24}, v{vt+1}")
    E(f"    v_lshlrev_b32 v{vt+1}, {7 if TG == 128 else 6}, v{vt+1}")
    E("    s_and_b32 s93, s2, 1")
    E("    s_mul_i32 s93, s93, 1536")
    E(f"    v_add_u32 v{vt+1}, s93, v{vt+1}")
    E(f"    v_min_u32 v{vt+1}, 2750, v{vt+1}")
    E(f"    v_add_u32 v{vt}, v{vt}, v{vt+1}")
    E(f"    buffer_load_ushort v{vt+1}, v{vt}, s[44:47], s38 offen")
    vm.issue("pf")
    if TG == 64:
        E("    s_add_u32 s38, s38, 2*2752")
        E(f"    buffer_load_ushort v{vt+1}, v{vt}, s[44:47], s38 offen")
        vm.issue("pf")


WS_ST = 0x000000
S_ONE = 6
GPRIO = int(os.environ.get("GPRIO", "3"))
GPRIO2 = int(os.environ.get("GPRIO2", "3"))
CPRIO = int(os.environ.get("CPRIO", "1"))
KFL = int(os.environ.get("KFL", "1"))
ROT = int(os.environ.get("ROT", "1"))
CPRIO2 = int(os.environ.get("CPRIO2", "0"))
TOUCH = os.environ.get("TOUCH", "none")
CFIRST = int(os.environ.get("CFIRST", "0"))
WD_AT = os.environ.get("WD_AT", "g")
WDK = int(os.environ.get("WDK", "30"))
NBI = int(os.environ.get("NBI", "9"))
PUBK = int(os.environ.get("PUBK", "6"))
GRC = int(os.environ.get("GRC", "30"))
GRK = int(os.environ.get("GRK", "24"))
FYI = int(os.environ.get("FYI", "6"))
WLATE = int(os.environ.get("WLATE", "0"))
WDK2 = int(os.environ.get("WDK2", os.environ.get("WDK", "30")))
CX = int(os.environ.get("CX", "0"))
RP = int(os.environ.get("RP", "-3"))
MAP = int(os.environ.get("MAP", "2"))
HELP = int(os.environ.get("HELP", "0"))
HI = 40960
GR1, XA, WA, CA, WDV, XDV, DDV, GRV, GR2 = 4, 9, 11, 12, 21, 24, 26, 27, 28
WF, XF, GACC, CS, SEL, CT, PUB = 32, 80, 88, 184, 196, 200, 212
WREG = [216, 224, 232, 240, 32, 40]
NPRE = 6
XROW = 6


def la(reg, off):
    if off >= HI:
        return f"v{reg+6} offset:{off-HI}"
    return f"v{reg} offset:{off}"


def wslot(i):
    if i < 10:
        return i
    if i < 20:
        return i - 10
    return i - 19


def wdma_ops(vm, i):
    ops = []
    for j in range(2):
        def f(j=j):
            E(f"    s_add_u32 s38, s41, {(16*i + 8*j)*1024}")
            E(f"    s_add_u32 m0, s37, {wslot(i)*8192 + j*1024}")
            E("    s_nop 0")
            E(f"    buffer_load_dwordx4 v{DDV}, s[8:11], s38 offen lds")
            vm.issue(("w", i))
        ops.append(f)
    return ops


def wread(dst, slot):
    for wd in range(2):
        r = dst + 4 * wd
        E(f"    ds_read_b64_tr_b16 v[{r}:{r+1}], {la(11+wd, slot*8192)}")
        E(f"    ds_read_b64_tr_b16 v[{r+2}:{r+3}], {la(11+wd, slot*8192+512)}")


def gen_gtype_path(nt, vm0):
    vm = VM()
    vm.q = list(vm0.q)
    ACC = GACC
    P = 64 * nt
    CH = 16 * P + 2048
    STG = 4 * CH
    NB = LDS_BYTES // STG
    nst = 16
    n = 2 * nt
    NCS = n // 2

    def buf(st):
        return st % NB if nt == 3 else (st + 4) % NB

    def dma_ops(st):
        ops = []
        for i in range(nt):
            def f(i=i):
                if i == 0:
                    if st:
                        E(f"    s_add_u32 s48, s48, {32*2752}")
                        E("    s_cmp_ge_u32 s48, s49")
                        E(f"    s_cselect_b32 s38, {16*32*2752}, 0")
                        E("    s_sub_u32 s48, s48, s38")
                    E(f"    s_add_u32 m0, s43, {buf(st)*STG}")
                    E("    s_nop 0")
                E(f"    buffer_load_dwordx4 v{WDV+i}, s[52:55], s48 offen offset:{1024*i} lds")
                vm.issue(("dma", st))
            ops.append(f)
        xo = []
        for a in range(2):
            def f(a=a):
                if a == 0:
                    if st:
                        E("    s_add_u32 s32, s32, 64")
                        E("    s_bitset0_b32 s32, 10")
                    E(f"    s_add_u32 m0, s43, {buf(st)*STG + 16*P}")
                    E("    s_nop 0")
                E(f"    buffer_load_dwordx4 v{XDV+a}, s[16:19], s32 offen offset:{1024*a} lds")
                vm.issue(("dma", st))
            xo.append(f)
        return xo + ops

    E(f"    s_mul_i32 s43, s3, {CH}")
    d0 = dma_ops(0)
    d0[0]()
    d0[1]()
    E("    s_lshr_b32 s49, s3, 1")
    E("    s_cmp_eq_u32 s49, 1")
    E("    s_cselect_b32 s52, s80, s78")
    E("    s_cselect_b32 s53, s81, s79")
    E("    s_and_b32 s53, s53, 0xffff")
    E(f"    s_mov_b32 s54, {D*F*2}")
    E("    s_mov_b32 s55, 0x00020000")
    E("    s_and_b32 s49, s3, 1")
    E("    s_mul_i32 s48, s49, 16*2752")
    E("    s_add_u32 s48, s48, s36")
    E("    s_movk_i32 s49, 2752")
    for i in range(nt):
        E(f"    v_add_u32 v14, {64*i}, v1")
        if nt == 3:
            E("    v_mul_u32_u24 v15, 0x5556, v14")
            E("    v_lshrrev_b32 v15, 18, v15")
            E("    v_mul_u32_u24 v20, 12, v15")
        else:
            E("    v_lshrrev_b32 v15, 3, v14")
            E("    v_lshlrev_b32 v20, 3, v15")
        E("    v_sub_u32 v14, v14, v20")
        E("    v_mul_lo_u32 v15, v15, s49")
        E(f"    v_lshl_add_u32 v{WDV+i}, v14, 4, v15")
        if i:
            E(f"    v_subrev_u32 v{WDV+i}, {1024*i}, v{WDV+i}")
    E(f"    s_add_u32 s49, s48, {16*32*2752}")
    E(f"    s_mul_i32 s38, s29, {32*2752}")
    E("    s_add_u32 s48, s48, s38")
    for f in d0[2:]:
        f()
    nxt_st = 1
    while nxt_st < min(NB, NBI):
        for f in dma_ops(nxt_st):
            f()
        nxt_st += 1
    E("    v_lshrrev_b32 v13, 5, v1")
    E("    v_and_b32 v14, 15, v1")
    E("    v_lshrrev_b32 v15, 2, v14")
    E("    v_lshl_add_u32 v15, v13, 3, v15")
    E(f"    v_mul_u32_u24 v{WA}, {P}, v15")
    E("    v_bfe_u32 v15, v1, 4, 1")
    E(f"    v_lshl_add_u32 v{WA}, v15, 5, v{WA}")
    E("    v_and_b32 v15, 3, v14")
    E(f"    v_lshl_add_u32 v{WA}, v15, 3, v{WA}")
    E("    v_and_b32 v14, 31, v1")
    E("    v_bfe_u32 v15, v1, 2, 2")
    E("    v_xor_b32 v15, v15, v13")
    E("    v_lshlrev_b32 v15, 4, v15")
    E("    v_lshl_add_u32 v15, v14, 6, v15")
    E(f"    s_add_u32 s38, s43, {16*P}")
    E(f"    v_add_u32 v{XA}, s38, v15")
    E(f"    v_xor_b32 v{XA+1}, 32, v{XA}")
    E(f"    v_lshlrev_b32 v{GRV}, 4, v14")

    def woff(ks, mt):
        return (2 * (mt // nt) + ks) * CH + (mt % nt) * 64

    for j in range(NCS):
        offs = [woff((w + 4 * j) // n, (w + 4 * j) % n) for w in range(4)]
        E(f"    s_mov_b32 s38, {offs[0]}")
        for w in range(1, 4):
            E(f"    s_cmp_eq_u32 s3, {w}")
            E(f"    s_cselect_b32 s38, {offs[w]}, s38")
        E(f"    v_add_u32 v{CA+j}, s38, v{WA}")
    for r_ in range(XA, CA + NCS):
        E(f"    v_add_u32 v{r_+6}, {HI}, v{r_}")
    E("    v_lshrrev_b32 v2, 2, v1")
    E("    v_lshrrev_b32 v3, 4, v1")
    E("    v_xor_b32 v2, v2, v3")
    E("    v_and_b32 v2, 1, v2")
    E("    v_cmp_eq_u32 vcc, 0, v2")
    E(f"    v_mov_b32 v3, s{S_ONE}")
    E("    s_nop 0")
    for j in range(4):
        E(f"    v_cndmask_b32 v{SEL+j}, 0, v3, vcc")
    R, SA = 88, 96
    for j in range(4):
        E(f"    v_mov_b32 v{SA+j}, 0")
    vm.wait("st")
    stamp(1, vm)
    for d in range(8):
        E(f"    v_dot2c_f32_bf16 v{SA+d%2}, s{S_ONE}, v{R+d}")
        E(f"    v_dot2c_f32_bf16 v{SA+2+d%2}, v{R+d}, v{R+d}")
    E("    s_nop 3")
    a_, b_ = SA + 4, SA + 6
    for j in range(2):
        E(f"    v_add_f32 v{a_+j}, v{SA+2*j}, v{SA+2*j+1}")
    for ctl in ("quad_perm:[1,0,3,2]", "quad_perm:[2,3,0,1]", "row_half_mirror", "row_mirror"):
        E("    s_nop 1")
        for j in range(2):
            E(f"    v_add_f32_dpp v{b_+j}, v{a_+j}, v{a_+j} {ctl} row_mask:0xf bank_mask:0xf")
        a_, b_ = b_, a_
    for j in range(2):
        E(f"    v_mov_b32 v{b_+j}, v{a_+j}")
    E("    s_nop 1")
    for j in range(2):
        E(f"    v_permlane16_swap_b32 v{a_+j}, v{b_+j}")
    E("    s_nop 1")
    for j in range(2):
        E(f"    v_add_f32 v{a_+j}, v{a_+j}, v{b_+j}")
    M, V_ = a_, a_ + 1
    E(f"    v_mul_f32 v{M}, 0x3b000000, v{M}")
    E(f"    v_mul_f32 v{V_}, 0x3b000000, v{V_}")
    E(f"    v_fma_f32 v{V_}, -v{M}, v{M}, v{V_}")
    E(f"    v_max_f32 v{V_}, 0, v{V_}")
    E(f"    v_cvt_pk_bf16_f32 v{M}, 0, v{M}")
    E(f"    v_cvt_pk_bf16_f32 v{V_}, 0, v{V_}")
    E(f"    v_add_f32 v{V_}, 0x3727c5ac, v{V_}")
    E(f"    v_cvt_pk_bf16_f32 v{V_}, 0, v{V_}")
    E(f"    v_sqrt_f32 v{V_}, v{V_}")
    E(f"    v_sub_f32 v{PUB}, 0, v{M}")
    E(f"    v_cvt_pk_bf16_f32 v{V_}, 0, v{V_}")
    E(f"    v_rcp_f32 v{PUB+1}, v{V_}")
    while nxt_st < NB:
        for f in dma_ops(nxt_st):
            f()
        nxt_st += 1
    token_issue(vm)
    stamp(3, vm)
    vm.wait(("dma", 0))
    E("    s_barrier")
    stamp(4, vm)
    stampclk(16, vm)

    dq = []

    def ds(tag, text):
        def f():
            E(text)
            dq.append(tag)
        return f

    def ds_wait(tags):
        idx = max([i for i, t in enumerate(dq) if t in tags], default=-1)
        if idx < 0:
            return
        m_ = len(dq) - 1 - idx
        E(f"    s_waitcnt lgkmcnt({min(m_, 15)})")
        if m_ <= 15:
            del dq[:idx + 1]
        else:
            del dq[:len(dq) - 15]

    def fr_ops(k):
        setidx, bo, ks = k % 2, buf(k // 2) * STG, k % 2
        x = XF + 4 * (k % 2)
        ops = [ds(("x", k), f"    ds_read_b128 v[{x}:{x+3}], {la(XA+ks, bo)}")]
        for mt in order(k):
            r = WF + 24 * setidx + 4 * mt
            base = bo + woff(ks, mt)
            ops.append(ds(("w", k, mt), f"    ds_read_b64_tr_b16 v[{r}:{r+1}], {la(WA, base)}"))
            ops.append(ds(("w", k, mt), f"    ds_read_b64_tr_b16 v[{r+2}:{r+3}], {la(WA, base+4*P)}"))
        return ops

    def cs_reads(st):
        bo = buf(st) * STG
        ops = []
        for j in range(NCS):
            r = CT + 4 * j
            ops.append(ds(("c", st, j), f"    ds_read_b64_tr_b16 v[{r}:{r+1}], {la(CA+j, bo)}"))
            ops.append(ds(("c", st, j), f"    ds_read_b64_tr_b16 v[{r+2}:{r+3}], {la(CA+j, bo+4*P)}"))
        return ops

    def cs_mfma(st, j):
        def f():
            ds_wait([("c", st, j)])
            a = CS + 4 * j
            c = "0" if st == 0 else f"v[{a}:{a+3}]"
            E(f"    v_mfma_f32_16x16x32_bf16 v[{a}:{a+3}], v[{SEL}:{SEL+3}], v[{CT+4*j}:{CT+4*j+3}], {c}")
        return f

    def order(k):
        if k == 31:
            return [m_ for t in range(nt) for m_ in (t, nt + t)]
        return list(range(n))

    def publish():
        token_get(vm)
        E(f"    v_mov_b32 v{PUB+2}, s90")
        E(f"    v_mov_b32 v{PUB+3}, s91")
        E("    v_lshrrev_b32 v2, 1, v1")
        E("    s_mov_b32 exec_lo, 1")
        E("    s_mov_b32 exec_hi, 1")
        E(f"    buffer_store_dwordx4 v[{PUB}:{PUB+3}], v2, s[12:15], s35 offen sc0 sc1")
        E("    s_mov_b64 exec, -1")
        vm.issue("pub")

    def gr_load():
        E(f"    buffer_load_dwordx4 v[{GR1}:{GR1+3}], v{GRV}, s[12:15], s46 offen sc0 sc1")
        E(f"    buffer_load_dwordx4 v[{GR2}:{GR2+3}], v{GRV}, s[12:15], s47 offen sc0 sc1")

    def gr_issue():
        gr_load()
        vm.issue("gr")
        vm.issue("gr")

    def gr_check():
        _lbl[0] += 1
        L = _lbl[0]
        vm.wait("gr")
        E(f"    s_mov_b32 s92, {POLL_LIMIT}")
        E(f"gr_l{L}:")
        E(f"    v_cmp_ne_u64 vcc, s[90:91], v[{GR1+2}:{GR1+3}]")
        E(f"    v_cmp_ne_u64 s[44:45], s[90:91], v[{GR2+2}:{GR2+3}]")
        E("    s_nop 0")
        E("    s_or_b64 vcc, vcc, s[44:45]")
        E(f"    s_cbranch_scc0 gr_d{L}")
        gr_load()
        E("    s_waitcnt vmcnt(0)")
        E("    s_sub_u32 s92, s92, 1")
        E("    s_cmp_lg_u32 s92, 0")
        E(f"    s_cbranch_scc1 gr_l{L}")
        E(f"gr_d{L}:")
        stampval(20, "s92", vm)

    WSTEP = int(os.environ.get("WSTEP", "2"))

    def mm(k, mt):
        x = XF + 4 * (k % 2)
        w = WF + 24 * (k % 2) + 4 * mt
        a = ACC + 16 * mt
        c = "0" if k == 0 else f"v[{a}:{a+15}]"
        E(f"    v_mfma_f32_32x32x16_bf16 v[{a}:{a+15}], v[{w}:{w+3}], v[{x}:{x+3}], {c}")

    def mfma_group(k, slots):
        od = order(k)
        for s_, mt in enumerate(od):
            if s_ % WSTEP == 0:
                ds_wait([("x", k)] + [("w", k, m2) for m2 in od[s_:s_ + WSTEP]])
            mm(k, mt)
            for f in slots[s_]:
                f()

    for f in fr_ops(0) + cs_reads(0):
        f()
    pend = []
    wd_next = 0
    for k in range(31):
        st = k // 2
        if k % 2 == 1:
            vm.wait(("dma", st + 1))
            E("    s_waitcnt lgkmcnt(0)")
            del dq[:]
            E("    s_barrier")
            if st % 4 == 3 and st < 15 and DIAG:
                stamp(5 + st // 4, vm)
                stampclk(17 + st // 4, vm)
            if st in (0, 1, 2, 4, 5, 6) and DIAG:
                stamp(22 + st, vm)
            assert not pend
            if st + NB < nst:
                if 'n' not in os.environ.get('XP', ''):
                    pend += dma_ops(st + NB)
            else:
                free = (buf(st) + 1) * STG
                while wd_next < NPRE and (wd_next + 1) * 8192 <= free and not WLATE:
                    pend += wdma_ops(vm, wd_next)
                    wd_next += 1
        slots = [[] for _ in range(n)]
        rd = fr_ops(k + 1)
        nrs = n - 2 if nt == 3 else n - 1
        for s_ in range(nrs):
            cnt = (len(rd) + (nrs - s_) - 1) // (nrs - s_)
            slots[s_] += rd[:cnt]
            rd = rd[cnt:]
        if k % 2 == 1:
            cr = cs_reads(st + 1)
            h_ = len(cr) // 2 if nt == 3 else 0
            slots[n - 2] += cr[:h_]
            slots[n - 1] += cr[h_:]
        else:
            for j in range(NCS):
                slots[(2 * j + 1) if k < 30 else j].append(cs_mfma(st, j))
        cnt = (len(pend) + 1) // 2 if k % 2 == 1 else len(pend)
        ms = list(range(1, n, 2)) if k % 2 == 1 else list(range(0, n, 2))
        for i_ in range(cnt):
            slots[ms[i_ % len(ms)]].append(None)
        for s_ in range(n):
            slots[s_] = [f if f is not None else 0 for f in slots[s_]]
        for s_ in range(n):
            for i_, f in enumerate(slots[s_]):
                if f == 0:
                    slots[s_][i_] = pend.pop(0)
        if k == PUBK:
            slots[n - 1].append(publish)
        if k == GRK:
            slots[n - 1].append(gr_issue)
        if HELP and nt == 2 and k == WDK2:
            def wdh():
                E("    s_lshr_b32 s38, s33, 2")
                E("    s_mul_i32 s38, s38, 176*128")
                E("    s_add_u32 s38, s38, s41")
                E("    s_cmp_eq_u32 s31, 14")
                E("    s_cselect_b64 exec, 1, -1")
                E("    v_lshlrev_b32 v2, 7, v1")
                E(f"    buffer_load_dword v{PUB}, v2, s[8:11], s38 offen")
                E("    s_add_u32 s38, s38, 64*128")
                E(f"    buffer_load_dword v{PUB}, v2, s[8:11], s38 offen")
                E("    s_add_u32 s38, s38, 48*128")
                E(f"    buffer_load_dword v{PUB}, v2, s[8:11], s38 offen")
                E("    s_mov_b64 exec, -1")
                for _ in range(3):
                    vm.issue("pf")
            slots[n - 1].append(wdh)
        if HELP and k == WDK:
            def wdo():
                E("    s_lshr_b32 s38, s33, 2")
                E("    s_mul_i32 s38, s38, 3")
                E("    s_and_b32 s34, s33, 3")
                E("    s_add_u32 s38, s38, s34")
                E("    s_mul_i32 s38, s38, 59*128")
                E("    s_add_u32 s38, s38, s41")
                E("    s_add_u32 s38, s38, 176*1024")
                E("    s_cmp_eq_u32 s34, 3")
                E("    s_cselect_b64 exec, 1, -1")
                E("    v_min_u32 v2, 58, v1")
                E("    v_lshlrev_b32 v2, 7, v2")
                E(f"    buffer_load_dword v{PUB}, v2, s[8:11], s38 offen")
                E("    s_mov_b64 exec, -1")
                vm.issue("pf")
            slots[n - 1].append(wdo)
        if k == (WDK if nt == 3 else WDK2) and WD_AT == "g" and not HELP:
            def wdt():
                E("    s_mul_i32 s38, s33, 344*128")
                E("    v_lshlrev_b32 v2, 7, v0")
                E(f"    buffer_load_dword v{PUB}, v2, s[8:11], s38 offen")
                E("    v_min_u32 v3, 87, v0")
                E("    v_lshlrev_b32 v3, 7, v3")
                E("    s_add_u32 s38, s38, 256*128")
                E(f"    buffer_load_dword v{PUB+1}, v3, s[8:11], s38 offen")
                vm.issue("pf")
                vm.issue("pf")
            slots[n - 1].append(wdt)
        if k == GRC:
            slots[n - 1 if k < 30 else 0].append(gr_check)
        if k == 30:
            def xw():
                E("    v_and_b32 v2, 31, v1")
                E("    v_lshrrev_b32 v3, 5, v1")
                E("    v_lshlrev_b32 v2, 2, v2")
                E("    v_lshl_add_u32 v2, v3, 11, v2")
                for j in range(NCS):
                    offs = [((w + 4 * j) % n) * 256 + ((w + 4 * j) // n) * 128 for w in range(4)]
                    E(f"    s_mov_b32 s38, {offs[0]}")
                    for w in range(1, 4):
                        E(f"    s_cmp_eq_u32 s3, {w}")
                        E(f"    s_cselect_b32 s38, {offs[w]}, s38")
                    E(f"    v_add_u32 v{CA+j}, s38, v2")
            slots[n - 2 if nt == 3 else 1].append(xw)

            def xw2():
                if nt == 2:
                    E("    s_nop 3")
                for j in range(NCS):
                    for c2 in range(2):
                        E(f"    ds_write_b32 v{CA+j}, v{CS+4*j} offset:{XROW*8192 + c2*4096}")
                        dq.append("xw")
            slots[n - 1].append(xw2)
        mfma_group(k, slots)
    assert (wd_next == NPRE or WLATE) and not pend
    E("    s_waitcnt lgkmcnt(0)")
    del dq[:]
    E("    s_barrier")
    E(f"    s_setprio {GPRIO2}")
    E("    v_lshlrev_b32 v2, 2, v1")
    E("    v_add_u32 v2, s37, v2")
    CV = CS
    od = order(31)
    for mt in od:
        E(f"    ds_read_b32 v{CV+mt}, v2 offset:{XROW*8192 + mt*256}")
    BM = 194
    T0 = 190

    def split_ops(pos, mt):
        c = CV + mt
        q = CT + 2 * pos
        return [f"    v_and_b32 v{T0}, s40, v{c}",
                f"    v_sub_f32 v{c}, v{c}, v{T0}",
                f"    v_and_b32 v{T0+1}, s40, v{c}",
                f"    v_sub_f32 v{c}, v{c}, v{T0+1}",
                f"    v_cvt_pk_bf16_f32 v{q}, v{T0}, v{T0+1}",
                f"    v_cvt_pk_bf16_f32 v{q+1}, v{c}, 0"]

    def corr(pos, mt):
        q = CT + 4 * (pos // 2)
        b = BM + 2 if pos % 2 == 0 else BM
        a = ACC + 16 * mt
        E(f"    v_mfma_f32_32x32x16_bf16 v[{a}:{a+15}], v[{q}:{q+3}], v[{b}:{b+3}], v[{a}:{a+15}]")

    def epi_ops(tau):
        G = ACC + 16 * tau
        U = ACC + 16 * (nt + tau)
        PK = 56 + 8 * ((tau + 2) % 3)
        o = []
        for j in range(16):
            o.append(f"    v_mul_f32 v{G+j}, v{G+j}, v{GR1+1}")
        for j in range(16):
            o.append(f"    v_mul_f32 v{U+j}, v{U+j}, v{GR1+1}")
        for j in range(16):
            o.append(f"    v_cvt_pk_bf16_f32 v{G+j}, 0, v{G+j}")
            o.append(f"    v_cvt_pk_bf16_f32 v{U+j}, 0, v{U+j}")
        for j in range(16):
            o.append(f"    v_mul_f32 v{G+j}, v{G+j}, v{U+j}")
        for j in range(8):
            o.append(f"    v_cvt_pk_bf16_f32 v{U+j}, v{G+2*j}, v{G+2*j+1}")
        o.append("    s_nop 1")
        for pair in range(2):
            q0 = U + 4 * pair
            o.append(f"    v_permlane32_swap_b32 v{q0}, v{q0+2}")
            o.append(f"    v_permlane32_swap_b32 v{q0+1}, v{q0+3}")
        o.append(f"    s_add_u32 s38, s42, {tau*2048}")
        for pair in range(2):
            q0 = U + 4 * pair
            o.append(f"    buffer_store_dwordx4 v[{q0}:{q0+3}], v8, s[24:27], s38 offen offset:{pair*1024} sc0 sc1")
        return o

    def emit(lst, cnt):
        for _ in range(min(cnt, len(lst))):
            t = lst.pop(0)
            E(t)
            if "buffer_store" in t:
                vm.issue("hst")

    pre = [f"    v_mov_b32 v{BM+j}, 0" for j in (0, 1, 4, 5)]
    pre += [f"    v_cvt_pk_bf16_f32 v{BM+j}, v{GR1}, v{GR1}" for j in (2, 3)]
    sp = []
    for pos, mt in enumerate(od):
        sp.append(f"    s_waitcnt lgkmcnt({n-1-pos})")
        sp += split_ops(pos, mt)
    mm(31, od[0])
    emit(pre, 6)
    mm(31, od[1])
    emit(sp, 7)
    mm(31, od[2])
    emit(sp, 7)
    mm(31, od[3])
    emit(sp, 7)
    corr(0, od[0])
    emit(sp, 7)
    corr(1, od[1])
    stamp(8, vm)
    if nt == 3:
        emit(sp, 7)
        mm(31, od[4])
        emit(sp, 7)
        mm(31, od[5])
        ep = epi_ops(0)
        emit(ep, 7)
        for pos in range(2, 6):
            corr(pos, od[pos])
            emit(ep, 7)
        emit(ep, 999)
        for tau in (1, 2):
            emit(epi_ops(tau), 999)
    else:
        E("    s_nop 1")
        corr(2, od[2])
        corr(3, od[3])
        E("    s_nop 7")
        for tau in (0, 1):
            emit(epi_ops(tau), 999)
    stamp(9, vm)
    for i in range(0 if WLATE else NPRE, 10):
        for f in wdma_ops(vm, i):
            f()
    E("    v_lshrrev_b32 v3, 5, v1")
    E("    v_and_b32 v5, 15, v1")
    E("    v_lshrrev_b32 v6, 2, v5")
    E("    v_lshl_add_u32 v6, v3, 3, v6")
    E("    v_lshlrev_b32 v11, 7, v6")
    E("    v_bfe_u32 v6, v1, 4, 1")
    E("    v_lshlrev_b32 v6, 5, v6")
    E("    v_and_b32 v7, 3, v5")
    E("    v_lshl_add_u32 v6, v7, 3, v6")
    E("    v_bfe_u32 v7, v1, 3, 1")
    E("    v_lshlrev_b32 v7, 6, v7")
    E("    v_xor_b32 v6, v6, v7")
    E("    v_add_u32 v11, v11, v6")
    E("    v_add_u32 v11, s37, v11")
    E("    v_xor_b32 v12, 64, v11")
    E(f"    v_add_u32 v17, {HI}, v11")
    E(f"    v_add_u32 v18, {HI}, v12")
    if WLATE:
        vm.wait("hst")
        flag_store(vm, "s39")
        stamp(10, vm)
    vm.wait(("w", NPRE - 1))
    for i in range(NPRE):
        wread(WREG[i], i)
    E("    s_branch phase_c")


def token_publish():
    E("    s_or_b32 s34, s2, s3")
    E("    s_cmp_eq_u32 s34, 0")
    E("    s_cbranch_scc0 g_notok")
    E("    s_or_b32 s90, s90, 1")
    E(f"    v_mov_b32 v{TK}, s90")
    E(f"    v_mov_b32 v{TK+1}, s91")
    E("    s_mov_b64 exec, 1")
    E(f"    buffer_store_dwordx2 v[{TK}:{TK+1}], off, s[60:63], 0 sc0 sc1")
    E("    s_mov_b64 exec, -1")
    E("g_notok:")


def gen_gtype():
    vm = VM()
    E(f"    s_setprio {GPRIO}")
    if CFIRST:
        E("    s_sub_u32 s2, s2, 256")
    else:
        token_publish()
    E("    s_lshr_b32 s33, s2, 3")
    if MAP:
        E("    ; map1")
        E("    s_and_b32 s30, s2, 4")
        E("    s_lshl_b32 s30, s30, 1")
        E("    s_lshr_b32 s31, s33, 2")
        E("    s_add_u32 s30, s30, s31")
        E("    s_and_b32 s31, s2, 3")
        E("    s_lshl_b32 s31, s31, 2")
        E("    s_and_b32 s34, s33, 3")
        E("    s_add_u32 s31, s31, s34")
        E("    s_and_b32 s4, s2, 7")
        E("    s_lshl_b32 s4, s4, 2")
        E("    s_lshr_b32 s34, s33, 3")
        E("    s_add_u32 s4, s4, s34")
    else:
        E("    s_bfe_u32 s30, s2, 0x20001")
        E("    s_lshl_b32 s30, s30, 2")
        E("    s_lshr_b32 s31, s33, 3")
        E("    s_add_u32 s30, s30, s31")
        E("    s_and_b32 s31, s2, 1")
        E("    s_lshl_b32 s31, s31, 3")
        E("    s_and_b32 s34, s33, 7")
        E("    s_add_u32 s31, s31, s34")
    srd(16, 64, 65, S * D * 2)
    E("    s_lshl_b32 s35, s30, 7")
    E("    s_lshl_b32 s34, s31, 3")
    E("    s_add_u32 s35, s35, s34")
    E("    s_lshl_b32 s34, s3, 1")
    E("    s_add_u32 s35, s35, s34")
    E("    s_lshl_b32 s34, s35, 10")
    E("    v_lshrrev_b32 v12, 5, v1")
    E("    v_and_b32 v13, 31, v1")
    E("    v_lshlrev_b32 v13, 4, v13")
    E("    v_lshl_add_u32 v12, v12, 10, v13")
    E("    buffer_load_dwordx4 v[88:91], v12, s[16:19], s34 offen")
    E("    buffer_load_dwordx4 v[92:95], v12, s[16:19], s34 offen offset:512")
    vm.issue("st")
    vm.issue("st")
    E("    s_lshl_b32 s35, s35, 4")
    E("    s_lshl_b32 s32, s30, 17")
    E("    s_lshl_b32 s34, s3, 15")
    E("    s_add_u32 s32, s32, s34")
    E("    s_lshr_b32 s46, s32, 6")
    E("    v_lshrrev_b32 v12, 2, v1")
    E("    v_lshrrev_b32 v13, 4, v1")
    E("    v_xor_b32 v13, v13, v1")
    E("    v_and_b32 v13, 3, v13")
    E("    v_lshlrev_b32 v13, 4, v13")
    E(f"    v_lshl_add_u32 v{XDV}, v12, 10, v13")
    E(f"    v_add_u32 v{XDV+1}, {16384-1024}, v{XDV}")
    if MAP:
        E("    s_lshr_b32 s29, s33, 2")
        E("    s_and_b32 s34, s33, 3")
    else:
        E("    s_and_b32 s29, s33, 7")
        E("    s_lshr_b32 s34, s33, 3")
    E("    s_lshl_b32 s34, s34, 1")
    if ROT == 1:
        E("    s_add_u32 s29, s29, s34")
    E("    s_lshl_b32 s29, s29, 1")
    E("    s_and_b32 s29, s29, 15" if ROT else "    s_mov_b32 s29, 0")
    E("    s_lshl_b32 s34, s29, 6")
    E("    s_add_u32 s32, s32, s34")
    srd_off(24, 88, 89, WS_H, H_BYTES)
    srd_off(12, 88, 89, WS_ST, S * 16)
    E(f"    s_mov_b32 s{S_ONE}, 0x3f803f80")
    E("    v_lshlrev_b32 v8, 4, v1")
    if MAP:
        E("    s_lshl_b32 s47, s4, 10")
    else:
        E("    s_lshl_b32 s47, s30, 11")
        E("    s_lshr_b32 s34, s31, 3")
        E("    s_lshl_b32 s34, s34, 10")
        E("    s_add_u32 s47, s47, s34")
    E("    s_and_b32 s34, s3, 1")
    E("    s_lshl_b32 s34, s34, 9")
    E("    s_add_u32 s47, s47, s34")
    srd(8, 82, 83, F * D * 2)
    E("    s_mul_i32 s51, s3, 22")
    E("    s_cmp_eq_u32 s3, 3")
    E("    s_cselect_b32 s51, 65, s51")
    E("    s_lshl_b32 s41, s51, 14")
    E("    s_lshl_b32 s37, s3, 11")
    E("    v_lshrrev_b32 v14, 3, v1")
    E(f"    v_lshlrev_b32 v{DDV}, 10, v14")
    E("    v_and_b32 v14, 7, v1")
    E("    v_bfe_u32 v15, v1, 4, 1")
    E("    v_lshlrev_b32 v15, 2, v15")
    E("    v_xor_b32 v14, v14, v15")
    E(f"    v_lshl_add_u32 v{DDV}, v14, 4, v{DDV}")
    E("    s_and_b32 s34, s33, 7")
    E("    s_lshl_b32 s34, s34, 7")
    E(f"    v_add_u32 v{DDV}, s34, v{DDV}")
    E("    s_lshl_b32 s36, s30, 2")
    E("    s_add_u32 s36, s36, s3")
    E("    s_lshl_b32 s39, s36, 7")
    E("    s_lshl_b32 s38, s31, 3")
    E("    s_add_u32 s39, s39, s38")
    E(f"    s_add_u32 s39, s39, {FH_OFF}")
    E(f"    s_mul_i32 s42, s36, {HB}")
    if MAP == 2:
        E("    ; map2")
        E("    s_mul_i32 s36, s31, 3")
        E("    s_add_u32 s38, s31, 1")
        E("    s_lshr_b32 s38, s38, 4")
        E("    s_sub_u32 s36, s36, s38")
        E("    s_lshr_b32 s38, s31, 2")
        E("    s_sub_u32 s36, s36, s38")
        E("    s_lshl_b32 s36, s36, 6")
        E("    s_lshl_b32 s38, s36, 5")
        E("    s_add_u32 s42, s42, s38")
        E("    s_bitcmp1_b32 0xc888, s31")
        E("    s_cbranch_scc1 g_path2")
        gen_gtype_path(3, vm)
        E("g_path2:")
        gen_gtype_path(2, vm)
        gen_phase_c()
        return
    E("    s_cmp_lt_u32 s31, 11")
    E("    s_cbranch_scc0 g_path2")
    E("    s_mul_i32 s36, s31, 192")
    E("    s_mul_i32 s38, s31, 3*2048")
    E("    s_add_u32 s42, s42, s38")
    gen_gtype_path(3, vm)
    E("g_path2:")
    E("    s_lshl_b32 s36, s31, 7")
    E("    s_add_u32 s36, s36, 704")
    E("    s_lshl_b32 s38, s36, 5")
    E("    s_add_u32 s42, s42, s38")
    gen_gtype_path(2, vm)
    gen_phase_c()


COPY_BYTES = 4240
_order = [(1, 0), (0, 11), (2, 4), (5, 0), (4, 12), (3, 8), (6, 4), (7, 8)]
COPY_BASE = {}
_pos = 0
for _b, _beta in _order:
    while (_pos // 16) % 16 != _beta:
        _pos += 16
    COPY_BASE[_b] = _pos
    _pos += COPY_BYTES
KV_OFF = (_pos + 15) // 16 * 16
KVP = 80
CH_BYTES = (KV_OFF + 65 * KVP + 255) // 256 * 256
LDS_BYTES = 81920
TB_OFF = (KV_OFF + 127) // 128 * 128
assert TB_OFF + 4096 <= KV_OFF + 64 * KVP
assert 2 * CH_BYTES <= LDS_BYTES


def wd_touch(vt):
    srd(52, 82, 83, F * D * 2)
    E("    s_mul_i32 s93, s50, 344*128")
    E(f"    v_lshlrev_b32 v{vt}, 7, v0")
    E(f"    buffer_load_dword v{vt+1}, v{vt}, s[52:55], s93 offen")
    E(f"    v_min_u32 v{vt}, 87, v0")
    E(f"    v_lshlrev_b32 v{vt}, 7, v{vt}")
    E("    s_add_u32 s93, s93, 256*128")
    E(f"    buffer_load_dword v{vt+1}, v{vt}, s[52:55], s93 offen")


def gen_ctype():
    vm = VM()
    E("c_type:")
    E(f"    s_setprio {CPRIO}")
    if CFIRST:
        token_publish()
    if 'g' in os.environ.get('XP', ''):
        E("    s_endpgm")
    if CFIRST:
        pass
    else:
        E("    s_sub_u32 s2, s2, 256")
    srd(16, 66, 67, S * D * 2)
    srd(20, 68, 69, S * D * 2)
    srd(24, 70, 71, D * 4 * 2)
    E("    s_lshr_b32 s32, s2, 3")
    E("    s_and_b32 s33, s2, 7")
    E("    v_and_b32 v10, 31, v0")
    E("    v_lshrrev_b32 v11, 5, v0")
    E("    s_lshl_b32 s34, s32, 6")
    E("    v_lshlrev_b32 v3, 3, v11")
    E("    v_add_u32 v3, s34, v3")
    E("    s_lshl_b32 s35, s33, 5")
    E("    v_add_u32 v6, s35, v10")
    E("    v_lshlrev_b32 v3, 10, v3")
    E("    v_lshl_add_u32 v3, v6, 2, v3")
    E("    v_add_u32 v4, 4096, v3")
    E("    v_subrev_u32 v5, 3072, v3")
    E("    v_lshlrev_b32 v6, 4, v6")
    for j in range(3):
        E(f"    buffer_load_dword v{132+j}, v5, s[16:19], 0 offen offset:{1024*j}")
    for j in range(4):
        E(f"    buffer_load_dword v{135+j}, v3, s[16:19], 0 offen offset:{1024*j}")
    for j in range(4):
        E(f"    buffer_load_dword v{139+j}, v4, s[16:19], 0 offen offset:{1024*j}")
    for j in range(4):
        E(f"    buffer_load_dword v{144+j}, v3, s[20:23], 0 offen offset:{1024*j}")
    for j in range(4):
        E(f"    buffer_load_dword v{148+j}, v4, s[20:23], 0 offen offset:{1024*j}")
    E("    buffer_load_dwordx4 v[128:131], v6, s[24:27], 0 offen")
    for _ in range(20):
        vm.issue("kv")
    E("    s_lshr_b32 s31, s3, 1")
    E("    s_lshl_b32 s30, s33, 6")
    E("    s_lshl_b32 s34, s32, 1")
    E("    s_add_u32 s30, s30, s34")
    E("    s_add_u32 s30, s30, s31")
    E("    s_mov_b32 s50, s32")
    E("    s_mov_b32 s51, s33")
    E("    s_and_b32 s32, s3, 1")
    E("    s_lshl_b32 s33, s30, 12")
    srd_off(44, 72, 73, "s33", 4096)
    E(f"    s_mul_i32 s35, s31, {CH_BYTES}")
    E("    s_lshl_b32 s36, s32, 6")
    E("    v_add_u32 v3, s36, v1")
    E("    v_lshlrev_b32 v4, 5, v3")
    E("    v_subrev_u32 v5, 16, v4")
    def kf_loads():
        srd_off(44, 72, 73, "s33", 4096)
        E("    buffer_load_dwordx4 v[16:19], v5, s[44:47], 0 offen")
        E("    buffer_load_dwordx4 v[20:23], v4, s[44:47], 0 offen")
        E("    buffer_load_dwordx4 v[24:27], v4, s[44:47], 0 offen offset:16")
        for _ in range(3):
            vm.issue("kf")
        srd(44, 74, 75, D * 2)
        E("    s_lshl_b32 s36, s30, 1")
        E("    v_mov_b32 v7, s36")
        E("    buffer_load_ushort v9, v7, s[44:47], 0 offen")
        vm.issue("kf")
    if not KFL:
        kf_loads()
    srd_off(8, 88, 89, WS_KVR, S * D * 2)
    srd_off(12, 88, 89, WS_KVA, S * D * 2)
    E("    s_getreg_b32 s6, hwreg(HW_REG_XCC_ID, 0, 4)")
    E("    v_lshrrev_b32 v12, 4, v10")
    E(f"    v_mul_u32_u24 v12, {CH_BYTES}, v12")
    E("    v_and_b32 v13, 15, v10")
    E("    v_lshl_add_u32 v12, v13, 8, v12")
    E("    v_sub_u32 v13, 7, v11")
    E("    v_and_b32 v14, 7, v10")
    E("    v_xor_b32 v13, v13, v14")
    E("    v_lshl_add_u32 v12, v13, 4, v12")
    E(f"    v_add_u32 v12, {TB_OFF}, v12")
    E("    v_lshrrev_b32 v13, 3, v1")
    E("    v_and_b32 v14, 7, v1")
    E("    v_lshrrev_b32 v15, 4, v1")
    E("    v_xor_b32 v15, v15, v14")
    E("    v_lshlrev_b32 v15, 4, v15")
    E("    v_lshl_add_u32 v15, v13, 7, v15")
    E(f"    s_mul_i32 s36, s31, {CH_BYTES}")
    E("    s_lshl_b32 s37, s32, 11")
    E("    s_add_u32 s36, s36, s37")
    E(f"    s_add_u32 s36, s36, {TB_OFF}")
    E("    v_add_u32 v15, s36, v15")
    E("    v_xor_b32 v28, 64, v15")
    E("    v_lshlrev_b32 v13, 12, v13")
    E("    v_lshl_add_u32 v13, v14, 4, v13")
    E("    s_lshl_b32 s36, s51, 18")
    E("    s_lshl_b32 s37, s3, 16")
    E("    s_add_u32 s36, s36, s37")
    E("    s_lshl_b32 s37, s50, 7")
    E("    s_sub_u32 s37, 3968, s37")
    E("    s_add_u32 s48, s36, s37")
    E("    s_lshl_b32 s36, s51, 10")
    E(f"    s_add_u32 s36, s36, {FK_OFF}")
    E("    s_lshl_b32 s37, s3, 8")
    E("    s_add_u32 s49, s36, s37")
    E("    s_lshl_b32 s37, s50, 3")
    E("    s_add_u32 s49, s49, s37")
    E("    s_lshr_b32 s37, s50, 3")
    E("    s_lshl_b32 s37, s37, 8")
    E("    s_add_u32 s41, s36, s37")
    vm.wait("kv")
    stamp(1, vm)
    token_issue(vm)
    if KFL:
        kf_loads()
    if TOUCH != "none":
        w_touch(vm, 78, 79, "s50", 29)
    if WD_AT == "early":
        wd_touch(244)
        vm.issue("pf")
        vm.issue("pf")
    if CX == 1:
        E("    s_waitcnt vmcnt(0)")
        E("    s_endpgm")
    for c in range(2):
        for d in range(2):
            E(f"    v_lshlrev_b32 v{32+4*c+2*d}, 16, v{128+2*c+d}")
            E(f"    v_and_b32 v{33+4*c+2*d}, s40, v{128+2*c+d}")
    for j in range(11):
        E(f"    v_lshlrev_b32 v{40+j}, 16, v{132+j}")
        E(f"    v_and_b32 v{52+j}, s40, v{132+j}")
    for j in range(8):
        E(f"    v_lshlrev_b32 v{64+j}, 16, v{144+j}")
        E(f"    v_and_b32 v{72+j}, s40, v{144+j}")
    for j in range(8):
        A0, A1, B0, B1, T = 96, 97, 98, 99, 100
        E(f"    v_mul_f32 v{A0}, v{40+j}, v35")
        E(f"    v_mul_f32 v{A1}, v{52+j}, v39")
        E(f"    v_mul_f32 v{B0}, v{41+j}, v34")
        E(f"    v_mul_f32 v{B1}, v{53+j}, v38")
        round_pair(A0, A1, T, 40)
        round_pair(B0, B1, T, 40)
        E(f"    v_add_f32 v{A0}, v{A0}, v{B0}")
        E(f"    v_add_f32 v{A1}, v{A1}, v{B1}")
        E(f"    v_mul_f32 v{B0}, v{42+j}, v33")
        E(f"    v_mul_f32 v{B1}, v{54+j}, v37")
        round_pair(A0, A1, T, 40)
        round_pair(B0, B1, T, 40)
        E(f"    v_add_f32 v{A0}, v{A0}, v{B0}")
        E(f"    v_add_f32 v{A1}, v{A1}, v{B1}")
        E(f"    v_mul_f32 v{B0}, v{43+j}, v32")
        E(f"    v_mul_f32 v{B1}, v{55+j}, v36")
        round_pair(A0, A1, T, 40)
        round_pair(B0, B1, T, 40)
        E(f"    v_add_f32 v{A0}, v{A0}, v{B0}")
        E(f"    v_add_f32 v{A1}, v{A1}, v{B1}")
        round_pair(A0, A1, T, 40)
        E(f"    v_mul_f32 v{80+j}, v{A0}, v{64+j}")
        E(f"    v_mul_f32 v{88+j}, v{A1}, v{72+j}")
    for c in range(2):
        for jj in range(4):
            E(f"    v_cvt_pk_bf16_f32 v{104+4*c+jj}, v{80+8*c+7-2*jj}, v{80+8*c+6-2*jj}")
    if CX == 2:
        E("    s_waitcnt vmcnt(0)")
        E("    s_endpgm")
    E("    ds_write_b128 v12, v[104:107]")
    E("    ds_write_b128 v12, v[108:111] offset:128")
    E("    s_waitcnt lgkmcnt(0)")
    E("    s_barrier")
    E("    ds_read_b128 v[104:107], v15")
    E("    ds_read_b128 v[108:111], v28 offset:1024")
    E("    s_add_u32 s43, s48, 32768")
    E("    s_waitcnt lgkmcnt(1)")
    E("    buffer_store_dwordx4 v[104:107], v13, s[12:15], s48 offen")
    E("    s_waitcnt lgkmcnt(0)")
    E("    buffer_store_dwordx4 v[108:111], v13, s[12:15], s43 offen")
    vm.issue("kst")
    vm.issue("kst")
    stamp(2, vm)
    E("    s_barrier")
    E("    s_add_u32 s34, s33, %d" % WS_KVR)
    srd_off(20, 88, 89, "s34", 4096)
    E("    s_add_u32 s34, s33, %d" % WS_YT)
    srd_off(24, 88, 89, "s34", 4096)
    E("    v_mov_b32 v36, 0")
    E("    v_mov_b32 v37, 0")
    E("    v_mov_b32 v38, 0")
    E("    v_mov_b32 v39, 0")
    E("    v_lshlrev_b32 v7, 4, v1")
    E("    v_add_u32 v7, s35, v7")
    E("    s_mov_b64 exec, 0x7f")
    for b in range(8):
        E(f"    ds_write_b128 v7, v[36:39] offset:{COPY_BASE[b]}")
    E("    s_mov_b64 exec, 0xf")
    E(f"    ds_write_b128 v7, v[36:39] offset:{KV_OFF + 64*KVP}")
    E("    s_mov_b64 exec, -1")
    E("    v_lshlrev_b32 v6, 4, v3")
    E("    v_lshlrev_b32 v7, 5, v3")
    E("    v_add_u32 v7, s35, v7")
    E("    v_lshrrev_b32 v8, 2, v3")
    E(f"    v_mul_u32_u24 v8, {KVP}, v8")
    E("    v_and_b32 v10, 3, v3")
    E("    v_lshl_add_u32 v8, v10, 4, v8")
    E("    v_add_u32 v8, s35, v8")
    E("    v_and_b32 v3, 31, v1")
    E("    v_lshrrev_b32 v4, 5, v1")
    E("    v_add_u32 v5, 1, v3")
    E("    v_and_b32 v14, 7, v5")
    E("    v_lshrrev_b32 v5, 3, v5")
    E("    v_sub_u32 v5, v5, v4")
    E("    v_add_u32 v5, 1, v5")
    E("    v_lshlrev_b32 v5, 4, v5")
    E("    v_mov_b32 v10, 0")
    for b in range(8):
        E(f"    v_cmp_eq_u32 vcc, {b}, v14")
        E(f"    v_mov_b32 v11, {COPY_BASE[b]}")
        E("    s_nop 0")
        E("    v_cndmask_b32 v10, v10, v11, vcc")
    E("    v_add_u32 v10, v10, v5")
    E("    v_add_u32 v10, s35, v10")
    E("    v_sub_u32 v5, 63, v3")
    E(f"    v_mul_u32_u24 v5, {KVP}, v5")
    E("    v_lshlrev_b32 v14, 4, v4")
    E("    v_sub_u32 v5, v5, v14")
    E(f"    s_add_u32 s36, s35, {KV_OFF + 16}")
    E("    v_add_u32 v11, s36, v5")
    E(f"    v_subrev_u32 v15, {32*KVP}, v11")
    E(f"    s_add_u32 s36, s36, {KVP*64}")
    E("    v_sub_u32 v12, s36, v14")
    token_get(vm)
    stampval(20, "s92", vm)
    E("    s_add_u32 s6, s6, 1")
    E("    s_lshl_b32 s6, s6, 24")
    E("    s_mov_b32 s4, s90")
    E("    s_xor_b32 s5, s91, s6")
    E("    v_mov_b32 v244, s4")
    E("    v_mov_b32 v245, s5")
    E(f"    s_sub_u32 s93, s49, {FK_OFF}")
    E(f"    s_lshl_b32 s93, s93, {FSH}")
    vm.wait("kst")
    E("    s_mov_b64 exec, 1")
    E("    buffer_store_dwordx2 v[244:245], off, s[56:59], s93")
    E("    s_mov_b64 exec, -1")
    vm.issue("flag")
    stamp(3, vm)
    if CX == 3:
        E("    s_waitcnt vmcnt(0)")
        E("    s_endpgm")
    for u in range(2):
        e = 16 + 4 * u
        for b in range(8):
            off = COPY_BASE[b] + 112 + 16 * u
            if b % 2 == 0 and (b // 2) % 2 == 0:
                r = e + b // 2
                E(f"    ds_write_b128 v7, v[{r}:{r+3}] offset:{off}")
            else:
                t = 40 + 4 * ((u * 8 + b) % 4)
                for d in range(4):
                    if b % 2 == 0:
                        E(f"    v_mov_b32 v{t+d}, v{e + b//2 + d}")
                    else:
                        be = (b - 1) // 2
                        E(f"    v_alignbyte_b32 v{t+d}, v{e+be+d+1}, v{e+be+d}, 2")
                E(f"    ds_write_b128 v7, v[{t}:{t+3}] offset:{off}")
    E(f"    ds_write_b128 v7, v[24:27] offset:{COPY_BASE[0] + 112 + 32}")
    E(f"    s_setprio {CPRIO2}")
    stamp(9, vm)
    if CX == 4:
        E("    s_waitcnt vmcnt(0)")
        E("    s_endpgm")

    def slow_stores():
        E("    buffer_store_dwordx4 v[104:107], v13, s[8:11], s48 offen sc0 sc1")
        E("    buffer_store_dwordx4 v[108:111], v13, s[8:11], s43 offen sc0 sc1")

    NF = int(os.environ.get("NF", "12"))
    E(f"    s_mov_b32 s92, {POLL_LIMIT}")
    E("    s_mov_b32 s28, 0")
    E(f"    s_sub_u32 s46, s41, {FK_OFF}")
    E(f"    s_lshl_b32 s46, s46, {FSH}")
    E(f"    s_lshl_b32 s47, s41, {FSH}")
    E("    s_mov_b32 exec_hi, 0")
    E("pk_l:")
    E(f"    buffer_load_dwordx2 v[{PA}:{PA+1}], v{VL8}, s[56:59], s46 offen sc0 sc1")
    E("    s_waitcnt vmcnt(0)")
    E(f"    v_cmp_ne_u64 vcc, s[4:5], v[{PA}:{PA+1}]")
    E("    s_cmp_eq_u64 vcc, 0")
    E("    s_cbranch_scc1 pk_fast")
    E(f"    s_cmp_gt_u32 s92, {POLL_LIMIT - NF}")
    E("    s_cbranch_scc1 pk_next")
    E("    s_cmp_lg_u32 s28, 0")
    E("    s_cbranch_scc1 pk_sb")
    E("    s_mov_b64 exec, -1")
    slow_stores()
    E("    s_waitcnt vmcnt(0)")
    flag_store(vm, "s49")
    E("    s_mov_b32 s28, 1")
    E("    s_mov_b32 exec_hi, 0")
    E("pk_sb:")
    E(f"    buffer_load_dwordx2 v[{PA}:{PA+1}], v{VL8}, s[56:59], s47 offen sc0 sc1")
    E("    s_waitcnt vmcnt(0)")
    E(f"    v_cmp_ne_u64 vcc, s[90:91], v[{PA}:{PA+1}]")
    E("    s_cmp_eq_u64 vcc, 0")
    E("    s_cbranch_scc1 pk_join")
    E("pk_next:")
    E(f"    s_sleep {int(os.environ.get('PSK', '2'))}")
    E("    s_sub_u32 s92, s92, 1")
    E("    s_cmp_lg_u32 s92, 0")
    E("    s_cbranch_scc1 pk_l")
    E("    s_branch pk_join")
    E("pk_fast:")
    E(f"    s_add_u32 s20, s20, {WS_KVA - WS_KVR}")
    E("    s_addc_u32 s21, s21, 0")
    E("    s_and_b32 s21, s21, 0xffff")
    E("pk_join:")
    E("    s_mov_b64 exec, -1")
    stampval(21, "s92", vm)
    stamp(4, vm)
    E("    buffer_load_dwordx4 v[28:31], v6, s[20:23], 0 offen")
    E("    buffer_load_dwordx4 v[32:35], v6, s[20:23], 0 offen offset:2048")
    E("    v_mov_b32 v246, v13")
    if RP >= 0:
        for j in range(8):
            E(f"    v_mov_b32 v{56+j}, v{104+j}")
    E("    s_waitcnt vmcnt(1)")
    E(f"    ds_write_b128 v8, v[28:31] offset:{KV_OFF}")
    E("    s_waitcnt vmcnt(0)")
    E(f"    ds_write_b128 v8, v[32:35] offset:{KV_OFF + 32*KVP}")
    if RP == -1:
        slow_stores()
    stamp(10)
    vm.q = []
    E("    s_waitcnt lgkmcnt(0)")
    E("    s_barrier")
    stamp(5)
    if CX == 5:
        E("    s_waitcnt vmcnt(0)")
        E("    s_endpgm")
    FR = 64
    ACC = 192

    def fr(setidx, slot):
        return FR + 64 * setidx + 4 * slot

    def op_A(setidx, slot, t):
        r = fr(setidx, slot)
        return lambda: E(f"    ds_read_b128 v[{r}:{r+3}], v10 offset:{32*(t+3)}")

    def ops_B(setidx, slot, d, c):
        def f():
            E(f"    v_add_u32 v13, {KVP*d}, v{11 if c == 0 else 15}")
            E("    v_min_u32 v13, v13, v12")
            for q in range(2):
                r = fr(setidx, slot + q)
                E(f"    ds_read_b128 v[{r}:{r+3}], v13 offset:{32*(1-q)}")
        return f

    def loads(it, setidx):
        kind, d0 = it
        ops = []
        if kind == "X":
            for e_ in range(2):
                for q in range(2):
                    ops.append(op_A(setidx, 2 * e_ + q, 2 * (d0 + e_) - q))
                for c in range(2):
                    ops.append(ops_B(setidx, 4 + 4 * e_ + 2 * c, d0 + e_, c))
        else:
            for e_ in range(4):
                for q in range(2):
                    ops.append(op_A(setidx, 2 * e_ + q, 2 * (d0 + e_) - q))
                ops.append(ops_B(setidx, 8 + 2 * e_, d0 + e_, 1))
        return ops

    def mfmas(it, setidx):
        kind, d0 = it
        lst = []
        if kind == "X":
            for e_ in range(2):
                for q in range(2):
                    for c in range(2):
                        lst.append((c, fr(setidx, 2 * e_ + q), fr(setidx, 4 + 4 * e_ + 2 * c + q)))
        else:
            for e_ in range(4):
                for q in range(2):
                    lst.append((1 + q, fr(setidx, 2 * e_ + q), fr(setidx, 8 + 2 * e_ + q)))
        return lst

    def conv_loop(its, pf_at):
        started = set()
        for f in loads(its[0], 0):
            f()
        for n, it in enumerate(its):
            E("    s_waitcnt lgkmcnt(0)")
            nxt = loads(its[n + 1], (n + 1) % 2) if n + 1 < len(its) else []
            per = (len(nxt) + 4) // 5
            ms = mfmas(it, n % 2)
            for k, (acc, a, b) in enumerate(ms):
                A = ACC + 16 * acc
                c = f"v[{A}:{A+15}]" if acc in started else "0"
                started.add(acc)
                E(f"    v_mfma_f32_32x32x16_bf16 v[{A}:{A+15}], v[{a}:{a+3}], v[{b}:{b+3}], {c}")
                for _ in range(per if k + 1 < len(ms) else len(nxt)):
                    if nxt:
                        nxt.pop(0)()
            if n == RP:
                E("    buffer_store_dwordx4 v[56:59], v246, s[8:11], s48 offen sc0 sc1")
                E("    buffer_store_dwordx4 v[60:63], v246, s[8:11], s43 offen sc0 sc1")
            if n == pf_at and WD_AT == "conv":
                wd_touch(60)

    E("    s_cmp_eq_u32 s32, 0")
    E("    s_cbranch_scc0 conv_l1")
    conv_loop([("X", d) for d in range(0, 24, 2)], 0)
    E("    s_branch conv_le")
    E("conv_l1:")
    conv_loop([("X", d) for d in range(24, 32, 2)] + [("Y", d) for d in range(32, 64, 4)], 0)
    E("    s_nop 15")
    E("    s_nop 3")
    for j in range(16):
        E(f"    v_add_f32 v{ACC+16+j}, v{ACC+16+j}, v{ACC+32+j}")
    E("conv_le:")
    stamp(6)
    if CX == 6:
        E("    s_waitcnt vmcnt(0)")
        E("    s_endpgm")
    E("    s_barrier")
    E("    v_lshlrev_b32 v13, 4, v1")
    E("    v_add_u32 v13, s35, v13")
    E("    s_lshl_b32 s36, s32, 12")
    E("    v_add_u32 v14, s36, v13")
    E("    s_xor_b32 s36, s36, 4096")
    E("    v_add_u32 v13, s36, v13")
    E("    s_nop 7")
    E("    s_cmp_eq_u32 s32, 0")
    E("    s_cbranch_scc1 conv_hw0")
    for jq in range(4):
        E(f"    ds_write_b128 v13, v[{ACC+4*jq}:{ACC+4*jq+3}] offset:{1024*jq}")
    for j in range(16):
        E(f"    v_mov_b32 v{64+j}, v{ACC+16+j}")
    E("    s_branch conv_x")
    E("conv_hw0:")
    for jq in range(4):
        E(f"    ds_write_b128 v13, v[{ACC+16+4*jq}:{ACC+16+4*jq+3}] offset:{1024*jq}")
    for j in range(16):
        E(f"    v_mov_b32 v{64+j}, v{ACC+j}")
    E("conv_x:")
    E("    s_waitcnt lgkmcnt(0)")
    E("    s_barrier")
    for jq in range(4):
        E(f"    ds_read_b128 v[{80+4*jq}:{80+4*jq+3}], v14 offset:{1024*jq}")
    E("    v_sub_u32 v5, 63, v3")
    E(f"    v_mul_u32_u24 v5, {KVP}, v5")
    E("    v_lshlrev_b32 v6, 3, v4")
    E("    v_sub_u32 v5, v5, v6")
    E(f"    s_mul_i32 s36, s32, {32*KVP}")
    E(f"    s_sub_u32 s36, {KV_OFF + 8}, s36")
    E("    s_add_u32 s36, s36, s35")
    E("    v_add_u32 v5, s36, v5")
    for jq in range(4):
        E(f"    ds_read_b64 v[{96+2*jq}:{96+2*jq+1}], v5 offset:{16*(3-jq)}")
    E("    v_lshlrev_b32 v6, 6, v3")
    E("    v_lshl_add_u32 v6, v4, 3, v6")
    E("    s_mul_i32 s36, s3, 20480")
    E("    v_add_u32 v6, s36, v6")
    E("    v_lshlrev_b32 v7, 4, v1")
    E("    v_add_u32 v8, s36, v7")
    E("    s_lshl_b32 s37, s32, 11")
    E("    v_lshlrev_b32 v9, 16, v9")
    E("    s_waitcnt lgkmcnt(0)")
    E("    s_barrier")
    for j in range(16):
        E(f"    v_add_f32 v{64+j}, v{64+j}, v{80+j}")
    vm.q = ["pf", "pf"]
    for jq in range(4):
        k0, k1, k2, k3 = 104, 105, 106, 107
        E(f"    v_and_b32 v{k0}, s40, v{97+2*jq}")
        E(f"    v_lshlrev_b32 v{k1}, 16, v{97+2*jq}")
        E(f"    v_and_b32 v{k2}, s40, v{96+2*jq}")
        E(f"    v_lshlrev_b32 v{k3}, 16, v{96+2*jq}")
        for kk in (k0, k1, k2, k3):
            E(f"    v_mul_f32 v{kk}, v{kk}, v9")
        round_pair(k0, k1, 108, 40)
        round_pair(k2, k3, 108, 40)
        y = 64 + 4 * jq
        round_pair(y, y + 1, 108, 40)
        round_pair(y + 2, y + 3, 108, 40)
        for e_, kk in enumerate((k0, k1, k2, k3)):
            E(f"    v_add_f32 v{y+e_}, v{y+e_}, v{kk}")
        E(f"    v_cvt_pk_bf16_f32 v{110+2*jq}, v{y}, v{y+1}")
        E(f"    v_cvt_pk_bf16_f32 v{111+2*jq}, v{y+2}, v{y+3}")
        E(f"    ds_write_b64 v6, v[{110+2*jq}:{111+2*jq}] offset:{16*jq}")
    E("    s_waitcnt lgkmcnt(0)")
    E("    ds_read_b128 v[104:107], v8")
    E("    ds_read_b128 v[108:111], v8 offset:1024")
    E("    s_waitcnt lgkmcnt(1)")
    E("    buffer_store_dwordx4 v[104:107], v7, s[24:27], s37 offen sc0 sc1")
    E("    s_waitcnt lgkmcnt(0)")
    E("    buffer_store_dwordx4 v[108:111], v7, s[24:27], s37 offen offset:1024 sc0 sc1")
    vm.issue("yst")
    vm.issue("yst")
    stamp(7, vm)
    E("    s_lshl_b32 s36, s32, 12")
    E("    s_lshl_b32 s37, s30, 3")
    E("    s_add_u32 s47, s36, s37")
    E(f"    s_add_u32 s47, s47, {FY_OFF}")
    E("    s_waitcnt vmcnt(0)")
    flag_store(vm, "s47")
    stamp(8)
    if RP == -3:
        E("    s_endpgm")
        return
    E("    s_cmp_lg_u32 s28, 0")
    E("    s_cbranch_scc1 k_done")
    if RP == -2:
        E("    v_mov_b32 v13, v246")
        E("    buffer_load_dwordx4 v[104:107], v13, s[12:15], s48 offen sc0 sc1")
        E("    buffer_load_dwordx4 v[108:111], v13, s[12:15], s43 offen sc0 sc1")
        E("    s_waitcnt vmcnt(0)")
        slow_stores()
        E("    s_waitcnt vmcnt(0)")
    flag_store(vm, "s49")
    E("    s_endpgm")


def gen_phase_c():
    vm = VM()
    vm.q = ["hst"] + (["stamp"] if DIAG else []) + [("w", i) for i in range(NPRE, 10) for _ in range(2)]
    if WLATE:
        vm.q = [("w", i) for i in range(NPRE, 10) for _ in range(2)] + ["flag"] + (["stamp"] if DIAG else [])
    WT = 48
    XT = 64
    NT = 72
    ACC = 88
    HB0 = [152 + 8 * j for j in range(8)] + [80]
    NH = int(os.environ.get("NH", "9"))
    NK = 22
    YSLOT = 0
    RSL = 2
    global VL8
    VL8_saved = VL8
    VL8 = 15
    E("phase_c:")
    E(f"    v_lshlrev_b32 v15, {3+FSH}, v1")
    if MAP:
        E("    s_mov_b32 s30, s4")
    else:
        E("    s_lshl_b32 s30, s30, 1")
        E("    s_lshr_b32 s35, s31, 3")
        E("    s_add_u32 s30, s30, s35")
    E("    s_and_b32 s31, s33, 7")
    E("    s_and_b32 s32, s3, 1")
    E("    s_lshr_b32 s33, s3, 1")
    E("    v_and_b32 v9, 31, v1")
    E("    v_lshlrev_b32 v13, 10, v9")
    E("    v_lshl_add_u32 v13, v3, 3, v13")
    E("    s_lshl_b32 s35, s30, 1")
    E("    s_add_u32 s35, s35, s32")
    E("    s_lshl_b32 s36, s35, 15")
    E("    s_lshl_b32 s38, s31, 7")
    E("    s_add_u32 s36, s36, s38")
    E("    s_lshl_b32 s38, s33, 6")
    E("    s_add_u32 s36, s36, s38")
    E("    v_add_u32 v13, s36, v13")
    for q in range(4):
        E(f"    buffer_load_dwordx2 v[{XT+2*q}:{XT+2*q+1}], v13, s[16:19], 0 offen offset:{16*q}")
        vm.issue("x")
    srd_off(20, 88, 89, WS_H, H_BYTES)
    srd_off(44, 88, 89, WS_YT, S * D * 2)
    srd(52, 84, 85, S * D * 2)
    E("    s_lshr_b32 s49, s30, 4")
    E("    s_lshl_b32 s49, s49, 12")
    E("    s_lshl_b32 s38, s31, 9")
    E("    s_add_u32 s49, s49, s38")
    E("    s_lshl_b32 s38, s33, 8")
    E("    s_add_u32 s49, s49, s38")
    E(f"    s_add_u32 s49, s49, {FY_OFF}")
    E("    v_lshrrev_b32 v0, 2, v1")
    E("    v_lshlrev_b32 v0, 12, v0")
    E("    v_and_b32 v7, 3, v1")
    E("    v_lshl_add_u32 v0, v7, 4, v0")
    E("    s_lshl_b32 s38, s31, 1")
    E("    s_add_u32 s38, s38, s33")
    E("    s_lshl_b32 s38, s38, 17")
    E("    s_lshl_b32 s48, s35, 6")
    E("    s_add_u32 s48, s48, s38")
    E("    v_lshrrev_b32 v7, 2, v5")
    E("    v_lshl_add_u32 v7, v3, 2, v7")
    E("    v_lshlrev_b32 v14, 6, v7")
    E("    v_bfe_u32 v7, v1, 4, 1")
    E("    v_lshl_add_u32 v14, v7, 5, v14")
    E("    v_and_b32 v7, 3, v5")
    E("    v_lshl_add_u32 v14, v7, 3, v14")
    E("    v_add_u32 v14, s37, v14")
    E(f"    s_mul_i32 s42, s30, {2*HB}")
    E("    s_lshl_b32 s38, s51, 10")
    E("    s_add_u32 s42, s42, s38")
    E(f"    s_add_u32 s43, s42, {HB}")
    E("    s_lshl_b32 s36, s30, 8")
    E(f"    s_add_u32 s36, s36, {FH_OFF}")
    masks = []
    for lo, hi in (((0, 3), (4, 7), (8, 11), (11, 15)) if MAP == 2 else ((0, 3), (3, 7), (7, 10), (10, 15))):
        m16 = ((1 << (hi + 1)) - 1) & ~((1 << lo) - 1)
        masks.append(m16 | (m16 << 16))
    E(f"    s_mov_b32 s50, {masks[0]:#x}")
    for w in range(1, 4):
        E(f"    s_cmp_eq_u32 s3, {w}")
        E(f"    s_cselect_b32 s50, {masks[w]:#x}, s50")
    E("    s_mov_b32 s51, 0")
    E("    s_mul_i32 s38, s31, 44")
    E("    v_add_u32 v6, s38, v1")
    E("    v_cmp_le_u32 vcc, 176, v6")
    E("    v_subrev_u32 v7, 176, v6")
    E("    v_cndmask_b32 v6, v6, v7, vcc")
    E("    s_cmp_lt_u32 s3, 2")
    E("    s_cselect_b32 s38, 8, 0")
    E("    s_add_u32 s38, s38, 167")
    E("    v_min_u32 v6, s38, v6")
    E("    v_lshlrev_b32 v6, 7, v6")
    E(f"    v_mov_b32 v7, {HB}")
    E("    v_cndmask_b32 v7, 0, v7, vcc")
    E("    v_add_u32 v6, v6, v7")
    if not WLATE:
        vm.wait("hst")
        flag_store(vm, "s39")
        stamp(10, vm)
    E("    s_waitcnt lgkmcnt(0)")
    for i in range(10, 10 + NPRE):
        for f in wdma_ops(vm, i):
            f()
    vm.wait("x")
    T = ACC
    for d in range(8):
        E(f"    v_lshlrev_b32 v{T+2*d}, 16, v{XT+d}")
        E(f"    v_and_b32 v{T+2*d+1}, s40, v{XT+d}")
    for j in range(16):
        E(f"    v_add_f32 v{T+j}, v{T+j}, v{GR2}")
    for j in range(16):
        E(f"    v_cvt_pk_bf16_f32 v{T+j}, 0, v{T+j}")
    for j in range(16):
        E(f"    v_mul_f32 v{T+j}, v{T+j}, v{GR2+1}")
    for d in range(8):
        E(f"    v_cvt_pk_bf16_f32 v{NT+d}, v{T+2*d}, v{T+2*d+1}")
    stamp(11, vm)
    poll(vm, "s36", "s[50:51]")
    stampval(21, "s92", vm)
    stamp(12, vm)

    hreg = {}

    def hload(i, r):
        hreg[i] = r
        if i % 4 == 0 and i:
            E("    s_add_u32 s42, s42, 4096")
            E("    s_add_u32 s43, s43, 4096")
        off = (i % 4) * 1024
        if i == NK - 1:
            assert off == 1024
            E("    s_cmp_lt_u32 s3, 2")
            E("    s_cselect_b32 s38, 1024, 0")
            E("    s_add_u32 s42, s42, s38")
            E("    s_add_u32 s43, s43, s38")
            off = 0
        for e_ in range(2):
            E(f"    buffer_load_dwordx4 v[{r+4*e_}:{r+4*e_+3}], v8, s[20:23], s{42+e_} offen offset:{off}")
            vm.issue(("h", i))

    if int(os.environ.get("HT", "1")):
        E("    s_mov_b32 exec_hi, 0xfff")
        E("    buffer_load_dword v7, v6, s[20:23], s42 offen")
        E("    s_mov_b64 exec, -1")
        vm.issue("pf")
    for i in range(NH):
        hload(i, HB0[i])
    hn = NH

    def wsrc(i):
        return WREG[i] if i < NPRE else WT + 8 * (i % 2)

    def y_dma():
        for j in range(2):
            E(f"    s_add_u32 s38, s48, {16*4096*j}")
            E(f"    s_add_u32 m0, s37, {YSLOT*8192 + 1024*j}")
            E("    s_nop 0")
            E("    buffer_load_dwordx4 v0, s[44:47], s38 offen lds")

    FYC = int(os.environ.get("FYC", "14"))
    for i in range(NK):
        if i == NK - 1:
            E("    s_cmp_ge_u32 s3, 2")
            E("    s_cbranch_scc1 pc_skip")
        vm.wait(("h", i))
        if i in (0, 4, 8):
            stamp({0: 2, 4: 29, 8: 30}[i], vm)
        if i >= NPRE:
            E("    s_waitcnt lgkmcnt(0)")
        if NPRE <= i + 1 < NK:
            vm.wait(("w", i + 1))
            wread(WT + 8 * ((i + 1) % 2), wslot(i + 1))
        h = hreg[i]
        w = wsrc(i)
        for wd in range(2):
            for wm in range(2):
                a = ACC + 16 * (2 * wd + wm)
                c = "0" if i == 0 else f"v[{a}:{a+15}]"
                E(f"    v_mfma_f32_32x32x16_bf16 v[{a}:{a+15}], v[{w+4*wd}:{w+4*wd+3}], v[{h+4*wm}:{h+4*wm+3}], {c}")
        for r in [h] + ([w] if i < NPRE else []):
            if hn < NK:
                hload(hn, r)
                hn += 1
        if NPRE <= i < 10:
            for f in wdma_ops(vm, i + 10):
                f()
        if i in (11, 12):
            for f in wdma_ops(vm, i + 9):
                f()
        if i == FYI:
            E(f"    s_lshl_b32 s93, s49, {FSH}")
            E("    s_mov_b32 exec_hi, 0")
            E(f"    buffer_load_dwordx2 v[{PA}:{PA+1}], v{VL8}, s[56:59], s93 offen sc0 sc1")
            E("    s_mov_b64 exec, -1")
            vm.issue("fy")
        if i == FYC:
            vm.wait("fy")
            E("    s_mov_b32 exec_hi, 0")
            E(f"    v_cmp_ne_u64 vcc, s[90:91], v[{PA}:{PA+1}]")
            E("    s_mov_b64 exec, -1")
            E("    s_cmp_eq_u64 vcc, 0")
            E("    s_cselect_b32 s28, 1, 0")
            E("    s_cbranch_scc0 fy_no")
            y_dma()
            E("fy_no:")
            stamp(14, vm)
    E("pc_skip:")
    stamp(13)
    E("    s_waitcnt vmcnt(0) lgkmcnt(0)")
    E("    v_add_u32 v6, s37, v8")
    E(f"    v_add_u32 v6, {RSL*8192}, v6")
    E("    s_lshl_b32 s36, s3, 14")
    E(f"    s_add_u32 s36, s36, {RSL*8192}")
    E("    v_add_u32 v7, s36, v8")
    YR = 32
    PS = 152
    RS = 216
    TT = 232

    def y_read():
        for q in range(4):
            E(f"    ds_read_b64_tr_b16 v[{YR+2*q}:{YR+2*q+1}], v14 offset:{YSLOT*8192 + q*512}")

    def acc_out():
        for q in range(4):
            for jq in range(4):
                a = ACC + 16 * q + 4 * jq
                E(f"    ds_write_b128 v6, v[{a}:{a+3}] offset:{(2*q + jq//2)*8192 + (jq%2)*1024}")
        E("    s_waitcnt lgkmcnt(0)")
        E("    s_barrier")
        for w in range(4):
            for jq in range(4):
                r = PS + 16 * w + 4 * jq
                E(f"    ds_read_b128 v[{r}:{r+3}], v7 offset:{(jq//2)*8192 + w*2048 + (jq%2)*1024}")

    def a_term():
        for q in range(4):
            t = TT
            xs = [RS + 4 * q + e_ for e_ in range(4)]
            ns = [t + e_ for e_ in range(4)]
            ys = [t + 4 + e_ for e_ in range(4)]
            for (dst, src) in ((xs, XT + 2 * q), (ns, NT + 2 * q), (ys, YR + 2 * q)):
                E(f"    v_lshlrev_b32 v{dst[0]}, 16, v{src}")
                E(f"    v_and_b32 v{dst[1]}, s40, v{src}")
                E(f"    v_lshlrev_b32 v{dst[2]}, 16, v{src+1}")
                E(f"    v_and_b32 v{dst[3]}, s40, v{src+1}")
            for e_ in (0, 2):
                E(f"    v_pk_mul_f32 v[{ns[e_]}:{ns[e_]+1}], v[{ns[e_]}:{ns[e_]+1}], v[{ys[e_]}:{ys[e_]+1}]")
            for e_ in range(4):
                E(f"    v_cvt_pk_bf16_f32 v{ns[e_]}, 0, v{ns[e_]}")
            for e_ in (0, 2):
                E(f"    v_pk_add_f32 v[{xs[e_]}:{xs[e_]+1}], v[{xs[e_]}:{xs[e_]+1}], v[{ns[e_]}:{ns[e_]+1}]")
            for e_ in range(4):
                E(f"    v_cvt_pk_bf16_f32 v{xs[e_]}, 0, v{xs[e_]}")

    def b_sum():
        E("    s_waitcnt lgkmcnt(8)")
        for j in range(0, 16, 2):
            E(f"    v_pk_add_f32 v[{PS+j}:{PS+j+1}], v[{PS+j}:{PS+j+1}], v[{PS+16+j}:{PS+16+j+1}]")
        E("    s_waitcnt lgkmcnt(0)")
        for j in range(0, 16, 2):
            E(f"    v_pk_add_f32 v[{PS+32+j}:{PS+32+j+1}], v[{PS+32+j}:{PS+32+j+1}], v[{PS+48+j}:{PS+48+j+1}]")
        for j in range(0, 16, 2):
            E(f"    v_pk_add_f32 v[{PS+j}:{PS+j+1}], v[{PS+j}:{PS+j+1}], v[{PS+32+j}:{PS+32+j+1}]")
        for j in range(16):
            E(f"    v_cvt_pk_bf16_f32 v{PS+j}, 0, v{PS+j}")

    E("    s_cmp_eq_u32 s28, 0")
    E("    s_cbranch_scc1 fin_slow")
    y_read()
    E("    s_nop 7")
    acc_out()
    a_term()
    b_sum()
    E("    s_branch fin_out")
    E("fin_slow:")
    E("    s_nop 7")
    acc_out()
    b_sum()
    if 'g' not in os.environ.get('XP', '') and not CX:
        poll(vm, "s49", "0xffffffff")
    stamp(15)
    y_dma()
    E("    s_waitcnt vmcnt(0)")
    y_read()
    E("    s_waitcnt lgkmcnt(0)")
    a_term()
    E("fin_out:")
    for jq in range(4):
        a = PS + 4 * jq
        xs = [RS + 4 * jq + e_ for e_ in range(4)]
        for e_ in (0, 2):
            E(f"    v_pk_add_f32 v[{xs[e_]}:{xs[e_]+1}], v[{xs[e_]}:{xs[e_]+1}], v[{a+e_}:{a+e_+1}]")
        o = TT + 2 * jq
        E(f"    v_cvt_pk_bf16_f32 v{o}, v{xs[0]}, v{xs[1]}")
        E(f"    v_cvt_pk_bf16_f32 v{o+1}, v{xs[2]}, v{xs[3]}")
        E(f"    buffer_store_dwordx2 v[{o}:{o+1}], v13, s[52:55], 0 offen offset:{16*jq}")
    if DIAG:
        E("    s_waitcnt vmcnt(0)")
    stamp(31)
    E("    s_endpgm")
    VL8 = VL8_saved


def gen_kernel():
    E(f".globl {KNAME}")
    E(".p2align 8")
    E(f".type {KNAME},@function")
    E(f"{KNAME}:")
    E("    s_cmp_ge_u32 s2, 512")
    E("    s_cbranch_scc1 k_done")
    E("    s_load_dwordx16 s[64:79], s[0:1], 0")
    E("    s_load_dwordx8 s[80:87], s[0:1], 64")
    E("    s_load_dwordx2 s[88:89], s[0:1], 96")
    E("    s_memrealtime s[90:91]")
    E("    s_mov_b32 s40, 0xffff0000")
    E("    v_and_b32 v1, 63, v0")
    E("    v_lshrrev_b32 v2, 6, v0")
    E(f"    v_lshlrev_b32 v{VL8}, {3+FSH}, v1")
    E("    v_readfirstlane_b32 s3, v2")
    E("    s_waitcnt lgkmcnt(0)")
    stamp_init()
    stamp(0)
    srd_off(56, 88, 89, WS_FLAG, FLAG_BYTES)
    srd(60, 86, 87, 256)
    E("    s_cmp_lt_u32 s2, 256" if CFIRST else "    s_cmp_ge_u32 s2, 256")
    E("    s_cbranch_scc1 c_type")
    gen_gtype()
    gen_ctype()
    E("k_done:")
    E("    s_endpgm")


def main():
    hdr = open("parallel_sum__ssm_conv_h3__glu_gated_bilinear__prompt.s.ref").read().splitlines()
    for l in hdr:
        if l.startswith("; Override") or l.startswith("; grid=") or l.startswith("; @launch"):
            continue
        if not l.startswith(";"):
            break
        E(l)
    E(f"; @launch grid=(512,1,1) block=(256,1,1) lds={LDS_BYTES}")
    E('.amdgcn_target "amdgcn-amd-amdhsa--gfx950"')
    E(".text")
    gen_kernel()
    E('.section .rodata,"a"')
    E(".p2align 6")
    E(f".amdhsa_kernel {KNAME}")
    E("  .amdhsa_next_free_vgpr 256")
    E("  .amdhsa_next_free_sgpr 102")
    E("  .amdhsa_accum_offset 256")
    E("  .amdhsa_group_segment_fixed_size 0")
    E("  .amdhsa_kernarg_size 104")
    E("  .amdhsa_user_sgpr_count 2")
    E("  .amdhsa_user_sgpr_kernarg_segment_ptr 1")
    E("  .amdhsa_system_sgpr_workgroup_id_x 1")
    E(".end_amdhsa_kernel")
    path = sys.argv[1] if len(sys.argv) > 1 else "fused.s"
    open(path, "w").write("\n".join(out) + "\n")
    print("wrote", path, len(out), "lines")


main()
```

```python
import sys, os

S, D, F = 2048, 512, 1376
WS_XN = 0x000000
WS_KVR = 0x200000
WS_H = 0x400000
WS_YT = 0xA00000
WS_FLAG = 0xC00000
WS_KVA = 0xE00000
FX_OFF = 0x0000
FK_OFF = 0x2000
FH_OFF = 0x4000
FY_OFF = 0x6000
FSH = int(os.environ.get("FSH", "4"))
FG_OFF = 0x8000
FLAG_BYTES = 0x9000 << FSH
HS = int(os.environ.get("HS", "10"))
HB = 86 * 1024
H_BYTES = 64 * HB
KNAME = "parallel_sum__ssm_conv_h3__glu_gated_bilinear__prompt_kernel"
POLL_LIMIT = 200000

out = []


def E(s=""):
    out.append(s)


class VM:
    def __init__(self):
        self.q = []

    def issue(self, tag):
        self.q.append(tag)

    def wait(self, tag):
        idx = -1
        for i, t in enumerate(self.q):
            if t == tag:
                idx = i
        if idx < 0:
            return
        n = len(self.q) - 1 - idx
        assert n <= 63, n
        E(f"    s_waitcnt vmcnt({n})")
        self.q = self.q[idx + 1:]

    def wait_all(self):
        E("    s_waitcnt vmcnt(0)")
        self.q = []


DIAG = len(sys.argv) > 2 and sys.argv[2] == "diag"
LITE = len(sys.argv) > 2 and sys.argv[2] == "lite"
STAMP_WS = 0x2000000


def stamp_init():
    if not (DIAG or LITE):
        return
    E(f"    s_add_u32 s96, s88, {STAMP_WS}")
    E("    s_addc_u32 s97, s89, 0")
    E("    s_and_b32 s97, s97, 0xffff")
    E("    s_mov_b32 s98, 0x80000")
    E("    s_mov_b32 s99, 0x00020000")
    E("    s_lshl_b32 s100, s2, 2")
    E("    s_add_u32 s100, s100, s3")
    E("    s_lshl_b32 s100, s100, 7")
    E("    v_mov_b32 v254, s100")


def stamp(slot, vm=None):
    if not (DIAG or (LITE and (slot in (0, 31) or (slot == 8 and vm is None)))):
        return
    E("    s_waitcnt lgkmcnt(0)")
    E("    s_memrealtime s[100:101]")
    E("    s_waitcnt lgkmcnt(0)")
    E("    v_mov_b32 v255, s100")
    E("    s_mov_b64 s[94:95], exec")
    E("    s_mov_b64 exec, 1")
    E(f"    buffer_store_dword v255, v254, s[96:99], 0 offen offset:{4*slot}")
    E("    s_mov_b64 exec, s[94:95]")
    if vm is not None:
        vm.issue("stamp")


def stampclk(slot, vm=None):
    if not DIAG:
        return
    E("    s_waitcnt lgkmcnt(0)")
    E("    s_memtime s[100:101]")
    E("    s_waitcnt lgkmcnt(0)")
    stampval(slot, "s100", vm)


def stampval(slot, sg, vm=None):
    if not DIAG:
        return
    E(f"    v_mov_b32 v255, {sg}")
    E("    s_mov_b64 s[94:95], exec")
    E("    s_mov_b64 exec, 1")
    E(f"    buffer_store_dword v255, v254, s[96:99], 0 offen offset:{4*slot}")
    E("    s_mov_b64 exec, s[94:95]")
    if vm is not None:
        vm.issue("stamp")


def srd(dst, lo, hi, nbytes):
    E(f"    s_mov_b32 s{dst}, s{lo}")
    E(f"    s_and_b32 s{dst+1}, s{hi}, 0xffff")
    E(f"    s_mov_b32 s{dst+2}, {nbytes}")
    E(f"    s_mov_b32 s{dst+3}, 0x00020000")


def srd_off(dst, lo, hi, off, nbytes):
    E(f"    s_add_u32 s{dst}, s{lo}, {off}")
    E(f"    s_addc_u32 s{dst+1}, s{hi}, 0")
    E(f"    s_and_b32 s{dst+1}, s{dst+1}, 0xffff")
    E(f"    s_mov_b32 s{dst+2}, {nbytes}")
    E(f"    s_mov_b32 s{dst+3}, 0x00020000")


def wave_reduce_add(v, t):
    E("    s_nop 1")
    E(f"    v_add_f32_dpp v{t}, v{v}, v{v} quad_perm:[1,0,3,2] row_mask:0xf bank_mask:0xf")
    E("    s_nop 1")
    E(f"    v_add_f32_dpp v{v}, v{t}, v{t} quad_perm:[2,3,0,1] row_mask:0xf bank_mask:0xf")
    E("    s_nop 1")
    E(f"    v_add_f32_dpp v{t}, v{v}, v{v} row_half_mirror row_mask:0xf bank_mask:0xf")
    E("    s_nop 1")
    E(f"    v_add_f32_dpp v{v}, v{t}, v{t} row_mirror row_mask:0xf bank_mask:0xf")
    E(f"    v_mov_b32 v{t}, v{v}")
    E("    s_nop 1")
    E(f"    v_permlane16_swap_b32 v{v}, v{t}")
    E("    s_nop 1")
    E(f"    v_add_f32 v{v}, v{v}, v{t}")
    E(f"    v_mov_b32 v{t}, v{v}")
    E("    s_nop 1")
    E(f"    v_permlane32_swap_b32 v{v}, v{t}")
    E("    s_nop 1")
    E(f"    v_add_f32 v{v}, v{v}, v{t}")


def round_pair(a, b, t, mask_sgpr):
    E(f"    v_cvt_pk_bf16_f32 v{t}, v{a}, v{b}")
    E(f"    v_lshlrev_b32 v{a}, 16, v{t}")
    E(f"    v_and_b32 v{b}, s{mask_sgpr}, v{t}")


PA, PB, TK, VL8 = 248, 250, 252, 247
_lbl = [0]


def token_issue(vm):
    E(f"    buffer_load_dwordx2 v[{TK}:{TK+1}], off, s[60:63], 0")
    vm.issue("tok")


def token_get(vm):
    _lbl[0] += 1
    n = _lbl[0]
    vm.wait("tok")
    E(f"    s_mov_b32 s92, {POLL_LIMIT}")
    E(f"tok_l{n}:")
    E(f"    v_readfirstlane_b32 s90, v{TK}")
    E(f"    v_readfirstlane_b32 s91, v{TK+1}")
    E("    s_cmp_lg_u32 s90, 0")
    E(f"    s_cbranch_scc1 tok_d{n}")
    E(f"    buffer_load_dwordx2 v[{TK}:{TK+1}], off, s[60:63], 0 sc0 sc1")
    E("    s_waitcnt vmcnt(0)")
    E("    s_sub_u32 s92, s92, 1")
    E("    s_cmp_lg_u32 s92, 0")
    E(f"    s_cbranch_scc1 tok_l{n}")
    E(f"tok_d{n}:")


def flag_store(vm, soff):
    E(f"    s_lshl_b32 s93, {soff}, {FSH}")
    E("    s_mov_b64 exec, 1")
    E(f"    buffer_store_dwordx2 v[{TK}:{TK+1}], off, s[56:59], s93 sc0 sc1")
    E("    s_mov_b64 exec, -1")
    vm.issue("flag")


POLL_SLEEP = int(os.environ.get("PS", "4"))


def poll(vm, soff, mask, gap=6):
    _lbl[0] += 1
    n = _lbl[0]
    if mask == "0xffffffff":
        E("    s_mov_b32 exec_hi, 0")
    else:
        E(f"    s_mov_b64 exec, {mask}")
    E(f"    s_mov_b32 s92, {POLL_LIMIT}")
    E(f"    s_lshl_b32 s93, {soff}, {FSH}")
    E(f"poll_l{n}:")
    E(f"    buffer_load_dwordx2 v[{PA}:{PA+1}], v{VL8}, s[56:59], s93 offen sc0 sc1")
    E("    s_waitcnt vmcnt(0)")
    E(f"    v_cmp_ne_u64 vcc, s[90:91], v[{PA}:{PA+1}]")
    E("    s_cmp_eq_u64 vcc, 0")
    E(f"    s_cbranch_scc1 poll_d{n}")
    E("    s_mov_b64 exec, vcc")
    E(f"    s_sleep {POLL_SLEEP}")
    E("    s_sub_u32 s92, s92, 1")
    E("    s_cmp_lg_u32 s92, 0")
    E(f"    s_cbranch_scc1 poll_l{n}")
    E(f"poll_d{n}:")
    E("    s_mov_b64 exec, -1")
    vm.q = []


PP = int(os.environ.get("PP", "0"))
PPS = int(os.environ.get("PPS", "2"))


def poll2(vm, soff, mask):
    _lbl[0] += 1
    n = _lbl[0]
    E(f"    s_mov_b64 exec, {mask}")
    E(f"    s_mov_b32 s92, {POLL_LIMIT}")
    E(f"    s_lshl_b32 s93, {soff}, {FSH}")
    E(f"    buffer_load_dwordx2 v[{PA}:{PA+1}], v{VL8}, s[56:59], s93 offen sc0 sc1")
    E(f"    s_sleep {2*PPS}")
    E(f"poll_l{n}:")
    for a, b in ((PA, PB), (PB, PA)):
        E(f"    buffer_load_dwordx2 v[{b}:{b+1}], v{VL8}, s[56:59], s93 offen sc0 sc1")
        E("    s_waitcnt vmcnt(1)")
        E(f"    v_cmp_ne_u64 vcc, s[90:91], v[{a}:{a+1}]")
        E("    s_cmp_eq_u64 vcc, 0")
        E(f"    s_cbranch_scc1 poll_d{n}")
        E("    s_mov_b64 exec, vcc")
        if PPS:
            E(f"    s_sleep {PPS}")
    E("    s_sub_u32 s92, s92, 1")
    E("    s_cmp_lg_u32 s92, 0")
    E(f"    s_cbranch_scc1 poll_l{n}")
    E(f"poll_d{n}:")
    E("    s_mov_b64 exec, -1")
    vm.q = ["pl"]


TG = int(os.environ.get("TG", "128"))


def w_touch(vm, lo, hi, sr, vt):
    srd(44, lo, hi, D * F * 2)
    E(f"    s_lshl_b32 s38, {sr}, 2")
    E("    s_add_u32 s38, s38, s3")
    E("    s_mul_i32 s38, s38, 4*2752")
    sh = 4 if TG == 128 else 5
    E(f"    v_lshrrev_b32 v{vt}, {sh}, v1")
    E(f"    v_mul_u32_u24 v{vt}, 2752, v{vt}")
    E(f"    v_and_b32 v{vt+1}, {(1 << sh) - 1}, v1")
    E(f"    v_min_u32 v{vt+1}, {12 if TG == 128 else 24}, v{vt+1}")
    E(f"    v_lshlrev_b32 v{vt+1}, {7 if TG == 128 else 6}, v{vt+1}")
    E("    s_and_b32 s93, s2, 1")
    E("    s_mul_i32 s93, s93, 1536")
    E(f"    v_add_u32 v{vt+1}, s93, v{vt+1}")
    E(f"    v_min_u32 v{vt+1}, 2750, v{vt+1}")
    E(f"    v_add_u32 v{vt}, v{vt}, v{vt+1}")
    E(f"    buffer_load_ushort v{vt+1}, v{vt}, s[44:47], s38 offen")
    vm.issue("pf")
    if TG == 64:
        E("    s_add_u32 s38, s38, 2*2752")
        E(f"    buffer_load_ushort v{vt+1}, v{vt}, s[44:47], s38 offen")
        vm.issue("pf")


WS_ST = 0x000000
S_ONE = 6
GPRIO = int(os.environ.get("GPRIO", "3"))
GPRIO2 = int(os.environ.get("GPRIO2", "3"))
GPRIO3 = int(os.environ.get("GPRIO3", "0"))
GP3AT = int(os.environ.get("GP3AT", "1"))
XK = int(os.environ.get("XK", "20"))
NW0 = int(os.environ.get("NW0", "4"))
XNE = int(os.environ.get("XNE", "1"))
CE = int(os.environ.get("CE", "0"))
P1W = int(os.environ.get("P1W", "1"))
PS0 = int(os.environ.get("PS0", "0"))
KSC = os.environ.get("KSC", "sc0 sc1")
XP = os.environ.get("XP", "")
TLB = int(os.environ.get("TLB", "0"))
GP4 = int(os.environ.get("GP4", "-1"))
CPRIO = int(os.environ.get("CPRIO", "1"))
KFL = int(os.environ.get("KFL", "0"))
ROT = int(os.environ.get("ROT", "1"))
CPRIO2 = int(os.environ.get("CPRIO2", "1"))
TOUCH = os.environ.get("TOUCH", "none")
CFIRST = int(os.environ.get("CFIRST", "0"))
WD_AT = os.environ.get("WD_AT", "g")
WDK = int(os.environ.get("WDK", "25"))
NBI = int(os.environ.get("NBI", "9"))
PUBK = int(os.environ.get("PUBK", "6"))
GRC = int(os.environ.get("GRC", "30"))
GRK = int(os.environ.get("GRK", "22"))
FYI = int(os.environ.get("FYI", "10"))
WLATE = 1
WDK2 = int(os.environ.get("WDK2", "22"))
CX = int(os.environ.get("CX", "0"))
RP = int(os.environ.get("RP", "-3"))
MAP = int(os.environ.get("MAP", "2"))
HELP = int(os.environ.get("HELP", "0"))
PKC = int(os.environ.get("PKC", "0"))
HI = 40960
GR1, XA, WA, WDV, XDV, DDV, SEL, GR2 = 4, 9, 13, 17, 20, 22, 24, 28
WF, XF, GACC, CS, PUB = 32, 56, 120, 216, 228
WREG = [216, 224, 80, 240, 32, 40]
NPRE = 6
XROW = 6


def la(reg, off):
    if off >= HI:
        return f"v{reg+6} offset:{off-HI}"
    return f"v{reg} offset:{off}"


def wslot(i):
    if i < 10:
        return i
    if i < 20:
        return i - 10
    return i - 19


def wdma_ops(vm, i):
    ops = []
    for j in range(2):
        def f(j=j):
            E(f"    s_add_u32 s38, s41, {(16*i + 8*j)*1024}")
            E(f"    s_add_u32 m0, s37, {wslot(i)*8192 + j*1024}")
            E("    s_nop 0")
            E(f"    buffer_load_dwordx4 v{DDV}, s[8:11], s38 offen lds")
            vm.issue(("w", i))
        ops.append(f)
    return ops


def wread(dst, slot):
    for wd in range(2):
        r = dst + 4 * wd
        E(f"    ds_read_b64_tr_b16 v[{r}:{r+1}], {la(11+wd, slot*8192)}")
        E(f"    ds_read_b64_tr_b16 v[{r+2}:{r+3}], {la(11+wd, slot*8192+512)}")


def gen_gtype_path(nt, vm0):
    vm = VM()
    vm.q = list(vm0.q)
    ACC = GACC
    P = 64 * nt
    CH = 16 * P
    STG = 4 * CH
    WB0 = 32768
    NB = (LDS_BYTES - WB0) // STG
    n = 2 * nt

    def w_dma(st):
        ops = []
        for i in range(nt):
            def f(i=i):
                if i == 0:
                    if st:
                        E(f"    s_add_u32 s48, s48, {32*2752}")
                        E("    s_cmp_ge_u32 s48, s49")
                        E(f"    s_cselect_b32 s38, {16*32*2752}, 0")
                        E("    s_sub_u32 s48, s48, s38")
                    E(f"    s_add_u32 m0, s43, {WB0 + (st % NB)*STG}")
                    E("    s_nop 0")
                E(f"    buffer_load_dwordx4 v{WDV+i}, s[52:55], s48 offen offset:{1024*i} lds")
                vm.issue(("W", st))
            ops.append(f)
        return ops

    def x_dma(p):
        ops = []
        for a in range(4):
            def f(a=a):
                if a == 0:
                    if p:
                        E("    s_add_u32 s32, s32, 128")
                        E("    s_bitset0_b32 s32, 10")
                    E(f"    s_add_u32 m0, s7, {(p % 2)*16384}")
                    E("    s_nop 0")
                    so = "s32"
                else:
                    E(f"    s_add_u32 s38, s32, {a*(8192-1024)}")
                    so = "s38"
                E(f"    buffer_load_dwordx4 v{XDV + a % 2}, s[16:19], {so} offen offset:{1024*a} lds")
                vm.issue(("X", p))
            ops.append(f)
        return ops

    def run(lst, cnt=999):
        for _ in range(min(cnt, len(lst))):
            t = lst.pop(0)
            if isinstance(t, str):
                if "buffer_store" in t:
                    vm.wait("xt")
                E(t)
                if "buffer_store" in t:
                    vm.issue("hst")
            else:
                t()

    run(x_dma(0))
    E(f"    s_mul_i32 s43, s3, {CH}")
    E("    s_lshr_b32 s5, s3, 1")
    E("    s_cmp_eq_u32 s5, 1")
    E("    s_cselect_b32 s52, s80, s78")
    E("    s_cselect_b32 s53, s81, s79")
    E("    s_and_b32 s53, s53, 0xffff")
    E(f"    s_mov_b32 s54, {D*F*2}")
    E("    s_mov_b32 s55, 0x00020000")
    E("    s_and_b32 s49, s3, 1")
    E(f"    s_mul_i32 s38, s49, {nt*1024}")
    E("    s_add_u32 s42, s42, s38")
    E("    s_mul_i32 s48, s49, 16*2752")
    E("    s_add_u32 s48, s48, s36")
    E("    s_movk_i32 s49, 2752")
    E("    s_lshl_b32 s34, s5, 1")
    for i in range(nt):
        E(f"    v_add_u32 v14, {64*i}, v1")
        if nt == 3:
            E("    v_mul_u32_u24 v15, 0x5556, v14")
            E("    v_lshrrev_b32 v15, 18, v15")
            E("    v_mul_u32_u24 v13, 12, v15")
            E("    v_sub_u32 v14, v14, v13")
        else:
            E("    v_lshrrev_b32 v15, 3, v14")
            E("    v_and_b32 v14, 7, v14")
            E("    v_bfe_u32 v13, v1, 4, 1")
            E("    v_lshlrev_b32 v13, 2, v13")
            E("    v_xor_b32 v14, v14, v13")
        E("    v_xor_b32 v14, s34, v14")
        E("    v_mul_lo_u32 v15, v15, s49")
        E(f"    v_lshl_add_u32 v{WDV+i}, v14, 4, v15")
        if i:
            E(f"    v_subrev_u32 v{WDV+i}, {1024*i}, v{WDV+i}")
    E(f"    s_add_u32 s49, s48, {16*32*2752}")
    E(f"    s_mul_i32 s38, s29, {32*2752}")
    E("    s_add_u32 s48, s48, s38")
    run(w_dma(0))
    run(w_dma(1))
    run(x_dma(1))
    for st in range(2, NB):
        run(w_dma(st))
    E("    v_lshrrev_b32 v3, 5, v1")
    E("    v_and_b32 v2, 15, v1")
    E("    v_lshrrev_b32 v4, 2, v2")
    E("    v_lshl_add_u32 v4, v3, 3, v4")
    E(f"    v_mul_u32_u24 v4, {P}, v4")
    E("    v_bfe_u32 v5, v1, 4, 1")
    E(f"    v_mul_u32_u24 v6, {2*CH}, v5")
    E("    v_add_u32 v4, v4, v6")
    E("    v_and_b32 v2, 3, v2")
    E("    v_lshl_add_u32 v4, v2, 3, v4")
    E("    v_lshlrev_b32 v5, 5, v5")
    if nt == 2:
        E("    v_bfe_u32 v2, v1, 3, 1")
        E("    v_lshlrev_b32 v2, 6, v2")
        E("    v_xor_b32 v5, v5, v2")
    E("    s_and_b32 s34, s3, 1")
    E(f"    s_mul_i32 s34, s34, {32*nt}")
    E(f"    s_mul_i32 s38, s5, {CH}")
    E(f"    s_add_u32 s38, s38, {WB0}")
    E("    v_add_u32 v4, s38, v4")
    for t in range(2):
        E(f"    s_add_u32 s38, s34, {32*t}")
        E("    v_xor_b32 v6, s38, v5")
        E(f"    v_add_u32 v{WA+t}, v4, v6")
    E(f"    s_mul_i32 s38, s5, {2*CH}")
    E(f"    s_sub_u32 s38, {CH}, s38")
    for t in range(2):
        E(f"    v_add_u32 v{WA+2+t}, s38, v{WA+t}")
    E("    v_and_b32 v4, 31, v1")
    E("    v_bfe_u32 v5, v1, 1, 3")
    E("    v_xor_b32 v5, v5, v3")
    E("    v_lshlrev_b32 v5, 4, v5")
    E("    v_lshl_add_u32 v5, v4, 7, v5")
    E("    s_lshl_b32 s38, s5, 5")
    E("    v_xor_b32 v5, s38, v5")
    E("    s_lshl_b32 s38, s5, 13")
    E(f"    v_add_u32 v{XA}, s38, v5")
    for j in range(1, 4):
        E(f"    v_xor_b32 v{XA+j}, {32*j}, v{XA}")
    E("    v_lshrrev_b32 v2, 2, v1")
    E("    v_lshrrev_b32 v3, 4, v1")
    E("    v_xor_b32 v2, v2, v3")
    E("    v_and_b32 v2, 1, v2")
    E("    v_cmp_eq_u32 vcc, 0, v2")
    E(f"    v_mov_b32 v3, s{S_ONE}")
    E("    s_nop 0")
    for j in range(4):
        E(f"    v_cndmask_b32 v{SEL+j}, 0, v3, vcc")
    E("    v_and_b32 v2, 31, v1")
    E("    v_lshrrev_b32 v3, 5, v1")
    E("    v_lshlrev_b32 v23, 10, v2")
    E("    v_lshl_add_u32 v23, v3, 3, v23")
    E("    s_lshl_b32 s38, s4, 1")
    E("    s_and_b32 s34, s3, 1")
    E("    s_add_u32 s38, s38, s34")
    E("    s_lshl_b32 s38, s38, 15")
    E("    s_and_b32 s34, s33, 7")
    E("    s_lshl_b32 s34, s34, 7")
    E("    s_add_u32 s38, s38, s34")
    E("    s_lshl_b32 s34, s5, 6")
    E("    s_add_u32 s38, s38, s34")
    E("    v_add_u32 v23, s38, v23")
    R, SA = ACC, ACC + 8
    for j in range(4):
        E(f"    v_mov_b32 v{SA+j}, 0")
    vm.wait("st")
    stamp(1, vm)
    for d in range(8):
        E(f"    v_dot2c_f32_bf16 v{SA+d%2}, s{S_ONE}, v{R+d}")
        E(f"    v_dot2c_f32_bf16 v{SA+2+d%2}, v{R+d}, v{R+d}")
    E("    s_nop 3")
    a_, b_ = SA + 4, SA + 6
    for j in range(2):
        E(f"    v_add_f32 v{a_+j}, v{SA+2*j}, v{SA+2*j+1}")
    for ctl in ("quad_perm:[1,0,3,2]", "quad_perm:[2,3,0,1]", "row_half_mirror", "row_mirror"):
        E("    s_nop 1")
        for j in range(2):
            E(f"    v_add_f32_dpp v{b_+j}, v{a_+j}, v{a_+j} {ctl} row_mask:0xf bank_mask:0xf")
        a_, b_ = b_, a_
    for j in range(2):
        E(f"    v_mov_b32 v{b_+j}, v{a_+j}")
    E("    s_nop 1")
    for j in range(2):
        E(f"    v_permlane16_swap_b32 v{a_+j}, v{b_+j}")
    E("    s_nop 1")
    for j in range(2):
        E(f"    v_add_f32 v{a_+j}, v{a_+j}, v{b_+j}")
    M, V_ = a_, a_ + 1
    E(f"    v_mul_f32 v{M}, 0x3b000000, v{M}")
    E(f"    v_mul_f32 v{V_}, 0x3b000000, v{V_}")
    E(f"    v_fma_f32 v{V_}, -v{M}, v{M}, v{V_}")
    E(f"    v_max_f32 v{V_}, 0, v{V_}")
    E(f"    v_cvt_pk_bf16_f32 v{M}, 0, v{M}")
    E(f"    v_cvt_pk_bf16_f32 v{V_}, 0, v{V_}")
    E(f"    v_add_f32 v{V_}, 0x3727c5ac, v{V_}")
    E(f"    v_cvt_pk_bf16_f32 v{V_}, 0, v{V_}")
    E(f"    v_sqrt_f32 v{V_}, v{V_}")
    E(f"    v_sub_f32 v{PUB}, 0, v{M}")
    E(f"    v_cvt_pk_bf16_f32 v{V_}, 0, v{V_}")
    E(f"    v_rcp_f32 v{PUB+1}, v{V_}")
    token_issue(vm)
    stamp(3, vm)
    vm.wait(("W", 0))
    E("    s_barrier")
    stamp(4, vm)
    stampclk(16, vm)

    dq = []

    def ds(tag, text):
        def f():
            E(text)
            dq.append(tag)
        return f

    def ds_wait(tags):
        idx = max([i for i, t in enumerate(dq) if t in tags], default=-1)
        if idx < 0:
            return
        m_ = len(dq) - 1 - idx
        E(f"    s_waitcnt lgkmcnt({min(m_, 15)})")
        if m_ <= 15:
            del dq[:idx + 1]
        else:
            del dq[:len(dq) - 15]

    def wreg(k, t):
        return WF + 12 * (k % 2) + 4 * t

    def xreg(k, e):
        return XF + 8 * (k % 8) + 4 * e

    def w_rd(k):
        bo = ((k // 2) % NB) * STG
        ops = []
        for t in range(nt):
            r = wreg(k, t)
            a = WA + 2 * (k % 2) + t % 2
            off = bo + 64 * (t // 2)
            ops.append(ds(("w", k, t), f"    ds_read_b64_tr_b16 v[{r}:{r+1}], v{a} offset:{off}"))
            ops.append(ds(("w", k, t), f"    ds_read_b64_tr_b16 v[{r+2}:{r+3}], v{a} offset:{off+4*P}"))
        return ops

    def x_rd(k):
        ops = []
        for e in range(2):
            r = xreg(k, e)
            ops.append(ds(("x", k), f"    ds_read_b128 v[{r}:{r+3}], v{XA + k % 4} offset:{((k//4) % 2)*16384 + 4096*e}"))
        return ops

    def cs_mfma(k, t):
        def f():
            a = CS + 4 * t
            c = "0" if k == 0 else f"v[{a}:{a+3}]"
            w = wreg(k, t)
            E(f"    v_mfma_f32_16x16x32_bf16 v[{a}:{a+3}], v[{SEL}:{SEL+3}], v[{w}:{w+3}], {c}")
        return f

    def publish():
        token_get(vm)
        E(f"    v_mov_b32 v{PUB+2}, s90")
        E(f"    v_mov_b32 v{PUB+3}, s91")
        E("    v_lshrrev_b32 v2, 1, v1")
        E("    s_mov_b32 exec_lo, 1")
        E("    s_mov_b32 exec_hi, 1")
        E(f"    buffer_store_dwordx4 v[{PUB}:{PUB+3}], v2, s[12:15], s35 offen sc0 sc1")
        E("    s_mov_b64 exec, -1")
        vm.issue("pub")

    def gr_load():
        E("    v_and_b32 v2, 0x1f0, v8")
        E(f"    buffer_load_dwordx4 v[{GR1}:{GR1+3}], v8, s[12:15], s46 offen sc0 sc1")
        E(f"    buffer_load_dwordx4 v[{GR2}:{GR2+3}], v2, s[12:15], s47 offen sc0 sc1")

    def gr_issue():
        gr_load()
        vm.issue("gr")
        vm.issue("gr")

    def gr_check():
        _lbl[0] += 1
        L = _lbl[0]
        vm.wait("gr")
        E(f"    s_mov_b32 s92, {POLL_LIMIT}")
        E(f"gr_l{L}:")
        E(f"    v_cmp_ne_u64 vcc, s[90:91], v[{GR1+2}:{GR1+3}]")
        E(f"    v_cmp_ne_u64 s[44:45], s[90:91], v[{GR2+2}:{GR2+3}]")
        E("    s_nop 0")
        E("    s_or_b64 vcc, vcc, s[44:45]")
        E(f"    s_cbranch_scc0 gr_d{L}")
        gr_load()
        E("    s_waitcnt vmcnt(0)")
        E("    s_sub_u32 s92, s92, 1")
        E("    s_cmp_lg_u32 s92, 0")
        E(f"    s_cbranch_scc1 gr_l{L}")
        E(f"gr_d{L}:")
        E(f"    v_mov_b32 v{GR1+2}, v{GR1}")
        E(f"    v_mov_b32 v{GR1+3}, v{GR1+1}")
        E("    s_nop 1")
        E(f"    v_permlane32_swap_b32 v{GR1}, v{GR1+2}")
        E(f"    v_permlane32_swap_b32 v{GR1+1}, v{GR1+3}")
        stampval(20, "s92", vm)

    def wdt():
        E("    s_mul_i32 s38, s33, 344*128")
        E("    v_lshlrev_b32 v2, 7, v0")
        E(f"    buffer_load_dword v{PUB}, v2, s[8:11], s38 offen")
        E("    v_min_u32 v3, 87, v0")
        E("    v_lshlrev_b32 v3, 7, v3")
        E("    s_add_u32 s38, s38, 256*128")
        E(f"    buffer_load_dword v{PUB+1}, v3, s[8:11], s38 offen")
        vm.issue("pf")
        vm.issue("pf")

    def xt_load():
        for q in range(4):
            E(f"    buffer_load_dwordx2 v[{232+2*q}:{232+2*q+1}], v23, s[16:19], 0 offen offset:{16*q}")
            vm.issue("xt")

    def acc(t, e):
        return ACC + 16 * (2 * t + e)

    def mm(k, t, e):
        x = xreg(k, e)
        w = wreg(k, t)
        a = acc(t, e)
        c = "0" if k == 0 else f"v[{a}:{a+15}]"
        E(f"    v_mfma_f32_32x32x16_bf16 v[{a}:{a+15}], v[{w}:{w+3}], v[{x}:{x+3}], {c}")

    XCH = 0

    def xw():
        E("    v_and_b32 v2, 31, v1")
        E("    v_lshrrev_b32 v3, 5, v1")
        E("    v_lshlrev_b32 v2, 2, v2")
        E("    v_lshl_add_u32 v2, v3, 12, v2")
        E("    s_lshl_b32 s38, s5, 9")
        E("    s_add_u32 s38, s38, s37")
        E("    v_xor_b32 v2, s38, v2")
        for t in range(nt):
            E(f"    ds_write_b32 v2, v{CS+4*t} offset:{XCH + 128*t}")
            dq.append("xw")

    run(x_rd(0) + w_rd(0) + x_rd(1) + x_rd(2) + x_rd(3))
    pend = []
    xq = []
    for k in range(31):
        st = k // 2
        if k % 2 == 1:
            vm.wait(("W", st + 1))
            if k % 4 == 1 and k < 28:
                vm.wait(("X", k // 4 + 1))
            assert not xq
            E("    s_waitcnt lgkmcnt(0)")
            del dq[:]
            E("    s_barrier")
            if st % 4 == 3 and st < 15 and DIAG:
                stamp(5 + st // 4, vm)
                stampclk(17 + st // 4, vm)
            assert not pend
            if k == 1:
                pend += x_dma(2)
            if st + NB < 16:
                pend += w_dma(st + NB)
            if k % 4 == 3 and k // 4 + 3 < 8:
                pend += x_dma(k // 4 + 3)
            if k % 4 == 1 and k < 28:
                for kk in range(4):
                    xq += x_rd(4 * (k // 4 + 1) + kk)
        slots = [[] for _ in range(n)]
        rd = w_rd(k + 1)
        for s_ in range(nt):
            slots[s_] += rd[2 * s_:2 * s_ + 2]
        cnt = len(xq) // 2 if k % 2 == 1 else len(xq)
        fs = list(range(nt, n))
        for i_ in range(cnt):
            slots[fs[i_ * len(fs) // cnt]].append(xq.pop(0))
        if k % 2 == 0:
            for t in range(nt):
                slots[2 * t + 1 if k < 30 else t + 1].append(cs_mfma(k, t))
        cnt = (len(pend) + 1) // 2 if k % 2 == 1 else len(pend)
        ms = list(range(n))
        todo = [(i_ * n + n - 1) // max(cnt, 1) for i_ in range(cnt)]
        for s_ in todo:
            slots[min(s_, n - 1)].append(pend.pop(0))
        if k == PUBK:
            slots[n - 1].append(publish)
        if k == GRK:
            slots[n - 1].append(gr_issue)
        if k == (WDK if nt == 3 else WDK2) and WD_AT == "g":
            slots[n - 1].append(wdt)
        if k == XK:
            slots[n - 1].append(xt_load)
        if k == GRC:
            slots[n - 1 if k < 30 else 0].append(gr_check)
        if k == 30:
            if nt == 2:
                slots[n - 1].append(lambda: E("    s_nop 7"))
            slots[n - 1].append(xw)
        for t in range(nt):
            for e in range(2):
                if e == 0:
                    tg = [("x", k), ("w", k, t)]
                    if k == 30:
                        tg += [("w", k, t2) for t2 in range(min(nt, 2 * t + 2))]
                    ds_wait(tg)
                mm(k, t, e)
                for f in slots[2 * t + e]:
                    f()
    assert not pend
    E("    s_waitcnt lgkmcnt(0)")
    del dq[:]
    E("    s_barrier")
    E(f"    s_setprio {GPRIO2}")
    E("    v_and_b32 v2, 31, v1")
    E("    v_lshrrev_b32 v3, 5, v1")
    E("    v_lshlrev_b32 v2, 2, v2")
    E("    v_lshl_add_u32 v2, v3, 9, v2")
    E("    v_add_u32 v2, s37, v2")
    CV = CS
    for t in range(nt):
        E(f"    ds_read_b32 v{CV+t}, v2 offset:{XCH + 128*t}")
    BM = XF
    QA = XF + 12
    T0 = XF + 20

    def split_ops(t):
        c = CV + t
        q = QA + 2 * t
        return [f"    v_and_b32 v{T0}, s40, v{c}",
                f"    v_sub_f32 v{c}, v{c}, v{T0}",
                f"    v_and_b32 v{T0+1}, s40, v{c}",
                f"    v_sub_f32 v{c}, v{c}, v{T0+1}",
                f"    v_cvt_pk_bf16_f32 v{q}, v{T0}, v{T0+1}",
                f"    v_cvt_pk_bf16_f32 v{q+1}, v{c}, 0"]

    def corr(t, e):
        q = QA + 4 * (t // 2)
        b = BM + 4 * e + (2 if t % 2 == 0 else 0)
        a = acc(t, e)
        E(f"    v_mfma_f32_32x32x16_bf16 v[{a}:{a+15}], v[{q}:{q+3}], v[{b}:{b+3}], v[{a}:{a+15}]")

    def epi_ops(t, e):
        G = acc(t, e)
        U = G + 8
        rc = GR1 + 2 * e + 1
        o = []
        for j in range(16):
            o.append(f"    v_mul_f32 v{G+j}, v{G+j}, v{rc}")
        for j in range(16):
            o.append(f"    v_cvt_pk_bf16_f32 v{G+j}, 0, v{G+j}")
        for j in range(8):
            o.append(f"    v_mul_f32 v{G+j}, v{G+j}, v{U+j}")
        for j in range(4):
            o.append(f"    v_cvt_pk_bf16_f32 v{U+j}, v{G+2*j}, v{G+2*j+1}")
        o.append("    s_nop 1")
        o.append(f"    v_permlane32_swap_b32 v{U}, v{U+2}")
        o.append(f"    v_permlane32_swap_b32 v{U+1}, v{U+3}")
        o.append(f"    buffer_store_dwordx4 v[{U}:{U+3}], v8, s[24:27], s{42 if e == 0 else 43} offen offset:{t*1024} sc0 sc1")
        return o

    pre = [f"    v_mov_b32 v{BM+j}, 0" for j in (0, 1, 4, 5, 8, 9)]
    pre += [f"    v_cvt_pk_bf16_f32 v{BM+2+j%2+4*(j//2)}, v{GR1+2*(j//2)}, v{GR1+2*(j//2)}" for j in range(4)]
    pre += [f"    v_mov_b32 v{QA+6}, 0", f"    v_mov_b32 v{QA+7}, 0", f"    s_add_u32 s43, s42, {HB}"]
    for t in range(nt):
        pre.append(f"    s_waitcnt lgkmcnt({nt-1-t})")
        pre += split_ops(t)
    for t in range(nt):
        for e in range(2):
            mm(31, t, e)
            run(pre, 7)
    run(pre)
    E("    s_nop 1")
    stamp(8, vm)
    ep = []
    seq = [(t, e) for t in range(nt) for e in range(2)]
    for i_, (t, e) in enumerate(seq):
        corr(t, e)
        if i_ >= 2:
            ep += epi_ops(*seq[i_ - 2])
        run(ep, 7)
    run(ep)
    for te in seq[-2:]:
        run(epi_ops(*te))
    stamp(9, vm)
    E("    s_branch phase_c")


def token_publish():
    E("    s_or_b32 s34, s2, s3")
    E("    s_cmp_eq_u32 s34, 0")
    E("    s_cbranch_scc0 g_notok")
    E("    s_or_b32 s90, s90, 1")
    E(f"    v_mov_b32 v{TK}, s90")
    E(f"    v_mov_b32 v{TK+1}, s91")
    E("    s_mov_b64 exec, 1")
    E(f"    buffer_store_dwordx2 v[{TK}:{TK+1}], off, s[60:63], 0 sc0 sc1")
    E("    s_mov_b64 exec, -1")
    E("g_notok:")


def gen_gtype():
    vm = VM()
    E(f"    s_setprio {GPRIO}")
    if CFIRST:
        E("    s_sub_u32 s2, s2, 256")
    else:
        token_publish()
    E("    s_lshr_b32 s33, s2, 3")
    if MAP:
        E("    ; map1")
        E("    s_and_b32 s30, s2, 4")
        E("    s_lshl_b32 s30, s30, 1")
        E("    s_lshr_b32 s31, s33, 2")
        E("    s_add_u32 s30, s30, s31")
        E("    s_and_b32 s31, s2, 3")
        E("    s_lshl_b32 s31, s31, 2")
        E("    s_and_b32 s34, s33, 3")
        E("    s_add_u32 s31, s31, s34")
        E("    s_and_b32 s4, s2, 7")
        E("    s_lshl_b32 s4, s4, 2")
        E("    s_lshr_b32 s34, s33, 3")
        E("    s_add_u32 s4, s4, s34")
    else:
        E("    s_bfe_u32 s30, s2, 0x20001")
        E("    s_lshl_b32 s30, s30, 2")
        E("    s_lshr_b32 s31, s33, 3")
        E("    s_add_u32 s30, s30, s31")
        E("    s_and_b32 s31, s2, 1")
        E("    s_lshl_b32 s31, s31, 3")
        E("    s_and_b32 s34, s33, 7")
        E("    s_add_u32 s31, s31, s34")
    srd(16, 64, 65, S * D * 2)
    E("    s_lshl_b32 s35, s30, 7")
    E("    s_lshl_b32 s34, s31, 3")
    E("    s_add_u32 s35, s35, s34")
    E("    s_lshl_b32 s34, s3, 1")
    E("    s_add_u32 s35, s35, s34")
    E("    s_lshl_b32 s34, s35, 10")
    E("    v_lshrrev_b32 v12, 5, v1")
    E("    v_and_b32 v13, 31, v1")
    E("    v_lshlrev_b32 v13, 4, v13")
    E("    v_lshl_add_u32 v12, v12, 10, v13")
    E(f"    buffer_load_dwordx4 v[{GACC}:{GACC+3}], v12, s[16:19], s34 offen")
    E(f"    buffer_load_dwordx4 v[{GACC+4}:{GACC+7}], v12, s[16:19], s34 offen offset:512")
    vm.issue("st")
    vm.issue("st")
    E("    s_lshl_b32 s35, s35, 4")
    E("    s_lshl_b32 s32, s30, 17")
    E("    s_lshl_b32 s34, s3, 15")
    E("    s_add_u32 s32, s32, s34")
    E("    s_lshr_b32 s46, s32, 6")
    E("    s_bitset0_b32 s46, 9")
    E("    v_lshrrev_b32 v12, 3, v1")
    E("    v_lshrrev_b32 v13, 4, v1")
    E("    v_xor_b32 v13, v13, v1")
    E("    v_and_b32 v13, 7, v13")
    E("    v_lshlrev_b32 v13, 4, v13")
    E(f"    v_lshl_add_u32 v{XDV}, v12, 10, v13")
    E(f"    v_xor_b32 v{XDV+1}, 64, v{XDV}")
    E("    s_lshl_b32 s7, s3, 12")
    if MAP:
        E("    s_lshr_b32 s29, s33, 2")
        E("    s_and_b32 s34, s33, 3")
    else:
        E("    s_and_b32 s29, s33, 7")
        E("    s_lshr_b32 s34, s33, 3")
    E("    s_lshl_b32 s34, s34, 1")
    if ROT == 1:
        E("    s_add_u32 s29, s29, s34")
    E("    s_lshl_b32 s29, s29, 1")
    E("    s_and_b32 s29, s29, 15" if ROT else "    s_mov_b32 s29, 0")
    E("    s_lshl_b32 s34, s29, 6")
    E("    s_add_u32 s32, s32, s34")
    srd_off(24, 88, 89, WS_H, H_BYTES)
    srd_off(12, 88, 89, WS_ST, S * 16)
    E(f"    s_mov_b32 s{S_ONE}, 0x3f803f80")
    E("    v_lshlrev_b32 v8, 4, v1")
    if MAP:
        E("    s_lshl_b32 s47, s4, 10")
    else:
        E("    s_lshl_b32 s47, s30, 11")
        E("    s_lshr_b32 s34, s31, 3")
        E("    s_lshl_b32 s34, s34, 10")
        E("    s_add_u32 s47, s47, s34")
    E("    s_and_b32 s34, s3, 1")
    E("    s_lshl_b32 s34, s34, 9")
    E("    s_add_u32 s47, s47, s34")
    srd(8, 82, 83, F * D * 2)
    E("    s_mul_i32 s51, s3, 22")
    E("    s_cmp_eq_u32 s3, 3")
    E("    s_cselect_b32 s51, 65, s51")
    E("    s_lshl_b32 s41, s51, 14")
    E("    s_lshl_b32 s37, s3, 11")
    E("    v_lshrrev_b32 v14, 3, v1")
    E(f"    v_lshlrev_b32 v{DDV}, 10, v14")
    E("    v_and_b32 v14, 7, v1")
    E("    v_bfe_u32 v15, v1, 4, 1")
    E("    v_lshlrev_b32 v15, 2, v15")
    E("    v_xor_b32 v14, v14, v15")
    E(f"    v_lshl_add_u32 v{DDV}, v14, 4, v{DDV}")
    E("    s_and_b32 s34, s33, 7")
    E("    s_lshl_b32 s34, s34, 7")
    E(f"    v_add_u32 v{DDV}, s34, v{DDV}")
    E("    s_lshl_b32 s36, s30, 2")
    E("    s_add_u32 s36, s36, s3")
    E("    s_lshl_b32 s39, s36, 7")
    E("    s_lshl_b32 s38, s31, 3")
    E("    s_add_u32 s39, s39, s38")
    E(f"    s_add_u32 s39, s39, {FH_OFF}")
    E("    s_bitset0_b32 s36, 0")
    E(f"    s_mul_i32 s42, s36, {HB}")
    if MAP == 2:
        E("    ; map2")
        E("    s_mul_i32 s36, s31, 3")
        E("    s_add_u32 s38, s31, 1")
        E("    s_lshr_b32 s38, s38, 4")
        E("    s_sub_u32 s36, s36, s38")
        E("    s_lshr_b32 s38, s31, 2")
        E("    s_sub_u32 s36, s36, s38")
        E("    s_lshl_b32 s36, s36, 6")
        E("    s_lshl_b32 s38, s36, 5")
        E("    s_add_u32 s42, s42, s38")
        E("    s_bitcmp1_b32 0xc888, s31")
        E("    s_cbranch_scc1 g_path2")
        gen_gtype_path(3, vm)
        E("g_path2:")
        gen_gtype_path(2, vm)
        gen_phase_c()
        return
    E("    s_cmp_lt_u32 s31, 11")
    E("    s_cbranch_scc0 g_path2")
    E("    s_mul_i32 s36, s31, 192")
    E("    s_mul_i32 s38, s31, 3*2048")
    E("    s_add_u32 s42, s42, s38")
    gen_gtype_path(3, vm)
    E("g_path2:")
    E("    s_lshl_b32 s36, s31, 7")
    E("    s_add_u32 s36, s36, 704")
    E("    s_lshl_b32 s38, s36, 5")
    E("    s_add_u32 s42, s42, s38")
    gen_gtype_path(2, vm)
    gen_phase_c()


KVP = 80
KV_OFF = 0
CSTR = 4416
COPY_BASE = [64 * KVP + CSTR * (c + 1) for c in range(4)]
TB_OFF = 5376
XCH_OFF = 27136
STG_OFF = XCH_OFF + 8192
CH_BYTES = STG_OFF + 4096
LDS_BYTES = 81920
assert TB_OFF + 4096 <= COPY_BASE[0] and COPY_BASE[3] + 4208 <= XCH_OFF
assert 2 * CH_BYTES <= LDS_BYTES


def wd_touch(vt):
    srd(52, 82, 83, F * D * 2)
    E("    s_mul_i32 s93, s50, 344*128")
    E(f"    v_lshlrev_b32 v{vt}, 7, v0")
    E(f"    buffer_load_dword v{vt+1}, v{vt}, s[52:55], s93 offen")
    E(f"    v_min_u32 v{vt}, 87, v0")
    E(f"    v_lshlrev_b32 v{vt}, 7, v{vt}")
    E("    s_add_u32 s93, s93, 256*128")
    E(f"    buffer_load_dword v{vt+1}, v{vt}, s[52:55], s93 offen")


def gen_ctype():
    vm = VM()
    E("c_type:")
    E(f"    s_setprio {CPRIO}")
    if CFIRST:
        token_publish()
    if 'g' in os.environ.get('XP', ''):
        E("    s_endpgm")
    if CFIRST:
        pass
    else:
        E("    s_sub_u32 s2, s2, 256")
    srd(16, 66, 67, S * D * 2)
    srd(20, 68, 69, S * D * 2)
    srd(24, 70, 71, D * 4 * 2)
    E("    s_lshr_b32 s32, s2, 3")
    E("    s_and_b32 s33, s2, 7")
    E("    v_and_b32 v10, 31, v0")
    E("    v_lshrrev_b32 v11, 5, v0")
    E("    s_lshl_b32 s34, s32, 6")
    E("    v_lshlrev_b32 v3, 3, v11")
    E("    v_add_u32 v3, s34, v3")
    E("    s_lshl_b32 s35, s33, 5")
    E("    v_add_u32 v6, s35, v10")
    E("    v_lshlrev_b32 v3, 10, v3")
    E("    v_lshl_add_u32 v3, v6, 2, v3")
    E("    v_add_u32 v4, 4096, v3")
    E("    v_subrev_u32 v5, 3072, v3")
    E("    v_lshlrev_b32 v6, 4, v6")
    for j in range(3):
        E(f"    buffer_load_dword v{132+j}, v5, s[16:19], 0 offen offset:{1024*j}")
    for j in range(4):
        E(f"    buffer_load_dword v{135+j}, v3, s[16:19], 0 offen offset:{1024*j}")
    for j in range(4):
        E(f"    buffer_load_dword v{139+j}, v4, s[16:19], 0 offen offset:{1024*j}")
    for j in range(4):
        E(f"    buffer_load_dword v{144+j}, v3, s[20:23], 0 offen offset:{1024*j}")
    for j in range(4):
        E(f"    buffer_load_dword v{148+j}, v4, s[20:23], 0 offen offset:{1024*j}")
    E("    buffer_load_dwordx4 v[128:131], v6, s[24:27], 0 offen")
    for _ in range(20):
        vm.issue("kv")
    E("    s_lshr_b32 s31, s3, 1")
    E("    s_lshl_b32 s30, s33, 6")
    E("    s_lshl_b32 s34, s32, 1")
    E("    s_add_u32 s30, s30, s34")
    E("    s_add_u32 s30, s30, s31")
    E("    s_mov_b32 s50, s32")
    E("    s_mov_b32 s51, s33")
    E("    s_and_b32 s32, s3, 1")
    E("    s_lshl_b32 s33, s30, 12")
    srd_off(44, 72, 73, "s33", 4096)
    E(f"    s_mul_i32 s35, s31, {CH_BYTES}")
    E("    s_lshl_b32 s36, s32, 6")
    E("    v_add_u32 v3, s36, v1")
    E("    v_lshlrev_b32 v4, 4, v3")
    E("    v_subrev_u32 v5, 8, v4")
    E("    v_add_u32 v29, 2040, v4")
    def kf_loads():
        srd_off(44, 72, 73, "s33", 4096)
        E("    buffer_load_dwordx4 v[18:21], v4, s[44:47], 0 offen")
        E("    buffer_load_dwordx4 v[24:27], v4, s[44:47], 0 offen offset:2048")
        E("    buffer_load_dwordx2 v[16:17], v5, s[44:47], 0 offen")
        E("    buffer_load_dwordx2 v[22:23], v29, s[44:47], 0 offen")
        for _ in range(4):
            vm.issue("kf")
        srd(44, 74, 75, D * 2)
        E("    s_lshl_b32 s36, s30, 1")
        E("    v_mov_b32 v7, s36")
        E("    buffer_load_ushort v9, v7, s[44:47], 0 offen")
        vm.issue("kf")
    if not KFL:
        kf_loads()
    srd_off(8, 88, 89, WS_KVR, S * D * 2)
    srd_off(12, 88, 89, WS_KVA, S * D * 2)
    E("    s_getreg_b32 s6, hwreg(HW_REG_XCC_ID, 0, 4)")
    E("    v_lshrrev_b32 v12, 4, v10")
    E(f"    v_mul_u32_u24 v12, {CH_BYTES}, v12")
    E("    v_and_b32 v13, 15, v10")
    E("    v_lshl_add_u32 v12, v13, 8, v12")
    E("    v_sub_u32 v13, 7, v11")
    E("    v_and_b32 v14, 7, v10")
    E("    v_xor_b32 v13, v13, v14")
    E("    v_lshl_add_u32 v12, v13, 4, v12")
    E(f"    v_add_u32 v12, {TB_OFF}, v12")
    E("    v_lshrrev_b32 v13, 3, v1")
    E("    v_and_b32 v14, 7, v1")
    E("    v_lshrrev_b32 v15, 4, v1")
    E("    v_xor_b32 v15, v15, v14")
    E("    v_lshlrev_b32 v15, 4, v15")
    E("    v_lshl_add_u32 v15, v13, 7, v15")
    E(f"    s_mul_i32 s36, s31, {CH_BYTES}")
    E("    s_lshl_b32 s37, s32, 11")
    E("    s_add_u32 s36, s36, s37")
    E(f"    s_add_u32 s36, s36, {TB_OFF}")
    E("    v_add_u32 v15, s36, v15")
    E("    v_xor_b32 v28, 64, v15")
    E("    v_lshlrev_b32 v13, 12, v13")
    E("    v_lshl_add_u32 v13, v14, 4, v13")
    E("    s_lshl_b32 s36, s51, 18")
    E("    s_lshl_b32 s37, s3, 16")
    E("    s_add_u32 s36, s36, s37")
    E("    s_lshl_b32 s37, s50, 7")
    E("    s_sub_u32 s37, 3968, s37")
    E("    s_add_u32 s48, s36, s37")
    E("    s_lshl_b32 s36, s51, 10")
    E(f"    s_add_u32 s36, s36, {FK_OFF}")
    E("    s_lshl_b32 s37, s3, 8")
    E("    s_add_u32 s49, s36, s37")
    E("    s_lshl_b32 s37, s50, 3")
    E("    s_add_u32 s49, s49, s37")
    E("    s_lshr_b32 s37, s50, 3")
    E("    s_lshl_b32 s37, s37, 8")
    E("    s_add_u32 s41, s36, s37")
    if TLB:
        E("    s_add_u32 s43, s48, 32768")
        E("    s_mov_b32 exec_lo, 0x01010101")
        E("    s_mov_b32 exec_hi, 0x01010101")
        E("    buffer_load_dword v30, v13, s[12:15], s48 offen")
        E("    buffer_load_dword v31, v13, s[12:15], s43 offen")
        E("    s_mov_b64 exec, -1")
        vm.issue("tl")
        vm.issue("tl")
    vm.wait("kv")
    stamp(1, vm)
    token_issue(vm)
    if KFL:
        kf_loads()
    if TOUCH != "none":
        w_touch(vm, 78, 79, "s50", 29)
    if WD_AT == "early":
        wd_touch(244)
        vm.issue("pf")
        vm.issue("pf")
    if CX == 1:
        E("    s_waitcnt vmcnt(0)")
        E("    s_endpgm")
    for t in range(4):
        for c in range(2):
            src = 128 + 2 * c + t // 2
            if t % 2 == 0:
                E(f"    v_lshlrev_b32 v{32+2*t+c}, 16, v{src}")
            else:
                E(f"    v_and_b32 v{32+2*t+c}, s40, v{src}")
    for j in range(11):
        E(f"    v_lshlrev_b32 v{40+2*j}, 16, v{132+j}")
        E(f"    v_and_b32 v{41+2*j}, s40, v{132+j}")
    for j in range(8):
        E(f"    v_lshlrev_b32 v{64+2*j}, 16, v{144+j}")
        E(f"    v_and_b32 v{65+2*j}, s40, v{144+j}")

    def pr(r):
        return f"v[{r}:{r+1}]"

    def rnd(r):
        E(f"    v_cvt_pk_bf16_f32 v{r}, 0, v{r}")

    def p2(op, d, a, b, pk=0):
        if pk:
            return [f"    v_pk_{op}_f32 {pr(d)}, {pr(a)}, {pr(b)}"]
        return [f"    v_{op}_f32 v{d+j}, v{a+j}, v{b+j}" for j in range(2)]

    def P2(*a, **k):
        for t in p2(*a, **k):
            E(t)

    for j in range(8):
        T = 96 + 8 * (j % 2)
        for t in range(4):
            P2("mul", T + 2 * t, 40 + 2 * (j + t), 32 + 2 * (3 - t))
        for t in range(8):
            rnd(T + t)
        for t in range(1, 4):
            P2("add", T, T, T + 2 * t)
            rnd(T)
            rnd(T + 1)
        P2("mul", 80 + 2 * j, T, 64 + 2 * j)
    for c in range(2):
        for jj in range(4):
            E(f"    v_cvt_pk_bf16_f32 v{104+4*c+jj}, v{80+2*(7-2*jj)+c}, v{80+2*(6-2*jj)+c}")
    if CX == 2:
        E("    s_waitcnt vmcnt(0)")
        E("    s_endpgm")
    E("    ds_write_b128 v12, v[104:107]")
    E("    ds_write_b128 v12, v[108:111] offset:128")
    E("    s_waitcnt lgkmcnt(0)")
    E("    s_barrier")
    E("    ds_read_b128 v[104:107], v15")
    E("    ds_read_b128 v[108:111], v28 offset:1024")
    E("    s_add_u32 s43, s48, 32768")
    E("    s_waitcnt lgkmcnt(1)")
    if 's' not in XP:
        E("    buffer_store_dwordx4 v[104:107], v13, s[12:15], s48 offen")
    E("    s_waitcnt lgkmcnt(0)")
    if 's' not in XP:
        E("    buffer_store_dwordx4 v[108:111], v13, s[12:15], s43 offen")
        vm.issue("kst")
        vm.issue("kst")
    stamp(2, vm)
    E("    s_add_u32 s34, s33, %d" % WS_KVR)
    srd_off(20, 88, 89, "s34", 4096)
    E("    s_add_u32 s34, s33, %d" % WS_YT)
    srd_off(24, 88, 89, "s34", 4096)
    E("    v_mov_b32 v36, 0")
    E("    v_mov_b32 v37, 0")
    E("    v_mov_b32 v38, 0")
    E("    v_mov_b32 v39, 0")
    E("    v_mul_u32_u24 v7, 37, v1")
    E("    v_lshrrev_b32 v7, 8, v7")
    E(f"    v_mul_u32_u24 v7, {CSTR - 112}, v7")
    E("    v_lshl_add_u32 v7, v1, 4, v7")
    E("    v_add_u32 v7, s35, v7")
    E("    s_mov_b32 exec_hi, 7")
    E(f"    ds_write_b128 v7, v[36:39] offset:{64*KVP}")
    E("    s_mov_b64 exec, -1")
    E("    v_lshlrev_b32 v6, 4, v3")
    E("    v_add_u32 v7, s35, v6")
    E("    v_lshrrev_b32 v8, 2, v3")
    E(f"    v_mul_u32_u24 v8, {KVP}, v8")
    E("    v_and_b32 v10, 3, v3")
    E("    v_lshl_add_u32 v8, v10, 4, v8")
    E("    v_add_u32 v8, s35, v8")
    E("    v_and_b32 v3, 31, v1")
    E("    v_lshrrev_b32 v4, 5, v1")
    E("    v_and_b32 v14, 3, v3")
    E(f"    v_mul_u32_u24 v10, {CSTR - 2}, v14")
    E("    v_lshl_add_u32 v10, v3, 1, v10")
    E("    v_lshlrev_b32 v14, 4, v4")
    E("    v_sub_u32 v10, v10, v14")
    E(f"    s_add_u32 s36, s35, {COPY_BASE[0] + 8}")
    E("    v_add_u32 v10, s36, v10")
    E("    v_sub_u32 v5, 63, v3")
    E(f"    v_mul_u32_u24 v5, {KVP}, v5")
    E("    v_lshlrev_b32 v14, 4, v4")
    E("    v_sub_u32 v5, v5, v14")
    E(f"    s_add_u32 s36, s35, {KV_OFF + 16}")
    E("    v_add_u32 v11, s36, v5")
    E(f"    v_subrev_u32 v15, {32*KVP}, v11")
    E(f"    s_add_u32 s36, s36, {KVP*64}")
    E("    v_sub_u32 v12, s36, v14")
    E("    v_lshlrev_b32 v14, 3, v4")
    E("    v_add_u32 v5, v5, v14")
    E(f"    s_mul_i32 s36, s32, {32*KVP}")
    E(f"    s_sub_u32 s36, {KV_OFF + 8}, s36")
    E("    s_add_u32 s36, s36, s35")
    E("    v_add_u32 v5, s36, v5")
    E("    s_lshl_b32 s36, s32, 10")
    E("    v_add_u32 v10, s36, v10")
    E(f"    s_mul_i32 s36, s32, {16*KVP}")
    E("    v_add_u32 v11, s36, v11")
    E("    v_add_u32 v15, s36, v15")
    E("    v_add_u32 v14, 2048, v10")

    def copies():
        vm.wait("kf")
        for u in range(2):
            e = 16 + 6 * u
            for c in range(4):
                r = 40 + 4 * c
                for d in range(4):
                    if c == 1:
                        E(f"    v_mov_b32 v{r+d}, v{e+1+d}")
                    elif c < 3:
                        E(f"    v_alignbyte_b32 v{r+d}, v{e+c//2+d+1}, v{e+c//2+d}, 2")
                if c == 3:
                    r = e + 2
                if 'c' not in XP:
                    E(f"    ds_write_b128 v7, v[{r}:{r+3}] offset:{COPY_BASE[c] + 112 + 2048*u}")

    if CE:
        copies()
    token_get(vm)
    stampval(20, "s92", vm)
    E("    s_add_u32 s6, s6, 1")
    E("    s_lshl_b32 s6, s6, 24")
    E("    s_mov_b32 s4, s90")
    E("    s_xor_b32 s5, s91, s6")
    E("    v_mov_b32 v244, s4")
    E("    v_mov_b32 v245, s5")
    E(f"    s_sub_u32 s93, s49, {FK_OFF}")
    E(f"    s_lshl_b32 s93, s93, {FSH}")
    vm.wait("kst")
    E("    s_mov_b64 exec, 1")
    E("    buffer_store_dwordx2 v[244:245], off, s[56:59], s93")
    E("    s_mov_b64 exec, -1")
    vm.issue("flag")
    stamp(3, vm)
    if CX == 3:
        E("    s_waitcnt vmcnt(0)")
        E("    s_endpgm")
    if not CE:
        copies()
    E(f"    s_setprio {CPRIO2}")
    stamp(9, vm)
    if CX == 4:
        E("    s_waitcnt vmcnt(0)")
        E("    s_endpgm")

    def slow_stores():
        E("    buffer_store_dwordx4 v[104:107], v13, s[8:11], s48 offen sc0 sc1")
        E("    buffer_store_dwordx4 v[108:111], v13, s[8:11], s43 offen sc0 sc1")

    NF = int(os.environ.get("NF", "12"))
    E(f"    s_mov_b32 s92, {POLL_LIMIT}")
    E("    s_mov_b32 s28, 0")
    E(f"    s_sub_u32 s46, s41, {FK_OFF}")
    E(f"    s_lshl_b32 s46, s46, {FSH}")
    E(f"    s_lshl_b32 s47, s41, {FSH}")
    if P1W:
        E(f"    v_mov_b32 v52, {XCH_OFF}")
        E("    s_cmp_lg_u32 s3, 0")
        E("    s_cbranch_scc1 p1_bar")
        E("    s_mov_b32 exec_hi, 0")
        E(f"    s_mov_b32 s93, {NF}")
        if PS0:
            E(f"    s_sleep {PS0}")
        E("p1_l:")
        E(f"    buffer_load_dwordx2 v[{PA}:{PA+1}], v{VL8}, s[56:59], s46 offen {KSC}")
        E("    s_waitcnt vmcnt(0)")
        E(f"    v_cmp_ne_u64 vcc, s[4:5], v[{PA}:{PA+1}]")
        E("    s_cmp_eq_u64 vcc, 0")
        E("    s_cbranch_scc1 p1_ok")
        E("    s_mov_b64 exec, vcc")
        E(f"    s_sleep {int(os.environ.get('PSK', '2'))}")
        E("    s_sub_u32 s93, s93, 1")
        E("    s_cmp_lg_u32 s93, 0")
        E("    s_cbranch_scc1 p1_l")
        E("p1_ok:")
        E("    s_mov_b64 exec, -1")
        E("    v_mov_b32 v53, s93")
        E("    ds_write_b32 v52, v53")
        E("    s_waitcnt lgkmcnt(0)")
        E("p1_bar:")
        E("    s_barrier")
        E("    ds_read_b32 v53, v52")
        E("    s_waitcnt lgkmcnt(0)")
        E("    v_readfirstlane_b32 s93, v53")
        E("    s_cmp_lg_u32 s93, 0")
        E("    s_cbranch_scc1 pk_fast")
        NF = 1
    E("    s_mov_b32 exec_hi, 0")
    E("pk_l:")
    E(f"    buffer_load_dwordx2 v[{PA}:{PA+1}], v{VL8}, s[56:59], s46 offen {KSC if not P1W else 'sc0 sc1'}")
    E("    s_waitcnt vmcnt(0)")
    E(f"    v_cmp_ne_u64 vcc, s[4:5], v[{PA}:{PA+1}]")
    E("    s_cmp_eq_u64 vcc, 0")
    E("    s_cbranch_scc1 pk_fast")
    E(f"    s_cmp_gt_u32 s92, {POLL_LIMIT - NF}")
    E("    s_cbranch_scc1 pk_next")
    E("    s_cmp_lg_u32 s28, 0")
    E("    s_cbranch_scc1 pk_sb")
    E("    s_mov_b64 exec, -1")
    slow_stores()
    E("    s_waitcnt vmcnt(0)")
    flag_store(vm, "s49")
    E("    s_mov_b32 s28, 1")
    E("    s_mov_b32 exec_hi, 0")
    E("pk_sb:")
    E(f"    buffer_load_dwordx2 v[{PA}:{PA+1}], v{VL8}, s[56:59], s47 offen sc0 sc1")
    E("    s_waitcnt vmcnt(0)")
    E(f"    v_cmp_ne_u64 vcc, s[90:91], v[{PA}:{PA+1}]")
    E("    s_cmp_eq_u64 vcc, 0")
    E("    s_cbranch_scc1 pk_join")
    E("pk_next:")
    E(f"    s_sleep {int(os.environ.get('PSK', '2'))}")
    E("    s_sub_u32 s92, s92, 1")
    E("    s_cmp_lg_u32 s92, 0")
    E("    s_cbranch_scc1 pk_l")
    E("    s_branch pk_join")
    E("pk_fast:")
    E(f"    s_add_u32 s20, s20, {WS_KVA - WS_KVR}")
    E("    s_addc_u32 s21, s21, 0")
    E("    s_and_b32 s21, s21, 0xffff")
    E("pk_join:")
    E("    s_mov_b64 exec, -1")
    stampval(21, "s92", vm)
    stamp(4, vm)
    E("    buffer_load_dwordx4 v[28:31], v6, s[20:23], 0 offen")
    E("    buffer_load_dwordx4 v[32:35], v6, s[20:23], 0 offen offset:2048")
    E("    v_mov_b32 v246, v13")
    if RP >= 0:
        for j in range(8):
            E(f"    v_mov_b32 v{56+j}, v{104+j}")
    E("    s_waitcnt vmcnt(1)")
    E(f"    ds_write_b128 v8, v[28:31] offset:{KV_OFF}")
    E("    s_waitcnt vmcnt(0)")
    E(f"    ds_write_b128 v8, v[32:35] offset:{KV_OFF + 32*KVP}")
    if RP == -1:
        slow_stores()
    stamp(10)
    vm.q = []
    E("    s_waitcnt lgkmcnt(0)")
    E("    s_barrier")
    stamp(5)
    if CX == 5:
        E("    s_waitcnt vmcnt(0)")
        E("    s_endpgm")
    TR, BR, ACC = 64, 96, 144
    KD, KR, DD = 32, 16, 48
    A0E, A0O, A1E, A1O = ACC, ACC + 16, ACC + 32, ACC + 48

    def tr(d, hi):
        return TR + 8 * (d % 4) + 4 * hi

    def br(d, c, q):
        return BR + 16 * (d % 3) + 8 * c + 4 * q

    def rd(r, a, off):
        return f"    ds_read_b128 v[{r}:{r+3}], v{a} offset:{off}"

    def ra(r, a, t3):
        return f"    ds_read2_b64 v[{r}:{r+3}], v{a} offset0:{4*t3} offset1:{4*t3+1}"

    def reads(d):
        return [[ra(tr(d, 0), 10, 2 * d + 3)],
                [rd(br(d, 1, 0), 15, KVP * d + 32)],
                [f"    v_add_u32 v13, {KVP*d}, v11", "    v_min_u32 v13, v13, v12", rd(br(d, 0, 0), 13, 32)],
                [rd(br(d, 1, 1), 15, KVP * d)],
                [ra(tr(d, 1), 14, 2 * d + 3)],
                [rd(br(d, 0, 1), 13, 0)]]

    def merge(d, hi):
        return [f"    v_mov_b32_dpp v{tr(d-1, hi)+j}, v{tr(d, hi)+j} quad_perm:[0,1,2,3] row_mask:0x5 bank_mask:0xf"
                for j in range(4)]

    for jq in range(4):
        E(f"    ds_read_b64 v[{KR+2*jq}:{KR+2*jq+1}], v5 offset:{16*(3-jq)}")
    E(ra(tr(-1, 0), 10, 1))
    E(ra(tr(-1, 1), 14, 1))
    for d in range(2):
        for g in reads(d):
            for t in g:
                E(t)
    kd = [f"    v_lshlrev_b32 v{DD}, 16, v9"]
    for jq in range(4):
        k0 = KD + 4 * jq
        kd += [f"    v_and_b32 v{k0}, s40, v{KR+1+2*jq}",
               f"    v_lshlrev_b32 v{k0+1}, 16, v{KR+1+2*jq}",
               f"    v_and_b32 v{k0+2}, s40, v{KR+2*jq}",
               f"    v_lshlrev_b32 v{k0+3}, 16, v{KR+2*jq}"]
        kd += [f"    v_mul_f32 v{k0+e_}, v{k0+e_}, v{DD}" for e_ in range(4)]
        kd += [f"    v_cvt_pk_bf16_f32 v{k0+e_}, 0, v{k0+e_}" for e_ in range(4)]
    kd += ["    v_lshlrev_b32 v7, 4, v1",
           "    s_lshl_b32 s36, s32, 12",
           "    s_add_u32 s37, s36, s35",
           "    v_add_u32 v50, s37, v7",
           "    s_xor_b32 s36, s36, 4096",
           "    s_add_u32 s37, s36, s35",
           "    v_add_u32 v51, s37, v7",
           "    s_lshl_b32 s37, s32, 11",
           "    s_add_u32 s36, s37, s35",
           f"    s_add_u32 s36, s36, {STG_OFF}",
           "    v_lshlrev_b32 v6, 6, v3",
           "    v_lshl_add_u32 v6, v4, 3, v6",
           "    v_add_u32 v6, s36, v6",
           "    v_add_u32 v8, s36, v7"]
    for d in range(16):
        E(f"    s_waitcnt lgkmcnt({6 if d < 15 else 0})")
        nx = reads(d + 2) if d + 2 < 16 else [[] for _ in range(6)]
        seq = [(A1E, tr(d, 0), br(d, 1, 0)), (A0E, tr(d, 0), br(d, 0, 0)), (A1O, tr(d - 1, 0), br(d, 1, 1)),
               (A1E, tr(d, 1), br(d, 0, 0)), (A0O, tr(d - 1, 0), br(d, 0, 1)), (A1O, tr(d - 1, 1), br(d, 0, 1))]
        for m_, (a, x, y) in enumerate(seq):
            c = "0" if d == 0 and m_ not in (3, 5) else f"v[{a}:{a+15}]"
            E(f"    v_mfma_f32_32x32x16_bf16 v[{a}:{a+15}], v[{x}:{x+3}], v[{y}:{y+3}], {c}")
            if m_ < 2:
                for t in merge(d, m_):
                    E(t)
            for t in nx[m_]:
                E(t)
            if d >= 1 and m_ >= 2:
                for _ in range(2):
                    if kd:
                        E(kd.pop(0))
        if d == 0 and WD_AT == "conv":
            wd_touch(60)
    assert not kd
    stamp(6)
    if CX == 6:
        E("    s_waitcnt vmcnt(0)")
        E("    s_endpgm")

    def fold(dst, e_, o_):
        for j in range(0, 16, 2):
            P2("add", dst + j, e_ + j, o_ + (j + 8) % 16, pk=PKC)

    def send(e_, o_, ke, ko):
        fold(80, e_, o_)
        for jq in range(4):
            E(f"    ds_write_b128 v50, v[{80+4*jq}:{80+4*jq+3}] offset:{XCH_OFF + 1024*jq}")
        fold(64, ke, ko)

    E("    s_cmp_eq_u32 s32, 0")
    E("    s_cbranch_scc1 conv_hw0")
    E("    s_nop 7")
    send(A0E, A0O, A1E, A1O)
    E("    s_branch conv_x")
    E("conv_hw0:")
    E("    s_nop 15")
    E("    s_nop 3")
    send(A1E, A1O, A0E, A0O)
    E("conv_x:")
    E("    s_waitcnt lgkmcnt(0)")
    E("    s_barrier")
    for jq in range(4):
        E(f"    ds_read_b128 v[{80+4*jq}:{80+4*jq+3}], v51 offset:{XCH_OFF + 1024*jq}")
    vm.q = ["pf", "pf"]
    for jq in range(4):
        y = 64 + 4 * jq
        E(f"    s_waitcnt lgkmcnt({3 if jq else 3})" if jq == 0 else f"    s_waitcnt lgkmcnt(3)")
        for e_ in (0, 2):
            P2("add", y + e_, y + e_, 80 + 4 * jq + e_, pk=PKC)
        for e_ in range(4):
            rnd(y + e_)
        for e_ in (0, 2):
            P2("add", y + e_, y + e_, KD + 4 * jq + e_, pk=PKC)
        E(f"    v_cvt_pk_bf16_f32 v{110+2*jq}, v{y}, v{y+1}")
        E(f"    v_cvt_pk_bf16_f32 v{111+2*jq}, v{y+2}, v{y+3}")
        E(f"    ds_write_b64 v6, v[{110+2*jq}:{111+2*jq}] offset:{16*jq}")
    E("    s_waitcnt lgkmcnt(0)")
    E("    ds_read_b128 v[104:107], v8")
    E("    ds_read_b128 v[108:111], v8 offset:1024")
    E("    s_waitcnt lgkmcnt(1)")
    E("    buffer_store_dwordx4 v[104:107], v7, s[24:27], s37 offen sc0 sc1")
    E("    s_waitcnt lgkmcnt(0)")
    E("    buffer_store_dwordx4 v[108:111], v7, s[24:27], s37 offen offset:1024 sc0 sc1")
    vm.issue("yst")
    vm.issue("yst")
    stamp(7, vm)
    E("    s_lshl_b32 s36, s32, 12")
    E("    s_lshl_b32 s37, s30, 3")
    E("    s_add_u32 s47, s36, s37")
    E(f"    s_add_u32 s47, s47, {FY_OFF}")
    E("    s_waitcnt vmcnt(0)")
    flag_store(vm, "s47")
    stamp(8)
    if RP == -3:
        E("    s_endpgm")
        return
    E("    s_cmp_lg_u32 s28, 0")
    E("    s_cbranch_scc1 k_done")
    if RP == -2:
        E("    v_mov_b32 v13, v246")
        E("    buffer_load_dwordx4 v[104:107], v13, s[12:15], s48 offen sc0 sc1")
        E("    buffer_load_dwordx4 v[108:111], v13, s[12:15], s43 offen sc0 sc1")
        E("    s_waitcnt vmcnt(0)")
        slow_stores()
        E("    s_waitcnt vmcnt(0)")
    flag_store(vm, "s49")
    E("    s_endpgm")


def gen_phase_c():
    vm = VM()
    vm.q = ["hst"] + (["stamp"] if DIAG else [])
    WT = 48
    XT = 232
    NT = 72
    ACC = 88
    HB0 = [152 + 8 * j for j in range(8)] + [64]
    NH = int(os.environ.get("NH", "9"))
    NK = 22
    YSLOT = 0
    RSL = 2
    global VL8
    VL8_saved = VL8
    VL8 = 15
    E("phase_c:")
    E("    v_lshrrev_b32 v3, 5, v1")
    E("    v_and_b32 v5, 15, v1")
    if MAP:
        E("    s_mov_b32 s30, s4")
    else:
        E("    s_lshl_b32 s30, s30, 1")
        E("    s_lshr_b32 s35, s31, 3")
        E("    s_add_u32 s30, s30, s35")
    E("    s_and_b32 s31, s33, 7")
    E("    s_and_b32 s32, s3, 1")
    E("    s_lshr_b32 s33, s3, 1")
    for i in range(NW0):
        for f in wdma_ops(vm, i):
            f()
    E("    s_lshl_b32 s35, s30, 1")
    E("    s_add_u32 s35, s35, s32")
    E(f"    v_lshlrev_b32 v15, {3+FSH}, v1")
    E("    v_lshrrev_b32 v6, 2, v5")
    E("    v_lshl_add_u32 v6, v3, 3, v6")
    E("    v_lshlrev_b32 v11, 7, v6")
    E("    v_bfe_u32 v6, v1, 4, 1")
    E("    v_lshlrev_b32 v6, 5, v6")
    E("    v_and_b32 v7, 3, v5")
    E("    v_lshl_add_u32 v6, v7, 3, v6")
    E("    v_bfe_u32 v7, v1, 3, 1")
    E("    v_lshlrev_b32 v7, 6, v7")
    E("    v_xor_b32 v6, v6, v7")
    E("    v_add_u32 v11, v11, v6")
    E("    v_add_u32 v11, s37, v11")
    E("    v_xor_b32 v12, 64, v11")
    E(f"    v_add_u32 v17, {HI}, v11")
    E(f"    v_add_u32 v18, {HI}, v12")
    srd_off(20, 88, 89, WS_H, H_BYTES)
    srd_off(44, 88, 89, WS_YT, S * D * 2)
    srd(52, 84, 85, S * D * 2)
    E("    s_lshr_b32 s49, s30, 4")
    E("    s_lshl_b32 s49, s49, 12")
    E("    s_lshl_b32 s38, s31, 9")
    E("    s_add_u32 s49, s49, s38")
    E("    s_lshl_b32 s38, s33, 8")
    E("    s_add_u32 s49, s49, s38")
    E(f"    s_add_u32 s49, s49, {FY_OFF}")
    E("    v_lshrrev_b32 v0, 2, v1")
    E("    v_lshlrev_b32 v0, 12, v0")
    E("    v_and_b32 v7, 3, v1")
    E("    v_lshl_add_u32 v0, v7, 4, v0")
    E("    s_lshl_b32 s38, s31, 1")
    E("    s_add_u32 s38, s38, s33")
    E("    s_lshl_b32 s38, s38, 17")
    E("    s_lshl_b32 s48, s35, 6")
    E("    s_add_u32 s48, s48, s38")
    E("    v_lshrrev_b32 v7, 2, v5")
    E("    v_lshl_add_u32 v7, v3, 2, v7")
    E("    v_lshlrev_b32 v14, 6, v7")
    E("    v_bfe_u32 v7, v1, 4, 1")
    E("    v_lshl_add_u32 v14, v7, 5, v14")
    E("    v_and_b32 v7, 3, v5")
    E("    v_lshl_add_u32 v14, v7, 3, v14")
    E("    v_add_u32 v14, s37, v14")
    E(f"    s_mul_i32 s42, s30, {2*HB}")
    E("    s_lshl_b32 s38, s51, 10")
    E("    s_add_u32 s42, s42, s38")
    E(f"    s_add_u32 s43, s42, {HB}")
    E("    s_lshl_b32 s36, s30, 8")
    E(f"    s_add_u32 s36, s36, {FH_OFF}")
    masks = []
    for lo, hi in (((0, 3), (4, 7), (8, 11), (11, 15)) if MAP == 2 else ((0, 3), (3, 7), (7, 10), (10, 15))):
        m16 = ((1 << (hi + 1)) - 1) & ~((1 << lo) - 1)
        masks.append(m16 | (m16 << 16))
    E(f"    s_mov_b32 s50, {masks[0]:#x}")
    for w in range(1, 4):
        E(f"    s_cmp_eq_u32 s3, {w}")
        E(f"    s_cselect_b32 s50, {masks[w]:#x}, s50")
    E("    s_mov_b32 s51, 0")
    E("    s_mul_i32 s38, s31, 44")
    E("    v_add_u32 v6, s38, v1")
    E("    v_cmp_le_u32 vcc, 176, v6")
    E("    v_subrev_u32 v7, 176, v6")
    E("    v_cndmask_b32 v6, v6, v7, vcc")
    E("    s_cmp_lt_u32 s3, 2")
    E("    s_cselect_b32 s38, 8, 0")
    E("    s_add_u32 s38, s38, 167")
    E("    v_min_u32 v6, s38, v6")
    E("    v_lshlrev_b32 v6, 7, v6")
    E(f"    v_mov_b32 v7, {HB}")
    E("    v_cndmask_b32 v7, 0, v7, vcc")
    E("    v_add_u32 v6, v6, v7")
    def xn_tile():
        T = ACC
        for d in range(8):
            E(f"    v_lshlrev_b32 v{T+2*d}, 16, v{XT+d}")
            E(f"    v_and_b32 v{T+2*d+1}, s40, v{XT+d}")
        for j in range(16):
            E(f"    v_add_f32 v{T+j}, v{T+j}, v{GR2}")
        for j in range(16):
            E(f"    v_cvt_pk_bf16_f32 v{T+j}, 0, v{T+j}")
        for j in range(16):
            E(f"    v_mul_f32 v{T+j}, v{T+j}, v{GR2+1}")
        for d in range(8):
            E(f"    v_cvt_pk_bf16_f32 v{NT+d}, v{T+2*d}, v{T+2*d+1}")

    if XNE:
        xn_tile()
    vm.wait("hst")
    flag_store(vm, "s39")
    if GP3AT == 0:
        E(f"    s_setprio {GPRIO3}")
    stamp(10, vm)
    for i in range(NW0, 10):
        for f in wdma_ops(vm, i):
            f()
    if not XNE:
        xn_tile()
    for i in range(NPRE):
        vm.wait(("w", i))
        wread(WREG[i], i)
    for i in range(NPRE):
        E(f"    s_waitcnt lgkmcnt({min(15, 4*(NPRE-1-i))})")
        for f in wdma_ops(vm, 10 + i):
            f()
    if GP3AT == 1:
        E(f"    s_setprio {GPRIO3}")
    stamp(11, vm)
    if PP:
        poll2(vm, "s36", "s[50:51]")
    else:
        poll(vm, "s36", "s[50:51]")
    stampval(21, "s92", vm)
    stamp(12, vm)
    if GP4 == 0:
        E("    s_setprio 3")

    hreg = {}

    def hload(i, r):
        hreg[i] = r
        if i % 4 == 0 and i:
            E("    s_add_u32 s42, s42, 4096")
            E("    s_add_u32 s43, s43, 4096")
        off = (i % 4) * 1024
        if i == NK - 1:
            assert off == 1024
            E("    s_cmp_lt_u32 s3, 2")
            E("    s_cselect_b32 s38, 1024, 0")
            E("    s_add_u32 s42, s42, s38")
            E("    s_add_u32 s43, s43, s38")
            off = 0
        for e_ in range(2):
            E(f"    buffer_load_dwordx4 v[{r+4*e_}:{r+4*e_+3}], v8, s[20:23], s{42+e_} offen offset:{off}")
            vm.issue(("h", i))

    if int(os.environ.get("HT", "1")):
        E("    s_mov_b32 exec_hi, 0xfff")
        E("    buffer_load_dword v7, v6, s[20:23], s42 offen")
        E("    s_mov_b64 exec, -1")
        vm.issue("pf")
    for i in range(NH):
        hload(i, HB0[i])
    hn = NH

    def wsrc(i):
        return WREG[i] if i < NPRE else WT + 8 * (i % 2)

    def y_dma():
        for j in range(2):
            E(f"    s_add_u32 s38, s48, {16*4096*j}")
            E(f"    s_add_u32 m0, s37, {YSLOT*8192 + 1024*j}")
            E("    s_nop 0")
            E("    buffer_load_dwordx4 v0, s[44:47], s38 offen lds")

    FYC = int(os.environ.get("FYC", "16"))
    for i in range(NK):
        if i == NK - 1:
            E("    s_cmp_ge_u32 s3, 2")
            E("    s_cbranch_scc1 pc_skip")
        vm.wait(("h", i))
        if GP4 == i + 1:
            E("    s_setprio 3")
        if i in (0, 4, 8):
            stamp({0: 2, 4: 29, 8: 30}[i], vm)
        if i >= NPRE:
            E("    s_waitcnt lgkmcnt(0)")
        if NPRE <= i + 1 < NK:
            vm.wait(("w", i + 1))
            wread(WT + 8 * ((i + 1) % 2), wslot(i + 1))
        h = hreg[i]
        w = wsrc(i)
        for wd in range(2):
            for wm in range(2):
                a = ACC + 16 * (2 * wd + wm)
                c = "0" if i == 0 else f"v[{a}:{a+15}]"
                E(f"    v_mfma_f32_32x32x16_bf16 v[{a}:{a+15}], v[{w+4*wd}:{w+4*wd+3}], v[{h+4*wm}:{h+4*wm+3}], {c}")
        for r in [h] + ([w] if i < NPRE else []):
            if hn < NK:
                hload(hn, r)
                hn += 1
        if NPRE <= i < 10:
            for f in wdma_ops(vm, i + 10):
                f()
        if i in (11, 12):
            for f in wdma_ops(vm, i + 9):
                f()
        if i == FYI:
            E(f"    s_lshl_b32 s93, s49, {FSH}")
            E("    s_mov_b32 exec_hi, 0")
            E(f"    buffer_load_dwordx2 v[{PA}:{PA+1}], v{VL8}, s[56:59], s93 offen sc0 sc1")
            E("    s_mov_b64 exec, -1")
            vm.issue("fy")
        if i == FYC:
            vm.wait("fy")
            E("    s_mov_b32 exec_hi, 0")
            E(f"    v_cmp_ne_u64 vcc, s[90:91], v[{PA}:{PA+1}]")
            E("    s_mov_b64 exec, -1")
            E("    s_cmp_eq_u64 vcc, 0")
            E("    s_cselect_b32 s28, 1, 0")
            E("    s_cbranch_scc0 fy_no")
            y_dma()
            E("fy_no:")
            stamp(14, vm)
    E("pc_skip:")
    stamp(13)
    E("    s_waitcnt vmcnt(0) lgkmcnt(0)")
    E("    v_add_u32 v6, s37, v8")
    E(f"    v_add_u32 v6, {RSL*8192}, v6")
    E("    s_lshl_b32 s36, s3, 14")
    E(f"    s_add_u32 s36, s36, {RSL*8192}")
    E("    v_add_u32 v7, s36, v8")
    YR = 32
    PS = 152
    RS = 216
    TT = 64

    def y_read():
        for q in range(4):
            E(f"    ds_read_b64_tr_b16 v[{YR+2*q}:{YR+2*q+1}], v14 offset:{YSLOT*8192 + q*512}")

    def acc_out():
        for q in range(4):
            for jq in range(4):
                a = ACC + 16 * q + 4 * jq
                E(f"    ds_write_b128 v6, v[{a}:{a+3}] offset:{(2*q + jq//2)*8192 + (jq%2)*1024}")
        E("    s_waitcnt lgkmcnt(0)")
        E("    s_barrier")
        for w in range(4):
            for jq in range(4):
                r = PS + 16 * w + 4 * jq
                E(f"    ds_read_b128 v[{r}:{r+3}], v7 offset:{(jq//2)*8192 + w*2048 + (jq%2)*1024}")

    def a_term():
        for q in range(4):
            t = TT
            xs = [RS + 4 * q + e_ for e_ in range(4)]
            ns = [t + e_ for e_ in range(4)]
            ys = [t + 4 + e_ for e_ in range(4)]
            for (dst, src) in ((xs, XT + 2 * q), (ns, NT + 2 * q), (ys, YR + 2 * q)):
                E(f"    v_lshlrev_b32 v{dst[0]}, 16, v{src}")
                E(f"    v_and_b32 v{dst[1]}, s40, v{src}")
                E(f"    v_lshlrev_b32 v{dst[2]}, 16, v{src+1}")
                E(f"    v_and_b32 v{dst[3]}, s40, v{src+1}")
            for e_ in (0, 2):
                E(f"    v_pk_mul_f32 v[{ns[e_]}:{ns[e_]+1}], v[{ns[e_]}:{ns[e_]+1}], v[{ys[e_]}:{ys[e_]+1}]")
            for e_ in range(4):
                E(f"    v_cvt_pk_bf16_f32 v{ns[e_]}, 0, v{ns[e_]}")
            for e_ in (0, 2):
                E(f"    v_pk_add_f32 v[{xs[e_]}:{xs[e_]+1}], v[{xs[e_]}:{xs[e_]+1}], v[{ns[e_]}:{ns[e_]+1}]")
            for e_ in range(4):
                E(f"    v_cvt_pk_bf16_f32 v{xs[e_]}, 0, v{xs[e_]}")

    def b_sum():
        E("    s_waitcnt lgkmcnt(8)")
        for j in range(0, 16, 2):
            E(f"    v_pk_add_f32 v[{PS+j}:{PS+j+1}], v[{PS+j}:{PS+j+1}], v[{PS+16+j}:{PS+16+j+1}]")
        E("    s_waitcnt lgkmcnt(0)")
        for j in range(0, 16, 2):
            E(f"    v_pk_add_f32 v[{PS+32+j}:{PS+32+j+1}], v[{PS+32+j}:{PS+32+j+1}], v[{PS+48+j}:{PS+48+j+1}]")
        for j in range(0, 16, 2):
            E(f"    v_pk_add_f32 v[{PS+j}:{PS+j+1}], v[{PS+j}:{PS+j+1}], v[{PS+32+j}:{PS+32+j+1}]")
        for j in range(16):
            E(f"    v_cvt_pk_bf16_f32 v{PS+j}, 0, v{PS+j}")

    E("    s_cmp_eq_u32 s28, 0")
    E("    s_cbranch_scc1 fin_slow")
    y_read()
    E("    s_nop 7")
    acc_out()
    a_term()
    b_sum()
    E("    s_branch fin_out")
    E("fin_slow:")
    E("    s_nop 7")
    acc_out()
    b_sum()
    if 'g' not in os.environ.get('XP', '') and not CX:
        poll(vm, "s49", "0xffffffff")
    stamp(15)
    y_dma()
    E("    s_waitcnt vmcnt(0)")
    y_read()
    E("    s_waitcnt lgkmcnt(0)")
    a_term()
    E("fin_out:")
    for jq in range(4):
        a = PS + 4 * jq
        xs = [RS + 4 * jq + e_ for e_ in range(4)]
        for e_ in (0, 2):
            E(f"    v_pk_add_f32 v[{xs[e_]}:{xs[e_]+1}], v[{xs[e_]}:{xs[e_]+1}], v[{a+e_}:{a+e_+1}]")
        o = TT + 2 * jq
        E(f"    v_cvt_pk_bf16_f32 v{o}, v{xs[0]}, v{xs[1]}")
        E(f"    v_cvt_pk_bf16_f32 v{o+1}, v{xs[2]}, v{xs[3]}")
        E(f"    buffer_store_dwordx2 v[{o}:{o+1}], v23, s[52:55], 0 offen offset:{16*jq}")
    if DIAG or LITE:
        E("    s_waitcnt vmcnt(0)")
    stamp(31)
    E("    s_endpgm")
    VL8 = VL8_saved


def gen_kernel():
    E(f".globl {KNAME}")
    E(".p2align 8")
    E(f".type {KNAME},@function")
    E(f"{KNAME}:")
    E("    s_cmp_ge_u32 s2, 512")
    E("    s_cbranch_scc1 k_done")
    E("    s_load_dwordx16 s[64:79], s[0:1], 0")
    E("    s_load_dwordx8 s[80:87], s[0:1], 64")
    E("    s_load_dwordx2 s[88:89], s[0:1], 96")
    E("    s_memrealtime s[90:91]")
    E("    s_mov_b32 s40, 0xffff0000")
    E("    v_and_b32 v1, 63, v0")
    E("    v_lshrrev_b32 v2, 6, v0")
    E(f"    v_lshlrev_b32 v{VL8}, {3+FSH}, v1")
    E("    v_readfirstlane_b32 s3, v2")
    E("    s_waitcnt lgkmcnt(0)")
    stamp_init()
    stamp(0)
    srd_off(56, 88, 89, WS_FLAG, FLAG_BYTES)
    srd(60, 86, 87, 256)
    E("    s_cmp_lt_u32 s2, 256" if CFIRST else "    s_cmp_ge_u32 s2, 256")
    E("    s_cbranch_scc1 c_type")
    gen_gtype()
    gen_ctype()
    E("k_done:")
    E("    s_endpgm")


def main():
    hdr = open("parallel_sum__ssm_conv_h3__glu_gated_bilinear__prompt.s.ref").read().splitlines()
    for l in hdr:
        if l.startswith("; Override") or l.startswith("; grid=") or l.startswith("; @launch"):
            continue
        if not l.startswith(";"):
            break
        E(l)
    E(f"; @launch grid=(512,1,1) block=(256,1,1) lds={LDS_BYTES}")
    E('.amdgcn_target "amdgcn-amd-amdhsa--gfx950"')
    E(".text")
    gen_kernel()
    E('.section .rodata,"a"')
    E(".p2align 6")
    E(f".amdhsa_kernel {KNAME}")
    E("  .amdhsa_next_free_vgpr 256")
    E("  .amdhsa_next_free_sgpr 102")
    E("  .amdhsa_accum_offset 256")
    E("  .amdhsa_group_segment_fixed_size 0")
    E("  .amdhsa_kernarg_size 104")
    E("  .amdhsa_user_sgpr_count 2")
    E("  .amdhsa_user_sgpr_kernarg_segment_ptr 1")
    E("  .amdhsa_system_sgpr_workgroup_id_x 1")
    E(".end_amdhsa_kernel")
    path = sys.argv[1] if len(sys.argv) > 1 else "fused.s"
    open(path, "w").write("\n".join(out) + "\n")
    print("wrote", path, len(out), "lines")


main()
```

```python
import sys, os

S, D, F = 2048, 512, 1376
WS_XN = 0x000000
WS_KVR = 0x200000
WS_H = 0x400000
WS_YT = 0xA00000
WS_FLAG = 0xC00000
WS_KVA = 0xE00000
FX_OFF = 0x0000
FK_OFF = 0x2000
FH_OFF = 0x4000
FY_OFF = 0x6000
FSH = int(os.environ.get("FSH", "4"))
FG_OFF = 0x8000
FLAG_BYTES = 0x9000 << FSH
HS = int(os.environ.get("HS", "10"))
HB = 86 * 1024
H_BYTES = 64 * HB
KNAME = "parallel_sum__ssm_conv_h3__glu_gated_bilinear__prompt_kernel"
POLL_LIMIT = 200000

out = []


def E(s=""):
    out.append(s)


class VM:
    def __init__(self):
        self.q = []

    def issue(self, tag):
        self.q.append(tag)

    def wait(self, tag):
        idx = -1
        for i, t in enumerate(self.q):
            if t == tag:
                idx = i
        if idx < 0:
            return
        n = len(self.q) - 1 - idx
        assert n <= 63, n
        E(f"    s_waitcnt vmcnt({n})")
        self.q = self.q[idx + 1:]

    def wait_all(self):
        E("    s_waitcnt vmcnt(0)")
        self.q = []


DIAG = len(sys.argv) > 2 and sys.argv[2] == "diag"
LITE = len(sys.argv) > 2 and sys.argv[2] == "lite"
STAMP_WS = 0x2000000


def stamp_init():
    if not (DIAG or LITE):
        return
    E(f"    s_add_u32 s96, s88, {STAMP_WS}")
    E("    s_addc_u32 s97, s89, 0")
    E("    s_and_b32 s97, s97, 0xffff")
    E("    s_mov_b32 s98, 0x80000")
    E("    s_mov_b32 s99, 0x00020000")
    E("    s_lshl_b32 s100, s2, 2")
    E("    s_add_u32 s100, s100, s3")
    E("    s_lshl_b32 s100, s100, 7")
    E("    v_mov_b32 v254, s100")


def stamp(slot, vm=None):
    if not (DIAG or (LITE and (slot in (0, 31) or (slot == 8 and vm is None)))):
        return
    E("    s_waitcnt lgkmcnt(0)")
    E("    s_memrealtime s[100:101]")
    E("    s_waitcnt lgkmcnt(0)")
    E("    v_mov_b32 v255, s100")
    E("    s_mov_b64 s[94:95], exec")
    E("    s_mov_b64 exec, 1")
    E(f"    buffer_store_dword v255, v254, s[96:99], 0 offen offset:{4*slot}")
    E("    s_mov_b64 exec, s[94:95]")
    if vm is not None:
        vm.issue("stamp")


def stampclk(slot, vm=None):
    if not DIAG:
        return
    E("    s_waitcnt lgkmcnt(0)")
    E("    s_memtime s[100:101]")
    E("    s_waitcnt lgkmcnt(0)")
    stampval(slot, "s100", vm)


def stampval(slot, sg, vm=None):
    if not DIAG:
        return
    E(f"    v_mov_b32 v255, {sg}")
    E("    s_mov_b64 s[94:95], exec")
    E("    s_mov_b64 exec, 1")
    E(f"    buffer_store_dword v255, v254, s[96:99], 0 offen offset:{4*slot}")
    E("    s_mov_b64 exec, s[94:95]")
    if vm is not None:
        vm.issue("stamp")


def srd(dst, lo, hi, nbytes):
    E(f"    s_mov_b32 s{dst}, s{lo}")
    E(f"    s_and_b32 s{dst+1}, s{hi}, 0xffff")
    E(f"    s_mov_b32 s{dst+2}, {nbytes}")
    E(f"    s_mov_b32 s{dst+3}, 0x00020000")


def srd_off(dst, lo, hi, off, nbytes):
    E(f"    s_add_u32 s{dst}, s{lo}, {off}")
    E(f"    s_addc_u32 s{dst+1}, s{hi}, 0")
    E(f"    s_and_b32 s{dst+1}, s{dst+1}, 0xffff")
    E(f"    s_mov_b32 s{dst+2}, {nbytes}")
    E(f"    s_mov_b32 s{dst+3}, 0x00020000")


def wave_reduce_add(v, t):
    E("    s_nop 1")
    E(f"    v_add_f32_dpp v{t}, v{v}, v{v} quad_perm:[1,0,3,2] row_mask:0xf bank_mask:0xf")
    E("    s_nop 1")
    E(f"    v_add_f32_dpp v{v}, v{t}, v{t} quad_perm:[2,3,0,1] row_mask:0xf bank_mask:0xf")
    E("    s_nop 1")
    E(f"    v_add_f32_dpp v{t}, v{v}, v{v} row_half_mirror row_mask:0xf bank_mask:0xf")
    E("    s_nop 1")
    E(f"    v_add_f32_dpp v{v}, v{t}, v{t} row_mirror row_mask:0xf bank_mask:0xf")
    E(f"    v_mov_b32 v{t}, v{v}")
    E("    s_nop 1")
    E(f"    v_permlane16_swap_b32 v{v}, v{t}")
    E("    s_nop 1")
    E(f"    v_add_f32 v{v}, v{v}, v{t}")
    E(f"    v_mov_b32 v{t}, v{v}")
    E("    s_nop 1")
    E(f"    v_permlane32_swap_b32 v{v}, v{t}")
    E("    s_nop 1")
    E(f"    v_add_f32 v{v}, v{v}, v{t}")


def round_pair(a, b, t, mask_sgpr):
    E(f"    v_cvt_pk_bf16_f32 v{t}, v{a}, v{b}")
    E(f"    v_lshlrev_b32 v{a}, 16, v{t}")
    E(f"    v_and_b32 v{b}, s{mask_sgpr}, v{t}")


PA, PB, TK, VL8 = 248, 250, 252, 247
_lbl = [0]


def token_issue(vm):
    E(f"    buffer_load_dwordx2 v[{TK}:{TK+1}], off, s[60:63], 0")
    vm.issue("tok")


def token_get(vm):
    _lbl[0] += 1
    n = _lbl[0]
    vm.wait("tok")
    E(f"    s_mov_b32 s92, {POLL_LIMIT}")
    E(f"tok_l{n}:")
    E(f"    v_readfirstlane_b32 s90, v{TK}")
    E(f"    v_readfirstlane_b32 s91, v{TK+1}")
    E("    s_cmp_lg_u32 s90, 0")
    E(f"    s_cbranch_scc1 tok_d{n}")
    E(f"    buffer_load_dwordx2 v[{TK}:{TK+1}], off, s[60:63], 0 sc0 sc1")
    E("    s_waitcnt vmcnt(0)")
    E("    s_sub_u32 s92, s92, 1")
    E("    s_cmp_lg_u32 s92, 0")
    E(f"    s_cbranch_scc1 tok_l{n}")
    E(f"tok_d{n}:")


def flag_store(vm, soff):
    E(f"    s_lshl_b32 s93, {soff}, {FSH}")
    E("    s_mov_b64 exec, 1")
    E(f"    buffer_store_dwordx2 v[{TK}:{TK+1}], off, s[56:59], s93 sc0 sc1")
    E("    s_mov_b64 exec, -1")
    vm.issue("flag")


POLL_SLEEP = int(os.environ.get("PS", "4"))


def poll(vm, soff, mask, gap=6):
    _lbl[0] += 1
    n = _lbl[0]
    if mask == "0xffffffff":
        E("    s_mov_b32 exec_hi, 0")
    else:
        E(f"    s_mov_b64 exec, {mask}")
    E(f"    s_mov_b32 s92, {POLL_LIMIT}")
    E(f"    s_lshl_b32 s93, {soff}, {FSH}")
    E(f"poll_l{n}:")
    E(f"    buffer_load_dwordx2 v[{PA}:{PA+1}], v{VL8}, s[56:59], s93 offen sc0 sc1")
    E("    s_waitcnt vmcnt(0)")
    E(f"    v_cmp_ne_u64 vcc, s[90:91], v[{PA}:{PA+1}]")
    E("    s_cmp_eq_u64 vcc, 0")
    E(f"    s_cbranch_scc1 poll_d{n}")
    E("    s_mov_b64 exec, vcc")
    E(f"    s_sleep {POLL_SLEEP}")
    E("    s_sub_u32 s92, s92, 1")
    E("    s_cmp_lg_u32 s92, 0")
    E(f"    s_cbranch_scc1 poll_l{n}")
    E(f"poll_d{n}:")
    E("    s_mov_b64 exec, -1")
    vm.q = []


PP = int(os.environ.get("PP", "0"))
PPS = int(os.environ.get("PPS", "2"))


def poll2(vm, soff, mask):
    _lbl[0] += 1
    n = _lbl[0]
    E(f"    s_mov_b64 exec, {mask}")
    E(f"    s_mov_b32 s92, {POLL_LIMIT}")
    E(f"    s_lshl_b32 s93, {soff}, {FSH}")
    E(f"    buffer_load_dwordx2 v[{PA}:{PA+1}], v{VL8}, s[56:59], s93 offen sc0 sc1")
    E(f"    s_sleep {2*PPS}")
    E(f"poll_l{n}:")
    for a, b in ((PA, PB), (PB, PA)):
        E(f"    buffer_load_dwordx2 v[{b}:{b+1}], v{VL8}, s[56:59], s93 offen sc0 sc1")
        E("    s_waitcnt vmcnt(1)")
        E(f"    v_cmp_ne_u64 vcc, s[90:91], v[{a}:{a+1}]")
        E("    s_cmp_eq_u64 vcc, 0")
        E(f"    s_cbranch_scc1 poll_d{n}")
        E("    s_mov_b64 exec, vcc")
        if PPS:
            E(f"    s_sleep {PPS}")
    E("    s_sub_u32 s92, s92, 1")
    E("    s_cmp_lg_u32 s92, 0")
    E(f"    s_cbranch_scc1 poll_l{n}")
    E(f"poll_d{n}:")
    E("    s_mov_b64 exec, -1")
    vm.q = ["pl"]


TG = int(os.environ.get("TG", "128"))


def w_touch(vm, lo, hi, sr, vt):
    srd(44, lo, hi, D * F * 2)
    E(f"    s_lshl_b32 s38, {sr}, 2")
    E("    s_add_u32 s38, s38, s3")
    E("    s_mul_i32 s38, s38, 4*2752")
    sh = 4 if TG == 128 else 5
    E(f"    v_lshrrev_b32 v{vt}, {sh}, v1")
    E(f"    v_mul_u32_u24 v{vt}, 2752, v{vt}")
    E(f"    v_and_b32 v{vt+1}, {(1 << sh) - 1}, v1")
    E(f"    v_min_u32 v{vt+1}, {12 if TG == 128 else 24}, v{vt+1}")
    E(f"    v_lshlrev_b32 v{vt+1}, {7 if TG == 128 else 6}, v{vt+1}")
    E("    s_and_b32 s93, s2, 1")
    E("    s_mul_i32 s93, s93, 1536")
    E(f"    v_add_u32 v{vt+1}, s93, v{vt+1}")
    E(f"    v_min_u32 v{vt+1}, 2750, v{vt+1}")
    E(f"    v_add_u32 v{vt}, v{vt}, v{vt+1}")
    E(f"    buffer_load_ushort v{vt+1}, v{vt}, s[44:47], s38 offen")
    vm.issue("pf")
    if TG == 64:
        E("    s_add_u32 s38, s38, 2*2752")
        E(f"    buffer_load_ushort v{vt+1}, v{vt}, s[44:47], s38 offen")
        vm.issue("pf")


WS_ST = 0x000000
S_ONE = 6
GPRIO = int(os.environ.get("GPRIO", "3"))
GPRIO2 = int(os.environ.get("GPRIO2", "3"))
GPRIO3 = int(os.environ.get("GPRIO3", "0"))
GP3AT = int(os.environ.get("GP3AT", "1"))
XK = int(os.environ.get("XK", "20"))
NW0 = int(os.environ.get("NW0", "10"))
XNE = int(os.environ.get("XNE", "0"))
CE = int(os.environ.get("CE", "0"))
P1W = int(os.environ.get("P1W", "1"))
PS0 = int(os.environ.get("PS0", "0"))
KSC = os.environ.get("KSC", "sc0 sc1")
XP = os.environ.get("XP", "")
TLB = int(os.environ.get("TLB", "0"))
SIL = int(os.environ.get("SIL", "0"))
CDLY = int(os.environ.get("CDLY", "0"))
OWN = 1
CW = int(os.environ.get("CW", "0"))
NWE = int(os.environ.get("NWE", "6"))
GP4 = int(os.environ.get("GP4", "-1"))
CPRIO = int(os.environ.get("CPRIO", "1"))
KFL = int(os.environ.get("KFL", "0"))
ROT = int(os.environ.get("ROT", "4"))
CPRIO2 = int(os.environ.get("CPRIO2", "1"))
TOUCH = os.environ.get("TOUCH", "none")
CFIRST = int(os.environ.get("CFIRST", "0"))
WD_AT = os.environ.get("WD_AT", "g")
WDK = int(os.environ.get("WDK", "25"))
NBI = int(os.environ.get("NBI", "9"))
PUBK = int(os.environ.get("PUBK", "6"))
GRC = int(os.environ.get("GRC", "30"))
GRK = int(os.environ.get("GRK", "22"))
FYI = int(os.environ.get("FYI", "10"))
WLATE = 1
WDK2 = int(os.environ.get("WDK2", "22"))
CX = int(os.environ.get("CX", "0"))
RP = int(os.environ.get("RP", "-3"))
MAP = int(os.environ.get("MAP", "2"))
HELP = int(os.environ.get("HELP", "0"))
PKC = int(os.environ.get("PKC", "0"))
HI = 40960
GR1, XA, WA, WDV, XDV, DDV, SEL, GR2 = 4, 9, 13, 17, 20, 22, 24, 28
WF, XF, GACC, CS, PUB = 32, 56, 120, 216, 228
WREG = [216, 224, 80, 240, 32, 40]
NPRE = 6
XROW = 6


def la(reg, off):
    if off >= HI:
        return f"v{reg+6} offset:{off-HI}"
    return f"v{reg} offset:{off}"


def wslot(i):
    if i < 10:
        return i
    if i < 20:
        return i - 10
    return i - 19


def wdma_ops(vm, i):
    ops = []
    for j in range(2):
        def f(j=j):
            E(f"    s_add_u32 s38, s41, {(16*i + 8*j)*1024}")
            E(f"    s_add_u32 m0, s37, {wslot(i)*8192 + j*1024}")
            E("    s_nop 0")
            E(f"    buffer_load_dwordx4 v{DDV}, s[8:11], s38 offen lds")
            vm.issue(("w", i))
        ops.append(f)
    return ops


def wread(dst, slot):
    for wd in range(2):
        r = dst + 4 * wd
        E(f"    ds_read_b64_tr_b16 v[{r}:{r+1}], {la(11+wd, slot*8192)}")
        E(f"    ds_read_b64_tr_b16 v[{r+2}:{r+3}], {la(11+wd, slot*8192+512)}")


def gen_gtype_path(nt, vm0):
    vm = VM()
    vm.q = list(vm0.q)
    ACC = GACC
    P = 64 * nt
    CH = 16 * P
    STG = 4 * CH
    WB0 = 32768
    NB = (LDS_BYTES - WB0) // STG
    n = 2 * nt

    def w_dma(st):
        ops = []
        for i in range(nt):
            def f(i=i):
                if i == 0:
                    if st:
                        E(f"    s_add_u32 s48, s48, {32*2752}")
                        E("    s_cmp_ge_u32 s48, s49")
                        E(f"    s_cselect_b32 s38, {16*32*2752}, 0")
                        E("    s_sub_u32 s48, s48, s38")
                    E(f"    s_add_u32 m0, s43, {WB0 + (st % NB)*STG}")
                    E("    s_nop 0")
                E(f"    buffer_load_dwordx4 v{WDV+i}, s[52:55], s48 offen offset:{1024*i} lds")
                vm.issue(("W", st))
            ops.append(f)
        return ops

    def x_dma(p):
        ops = []
        for a in range(4):
            def f(a=a):
                if a == 0:
                    if p:
                        E("    s_add_u32 s32, s32, 128")
                        E("    s_bitset0_b32 s32, 10")
                    E(f"    s_add_u32 m0, s7, {(p % 2)*16384}")
                    E("    s_nop 0")
                    so = "s32"
                else:
                    E(f"    s_add_u32 s38, s32, {a*(8192-1024)}")
                    so = "s38"
                E(f"    buffer_load_dwordx4 v{XDV + a % 2}, s[16:19], {so} offen offset:{1024*a} lds")
                vm.issue(("X", p))
            ops.append(f)
        return ops

    def run(lst, cnt=999):
        for _ in range(min(cnt, len(lst))):
            t = lst.pop(0)
            if isinstance(t, str):
                if "buffer_store" in t:
                    vm.wait("xt")
                E(t)
                if "buffer_store" in t:
                    vm.issue("hst")
            else:
                t()

    run(x_dma(0))
    E(f"    s_mul_i32 s43, s3, {CH}")
    E("    s_lshr_b32 s5, s3, 1")
    E("    s_cmp_eq_u32 s5, 1")
    E("    s_cselect_b32 s52, s80, s78")
    E("    s_cselect_b32 s53, s81, s79")
    E("    s_and_b32 s53, s53, 0xffff")
    E(f"    s_mov_b32 s54, {D*F*2}")
    E("    s_mov_b32 s55, 0x00020000")
    E("    s_and_b32 s49, s3, 1")
    E(f"    s_mul_i32 s38, s49, {nt*1024}")
    E("    s_add_u32 s42, s42, s38")
    E("    s_mul_i32 s48, s49, 16*2752")
    E("    s_add_u32 s48, s48, s36")
    E("    s_movk_i32 s49, 2752")
    E("    s_lshl_b32 s34, s5, 1")
    for i in range(nt):
        E(f"    v_add_u32 v14, {64*i}, v1")
        if nt == 3:
            E("    v_mul_u32_u24 v15, 0x5556, v14")
            E("    v_lshrrev_b32 v15, 18, v15")
            E("    v_mul_u32_u24 v13, 12, v15")
            E("    v_sub_u32 v14, v14, v13")
        else:
            E("    v_lshrrev_b32 v15, 3, v14")
            E("    v_and_b32 v14, 7, v14")
            E("    v_bfe_u32 v13, v1, 4, 1")
            E("    v_lshlrev_b32 v13, 2, v13")
            E("    v_xor_b32 v14, v14, v13")
        E("    v_xor_b32 v14, s34, v14")
        E("    v_mul_lo_u32 v15, v15, s49")
        E(f"    v_lshl_add_u32 v{WDV+i}, v14, 4, v15")
        if i:
            E(f"    v_subrev_u32 v{WDV+i}, {1024*i}, v{WDV+i}")
    E(f"    s_add_u32 s49, s48, {16*32*2752}")
    E(f"    s_mul_i32 s38, s29, {32*2752}")
    E("    s_add_u32 s48, s48, s38")
    run(w_dma(0))
    run(w_dma(1))
    run(x_dma(1))
    for st in range(2, NB):
        run(w_dma(st))
    E("    v_lshrrev_b32 v3, 5, v1")
    E("    v_and_b32 v2, 15, v1")
    E("    v_lshrrev_b32 v4, 2, v2")
    E("    v_lshl_add_u32 v4, v3, 3, v4")
    E(f"    v_mul_u32_u24 v4, {P}, v4")
    E("    v_bfe_u32 v5, v1, 4, 1")
    E(f"    v_mul_u32_u24 v6, {2*CH}, v5")
    E("    v_add_u32 v4, v4, v6")
    E("    v_and_b32 v2, 3, v2")
    E("    v_lshl_add_u32 v4, v2, 3, v4")
    E("    v_lshlrev_b32 v5, 5, v5")
    if nt == 2:
        E("    v_bfe_u32 v2, v1, 3, 1")
        E("    v_lshlrev_b32 v2, 6, v2")
        E("    v_xor_b32 v5, v5, v2")
    E("    s_and_b32 s34, s3, 1")
    E(f"    s_mul_i32 s34, s34, {32*nt}")
    E(f"    s_mul_i32 s38, s5, {CH}")
    E(f"    s_add_u32 s38, s38, {WB0}")
    E("    v_add_u32 v4, s38, v4")
    for t in range(2):
        E(f"    s_add_u32 s38, s34, {32*t}")
        E("    v_xor_b32 v6, s38, v5")
        E(f"    v_add_u32 v{WA+t}, v4, v6")
    E(f"    s_mul_i32 s38, s5, {2*CH}")
    E(f"    s_sub_u32 s38, {CH}, s38")
    for t in range(2):
        E(f"    v_add_u32 v{WA+2+t}, s38, v{WA+t}")
    E("    v_and_b32 v4, 31, v1")
    E("    v_bfe_u32 v5, v1, 1, 3")
    E("    v_xor_b32 v5, v5, v3")
    E("    v_lshlrev_b32 v5, 4, v5")
    E("    v_lshl_add_u32 v5, v4, 7, v5")
    E("    s_lshl_b32 s38, s5, 5")
    E("    v_xor_b32 v5, s38, v5")
    E("    s_lshl_b32 s38, s5, 13")
    E(f"    v_add_u32 v{XA}, s38, v5")
    for j in range(1, 4):
        E(f"    v_xor_b32 v{XA+j}, {32*j}, v{XA}")
    E("    v_lshrrev_b32 v2, 2, v1")
    E("    v_lshrrev_b32 v3, 4, v1")
    E("    v_xor_b32 v2, v2, v3")
    E("    v_and_b32 v2, 1, v2")
    E("    v_cmp_eq_u32 vcc, 0, v2")
    E(f"    v_mov_b32 v3, s{S_ONE}")
    E("    s_nop 0")
    for j in range(4):
        E(f"    v_cndmask_b32 v{SEL+j}, 0, v3, vcc")
    E("    v_and_b32 v2, 31, v1")
    E("    v_lshrrev_b32 v3, 5, v1")
    E("    v_lshlrev_b32 v23, 10, v2")
    E("    v_lshl_add_u32 v23, v3, 3, v23")
    E("    s_lshl_b32 s38, s4, 1")
    E("    s_and_b32 s34, s3, 1")
    E("    s_add_u32 s38, s38, s34")
    E("    s_lshl_b32 s38, s38, 15")
    E("    s_and_b32 s34, s33, 7")
    E("    s_lshl_b32 s34, s34, 7")
    E("    s_add_u32 s38, s38, s34")
    E("    s_lshl_b32 s34, s5, 6")
    E("    s_add_u32 s38, s38, s34")
    E("    v_add_u32 v23, s38, v23")
    R, SA = ACC, 240
    for j in range(4):
        E(f"    v_mov_b32 v{SA+j}, 0")
    vm.wait("st")
    stamp(1, vm)
    for d in range(8):
        E(f"    v_dot2c_f32_bf16 v{SA+d%2}, s{S_ONE}, v{R+d}")
        E(f"    v_dot2c_f32_bf16 v{SA+2+d%2}, v{R+d}, v{R+d}")
    so = [["    s_nop 3"]]
    a_, b_ = SA + 4, SA + 6
    so[0] += [f"    v_add_f32 v{a_+j}, v{SA+2*j}, v{SA+2*j+1}" for j in range(2)]
    for ctl in ("quad_perm:[1,0,3,2]", "quad_perm:[2,3,0,1]", "row_half_mirror", "row_mirror"):
        so.append(["    s_nop 1"] + [f"    v_add_f32_dpp v{b_+j}, v{a_+j}, v{a_+j} {ctl} row_mask:0xf bank_mask:0xf" for j in range(2)])
        a_, b_ = b_, a_
    so.append([f"    v_mov_b32 v{b_+j}, v{a_+j}" for j in range(2)])
    so.append(["    s_nop 1"] + [f"    v_permlane16_swap_b32 v{a_+j}, v{b_+j}" for j in range(2)])
    so.append(["    s_nop 1"] + [f"    v_add_f32 v{a_+j}, v{a_+j}, v{b_+j}" for j in range(2)])
    M, V_ = a_, a_ + 1
    so.append([f"    v_mul_f32 v{M}, 0x3b000000, v{M}",
               f"    v_mul_f32 v{V_}, 0x3b000000, v{V_}",
               f"    v_fma_f32 v{V_}, -v{M}, v{M}, v{V_}"])
    so.append([f"    v_max_f32 v{V_}, 0, v{V_}",
               f"    v_cvt_pk_bf16_f32 v{M}, 0, v{M}",
               f"    v_cvt_pk_bf16_f32 v{V_}, 0, v{V_}"])
    so.append([f"    v_add_f32 v{V_}, 0x3727c5ac, v{V_}",
               f"    v_cvt_pk_bf16_f32 v{V_}, 0, v{V_}",
               f"    v_sqrt_f32 v{V_}, v{V_}",
               f"    v_sub_f32 v{PUB}, 0, v{M}"])
    so.append([f"    v_cvt_pk_bf16_f32 v{V_}, 0, v{V_}",
               f"    v_rcp_f32 v{PUB+1}, v{V_}"])
    if not SIL:
        for g in so:
            for t in g:
                E(t)
        so = []
    token_issue(vm)
    stamp(3, vm)
    vm.wait(("W", 0))
    E("    s_barrier")
    stamp(4, vm)
    stampclk(16, vm)

    dq = []

    def ds(tag, text):
        def f():
            E(text)
            dq.append(tag)
        return f

    def ds_wait(tags):
        idx = max([i for i, t in enumerate(dq) if t in tags], default=-1)
        if idx < 0:
            return
        m_ = len(dq) - 1 - idx
        E(f"    s_waitcnt lgkmcnt({min(m_, 15)})")
        if m_ <= 15:
            del dq[:idx + 1]
        else:
            del dq[:len(dq) - 15]

    def wreg(k, t):
        return WF + 12 * (k % 2) + 4 * t

    def xreg(k, e):
        return XF + 8 * (k % 8) + 4 * e

    def w_rd(k):
        bo = ((k // 2) % NB) * STG
        ops = []
        for t in range(nt):
            r = wreg(k, t)
            a = WA + 2 * (k % 2) + t % 2
            off = bo + 64 * (t // 2)
            ops.append(ds(("w", k, t), f"    ds_read_b64_tr_b16 v[{r}:{r+1}], v{a} offset:{off}"))
            ops.append(ds(("w", k, t), f"    ds_read_b64_tr_b16 v[{r+2}:{r+3}], v{a} offset:{off+4*P}"))
        return ops

    def x_rd(k):
        ops = []
        for e in range(2):
            r = xreg(k, e)
            ops.append(ds(("x", k), f"    ds_read_b128 v[{r}:{r+3}], v{XA + k % 4} offset:{((k//4) % 2)*16384 + 4096*e}"))
        return ops

    def cs_mfma(k, t):
        def f():
            a = CS + 4 * t
            c = "0" if k == 0 else f"v[{a}:{a+3}]"
            w = wreg(k, t)
            E(f"    v_mfma_f32_16x16x32_bf16 v[{a}:{a+3}], v[{SEL}:{SEL+3}], v[{w}:{w+3}], {c}")
        return f

    def publish():
        token_get(vm)
        E(f"    v_mov_b32 v{PUB+2}, s90")
        E(f"    v_mov_b32 v{PUB+3}, s91")
        E("    v_lshrrev_b32 v2, 1, v1")
        E("    s_mov_b32 exec_lo, 1")
        E("    s_mov_b32 exec_hi, 1")
        E(f"    buffer_store_dwordx4 v[{PUB}:{PUB+3}], v2, s[12:15], s35 offen sc0 sc1")
        E("    s_mov_b64 exec, -1")
        vm.issue("pub")

    def gr_load():
        E("    v_and_b32 v2, 0x1f0, v8")
        E(f"    buffer_load_dwordx4 v[{GR1}:{GR1+3}], v8, s[12:15], s46 offen sc0 sc1")
        E(f"    buffer_load_dwordx4 v[{GR2}:{GR2+3}], v2, s[12:15], s47 offen sc0 sc1")

    def gr_issue():
        gr_load()
        vm.issue("gr")
        vm.issue("gr")

    def gr_check():
        _lbl[0] += 1
        L = _lbl[0]
        vm.wait("gr")
        E(f"    s_mov_b32 s92, {POLL_LIMIT}")
        E(f"gr_l{L}:")
        E(f"    v_cmp_ne_u64 vcc, s[90:91], v[{GR1+2}:{GR1+3}]")
        E(f"    v_cmp_ne_u64 s[44:45], s[90:91], v[{GR2+2}:{GR2+3}]")
        E("    s_nop 0")
        E("    s_or_b64 vcc, vcc, s[44:45]")
        E(f"    s_cbranch_scc0 gr_d{L}")
        gr_load()
        E("    s_waitcnt vmcnt(0)")
        E("    s_sub_u32 s92, s92, 1")
        E("    s_cmp_lg_u32 s92, 0")
        E(f"    s_cbranch_scc1 gr_l{L}")
        E(f"gr_d{L}:")
        E(f"    v_mov_b32 v{GR1+2}, v{GR1}")
        E(f"    v_mov_b32 v{GR1+3}, v{GR1+1}")
        E("    s_nop 1")
        E(f"    v_permlane32_swap_b32 v{GR1}, v{GR1+2}")
        E(f"    v_permlane32_swap_b32 v{GR1+1}, v{GR1+3}")
        stampval(20, "s92", vm)

    def wdt():
        E("    s_mul_i32 s38, s33, 344*128")
        E("    v_lshlrev_b32 v2, 7, v0")
        E(f"    buffer_load_dword v{PUB}, v2, s[8:11], s38 offen")
        E("    v_min_u32 v3, 87, v0")
        E("    v_lshlrev_b32 v3, 7, v3")
        E("    s_add_u32 s38, s38, 256*128")
        E(f"    buffer_load_dword v{PUB+1}, v3, s[8:11], s38 offen")
        vm.issue("pf")
        vm.issue("pf")

    def xt_load():
        for q in range(4):
            E(f"    buffer_load_dwordx2 v[{232+2*q}:{232+2*q+1}], v23, s[16:19], 0 offen offset:{16*q}")
            vm.issue("xt")

    def acc(t, e):
        return ACC + 16 * (2 * t + e)

    def mm(k, t, e):
        x = xreg(k, e)
        w = wreg(k, t)
        a = acc(t, e)
        c = "0" if k == 0 else f"v[{a}:{a+15}]"
        E(f"    v_mfma_f32_32x32x16_bf16 v[{a}:{a+15}], v[{w}:{w+3}], v[{x}:{x+3}], {c}")

    XCH = 0

    def xw():
        E("    v_and_b32 v2, 31, v1")
        E("    v_lshrrev_b32 v3, 5, v1")
        E("    v_lshlrev_b32 v2, 2, v2")
        E("    v_lshl_add_u32 v2, v3, 12, v2")
        E("    s_lshl_b32 s38, s5, 9")
        E("    s_add_u32 s38, s38, s37")
        E("    v_xor_b32 v2, s38, v2")
        for t in range(nt):
            E(f"    ds_write_b32 v2, v{CS+4*t} offset:{XCH + 128*t}")
            dq.append("xw")

    run(x_rd(0) + w_rd(0) + x_rd(1) + x_rd(2) + x_rd(3))
    pend = []
    xq = []
    for k in range(31):
        st = k // 2
        if k % 2 == 1:
            vm.wait(("W", st + 1))
            if k % 4 == 1 and k < 28:
                vm.wait(("X", k // 4 + 1))
            assert not xq
            E("    s_waitcnt lgkmcnt(0)")
            del dq[:]
            E("    s_barrier")
            if st % 4 == 3 and st < 15 and DIAG:
                stamp(5 + st // 4, vm)
                stampclk(17 + st // 4, vm)
            assert not pend
            if k == 1:
                pend += x_dma(2)
            if st + NB < 16:
                pend += w_dma(st + NB)
            if k % 4 == 3 and k // 4 + 3 < 8:
                pend += x_dma(k // 4 + 3)
            if k % 4 == 1 and k < 28:
                for kk in range(4):
                    xq += x_rd(4 * (k // 4 + 1) + kk)
        slots = [[] for _ in range(n)]
        rd = w_rd(k + 1)
        for s_ in range(nt):
            slots[s_] += rd[2 * s_:2 * s_ + 2]
        cnt = len(xq) // 2 if k % 2 == 1 else len(xq)
        fs = list(range(nt, n))
        for i_ in range(cnt):
            slots[fs[i_ * len(fs) // cnt]].append(xq.pop(0))
        if k % 2 == 0:
            for t in range(nt):
                slots[2 * t + 1 if k < 30 else t + 1].append(cs_mfma(k, t))
        cnt = (len(pend) + 1) // 2 if k % 2 == 1 else len(pend)
        ms = list(range(n))
        todo = [(i_ * n + n - 1) // max(cnt, 1) for i_ in range(cnt)]
        for s_ in todo:
            slots[min(s_, n - 1)].append(pend.pop(0))
        for s_ in range(n):
            if so:
                slots[s_].append(lambda g=so.pop(0): [E(t) for t in g])
        if k == PUBK:
            assert not so
            slots[n - 1].append(publish)
        if k == GRK:
            slots[n - 1].append(gr_issue)
        if k == (WDK if nt == 3 else WDK2) and WD_AT == "g":
            slots[n - 1].append(wdt)
        if k == XK:
            slots[n - 1].append(xt_load)
        if k == GRC:
            slots[n - 1 if k < 30 else 0].append(gr_check)
        if k == 30:
            if nt == 2:
                slots[n - 1].append(lambda: E("    s_nop 7"))
            slots[n - 1].append(xw)
        for t in range(nt):
            for e in range(2):
                if e == 0:
                    tg = [("x", k), ("w", k, t)]
                    if k == 30:
                        tg += [("w", k, t2) for t2 in range(min(nt, 2 * t + 2))]
                    ds_wait(tg)
                mm(k, t, e)
                for f in slots[2 * t + e]:
                    f()
    assert not pend
    E("    s_waitcnt lgkmcnt(0)")
    del dq[:]
    E("    s_barrier")
    E(f"    s_setprio {GPRIO2}")
    E("    v_and_b32 v2, 31, v1")
    E("    v_lshrrev_b32 v3, 5, v1")
    E("    v_lshlrev_b32 v2, 2, v2")
    E("    v_lshl_add_u32 v2, v3, 9, v2")
    E("    v_add_u32 v2, s37, v2")
    CV = CS
    for t in range(nt):
        E(f"    ds_read_b32 v{CV+t}, v2 offset:{XCH + 128*t}")
    BM = XF
    QA = XF + 12
    T0 = XF + 20

    def split_ops(t):
        c = CV + t
        q = QA + 2 * t
        return [f"    v_and_b32 v{T0}, s40, v{c}",
                f"    v_sub_f32 v{c}, v{c}, v{T0}",
                f"    v_and_b32 v{T0+1}, s40, v{c}",
                f"    v_sub_f32 v{c}, v{c}, v{T0+1}",
                f"    v_cvt_pk_bf16_f32 v{q}, v{T0}, v{T0+1}",
                f"    v_cvt_pk_bf16_f32 v{q+1}, v{c}, 0"]

    def corr(t, e):
        q = QA + 4 * (t // 2)
        b = BM + 4 * e + (2 if t % 2 == 0 else 0)
        a = acc(t, e)
        E(f"    v_mfma_f32_32x32x16_bf16 v[{a}:{a+15}], v[{q}:{q+3}], v[{b}:{b+3}], v[{a}:{a+15}]")

    def epi_ops(t, e):
        G = acc(t, e)
        U = G + 8
        rc = GR1 + 2 * e + 1
        o = []
        for j in range(16):
            o.append(f"    v_mul_f32 v{G+j}, v{G+j}, v{rc}")
        for j in range(16):
            o.append(f"    v_cvt_pk_bf16_f32 v{G+j}, 0, v{G+j}")
        for j in range(8):
            o.append(f"    v_mul_f32 v{G+j}, v{G+j}, v{U+j}")
        for j in range(4):
            o.append(f"    v_cvt_pk_bf16_f32 v{U+j}, v{G+2*j}, v{G+2*j+1}")
        o.append("    s_nop 1")
        o.append(f"    v_permlane32_swap_b32 v{U}, v{U+2}")
        o.append(f"    v_permlane32_swap_b32 v{U+1}, v{U+3}")
        o.append(f"    buffer_store_dwordx4 v[{U}:{U+3}], v8, s[24:27], s{42 if e == 0 else 43} offen offset:{t*1024} sc0 sc1")
        return o

    pre = [f"    v_mov_b32 v{BM+j}, 0" for j in (0, 1, 4, 5, 8, 9)]
    pre += [f"    v_cvt_pk_bf16_f32 v{BM+2+j%2+4*(j//2)}, v{GR1+2*(j//2)}, v{GR1+2*(j//2)}" for j in range(4)]
    pre += [f"    v_mov_b32 v{QA+6}, 0", f"    v_mov_b32 v{QA+7}, 0", f"    s_add_u32 s43, s42, {HB}"]
    for t in range(nt):
        pre.append(f"    s_waitcnt lgkmcnt({nt-1-t})")
        pre += split_ops(t)
    we = []
    for i in range(1, 1 + NWE):
        we += wdma_ops(vm, i)
    for t in range(nt):
        for e in range(2):
            mm(31, t, e)
            run(pre, 7)
            run(we, (2 * NWE + n - 1) // n)
    run(pre)
    run(we)
    E("    s_nop 1")
    stamp(8, vm)
    ep = []
    seq = [(t, e) for t in range(nt) for e in range(2)]
    for i_, (t, e) in enumerate(seq):
        corr(t, e)
        if i_ >= 2:
            ep += epi_ops(*seq[i_ - 2])
        run(ep, 7)
    run(ep)
    for te in seq[-2:]:
        run(epi_ops(*te))
    stamp(9, vm)
    E("    s_branch phase_c")


def token_publish():
    E("    s_or_b32 s34, s2, s3")
    E("    s_cmp_eq_u32 s34, 0")
    E("    s_cbranch_scc0 g_notok")
    E("    s_or_b32 s90, s90, 1")
    E(f"    v_mov_b32 v{TK}, s90")
    E(f"    v_mov_b32 v{TK+1}, s91")
    E("    s_mov_b64 exec, 1")
    E(f"    buffer_store_dwordx2 v[{TK}:{TK+1}], off, s[60:63], 0 sc0 sc1")
    E("    s_mov_b64 exec, -1")
    E("g_notok:")


def gen_gtype():
    vm = VM()
    E(f"    s_setprio {GPRIO}")
    if CFIRST:
        E("    s_sub_u32 s2, s2, 256")
    else:
        token_publish()
    E("    s_lshr_b32 s33, s2, 3")
    if MAP:
        E("    ; map1")
        E("    s_and_b32 s30, s2, 4")
        E("    s_lshl_b32 s30, s30, 1")
        E("    s_lshr_b32 s31, s33, 2")
        E("    s_add_u32 s30, s30, s31")
        E("    s_and_b32 s31, s2, 3")
        E("    s_lshl_b32 s31, s31, 2")
        E("    s_and_b32 s34, s33, 3")
        E("    s_add_u32 s31, s31, s34")
        E("    s_and_b32 s4, s2, 7")
        E("    s_lshl_b32 s4, s4, 2")
        E("    s_lshr_b32 s34, s33, 3")
        E("    s_add_u32 s4, s4, s34")
    else:
        E("    s_bfe_u32 s30, s2, 0x20001")
        E("    s_lshl_b32 s30, s30, 2")
        E("    s_lshr_b32 s31, s33, 3")
        E("    s_add_u32 s30, s30, s31")
        E("    s_and_b32 s31, s2, 1")
        E("    s_lshl_b32 s31, s31, 3")
        E("    s_and_b32 s34, s33, 7")
        E("    s_add_u32 s31, s31, s34")
    srd(16, 64, 65, S * D * 2)
    E("    s_lshl_b32 s35, s30, 7")
    E("    s_lshl_b32 s34, s31, 3")
    E("    s_add_u32 s35, s35, s34")
    E("    s_lshl_b32 s34, s3, 1")
    E("    s_add_u32 s35, s35, s34")
    E("    s_lshl_b32 s34, s35, 10")
    E("    v_lshrrev_b32 v12, 5, v1")
    E("    v_and_b32 v13, 31, v1")
    E("    v_lshlrev_b32 v13, 4, v13")
    E("    v_lshl_add_u32 v12, v12, 10, v13")
    E(f"    buffer_load_dwordx4 v[{GACC}:{GACC+3}], v12, s[16:19], s34 offen")
    E(f"    buffer_load_dwordx4 v[{GACC+4}:{GACC+7}], v12, s[16:19], s34 offen offset:512")
    vm.issue("st")
    vm.issue("st")
    E("    s_lshl_b32 s35, s35, 4")
    E("    s_lshl_b32 s32, s30, 17")
    E("    s_lshl_b32 s34, s3, 15")
    E("    s_add_u32 s32, s32, s34")
    E("    s_lshr_b32 s46, s32, 6")
    E("    s_bitset0_b32 s46, 9")
    E("    v_lshrrev_b32 v12, 3, v1")
    E("    v_lshrrev_b32 v13, 4, v1")
    E("    v_xor_b32 v13, v13, v1")
    E("    v_and_b32 v13, 7, v13")
    E("    v_lshlrev_b32 v13, 4, v13")
    E(f"    v_lshl_add_u32 v{XDV}, v12, 10, v13")
    E(f"    v_xor_b32 v{XDV+1}, 64, v{XDV}")
    E("    s_lshl_b32 s7, s3, 12")
    if MAP:
        E("    s_lshr_b32 s29, s33, 2")
        E("    s_and_b32 s34, s33, 3")
    else:
        E("    s_and_b32 s29, s33, 7")
        E("    s_lshr_b32 s34, s33, 3")
    E("    s_lshl_b32 s34, s34, 1")
    if ROT == 1:
        E("    s_add_u32 s29, s29, s34")
    if ROT == 3:
        E("    s_mov_b32 s29, s34")
    if ROT == 4:
        E("    s_lshl_b32 s29, s29, 1")
    if ROT == 10:
        E("    s_add_u32 s29, s29, 1")
        E("    s_lshl_b32 s29, s29, 1")
    if ROT == 11:
        E("    s_lshl_b32 s29, s29, 1")
        E("    s_add_u32 s29, s29, 1")
    if ROT == 6:
        E("    s_lshl_b32 s29, s29, 2")
    if ROT == 7:
        E("    s_lshl_b32 s29, s29, 1")
        E("    s_bfe_u32 s34, s34, 0x10001")
        E("    s_add_u32 s29, s29, s34")
    if ROT == 8:
        E("    s_lshr_b32 s29, s29, 1")
        E("    s_lshl_b32 s29, s29, 1")
    if ROT == 9:
        E("    s_lshl_b32 s29, s29, 1")
        E("    s_add_u32 s29, s29, s34")
    if ROT == 5:
        E("    s_lshr_b32 s34, s34, 2")
        E("    s_lshl_b32 s34, s34, 2")
        E("    s_add_u32 s29, s29, s34")
    E("    s_lshl_b32 s29, s29, 1")
    E("    s_and_b32 s29, s29, 15" if ROT else "    s_mov_b32 s29, 0")
    E("    s_lshl_b32 s34, s29, 6")
    E("    s_add_u32 s32, s32, s34")
    srd_off(24, 88, 89, WS_H, H_BYTES)
    srd_off(12, 88, 89, WS_ST, S * 16)
    E(f"    s_mov_b32 s{S_ONE}, 0x3f803f80")
    E("    v_lshlrev_b32 v8, 4, v1")
    if MAP:
        E("    s_lshl_b32 s47, s4, 10")
    else:
        E("    s_lshl_b32 s47, s30, 11")
        E("    s_lshr_b32 s34, s31, 3")
        E("    s_lshl_b32 s34, s34, 10")
        E("    s_add_u32 s47, s47, s34")
    E("    s_and_b32 s34, s3, 1")
    E("    s_lshl_b32 s34, s34, 9")
    E("    s_add_u32 s47, s47, s34")
    srd(8, 82, 83, F * D * 2)
    E("    s_mul_i32 s51, s3, 22")
    E("    s_cmp_eq_u32 s3, 3")
    E("    s_cselect_b32 s51, 65, s51")
    E("    s_lshl_b32 s41, s51, 14")
    E("    s_lshl_b32 s37, s3, 11")
    E("    v_lshrrev_b32 v14, 3, v1")
    E(f"    v_lshlrev_b32 v{DDV}, 10, v14")
    E("    v_and_b32 v14, 7, v1")
    E("    v_bfe_u32 v15, v1, 4, 1")
    E("    v_lshlrev_b32 v15, 2, v15")
    E("    v_xor_b32 v14, v14, v15")
    E(f"    v_lshl_add_u32 v{DDV}, v14, 4, v{DDV}")
    E("    s_and_b32 s34, s33, 7")
    E("    s_lshl_b32 s34, s34, 7")
    E(f"    v_add_u32 v{DDV}, s34, v{DDV}")
    E("    s_lshl_b32 s36, s30, 2")
    E("    s_add_u32 s36, s36, s3")
    E("    s_lshl_b32 s39, s36, 7")
    E("    s_lshl_b32 s38, s31, 3")
    E("    s_add_u32 s39, s39, s38")
    E(f"    s_add_u32 s39, s39, {FH_OFF}")
    E("    s_bitset0_b32 s36, 0")
    E(f"    s_mul_i32 s42, s36, {HB}")
    if MAP == 2:
        E("    ; map2")
        E("    s_mul_i32 s36, s31, 3")
        E("    s_add_u32 s38, s31, 1")
        E("    s_lshr_b32 s38, s38, 4")
        E("    s_sub_u32 s36, s36, s38")
        E("    s_lshr_b32 s38, s31, 2")
        E("    s_sub_u32 s36, s36, s38")
        E("    s_lshl_b32 s36, s36, 6")
        E("    s_lshl_b32 s38, s36, 5")
        E("    s_add_u32 s42, s42, s38")
        E("    s_bitcmp1_b32 0xc888, s31")
        E("    s_cbranch_scc1 g_path2")
        gen_gtype_path(3, vm)
        E("g_path2:")
        gen_gtype_path(2, vm)
        gen_phase_c()
        return
    E("    s_cmp_lt_u32 s31, 11")
    E("    s_cbranch_scc0 g_path2")
    E("    s_mul_i32 s36, s31, 192")
    E("    s_mul_i32 s38, s31, 3*2048")
    E("    s_add_u32 s42, s42, s38")
    gen_gtype_path(3, vm)
    E("g_path2:")
    E("    s_lshl_b32 s36, s31, 7")
    E("    s_add_u32 s36, s36, 704")
    E("    s_lshl_b32 s38, s36, 5")
    E("    s_add_u32 s42, s42, s38")
    gen_gtype_path(2, vm)
    gen_phase_c()


KVP = 80
KV_OFF = 0
CSTR = 4416
COPY_BASE = [64 * KVP + CSTR * (c + 1) for c in range(4)]
TB_OFF = 5376
XCH_OFF = 27136
STG_OFF = XCH_OFF + 8192
CH_BYTES = STG_OFF + 4096
LDS_BYTES = 81920
assert TB_OFF + 4096 <= COPY_BASE[0] and COPY_BASE[3] + 4208 <= XCH_OFF
assert 2 * CH_BYTES <= LDS_BYTES


def wd_touch(vt):
    srd(52, 82, 83, F * D * 2)
    E("    s_mul_i32 s93, s50, 344*128")
    E(f"    v_lshlrev_b32 v{vt}, 7, v0")
    E(f"    buffer_load_dword v{vt+1}, v{vt}, s[52:55], s93 offen")
    E(f"    v_min_u32 v{vt}, 87, v0")
    E(f"    v_lshlrev_b32 v{vt}, 7, v{vt}")
    E("    s_add_u32 s93, s93, 256*128")
    E(f"    buffer_load_dword v{vt+1}, v{vt}, s[52:55], s93 offen")


def gen_ctype():
    vm = VM()
    E("c_type:")
    E(f"    s_setprio {CPRIO}")
    if CFIRST:
        token_publish()
    if 'g' in os.environ.get('XP', ''):
        E("    s_endpgm")
    if CFIRST:
        pass
    else:
        E("    s_sub_u32 s2, s2, 256")
    srd(16, 66, 67, S * D * 2)
    srd(20, 68, 69, S * D * 2)
    srd(24, 70, 71, D * 4 * 2)
    E("    s_lshr_b32 s32, s2, 3")
    E("    s_and_b32 s33, s2, 7")
    E("    v_and_b32 v10, 31, v0")
    E("    v_lshrrev_b32 v11, 5, v0")
    E("    s_lshl_b32 s34, s32, 6")
    E("    v_lshlrev_b32 v3, 3, v11")
    E("    v_add_u32 v3, s34, v3")
    E("    s_lshl_b32 s35, s33, 5")
    E("    v_add_u32 v6, s35, v10")
    E("    v_lshlrev_b32 v3, 10, v3")
    E("    v_lshl_add_u32 v3, v6, 2, v3")
    E("    v_add_u32 v4, 4096, v3")
    E("    v_subrev_u32 v5, 3072, v3")
    E("    v_lshlrev_b32 v6, 4, v6")
    if CDLY:
        E(f"    s_sleep {CDLY}")
    for j in range(3):
        E(f"    buffer_load_dword v{132+j}, v5, s[16:19], 0 offen offset:{1024*j}")
    for j in range(4):
        E(f"    buffer_load_dword v{135+j}, v3, s[16:19], 0 offen offset:{1024*j}")
    for j in range(4):
        E(f"    buffer_load_dword v{139+j}, v4, s[16:19], 0 offen offset:{1024*j}")
    for j in range(4):
        E(f"    buffer_load_dword v{144+j}, v3, s[20:23], 0 offen offset:{1024*j}")
    for j in range(4):
        E(f"    buffer_load_dword v{148+j}, v4, s[20:23], 0 offen offset:{1024*j}")
    E("    buffer_load_dwordx4 v[128:131], v6, s[24:27], 0 offen")
    for _ in range(20):
        vm.issue("kv")
    E("    s_lshr_b32 s31, s3, 1")
    E("    s_lshl_b32 s30, s33, 6")
    E("    s_lshl_b32 s34, s32, 1")
    E("    s_add_u32 s30, s30, s34")
    E("    s_add_u32 s30, s30, s31")
    E("    s_mov_b32 s50, s32")
    E("    s_mov_b32 s51, s33")
    E("    s_and_b32 s32, s3, 1")
    E("    s_lshl_b32 s33, s30, 12")
    srd_off(44, 72, 73, "s33", 4096)
    E(f"    s_mul_i32 s35, s31, {CH_BYTES}")
    E("    s_lshl_b32 s36, s32, 6")
    E("    v_add_u32 v3, s36, v1")
    E("    v_lshlrev_b32 v4, 4, v3")
    E("    v_subrev_u32 v5, 8, v4")
    E("    v_add_u32 v29, 2040, v4")
    def kf_loads():
        srd_off(44, 72, 73, "s33", 4096)
        E("    buffer_load_dwordx4 v[18:21], v4, s[44:47], 0 offen")
        E("    buffer_load_dwordx4 v[24:27], v4, s[44:47], 0 offen offset:2048")
        E("    buffer_load_dwordx2 v[16:17], v5, s[44:47], 0 offen")
        E("    buffer_load_dwordx2 v[22:23], v29, s[44:47], 0 offen")
        for _ in range(4):
            vm.issue("kf")
        srd(44, 74, 75, D * 2)
        E("    s_lshl_b32 s36, s30, 1")
        E("    v_mov_b32 v7, s36")
        E("    buffer_load_ushort v9, v7, s[44:47], 0 offen")
        vm.issue("kf")
    if not KFL:
        kf_loads()
    srd_off(8, 88, 89, WS_KVR, S * D * 2)
    srd_off(12, 88, 89, WS_KVA, S * D * 2)
    E("    s_getreg_b32 s6, hwreg(HW_REG_XCC_ID, 0, 4)")
    E("    v_lshrrev_b32 v12, 4, v10")
    E(f"    v_mul_u32_u24 v12, {CH_BYTES}, v12")
    E("    v_and_b32 v13, 15, v10")
    E("    v_lshl_add_u32 v12, v13, 8, v12")
    E("    v_sub_u32 v13, 7, v11")
    E("    v_and_b32 v14, 7, v10")
    E("    v_xor_b32 v13, v13, v14")
    E("    v_lshl_add_u32 v12, v13, 4, v12")
    E(f"    v_add_u32 v12, {TB_OFF}, v12")
    E("    v_lshrrev_b32 v13, 3, v1")
    E("    v_and_b32 v14, 7, v1")
    E("    v_lshrrev_b32 v15, 4, v1")
    E("    v_xor_b32 v15, v15, v14")
    E("    v_lshlrev_b32 v15, 4, v15")
    E("    v_lshl_add_u32 v15, v13, 7, v15")
    E(f"    s_mul_i32 s36, s31, {CH_BYTES}")
    E("    s_lshl_b32 s37, s32, 11")
    E("    s_add_u32 s36, s36, s37")
    E(f"    s_add_u32 s36, s36, {TB_OFF}")
    E("    v_add_u32 v15, s36, v15")
    E("    v_xor_b32 v28, 64, v15")
    E("    v_lshlrev_b32 v13, 12, v13")
    E("    v_lshl_add_u32 v13, v14, 4, v13")
    E("    s_lshl_b32 s36, s51, 18")
    E("    s_lshl_b32 s37, s3, 16")
    E("    s_add_u32 s36, s36, s37")
    E("    s_lshl_b32 s37, s50, 7")
    E("    s_sub_u32 s37, 3968, s37")
    E("    s_add_u32 s48, s36, s37")
    E("    s_lshl_b32 s36, s51, 10")
    E(f"    s_add_u32 s36, s36, {FK_OFF}")
    E("    s_lshl_b32 s37, s3, 8")
    E("    s_add_u32 s49, s36, s37")
    E("    s_lshl_b32 s37, s50, 3")
    E("    s_add_u32 s49, s49, s37")
    E("    s_lshr_b32 s37, s50, 3")
    E("    s_lshl_b32 s37, s37, 8")
    E("    s_add_u32 s41, s36, s37")
    if TLB:
        E("    s_add_u32 s43, s48, 32768")
        E("    s_mov_b32 exec_lo, 0x01010101")
        E("    s_mov_b32 exec_hi, 0x01010101")
        E("    buffer_load_dword v30, v13, s[12:15], s48 offen")
        E("    buffer_load_dword v31, v13, s[12:15], s43 offen")
        E("    s_mov_b64 exec, -1")
        vm.issue("tl")
        vm.issue("tl")
    vm.wait("kv")
    stamp(1, vm)
    token_issue(vm)
    if KFL:
        kf_loads()
    if TOUCH != "none":
        w_touch(vm, 78, 79, "s50", 29)
    if WD_AT == "early":
        wd_touch(244)
        vm.issue("pf")
        vm.issue("pf")
    if CX == 1:
        E("    s_waitcnt vmcnt(0)")
        E("    s_endpgm")
    for t in range(4):
        for c in range(2):
            src = 128 + 2 * c + t // 2
            if t % 2 == 0:
                E(f"    v_lshlrev_b32 v{32+2*t+c}, 16, v{src}")
            else:
                E(f"    v_and_b32 v{32+2*t+c}, s40, v{src}")
    for j in range(11):
        E(f"    v_lshlrev_b32 v{40+2*j}, 16, v{132+j}")
        E(f"    v_and_b32 v{41+2*j}, s40, v{132+j}")
    for j in range(8):
        E(f"    v_lshlrev_b32 v{64+2*j}, 16, v{144+j}")
        E(f"    v_and_b32 v{65+2*j}, s40, v{144+j}")

    def pr(r):
        return f"v[{r}:{r+1}]"

    def rnd(r):
        E(f"    v_cvt_pk_bf16_f32 v{r}, 0, v{r}")

    def p2(op, d, a, b, pk=0):
        if pk:
            return [f"    v_pk_{op}_f32 {pr(d)}, {pr(a)}, {pr(b)}"]
        return [f"    v_{op}_f32 v{d+j}, v{a+j}, v{b+j}" for j in range(2)]

    def P2(*a, **k):
        for t in p2(*a, **k):
            E(t)

    for j in range(8):
        T = 96 + 8 * (j % 2)
        for t in range(4):
            P2("mul", T + 2 * t, 40 + 2 * (j + t), 32 + 2 * (3 - t))
        for t in range(8):
            rnd(T + t)
        for t in range(1, 4):
            P2("add", T, T, T + 2 * t)
            rnd(T)
            rnd(T + 1)
        P2("mul", 80 + 2 * j, T, 64 + 2 * j)
    for c in range(2):
        for jj in range(4):
            E(f"    v_cvt_pk_bf16_f32 v{104+4*c+jj}, v{80+2*(7-2*jj)+c}, v{80+2*(6-2*jj)+c}")
    if CX == 2:
        E("    s_waitcnt vmcnt(0)")
        E("    s_endpgm")
    E("    ds_write_b128 v12, v[104:107]")
    E("    ds_write_b128 v12, v[108:111] offset:128")
    E("    s_waitcnt lgkmcnt(0)")
    E("    s_barrier")
    E("    ds_read_b128 v[104:107], v15")
    E("    ds_read_b128 v[108:111], v28 offset:1024")
    E("    s_add_u32 s43, s48, 32768")
    E("    s_waitcnt lgkmcnt(1)")
    if 's' not in XP:
        E("    buffer_store_dwordx4 v[104:107], v13, s[12:15], s48 offen")
    E("    s_waitcnt lgkmcnt(0)")
    if 's' not in XP:
        E("    buffer_store_dwordx4 v[108:111], v13, s[12:15], s43 offen")
        vm.issue("kst")
        vm.issue("kst")
    stamp(2, vm)
    E("    s_add_u32 s34, s33, %d" % WS_KVR)
    srd_off(20, 88, 89, "s34", 4096)
    E("    s_add_u32 s34, s33, %d" % WS_YT)
    srd_off(24, 88, 89, "s34", 4096)
    E("    v_mov_b32 v36, 0")
    E("    v_mov_b32 v37, 0")
    E("    v_mov_b32 v38, 0")
    E("    v_mov_b32 v39, 0")
    E("    v_mul_u32_u24 v7, 37, v1")
    E("    v_lshrrev_b32 v7, 8, v7")
    E(f"    v_mul_u32_u24 v7, {CSTR - 112}, v7")
    E("    v_lshl_add_u32 v7, v1, 4, v7")
    E("    v_add_u32 v7, s35, v7")
    E("    s_mov_b32 exec_hi, 7")
    E(f"    ds_write_b128 v7, v[36:39] offset:{64*KVP}")
    E("    s_mov_b64 exec, -1")
    E("    v_lshlrev_b32 v6, 4, v3")
    E("    v_add_u32 v7, s35, v6")
    E("    v_lshrrev_b32 v8, 2, v3")
    E(f"    v_mul_u32_u24 v8, {KVP}, v8")
    E("    v_and_b32 v10, 3, v3")
    E("    v_lshl_add_u32 v8, v10, 4, v8")
    E("    v_add_u32 v8, s35, v8")
    E("    v_and_b32 v3, 31, v1")
    E("    v_lshrrev_b32 v4, 5, v1")
    E("    v_and_b32 v14, 3, v3")
    E(f"    v_mul_u32_u24 v10, {CSTR - 2}, v14")
    E("    v_lshl_add_u32 v10, v3, 1, v10")
    E("    v_lshlrev_b32 v14, 4, v4")
    E("    v_sub_u32 v10, v10, v14")
    E(f"    s_add_u32 s36, s35, {COPY_BASE[0] + 8}")
    E("    v_add_u32 v10, s36, v10")
    E("    v_sub_u32 v5, 63, v3")
    E(f"    v_mul_u32_u24 v5, {KVP}, v5")
    E("    v_lshlrev_b32 v14, 4, v4")
    E("    v_sub_u32 v5, v5, v14")
    E(f"    s_add_u32 s36, s35, {KV_OFF + 16}")
    E("    v_add_u32 v11, s36, v5")
    E(f"    v_subrev_u32 v15, {32*KVP}, v11")
    E(f"    s_add_u32 s36, s36, {KVP*64}")
    E("    v_sub_u32 v12, s36, v14")
    E("    v_lshlrev_b32 v14, 3, v4")
    E("    v_add_u32 v5, v5, v14")
    E(f"    s_mul_i32 s36, s32, {32*KVP}")
    E(f"    s_sub_u32 s36, {KV_OFF + 8}, s36")
    E("    s_add_u32 s36, s36, s35")
    E("    v_add_u32 v5, s36, v5")
    E("    s_lshl_b32 s36, s32, 10")
    E("    v_add_u32 v10, s36, v10")
    E(f"    s_mul_i32 s36, s32, {16*KVP}")
    E("    v_add_u32 v11, s36, v11")
    E("    v_add_u32 v15, s36, v15")
    E("    v_add_u32 v14, 2048, v10")

    def copies():
        vm.wait("kf")
        for u in range(2):
            e = 16 + 6 * u
            for c in range(4):
                r = 40 + 4 * c
                for d in range(4):
                    if c == 1:
                        E(f"    v_mov_b32 v{r+d}, v{e+1+d}")
                    elif c < 3:
                        E(f"    v_alignbyte_b32 v{r+d}, v{e+c//2+d+1}, v{e+c//2+d}, 2")
                if c == 3:
                    r = e + 2
                if 'c' not in XP:
                    E(f"    ds_write_b128 v7, v[{r}:{r+3}] offset:{COPY_BASE[c] + 112 + 2048*u}")

    if CE:
        copies()
    token_get(vm)
    stampval(20, "s92", vm)
    E("    s_add_u32 s6, s6, 1")
    E("    s_lshl_b32 s6, s6, 24")
    E("    s_mov_b32 s4, s90")
    E("    s_xor_b32 s5, s91, s6")
    E("    v_mov_b32 v244, s4")
    E("    v_mov_b32 v245, s5")
    E(f"    s_sub_u32 s93, s49, {FK_OFF}")
    E(f"    s_lshl_b32 s93, s93, {FSH}")
    vm.wait("kst")
    E("    s_mov_b64 exec, 1")
    E("    buffer_store_dwordx2 v[244:245], off, s[56:59], s93")
    E("    s_mov_b64 exec, -1")
    vm.issue("flag")
    stamp(3, vm)
    if CX == 3:
        E("    s_waitcnt vmcnt(0)")
        E("    s_endpgm")
    if not CE:
        copies()
    E(f"    s_setprio {CPRIO2}")
    stamp(9, vm)
    if CX == 4:
        E("    s_waitcnt vmcnt(0)")
        E("    s_endpgm")

    def slow_stores():
        E("    buffer_store_dwordx4 v[104:107], v13, s[8:11], s48 offen sc0 sc1")
        E("    buffer_store_dwordx4 v[108:111], v13, s[8:11], s43 offen sc0 sc1")

    NF = int(os.environ.get("NF", "12"))
    E(f"    s_mov_b32 s92, {POLL_LIMIT}")
    E("    s_mov_b32 s28, 0")
    E(f"    s_sub_u32 s46, s41, {FK_OFF}")
    E(f"    s_lshl_b32 s46, s46, {FSH}")
    E(f"    s_lshl_b32 s47, s41, {FSH}")
    if P1W:
        E(f"    v_mov_b32 v52, {XCH_OFF}")
        E("    s_cmp_lg_u32 s3, 0")
        E("    s_cbranch_scc1 p1_bar")
        E("    s_mov_b32 exec_hi, 0")
        E(f"    s_mov_b32 s93, {NF}")
        if PS0:
            E(f"    s_sleep {PS0}")
        E("p1_l:")
        E(f"    buffer_load_dwordx2 v[{PA}:{PA+1}], v{VL8}, s[56:59], s46 offen {KSC}")
        E("    s_waitcnt vmcnt(0)")
        E(f"    v_cmp_ne_u64 vcc, s[4:5], v[{PA}:{PA+1}]")
        E("    s_cmp_eq_u64 vcc, 0")
        E("    s_cbranch_scc1 p1_ok")
        E("    s_mov_b64 exec, vcc")
        E(f"    s_sleep {int(os.environ.get('PSK', '2'))}")
        E("    s_sub_u32 s93, s93, 1")
        E("    s_cmp_lg_u32 s93, 0")
        E("    s_cbranch_scc1 p1_l")
        E("p1_ok:")
        E("    s_mov_b64 exec, -1")
        E("    v_mov_b32 v53, s93")
        E("    ds_write_b32 v52, v53")
        E("    s_waitcnt lgkmcnt(0)")
        E("p1_bar:")
        E("    s_barrier")
        E("    ds_read_b32 v53, v52")
        E("    s_waitcnt lgkmcnt(0)")
        E("    v_readfirstlane_b32 s93, v53")
        E("    s_cmp_lg_u32 s93, 0")
        E("    s_cbranch_scc1 pk_fast")
        NF = 1
    E("    s_mov_b32 exec_hi, 0")
    E("pk_l:")
    E(f"    buffer_load_dwordx2 v[{PA}:{PA+1}], v{VL8}, s[56:59], s46 offen {KSC if not P1W else 'sc0 sc1'}")
    E("    s_waitcnt vmcnt(0)")
    E(f"    v_cmp_ne_u64 vcc, s[4:5], v[{PA}:{PA+1}]")
    E("    s_cmp_eq_u64 vcc, 0")
    E("    s_cbranch_scc1 pk_fast")
    E(f"    s_cmp_gt_u32 s92, {POLL_LIMIT - NF}")
    E("    s_cbranch_scc1 pk_next")
    E("    s_cmp_lg_u32 s28, 0")
    E("    s_cbranch_scc1 pk_sb")
    E("    s_mov_b64 exec, -1")
    slow_stores()
    E("    s_waitcnt vmcnt(0)")
    flag_store(vm, "s49")
    E("    s_mov_b32 s28, 1")
    E("    s_mov_b32 exec_hi, 0")
    E("pk_sb:")
    E(f"    buffer_load_dwordx2 v[{PA}:{PA+1}], v{VL8}, s[56:59], s47 offen sc0 sc1")
    E("    s_waitcnt vmcnt(0)")
    E(f"    v_cmp_ne_u64 vcc, s[90:91], v[{PA}:{PA+1}]")
    E("    s_cmp_eq_u64 vcc, 0")
    E("    s_cbranch_scc1 pk_join")
    E("pk_next:")
    E(f"    s_sleep {int(os.environ.get('PSK', '2'))}")
    E("    s_sub_u32 s92, s92, 1")
    E("    s_cmp_lg_u32 s92, 0")
    E("    s_cbranch_scc1 pk_l")
    E("    s_branch pk_join")
    E("pk_fast:")
    E(f"    s_add_u32 s20, s20, {WS_KVA - WS_KVR}")
    E("    s_addc_u32 s21, s21, 0")
    E("    s_and_b32 s21, s21, 0xffff")
    E("pk_join:")
    E("    s_mov_b64 exec, -1")
    stampval(21, "s92", vm)
    stamp(4, vm)
    E("    buffer_load_dwordx4 v[28:31], v6, s[20:23], 0 offen")
    E("    buffer_load_dwordx4 v[32:35], v6, s[20:23], 0 offen offset:2048")
    E("    v_mov_b32 v246, v13")
    if RP >= 0:
        for j in range(8):
            E(f"    v_mov_b32 v{56+j}, v{104+j}")
    E("    s_waitcnt vmcnt(1)")
    E(f"    ds_write_b128 v8, v[28:31] offset:{KV_OFF}")
    E("    s_waitcnt vmcnt(0)")
    E(f"    ds_write_b128 v8, v[32:35] offset:{KV_OFF + 32*KVP}")
    if RP == -1:
        slow_stores()
    stamp(10)
    vm.q = []
    E("    s_waitcnt lgkmcnt(0)")
    E("    s_barrier")
    stamp(5)
    if CX == 5:
        E("    s_waitcnt vmcnt(0)")
        E("    s_endpgm")
    TR, BR, ACC = 64, 96, 144
    KD, KR, DD = 32, 16, 48
    A0E, A0O, A1E, A1O = ACC, ACC + 16, ACC + 32, ACC + 48

    def tr(d, hi):
        return TR + 8 * (d % 4) + 4 * hi

    def br(d, c, q):
        return BR + 16 * (d % 3) + 8 * c + 4 * q

    def rd(r, a, off):
        return f"    ds_read_b128 v[{r}:{r+3}], v{a} offset:{off}"

    def ra(r, a, t3):
        return f"    ds_read2_b64 v[{r}:{r+3}], v{a} offset0:{4*t3} offset1:{4*t3+1}"

    def reads(d):
        return [[ra(tr(d, 0), 10, 2 * d + 3)],
                [rd(br(d, 1, 0), 15, KVP * d + 32)],
                [f"    v_add_u32 v13, {KVP*d}, v11", "    v_min_u32 v13, v13, v12", rd(br(d, 0, 0), 13, 32)],
                [rd(br(d, 1, 1), 15, KVP * d)],
                [ra(tr(d, 1), 14, 2 * d + 3)],
                [rd(br(d, 0, 1), 13, 0)]]

    def merge(d, hi):
        return [f"    v_mov_b32_dpp v{tr(d-1, hi)+j}, v{tr(d, hi)+j} quad_perm:[0,1,2,3] row_mask:0x5 bank_mask:0xf"
                for j in range(4)]

    if CW:
        E("    s_mov_b32 s92, 64")
        E("cw_l:")
        E("    s_memrealtime s[36:37]")
        E("    s_waitcnt lgkmcnt(0)")
        E("    s_sub_u32 s36, s36, s90")
        E(f"    s_cmp_gt_u32 s36, {CW}")
        E("    s_cbranch_scc1 cw_d")
        E("    s_sleep 2")
        E("    s_sub_u32 s92, s92, 1")
        E("    s_cmp_lg_u32 s92, 0")
        E("    s_cbranch_scc1 cw_l")
        E("cw_d:")
    for jq in range(4):
        E(f"    ds_read_b64 v[{KR+2*jq}:{KR+2*jq+1}], v5 offset:{16*(3-jq)}")
    E(ra(tr(-1, 0), 10, 1))
    E(ra(tr(-1, 1), 14, 1))
    for d in range(2):
        for g in reads(d):
            for t in g:
                E(t)
    kd = [f"    v_lshlrev_b32 v{DD}, 16, v9"]
    for jq in range(4):
        k0 = KD + 4 * jq
        kd += [f"    v_and_b32 v{k0}, s40, v{KR+1+2*jq}",
               f"    v_lshlrev_b32 v{k0+1}, 16, v{KR+1+2*jq}",
               f"    v_and_b32 v{k0+2}, s40, v{KR+2*jq}",
               f"    v_lshlrev_b32 v{k0+3}, 16, v{KR+2*jq}"]
        kd += [f"    v_mul_f32 v{k0+e_}, v{k0+e_}, v{DD}" for e_ in range(4)]
        kd += [f"    v_cvt_pk_bf16_f32 v{k0+e_}, 0, v{k0+e_}" for e_ in range(4)]
    kd += ["    v_lshlrev_b32 v7, 4, v1",
           "    s_lshl_b32 s36, s32, 12",
           "    s_add_u32 s37, s36, s35",
           "    v_add_u32 v50, s37, v7",
           "    s_xor_b32 s36, s36, 4096",
           "    s_add_u32 s37, s36, s35",
           "    v_add_u32 v51, s37, v7",
           "    s_lshl_b32 s37, s32, 11",
           "    s_add_u32 s36, s37, s35",
           f"    s_add_u32 s36, s36, {STG_OFF}",
           "    v_lshlrev_b32 v6, 6, v3",
           "    v_lshl_add_u32 v6, v4, 3, v6",
           "    v_add_u32 v6, s36, v6",
           "    v_add_u32 v8, s36, v7"]
    for d in range(16):
        E(f"    s_waitcnt lgkmcnt({6 if d < 15 else 0})")
        nx = reads(d + 2) if d + 2 < 16 else [[] for _ in range(6)]
        seq = [(A1E, tr(d, 0), br(d, 1, 0)), (A0E, tr(d, 0), br(d, 0, 0)), (A1O, tr(d - 1, 0), br(d, 1, 1)),
               (A1E, tr(d, 1), br(d, 0, 0)), (A0O, tr(d - 1, 0), br(d, 0, 1)), (A1O, tr(d - 1, 1), br(d, 0, 1))]
        for m_, (a, x, y) in enumerate(seq):
            c = "0" if d == 0 and m_ not in (3, 5) else f"v[{a}:{a+15}]"
            E(f"    v_mfma_f32_32x32x16_bf16 v[{a}:{a+15}], v[{x}:{x+3}], v[{y}:{y+3}], {c}")
            if m_ < 2:
                for t in merge(d, m_):
                    E(t)
            for t in nx[m_]:
                E(t)
            if d >= 1 and m_ >= 2:
                for _ in range(2):
                    if kd:
                        E(kd.pop(0))
        if d == 0 and WD_AT == "conv":
            wd_touch(60)
    assert not kd
    stamp(6)
    if CX == 6:
        E("    s_waitcnt vmcnt(0)")
        E("    s_endpgm")

    def fold(dst, e_, o_):
        for j in range(0, 16, 2):
            P2("add", dst + j, e_ + j, o_ + (j + 8) % 16, pk=PKC)

    def send(e_, o_, ke, ko):
        fold(80, e_, o_)
        for jq in range(4):
            E(f"    ds_write_b128 v50, v[{80+4*jq}:{80+4*jq+3}] offset:{XCH_OFF + 1024*jq}")
        fold(64, ke, ko)

    E("    s_cmp_eq_u32 s32, 0")
    E("    s_cbranch_scc1 conv_hw0")
    E("    s_nop 7")
    send(A0E, A0O, A1E, A1O)
    E("    s_branch conv_x")
    E("conv_hw0:")
    E("    s_nop 15")
    E("    s_nop 3")
    send(A1E, A1O, A0E, A0O)
    E("conv_x:")
    E("    s_waitcnt lgkmcnt(0)")
    E("    s_barrier")
    for jq in range(4):
        E(f"    ds_read_b128 v[{80+4*jq}:{80+4*jq+3}], v51 offset:{XCH_OFF + 1024*jq}")
    vm.q = ["pf", "pf"]
    for jq in range(4):
        y = 64 + 4 * jq
        E(f"    s_waitcnt lgkmcnt({3 if jq else 3})" if jq == 0 else f"    s_waitcnt lgkmcnt(3)")
        for e_ in (0, 2):
            P2("add", y + e_, y + e_, 80 + 4 * jq + e_, pk=PKC)
        for e_ in range(4):
            rnd(y + e_)
        for e_ in (0, 2):
            P2("add", y + e_, y + e_, KD + 4 * jq + e_, pk=PKC)
        E(f"    v_cvt_pk_bf16_f32 v{110+2*jq}, v{y}, v{y+1}")
        E(f"    v_cvt_pk_bf16_f32 v{111+2*jq}, v{y+2}, v{y+3}")
        E(f"    ds_write_b64 v6, v[{110+2*jq}:{111+2*jq}] offset:{16*jq}")
    E("    s_waitcnt lgkmcnt(0)")
    E("    ds_read_b128 v[104:107], v8")
    E("    ds_read_b128 v[108:111], v8 offset:1024")
    E("    s_waitcnt lgkmcnt(1)")
    E("    buffer_store_dwordx4 v[104:107], v7, s[24:27], s37 offen sc0 sc1")
    E("    s_waitcnt lgkmcnt(0)")
    E("    buffer_store_dwordx4 v[108:111], v7, s[24:27], s37 offen offset:1024 sc0 sc1")
    vm.issue("yst")
    vm.issue("yst")
    stamp(7, vm)
    E("    s_lshl_b32 s36, s32, 12")
    E("    s_lshl_b32 s37, s30, 3")
    E("    s_add_u32 s47, s36, s37")
    E(f"    s_add_u32 s47, s47, {FY_OFF}")
    E("    s_waitcnt vmcnt(0)")
    flag_store(vm, "s47")
    stamp(8)
    if RP == -3:
        E("    s_endpgm")
        return
    E("    s_cmp_lg_u32 s28, 0")
    E("    s_cbranch_scc1 k_done")
    if RP == -2:
        E("    v_mov_b32 v13, v246")
        E("    buffer_load_dwordx4 v[104:107], v13, s[12:15], s48 offen sc0 sc1")
        E("    buffer_load_dwordx4 v[108:111], v13, s[12:15], s43 offen sc0 sc1")
        E("    s_waitcnt vmcnt(0)")
        slow_stores()
        E("    s_waitcnt vmcnt(0)")
    flag_store(vm, "s49")
    E("    s_endpgm")


def gen_phase_c():
    vm = VM()
    vm.q = ["hst"] + (["stamp"] if DIAG else [])
    WT = 48
    XT = 232
    NT = 72
    ACC = 88
    HB0 = [152 + 8 * j for j in range(8)] + [64]
    NH = int(os.environ.get("NH", "9"))
    NK = 22
    YSLOT = 0
    RSL = 2
    global VL8
    VL8_saved = VL8
    VL8 = 15
    E("phase_c:")
    E("    v_lshrrev_b32 v3, 5, v1")
    E("    v_and_b32 v5, 15, v1")
    if MAP:
        E("    s_mov_b32 s30, s4")
    else:
        E("    s_lshl_b32 s30, s30, 1")
        E("    s_lshr_b32 s35, s31, 3")
        E("    s_add_u32 s30, s30, s35")
    E("    s_and_b32 s31, s33, 7")
    E("    s_and_b32 s32, s3, 1")
    E("    s_lshr_b32 s33, s3, 1")
    for i in range(NW0):
        if 1 <= i <= NWE:
            continue
        for f in wdma_ops(vm, i):
            f()
    E("    s_lshl_b32 s35, s30, 1")
    E("    s_add_u32 s35, s35, s32")
    E(f"    v_lshlrev_b32 v15, {3+FSH}, v1")
    E("    v_lshrrev_b32 v6, 2, v5")
    E("    v_lshl_add_u32 v6, v3, 3, v6")
    E("    v_lshlrev_b32 v11, 7, v6")
    E("    v_bfe_u32 v6, v1, 4, 1")
    E("    v_lshlrev_b32 v6, 5, v6")
    E("    v_and_b32 v7, 3, v5")
    E("    v_lshl_add_u32 v6, v7, 3, v6")
    E("    v_bfe_u32 v7, v1, 3, 1")
    E("    v_lshlrev_b32 v7, 6, v7")
    E("    v_xor_b32 v6, v6, v7")
    E("    v_add_u32 v11, v11, v6")
    E("    v_add_u32 v11, s37, v11")
    if OWN:
        E("    s_lshl_b32 s38, s33, 6")
        E("    v_xor_b32 v11, s38, v11")
    E("    v_xor_b32 v12, 64, v11")
    E(f"    v_add_u32 v17, {HI}, v11")
    E(f"    v_add_u32 v18, {HI}, v12")
    srd_off(20, 88, 89, WS_H, H_BYTES)
    srd_off(44, 88, 89, WS_YT, S * D * 2)
    srd(52, 84, 85, S * D * 2)
    E("    s_lshr_b32 s49, s30, 4")
    E("    s_lshl_b32 s49, s49, 12")
    E("    s_lshl_b32 s38, s31, 9")
    E("    s_add_u32 s49, s49, s38")
    E("    s_lshl_b32 s38, s33, 8")
    E("    s_add_u32 s49, s49, s38")
    E(f"    s_add_u32 s49, s49, {FY_OFF}")
    E("    v_lshrrev_b32 v0, 2, v1")
    E("    v_lshlrev_b32 v0, 12, v0")
    E("    v_and_b32 v7, 3, v1")
    E("    v_lshl_add_u32 v0, v7, 4, v0")
    E("    s_lshl_b32 s38, s31, 1")
    E("    s_add_u32 s38, s38, s33")
    E("    s_lshl_b32 s38, s38, 17")
    E("    s_lshl_b32 s48, s35, 6")
    E("    s_add_u32 s48, s48, s38")
    E("    v_lshrrev_b32 v7, 2, v5")
    E("    v_lshl_add_u32 v7, v3, 2, v7")
    E("    v_lshlrev_b32 v14, 6, v7")
    E("    v_bfe_u32 v7, v1, 4, 1")
    E("    v_lshl_add_u32 v14, v7, 5, v14")
    E("    v_and_b32 v7, 3, v5")
    E("    v_lshl_add_u32 v14, v7, 3, v14")
    E("    v_add_u32 v14, s37, v14")
    E(f"    s_mul_i32 s42, s30, {2*HB}")
    E("    s_lshl_b32 s38, s51, 10")
    E("    s_add_u32 s42, s42, s38")
    E(f"    s_add_u32 s43, s42, {HB}")
    E("    s_mov_b32 s29, s42")
    if OWN:
        E("    s_cmp_eq_u32 s32, 1")
        E("    s_cselect_b32 s42, s43, s42")
        E("    s_cselect_b32 s43, s29, s43")
    E("    s_lshl_b32 s36, s30, 8")
    E(f"    s_add_u32 s36, s36, {FH_OFF}")
    masks = []
    for lo, hi in (((0, 3), (4, 7), (8, 11), (11, 15)) if MAP == 2 else ((0, 3), (3, 7), (7, 10), (10, 15))):
        m16 = ((1 << (hi + 1)) - 1) & ~((1 << lo) - 1)
        masks.append(m16 | (m16 << 16))
    E(f"    s_mov_b32 s50, {masks[0]:#x}")
    for w in range(1, 4):
        E(f"    s_cmp_eq_u32 s3, {w}")
        E(f"    s_cselect_b32 s50, {masks[w]:#x}, s50")
    E("    s_mov_b32 s51, 0")
    E("    s_mul_i32 s38, s31, 44")
    E("    v_add_u32 v6, s38, v1")
    E("    v_cmp_le_u32 vcc, 176, v6")
    E("    v_subrev_u32 v7, 176, v6")
    E("    v_cndmask_b32 v6, v6, v7, vcc")
    E("    s_cmp_lt_u32 s3, 2")
    E("    s_cselect_b32 s38, 8, 0")
    E("    s_add_u32 s38, s38, 167")
    E("    v_min_u32 v6, s38, v6")
    E("    v_lshlrev_b32 v6, 7, v6")
    E(f"    v_mov_b32 v7, {HB}")
    E("    v_cndmask_b32 v7, 0, v7, vcc")
    E("    v_add_u32 v6, v6, v7")
    def xn_tile():
        T = ACC
        for d in range(8):
            E(f"    v_lshlrev_b32 v{T+2*d}, 16, v{XT+d}")
            E(f"    v_and_b32 v{T+2*d+1}, s40, v{XT+d}")
        for j in range(16):
            E(f"    v_add_f32 v{T+j}, v{T+j}, v{GR2}")
        for j in range(16):
            E(f"    v_cvt_pk_bf16_f32 v{T+j}, 0, v{T+j}")
        for j in range(16):
            E(f"    v_mul_f32 v{T+j}, v{T+j}, v{GR2+1}")
        for d in range(8):
            E(f"    v_cvt_pk_bf16_f32 v{NT+d}, v{T+2*d}, v{T+2*d+1}")

    if XNE:
        xn_tile()
    vm.wait("hst")
    flag_store(vm, "s39")
    if GP3AT == 0:
        E(f"    s_setprio {GPRIO3}")
    stamp(10, vm)
    for i in range(NW0, 10):
        for f in wdma_ops(vm, i):
            f()
    if not XNE:
        xn_tile()
    for i in range(NPRE):
        vm.wait(("w", i))
        wread(WREG[i], i)
    for i in range(NPRE):
        E(f"    s_waitcnt lgkmcnt({min(15, 4*(NPRE-1-i))})")
        for f in wdma_ops(vm, 10 + i):
            f()
    if GP3AT == 1:
        E(f"    s_setprio {GPRIO3}")
    stamp(11, vm)
    if PP:
        poll2(vm, "s36", "s[50:51]")
    else:
        poll(vm, "s36", "s[50:51]")
    stampval(21, "s92", vm)
    stamp(12, vm)
    if GP4 == 0:
        E("    s_setprio 3")

    hreg = {}

    def hload(i, r):
        hreg[i] = r
        if i % 4 == 0 and i:
            E("    s_add_u32 s42, s42, 4096")
            E("    s_add_u32 s43, s43, 4096")
        off = (i % 4) * 1024
        if i == NK - 1:
            assert off == 1024
            E("    s_cmp_lt_u32 s3, 2")
            E("    s_cselect_b32 s38, 1024, 0")
            E("    s_add_u32 s42, s42, s38")
            E("    s_add_u32 s43, s43, s38")
            off = 0
        for e_ in range(2):
            E(f"    buffer_load_dwordx4 v[{r+4*e_}:{r+4*e_+3}], v8, s[20:23], s{42+e_} offen offset:{off}")
            vm.issue(("h", i))

    if int(os.environ.get("HT", "1")):
        E("    s_mov_b32 exec_hi, 0xfff")
        E("    buffer_load_dword v7, v6, s[20:23], s29 offen")
        E("    s_mov_b64 exec, -1")
        vm.issue("pf")
    for i in range(NH):
        hload(i, HB0[i])
    hn = NH

    def wsrc(i):
        return WREG[i] if i < NPRE else WT + 8 * (i % 2)

    def y_dma():
        for j in range(2):
            E(f"    s_add_u32 s38, s48, {16*4096*j}")
            E(f"    s_add_u32 m0, s37, {YSLOT*8192 + 1024*j}")
            E("    s_nop 0")
            E("    buffer_load_dwordx4 v0, s[44:47], s38 offen lds")

    FYC = int(os.environ.get("FYC", "16"))
    for i in range(NK):
        if i == NK - 1:
            E("    s_cmp_ge_u32 s3, 2")
            E("    s_cbranch_scc1 pc_skip")
        vm.wait(("h", i))
        if GP4 == i + 1:
            E("    s_setprio 3")
        if i in (0, 4, 8):
            stamp({0: 2, 4: 29, 8: 30}[i], vm)
        if i >= NPRE:
            E("    s_waitcnt lgkmcnt(0)")
        if NPRE <= i + 1 < NK:
            vm.wait(("w", i + 1))
            wread(WT + 8 * ((i + 1) % 2), wslot(i + 1))
        h = hreg[i]
        w = wsrc(i)
        for wd in range(2):
            for wm in range(2):
                a = ACC + 16 * (2 * wd + wm)
                c = "0" if i == 0 else f"v[{a}:{a+15}]"
                E(f"    v_mfma_f32_32x32x16_bf16 v[{a}:{a+15}], v[{w+4*wd}:{w+4*wd+3}], v[{h+4*wm}:{h+4*wm+3}], {c}")
        for r in [h] + ([w] if i < NPRE else []):
            if hn < NK:
                hload(hn, r)
                hn += 1
        if NPRE <= i < 10:
            for f in wdma_ops(vm, i + 10):
                f()
        if i in (11, 12):
            for f in wdma_ops(vm, i + 9):
                f()
        if i == FYI:
            E(f"    s_lshl_b32 s93, s49, {FSH}")
            E("    s_mov_b32 exec_hi, 0")
            E(f"    buffer_load_dwordx2 v[{PA}:{PA+1}], v{VL8}, s[56:59], s93 offen sc0 sc1")
            E("    s_mov_b64 exec, -1")
            vm.issue("fy")
        if i == FYC:
            vm.wait("fy")
            E("    s_mov_b32 exec_hi, 0")
            E(f"    v_cmp_ne_u64 vcc, s[90:91], v[{PA}:{PA+1}]")
            E("    s_mov_b64 exec, -1")
            E("    s_cmp_eq_u64 vcc, 0")
            E("    s_cselect_b32 s28, 1, 0")
            E("    s_cbranch_scc0 fy_no")
            y_dma()
            E("fy_no:")
            stamp(14, vm)
    E("pc_skip:")
    stamp(13)
    E("    s_waitcnt vmcnt(0) lgkmcnt(0)")
    YR = 32
    PS = 152
    RS = 216
    TT = 64
    for a in range(1, 4):
        E(f"    s_xor_b32 s36, s3, {a}")
        E("    s_lshl_b32 s38, s36, 14")
        E("    s_add_u32 s38, s38, s37")
        E(f"    v_add_u32 v{8+a}, s38, v8")
        E("    s_lshl_b32 s36, s36, 11")
        E("    s_lshl_b32 s38, s3, 14")
        E("    s_add_u32 s38, s38, s36")
        E(f"    v_add_u32 v{15+a}, s38, v8")

    def y_read():
        for q in range(4):
            E(f"    ds_read_b64_tr_b16 v[{YR+2*q}:{YR+2*q+1}], v14 offset:{YSLOT*8192 + q*512}")

    def acc_out(fill):
        per = (len(fill) + 10) // 11
        for a in range(1, 4):
            for jq in range(4):
                r = ACC + 16 * a + 4 * jq
                E(f"    ds_write_b128 v{8+a}, v[{r}:{r+3}] offset:{(RSL + jq//2)*8192 + (jq%2)*1024}")
                if fill and a == 1 and jq == 0:
                    E("    s_waitcnt lgkmcnt(1)")
                for _ in range(per):
                    if fill:
                        E(fill.pop(0))
        assert not fill
        E("    s_waitcnt lgkmcnt(0)")
        E("    s_barrier")
        for a in range(1, 4):
            for jq in range(4):
                r = PS + 16 * a + 4 * jq
                E(f"    ds_read_b128 v[{r}:{r+3}], v{15+a} offset:{(RSL + jq//2)*8192 + (jq%2)*1024}")

    def a_term():
        o = []
        for q in range(4):
            t = TT
            xs = [RS + 4 * q + e_ for e_ in range(4)]
            ns = [t + e_ for e_ in range(4)]
            ys = [t + 4 + e_ for e_ in range(4)]
            for (dst, src) in ((xs, XT + 2 * q), (ns, NT + 2 * q), (ys, YR + 2 * q)):
                o.append(f"    v_lshlrev_b32 v{dst[0]}, 16, v{src}")
                o.append(f"    v_and_b32 v{dst[1]}, s40, v{src}")
                o.append(f"    v_lshlrev_b32 v{dst[2]}, 16, v{src+1}")
                o.append(f"    v_and_b32 v{dst[3]}, s40, v{src+1}")
            for e_ in (0, 2):
                o.append(f"    v_pk_mul_f32 v[{ns[e_]}:{ns[e_]+1}], v[{ns[e_]}:{ns[e_]+1}], v[{ys[e_]}:{ys[e_]+1}]")
            for e_ in range(4):
                o.append(f"    v_cvt_pk_bf16_f32 v{ns[e_]}, 0, v{ns[e_]}")
            for e_ in (0, 2):
                o.append(f"    v_pk_add_f32 v[{xs[e_]}:{xs[e_]+1}], v[{xs[e_]}:{xs[e_]+1}], v[{ns[e_]}:{ns[e_]+1}]")
            for e_ in range(4):
                o.append(f"    v_cvt_pk_bf16_f32 v{xs[e_]}, 0, v{xs[e_]}")
        return o

    def b_sum():
        E("    s_waitcnt lgkmcnt(8)")
        for j in range(0, 16, 2):
            E(f"    v_pk_add_f32 v[{PS+j}:{PS+j+1}], v[{ACC+j}:{ACC+j+1}], v[{PS+16+j}:{PS+16+j+1}]")
        E("    s_waitcnt lgkmcnt(0)")
        for j in range(0, 16, 2):
            E(f"    v_pk_add_f32 v[{PS+32+j}:{PS+32+j+1}], v[{PS+32+j}:{PS+32+j+1}], v[{PS+48+j}:{PS+48+j+1}]")
        for j in range(0, 16, 2):
            E(f"    v_pk_add_f32 v[{PS+j}:{PS+j+1}], v[{PS+j}:{PS+j+1}], v[{PS+32+j}:{PS+32+j+1}]")
        for j in range(16):
            E(f"    v_cvt_pk_bf16_f32 v{PS+j}, 0, v{PS+j}")

    E("    s_cmp_eq_u32 s28, 0")
    E("    s_cbranch_scc1 fin_slow")
    y_read()
    acc_out(a_term())
    b_sum()
    E("    s_branch fin_out")
    E("fin_slow:")
    acc_out([])
    b_sum()
    if 'g' not in os.environ.get('XP', '') and not CX:
        poll(vm, "s49", "0xffffffff")
    stamp(15)
    y_dma()
    E("    s_waitcnt vmcnt(0)")
    y_read()
    E("    s_waitcnt lgkmcnt(0)")
    for t in a_term():
        E(t)
    E("fin_out:")
    for jq in range(4):
        a = PS + 4 * jq
        xs = [RS + 4 * jq + e_ for e_ in range(4)]
        for e_ in (0, 2):
            E(f"    v_pk_add_f32 v[{xs[e_]}:{xs[e_]+1}], v[{xs[e_]}:{xs[e_]+1}], v[{a+e_}:{a+e_+1}]")
        o = TT + 2 * jq
        E(f"    v_cvt_pk_bf16_f32 v{o}, v{xs[0]}, v{xs[1]}")
        E(f"    v_cvt_pk_bf16_f32 v{o+1}, v{xs[2]}, v{xs[3]}")
        E(f"    buffer_store_dwordx2 v[{o}:{o+1}], v23, s[52:55], 0 offen offset:{16*jq}")
    if DIAG or LITE:
        E("    s_waitcnt vmcnt(0)")
    stamp(31)
    E("    s_endpgm")
    VL8 = VL8_saved


def gen_kernel():
    E(f".globl {KNAME}")
    E(".p2align 8")
    E(f".type {KNAME},@function")
    E(f"{KNAME}:")
    E("    s_cmp_ge_u32 s2, 512")
    E("    s_cbranch_scc1 k_done")
    E("    s_load_dwordx16 s[64:79], s[0:1], 0")
    E("    s_load_dwordx8 s[80:87], s[0:1], 64")
    E("    s_load_dwordx2 s[88:89], s[0:1], 96")
    E("    s_memrealtime s[90:91]")
    E("    s_mov_b32 s40, 0xffff0000")
    E("    v_and_b32 v1, 63, v0")
    E("    v_lshrrev_b32 v2, 6, v0")
    E(f"    v_lshlrev_b32 v{VL8}, {3+FSH}, v1")
    E("    v_readfirstlane_b32 s3, v2")
    E("    s_waitcnt lgkmcnt(0)")
    stamp_init()
    stamp(0)
    srd_off(56, 88, 89, WS_FLAG, FLAG_BYTES)
    srd(60, 86, 87, 256)
    E("    s_cmp_lt_u32 s2, 256" if CFIRST else "    s_cmp_ge_u32 s2, 256")
    E("    s_cbranch_scc1 c_type")
    gen_gtype()
    gen_ctype()
    E("k_done:")
    E("    s_endpgm")


def main():
    hdr = open("parallel_sum__ssm_conv_h3__glu_gated_bilinear__prompt.s.ref").read().splitlines()
    for l in hdr:
        if l.startswith("; Override") or l.startswith("; grid=") or l.startswith("; @launch"):
            continue
        if not l.startswith(";"):
            break
        E(l)
    E(f"; @launch grid=(512,1,1) block=(256,1,1) lds={LDS_BYTES}")
    E('.amdgcn_target "amdgcn-amd-amdhsa--gfx950"')
    E(".text")
    gen_kernel()
    E('.section .rodata,"a"')
    E(".p2align 6")
    E(f".amdhsa_kernel {KNAME}")
    E("  .amdhsa_next_free_vgpr 256")
    E("  .amdhsa_next_free_sgpr 102")
    E("  .amdhsa_accum_offset 256")
    E("  .amdhsa_group_segment_fixed_size 0")
    E("  .amdhsa_kernarg_size 104")
    E("  .amdhsa_user_sgpr_count 2")
    E("  .amdhsa_user_sgpr_kernarg_segment_ptr 1")
    E("  .amdhsa_system_sgpr_workgroup_id_x 1")
    E(".end_amdhsa_kernel")
    path = sys.argv[1] if len(sys.argv) > 1 else "fused.s"
    open(path, "w").write("\n".join(out) + "\n")
    print("wrote", path, len(out), "lines")


main()
```

```python
import sys, os

S, D, F = 2048, 512, 1376
WS_XN = 0x000000
WS_KVR = 0x200000
WS_H = 0x400000
WS_YT = 0xA00000
WS_FLAG = 0xC00000
WS_KVA = 0xE00000
FX_OFF = 0x0000
FK_OFF = 0x2000
FH_OFF = 0x4000
FY_OFF = 0x6000
FSH = int(os.environ.get("FSH", "4"))
FG_OFF = 0x8000
FLAG_BYTES = 0x9000 << FSH
HS = int(os.environ.get("HS", "10"))
HB = 86 * 1024
H_BYTES = 64 * HB
KNAME = "parallel_sum__ssm_conv_h3__glu_gated_bilinear__prompt_kernel"
POLL_LIMIT = 200000

out = []


def E(s=""):
    out.append(s)


class VM:
    def __init__(self):
        self.q = []

    def issue(self, tag):
        self.q.append(tag)

    def wait(self, tag):
        idx = -1
        for i, t in enumerate(self.q):
            if t == tag:
                idx = i
        if idx < 0:
            return
        n = len(self.q) - 1 - idx
        assert n <= 63, n
        E(f"    s_waitcnt vmcnt({n})")
        self.q = self.q[idx + 1:]

    def wait_all(self):
        E("    s_waitcnt vmcnt(0)")
        self.q = []


DIAG = len(sys.argv) > 2 and sys.argv[2] == "diag"
LITE = len(sys.argv) > 2 and sys.argv[2] == "lite"
STAMP_WS = 0x2000000


def stamp_init():
    if not (DIAG or LITE):
        return
    E(f"    s_add_u32 s96, s88, {STAMP_WS}")
    E("    s_addc_u32 s97, s89, 0")
    E("    s_and_b32 s97, s97, 0xffff")
    E("    s_mov_b32 s98, 0x80000")
    E("    s_mov_b32 s99, 0x00020000")
    E("    s_lshl_b32 s100, s2, 2")
    E("    s_add_u32 s100, s100, s3")
    E("    s_lshl_b32 s100, s100, 7")
    E("    v_mov_b32 v254, s100")


def stamp(slot, vm=None):
    if not (DIAG or (LITE and (slot in (0, 31) or (slot == 8 and vm is None)))):
        return
    E("    s_waitcnt lgkmcnt(0)")
    E("    s_memrealtime s[100:101]")
    E("    s_waitcnt lgkmcnt(0)")
    E("    v_mov_b32 v255, s100")
    E("    s_mov_b64 s[94:95], exec")
    E("    s_mov_b64 exec, 1")
    E(f"    buffer_store_dword v255, v254, s[96:99], 0 offen offset:{4*slot}")
    E("    s_mov_b64 exec, s[94:95]")
    if vm is not None:
        vm.issue("stamp")


def stampclk(slot, vm=None):
    if not DIAG:
        return
    E("    s_waitcnt lgkmcnt(0)")
    E("    s_memtime s[100:101]")
    E("    s_waitcnt lgkmcnt(0)")
    stampval(slot, "s100", vm)


def stampval(slot, sg, vm=None):
    if not DIAG:
        return
    E(f"    v_mov_b32 v255, {sg}")
    E("    s_mov_b64 s[94:95], exec")
    E("    s_mov_b64 exec, 1")
    E(f"    buffer_store_dword v255, v254, s[96:99], 0 offen offset:{4*slot}")
    E("    s_mov_b64 exec, s[94:95]")
    if vm is not None:
        vm.issue("stamp")


def srd(dst, lo, hi, nbytes):
    E(f"    s_mov_b32 s{dst}, s{lo}")
    E(f"    s_and_b32 s{dst+1}, s{hi}, 0xffff")
    E(f"    s_mov_b32 s{dst+2}, {nbytes}")
    E(f"    s_mov_b32 s{dst+3}, 0x00020000")


def srd_off(dst, lo, hi, off, nbytes):
    E(f"    s_add_u32 s{dst}, s{lo}, {off}")
    E(f"    s_addc_u32 s{dst+1}, s{hi}, 0")
    E(f"    s_and_b32 s{dst+1}, s{dst+1}, 0xffff")
    E(f"    s_mov_b32 s{dst+2}, {nbytes}")
    E(f"    s_mov_b32 s{dst+3}, 0x00020000")


def wave_reduce_add(v, t):
    E("    s_nop 1")
    E(f"    v_add_f32_dpp v{t}, v{v}, v{v} quad_perm:[1,0,3,2] row_mask:0xf bank_mask:0xf")
    E("    s_nop 1")
    E(f"    v_add_f32_dpp v{v}, v{t}, v{t} quad_perm:[2,3,0,1] row_mask:0xf bank_mask:0xf")
    E("    s_nop 1")
    E(f"    v_add_f32_dpp v{t}, v{v}, v{v} row_half_mirror row_mask:0xf bank_mask:0xf")
    E("    s_nop 1")
    E(f"    v_add_f32_dpp v{v}, v{t}, v{t} row_mirror row_mask:0xf bank_mask:0xf")
    E(f"    v_mov_b32 v{t}, v{v}")
    E("    s_nop 1")
    E(f"    v_permlane16_swap_b32 v{v}, v{t}")
    E("    s_nop 1")
    E(f"    v_add_f32 v{v}, v{v}, v{t}")
    E(f"    v_mov_b32 v{t}, v{v}")
    E("    s_nop 1")
    E(f"    v_permlane32_swap_b32 v{v}, v{t}")
    E("    s_nop 1")
    E(f"    v_add_f32 v{v}, v{v}, v{t}")


def round_pair(a, b, t, mask_sgpr):
    E(f"    v_cvt_pk_bf16_f32 v{t}, v{a}, v{b}")
    E(f"    v_lshlrev_b32 v{a}, 16, v{t}")
    E(f"    v_and_b32 v{b}, s{mask_sgpr}, v{t}")


PA, PB, TK, VL8 = 248, 250, 252, 247
_lbl = [0]


def token_issue(vm):
    E(f"    buffer_load_dwordx2 v[{TK}:{TK+1}], off, s[60:63], 0")
    vm.issue("tok")


def token_get(vm):
    _lbl[0] += 1
    n = _lbl[0]
    vm.wait("tok")
    E(f"    s_mov_b32 s92, {POLL_LIMIT}")
    E(f"tok_l{n}:")
    E(f"    v_readfirstlane_b32 s90, v{TK}")
    E(f"    v_readfirstlane_b32 s91, v{TK+1}")
    E("    s_cmp_lg_u32 s90, 0")
    E(f"    s_cbranch_scc1 tok_d{n}")
    E(f"    buffer_load_dwordx2 v[{TK}:{TK+1}], off, s[60:63], 0 sc0 sc1")
    E("    s_waitcnt vmcnt(0)")
    E("    s_sub_u32 s92, s92, 1")
    E("    s_cmp_lg_u32 s92, 0")
    E(f"    s_cbranch_scc1 tok_l{n}")
    E(f"tok_d{n}:")


def flag_store(vm, soff):
    E(f"    s_lshl_b32 s93, {soff}, {FSH}")
    E("    s_mov_b64 exec, 1")
    E(f"    buffer_store_dwordx2 v[{TK}:{TK+1}], off, s[56:59], s93 sc0 sc1")
    E("    s_mov_b64 exec, -1")
    vm.issue("flag")


POLL_SLEEP = int(os.environ.get("PS", "4"))


def poll(vm, soff, mask, gap=6):
    _lbl[0] += 1
    n = _lbl[0]
    if mask == "0xffffffff":
        E("    s_mov_b32 exec_hi, 0")
    else:
        E(f"    s_mov_b64 exec, {mask}")
    E(f"    s_mov_b32 s92, {POLL_LIMIT}")
    E(f"    s_lshl_b32 s93, {soff}, {FSH}")
    E(f"poll_l{n}:")
    E(f"    buffer_load_dwordx2 v[{PA}:{PA+1}], v{VL8}, s[56:59], s93 offen sc0 sc1")
    E("    s_waitcnt vmcnt(0)")
    E(f"    v_cmp_ne_u64 vcc, s[90:91], v[{PA}:{PA+1}]")
    E("    s_cmp_eq_u64 vcc, 0")
    E(f"    s_cbranch_scc1 poll_d{n}")
    E("    s_mov_b64 exec, vcc")
    E(f"    s_sleep {POLL_SLEEP}")
    E("    s_sub_u32 s92, s92, 1")
    E("    s_cmp_lg_u32 s92, 0")
    E(f"    s_cbranch_scc1 poll_l{n}")
    E(f"poll_d{n}:")
    E("    s_mov_b64 exec, -1")
    vm.q = []


PP = int(os.environ.get("PP", "0"))
PPS = int(os.environ.get("PPS", "2"))


def poll2(vm, soff, mask):
    _lbl[0] += 1
    n = _lbl[0]
    E(f"    s_mov_b64 exec, {mask}")
    E(f"    s_mov_b32 s92, {POLL_LIMIT}")
    E(f"    s_lshl_b32 s93, {soff}, {FSH}")
    E(f"    buffer_load_dwordx2 v[{PA}:{PA+1}], v{VL8}, s[56:59], s93 offen sc0 sc1")
    E(f"    s_sleep {2*PPS}")
    E(f"poll_l{n}:")
    for a, b in ((PA, PB), (PB, PA)):
        E(f"    buffer_load_dwordx2 v[{b}:{b+1}], v{VL8}, s[56:59], s93 offen sc0 sc1")
        E("    s_waitcnt vmcnt(1)")
        E(f"    v_cmp_ne_u64 vcc, s[90:91], v[{a}:{a+1}]")
        E("    s_cmp_eq_u64 vcc, 0")
        E(f"    s_cbranch_scc1 poll_d{n}")
        E("    s_mov_b64 exec, vcc")
        if PPS:
            E(f"    s_sleep {PPS}")
    E("    s_sub_u32 s92, s92, 1")
    E("    s_cmp_lg_u32 s92, 0")
    E(f"    s_cbranch_scc1 poll_l{n}")
    E(f"poll_d{n}:")
    E("    s_mov_b64 exec, -1")
    vm.q = ["pl"]


TG = int(os.environ.get("TG", "128"))


def w_touch(vm, lo, hi, sr, vt):
    srd(44, lo, hi, D * F * 2)
    E(f"    s_lshl_b32 s38, {sr}, 2")
    E("    s_add_u32 s38, s38, s3")
    E("    s_mul_i32 s38, s38, 4*2752")
    sh = 4 if TG == 128 else 5
    E(f"    v_lshrrev_b32 v{vt}, {sh}, v1")
    E(f"    v_mul_u32_u24 v{vt}, 2752, v{vt}")
    E(f"    v_and_b32 v{vt+1}, {(1 << sh) - 1}, v1")
    E(f"    v_min_u32 v{vt+1}, {12 if TG == 128 else 24}, v{vt+1}")
    E(f"    v_lshlrev_b32 v{vt+1}, {7 if TG == 128 else 6}, v{vt+1}")
    E("    s_and_b32 s93, s2, 1")
    E("    s_mul_i32 s93, s93, 1536")
    E(f"    v_add_u32 v{vt+1}, s93, v{vt+1}")
    E(f"    v_min_u32 v{vt+1}, 2750, v{vt+1}")
    E(f"    v_add_u32 v{vt}, v{vt}, v{vt+1}")
    E(f"    buffer_load_ushort v{vt+1}, v{vt}, s[44:47], s38 offen")
    vm.issue("pf")
    if TG == 64:
        E("    s_add_u32 s38, s38, 2*2752")
        E(f"    buffer_load_ushort v{vt+1}, v{vt}, s[44:47], s38 offen")
        vm.issue("pf")


WS_ST = 0x000000
S_ONE = 6
GPRIO = int(os.environ.get("GPRIO", "3"))
GPRIO2 = int(os.environ.get("GPRIO2", "3"))
GPRIO3 = int(os.environ.get("GPRIO3", "0"))
GP3AT = int(os.environ.get("GP3AT", "1"))
XK = int(os.environ.get("XK", "20"))
NW0 = int(os.environ.get("NW0", "10"))
XNE = int(os.environ.get("XNE", "0"))
CE = int(os.environ.get("CE", "0"))
P1W = int(os.environ.get("P1W", "1"))
PS0 = int(os.environ.get("PS0", "0"))
KSC = os.environ.get("KSC", "sc0 sc1")
XP = os.environ.get("XP", "")
TLB = int(os.environ.get("TLB", "0"))
SIL = int(os.environ.get("SIL", "0"))
CDLY = int(os.environ.get("CDLY", "0"))
OWN = 1
CW = int(os.environ.get("CW", "0"))
NWE = int(os.environ.get("NWE", "6"))
REV = int(os.environ.get("REV", "0"))
NE = int(os.environ.get("NE", "0"))
EAT = int(os.environ.get("EAT", "0"))
KST = os.environ.get("KST", "")
WB = int(os.environ.get("WB", "0"))
GP4 = int(os.environ.get("GP4", "-1"))
CPRIO = int(os.environ.get("CPRIO", "1"))
KFL = int(os.environ.get("KFL", "0"))
ROT = int(os.environ.get("ROT", "4"))
CPRIO2 = int(os.environ.get("CPRIO2", "1"))
TOUCH = os.environ.get("TOUCH", "none")
CFIRST = int(os.environ.get("CFIRST", "0"))
WD_AT = os.environ.get("WD_AT", "g")
WDK = int(os.environ.get("WDK", "25"))
NBI = int(os.environ.get("NBI", "9"))
PUBK = int(os.environ.get("PUBK", "6"))
GRC = int(os.environ.get("GRC", "30"))
GRK = int(os.environ.get("GRK", "22"))
FYI = int(os.environ.get("FYI", "10"))
WLATE = 1
WDK2 = int(os.environ.get("WDK2", "22"))
CX = int(os.environ.get("CX", "0"))
RP = int(os.environ.get("RP", "-3"))
MAP = int(os.environ.get("MAP", "2"))
HELP = int(os.environ.get("HELP", "0"))
PKC = int(os.environ.get("PKC", "0"))
HI = 40960
GR1, XA, WA, WDV, XDV, DDV, SEL, GR2 = 4, 9, 13, 17, 20, 22, 24, 28
WF, XF, GACC, CS, PUB = 32, 56, 120, 216, 228
WREG = [216, 224, 80, 240, 32, 40, 24]
NPRE = int(os.environ.get("NPRE", "6"))
XROW = 6


def la(reg, off):
    if off >= HI:
        return f"v{reg+6} offset:{off-HI}"
    return f"v{reg} offset:{off}"


def wslot(i):
    if i < 10:
        return i
    if i < 20:
        return i - 10
    return i - 19


def wdma_ops(vm, i):
    ops = []
    for j in range(2):
        def f(j=j):
            E(f"    s_add_u32 s38, s41, {(16*(21-i if REV else i) + 8*j)*1024}")
            E(f"    s_add_u32 m0, s37, {wslot(i)*8192 + j*1024}")
            E("    s_nop 0")
            E(f"    buffer_load_dwordx4 v{DDV}, s[8:11], s38 offen lds")
            vm.issue(("w", i))
        ops.append(f)
    return ops


def wread(dst, slot):
    for wd in range(2):
        r = dst + 4 * wd
        E(f"    ds_read_b64_tr_b16 v[{r}:{r+1}], {la(11+wd, slot*8192)}")
        E(f"    ds_read_b64_tr_b16 v[{r+2}:{r+3}], {la(11+wd, slot*8192+512)}")


def gen_gtype_path(nt, vm0):
    vm = VM()
    vm.q = list(vm0.q)
    ACC = GACC
    P = 64 * nt
    CH = 16 * P
    STG = 4 * CH
    WB0 = 32768
    NB = (LDS_BYTES - WB0) // STG
    n = 2 * nt

    def w_dma(st):
        ops = []
        for i in range(nt):
            def f(i=i):
                if i == 0:
                    if st:
                        E(f"    s_add_u32 s48, s48, {32*2752}")
                        E("    s_cmp_ge_u32 s48, s49")
                        E(f"    s_cselect_b32 s38, {16*32*2752}, 0")
                        E("    s_sub_u32 s48, s48, s38")
                    E(f"    s_add_u32 m0, s43, {WB0 + (st % NB)*STG}")
                    E("    s_nop 0")
                E(f"    buffer_load_dwordx4 v{WDV+i}, s[52:55], s48 offen offset:{1024*i} lds")
                vm.issue(("W", st))
            ops.append(f)
        return ops

    def x_dma(p):
        ops = []
        for a in range(4):
            def f(a=a):
                if a == 0:
                    if p:
                        E("    s_add_u32 s32, s32, 128")
                        E("    s_bitset0_b32 s32, 10")
                    E(f"    s_add_u32 m0, s7, {(p % 2)*16384}")
                    E("    s_nop 0")
                    so = "s32"
                else:
                    E(f"    s_add_u32 s38, s32, {a*(8192-1024)}")
                    so = "s38"
                E(f"    buffer_load_dwordx4 v{XDV + a % 2}, s[16:19], {so} offen offset:{1024*a} lds")
                vm.issue(("X", p))
            ops.append(f)
        return ops

    def run(lst, cnt=999):
        for _ in range(min(cnt, len(lst))):
            t = lst.pop(0)
            if isinstance(t, str):
                if "buffer_store" in t:
                    vm.wait("xt")
                E(t)
                if "buffer_store" in t:
                    vm.issue("hst")
            else:
                t()

    run(x_dma(0))
    E(f"    s_mul_i32 s43, s3, {CH}")
    E("    s_lshr_b32 s5, s3, 1")
    E("    s_cmp_eq_u32 s5, 1")
    E("    s_cselect_b32 s52, s80, s78")
    E("    s_cselect_b32 s53, s81, s79")
    E("    s_and_b32 s53, s53, 0xffff")
    E(f"    s_mov_b32 s54, {D*F*2}")
    E("    s_mov_b32 s55, 0x00020000")
    E("    s_and_b32 s49, s3, 1")
    E(f"    s_mul_i32 s38, s49, {nt*1024}")
    E("    s_add_u32 s42, s42, s38")
    E("    s_mul_i32 s48, s49, 16*2752")
    E("    s_add_u32 s48, s48, s36")
    E("    s_movk_i32 s49, 2752")
    E("    s_lshl_b32 s34, s5, 1")
    for i in range(nt):
        E(f"    v_add_u32 v14, {64*i}, v1")
        if nt == 3:
            E("    v_mul_u32_u24 v15, 0x5556, v14")
            E("    v_lshrrev_b32 v15, 18, v15")
            E("    v_mul_u32_u24 v13, 12, v15")
            E("    v_sub_u32 v14, v14, v13")
        else:
            E("    v_lshrrev_b32 v15, 3, v14")
            E("    v_and_b32 v14, 7, v14")
            E("    v_bfe_u32 v13, v1, 4, 1")
            E("    v_lshlrev_b32 v13, 2, v13")
            E("    v_xor_b32 v14, v14, v13")
        E("    v_xor_b32 v14, s34, v14")
        E("    v_mul_lo_u32 v15, v15, s49")
        E(f"    v_lshl_add_u32 v{WDV+i}, v14, 4, v15")
        if i:
            E(f"    v_subrev_u32 v{WDV+i}, {1024*i}, v{WDV+i}")
    E(f"    s_add_u32 s49, s48, {16*32*2752}")
    E(f"    s_mul_i32 s38, s29, {32*2752}")
    E("    s_add_u32 s48, s48, s38")
    run(w_dma(0))
    run(w_dma(1))
    run(x_dma(1))
    for st in range(2, NB):
        run(w_dma(st))
    E("    v_lshrrev_b32 v3, 5, v1")
    E("    v_and_b32 v2, 15, v1")
    E("    v_lshrrev_b32 v4, 2, v2")
    E("    v_lshl_add_u32 v4, v3, 3, v4")
    E(f"    v_mul_u32_u24 v4, {P}, v4")
    E("    v_bfe_u32 v5, v1, 4, 1")
    E(f"    v_mul_u32_u24 v6, {2*CH}, v5")
    E("    v_add_u32 v4, v4, v6")
    E("    v_and_b32 v2, 3, v2")
    E("    v_lshl_add_u32 v4, v2, 3, v4")
    E("    v_lshlrev_b32 v5, 5, v5")
    if nt == 2:
        E("    v_bfe_u32 v2, v1, 3, 1")
        E("    v_lshlrev_b32 v2, 6, v2")
        E("    v_xor_b32 v5, v5, v2")
    E("    s_and_b32 s34, s3, 1")
    E(f"    s_mul_i32 s34, s34, {32*nt}")
    E(f"    s_mul_i32 s38, s5, {CH}")
    E(f"    s_add_u32 s38, s38, {WB0}")
    E("    v_add_u32 v4, s38, v4")
    for t in range(2):
        E(f"    s_add_u32 s38, s34, {32*t}")
        E("    v_xor_b32 v6, s38, v5")
        E(f"    v_add_u32 v{WA+t}, v4, v6")
    E(f"    s_mul_i32 s38, s5, {2*CH}")
    E(f"    s_sub_u32 s38, {CH}, s38")
    for t in range(2):
        E(f"    v_add_u32 v{WA+2+t}, s38, v{WA+t}")
    E("    v_and_b32 v4, 31, v1")
    E("    v_bfe_u32 v5, v1, 1, 3")
    E("    v_xor_b32 v5, v5, v3")
    E("    v_lshlrev_b32 v5, 4, v5")
    E("    v_lshl_add_u32 v5, v4, 7, v5")
    E("    s_lshl_b32 s38, s5, 5")
    E("    v_xor_b32 v5, s38, v5")
    E("    s_lshl_b32 s38, s5, 13")
    E(f"    v_add_u32 v{XA}, s38, v5")
    for j in range(1, 4):
        E(f"    v_xor_b32 v{XA+j}, {32*j}, v{XA}")
    E("    v_lshrrev_b32 v2, 2, v1")
    E("    v_lshrrev_b32 v3, 4, v1")
    E("    v_xor_b32 v2, v2, v3")
    E("    v_and_b32 v2, 1, v2")
    E("    v_cmp_eq_u32 vcc, 0, v2")
    E(f"    v_mov_b32 v3, s{S_ONE}")
    E("    s_nop 0")
    for j in range(4):
        E(f"    v_cndmask_b32 v{SEL+j}, 0, v3, vcc")
    E("    v_and_b32 v2, 31, v1")
    E("    v_lshrrev_b32 v3, 5, v1")
    E("    v_lshlrev_b32 v23, 10, v2")
    E("    v_lshl_add_u32 v23, v3, 3, v23")
    E("    s_lshl_b32 s38, s4, 1")
    E("    s_and_b32 s34, s3, 1")
    E("    s_add_u32 s38, s38, s34")
    E("    s_lshl_b32 s38, s38, 15")
    E("    s_and_b32 s34, s33, 7")
    E("    s_lshl_b32 s34, s34, 7")
    E("    s_add_u32 s38, s38, s34")
    E("    s_lshl_b32 s34, s5, 6")
    E("    s_add_u32 s38, s38, s34")
    E("    v_add_u32 v23, s38, v23")
    R, SA = ACC, 240
    for j in range(4):
        E(f"    v_mov_b32 v{SA+j}, 0")
    vm.wait("st")
    stamp(1, vm)
    for d in range(8):
        E(f"    v_dot2c_f32_bf16 v{SA+d%2}, s{S_ONE}, v{R+d}")
        E(f"    v_dot2c_f32_bf16 v{SA+2+d%2}, v{R+d}, v{R+d}")
    so = [["    s_nop 3"]]
    a_, b_ = SA + 4, SA + 6
    so[0] += [f"    v_add_f32 v{a_+j}, v{SA+2*j}, v{SA+2*j+1}" for j in range(2)]
    for ctl in ("quad_perm:[1,0,3,2]", "quad_perm:[2,3,0,1]", "row_half_mirror", "row_mirror"):
        so.append(["    s_nop 1"] + [f"    v_add_f32_dpp v{b_+j}, v{a_+j}, v{a_+j} {ctl} row_mask:0xf bank_mask:0xf" for j in range(2)])
        a_, b_ = b_, a_
    so.append([f"    v_mov_b32 v{b_+j}, v{a_+j}" for j in range(2)])
    so.append(["    s_nop 1"] + [f"    v_permlane16_swap_b32 v{a_+j}, v{b_+j}" for j in range(2)])
    so.append(["    s_nop 1"] + [f"    v_add_f32 v{a_+j}, v{a_+j}, v{b_+j}" for j in range(2)])
    M, V_ = a_, a_ + 1
    so.append([f"    v_mul_f32 v{M}, 0x3b000000, v{M}",
               f"    v_mul_f32 v{V_}, 0x3b000000, v{V_}",
               f"    v_fma_f32 v{V_}, -v{M}, v{M}, v{V_}"])
    so.append([f"    v_max_f32 v{V_}, 0, v{V_}",
               f"    v_cvt_pk_bf16_f32 v{M}, 0, v{M}",
               f"    v_cvt_pk_bf16_f32 v{V_}, 0, v{V_}"])
    so.append([f"    v_add_f32 v{V_}, 0x3727c5ac, v{V_}",
               f"    v_cvt_pk_bf16_f32 v{V_}, 0, v{V_}",
               f"    v_sqrt_f32 v{V_}, v{V_}",
               f"    v_sub_f32 v{PUB}, 0, v{M}"])
    so.append([f"    v_cvt_pk_bf16_f32 v{V_}, 0, v{V_}",
               f"    v_rcp_f32 v{PUB+1}, v{V_}"])
    if not SIL:
        for g in so:
            for t in g:
                E(t)
        so = []
    token_issue(vm)
    stamp(3, vm)
    vm.wait(("W", 0))
    E("    s_barrier")
    stamp(4, vm)
    stampclk(16, vm)

    dq = []

    def ds(tag, text):
        def f():
            E(text)
            dq.append(tag)
        return f

    def ds_wait(tags):
        idx = max([i for i, t in enumerate(dq) if t in tags], default=-1)
        if idx < 0:
            return
        m_ = len(dq) - 1 - idx
        E(f"    s_waitcnt lgkmcnt({min(m_, 15)})")
        if m_ <= 15:
            del dq[:idx + 1]
        else:
            del dq[:len(dq) - 15]

    def wreg(k, t):
        return WF + 12 * (k % 2) + 4 * t

    def xreg(k, e):
        return XF + 8 * (k % 8) + 4 * e

    def w_rd(k):
        bo = ((k // 2) % NB) * STG
        ops = []
        for t in range(nt):
            r = wreg(k, t)
            a = WA + 2 * (k % 2) + t % 2
            off = bo + 64 * (t // 2)
            ops.append(ds(("w", k, t), f"    ds_read_b64_tr_b16 v[{r}:{r+1}], v{a} offset:{off}"))
            ops.append(ds(("w", k, t), f"    ds_read_b64_tr_b16 v[{r+2}:{r+3}], v{a} offset:{off+4*P}"))
        return ops

    def x_rd(k):
        ops = []
        for e in range(2):
            r = xreg(k, e)
            ops.append(ds(("x", k), f"    ds_read_b128 v[{r}:{r+3}], v{XA + k % 4} offset:{((k//4) % 2)*16384 + 4096*e}"))
        return ops

    def cs_mfma(k, t):
        def f():
            a = CS + 4 * t
            c = "0" if k == 0 else f"v[{a}:{a+3}]"
            w = wreg(k, t)
            E(f"    v_mfma_f32_16x16x32_bf16 v[{a}:{a+3}], v[{SEL}:{SEL+3}], v[{w}:{w+3}], {c}")
        return f

    def publish():
        token_get(vm)
        E(f"    v_mov_b32 v{PUB+2}, s90")
        E(f"    v_mov_b32 v{PUB+3}, s91")
        E("    v_lshrrev_b32 v2, 1, v1")
        E("    s_mov_b32 exec_lo, 1")
        E("    s_mov_b32 exec_hi, 1")
        E(f"    buffer_store_dwordx4 v[{PUB}:{PUB+3}], v2, s[12:15], s35 offen sc0 sc1")
        E("    s_mov_b64 exec, -1")
        vm.issue("pub")

    def gr_load():
        E("    v_and_b32 v2, 0x1f0, v8")
        E(f"    buffer_load_dwordx4 v[{GR1}:{GR1+3}], v8, s[12:15], s46 offen sc0 sc1")
        E(f"    buffer_load_dwordx4 v[{GR2}:{GR2+3}], v2, s[12:15], s47 offen sc0 sc1")

    def gr_issue():
        gr_load()
        vm.issue("gr")
        vm.issue("gr")

    def gr_check():
        _lbl[0] += 1
        L = _lbl[0]
        vm.wait("gr")
        E(f"    s_mov_b32 s92, {POLL_LIMIT}")
        E(f"gr_l{L}:")
        E(f"    v_cmp_ne_u64 vcc, s[90:91], v[{GR1+2}:{GR1+3}]")
        E(f"    v_cmp_ne_u64 s[44:45], s[90:91], v[{GR2+2}:{GR2+3}]")
        E("    s_nop 0")
        E("    s_or_b64 vcc, vcc, s[44:45]")
        E(f"    s_cbranch_scc0 gr_d{L}")
        gr_load()
        E("    s_waitcnt vmcnt(0)")
        E("    s_sub_u32 s92, s92, 1")
        E("    s_cmp_lg_u32 s92, 0")
        E(f"    s_cbranch_scc1 gr_l{L}")
        E(f"gr_d{L}:")
        E(f"    v_mov_b32 v{GR1+2}, v{GR1}")
        E(f"    v_mov_b32 v{GR1+3}, v{GR1+1}")
        E("    s_nop 1")
        E(f"    v_permlane32_swap_b32 v{GR1}, v{GR1+2}")
        E(f"    v_permlane32_swap_b32 v{GR1+1}, v{GR1+3}")
        stampval(20, "s92", vm)

    def wdt():
        E("    s_mul_i32 s38, s33, 344*128")
        E("    v_lshlrev_b32 v2, 7, v0")
        E(f"    buffer_load_dword v{PUB}, v2, s[8:11], s38 offen")
        E("    v_min_u32 v3, 87, v0")
        E("    v_lshlrev_b32 v3, 7, v3")
        E("    s_add_u32 s38, s38, 256*128")
        E(f"    buffer_load_dword v{PUB+1}, v3, s[8:11], s38 offen")
        vm.issue("pf")
        vm.issue("pf")

    def xt_load():
        for q in range(4):
            E(f"    buffer_load_dwordx2 v[{232+2*q}:{232+2*q+1}], v23, s[16:19], 0 offen offset:{16*q}")
            vm.issue("xt")

    def acc(t, e):
        return ACC + 16 * (2 * t + e)

    def mm(k, t, e):
        x = xreg(k, e)
        w = wreg(k, t)
        a = acc(t, e)
        c = "0" if k == 0 else f"v[{a}:{a+15}]"
        E(f"    v_mfma_f32_32x32x16_bf16 v[{a}:{a+15}], v[{w}:{w+3}], v[{x}:{x+3}], {c}")

    XCH = 0

    def xw():
        E("    v_and_b32 v2, 31, v1")
        E("    v_lshrrev_b32 v3, 5, v1")
        E("    v_lshlrev_b32 v2, 2, v2")
        E("    v_lshl_add_u32 v2, v3, 12, v2")
        E("    s_lshl_b32 s38, s5, 9")
        E("    s_add_u32 s38, s38, s37")
        E("    v_xor_b32 v2, s38, v2")
        for t in range(nt):
            E(f"    ds_write_b32 v2, v{CS+4*t} offset:{XCH + 128*t}")
            dq.append("xw")

    run(x_rd(0) + w_rd(0) + x_rd(1) + x_rd(2) + x_rd(3))
    pend = []
    xq = []
    for k in range(31):
        st = k // 2
        if k % 2 == 1:
            vm.wait(("W", st + 1))
            if k % 4 == 1 and k < 28:
                vm.wait(("X", k // 4 + 1))
            assert not xq
            E("    s_waitcnt lgkmcnt(0)")
            del dq[:]
            E("    s_barrier")
            if st % 4 == 3 and st < 15 and DIAG:
                stamp(5 + st // 4, vm)
                stampclk(17 + st // 4, vm)
            assert not pend
            if k == 1:
                pend += x_dma(2)
            if st + NB < 16:
                pend += w_dma(st + NB)
            if k % 4 == 3 and k // 4 + 3 < 8:
                pend += x_dma(k // 4 + 3)
            if k % 4 == 1 and k < 28:
                for kk in range(4):
                    xq += x_rd(4 * (k // 4 + 1) + kk)
        slots = [[] for _ in range(n)]
        rd = w_rd(k + 1)
        for s_ in range(nt):
            slots[s_] += rd[2 * s_:2 * s_ + 2]
        cnt = len(xq) // 2 if k % 2 == 1 else len(xq)
        fs = list(range(nt, n))
        for i_ in range(cnt):
            slots[fs[i_ * len(fs) // cnt]].append(xq.pop(0))
        if k % 2 == 0:
            for t in range(nt):
                slots[2 * t + 1 if k < 30 else t + 1].append(cs_mfma(k, t))
        cnt = (len(pend) + 1) // 2 if k % 2 == 1 else len(pend)
        ms = list(range(n))
        todo = [(i_ * n + n - 1) // max(cnt, 1) for i_ in range(cnt)]
        for s_ in todo:
            slots[min(s_, n - 1)].append(pend.pop(0))
        for s_ in range(n):
            if so:
                slots[s_].append(lambda g=so.pop(0): [E(t) for t in g])
        if k == PUBK:
            assert not so
            slots[n - 1].append(publish)
        if k == GRK:
            slots[n - 1].append(gr_issue)
        if k == (WDK if nt == 3 else WDK2) and WD_AT == "g":
            slots[n - 1].append(wdt)
        if k == XK:
            slots[n - 1].append(xt_load)
        if k == GRC:
            slots[n - 1 if k < 30 else 0].append(gr_check)
        if k == 30:
            if nt == 2:
                slots[n - 1].append(lambda: E("    s_nop 7"))
            slots[n - 1].append(xw)
        for t in range(nt):
            for e in range(2):
                if e == 0:
                    tg = [("x", k), ("w", k, t)]
                    if k == 30:
                        tg += [("w", k, t2) for t2 in range(min(nt, 2 * t + 2))]
                    ds_wait(tg)
                mm(k, t, e)
                for f in slots[2 * t + e]:
                    f()
    assert not pend
    E("    s_waitcnt lgkmcnt(0)")
    del dq[:]
    E("    s_barrier")
    E(f"    s_setprio {GPRIO2}")
    E("    v_and_b32 v2, 31, v1")
    E("    v_lshrrev_b32 v3, 5, v1")
    E("    v_lshlrev_b32 v2, 2, v2")
    E("    v_lshl_add_u32 v2, v3, 9, v2")
    E("    v_add_u32 v2, s37, v2")
    CV = CS
    for t in range(nt):
        E(f"    ds_read_b32 v{CV+t}, v2 offset:{XCH + 128*t}")
    BM = XF
    QA = XF + 12
    T0 = XF + 20

    def split_ops(t):
        c = CV + t
        q = QA + 2 * t
        return [f"    v_and_b32 v{T0}, s40, v{c}",
                f"    v_sub_f32 v{c}, v{c}, v{T0}",
                f"    v_and_b32 v{T0+1}, s40, v{c}",
                f"    v_sub_f32 v{c}, v{c}, v{T0+1}",
                f"    v_cvt_pk_bf16_f32 v{q}, v{T0}, v{T0+1}",
                f"    v_cvt_pk_bf16_f32 v{q+1}, v{c}, 0"]

    def corr(t, e):
        q = QA + 4 * (t // 2)
        b = BM + 4 * e + (2 if t % 2 == 0 else 0)
        a = acc(t, e)
        E(f"    v_mfma_f32_32x32x16_bf16 v[{a}:{a+15}], v[{q}:{q+3}], v[{b}:{b+3}], v[{a}:{a+15}]")

    def epi_ops(t, e):
        G = acc(t, e)
        U = G + 8
        rc = GR1 + 2 * e + 1
        o = []
        for j in range(16):
            o.append(f"    v_mul_f32 v{G+j}, v{G+j}, v{rc}")
        for j in range(16):
            o.append(f"    v_cvt_pk_bf16_f32 v{G+j}, 0, v{G+j}")
        for j in range(8):
            o.append(f"    v_mul_f32 v{G+j}, v{G+j}, v{U+j}")
        for j in range(4):
            o.append(f"    v_cvt_pk_bf16_f32 v{U+j}, v{G+2*j}, v{G+2*j+1}")
        o.append("    s_nop 1")
        o.append(f"    v_permlane32_swap_b32 v{U}, v{U+2}")
        o.append(f"    v_permlane32_swap_b32 v{U+1}, v{U+3}")
        o.append(f"    buffer_store_dwordx4 v[{U}:{U+3}], v8, s[24:27], s{42 if e == 0 else 43} offen offset:{t*1024} sc0 sc1")
        return o

    pre = [f"    v_mov_b32 v{BM+j}, 0" for j in (0, 1, 4, 5, 8, 9)]
    pre += [f"    v_cvt_pk_bf16_f32 v{BM+2+j%2+4*(j//2)}, v{GR1+2*(j//2)}, v{GR1+2*(j//2)}" for j in range(4)]
    pre += [f"    v_mov_b32 v{QA+6}, 0", f"    v_mov_b32 v{QA+7}, 0", f"    s_add_u32 s43, s42, {HB}"]
    for t in range(nt):
        pre.append(f"    s_waitcnt lgkmcnt({nt-1-t})")
        pre += split_ops(t)
    we = []
    for i in range(1, 1 + NWE):
        we += wdma_ops(vm, i)
    for t in range(nt):
        for e in range(2):
            mm(31, t, e)
            run(pre, 7)
            run(we, (2 * NWE + n - 1) // n)
    run(pre)
    run(we)
    E("    s_nop 1")
    stamp(8, vm)
    ep = []
    seq = [(t, e) for t in range(nt) for e in range(2)]
    for i_, (t, e) in enumerate(seq):
        corr(t, e)
        if i_ >= 2:
            ep += epi_ops(*seq[i_ - 2])
        run(ep, 7)
    run(ep)
    for te in seq[-2:]:
        run(epi_ops(*te))
    stamp(9, vm)
    E("    s_branch phase_c")


def token_publish():
    E("    s_or_b32 s34, s2, s3")
    E("    s_cmp_eq_u32 s34, 0")
    E("    s_cbranch_scc0 g_notok")
    E("    s_or_b32 s90, s90, 1")
    E(f"    v_mov_b32 v{TK}, s90")
    E(f"    v_mov_b32 v{TK+1}, s91")
    E("    s_mov_b64 exec, 1")
    E(f"    buffer_store_dwordx2 v[{TK}:{TK+1}], off, s[60:63], 0 sc0 sc1")
    E("    s_mov_b64 exec, -1")
    E("g_notok:")


def gen_gtype():
    vm = VM()
    E(f"    s_setprio {GPRIO}")
    if CFIRST:
        E("    s_sub_u32 s2, s2, 256")
    else:
        token_publish()
    E("    s_lshr_b32 s33, s2, 3")
    if MAP:
        E("    ; map1")
        E("    s_and_b32 s30, s2, 4")
        E("    s_lshl_b32 s30, s30, 1")
        E("    s_lshr_b32 s31, s33, 2")
        E("    s_add_u32 s30, s30, s31")
        E("    s_and_b32 s31, s2, 3")
        E("    s_lshl_b32 s31, s31, 2")
        E("    s_and_b32 s34, s33, 3")
        E("    s_add_u32 s31, s31, s34")
        E("    s_and_b32 s4, s2, 7")
        E("    s_lshl_b32 s4, s4, 2")
        E("    s_lshr_b32 s34, s33, 3")
        E("    s_add_u32 s4, s4, s34")
    else:
        E("    s_bfe_u32 s30, s2, 0x20001")
        E("    s_lshl_b32 s30, s30, 2")
        E("    s_lshr_b32 s31, s33, 3")
        E("    s_add_u32 s30, s30, s31")
        E("    s_and_b32 s31, s2, 1")
        E("    s_lshl_b32 s31, s31, 3")
        E("    s_and_b32 s34, s33, 7")
        E("    s_add_u32 s31, s31, s34")
    srd(16, 64, 65, S * D * 2)
    E("    s_lshl_b32 s35, s30, 7")
    E("    s_lshl_b32 s34, s31, 3")
    E("    s_add_u32 s35, s35, s34")
    E("    s_lshl_b32 s34, s3, 1")
    E("    s_add_u32 s35, s35, s34")
    E("    s_lshl_b32 s34, s35, 10")
    E("    v_lshrrev_b32 v12, 5, v1")
    E("    v_and_b32 v13, 31, v1")
    E("    v_lshlrev_b32 v13, 4, v13")
    E("    v_lshl_add_u32 v12, v12, 10, v13")
    E(f"    buffer_load_dwordx4 v[{GACC}:{GACC+3}], v12, s[16:19], s34 offen")
    E(f"    buffer_load_dwordx4 v[{GACC+4}:{GACC+7}], v12, s[16:19], s34 offen offset:512")
    vm.issue("st")
    vm.issue("st")
    E("    s_lshl_b32 s35, s35, 4")
    E("    s_lshl_b32 s32, s30, 17")
    E("    s_lshl_b32 s34, s3, 15")
    E("    s_add_u32 s32, s32, s34")
    E("    s_lshr_b32 s46, s32, 6")
    E("    s_bitset0_b32 s46, 9")
    E("    v_lshrrev_b32 v12, 3, v1")
    E("    v_lshrrev_b32 v13, 4, v1")
    E("    v_xor_b32 v13, v13, v1")
    E("    v_and_b32 v13, 7, v13")
    E("    v_lshlrev_b32 v13, 4, v13")
    E(f"    v_lshl_add_u32 v{XDV}, v12, 10, v13")
    E(f"    v_xor_b32 v{XDV+1}, 64, v{XDV}")
    E("    s_lshl_b32 s7, s3, 12")
    if MAP:
        E("    s_lshr_b32 s29, s33, 2")
        E("    s_and_b32 s34, s33, 3")
    else:
        E("    s_and_b32 s29, s33, 7")
        E("    s_lshr_b32 s34, s33, 3")
    E("    s_lshl_b32 s34, s34, 1")
    if ROT == 1:
        E("    s_add_u32 s29, s29, s34")
    if ROT == 3:
        E("    s_mov_b32 s29, s34")
    if ROT == 4:
        E("    s_lshl_b32 s29, s29, 1")
    if ROT == 10:
        E("    s_add_u32 s29, s29, 1")
        E("    s_lshl_b32 s29, s29, 1")
    if ROT == 11:
        E("    s_lshl_b32 s29, s29, 1")
        E("    s_add_u32 s29, s29, 1")
    if ROT == 6:
        E("    s_lshl_b32 s29, s29, 2")
    if ROT == 7:
        E("    s_lshl_b32 s29, s29, 1")
        E("    s_bfe_u32 s34, s34, 0x10001")
        E("    s_add_u32 s29, s29, s34")
    if ROT == 8:
        E("    s_lshr_b32 s29, s29, 1")
        E("    s_lshl_b32 s29, s29, 1")
    if ROT == 9:
        E("    s_lshl_b32 s29, s29, 1")
        E("    s_add_u32 s29, s29, s34")
    if ROT == 5:
        E("    s_lshr_b32 s34, s34, 2")
        E("    s_lshl_b32 s34, s34, 2")
        E("    s_add_u32 s29, s29, s34")
    E("    s_lshl_b32 s29, s29, 1")
    E("    s_and_b32 s29, s29, 15" if ROT else "    s_mov_b32 s29, 0")
    E("    s_lshl_b32 s34, s29, 6")
    E("    s_add_u32 s32, s32, s34")
    srd_off(24, 88, 89, WS_H, H_BYTES)
    srd_off(12, 88, 89, WS_ST, S * 16)
    E(f"    s_mov_b32 s{S_ONE}, 0x3f803f80")
    E("    v_lshlrev_b32 v8, 4, v1")
    if MAP:
        E("    s_lshl_b32 s47, s4, 10")
    else:
        E("    s_lshl_b32 s47, s30, 11")
        E("    s_lshr_b32 s34, s31, 3")
        E("    s_lshl_b32 s34, s34, 10")
        E("    s_add_u32 s47, s47, s34")
    E("    s_and_b32 s34, s3, 1")
    E("    s_lshl_b32 s34, s34, 9")
    E("    s_add_u32 s47, s47, s34")
    srd(8, 82, 83, F * D * 2)
    E("    s_mul_i32 s51, s3, 22")
    E("    s_cmp_eq_u32 s3, 3")
    E("    s_cselect_b32 s51, 65, s51")
    E("    s_lshl_b32 s41, s51, 14")
    if REV:
        E("    s_lshr_b32 s34, s3, 1")
        E("    s_lshl_b32 s34, s34, 14")
        E("    s_sub_u32 s41, s41, s34")
    E("    s_lshl_b32 s37, s3, 11")
    E("    v_lshrrev_b32 v14, 3, v1")
    E(f"    v_lshlrev_b32 v{DDV}, 10, v14")
    E("    v_and_b32 v14, 7, v1")
    E("    v_bfe_u32 v15, v1, 4, 1")
    E("    v_lshlrev_b32 v15, 2, v15")
    E("    v_xor_b32 v14, v14, v15")
    E(f"    v_lshl_add_u32 v{DDV}, v14, 4, v{DDV}")
    E("    s_and_b32 s34, s33, 7")
    E("    s_lshl_b32 s34, s34, 7")
    E(f"    v_add_u32 v{DDV}, s34, v{DDV}")
    E("    s_lshl_b32 s36, s30, 2")
    E("    s_add_u32 s36, s36, s3")
    E("    s_lshl_b32 s39, s36, 7")
    E("    s_lshl_b32 s38, s31, 3")
    E("    s_add_u32 s39, s39, s38")
    E(f"    s_add_u32 s39, s39, {FH_OFF}")
    E("    s_bitset0_b32 s36, 0")
    E(f"    s_mul_i32 s42, s36, {HB}")
    if MAP == 2:
        E("    ; map2")
        E("    s_mul_i32 s36, s31, 3")
        E("    s_add_u32 s38, s31, 1")
        E("    s_lshr_b32 s38, s38, 4")
        E("    s_sub_u32 s36, s36, s38")
        E("    s_lshr_b32 s38, s31, 2")
        E("    s_sub_u32 s36, s36, s38")
        E("    s_lshl_b32 s36, s36, 6")
        E("    s_lshl_b32 s38, s36, 5")
        E("    s_add_u32 s42, s42, s38")
        E("    s_bitcmp1_b32 0xc888, s31")
        E("    s_cbranch_scc1 g_path2")
        gen_gtype_path(3, vm)
        E("g_path2:")
        gen_gtype_path(2, vm)
        gen_phase_c()
        return
    E("    s_cmp_lt_u32 s31, 11")
    E("    s_cbranch_scc0 g_path2")
    E("    s_mul_i32 s36, s31, 192")
    E("    s_mul_i32 s38, s31, 3*2048")
    E("    s_add_u32 s42, s42, s38")
    gen_gtype_path(3, vm)
    E("g_path2:")
    E("    s_lshl_b32 s36, s31, 7")
    E("    s_add_u32 s36, s36, 704")
    E("    s_lshl_b32 s38, s36, 5")
    E("    s_add_u32 s42, s42, s38")
    gen_gtype_path(2, vm)
    gen_phase_c()


KVP = 80
KV_OFF = 0
CSTR = 4416
COPY_BASE = [64 * KVP + CSTR * (c + 1) for c in range(4)]
TB_OFF = 5376
XCH_OFF = 27136
STG_OFF = XCH_OFF + 8192
CH_BYTES = STG_OFF + 4096
LDS_BYTES = 81920
assert TB_OFF + 4096 <= COPY_BASE[0] and COPY_BASE[3] + 4208 <= XCH_OFF
assert 2 * CH_BYTES <= LDS_BYTES


def wd_touch(vt):
    srd(52, 82, 83, F * D * 2)
    E("    s_mul_i32 s93, s50, 344*128")
    E(f"    v_lshlrev_b32 v{vt}, 7, v0")
    E(f"    buffer_load_dword v{vt+1}, v{vt}, s[52:55], s93 offen")
    E(f"    v_min_u32 v{vt}, 87, v0")
    E(f"    v_lshlrev_b32 v{vt}, 7, v{vt}")
    E("    s_add_u32 s93, s93, 256*128")
    E(f"    buffer_load_dword v{vt+1}, v{vt}, s[52:55], s93 offen")


def gen_ctype():
    vm = VM()
    E("c_type:")
    E(f"    s_setprio {CPRIO}")
    if CFIRST:
        token_publish()
    if 'g' in os.environ.get('XP', ''):
        E("    s_endpgm")
    if CFIRST:
        pass
    else:
        E("    s_sub_u32 s2, s2, 256")
    srd(16, 66, 67, S * D * 2)
    srd(20, 68, 69, S * D * 2)
    srd(24, 70, 71, D * 4 * 2)
    E("    s_lshr_b32 s32, s2, 3")
    E("    s_and_b32 s33, s2, 7")
    E("    v_and_b32 v10, 31, v0")
    E("    v_lshrrev_b32 v11, 5, v0")
    E("    s_lshl_b32 s34, s32, 6")
    E("    v_lshlrev_b32 v3, 3, v11")
    E("    v_add_u32 v3, s34, v3")
    E("    s_lshl_b32 s35, s33, 5")
    E("    v_add_u32 v6, s35, v10")
    E("    v_lshlrev_b32 v3, 10, v3")
    E("    v_lshl_add_u32 v3, v6, 2, v3")
    E("    v_add_u32 v4, 4096, v3")
    E("    v_subrev_u32 v5, 3072, v3")
    E("    v_lshlrev_b32 v6, 4, v6")
    if CDLY:
        E(f"    s_sleep {CDLY}")
    for j in range(3):
        E(f"    buffer_load_dword v{132+j}, v5, s[16:19], 0 offen offset:{1024*j}")
    for j in range(4):
        E(f"    buffer_load_dword v{135+j}, v3, s[16:19], 0 offen offset:{1024*j}")
    for j in range(4):
        E(f"    buffer_load_dword v{139+j}, v4, s[16:19], 0 offen offset:{1024*j}")
    for j in range(4):
        E(f"    buffer_load_dword v{144+j}, v3, s[20:23], 0 offen offset:{1024*j}")
    for j in range(4):
        E(f"    buffer_load_dword v{148+j}, v4, s[20:23], 0 offen offset:{1024*j}")
    E("    buffer_load_dwordx4 v[128:131], v6, s[24:27], 0 offen")
    for _ in range(20):
        vm.issue("kv")
    E("    s_lshr_b32 s31, s3, 1")
    E("    s_lshl_b32 s30, s33, 6")
    E("    s_lshl_b32 s34, s32, 1")
    E("    s_add_u32 s30, s30, s34")
    E("    s_add_u32 s30, s30, s31")
    E("    s_mov_b32 s50, s32")
    E("    s_mov_b32 s51, s33")
    E("    s_and_b32 s32, s3, 1")
    E("    s_lshl_b32 s33, s30, 12")
    srd_off(44, 72, 73, "s33", 4096)
    E(f"    s_mul_i32 s35, s31, {CH_BYTES}")
    E("    s_lshl_b32 s36, s32, 6")
    E("    v_add_u32 v3, s36, v1")
    E("    v_lshlrev_b32 v4, 4, v3")
    E("    v_subrev_u32 v5, 8, v4")
    E("    v_add_u32 v29, 2040, v4")
    def kf_loads():
        srd_off(44, 72, 73, "s33", 4096)
        E("    buffer_load_dwordx4 v[18:21], v4, s[44:47], 0 offen")
        E("    buffer_load_dwordx4 v[24:27], v4, s[44:47], 0 offen offset:2048")
        E("    buffer_load_dwordx2 v[16:17], v5, s[44:47], 0 offen")
        E("    buffer_load_dwordx2 v[22:23], v29, s[44:47], 0 offen")
        for _ in range(4):
            vm.issue("kf")
        srd(44, 74, 75, D * 2)
        E("    s_lshl_b32 s36, s30, 1")
        E("    v_mov_b32 v7, s36")
        E("    buffer_load_ushort v9, v7, s[44:47], 0 offen")
        vm.issue("kf")
    if not KFL:
        kf_loads()
    srd_off(8, 88, 89, WS_KVR, S * D * 2)
    srd_off(12, 88, 89, WS_KVA, S * D * 2)
    E("    s_getreg_b32 s6, hwreg(HW_REG_XCC_ID, 0, 4)")
    E("    v_lshrrev_b32 v12, 4, v10")
    E(f"    v_mul_u32_u24 v12, {CH_BYTES}, v12")
    E("    v_and_b32 v13, 15, v10")
    E("    v_lshl_add_u32 v12, v13, 8, v12")
    E("    v_sub_u32 v13, 7, v11")
    E("    v_and_b32 v14, 7, v10")
    E("    v_xor_b32 v13, v13, v14")
    E("    v_lshl_add_u32 v12, v13, 4, v12")
    E(f"    v_add_u32 v12, {TB_OFF}, v12")
    E("    v_lshrrev_b32 v13, 3, v1")
    E("    v_and_b32 v14, 7, v1")
    E("    v_lshrrev_b32 v15, 4, v1")
    E("    v_xor_b32 v15, v15, v14")
    E("    v_lshlrev_b32 v15, 4, v15")
    E("    v_lshl_add_u32 v15, v13, 7, v15")
    E(f"    s_mul_i32 s36, s31, {CH_BYTES}")
    E("    s_lshl_b32 s37, s32, 11")
    E("    s_add_u32 s36, s36, s37")
    E(f"    s_add_u32 s36, s36, {TB_OFF}")
    E("    v_add_u32 v15, s36, v15")
    E("    v_xor_b32 v28, 64, v15")
    E("    v_lshlrev_b32 v13, 12, v13")
    E("    v_lshl_add_u32 v13, v14, 4, v13")
    E("    s_lshl_b32 s36, s51, 18")
    E("    s_lshl_b32 s37, s3, 16")
    E("    s_add_u32 s36, s36, s37")
    E("    s_lshl_b32 s37, s50, 7")
    E("    s_sub_u32 s37, 3968, s37")
    E("    s_add_u32 s48, s36, s37")
    E("    s_lshl_b32 s36, s51, 10")
    E(f"    s_add_u32 s36, s36, {FK_OFF}")
    E("    s_lshl_b32 s37, s3, 8")
    E("    s_add_u32 s49, s36, s37")
    E("    s_lshl_b32 s37, s50, 3")
    E("    s_add_u32 s49, s49, s37")
    E("    s_lshr_b32 s37, s50, 3")
    E("    s_lshl_b32 s37, s37, 8")
    E("    s_add_u32 s41, s36, s37")
    if TLB:
        E("    s_add_u32 s43, s48, 32768")
        E("    s_mov_b32 exec_lo, 0x01010101")
        E("    s_mov_b32 exec_hi, 0x01010101")
        E("    buffer_load_dword v30, v13, s[12:15], s48 offen")
        E("    buffer_load_dword v31, v13, s[12:15], s43 offen")
        E("    s_mov_b64 exec, -1")
        vm.issue("tl")
        vm.issue("tl")
    vm.wait("kv")
    stamp(1, vm)
    token_issue(vm)
    if KFL:
        kf_loads()
    if TOUCH != "none":
        w_touch(vm, 78, 79, "s50", 29)
    if WD_AT == "early":
        wd_touch(244)
        vm.issue("pf")
        vm.issue("pf")
    if CX == 1:
        E("    s_waitcnt vmcnt(0)")
        E("    s_endpgm")
    for t in range(4):
        for c in range(2):
            src = 128 + 2 * c + t // 2
            if t % 2 == 0:
                E(f"    v_lshlrev_b32 v{32+2*t+c}, 16, v{src}")
            else:
                E(f"    v_and_b32 v{32+2*t+c}, s40, v{src}")
    for j in range(11):
        E(f"    v_lshlrev_b32 v{40+2*j}, 16, v{132+j}")
        E(f"    v_and_b32 v{41+2*j}, s40, v{132+j}")
    for j in range(8):
        E(f"    v_lshlrev_b32 v{64+2*j}, 16, v{144+j}")
        E(f"    v_and_b32 v{65+2*j}, s40, v{144+j}")

    def pr(r):
        return f"v[{r}:{r+1}]"

    def rnd(r):
        E(f"    v_cvt_pk_bf16_f32 v{r}, 0, v{r}")

    def p2(op, d, a, b, pk=0):
        if pk:
            return [f"    v_pk_{op}_f32 {pr(d)}, {pr(a)}, {pr(b)}"]
        return [f"    v_{op}_f32 v{d+j}, v{a+j}, v{b+j}" for j in range(2)]

    def P2(*a, **k):
        for t in p2(*a, **k):
            E(t)

    for j in range(8):
        T = 96 + 8 * (j % 2)
        for t in range(4):
            P2("mul", T + 2 * t, 40 + 2 * (j + t), 32 + 2 * (3 - t))
        for t in range(8):
            rnd(T + t)
        for t in range(1, 4):
            P2("add", T, T, T + 2 * t)
            rnd(T)
            rnd(T + 1)
        P2("mul", 80 + 2 * j, T, 64 + 2 * j)
    for c in range(2):
        for jj in range(4):
            E(f"    v_cvt_pk_bf16_f32 v{104+4*c+jj}, v{80+2*(7-2*jj)+c}, v{80+2*(6-2*jj)+c}")
    if CX == 2:
        E("    s_waitcnt vmcnt(0)")
        E("    s_endpgm")
    E("    ds_write_b128 v12, v[104:107]")
    E("    ds_write_b128 v12, v[108:111] offset:128")
    E("    s_waitcnt lgkmcnt(0)")
    E("    s_barrier")
    E("    ds_read_b128 v[104:107], v15")
    E("    ds_read_b128 v[108:111], v28 offset:1024")
    E("    s_add_u32 s43, s48, 32768")
    E("    s_waitcnt lgkmcnt(1)")
    if 's' not in XP:
        E(f"    buffer_store_dwordx4 v[104:107], v13, s[12:15], s48 offen {KST}")
    E("    s_waitcnt lgkmcnt(0)")
    if 's' not in XP:
        E(f"    buffer_store_dwordx4 v[108:111], v13, s[12:15], s43 offen {KST}")
        vm.issue("kst")
        vm.issue("kst")
    stamp(2, vm)
    E("    s_add_u32 s34, s33, %d" % WS_KVR)
    srd_off(20, 88, 89, "s34", 4096)
    E("    s_add_u32 s34, s33, %d" % WS_YT)
    srd_off(24, 88, 89, "s34", 4096)
    E("    v_mov_b32 v36, 0")
    E("    v_mov_b32 v37, 0")
    E("    v_mov_b32 v38, 0")
    E("    v_mov_b32 v39, 0")
    E("    v_mul_u32_u24 v7, 37, v1")
    E("    v_lshrrev_b32 v7, 8, v7")
    E(f"    v_mul_u32_u24 v7, {CSTR - 112}, v7")
    E("    v_lshl_add_u32 v7, v1, 4, v7")
    E("    v_add_u32 v7, s35, v7")
    E("    s_mov_b32 exec_hi, 7")
    E(f"    ds_write_b128 v7, v[36:39] offset:{64*KVP}")
    E("    s_mov_b64 exec, -1")
    E("    v_lshlrev_b32 v6, 4, v3")
    E("    v_add_u32 v7, s35, v6")
    E("    v_lshrrev_b32 v8, 2, v3")
    E(f"    v_mul_u32_u24 v8, {KVP}, v8")
    E("    v_and_b32 v10, 3, v3")
    E("    v_lshl_add_u32 v8, v10, 4, v8")
    E("    v_add_u32 v8, s35, v8")
    E("    v_and_b32 v3, 31, v1")
    E("    v_lshrrev_b32 v4, 5, v1")
    E("    v_and_b32 v14, 3, v3")
    E(f"    v_mul_u32_u24 v10, {CSTR - 2}, v14")
    E("    v_lshl_add_u32 v10, v3, 1, v10")
    E("    v_lshlrev_b32 v14, 4, v4")
    E("    v_sub_u32 v10, v10, v14")
    E(f"    s_add_u32 s36, s35, {COPY_BASE[0] + 8}")
    E("    v_add_u32 v10, s36, v10")
    E("    v_sub_u32 v5, 63, v3")
    E(f"    v_mul_u32_u24 v5, {KVP}, v5")
    E("    v_lshlrev_b32 v14, 4, v4")
    E("    v_sub_u32 v5, v5, v14")
    E(f"    s_add_u32 s36, s35, {KV_OFF + 16}")
    E("    v_add_u32 v11, s36, v5")
    E(f"    v_subrev_u32 v15, {32*KVP}, v11")
    E(f"    s_add_u32 s36, s36, {KVP*64}")
    E("    v_sub_u32 v12, s36, v14")
    E("    v_lshlrev_b32 v14, 3, v4")
    E("    v_add_u32 v5, v5, v14")
    E(f"    s_mul_i32 s36, s32, {32*KVP}")
    E(f"    s_sub_u32 s36, {KV_OFF + 8}, s36")
    E("    s_add_u32 s36, s36, s35")
    E("    v_add_u32 v5, s36, v5")
    E("    s_lshl_b32 s36, s32, 10")
    E("    v_add_u32 v10, s36, v10")
    E(f"    s_mul_i32 s36, s32, {16*KVP}")
    E("    v_add_u32 v11, s36, v11")
    E("    v_add_u32 v15, s36, v15")
    E("    v_add_u32 v14, 2048, v10")

    def copies():
        vm.wait("kf")
        for u in range(2):
            e = 16 + 6 * u
            for c in range(4):
                r = 40 + 4 * c
                for d in range(4):
                    if c == 1:
                        E(f"    v_mov_b32 v{r+d}, v{e+1+d}")
                    elif c < 3:
                        E(f"    v_alignbyte_b32 v{r+d}, v{e+c//2+d+1}, v{e+c//2+d}, 2")
                if c == 3:
                    r = e + 2
                if 'c' not in XP:
                    E(f"    ds_write_b128 v7, v[{r}:{r+3}] offset:{COPY_BASE[c] + 112 + 2048*u}")

    if CE:
        copies()
    token_get(vm)
    stampval(20, "s92", vm)
    E("    s_add_u32 s6, s6, 1")
    E("    s_lshl_b32 s6, s6, 24")
    E("    s_mov_b32 s4, s90")
    E("    s_xor_b32 s5, s91, s6")
    E("    v_mov_b32 v244, s4")
    E("    v_mov_b32 v245, s5")
    E(f"    s_sub_u32 s93, s49, {FK_OFF}")
    E(f"    s_lshl_b32 s93, s93, {FSH}")
    vm.wait("kst")
    E("    s_mov_b64 exec, 1")
    E("    buffer_store_dwordx2 v[244:245], off, s[56:59], s93")
    E("    s_mov_b64 exec, -1")
    vm.issue("flag")
    stamp(3, vm)
    if CX == 3:
        E("    s_waitcnt vmcnt(0)")
        E("    s_endpgm")
    if not CE:
        copies()
    E(f"    s_setprio {CPRIO2}")
    stamp(9, vm)
    if CX == 4:
        E("    s_waitcnt vmcnt(0)")
        E("    s_endpgm")

    def slow_stores():
        E("    buffer_store_dwordx4 v[104:107], v13, s[8:11], s48 offen sc0 sc1")
        E("    buffer_store_dwordx4 v[108:111], v13, s[8:11], s43 offen sc0 sc1")

    NF = int(os.environ.get("NF", "12"))
    E(f"    s_mov_b32 s92, {POLL_LIMIT}")
    E("    s_mov_b32 s28, 0")
    E(f"    s_sub_u32 s46, s41, {FK_OFF}")
    E(f"    s_lshl_b32 s46, s46, {FSH}")
    E(f"    s_lshl_b32 s47, s41, {FSH}")
    if P1W:
        E(f"    v_mov_b32 v52, {XCH_OFF}")
        E("    s_cmp_lg_u32 s3, 0")
        E("    s_cbranch_scc1 p1_bar")
        E("    s_mov_b32 exec_hi, 0")
        E(f"    s_mov_b32 s93, {NF}")
        if PS0:
            E(f"    s_sleep {PS0}")
        E("p1_l:")
        E(f"    buffer_load_dwordx2 v[{PA}:{PA+1}], v{VL8}, s[56:59], s46 offen {KSC}")
        E("    s_waitcnt vmcnt(0)")
        E(f"    v_cmp_ne_u64 vcc, s[4:5], v[{PA}:{PA+1}]")
        E("    s_cmp_eq_u64 vcc, 0")
        E("    s_cbranch_scc1 p1_ok")
        E("    s_mov_b64 exec, vcc")
        E(f"    s_sleep {int(os.environ.get('PSK', '2'))}")
        E("    s_sub_u32 s93, s93, 1")
        E("    s_cmp_lg_u32 s93, 0")
        E("    s_cbranch_scc1 p1_l")
        E("p1_ok:")
        E("    s_mov_b64 exec, -1")
        E("    v_mov_b32 v53, s93")
        E("    ds_write_b32 v52, v53")
        E("    s_waitcnt lgkmcnt(0)")
        E("p1_bar:")
        E("    s_barrier")
        E("    ds_read_b32 v53, v52")
        E("    s_waitcnt lgkmcnt(0)")
        E("    v_readfirstlane_b32 s93, v53")
        E("    s_cmp_lg_u32 s93, 0")
        E("    s_cbranch_scc1 pk_fast")
        NF = 1
    E("    s_mov_b32 exec_hi, 0")
    E("pk_l:")
    E(f"    buffer_load_dwordx2 v[{PA}:{PA+1}], v{VL8}, s[56:59], s46 offen {KSC if not P1W else 'sc0 sc1'}")
    E("    s_waitcnt vmcnt(0)")
    E(f"    v_cmp_ne_u64 vcc, s[4:5], v[{PA}:{PA+1}]")
    E("    s_cmp_eq_u64 vcc, 0")
    E("    s_cbranch_scc1 pk_fast")
    E(f"    s_cmp_gt_u32 s92, {POLL_LIMIT - NF}")
    E("    s_cbranch_scc1 pk_next")
    E("    s_cmp_lg_u32 s28, 0")
    E("    s_cbranch_scc1 pk_sb")
    E("    s_mov_b64 exec, -1")
    slow_stores()
    E("    s_waitcnt vmcnt(0)")
    flag_store(vm, "s49")
    E("    s_mov_b32 s28, 1")
    E("    s_mov_b32 exec_hi, 0")
    E("pk_sb:")
    E(f"    buffer_load_dwordx2 v[{PA}:{PA+1}], v{VL8}, s[56:59], s47 offen sc0 sc1")
    E("    s_waitcnt vmcnt(0)")
    E(f"    v_cmp_ne_u64 vcc, s[90:91], v[{PA}:{PA+1}]")
    E("    s_cmp_eq_u64 vcc, 0")
    E("    s_cbranch_scc1 pk_join")
    E("pk_next:")
    E(f"    s_sleep {int(os.environ.get('PSK', '2'))}")
    E("    s_sub_u32 s92, s92, 1")
    E("    s_cmp_lg_u32 s92, 0")
    E("    s_cbranch_scc1 pk_l")
    E("    s_branch pk_join")
    E("pk_fast:")
    E(f"    s_add_u32 s20, s20, {WS_KVA - WS_KVR}")
    E("    s_addc_u32 s21, s21, 0")
    E("    s_and_b32 s21, s21, 0xffff")
    E("pk_join:")
    E("    s_mov_b64 exec, -1")
    stampval(21, "s92", vm)
    stamp(4, vm)
    E("    buffer_load_dwordx4 v[28:31], v6, s[20:23], 0 offen")
    E("    buffer_load_dwordx4 v[32:35], v6, s[20:23], 0 offen offset:2048")
    E("    v_mov_b32 v246, v13")
    if RP >= 0:
        for j in range(8):
            E(f"    v_mov_b32 v{56+j}, v{104+j}")
    E("    s_waitcnt vmcnt(1)")
    E(f"    ds_write_b128 v8, v[28:31] offset:{KV_OFF}")
    E("    s_waitcnt vmcnt(0)")
    E(f"    ds_write_b128 v8, v[32:35] offset:{KV_OFF + 32*KVP}")
    if RP == -1:
        slow_stores()
    if WB == 2:
        E("    s_xor_b32 s36, s50, 7")
        E("    s_or_b32 s36, s36, s3")
        E("    s_cmp_lg_u32 s36, 0")
        E("    s_cbranch_scc1 wb_no")
        E("    buffer_wbl2 sc1")
        E("wb_no:")
    stamp(10)
    vm.q = []
    E("    s_waitcnt lgkmcnt(0)")
    E("    s_barrier")
    stamp(5)
    if CX == 5:
        E("    s_waitcnt vmcnt(0)")
        E("    s_endpgm")
    TR, BR, ACC = 64, 96, 144
    KD, KR, DD = 32, 16, 48
    A0E, A0O, A1E, A1O = ACC, ACC + 16, ACC + 32, ACC + 48

    def tr(d, hi):
        return TR + 8 * (d % 4) + 4 * hi

    def br(d, c, q):
        return BR + 16 * (d % 3) + 8 * c + 4 * q

    def rd(r, a, off):
        return f"    ds_read_b128 v[{r}:{r+3}], v{a} offset:{off}"

    def ra(r, a, t3):
        return f"    ds_read2_b64 v[{r}:{r+3}], v{a} offset0:{4*t3} offset1:{4*t3+1}"

    def reads(d):
        return [[ra(tr(d, 0), 10, 2 * d + 3)],
                [rd(br(d, 1, 0), 15, KVP * d + 32)],
                [f"    v_add_u32 v13, {KVP*d}, v11", "    v_min_u32 v13, v13, v12", rd(br(d, 0, 0), 13, 32)],
                [rd(br(d, 1, 1), 15, KVP * d)],
                [ra(tr(d, 1), 14, 2 * d + 3)],
                [rd(br(d, 0, 1), 13, 0)]]

    def merge(d, hi):
        return [f"    v_mov_b32_dpp v{tr(d-1, hi)+j}, v{tr(d, hi)+j} quad_perm:[0,1,2,3] row_mask:0x5 bank_mask:0xf"
                for j in range(4)]

    if CW:
        E("    s_mov_b32 s92, 64")
        E("cw_l:")
        E("    s_memrealtime s[36:37]")
        E("    s_waitcnt lgkmcnt(0)")
        E("    s_sub_u32 s36, s36, s90")
        E(f"    s_cmp_gt_u32 s36, {CW}")
        E("    s_cbranch_scc1 cw_d")
        E("    s_sleep 2")
        E("    s_sub_u32 s92, s92, 1")
        E("    s_cmp_lg_u32 s92, 0")
        E("    s_cbranch_scc1 cw_l")
        E("cw_d:")
    for jq in range(4):
        E(f"    ds_read_b64 v[{KR+2*jq}:{KR+2*jq+1}], v5 offset:{16*(3-jq)}")
    E(ra(tr(-1, 0), 10, 1))
    E(ra(tr(-1, 1), 14, 1))
    for d in range(2):
        for g in reads(d):
            for t in g:
                E(t)
    kd = [f"    v_lshlrev_b32 v{DD}, 16, v9"]
    for jq in range(4):
        k0 = KD + 4 * jq
        kd += [f"    v_and_b32 v{k0}, s40, v{KR+1+2*jq}",
               f"    v_lshlrev_b32 v{k0+1}, 16, v{KR+1+2*jq}",
               f"    v_and_b32 v{k0+2}, s40, v{KR+2*jq}",
               f"    v_lshlrev_b32 v{k0+3}, 16, v{KR+2*jq}"]
        kd += [f"    v_mul_f32 v{k0+e_}, v{k0+e_}, v{DD}" for e_ in range(4)]
        kd += [f"    v_cvt_pk_bf16_f32 v{k0+e_}, 0, v{k0+e_}" for e_ in range(4)]
    kd += ["    v_lshlrev_b32 v7, 4, v1",
           "    s_lshl_b32 s36, s32, 12",
           "    s_add_u32 s37, s36, s35",
           "    v_add_u32 v50, s37, v7",
           "    s_xor_b32 s36, s36, 4096",
           "    s_add_u32 s37, s36, s35",
           "    v_add_u32 v51, s37, v7",
           "    s_lshl_b32 s37, s32, 11",
           "    s_add_u32 s36, s37, s35",
           f"    s_add_u32 s36, s36, {STG_OFF}",
           "    v_lshlrev_b32 v6, 6, v3",
           "    v_lshl_add_u32 v6, v4, 3, v6",
           "    v_add_u32 v6, s36, v6",
           "    v_add_u32 v8, s36, v7"]
    for d in range(16):
        E(f"    s_waitcnt lgkmcnt({6 if d < 15 else 0})")
        nx = reads(d + 2) if d + 2 < 16 else [[] for _ in range(6)]
        seq = [(A1E, tr(d, 0), br(d, 1, 0)), (A0E, tr(d, 0), br(d, 0, 0)), (A1O, tr(d - 1, 0), br(d, 1, 1)),
               (A1E, tr(d, 1), br(d, 0, 0)), (A0O, tr(d - 1, 0), br(d, 0, 1)), (A1O, tr(d - 1, 1), br(d, 0, 1))]
        for m_, (a, x, y) in enumerate(seq):
            c = "0" if d == 0 and m_ not in (3, 5) else f"v[{a}:{a+15}]"
            E(f"    v_mfma_f32_32x32x16_bf16 v[{a}:{a+15}], v[{x}:{x+3}], v[{y}:{y+3}], {c}")
            if m_ < 2:
                for t in merge(d, m_):
                    E(t)
            for t in nx[m_]:
                E(t)
            if d >= 1 and m_ >= 2:
                for _ in range(2):
                    if kd:
                        E(kd.pop(0))
        if d == 0 and WD_AT == "conv":
            wd_touch(60)
    assert not kd
    stamp(6)
    if CX == 6:
        E("    s_waitcnt vmcnt(0)")
        E("    s_endpgm")

    def fold(dst, e_, o_):
        for j in range(0, 16, 2):
            P2("add", dst + j, e_ + j, o_ + (j + 8) % 16, pk=PKC)

    def send(e_, o_, ke, ko):
        fold(80, e_, o_)
        for jq in range(4):
            E(f"    ds_write_b128 v50, v[{80+4*jq}:{80+4*jq+3}] offset:{XCH_OFF + 1024*jq}")
        fold(64, ke, ko)

    E("    s_cmp_eq_u32 s32, 0")
    E("    s_cbranch_scc1 conv_hw0")
    E("    s_nop 7")
    send(A0E, A0O, A1E, A1O)
    E("    s_branch conv_x")
    E("conv_hw0:")
    E("    s_nop 15")
    E("    s_nop 3")
    send(A1E, A1O, A0E, A0O)
    E("conv_x:")
    E("    s_waitcnt lgkmcnt(0)")
    E("    s_barrier")
    for jq in range(4):
        E(f"    ds_read_b128 v[{80+4*jq}:{80+4*jq+3}], v51 offset:{XCH_OFF + 1024*jq}")
    vm.q = ["pf", "pf"]
    for jq in range(4):
        y = 64 + 4 * jq
        E(f"    s_waitcnt lgkmcnt({3 if jq else 3})" if jq == 0 else f"    s_waitcnt lgkmcnt(3)")
        for e_ in (0, 2):
            P2("add", y + e_, y + e_, 80 + 4 * jq + e_, pk=PKC)
        for e_ in range(4):
            rnd(y + e_)
        for e_ in (0, 2):
            P2("add", y + e_, y + e_, KD + 4 * jq + e_, pk=PKC)
        E(f"    v_cvt_pk_bf16_f32 v{110+2*jq}, v{y}, v{y+1}")
        E(f"    v_cvt_pk_bf16_f32 v{111+2*jq}, v{y+2}, v{y+3}")
        E(f"    ds_write_b64 v6, v[{110+2*jq}:{111+2*jq}] offset:{16*jq}")
    E("    s_waitcnt lgkmcnt(0)")
    E("    ds_read_b128 v[104:107], v8")
    E("    ds_read_b128 v[108:111], v8 offset:1024")
    E("    s_waitcnt lgkmcnt(1)")
    E("    buffer_store_dwordx4 v[104:107], v7, s[24:27], s37 offen sc0 sc1")
    E("    s_waitcnt lgkmcnt(0)")
    E("    buffer_store_dwordx4 v[108:111], v7, s[24:27], s37 offen offset:1024 sc0 sc1")
    vm.issue("yst")
    vm.issue("yst")
    stamp(7, vm)
    E("    s_lshl_b32 s36, s32, 12")
    E("    s_lshl_b32 s37, s30, 3")
    E("    s_add_u32 s47, s36, s37")
    E(f"    s_add_u32 s47, s47, {FY_OFF}")
    E("    s_waitcnt vmcnt(0)")
    flag_store(vm, "s47")
    stamp(8)
    if WB == 1:
        E("    s_or_b32 s36, s50, s3")
        E("    s_cmp_lg_u32 s36, 0")
        E("    s_cbranch_scc1 k_done")
        E("    buffer_wbl2 sc1")
    if RP == -3:
        E("    s_endpgm")
        return
    E("    s_cmp_lg_u32 s28, 0")
    E("    s_cbranch_scc1 k_done")
    if RP == -2:
        E("    v_mov_b32 v13, v246")
        E("    buffer_load_dwordx4 v[104:107], v13, s[12:15], s48 offen sc0 sc1")
        E("    buffer_load_dwordx4 v[108:111], v13, s[12:15], s43 offen sc0 sc1")
        E("    s_waitcnt vmcnt(0)")
        slow_stores()
        E("    s_waitcnt vmcnt(0)")
    flag_store(vm, "s49")
    E("    s_endpgm")


def gen_phase_c():
    vm = VM()
    vm.q = ["hst"] + (["stamp"] if DIAG else [])
    WT = 48
    XT = 232
    NT = 72
    ACC = 88
    HB0 = [152 + 8 * j for j in range(8)] + [64]
    NH = int(os.environ.get("NH", "9"))
    NK = 22
    YSLOT = 0
    RSL = 2
    global VL8
    VL8_saved = VL8
    VL8 = 15
    E("phase_c:")
    E("    v_lshrrev_b32 v3, 5, v1")
    E("    v_and_b32 v5, 15, v1")
    if MAP:
        E("    s_mov_b32 s30, s4")
    else:
        E("    s_lshl_b32 s30, s30, 1")
        E("    s_lshr_b32 s35, s31, 3")
        E("    s_add_u32 s30, s30, s35")
    E("    s_and_b32 s31, s33, 7")
    E("    s_and_b32 s32, s3, 1")
    E("    s_lshr_b32 s33, s3, 1")
    for i in range(NW0):
        if 1 <= i <= NWE:
            continue
        for f in wdma_ops(vm, i):
            f()
    E("    s_lshl_b32 s35, s30, 1")
    E("    s_add_u32 s35, s35, s32")
    E(f"    v_lshlrev_b32 v15, {3+FSH}, v1")
    E("    v_lshrrev_b32 v6, 2, v5")
    E("    v_lshl_add_u32 v6, v3, 3, v6")
    E("    v_lshlrev_b32 v11, 7, v6")
    E("    v_bfe_u32 v6, v1, 4, 1")
    E("    v_lshlrev_b32 v6, 5, v6")
    E("    v_and_b32 v7, 3, v5")
    E("    v_lshl_add_u32 v6, v7, 3, v6")
    E("    v_bfe_u32 v7, v1, 3, 1")
    E("    v_lshlrev_b32 v7, 6, v7")
    E("    v_xor_b32 v6, v6, v7")
    E("    v_add_u32 v11, v11, v6")
    E("    v_add_u32 v11, s37, v11")
    if OWN:
        E("    s_lshl_b32 s38, s33, 6")
        E("    v_xor_b32 v11, s38, v11")
    E("    v_xor_b32 v12, 64, v11")
    E(f"    v_add_u32 v17, {HI}, v11")
    E(f"    v_add_u32 v18, {HI}, v12")
    srd_off(20, 88, 89, WS_H, H_BYTES)
    srd_off(44, 88, 89, WS_YT, S * D * 2)
    srd(52, 84, 85, S * D * 2)
    E("    s_lshr_b32 s49, s30, 4")
    E("    s_lshl_b32 s49, s49, 12")
    E("    s_lshl_b32 s38, s31, 9")
    E("    s_add_u32 s49, s49, s38")
    E("    s_lshl_b32 s38, s33, 8")
    E("    s_add_u32 s49, s49, s38")
    E(f"    s_add_u32 s49, s49, {FY_OFF}")
    E("    v_lshrrev_b32 v0, 2, v1")
    E("    v_lshlrev_b32 v0, 12, v0")
    E("    v_and_b32 v7, 3, v1")
    E("    v_lshl_add_u32 v0, v7, 4, v0")
    E("    s_lshl_b32 s38, s31, 1")
    E("    s_add_u32 s38, s38, s33")
    E("    s_lshl_b32 s38, s38, 17")
    E("    s_lshl_b32 s48, s35, 6")
    E("    s_add_u32 s48, s48, s38")
    E("    v_lshrrev_b32 v7, 2, v5")
    E("    v_lshl_add_u32 v7, v3, 2, v7")
    E("    v_lshlrev_b32 v14, 6, v7")
    E("    v_bfe_u32 v7, v1, 4, 1")
    E("    v_lshl_add_u32 v14, v7, 5, v14")
    E("    v_and_b32 v7, 3, v5")
    E("    v_lshl_add_u32 v14, v7, 3, v14")
    E("    v_add_u32 v14, s37, v14")
    E(f"    s_mul_i32 s42, s30, {2*HB}")
    E("    s_lshl_b32 s38, s51, 10")
    E("    s_add_u32 s42, s42, s38")
    E("    s_mov_b32 s29, s42")
    if REV:
        E("    s_lshl_b32 s38, s33, 10")
        E("    s_sub_u32 s42, s42, s38")
        E("    s_add_u32 s42, s42, 18*1024")
    E(f"    s_add_u32 s43, s42, {HB}")
    E("    s_mov_b32 s38, s42")
    E("    s_cmp_eq_u32 s32, 1")
    E("    s_cselect_b32 s42, s43, s42")
    E("    s_cselect_b32 s43, s38, s43")
    E("    s_lshl_b32 s36, s30, 8")
    E(f"    s_add_u32 s36, s36, {FH_OFF}")
    masks = []
    for lo, hi in (((0, 3), (4, 7), (8, 11), (11, 15)) if MAP == 2 else ((0, 3), (3, 7), (7, 10), (10, 15))):
        m16 = ((1 << (hi + 1)) - 1) & ~((1 << lo) - 1)
        masks.append(m16 | (m16 << 16))
    E(f"    s_mov_b32 s50, {masks[0]:#x}")
    for w in range(1, 4):
        E(f"    s_cmp_eq_u32 s3, {w}")
        E(f"    s_cselect_b32 s50, {masks[w]:#x}, s50")
    E("    s_mov_b32 s51, 0")
    E("    s_mul_i32 s38, s31, 44")
    E("    v_add_u32 v6, s38, v1")
    E("    v_cmp_le_u32 vcc, 176, v6")
    E("    v_subrev_u32 v7, 176, v6")
    E("    v_cndmask_b32 v6, v6, v7, vcc")
    E("    s_cmp_lt_u32 s3, 2")
    E("    s_cselect_b32 s38, 8, 0")
    E("    s_add_u32 s38, s38, 167")
    E("    v_min_u32 v6, s38, v6")
    E("    v_lshlrev_b32 v6, 7, v6")
    E(f"    v_mov_b32 v7, {HB}")
    E("    v_cndmask_b32 v7, 0, v7, vcc")
    E("    v_add_u32 v6, v6, v7")
    hreg = {}

    def hload(i, r):
        hreg[i] = r
        if REV:
            if i % 4 == 0 and i:
                E(f"    s_sub_u32 s42, s42, {4096 if i < 20 else 2048}")
                E(f"    s_sub_u32 s43, s43, {4096 if i < 20 else 2048}")
            off = (3 - i % 4) * 1024 if i < 20 else (21 - i) * 1024
            if i == NK - 1:
                E("    s_lshl_b32 s38, s33, 10")
                E("    s_add_u32 s42, s42, s38")
                E("    s_add_u32 s43, s43, s38")
        else:
            if i % 4 == 0 and i:
                E("    s_add_u32 s42, s42, 4096")
                E("    s_add_u32 s43, s43, 4096")
            off = (i % 4) * 1024
            if i == NK - 1:
                assert off == 1024
                E("    s_cmp_lt_u32 s3, 2")
                E("    s_cselect_b32 s38, 1024, 0")
                E("    s_add_u32 s42, s42, s38")
                E("    s_add_u32 s43, s43, s38")
                off = 0
        for e_ in range(2):
            E(f"    buffer_load_dwordx4 v[{r+4*e_}:{r+4*e_+3}], v8, s[20:23], s{42+e_} offen offset:{off}")
            vm.issue(("h", i))

    def early():
        vm.wait("el")
        E("    s_mov_b64 exec, s[34:35]")
        E(f"    v_cmp_ne_u64 vcc, s[90:91], v[{PB}:{PB+1}]")
        E("    s_mov_b64 exec, -1")
        E("    s_cmp_eq_u64 vcc, 0")
        E("    s_cbranch_scc1 el_ok")
        q = list(vm.q)
        poll(vm, "s36", "s[34:35]")
        vm.q = q
        E("el_ok:")
        for i in range(NE):
            hload(i, HB0[i])

    if NE:
        E("    s_lshl_b32 s34, s3, 2")
        E("    s_lshl_b32 s34, 0x80008, s34")
        E("    s_mov_b32 s35, 0")
        E(f"    s_lshl_b32 s93, s36, {FSH}")
        E("    s_mov_b64 exec, s[34:35]")
        E(f"    buffer_load_dwordx2 v[{PB}:{PB+1}], v{VL8}, s[56:59], s93 offen sc0 sc1")
        E("    s_mov_b64 exec, -1")
        vm.issue("el")

    def xn_tile():
        T = ACC
        for d in range(8):
            E(f"    v_lshlrev_b32 v{T+2*d}, 16, v{XT+d}")
            E(f"    v_and_b32 v{T+2*d+1}, s40, v{XT+d}")
        for j in range(16):
            E(f"    v_add_f32 v{T+j}, v{T+j}, v{GR2}")
        for j in range(16):
            E(f"    v_cvt_pk_bf16_f32 v{T+j}, 0, v{T+j}")
        for j in range(16):
            E(f"    v_mul_f32 v{T+j}, v{T+j}, v{GR2+1}")
        for d in range(8):
            E(f"    v_cvt_pk_bf16_f32 v{NT+d}, v{T+2*d}, v{T+2*d+1}")

    if XNE:
        xn_tile()
    vm.wait("hst")
    flag_store(vm, "s39")
    if GP3AT == 0:
        E(f"    s_setprio {GPRIO3}")
    stamp(10, vm)
    if NE and EAT == 0:
        early()
    for i in range(NW0, 10):
        for f in wdma_ops(vm, i):
            f()
    if not XNE:
        xn_tile()
    for i in range(NPRE):
        vm.wait(("w", i))
        wread(WREG[i], i)
    for i in range(NPRE):
        E(f"    s_waitcnt lgkmcnt({min(15, 4*(NPRE-1-i))})")
        for f in wdma_ops(vm, 10 + i):
            f()
    if NE and EAT == 1:
        early()
    if GP3AT == 1:
        E(f"    s_setprio {GPRIO3}")
    stamp(11, vm)
    if PP:
        poll2(vm, "s36", "s[50:51]")
    else:
        poll(vm, "s36", "s[50:51]")
    stampval(21, "s92", vm)
    stamp(12, vm)
    if GP4 == 0:
        E("    s_setprio 3")

    if int(os.environ.get("HT", "1")):
        E("    s_mov_b32 exec_hi, 0xfff")
        E("    buffer_load_dword v7, v6, s[20:23], s29 offen")
        E("    s_mov_b64 exec, -1")
        vm.issue("pf")
    for i in range(NE, NH):
        hload(i, HB0[i])
    hn = NH

    def wsrc(i):
        return WREG[i] if i < NPRE else WT + 8 * (i % 2)

    def y_dma():
        for j in range(2):
            E(f"    s_add_u32 s38, s48, {16*4096*j}")
            E(f"    s_add_u32 m0, s37, {YSLOT*8192 + 1024*j}")
            E("    s_nop 0")
            E("    buffer_load_dwordx4 v0, s[44:47], s38 offen lds")

    FYC = int(os.environ.get("FYC", "16"))
    for i in range(NK):
        if i == NK - 1:
            E("    s_cmp_ge_u32 s3, 2")
            E("    s_cbranch_scc1 pc_skip")
        vm.wait(("h", i))
        if GP4 == i + 1:
            E("    s_setprio 3")
        if i in (0, 4, 8):
            stamp({0: 2, 4: 29, 8: 30}[i], vm)
        if i >= NPRE:
            E("    s_waitcnt lgkmcnt(0)")
        if NPRE <= i + 1 < NK:
            vm.wait(("w", i + 1))
            wread(WT + 8 * ((i + 1) % 2), wslot(i + 1))
        h = hreg[i]
        w = wsrc(i)
        for wd in range(2):
            for wm in range(2):
                a = ACC + 16 * (2 * wd + wm)
                c = "0" if i == 0 else f"v[{a}:{a+15}]"
                E(f"    v_mfma_f32_32x32x16_bf16 v[{a}:{a+15}], v[{w+4*wd}:{w+4*wd+3}], v[{h+4*wm}:{h+4*wm+3}], {c}")
        for r in [h] + ([w] if i < NPRE else []):
            if hn < NK:
                hload(hn, r)
                hn += 1
        if NPRE <= i < 10:
            for f in wdma_ops(vm, i + 10):
                f()
        if i in (11, 12):
            for f in wdma_ops(vm, i + 9):
                f()
        if i == FYI:
            E(f"    s_lshl_b32 s93, s49, {FSH}")
            E("    s_mov_b32 exec_hi, 0")
            E(f"    buffer_load_dwordx2 v[{PA}:{PA+1}], v{VL8}, s[56:59], s93 offen sc0 sc1")
            E("    s_mov_b64 exec, -1")
            vm.issue("fy")
        if i == FYC:
            vm.wait("fy")
            E("    s_mov_b32 exec_hi, 0")
            E(f"    v_cmp_ne_u64 vcc, s[90:91], v[{PA}:{PA+1}]")
            E("    s_mov_b64 exec, -1")
            E("    s_cmp_eq_u64 vcc, 0")
            E("    s_cselect_b32 s28, 1, 0")
            E("    s_cbranch_scc0 fy_no")
            y_dma()
            E("fy_no:")
            stamp(14, vm)
    E("pc_skip:")
    stamp(13)
    E("    s_waitcnt vmcnt(0) lgkmcnt(0)")
    YR = 32
    PS = 152
    RS = 216
    TT = 64
    for a in range(1, 4):
        E(f"    s_xor_b32 s36, s3, {a}")
        E("    s_lshl_b32 s38, s36, 14")
        E("    s_add_u32 s38, s38, s37")
        E(f"    v_add_u32 v{8+a}, s38, v8")
        E("    s_lshl_b32 s36, s36, 11")
        E("    s_lshl_b32 s38, s3, 14")
        E("    s_add_u32 s38, s38, s36")
        E(f"    v_add_u32 v{15+a}, s38, v8")

    def y_read():
        for q in range(4):
            E(f"    ds_read_b64_tr_b16 v[{YR+2*q}:{YR+2*q+1}], v14 offset:{YSLOT*8192 + q*512}")

    def acc_out(fill):
        per = (len(fill) + 10) // 11
        for a in range(1, 4):
            for jq in range(4):
                r = ACC + 16 * a + 4 * jq
                E(f"    ds_write_b128 v{8+a}, v[{r}:{r+3}] offset:{(RSL + jq//2)*8192 + (jq%2)*1024}")
                if fill and a == 1 and jq == 0:
                    E("    s_waitcnt lgkmcnt(1)")
                for _ in range(per):
                    if fill:
                        E(fill.pop(0))
        assert not fill
        E("    s_waitcnt lgkmcnt(0)")
        E("    s_barrier")
        for a in range(1, 4):
            for jq in range(4):
                r = PS + 16 * a + 4 * jq
                E(f"    ds_read_b128 v[{r}:{r+3}], v{15+a} offset:{(RSL + jq//2)*8192 + (jq%2)*1024}")

    def a_term():
        o = []
        for q in range(4):
            t = TT
            xs = [RS + 4 * q + e_ for e_ in range(4)]
            ns = [t + e_ for e_ in range(4)]
            ys = [t + 4 + e_ for e_ in range(4)]
            for (dst, src) in ((xs, XT + 2 * q), (ns, NT + 2 * q), (ys, YR + 2 * q)):
                o.append(f"    v_lshlrev_b32 v{dst[0]}, 16, v{src}")
                o.append(f"    v_and_b32 v{dst[1]}, s40, v{src}")
                o.append(f"    v_lshlrev_b32 v{dst[2]}, 16, v{src+1}")
                o.append(f"    v_and_b32 v{dst[3]}, s40, v{src+1}")
            for e_ in (0, 2):
                o.append(f"    v_pk_mul_f32 v[{ns[e_]}:{ns[e_]+1}], v[{ns[e_]}:{ns[e_]+1}], v[{ys[e_]}:{ys[e_]+1}]")
            for e_ in range(4):
                o.append(f"    v_cvt_pk_bf16_f32 v{ns[e_]}, 0, v{ns[e_]}")
            for e_ in (0, 2):
                o.append(f"    v_pk_add_f32 v[{xs[e_]}:{xs[e_]+1}], v[{xs[e_]}:{xs[e_]+1}], v[{ns[e_]}:{ns[e_]+1}]")
            for e_ in range(4):
                o.append(f"    v_cvt_pk_bf16_f32 v{xs[e_]}, 0, v{xs[e_]}")
        return o

    def b_sum():
        E("    s_waitcnt lgkmcnt(8)")
        for j in range(0, 16, 2):
            E(f"    v_pk_add_f32 v[{PS+j}:{PS+j+1}], v[{ACC+j}:{ACC+j+1}], v[{PS+16+j}:{PS+16+j+1}]")
        E("    s_waitcnt lgkmcnt(0)")
        for j in range(0, 16, 2):
            E(f"    v_pk_add_f32 v[{PS+32+j}:{PS+32+j+1}], v[{PS+32+j}:{PS+32+j+1}], v[{PS+48+j}:{PS+48+j+1}]")
        for j in range(0, 16, 2):
            E(f"    v_pk_add_f32 v[{PS+j}:{PS+j+1}], v[{PS+j}:{PS+j+1}], v[{PS+32+j}:{PS+32+j+1}]")
        for j in range(16):
            E(f"    v_cvt_pk_bf16_f32 v{PS+j}, 0, v{PS+j}")

    E("    s_cmp_eq_u32 s28, 0")
    E("    s_cbranch_scc1 fin_slow")
    y_read()
    acc_out(a_term())
    b_sum()
    E("    s_branch fin_out")
    E("fin_slow:")
    acc_out([])
    b_sum()
    if 'g' not in os.environ.get('XP', '') and not CX:
        poll(vm, "s49", "0xffffffff")
    stamp(15)
    y_dma()
    E("    s_waitcnt vmcnt(0)")
    y_read()
    E("    s_waitcnt lgkmcnt(0)")
    for t in a_term():
        E(t)
    E("fin_out:")
    for jq in range(4):
        a = PS + 4 * jq
        xs = [RS + 4 * jq + e_ for e_ in range(4)]
        for e_ in (0, 2):
            E(f"    v_pk_add_f32 v[{xs[e_]}:{xs[e_]+1}], v[{xs[e_]}:{xs[e_]+1}], v[{a+e_}:{a+e_+1}]")
        o = TT + 2 * jq
        E(f"    v_cvt_pk_bf16_f32 v{o}, v{xs[0]}, v{xs[1]}")
        E(f"    v_cvt_pk_bf16_f32 v{o+1}, v{xs[2]}, v{xs[3]}")
        E(f"    buffer_store_dwordx2 v[{o}:{o+1}], v23, s[52:55], 0 offen offset:{16*jq}")
    if DIAG or LITE:
        E("    s_waitcnt vmcnt(0)")
    stamp(31)
    E("    s_endpgm")
    VL8 = VL8_saved


def gen_kernel():
    E(f".globl {KNAME}")
    E(".p2align 8")
    E(f".type {KNAME},@function")
    E(f"{KNAME}:")
    E("    s_cmp_ge_u32 s2, 512")
    E("    s_cbranch_scc1 k_done")
    E("    s_load_dwordx16 s[64:79], s[0:1], 0")
    E("    s_load_dwordx8 s[80:87], s[0:1], 64")
    E("    s_load_dwordx2 s[88:89], s[0:1], 96")
    E("    s_memrealtime s[90:91]")
    E("    s_mov_b32 s40, 0xffff0000")
    E("    v_and_b32 v1, 63, v0")
    E("    v_lshrrev_b32 v2, 6, v0")
    E(f"    v_lshlrev_b32 v{VL8}, {3+FSH}, v1")
    E("    v_readfirstlane_b32 s3, v2")
    E("    s_waitcnt lgkmcnt(0)")
    stamp_init()
    stamp(0)
    srd_off(56, 88, 89, WS_FLAG, FLAG_BYTES)
    srd(60, 86, 87, 256)
    E("    s_cmp_lt_u32 s2, 256" if CFIRST else "    s_cmp_ge_u32 s2, 256")
    E("    s_cbranch_scc1 c_type")
    gen_gtype()
    gen_ctype()
    E("k_done:")
    E("    s_endpgm")


def main():
    hdr = open("parallel_sum__ssm_conv_h3__glu_gated_bilinear__prompt.s.ref").read().splitlines()
    for l in hdr:
        if l.startswith("; Override") or l.startswith("; grid=") or l.startswith("; @launch"):
            continue
        if not l.startswith(";"):
            break
        E(l)
    E(f"; @launch grid=(512,1,1) block=(256,1,1) lds={LDS_BYTES}")
    E('.amdgcn_target "amdgcn-amd-amdhsa--gfx950"')
    E(".text")
    gen_kernel()
    E('.section .rodata,"a"')
    E(".p2align 6")
    E(f".amdhsa_kernel {KNAME}")
    E("  .amdhsa_next_free_vgpr 256")
    E("  .amdhsa_next_free_sgpr 102")
    E("  .amdhsa_accum_offset 256")
    E("  .amdhsa_group_segment_fixed_size 0")
    E("  .amdhsa_kernarg_size 104")
    E("  .amdhsa_user_sgpr_count 2")
    E("  .amdhsa_user_sgpr_kernarg_segment_ptr 1")
    E("  .amdhsa_system_sgpr_workgroup_id_x 1")
    E(".end_amdhsa_kernel")
    path = sys.argv[1] if len(sys.argv) > 1 else "fused.s"
    open(path, "w").write("\n".join(out) + "\n")
    print("wrote", path, len(out), "lines")


main()
```

```python
import sys, os

S, D, F = 2048, 512, 1376
WS_XN = 0x000000
WS_KVR = 0x200000
WS_H = 0x400000
WS_YT = 0xA00000
WS_FLAG = 0xC00000
WS_KVA = 0xE00000
FX_OFF = 0x0000
FK_OFF = 0x2000
FH_OFF = 0x4000
FY_OFF = 0x6000
FSH = int(os.environ.get("FSH", "4"))
FG_OFF = 0x8000
FLAG_BYTES = 0x9000 << FSH
HS = int(os.environ.get("HS", "10"))
HB = 86 * 1024
H_BYTES = 64 * HB
KNAME = "parallel_sum__ssm_conv_h3__glu_gated_bilinear__prompt_kernel"
POLL_LIMIT = 200000

out = []


def E(s=""):
    out.append(s)


class VM:
    def __init__(self):
        self.q = []

    def issue(self, tag):
        self.q.append(tag)

    def wait(self, tag):
        idx = -1
        for i, t in enumerate(self.q):
            if t == tag:
                idx = i
        if idx < 0:
            return
        n = len(self.q) - 1 - idx
        assert n <= 63, n
        E(f"    s_waitcnt vmcnt({n})")
        self.q = self.q[idx + 1:]

    def wait_all(self):
        E("    s_waitcnt vmcnt(0)")
        self.q = []


DIAG = len(sys.argv) > 2 and sys.argv[2] == "diag"
LITE = len(sys.argv) > 2 and sys.argv[2] == "lite"
STAMP_WS = 0x2000000


def stamp_init():
    if not (DIAG or LITE):
        return
    E(f"    s_add_u32 s96, s88, {STAMP_WS}")
    E("    s_addc_u32 s97, s89, 0")
    E("    s_and_b32 s97, s97, 0xffff")
    E("    s_mov_b32 s98, 0x80000")
    E("    s_mov_b32 s99, 0x00020000")
    E("    s_lshl_b32 s100, s2, 2")
    E("    s_add_u32 s100, s100, s3")
    E("    s_lshl_b32 s100, s100, 7")
    E("    v_mov_b32 v254, s100")


def stamp(slot, vm=None):
    if not (DIAG or (LITE and (slot in (0, 31) or (slot == 8 and vm is None)))):
        return
    E("    s_waitcnt lgkmcnt(0)")
    E("    s_memrealtime s[100:101]")
    E("    s_waitcnt lgkmcnt(0)")
    E("    v_mov_b32 v255, s100")
    E("    s_mov_b64 s[94:95], exec")
    E("    s_mov_b64 exec, 1")
    E(f"    buffer_store_dword v255, v254, s[96:99], 0 offen offset:{4*slot}")
    E("    s_mov_b64 exec, s[94:95]")
    if vm is not None:
        vm.issue("stamp")


def stampclk(slot, vm=None):
    if not DIAG:
        return
    E("    s_waitcnt lgkmcnt(0)")
    E("    s_memtime s[100:101]")
    E("    s_waitcnt lgkmcnt(0)")
    stampval(slot, "s100", vm)


def stampval(slot, sg, vm=None):
    if not DIAG:
        return
    E(f"    v_mov_b32 v255, {sg}")
    E("    s_mov_b64 s[94:95], exec")
    E("    s_mov_b64 exec, 1")
    E(f"    buffer_store_dword v255, v254, s[96:99], 0 offen offset:{4*slot}")
    E("    s_mov_b64 exec, s[94:95]")
    if vm is not None:
        vm.issue("stamp")


def srd(dst, lo, hi, nbytes):
    E(f"    s_mov_b32 s{dst}, s{lo}")
    E(f"    s_and_b32 s{dst+1}, s{hi}, 0xffff")
    E(f"    s_mov_b32 s{dst+2}, {nbytes}")
    E(f"    s_mov_b32 s{dst+3}, 0x00020000")


def srd_off(dst, lo, hi, off, nbytes):
    E(f"    s_add_u32 s{dst}, s{lo}, {off}")
    E(f"    s_addc_u32 s{dst+1}, s{hi}, 0")
    E(f"    s_and_b32 s{dst+1}, s{dst+1}, 0xffff")
    E(f"    s_mov_b32 s{dst+2}, {nbytes}")
    E(f"    s_mov_b32 s{dst+3}, 0x00020000")


def wave_reduce_add(v, t):
    E("    s_nop 1")
    E(f"    v_add_f32_dpp v{t}, v{v}, v{v} quad_perm:[1,0,3,2] row_mask:0xf bank_mask:0xf")
    E("    s_nop 1")
    E(f"    v_add_f32_dpp v{v}, v{t}, v{t} quad_perm:[2,3,0,1] row_mask:0xf bank_mask:0xf")
    E("    s_nop 1")
    E(f"    v_add_f32_dpp v{t}, v{v}, v{v} row_half_mirror row_mask:0xf bank_mask:0xf")
    E("    s_nop 1")
    E(f"    v_add_f32_dpp v{v}, v{t}, v{t} row_mirror row_mask:0xf bank_mask:0xf")
    E(f"    v_mov_b32 v{t}, v{v}")
    E("    s_nop 1")
    E(f"    v_permlane16_swap_b32 v{v}, v{t}")
    E("    s_nop 1")
    E(f"    v_add_f32 v{v}, v{v}, v{t}")
    E(f"    v_mov_b32 v{t}, v{v}")
    E("    s_nop 1")
    E(f"    v_permlane32_swap_b32 v{v}, v{t}")
    E("    s_nop 1")
    E(f"    v_add_f32 v{v}, v{v}, v{t}")


def round_pair(a, b, t, mask_sgpr):
    E(f"    v_cvt_pk_bf16_f32 v{t}, v{a}, v{b}")
    E(f"    v_lshlrev_b32 v{a}, 16, v{t}")
    E(f"    v_and_b32 v{b}, s{mask_sgpr}, v{t}")


PA, PB, TK, VL8 = 248, 250, 252, 247
_lbl = [0]


def token_issue(vm):
    E(f"    buffer_load_dwordx2 v[{TK}:{TK+1}], off, s[60:63], 0")
    vm.issue("tok")


def token_get(vm):
    _lbl[0] += 1
    n = _lbl[0]
    vm.wait("tok")
    E(f"    s_mov_b32 s92, {POLL_LIMIT}")
    E(f"tok_l{n}:")
    E(f"    v_readfirstlane_b32 s90, v{TK}")
    E(f"    v_readfirstlane_b32 s91, v{TK+1}")
    E("    s_cmp_lg_u32 s90, 0")
    E(f"    s_cbranch_scc1 tok_d{n}")
    E(f"    buffer_load_dwordx2 v[{TK}:{TK+1}], off, s[60:63], 0 sc0 sc1")
    E("    s_waitcnt vmcnt(0)")
    E("    s_sub_u32 s92, s92, 1")
    E("    s_cmp_lg_u32 s92, 0")
    E(f"    s_cbranch_scc1 tok_l{n}")
    E(f"tok_d{n}:")


def flag_store(vm, soff):
    E(f"    s_lshl_b32 s93, {soff}, {FSH}")
    E("    s_mov_b64 exec, 1")
    E(f"    buffer_store_dwordx2 v[{TK}:{TK+1}], off, s[56:59], s93 sc0 sc1")
    E("    s_mov_b64 exec, -1")
    vm.issue("flag")


POLL_SLEEP = int(os.environ.get("PS", "4"))


def poll(vm, soff, mask, gap=6):
    _lbl[0] += 1
    n = _lbl[0]
    if mask == "0xffffffff":
        E("    s_mov_b32 exec_hi, 0")
    else:
        E(f"    s_mov_b64 exec, {mask}")
    E(f"    s_mov_b32 s92, {POLL_LIMIT}")
    E(f"    s_lshl_b32 s93, {soff}, {FSH}")
    E(f"poll_l{n}:")
    E(f"    buffer_load_dwordx2 v[{PA}:{PA+1}], v{VL8}, s[56:59], s93 offen sc0 sc1")
    E("    s_waitcnt vmcnt(0)")
    E(f"    v_cmp_ne_u64 vcc, s[90:91], v[{PA}:{PA+1}]")
    E("    s_cmp_eq_u64 vcc, 0")
    E(f"    s_cbranch_scc1 poll_d{n}")
    E("    s_mov_b64 exec, vcc")
    E(f"    s_sleep {POLL_SLEEP}")
    E("    s_sub_u32 s92, s92, 1")
    E("    s_cmp_lg_u32 s92, 0")
    E(f"    s_cbranch_scc1 poll_l{n}")
    E(f"poll_d{n}:")
    E("    s_mov_b64 exec, -1")
    vm.q = []


PP = int(os.environ.get("PP", "0"))
PPS = int(os.environ.get("PPS", "2"))


def poll2(vm, soff, mask):
    _lbl[0] += 1
    n = _lbl[0]
    E(f"    s_mov_b64 exec, {mask}")
    E(f"    s_mov_b32 s92, {POLL_LIMIT}")
    E(f"    s_lshl_b32 s93, {soff}, {FSH}")
    E(f"    buffer_load_dwordx2 v[{PA}:{PA+1}], v{VL8}, s[56:59], s93 offen sc0 sc1")
    E(f"    s_sleep {2*PPS}")
    E(f"poll_l{n}:")
    for a, b in ((PA, PB), (PB, PA)):
        E(f"    buffer_load_dwordx2 v[{b}:{b+1}], v{VL8}, s[56:59], s93 offen sc0 sc1")
        E("    s_waitcnt vmcnt(1)")
        E(f"    v_cmp_ne_u64 vcc, s[90:91], v[{a}:{a+1}]")
        E("    s_cmp_eq_u64 vcc, 0")
        E(f"    s_cbranch_scc1 poll_d{n}")
        E("    s_mov_b64 exec, vcc")
        if PPS:
            E(f"    s_sleep {PPS}")
    E("    s_sub_u32 s92, s92, 1")
    E("    s_cmp_lg_u32 s92, 0")
    E(f"    s_cbranch_scc1 poll_l{n}")
    E(f"poll_d{n}:")
    E("    s_mov_b64 exec, -1")
    vm.q = ["pl"]


TG = int(os.environ.get("TG", "128"))


def w_touch(vm, lo, hi, sr, vt):
    srd(44, lo, hi, D * F * 2)
    E(f"    s_lshl_b32 s38, {sr}, 2")
    E("    s_add_u32 s38, s38, s3")
    E("    s_mul_i32 s38, s38, 4*2752")
    sh = 4 if TG == 128 else 5
    E(f"    v_lshrrev_b32 v{vt}, {sh}, v1")
    E(f"    v_mul_u32_u24 v{vt}, 2752, v{vt}")
    E(f"    v_and_b32 v{vt+1}, {(1 << sh) - 1}, v1")
    E(f"    v_min_u32 v{vt+1}, {12 if TG == 128 else 24}, v{vt+1}")
    E(f"    v_lshlrev_b32 v{vt+1}, {7 if TG == 128 else 6}, v{vt+1}")
    E("    s_and_b32 s93, s2, 1")
    E("    s_mul_i32 s93, s93, 1536")
    E(f"    v_add_u32 v{vt+1}, s93, v{vt+1}")
    E(f"    v_min_u32 v{vt+1}, 2750, v{vt+1}")
    E(f"    v_add_u32 v{vt}, v{vt}, v{vt+1}")
    E(f"    buffer_load_ushort v{vt+1}, v{vt}, s[44:47], s38 offen")
    vm.issue("pf")
    if TG == 64:
        E("    s_add_u32 s38, s38, 2*2752")
        E(f"    buffer_load_ushort v{vt+1}, v{vt}, s[44:47], s38 offen")
        vm.issue("pf")


WS_ST = 0x000000
S_ONE = 6
GPRIO = int(os.environ.get("GPRIO", "3"))
GPRIO2 = int(os.environ.get("GPRIO2", "3"))
GPRIO3 = int(os.environ.get("GPRIO3", "0"))
GP3AT = int(os.environ.get("GP3AT", "1"))
XK = int(os.environ.get("XK", "20"))
NW0 = int(os.environ.get("NW0", "10"))
XNE = int(os.environ.get("XNE", "0"))
CE = int(os.environ.get("CE", "0"))
P1W = int(os.environ.get("P1W", "1"))
PS0 = int(os.environ.get("PS0", "0"))
KSC = os.environ.get("KSC", "sc0 sc1")
XP = os.environ.get("XP", "")
TLB = int(os.environ.get("TLB", "0"))
SIL = int(os.environ.get("SIL", "0"))
CDLY = int(os.environ.get("CDLY", "0"))
OWN = 1
CW = int(os.environ.get("CW", "0"))
NWE = int(os.environ.get("NWE", "6"))
REV = int(os.environ.get("REV", "0"))
NE = int(os.environ.get("NE", "0"))
EAT = int(os.environ.get("EAT", "0"))
KST = os.environ.get("KST", "")
WB = int(os.environ.get("WB", "0"))
OTK = int(os.environ.get("OTK", "-1"))
GP4 = int(os.environ.get("GP4", "-1"))
CPRIO = int(os.environ.get("CPRIO", "1"))
KFL = int(os.environ.get("KFL", "0"))
ROT = int(os.environ.get("ROT", "4"))
CPRIO2 = int(os.environ.get("CPRIO2", "1"))
TOUCH = os.environ.get("TOUCH", "none")
CFIRST = int(os.environ.get("CFIRST", "0"))
WD_AT = os.environ.get("WD_AT", "g")
WDK = int(os.environ.get("WDK", "25"))
NBI = int(os.environ.get("NBI", "9"))
PUBK = int(os.environ.get("PUBK", "6"))
GRC = int(os.environ.get("GRC", "30"))
GRK = int(os.environ.get("GRK", "22"))
FYI = int(os.environ.get("FYI", "10"))
WLATE = 1
WDK2 = int(os.environ.get("WDK2", "22"))
CX = int(os.environ.get("CX", "0"))
RP = int(os.environ.get("RP", "-3"))
MAP = int(os.environ.get("MAP", "2"))
HELP = int(os.environ.get("HELP", "0"))
PKC = int(os.environ.get("PKC", "0"))
HI = 40960
GR1, XA, WA, WDV, XDV, DDV, SEL, GR2 = 4, 9, 13, 17, 20, 22, 24, 28
WF, XF, GACC, CS, PUB = 32, 56, 120, 216, 228
WREG = [216, 224, 80, 240, 32, 40, 24]
NPRE = int(os.environ.get("NPRE", "6"))
XROW = 6


def la(reg, off):
    if off >= HI:
        return f"v{reg+6} offset:{off-HI}"
    return f"v{reg} offset:{off}"


def wslot(i):
    if i < 10:
        return i
    if i < 20:
        return i - 10
    return i - 19


def wdma_ops(vm, i):
    ops = []
    for j in range(2):
        def f(j=j):
            E(f"    s_add_u32 s38, s41, {(16*(21-i if REV else i) + 8*j)*1024}")
            E(f"    s_add_u32 m0, s37, {wslot(i)*8192 + j*1024}")
            E("    s_nop 0")
            E(f"    buffer_load_dwordx4 v{DDV}, s[8:11], s38 offen lds")
            vm.issue(("w", i))
        ops.append(f)
    return ops


def wread(dst, slot):
    for wd in range(2):
        r = dst + 4 * wd
        E(f"    ds_read_b64_tr_b16 v[{r}:{r+1}], {la(11+wd, slot*8192)}")
        E(f"    ds_read_b64_tr_b16 v[{r+2}:{r+3}], {la(11+wd, slot*8192+512)}")


def gen_gtype_path(nt, vm0):
    vm = VM()
    vm.q = list(vm0.q)
    ACC = GACC
    P = 64 * nt
    CH = 16 * P
    STG = 4 * CH
    WB0 = 32768
    NB = (LDS_BYTES - WB0) // STG
    n = 2 * nt

    def w_dma(st):
        ops = []
        for i in range(nt):
            def f(i=i):
                if i == 0:
                    if st:
                        E(f"    s_add_u32 s48, s48, {32*2752}")
                        E("    s_cmp_ge_u32 s48, s49")
                        E(f"    s_cselect_b32 s38, {16*32*2752}, 0")
                        E("    s_sub_u32 s48, s48, s38")
                    E(f"    s_add_u32 m0, s43, {WB0 + (st % NB)*STG}")
                    E("    s_nop 0")
                E(f"    buffer_load_dwordx4 v{WDV+i}, s[52:55], s48 offen offset:{1024*i} lds")
                vm.issue(("W", st))
            ops.append(f)
        return ops

    def x_dma(p):
        ops = []
        for a in range(4):
            def f(a=a):
                if a == 0:
                    if p:
                        E("    s_add_u32 s32, s32, 128")
                        E("    s_bitset0_b32 s32, 10")
                    E(f"    s_add_u32 m0, s7, {(p % 2)*16384}")
                    E("    s_nop 0")
                    so = "s32"
                else:
                    E(f"    s_add_u32 s38, s32, {a*(8192-1024)}")
                    so = "s38"
                E(f"    buffer_load_dwordx4 v{XDV + a % 2}, s[16:19], {so} offen offset:{1024*a} lds")
                vm.issue(("X", p))
            ops.append(f)
        return ops

    def run(lst, cnt=999):
        for _ in range(min(cnt, len(lst))):
            t = lst.pop(0)
            if isinstance(t, str):
                if "buffer_store" in t:
                    vm.wait("xt")
                E(t)
                if "buffer_store" in t:
                    vm.issue("hst")
            else:
                t()

    run(x_dma(0))
    E(f"    s_mul_i32 s43, s3, {CH}")
    E("    s_lshr_b32 s5, s3, 1")
    E("    s_cmp_eq_u32 s5, 1")
    E("    s_cselect_b32 s52, s80, s78")
    E("    s_cselect_b32 s53, s81, s79")
    E("    s_and_b32 s53, s53, 0xffff")
    E(f"    s_mov_b32 s54, {D*F*2}")
    E("    s_mov_b32 s55, 0x00020000")
    E("    s_and_b32 s49, s3, 1")
    E(f"    s_mul_i32 s38, s49, {nt*1024}")
    E("    s_add_u32 s42, s42, s38")
    E("    s_mul_i32 s48, s49, 16*2752")
    E("    s_add_u32 s48, s48, s36")
    E("    s_movk_i32 s49, 2752")
    E("    s_lshl_b32 s34, s5, 1")
    for i in range(nt):
        E(f"    v_add_u32 v14, {64*i}, v1")
        if nt == 3:
            E("    v_mul_u32_u24 v15, 0x5556, v14")
            E("    v_lshrrev_b32 v15, 18, v15")
            E("    v_mul_u32_u24 v13, 12, v15")
            E("    v_sub_u32 v14, v14, v13")
        else:
            E("    v_lshrrev_b32 v15, 3, v14")
            E("    v_and_b32 v14, 7, v14")
            E("    v_bfe_u32 v13, v1, 4, 1")
            E("    v_lshlrev_b32 v13, 2, v13")
            E("    v_xor_b32 v14, v14, v13")
        E("    v_xor_b32 v14, s34, v14")
        E("    v_mul_lo_u32 v15, v15, s49")
        E(f"    v_lshl_add_u32 v{WDV+i}, v14, 4, v15")
        if i:
            E(f"    v_subrev_u32 v{WDV+i}, {1024*i}, v{WDV+i}")
    E(f"    s_add_u32 s49, s48, {16*32*2752}")
    E(f"    s_mul_i32 s38, s29, {32*2752}")
    E("    s_add_u32 s48, s48, s38")
    run(w_dma(0))
    run(w_dma(1))
    run(x_dma(1))
    for st in range(2, NB):
        run(w_dma(st))
    E("    v_lshrrev_b32 v3, 5, v1")
    E("    v_and_b32 v2, 15, v1")
    E("    v_lshrrev_b32 v4, 2, v2")
    E("    v_lshl_add_u32 v4, v3, 3, v4")
    E(f"    v_mul_u32_u24 v4, {P}, v4")
    E("    v_bfe_u32 v5, v1, 4, 1")
    E(f"    v_mul_u32_u24 v6, {2*CH}, v5")
    E("    v_add_u32 v4, v4, v6")
    E("    v_and_b32 v2, 3, v2")
    E("    v_lshl_add_u32 v4, v2, 3, v4")
    E("    v_lshlrev_b32 v5, 5, v5")
    if nt == 2:
        E("    v_bfe_u32 v2, v1, 3, 1")
        E("    v_lshlrev_b32 v2, 6, v2")
        E("    v_xor_b32 v5, v5, v2")
    E("    s_and_b32 s34, s3, 1")
    E(f"    s_mul_i32 s34, s34, {32*nt}")
    E(f"    s_mul_i32 s38, s5, {CH}")
    E(f"    s_add_u32 s38, s38, {WB0}")
    E("    v_add_u32 v4, s38, v4")
    for t in range(2):
        E(f"    s_add_u32 s38, s34, {32*t}")
        E("    v_xor_b32 v6, s38, v5")
        E(f"    v_add_u32 v{WA+t}, v4, v6")
    E(f"    s_mul_i32 s38, s5, {2*CH}")
    E(f"    s_sub_u32 s38, {CH}, s38")
    for t in range(2):
        E(f"    v_add_u32 v{WA+2+t}, s38, v{WA+t}")
    E("    v_and_b32 v4, 31, v1")
    E("    v_bfe_u32 v5, v1, 1, 3")
    E("    v_xor_b32 v5, v5, v3")
    E("    v_lshlrev_b32 v5, 4, v5")
    E("    v_lshl_add_u32 v5, v4, 7, v5")
    E("    s_lshl_b32 s38, s5, 5")
    E("    v_xor_b32 v5, s38, v5")
    E("    s_lshl_b32 s38, s5, 13")
    E(f"    v_add_u32 v{XA}, s38, v5")
    for j in range(1, 4):
        E(f"    v_xor_b32 v{XA+j}, {32*j}, v{XA}")
    E("    v_lshrrev_b32 v2, 2, v1")
    E("    v_lshrrev_b32 v3, 4, v1")
    E("    v_xor_b32 v2, v2, v3")
    E("    v_and_b32 v2, 1, v2")
    E("    v_cmp_eq_u32 vcc, 0, v2")
    E(f"    v_mov_b32 v3, s{S_ONE}")
    E("    s_nop 0")
    for j in range(4):
        E(f"    v_cndmask_b32 v{SEL+j}, 0, v3, vcc")
    E("    v_and_b32 v2, 31, v1")
    E("    v_lshrrev_b32 v3, 5, v1")
    E("    v_lshlrev_b32 v23, 10, v2")
    E("    v_lshl_add_u32 v23, v3, 3, v23")
    E("    s_lshl_b32 s38, s4, 1")
    E("    s_and_b32 s34, s3, 1")
    E("    s_add_u32 s38, s38, s34")
    E("    s_lshl_b32 s38, s38, 15")
    E("    s_and_b32 s34, s33, 7")
    E("    s_lshl_b32 s34, s34, 7")
    E("    s_add_u32 s38, s38, s34")
    E("    s_lshl_b32 s34, s5, 6")
    E("    s_add_u32 s38, s38, s34")
    E("    v_add_u32 v23, s38, v23")
    R, SA = ACC, 240
    for j in range(4):
        E(f"    v_mov_b32 v{SA+j}, 0")
    vm.wait("st")
    stamp(1, vm)
    for d in range(8):
        E(f"    v_dot2c_f32_bf16 v{SA+d%2}, s{S_ONE}, v{R+d}")
        E(f"    v_dot2c_f32_bf16 v{SA+2+d%2}, v{R+d}, v{R+d}")
    so = [["    s_nop 3"]]
    a_, b_ = SA + 4, SA + 6
    so[0] += [f"    v_add_f32 v{a_+j}, v{SA+2*j}, v{SA+2*j+1}" for j in range(2)]
    for ctl in ("quad_perm:[1,0,3,2]", "quad_perm:[2,3,0,1]", "row_half_mirror", "row_mirror"):
        so.append(["    s_nop 1"] + [f"    v_add_f32_dpp v{b_+j}, v{a_+j}, v{a_+j} {ctl} row_mask:0xf bank_mask:0xf" for j in range(2)])
        a_, b_ = b_, a_
    so.append([f"    v_mov_b32 v{b_+j}, v{a_+j}" for j in range(2)])
    so.append(["    s_nop 1"] + [f"    v_permlane16_swap_b32 v{a_+j}, v{b_+j}" for j in range(2)])
    so.append(["    s_nop 1"] + [f"    v_add_f32 v{a_+j}, v{a_+j}, v{b_+j}" for j in range(2)])
    M, V_ = a_, a_ + 1
    so.append([f"    v_mul_f32 v{M}, 0x3b000000, v{M}",
               f"    v_mul_f32 v{V_}, 0x3b000000, v{V_}",
               f"    v_fma_f32 v{V_}, -v{M}, v{M}, v{V_}"])
    so.append([f"    v_max_f32 v{V_}, 0, v{V_}",
               f"    v_cvt_pk_bf16_f32 v{M}, 0, v{M}",
               f"    v_cvt_pk_bf16_f32 v{V_}, 0, v{V_}"])
    so.append([f"    v_add_f32 v{V_}, 0x3727c5ac, v{V_}",
               f"    v_cvt_pk_bf16_f32 v{V_}, 0, v{V_}",
               f"    v_sqrt_f32 v{V_}, v{V_}",
               f"    v_sub_f32 v{PUB}, 0, v{M}"])
    so.append([f"    v_cvt_pk_bf16_f32 v{V_}, 0, v{V_}",
               f"    v_rcp_f32 v{PUB+1}, v{V_}"])
    if not SIL:
        for g in so:
            for t in g:
                E(t)
        so = []
    token_issue(vm)
    stamp(3, vm)
    vm.wait(("W", 0))
    E("    s_barrier")
    stamp(4, vm)
    stampclk(16, vm)

    dq = []

    def ds(tag, text):
        def f():
            E(text)
            dq.append(tag)
        return f

    def ds_wait(tags):
        idx = max([i for i, t in enumerate(dq) if t in tags], default=-1)
        if idx < 0:
            return
        m_ = len(dq) - 1 - idx
        E(f"    s_waitcnt lgkmcnt({min(m_, 15)})")
        if m_ <= 15:
            del dq[:idx + 1]
        else:
            del dq[:len(dq) - 15]

    def wreg(k, t):
        return WF + 12 * (k % 2) + 4 * t

    def xreg(k, e):
        return XF + 8 * (k % 8) + 4 * e

    def w_rd(k):
        bo = ((k // 2) % NB) * STG
        ops = []
        for t in range(nt):
            r = wreg(k, t)
            a = WA + 2 * (k % 2) + t % 2
            off = bo + 64 * (t // 2)
            ops.append(ds(("w", k, t), f"    ds_read_b64_tr_b16 v[{r}:{r+1}], v{a} offset:{off}"))
            ops.append(ds(("w", k, t), f"    ds_read_b64_tr_b16 v[{r+2}:{r+3}], v{a} offset:{off+4*P}"))
        return ops

    def x_rd(k):
        ops = []
        for e in range(2):
            r = xreg(k, e)
            ops.append(ds(("x", k), f"    ds_read_b128 v[{r}:{r+3}], v{XA + k % 4} offset:{((k//4) % 2)*16384 + 4096*e}"))
        return ops

    def cs_mfma(k, t):
        def f():
            a = CS + 4 * t
            c = "0" if k == 0 else f"v[{a}:{a+3}]"
            w = wreg(k, t)
            E(f"    v_mfma_f32_16x16x32_bf16 v[{a}:{a+3}], v[{SEL}:{SEL+3}], v[{w}:{w+3}], {c}")
        return f

    def publish():
        token_get(vm)
        E(f"    v_mov_b32 v{PUB+2}, s90")
        E(f"    v_mov_b32 v{PUB+3}, s91")
        E("    v_lshrrev_b32 v2, 1, v1")
        E("    s_mov_b32 exec_lo, 1")
        E("    s_mov_b32 exec_hi, 1")
        E(f"    buffer_store_dwordx4 v[{PUB}:{PUB+3}], v2, s[12:15], s35 offen sc0 sc1")
        E("    s_mov_b64 exec, -1")
        vm.issue("pub")

    def gr_load():
        E("    v_and_b32 v2, 0x1f0, v8")
        E(f"    buffer_load_dwordx4 v[{GR1}:{GR1+3}], v8, s[12:15], s46 offen sc0 sc1")
        E(f"    buffer_load_dwordx4 v[{GR2}:{GR2+3}], v2, s[12:15], s47 offen sc0 sc1")

    def gr_issue():
        gr_load()
        vm.issue("gr")
        vm.issue("gr")

    def gr_check():
        _lbl[0] += 1
        L = _lbl[0]
        vm.wait("gr")
        E(f"    s_mov_b32 s92, {POLL_LIMIT}")
        E(f"gr_l{L}:")
        E(f"    v_cmp_ne_u64 vcc, s[90:91], v[{GR1+2}:{GR1+3}]")
        E(f"    v_cmp_ne_u64 s[44:45], s[90:91], v[{GR2+2}:{GR2+3}]")
        E("    s_nop 0")
        E("    s_or_b64 vcc, vcc, s[44:45]")
        E(f"    s_cbranch_scc0 gr_d{L}")
        gr_load()
        E("    s_waitcnt vmcnt(0)")
        E("    s_sub_u32 s92, s92, 1")
        E("    s_cmp_lg_u32 s92, 0")
        E(f"    s_cbranch_scc1 gr_l{L}")
        E(f"gr_d{L}:")
        E(f"    v_mov_b32 v{GR1+2}, v{GR1}")
        E(f"    v_mov_b32 v{GR1+3}, v{GR1+1}")
        E("    s_nop 1")
        E(f"    v_permlane32_swap_b32 v{GR1}, v{GR1+2}")
        E(f"    v_permlane32_swap_b32 v{GR1+1}, v{GR1+3}")
        stampval(20, "s92", vm)

    def wdt():
        E("    s_mul_i32 s38, s33, 344*128")
        E("    v_lshlrev_b32 v2, 7, v0")
        E(f"    buffer_load_dword v{PUB}, v2, s[8:11], s38 offen")
        E("    v_min_u32 v3, 87, v0")
        E("    v_lshlrev_b32 v3, 7, v3")
        E("    s_add_u32 s38, s38, 256*128")
        E(f"    buffer_load_dword v{PUB+1}, v3, s[8:11], s38 offen")
        vm.issue("pf")
        vm.issue("pf")

    def out_touch():
        srd(20, 84, 85, S * D * 2)
        E("    s_mov_b64 exec, 1")
        E(f"    buffer_load_dword v246, v23, s[20:23], 0 offen")
        E("    s_mov_b64 exec, -1")
        vm.issue("ot")

    def xt_load():
        for q in range(4):
            E(f"    buffer_load_dwordx2 v[{232+2*q}:{232+2*q+1}], v23, s[16:19], 0 offen offset:{16*q}")
            vm.issue("xt")

    def acc(t, e):
        return ACC + 16 * (2 * t + e)

    def mm(k, t, e):
        x = xreg(k, e)
        w = wreg(k, t)
        a = acc(t, e)
        c = "0" if k == 0 else f"v[{a}:{a+15}]"
        E(f"    v_mfma_f32_32x32x16_bf16 v[{a}:{a+15}], v[{w}:{w+3}], v[{x}:{x+3}], {c}")

    XCH = 0

    def xw():
        E("    v_and_b32 v2, 31, v1")
        E("    v_lshrrev_b32 v3, 5, v1")
        E("    v_lshlrev_b32 v2, 2, v2")
        E("    v_lshl_add_u32 v2, v3, 12, v2")
        E("    s_lshl_b32 s38, s5, 9")
        E("    s_add_u32 s38, s38, s37")
        E("    v_xor_b32 v2, s38, v2")
        for t in range(nt):
            E(f"    ds_write_b32 v2, v{CS+4*t} offset:{XCH + 128*t}")
            dq.append("xw")

    run(x_rd(0) + w_rd(0) + x_rd(1) + x_rd(2) + x_rd(3))
    pend = []
    xq = []
    for k in range(31):
        st = k // 2
        if k % 2 == 1:
            vm.wait(("W", st + 1))
            if k % 4 == 1 and k < 28:
                vm.wait(("X", k // 4 + 1))
            assert not xq
            E("    s_waitcnt lgkmcnt(0)")
            del dq[:]
            E("    s_barrier")
            if st % 4 == 3 and st < 15 and DIAG:
                stamp(5 + st // 4, vm)
                stampclk(17 + st // 4, vm)
            assert not pend
            if k == 1:
                pend += x_dma(2)
            if st + NB < 16:
                pend += w_dma(st + NB)
            if k % 4 == 3 and k // 4 + 3 < 8:
                pend += x_dma(k // 4 + 3)
            if k % 4 == 1 and k < 28:
                for kk in range(4):
                    xq += x_rd(4 * (k // 4 + 1) + kk)
        slots = [[] for _ in range(n)]
        rd = w_rd(k + 1)
        for s_ in range(nt):
            slots[s_] += rd[2 * s_:2 * s_ + 2]
        cnt = len(xq) // 2 if k % 2 == 1 else len(xq)
        fs = list(range(nt, n))
        for i_ in range(cnt):
            slots[fs[i_ * len(fs) // cnt]].append(xq.pop(0))
        if k % 2 == 0:
            for t in range(nt):
                slots[2 * t + 1 if k < 30 else t + 1].append(cs_mfma(k, t))
        cnt = (len(pend) + 1) // 2 if k % 2 == 1 else len(pend)
        ms = list(range(n))
        todo = [(i_ * n + n - 1) // max(cnt, 1) for i_ in range(cnt)]
        for s_ in todo:
            slots[min(s_, n - 1)].append(pend.pop(0))
        for s_ in range(n):
            if so:
                slots[s_].append(lambda g=so.pop(0): [E(t) for t in g])
        if k == PUBK:
            assert not so
            slots[n - 1].append(publish)
        if k == GRK:
            slots[n - 1].append(gr_issue)
        if k == (WDK if nt == 3 else WDK2) and WD_AT == "g":
            slots[n - 1].append(wdt)
        if k == OTK:
            slots[n - 1].append(out_touch)
        if k == XK:
            slots[n - 1].append(xt_load)
        if k == GRC:
            slots[n - 1 if k < 30 else 0].append(gr_check)
        if k == 30:
            if nt == 2:
                slots[n - 1].append(lambda: E("    s_nop 7"))
            slots[n - 1].append(xw)
        for t in range(nt):
            for e in range(2):
                if e == 0:
                    tg = [("x", k), ("w", k, t)]
                    if k == 30:
                        tg += [("w", k, t2) for t2 in range(min(nt, 2 * t + 2))]
                    ds_wait(tg)
                mm(k, t, e)
                for f in slots[2 * t + e]:
                    f()
    assert not pend
    E("    s_waitcnt lgkmcnt(0)")
    del dq[:]
    E("    s_barrier")
    E(f"    s_setprio {GPRIO2}")
    E("    v_and_b32 v2, 31, v1")
    E("    v_lshrrev_b32 v3, 5, v1")
    E("    v_lshlrev_b32 v2, 2, v2")
    E("    v_lshl_add_u32 v2, v3, 9, v2")
    E("    v_add_u32 v2, s37, v2")
    CV = CS
    for t in range(nt):
        E(f"    ds_read_b32 v{CV+t}, v2 offset:{XCH + 128*t}")
    BM = XF
    QA = XF + 12
    T0 = XF + 20

    def split_ops(t):
        c = CV + t
        q = QA + 2 * t
        return [f"    v_and_b32 v{T0}, s40, v{c}",
                f"    v_sub_f32 v{c}, v{c}, v{T0}",
                f"    v_and_b32 v{T0+1}, s40, v{c}",
                f"    v_sub_f32 v{c}, v{c}, v{T0+1}",
                f"    v_cvt_pk_bf16_f32 v{q}, v{T0}, v{T0+1}",
                f"    v_cvt_pk_bf16_f32 v{q+1}, v{c}, 0"]

    def corr(t, e):
        q = QA + 4 * (t // 2)
        b = BM + 4 * e + (2 if t % 2 == 0 else 0)
        a = acc(t, e)
        E(f"    v_mfma_f32_32x32x16_bf16 v[{a}:{a+15}], v[{q}:{q+3}], v[{b}:{b+3}], v[{a}:{a+15}]")

    def epi_ops(t, e):
        G = acc(t, e)
        U = G + 8
        rc = GR1 + 2 * e + 1
        o = []
        for j in range(16):
            o.append(f"    v_mul_f32 v{G+j}, v{G+j}, v{rc}")
        for j in range(16):
            o.append(f"    v_cvt_pk_bf16_f32 v{G+j}, 0, v{G+j}")
        for j in range(8):
            o.append(f"    v_mul_f32 v{G+j}, v{G+j}, v{U+j}")
        for j in range(4):
            o.append(f"    v_cvt_pk_bf16_f32 v{U+j}, v{G+2*j}, v{G+2*j+1}")
        o.append("    s_nop 1")
        o.append(f"    v_permlane32_swap_b32 v{U}, v{U+2}")
        o.append(f"    v_permlane32_swap_b32 v{U+1}, v{U+3}")
        o.append(f"    buffer_store_dwordx4 v[{U}:{U+3}], v8, s[24:27], s{42 if e == 0 else 43} offen offset:{t*1024} sc0 sc1")
        return o

    pre = [f"    v_mov_b32 v{BM+j}, 0" for j in (0, 1, 4, 5, 8, 9)]
    pre += [f"    v_cvt_pk_bf16_f32 v{BM+2+j%2+4*(j//2)}, v{GR1+2*(j//2)}, v{GR1+2*(j//2)}" for j in range(4)]
    pre += [f"    v_mov_b32 v{QA+6}, 0", f"    v_mov_b32 v{QA+7}, 0", f"    s_add_u32 s43, s42, {HB}"]
    for t in range(nt):
        pre.append(f"    s_waitcnt lgkmcnt({nt-1-t})")
        pre += split_ops(t)
    we = []
    for i in range(1, 1 + NWE):
        we += wdma_ops(vm, i)
    for t in range(nt):
        for e in range(2):
            mm(31, t, e)
            run(pre, 7)
            run(we, (2 * NWE + n - 1) // n)
    run(pre)
    run(we)
    E("    s_nop 1")
    stamp(8, vm)
    ep = []
    seq = [(t, e) for t in range(nt) for e in range(2)]
    for i_, (t, e) in enumerate(seq):
        corr(t, e)
        if i_ >= 2:
            ep += epi_ops(*seq[i_ - 2])
        run(ep, 7)
    run(ep)
    for te in seq[-2:]:
        run(epi_ops(*te))
    stamp(9, vm)
    E("    s_branch phase_c")


def token_publish():
    E("    s_or_b32 s34, s2, s3")
    E("    s_cmp_eq_u32 s34, 0")
    E("    s_cbranch_scc0 g_notok")
    E("    s_or_b32 s90, s90, 1")
    E(f"    v_mov_b32 v{TK}, s90")
    E(f"    v_mov_b32 v{TK+1}, s91")
    E("    s_mov_b64 exec, 1")
    E(f"    buffer_store_dwordx2 v[{TK}:{TK+1}], off, s[60:63], 0 sc0 sc1")
    E("    s_mov_b64 exec, -1")
    E("g_notok:")


def gen_gtype():
    vm = VM()
    E(f"    s_setprio {GPRIO}")
    if CFIRST:
        E("    s_sub_u32 s2, s2, 256")
    else:
        token_publish()
    E("    s_lshr_b32 s33, s2, 3")
    if MAP:
        E("    ; map1")
        E("    s_and_b32 s30, s2, 4")
        E("    s_lshl_b32 s30, s30, 1")
        E("    s_lshr_b32 s31, s33, 2")
        E("    s_add_u32 s30, s30, s31")
        E("    s_and_b32 s31, s2, 3")
        E("    s_lshl_b32 s31, s31, 2")
        E("    s_and_b32 s34, s33, 3")
        E("    s_add_u32 s31, s31, s34")
        E("    s_and_b32 s4, s2, 7")
        E("    s_lshl_b32 s4, s4, 2")
        E("    s_lshr_b32 s34, s33, 3")
        E("    s_add_u32 s4, s4, s34")
    else:
        E("    s_bfe_u32 s30, s2, 0x20001")
        E("    s_lshl_b32 s30, s30, 2")
        E("    s_lshr_b32 s31, s33, 3")
        E("    s_add_u32 s30, s30, s31")
        E("    s_and_b32 s31, s2, 1")
        E("    s_lshl_b32 s31, s31, 3")
        E("    s_and_b32 s34, s33, 7")
        E("    s_add_u32 s31, s31, s34")
    srd(16, 64, 65, S * D * 2)
    E("    s_lshl_b32 s35, s30, 7")
    E("    s_lshl_b32 s34, s31, 3")
    E("    s_add_u32 s35, s35, s34")
    E("    s_lshl_b32 s34, s3, 1")
    E("    s_add_u32 s35, s35, s34")
    E("    s_lshl_b32 s34, s35, 10")
    E("    v_lshrrev_b32 v12, 5, v1")
    E("    v_and_b32 v13, 31, v1")
    E("    v_lshlrev_b32 v13, 4, v13")
    E("    v_lshl_add_u32 v12, v12, 10, v13")
    E(f"    buffer_load_dwordx4 v[{GACC}:{GACC+3}], v12, s[16:19], s34 offen")
    E(f"    buffer_load_dwordx4 v[{GACC+4}:{GACC+7}], v12, s[16:19], s34 offen offset:512")
    vm.issue("st")
    vm.issue("st")
    E("    s_lshl_b32 s35, s35, 4")
    E("    s_lshl_b32 s32, s30, 17")
    E("    s_lshl_b32 s34, s3, 15")
    E("    s_add_u32 s32, s32, s34")
    E("    s_lshr_b32 s46, s32, 6")
    E("    s_bitset0_b32 s46, 9")
    E("    v_lshrrev_b32 v12, 3, v1")
    E("    v_lshrrev_b32 v13, 4, v1")
    E("    v_xor_b32 v13, v13, v1")
    E("    v_and_b32 v13, 7, v13")
    E("    v_lshlrev_b32 v13, 4, v13")
    E(f"    v_lshl_add_u32 v{XDV}, v12, 10, v13")
    E(f"    v_xor_b32 v{XDV+1}, 64, v{XDV}")
    E("    s_lshl_b32 s7, s3, 12")
    if MAP:
        E("    s_lshr_b32 s29, s33, 2")
        E("    s_and_b32 s34, s33, 3")
    else:
        E("    s_and_b32 s29, s33, 7")
        E("    s_lshr_b32 s34, s33, 3")
    E("    s_lshl_b32 s34, s34, 1")
    if ROT == 1:
        E("    s_add_u32 s29, s29, s34")
    if ROT == 3:
        E("    s_mov_b32 s29, s34")
    if ROT == 4:
        E("    s_lshl_b32 s29, s29, 1")
    if ROT == 10:
        E("    s_add_u32 s29, s29, 1")
        E("    s_lshl_b32 s29, s29, 1")
    if ROT == 11:
        E("    s_lshl_b32 s29, s29, 1")
        E("    s_add_u32 s29, s29, 1")
    if ROT == 6:
        E("    s_lshl_b32 s29, s29, 2")
    if ROT == 7:
        E("    s_lshl_b32 s29, s29, 1")
        E("    s_bfe_u32 s34, s34, 0x10001")
        E("    s_add_u32 s29, s29, s34")
    if ROT == 8:
        E("    s_lshr_b32 s29, s29, 1")
        E("    s_lshl_b32 s29, s29, 1")
    if ROT == 9:
        E("    s_lshl_b32 s29, s29, 1")
        E("    s_add_u32 s29, s29, s34")
    if ROT == 5:
        E("    s_lshr_b32 s34, s34, 2")
        E("    s_lshl_b32 s34, s34, 2")
        E("    s_add_u32 s29, s29, s34")
    E("    s_lshl_b32 s29, s29, 1")
    E("    s_and_b32 s29, s29, 15" if ROT else "    s_mov_b32 s29, 0")
    E("    s_lshl_b32 s34, s29, 6")
    E("    s_add_u32 s32, s32, s34")
    srd_off(24, 88, 89, WS_H, H_BYTES)
    srd_off(12, 88, 89, WS_ST, S * 16)
    E(f"    s_mov_b32 s{S_ONE}, 0x3f803f80")
    E("    v_lshlrev_b32 v8, 4, v1")
    if MAP:
        E("    s_lshl_b32 s47, s4, 10")
    else:
        E("    s_lshl_b32 s47, s30, 11")
        E("    s_lshr_b32 s34, s31, 3")
        E("    s_lshl_b32 s34, s34, 10")
        E("    s_add_u32 s47, s47, s34")
    E("    s_and_b32 s34, s3, 1")
    E("    s_lshl_b32 s34, s34, 9")
    E("    s_add_u32 s47, s47, s34")
    srd(8, 82, 83, F * D * 2)
    E("    s_mul_i32 s51, s3, 22")
    E("    s_cmp_eq_u32 s3, 3")
    E("    s_cselect_b32 s51, 65, s51")
    E("    s_lshl_b32 s41, s51, 14")
    if REV:
        E("    s_lshr_b32 s34, s3, 1")
        E("    s_lshl_b32 s34, s34, 14")
        E("    s_sub_u32 s41, s41, s34")
    E("    s_lshl_b32 s37, s3, 11")
    E("    v_lshrrev_b32 v14, 3, v1")
    E(f"    v_lshlrev_b32 v{DDV}, 10, v14")
    E("    v_and_b32 v14, 7, v1")
    E("    v_bfe_u32 v15, v1, 4, 1")
    E("    v_lshlrev_b32 v15, 2, v15")
    E("    v_xor_b32 v14, v14, v15")
    E(f"    v_lshl_add_u32 v{DDV}, v14, 4, v{DDV}")
    E("    s_and_b32 s34, s33, 7")
    E("    s_lshl_b32 s34, s34, 7")
    E(f"    v_add_u32 v{DDV}, s34, v{DDV}")
    E("    s_lshl_b32 s36, s30, 2")
    E("    s_add_u32 s36, s36, s3")
    E("    s_lshl_b32 s39, s36, 7")
    E("    s_lshl_b32 s38, s31, 3")
    E("    s_add_u32 s39, s39, s38")
    E(f"    s_add_u32 s39, s39, {FH_OFF}")
    E("    s_bitset0_b32 s36, 0")
    E(f"    s_mul_i32 s42, s36, {HB}")
    if MAP == 2:
        E("    ; map2")
        E("    s_mul_i32 s36, s31, 3")
        E("    s_add_u32 s38, s31, 1")
        E("    s_lshr_b32 s38, s38, 4")
        E("    s_sub_u32 s36, s36, s38")
        E("    s_lshr_b32 s38, s31, 2")
        E("    s_sub_u32 s36, s36, s38")
        E("    s_lshl_b32 s36, s36, 6")
        E("    s_lshl_b32 s38, s36, 5")
        E("    s_add_u32 s42, s42, s38")
        E("    s_bitcmp1_b32 0xc888, s31")
        E("    s_cbranch_scc1 g_path2")
        gen_gtype_path(3, vm)
        E("g_path2:")
        gen_gtype_path(2, vm)
        gen_phase_c()
        return
    E("    s_cmp_lt_u32 s31, 11")
    E("    s_cbranch_scc0 g_path2")
    E("    s_mul_i32 s36, s31, 192")
    E("    s_mul_i32 s38, s31, 3*2048")
    E("    s_add_u32 s42, s42, s38")
    gen_gtype_path(3, vm)
    E("g_path2:")
    E("    s_lshl_b32 s36, s31, 7")
    E("    s_add_u32 s36, s36, 704")
    E("    s_lshl_b32 s38, s36, 5")
    E("    s_add_u32 s42, s42, s38")
    gen_gtype_path(2, vm)
    gen_phase_c()


KVP = 80
KV_OFF = 0
CSTR = 4416
COPY_BASE = [64 * KVP + CSTR * (c + 1) for c in range(4)]
TB_OFF = 5376
XCH_OFF = 27136
STG_OFF = XCH_OFF + 8192
CH_BYTES = STG_OFF + 4096
LDS_BYTES = 81920
assert TB_OFF + 4096 <= COPY_BASE[0] and COPY_BASE[3] + 4208 <= XCH_OFF
assert 2 * CH_BYTES <= LDS_BYTES


def wd_touch(vt):
    srd(52, 82, 83, F * D * 2)
    E("    s_mul_i32 s93, s50, 344*128")
    E(f"    v_lshlrev_b32 v{vt}, 7, v0")
    E(f"    buffer_load_dword v{vt+1}, v{vt}, s[52:55], s93 offen")
    E(f"    v_min_u32 v{vt}, 87, v0")
    E(f"    v_lshlrev_b32 v{vt}, 7, v{vt}")
    E("    s_add_u32 s93, s93, 256*128")
    E(f"    buffer_load_dword v{vt+1}, v{vt}, s[52:55], s93 offen")


def gen_ctype():
    vm = VM()
    E("c_type:")
    E(f"    s_setprio {CPRIO}")
    if CFIRST:
        token_publish()
    if 'g' in os.environ.get('XP', ''):
        E("    s_endpgm")
    if CFIRST:
        pass
    else:
        E("    s_sub_u32 s2, s2, 256")
    srd(16, 66, 67, S * D * 2)
    srd(20, 68, 69, S * D * 2)
    srd(24, 70, 71, D * 4 * 2)
    E("    s_lshr_b32 s32, s2, 3")
    E("    s_and_b32 s33, s2, 7")
    E("    v_and_b32 v10, 31, v0")
    E("    v_lshrrev_b32 v11, 5, v0")
    E("    s_lshl_b32 s34, s32, 6")
    E("    v_lshlrev_b32 v3, 3, v11")
    E("    v_add_u32 v3, s34, v3")
    E("    s_lshl_b32 s35, s33, 5")
    E("    v_add_u32 v6, s35, v10")
    E("    v_lshlrev_b32 v3, 10, v3")
    E("    v_lshl_add_u32 v3, v6, 2, v3")
    E("    v_add_u32 v4, 4096, v3")
    E("    v_subrev_u32 v5, 3072, v3")
    E("    v_lshlrev_b32 v6, 4, v6")
    if CDLY:
        E(f"    s_sleep {CDLY}")
    for j in range(3):
        E(f"    buffer_load_dword v{132+j}, v5, s[16:19], 0 offen offset:{1024*j}")
    for j in range(4):
        E(f"    buffer_load_dword v{135+j}, v3, s[16:19], 0 offen offset:{1024*j}")
    for j in range(4):
        E(f"    buffer_load_dword v{139+j}, v4, s[16:19], 0 offen offset:{1024*j}")
    for j in range(4):
        E(f"    buffer_load_dword v{144+j}, v3, s[20:23], 0 offen offset:{1024*j}")
    for j in range(4):
        E(f"    buffer_load_dword v{148+j}, v4, s[20:23], 0 offen offset:{1024*j}")
    E("    buffer_load_dwordx4 v[128:131], v6, s[24:27], 0 offen")
    for _ in range(20):
        vm.issue("kv")
    E("    s_lshr_b32 s31, s3, 1")
    E("    s_lshl_b32 s30, s33, 6")
    E("    s_lshl_b32 s34, s32, 1")
    E("    s_add_u32 s30, s30, s34")
    E("    s_add_u32 s30, s30, s31")
    E("    s_mov_b32 s50, s32")
    E("    s_mov_b32 s51, s33")
    E("    s_and_b32 s32, s3, 1")
    E("    s_lshl_b32 s33, s30, 12")
    srd_off(44, 72, 73, "s33", 4096)
    E(f"    s_mul_i32 s35, s31, {CH_BYTES}")
    E("    s_lshl_b32 s36, s32, 6")
    E("    v_add_u32 v3, s36, v1")
    E("    v_lshlrev_b32 v4, 4, v3")
    E("    v_subrev_u32 v5, 8, v4")
    E("    v_add_u32 v29, 2040, v4")
    def kf_loads():
        srd_off(44, 72, 73, "s33", 4096)
        E("    buffer_load_dwordx4 v[18:21], v4, s[44:47], 0 offen")
        E("    buffer_load_dwordx4 v[24:27], v4, s[44:47], 0 offen offset:2048")
        E("    buffer_load_dwordx2 v[16:17], v5, s[44:47], 0 offen")
        E("    buffer_load_dwordx2 v[22:23], v29, s[44:47], 0 offen")
        for _ in range(4):
            vm.issue("kf")
        srd(44, 74, 75, D * 2)
        E("    s_lshl_b32 s36, s30, 1")
        E("    v_mov_b32 v7, s36")
        E("    buffer_load_ushort v9, v7, s[44:47], 0 offen")
        vm.issue("kf")
    if not KFL:
        kf_loads()
    srd_off(8, 88, 89, WS_KVR, S * D * 2)
    srd_off(12, 88, 89, WS_KVA, S * D * 2)
    E("    s_getreg_b32 s6, hwreg(HW_REG_XCC_ID, 0, 4)")
    E("    v_lshrrev_b32 v12, 4, v10")
    E(f"    v_mul_u32_u24 v12, {CH_BYTES}, v12")
    E("    v_and_b32 v13, 15, v10")
    E("    v_lshl_add_u32 v12, v13, 8, v12")
    E("    v_sub_u32 v13, 7, v11")
    E("    v_and_b32 v14, 7, v10")
    E("    v_xor_b32 v13, v13, v14")
    E("    v_lshl_add_u32 v12, v13, 4, v12")
    E(f"    v_add_u32 v12, {TB_OFF}, v12")
    E("    v_lshrrev_b32 v13, 3, v1")
    E("    v_and_b32 v14, 7, v1")
    E("    v_lshrrev_b32 v15, 4, v1")
    E("    v_xor_b32 v15, v15, v14")
    E("    v_lshlrev_b32 v15, 4, v15")
    E("    v_lshl_add_u32 v15, v13, 7, v15")
    E(f"    s_mul_i32 s36, s31, {CH_BYTES}")
    E("    s_lshl_b32 s37, s32, 11")
    E("    s_add_u32 s36, s36, s37")
    E(f"    s_add_u32 s36, s36, {TB_OFF}")
    E("    v_add_u32 v15, s36, v15")
    E("    v_xor_b32 v28, 64, v15")
    E("    v_lshlrev_b32 v13, 12, v13")
    E("    v_lshl_add_u32 v13, v14, 4, v13")
    E("    s_lshl_b32 s36, s51, 18")
    E("    s_lshl_b32 s37, s3, 16")
    E("    s_add_u32 s36, s36, s37")
    E("    s_lshl_b32 s37, s50, 7")
    E("    s_sub_u32 s37, 3968, s37")
    E("    s_add_u32 s48, s36, s37")
    E("    s_lshl_b32 s36, s51, 10")
    E(f"    s_add_u32 s36, s36, {FK_OFF}")
    E("    s_lshl_b32 s37, s3, 8")
    E("    s_add_u32 s49, s36, s37")
    E("    s_lshl_b32 s37, s50, 3")
    E("    s_add_u32 s49, s49, s37")
    E("    s_lshr_b32 s37, s50, 3")
    E("    s_lshl_b32 s37, s37, 8")
    E("    s_add_u32 s41, s36, s37")
    if TLB:
        E("    s_add_u32 s43, s48, 32768")
        E("    s_mov_b32 exec_lo, 0x01010101")
        E("    s_mov_b32 exec_hi, 0x01010101")
        E("    buffer_load_dword v30, v13, s[12:15], s48 offen")
        E("    buffer_load_dword v31, v13, s[12:15], s43 offen")
        E("    s_mov_b64 exec, -1")
        vm.issue("tl")
        vm.issue("tl")
    vm.wait("kv")
    stamp(1, vm)
    token_issue(vm)
    if KFL:
        kf_loads()
    if TOUCH != "none":
        w_touch(vm, 78, 79, "s50", 29)
    if WD_AT == "early":
        wd_touch(244)
        vm.issue("pf")
        vm.issue("pf")
    if CX == 1:
        E("    s_waitcnt vmcnt(0)")
        E("    s_endpgm")
    for t in range(4):
        for c in range(2):
            src = 128 + 2 * c + t // 2
            if t % 2 == 0:
                E(f"    v_lshlrev_b32 v{32+2*t+c}, 16, v{src}")
            else:
                E(f"    v_and_b32 v{32+2*t+c}, s40, v{src}")
    for j in range(11):
        E(f"    v_lshlrev_b32 v{40+2*j}, 16, v{132+j}")
        E(f"    v_and_b32 v{41+2*j}, s40, v{132+j}")
    for j in range(8):
        E(f"    v_lshlrev_b32 v{64+2*j}, 16, v{144+j}")
        E(f"    v_and_b32 v{65+2*j}, s40, v{144+j}")

    def pr(r):
        return f"v[{r}:{r+1}]"

    def rnd(r):
        E(f"    v_cvt_pk_bf16_f32 v{r}, 0, v{r}")

    def p2(op, d, a, b, pk=0):
        if pk:
            return [f"    v_pk_{op}_f32 {pr(d)}, {pr(a)}, {pr(b)}"]
        return [f"    v_{op}_f32 v{d+j}, v{a+j}, v{b+j}" for j in range(2)]

    def P2(*a, **k):
        for t in p2(*a, **k):
            E(t)

    for j in range(8):
        T = 96 + 8 * (j % 2)
        for t in range(4):
            P2("mul", T + 2 * t, 40 + 2 * (j + t), 32 + 2 * (3 - t))
        for t in range(8):
            rnd(T + t)
        for t in range(1, 4):
            P2("add", T, T, T + 2 * t)
            rnd(T)
            rnd(T + 1)
        P2("mul", 80 + 2 * j, T, 64 + 2 * j)
    for c in range(2):
        for jj in range(4):
            E(f"    v_cvt_pk_bf16_f32 v{104+4*c+jj}, v{80+2*(7-2*jj)+c}, v{80+2*(6-2*jj)+c}")
    if CX == 2:
        E("    s_waitcnt vmcnt(0)")
        E("    s_endpgm")
    E("    ds_write_b128 v12, v[104:107]")
    E("    ds_write_b128 v12, v[108:111] offset:128")
    E("    s_waitcnt lgkmcnt(0)")
    E("    s_barrier")
    E("    ds_read_b128 v[104:107], v15")
    E("    ds_read_b128 v[108:111], v28 offset:1024")
    E("    s_add_u32 s43, s48, 32768")
    E("    s_waitcnt lgkmcnt(1)")
    if 's' not in XP:
        E(f"    buffer_store_dwordx4 v[104:107], v13, s[12:15], s48 offen {KST}")
    E("    s_waitcnt lgkmcnt(0)")
    if 's' not in XP:
        E(f"    buffer_store_dwordx4 v[108:111], v13, s[12:15], s43 offen {KST}")
        vm.issue("kst")
        vm.issue("kst")
    stamp(2, vm)
    E("    s_add_u32 s34, s33, %d" % WS_KVR)
    srd_off(20, 88, 89, "s34", 4096)
    E("    s_add_u32 s34, s33, %d" % WS_YT)
    srd_off(24, 88, 89, "s34", 4096)
    E("    v_mov_b32 v36, 0")
    E("    v_mov_b32 v37, 0")
    E("    v_mov_b32 v38, 0")
    E("    v_mov_b32 v39, 0")
    E("    v_mul_u32_u24 v7, 37, v1")
    E("    v_lshrrev_b32 v7, 8, v7")
    E(f"    v_mul_u32_u24 v7, {CSTR - 112}, v7")
    E("    v_lshl_add_u32 v7, v1, 4, v7")
    E("    v_add_u32 v7, s35, v7")
    E("    s_mov_b32 exec_hi, 7")
    E(f"    ds_write_b128 v7, v[36:39] offset:{64*KVP}")
    E("    s_mov_b64 exec, -1")
    E("    v_lshlrev_b32 v6, 4, v3")
    E("    v_add_u32 v7, s35, v6")
    E("    v_lshrrev_b32 v8, 2, v3")
    E(f"    v_mul_u32_u24 v8, {KVP}, v8")
    E("    v_and_b32 v10, 3, v3")
    E("    v_lshl_add_u32 v8, v10, 4, v8")
    E("    v_add_u32 v8, s35, v8")
    E("    v_and_b32 v3, 31, v1")
    E("    v_lshrrev_b32 v4, 5, v1")
    E("    v_and_b32 v14, 3, v3")
    E(f"    v_mul_u32_u24 v10, {CSTR - 2}, v14")
    E("    v_lshl_add_u32 v10, v3, 1, v10")
    E("    v_lshlrev_b32 v14, 4, v4")
    E("    v_sub_u32 v10, v10, v14")
    E(f"    s_add_u32 s36, s35, {COPY_BASE[0] + 8}")
    E("    v_add_u32 v10, s36, v10")
    E("    v_sub_u32 v5, 63, v3")
    E(f"    v_mul_u32_u24 v5, {KVP}, v5")
    E("    v_lshlrev_b32 v14, 4, v4")
    E("    v_sub_u32 v5, v5, v14")
    E(f"    s_add_u32 s36, s35, {KV_OFF + 16}")
    E("    v_add_u32 v11, s36, v5")
    E(f"    v_subrev_u32 v15, {32*KVP}, v11")
    E(f"    s_add_u32 s36, s36, {KVP*64}")
    E("    v_sub_u32 v12, s36, v14")
    E("    v_lshlrev_b32 v14, 3, v4")
    E("    v_add_u32 v5, v5, v14")
    E(f"    s_mul_i32 s36, s32, {32*KVP}")
    E(f"    s_sub_u32 s36, {KV_OFF + 8}, s36")
    E("    s_add_u32 s36, s36, s35")
    E("    v_add_u32 v5, s36, v5")
    E("    s_lshl_b32 s36, s32, 10")
    E("    v_add_u32 v10, s36, v10")
    E(f"    s_mul_i32 s36, s32, {16*KVP}")
    E("    v_add_u32 v11, s36, v11")
    E("    v_add_u32 v15, s36, v15")
    E("    v_add_u32 v14, 2048, v10")

    def copies():
        vm.wait("kf")
        for u in range(2):
            e = 16 + 6 * u
            for c in range(4):
                r = 40 + 4 * c
                for d in range(4):
                    if c == 1:
                        E(f"    v_mov_b32 v{r+d}, v{e+1+d}")
                    elif c < 3:
                        E(f"    v_alignbyte_b32 v{r+d}, v{e+c//2+d+1}, v{e+c//2+d}, 2")
                if c == 3:
                    r = e + 2
                if 'c' not in XP:
                    E(f"    ds_write_b128 v7, v[{r}:{r+3}] offset:{COPY_BASE[c] + 112 + 2048*u}")

    if CE:
        copies()
    token_get(vm)
    stampval(20, "s92", vm)
    E("    s_add_u32 s6, s6, 1")
    E("    s_lshl_b32 s6, s6, 24")
    E("    s_mov_b32 s4, s90")
    E("    s_xor_b32 s5, s91, s6")
    E("    v_mov_b32 v244, s4")
    E("    v_mov_b32 v245, s5")
    E(f"    s_sub_u32 s93, s49, {FK_OFF}")
    E(f"    s_lshl_b32 s93, s93, {FSH}")
    vm.wait("kst")
    E("    s_mov_b64 exec, 1")
    E("    buffer_store_dwordx2 v[244:245], off, s[56:59], s93")
    E("    s_mov_b64 exec, -1")
    vm.issue("flag")
    stamp(3, vm)
    if CX == 3:
        E("    s_waitcnt vmcnt(0)")
        E("    s_endpgm")
    if not CE:
        copies()
    E(f"    s_setprio {CPRIO2}")
    stamp(9, vm)
    if CX == 4:
        E("    s_waitcnt vmcnt(0)")
        E("    s_endpgm")

    def slow_stores():
        E("    buffer_store_dwordx4 v[104:107], v13, s[8:11], s48 offen sc0 sc1")
        E("    buffer_store_dwordx4 v[108:111], v13, s[8:11], s43 offen sc0 sc1")

    NF = int(os.environ.get("NF", "12"))
    E(f"    s_mov_b32 s92, {POLL_LIMIT}")
    E("    s_mov_b32 s28, 0")
    E(f"    s_sub_u32 s46, s41, {FK_OFF}")
    E(f"    s_lshl_b32 s46, s46, {FSH}")
    E(f"    s_lshl_b32 s47, s41, {FSH}")
    if P1W:
        E(f"    v_mov_b32 v52, {XCH_OFF}")
        E("    s_cmp_lg_u32 s3, 0")
        E("    s_cbranch_scc1 p1_bar")
        E("    s_mov_b32 exec_hi, 0")
        E(f"    s_mov_b32 s93, {NF}")
        if PS0:
            E(f"    s_sleep {PS0}")
        E("p1_l:")
        E(f"    buffer_load_dwordx2 v[{PA}:{PA+1}], v{VL8}, s[56:59], s46 offen {KSC}")
        E("    s_waitcnt vmcnt(0)")
        E(f"    v_cmp_ne_u64 vcc, s[4:5], v[{PA}:{PA+1}]")
        E("    s_cmp_eq_u64 vcc, 0")
        E("    s_cbranch_scc1 p1_ok")
        E("    s_mov_b64 exec, vcc")
        E(f"    s_sleep {int(os.environ.get('PSK', '2'))}")
        E("    s_sub_u32 s93, s93, 1")
        E("    s_cmp_lg_u32 s93, 0")
        E("    s_cbranch_scc1 p1_l")
        E("p1_ok:")
        E("    s_mov_b64 exec, -1")
        E("    v_mov_b32 v53, s93")
        E("    ds_write_b32 v52, v53")
        E("    s_waitcnt lgkmcnt(0)")
        E("p1_bar:")
        E("    s_barrier")
        E("    ds_read_b32 v53, v52")
        E("    s_waitcnt lgkmcnt(0)")
        E("    v_readfirstlane_b32 s93, v53")
        E("    s_cmp_lg_u32 s93, 0")
        E("    s_cbranch_scc1 pk_fast")
        NF = 1
    E("    s_mov_b32 exec_hi, 0")
    E("pk_l:")
    E(f"    buffer_load_dwordx2 v[{PA}:{PA+1}], v{VL8}, s[56:59], s46 offen {KSC if not P1W else 'sc0 sc1'}")
    E("    s_waitcnt vmcnt(0)")
    E(f"    v_cmp_ne_u64 vcc, s[4:5], v[{PA}:{PA+1}]")
    E("    s_cmp_eq_u64 vcc, 0")
    E("    s_cbranch_scc1 pk_fast")
    E(f"    s_cmp_gt_u32 s92, {POLL_LIMIT - NF}")
    E("    s_cbranch_scc1 pk_next")
    E("    s_cmp_lg_u32 s28, 0")
    E("    s_cbranch_scc1 pk_sb")
    E("    s_mov_b64 exec, -1")
    slow_stores()
    E("    s_waitcnt vmcnt(0)")
    flag_store(vm, "s49")
    E("    s_mov_b32 s28, 1")
    E("    s_mov_b32 exec_hi, 0")
    E("pk_sb:")
    E(f"    buffer_load_dwordx2 v[{PA}:{PA+1}], v{VL8}, s[56:59], s47 offen sc0 sc1")
    E("    s_waitcnt vmcnt(0)")
    E(f"    v_cmp_ne_u64 vcc, s[90:91], v[{PA}:{PA+1}]")
    E("    s_cmp_eq_u64 vcc, 0")
    E("    s_cbranch_scc1 pk_join")
    E("pk_next:")
    E(f"    s_sleep {int(os.environ.get('PSK', '2'))}")
    E("    s_sub_u32 s92, s92, 1")
    E("    s_cmp_lg_u32 s92, 0")
    E("    s_cbranch_scc1 pk_l")
    E("    s_branch pk_join")
    E("pk_fast:")
    E(f"    s_add_u32 s20, s20, {WS_KVA - WS_KVR}")
    E("    s_addc_u32 s21, s21, 0")
    E("    s_and_b32 s21, s21, 0xffff")
    E("pk_join:")
    E("    s_mov_b64 exec, -1")
    stampval(21, "s92", vm)
    stamp(4, vm)
    E("    buffer_load_dwordx4 v[28:31], v6, s[20:23], 0 offen")
    E("    buffer_load_dwordx4 v[32:35], v6, s[20:23], 0 offen offset:2048")
    E("    v_mov_b32 v246, v13")
    if RP >= 0:
        for j in range(8):
            E(f"    v_mov_b32 v{56+j}, v{104+j}")
    E("    s_waitcnt vmcnt(1)")
    E(f"    ds_write_b128 v8, v[28:31] offset:{KV_OFF}")
    E("    s_waitcnt vmcnt(0)")
    E(f"    ds_write_b128 v8, v[32:35] offset:{KV_OFF + 32*KVP}")
    if RP == -1:
        slow_stores()
    if WB == 2:
        E("    s_xor_b32 s36, s50, 7")
        E("    s_or_b32 s36, s36, s3")
        E("    s_cmp_lg_u32 s36, 0")
        E("    s_cbranch_scc1 wb_no")
        E("    buffer_wbl2 sc1")
        E("wb_no:")
    stamp(10)
    vm.q = []
    E("    s_waitcnt lgkmcnt(0)")
    E("    s_barrier")
    stamp(5)
    if CX == 5:
        E("    s_waitcnt vmcnt(0)")
        E("    s_endpgm")
    TR, BR, ACC = 64, 96, 144
    KD, KR, DD = 32, 16, 48
    A0E, A0O, A1E, A1O = ACC, ACC + 16, ACC + 32, ACC + 48

    def tr(d, hi):
        return TR + 8 * (d % 4) + 4 * hi

    def br(d, c, q):
        return BR + 16 * (d % 3) + 8 * c + 4 * q

    def rd(r, a, off):
        return f"    ds_read_b128 v[{r}:{r+3}], v{a} offset:{off}"

    def ra(r, a, t3):
        return f"    ds_read2_b64 v[{r}:{r+3}], v{a} offset0:{4*t3} offset1:{4*t3+1}"

    def reads(d):
        return [[ra(tr(d, 0), 10, 2 * d + 3)],
                [rd(br(d, 1, 0), 15, KVP * d + 32)],
                [f"    v_add_u32 v13, {KVP*d}, v11", "    v_min_u32 v13, v13, v12", rd(br(d, 0, 0), 13, 32)],
                [rd(br(d, 1, 1), 15, KVP * d)],
                [ra(tr(d, 1), 14, 2 * d + 3)],
                [rd(br(d, 0, 1), 13, 0)]]

    def merge(d, hi):
        return [f"    v_mov_b32_dpp v{tr(d-1, hi)+j}, v{tr(d, hi)+j} quad_perm:[0,1,2,3] row_mask:0x5 bank_mask:0xf"
                for j in range(4)]

    if CW:
        E("    s_mov_b32 s92, 64")
        E("cw_l:")
        E("    s_memrealtime s[36:37]")
        E("    s_waitcnt lgkmcnt(0)")
        E("    s_sub_u32 s36, s36, s90")
        E(f"    s_cmp_gt_u32 s36, {CW}")
        E("    s_cbranch_scc1 cw_d")
        E("    s_sleep 2")
        E("    s_sub_u32 s92, s92, 1")
        E("    s_cmp_lg_u32 s92, 0")
        E("    s_cbranch_scc1 cw_l")
        E("cw_d:")
    for jq in range(4):
        E(f"    ds_read_b64 v[{KR+2*jq}:{KR+2*jq+1}], v5 offset:{16*(3-jq)}")
    E(ra(tr(-1, 0), 10, 1))
    E(ra(tr(-1, 1), 14, 1))
    for d in range(2):
        for g in reads(d):
            for t in g:
                E(t)
    kd = [f"    v_lshlrev_b32 v{DD}, 16, v9"]
    for jq in range(4):
        k0 = KD + 4 * jq
        kd += [f"    v_and_b32 v{k0}, s40, v{KR+1+2*jq}",
               f"    v_lshlrev_b32 v{k0+1}, 16, v{KR+1+2*jq}",
               f"    v_and_b32 v{k0+2}, s40, v{KR+2*jq}",
               f"    v_lshlrev_b32 v{k0+3}, 16, v{KR+2*jq}"]
        kd += [f"    v_mul_f32 v{k0+e_}, v{k0+e_}, v{DD}" for e_ in range(4)]
        kd += [f"    v_cvt_pk_bf16_f32 v{k0+e_}, 0, v{k0+e_}" for e_ in range(4)]
    kd += ["    v_lshlrev_b32 v7, 4, v1",
           "    s_lshl_b32 s36, s32, 12",
           "    s_add_u32 s37, s36, s35",
           "    v_add_u32 v50, s37, v7",
           "    s_xor_b32 s36, s36, 4096",
           "    s_add_u32 s37, s36, s35",
           "    v_add_u32 v51, s37, v7",
           "    s_lshl_b32 s37, s32, 11",
           "    s_add_u32 s36, s37, s35",
           f"    s_add_u32 s36, s36, {STG_OFF}",
           "    v_lshlrev_b32 v6, 6, v3",
           "    v_lshl_add_u32 v6, v4, 3, v6",
           "    v_add_u32 v6, s36, v6",
           "    v_add_u32 v8, s36, v7"]
    for d in range(16):
        E(f"    s_waitcnt lgkmcnt({6 if d < 15 else 0})")
        nx = reads(d + 2) if d + 2 < 16 else [[] for _ in range(6)]
        seq = [(A1E, tr(d, 0), br(d, 1, 0)), (A0E, tr(d, 0), br(d, 0, 0)), (A1O, tr(d - 1, 0), br(d, 1, 1)),
               (A1E, tr(d, 1), br(d, 0, 0)), (A0O, tr(d - 1, 0), br(d, 0, 1)), (A1O, tr(d - 1, 1), br(d, 0, 1))]
        for m_, (a, x, y) in enumerate(seq):
            c = "0" if d == 0 and m_ not in (3, 5) else f"v[{a}:{a+15}]"
            E(f"    v_mfma_f32_32x32x16_bf16 v[{a}:{a+15}], v[{x}:{x+3}], v[{y}:{y+3}], {c}")
            if m_ < 2:
                for t in merge(d, m_):
                    E(t)
            for t in nx[m_]:
                E(t)
            if d >= 1 and m_ >= 2:
                for _ in range(2):
                    if kd:
                        E(kd.pop(0))
        if d == 0 and WD_AT == "conv":
            wd_touch(60)
    assert not kd
    stamp(6)
    if CX == 6:
        E("    s_waitcnt vmcnt(0)")
        E("    s_endpgm")

    def fold(dst, e_, o_):
        for j in range(0, 16, 2):
            P2("add", dst + j, e_ + j, o_ + (j + 8) % 16, pk=PKC)

    def send(e_, o_, ke, ko):
        fold(80, e_, o_)
        for jq in range(4):
            E(f"    ds_write_b128 v50, v[{80+4*jq}:{80+4*jq+3}] offset:{XCH_OFF + 1024*jq}")
        fold(64, ke, ko)

    E("    s_cmp_eq_u32 s32, 0")
    E("    s_cbranch_scc1 conv_hw0")
    E("    s_nop 7")
    send(A0E, A0O, A1E, A1O)
    E("    s_branch conv_x")
    E("conv_hw0:")
    E("    s_nop 15")
    E("    s_nop 3")
    send(A1E, A1O, A0E, A0O)
    E("conv_x:")
    E("    s_waitcnt lgkmcnt(0)")
    E("    s_barrier")
    for jq in range(4):
        E(f"    ds_read_b128 v[{80+4*jq}:{80+4*jq+3}], v51 offset:{XCH_OFF + 1024*jq}")
    vm.q = ["pf", "pf"]
    for jq in range(4):
        y = 64 + 4 * jq
        E(f"    s_waitcnt lgkmcnt({3 if jq else 3})" if jq == 0 else f"    s_waitcnt lgkmcnt(3)")
        for e_ in (0, 2):
            P2("add", y + e_, y + e_, 80 + 4 * jq + e_, pk=PKC)
        for e_ in range(4):
            rnd(y + e_)
        for e_ in (0, 2):
            P2("add", y + e_, y + e_, KD + 4 * jq + e_, pk=PKC)
        E(f"    v_cvt_pk_bf16_f32 v{110+2*jq}, v{y}, v{y+1}")
        E(f"    v_cvt_pk_bf16_f32 v{111+2*jq}, v{y+2}, v{y+3}")
        E(f"    ds_write_b64 v6, v[{110+2*jq}:{111+2*jq}] offset:{16*jq}")
    E("    s_waitcnt lgkmcnt(0)")
    E("    ds_read_b128 v[104:107], v8")
    E("    ds_read_b128 v[108:111], v8 offset:1024")
    E("    s_waitcnt lgkmcnt(1)")
    E("    buffer_store_dwordx4 v[104:107], v7, s[24:27], s37 offen sc0 sc1")
    E("    s_waitcnt lgkmcnt(0)")
    E("    buffer_store_dwordx4 v[108:111], v7, s[24:27], s37 offen offset:1024 sc0 sc1")
    vm.issue("yst")
    vm.issue("yst")
    stamp(7, vm)
    E("    s_lshl_b32 s36, s32, 12")
    E("    s_lshl_b32 s37, s30, 3")
    E("    s_add_u32 s47, s36, s37")
    E(f"    s_add_u32 s47, s47, {FY_OFF}")
    E("    s_waitcnt vmcnt(0)")
    flag_store(vm, "s47")
    stamp(8)
    if WB == 1:
        E("    s_or_b32 s36, s50, s3")
        E("    s_cmp_lg_u32 s36, 0")
        E("    s_cbranch_scc1 k_done")
        E("    buffer_wbl2 sc1")
    if RP == -3:
        E("    s_endpgm")
        return
    E("    s_cmp_lg_u32 s28, 0")
    E("    s_cbranch_scc1 k_done")
    if RP == -2:
        E("    v_mov_b32 v13, v246")
        E("    buffer_load_dwordx4 v[104:107], v13, s[12:15], s48 offen sc0 sc1")
        E("    buffer_load_dwordx4 v[108:111], v13, s[12:15], s43 offen sc0 sc1")
        E("    s_waitcnt vmcnt(0)")
        slow_stores()
        E("    s_waitcnt vmcnt(0)")
    flag_store(vm, "s49")
    E("    s_endpgm")


def gen_phase_c():
    vm = VM()
    vm.q = ["hst"] + (["stamp"] if DIAG else [])
    WT = 48
    XT = 232
    NT = 72
    ACC = 88
    HB0 = [152 + 8 * j for j in range(8)] + [64]
    NH = int(os.environ.get("NH", "9"))
    NK = 22
    YSLOT = 0
    RSL = 2
    global VL8
    VL8_saved = VL8
    VL8 = 15
    E("phase_c:")
    E("    v_lshrrev_b32 v3, 5, v1")
    E("    v_and_b32 v5, 15, v1")
    if MAP:
        E("    s_mov_b32 s30, s4")
    else:
        E("    s_lshl_b32 s30, s30, 1")
        E("    s_lshr_b32 s35, s31, 3")
        E("    s_add_u32 s30, s30, s35")
    E("    s_and_b32 s31, s33, 7")
    E("    s_and_b32 s32, s3, 1")
    E("    s_lshr_b32 s33, s3, 1")
    for i in range(NW0):
        if 1 <= i <= NWE:
            continue
        for f in wdma_ops(vm, i):
            f()
    E("    s_lshl_b32 s35, s30, 1")
    E("    s_add_u32 s35, s35, s32")
    E(f"    v_lshlrev_b32 v15, {3+FSH}, v1")
    E("    v_lshrrev_b32 v6, 2, v5")
    E("    v_lshl_add_u32 v6, v3, 3, v6")
    E("    v_lshlrev_b32 v11, 7, v6")
    E("    v_bfe_u32 v6, v1, 4, 1")
    E("    v_lshlrev_b32 v6, 5, v6")
    E("    v_and_b32 v7, 3, v5")
    E("    v_lshl_add_u32 v6, v7, 3, v6")
    E("    v_bfe_u32 v7, v1, 3, 1")
    E("    v_lshlrev_b32 v7, 6, v7")
    E("    v_xor_b32 v6, v6, v7")
    E("    v_add_u32 v11, v11, v6")
    E("    v_add_u32 v11, s37, v11")
    if OWN:
        E("    s_lshl_b32 s38, s33, 6")
        E("    v_xor_b32 v11, s38, v11")
    E("    v_xor_b32 v12, 64, v11")
    E(f"    v_add_u32 v17, {HI}, v11")
    E(f"    v_add_u32 v18, {HI}, v12")
    srd_off(20, 88, 89, WS_H, H_BYTES)
    srd_off(44, 88, 89, WS_YT, S * D * 2)
    srd(52, 84, 85, S * D * 2)
    E("    s_lshr_b32 s49, s30, 4")
    E("    s_lshl_b32 s49, s49, 12")
    E("    s_lshl_b32 s38, s31, 9")
    E("    s_add_u32 s49, s49, s38")
    E("    s_lshl_b32 s38, s33, 8")
    E("    s_add_u32 s49, s49, s38")
    E(f"    s_add_u32 s49, s49, {FY_OFF}")
    E("    v_lshrrev_b32 v0, 2, v1")
    E("    v_lshlrev_b32 v0, 12, v0")
    E("    v_and_b32 v7, 3, v1")
    E("    v_lshl_add_u32 v0, v7, 4, v0")
    E("    s_lshl_b32 s38, s31, 1")
    E("    s_add_u32 s38, s38, s33")
    E("    s_lshl_b32 s38, s38, 17")
    E("    s_lshl_b32 s48, s35, 6")
    E("    s_add_u32 s48, s48, s38")
    E("    v_lshrrev_b32 v7, 2, v5")
    E("    v_lshl_add_u32 v7, v3, 2, v7")
    E("    v_lshlrev_b32 v14, 6, v7")
    E("    v_bfe_u32 v7, v1, 4, 1")
    E("    v_lshl_add_u32 v14, v7, 5, v14")
    E("    v_and_b32 v7, 3, v5")
    E("    v_lshl_add_u32 v14, v7, 3, v14")
    E("    v_add_u32 v14, s37, v14")
    E(f"    s_mul_i32 s42, s30, {2*HB}")
    E("    s_lshl_b32 s38, s51, 10")
    E("    s_add_u32 s42, s42, s38")
    E("    s_mov_b32 s29, s42")
    if REV:
        E("    s_lshl_b32 s38, s33, 10")
        E("    s_sub_u32 s42, s42, s38")
        E("    s_add_u32 s42, s42, 18*1024")
    E(f"    s_add_u32 s43, s42, {HB}")
    E("    s_mov_b32 s38, s42")
    E("    s_cmp_eq_u32 s32, 1")
    E("    s_cselect_b32 s42, s43, s42")
    E("    s_cselect_b32 s43, s38, s43")
    E("    s_lshl_b32 s36, s30, 8")
    E(f"    s_add_u32 s36, s36, {FH_OFF}")
    masks = []
    for lo, hi in (((0, 3), (4, 7), (8, 11), (11, 15)) if MAP == 2 else ((0, 3), (3, 7), (7, 10), (10, 15))):
        m16 = ((1 << (hi + 1)) - 1) & ~((1 << lo) - 1)
        masks.append(m16 | (m16 << 16))
    E(f"    s_mov_b32 s50, {masks[0]:#x}")
    for w in range(1, 4):
        E(f"    s_cmp_eq_u32 s3, {w}")
        E(f"    s_cselect_b32 s50, {masks[w]:#x}, s50")
    E("    s_mov_b32 s51, 0")
    E("    s_mul_i32 s38, s31, 44")
    E("    v_add_u32 v6, s38, v1")
    E("    v_cmp_le_u32 vcc, 176, v6")
    E("    v_subrev_u32 v7, 176, v6")
    E("    v_cndmask_b32 v6, v6, v7, vcc")
    E("    s_cmp_lt_u32 s3, 2")
    E("    s_cselect_b32 s38, 8, 0")
    E("    s_add_u32 s38, s38, 167")
    E("    v_min_u32 v6, s38, v6")
    E("    v_lshlrev_b32 v6, 7, v6")
    E(f"    v_mov_b32 v7, {HB}")
    E("    v_cndmask_b32 v7, 0, v7, vcc")
    E("    v_add_u32 v6, v6, v7")
    hreg = {}

    def hload(i, r):
        hreg[i] = r
        if REV:
            if i % 4 == 0 and i:
                E(f"    s_sub_u32 s42, s42, {4096 if i < 20 else 2048}")
                E(f"    s_sub_u32 s43, s43, {4096 if i < 20 else 2048}")
            off = (3 - i % 4) * 1024 if i < 20 else (21 - i) * 1024
            if i == NK - 1:
                E("    s_lshl_b32 s38, s33, 10")
                E("    s_add_u32 s42, s42, s38")
                E("    s_add_u32 s43, s43, s38")
        else:
            if i % 4 == 0 and i:
                E("    s_add_u32 s42, s42, 4096")
                E("    s_add_u32 s43, s43, 4096")
            off = (i % 4) * 1024
            if i == NK - 1:
                assert off == 1024
                E("    s_cmp_lt_u32 s3, 2")
                E("    s_cselect_b32 s38, 1024, 0")
                E("    s_add_u32 s42, s42, s38")
                E("    s_add_u32 s43, s43, s38")
                off = 0
        for e_ in range(2):
            E(f"    buffer_load_dwordx4 v[{r+4*e_}:{r+4*e_+3}], v8, s[20:23], s{42+e_} offen offset:{off}")
            vm.issue(("h", i))

    def early():
        vm.wait("el")
        E("    s_mov_b64 exec, s[34:35]")
        E(f"    v_cmp_ne_u64 vcc, s[90:91], v[{PB}:{PB+1}]")
        E("    s_mov_b64 exec, -1")
        E("    s_cmp_eq_u64 vcc, 0")
        E("    s_cbranch_scc1 el_ok")
        q = list(vm.q)
        poll(vm, "s36", "s[34:35]")
        vm.q = q
        E("el_ok:")
        for i in range(NE):
            hload(i, HB0[i])

    if NE:
        E("    s_lshl_b32 s34, s3, 2")
        E("    s_lshl_b32 s34, 0x80008, s34")
        E("    s_mov_b32 s35, 0")
        E(f"    s_lshl_b32 s93, s36, {FSH}")
        E("    s_mov_b64 exec, s[34:35]")
        E(f"    buffer_load_dwordx2 v[{PB}:{PB+1}], v{VL8}, s[56:59], s93 offen sc0 sc1")
        E("    s_mov_b64 exec, -1")
        vm.issue("el")

    def xn_tile():
        T = ACC
        for d in range(8):
            E(f"    v_lshlrev_b32 v{T+2*d}, 16, v{XT+d}")
            E(f"    v_and_b32 v{T+2*d+1}, s40, v{XT+d}")
        for j in range(16):
            E(f"    v_add_f32 v{T+j}, v{T+j}, v{GR2}")
        for j in range(16):
            E(f"    v_cvt_pk_bf16_f32 v{T+j}, 0, v{T+j}")
        for j in range(16):
            E(f"    v_mul_f32 v{T+j}, v{T+j}, v{GR2+1}")
        for d in range(8):
            E(f"    v_cvt_pk_bf16_f32 v{NT+d}, v{T+2*d}, v{T+2*d+1}")

    if XNE:
        xn_tile()
    vm.wait("hst")
    flag_store(vm, "s39")
    if GP3AT == 0:
        E(f"    s_setprio {GPRIO3}")
    stamp(10, vm)
    if NE and EAT == 0:
        early()
    for i in range(NW0, 10):
        for f in wdma_ops(vm, i):
            f()
    if not XNE:
        xn_tile()
    for i in range(NPRE):
        vm.wait(("w", i))
        wread(WREG[i], i)
    for i in range(NPRE):
        E(f"    s_waitcnt lgkmcnt({min(15, 4*(NPRE-1-i))})")
        for f in wdma_ops(vm, 10 + i):
            f()
    if NE and EAT == 1:
        early()
    if GP3AT == 1:
        E(f"    s_setprio {GPRIO3}")
    stamp(11, vm)
    if PP:
        poll2(vm, "s36", "s[50:51]")
    else:
        poll(vm, "s36", "s[50:51]")
    stampval(21, "s92", vm)
    stamp(12, vm)
    if GP4 == 0:
        E("    s_setprio 3")

    if int(os.environ.get("HT", "1")):
        E("    s_mov_b32 exec_hi, 0xfff")
        E("    buffer_load_dword v7, v6, s[20:23], s29 offen")
        E("    s_mov_b64 exec, -1")
        vm.issue("pf")
    for i in range(NE, NH):
        hload(i, HB0[i])
    hn = NH

    def wsrc(i):
        return WREG[i] if i < NPRE else WT + 8 * (i % 2)

    def y_dma():
        for j in range(2):
            E(f"    s_add_u32 s38, s48, {16*4096*j}")
            E(f"    s_add_u32 m0, s37, {YSLOT*8192 + 1024*j}")
            E("    s_nop 0")
            E("    buffer_load_dwordx4 v0, s[44:47], s38 offen lds")

    FYC = int(os.environ.get("FYC", "16"))
    for i in range(NK):
        if i == NK - 1:
            E("    s_cmp_ge_u32 s3, 2")
            E("    s_cbranch_scc1 pc_skip")
        vm.wait(("h", i))
        if GP4 == i + 1:
            E("    s_setprio 3")
        if i in (0, 4, 8):
            stamp({0: 2, 4: 29, 8: 30}[i], vm)
        if i >= NPRE:
            E("    s_waitcnt lgkmcnt(0)")
        if NPRE <= i + 1 < NK:
            vm.wait(("w", i + 1))
            wread(WT + 8 * ((i + 1) % 2), wslot(i + 1))
        h = hreg[i]
        w = wsrc(i)
        for wd in range(2):
            for wm in range(2):
                a = ACC + 16 * (2 * wd + wm)
                c = "0" if i == 0 else f"v[{a}:{a+15}]"
                E(f"    v_mfma_f32_32x32x16_bf16 v[{a}:{a+15}], v[{w+4*wd}:{w+4*wd+3}], v[{h+4*wm}:{h+4*wm+3}], {c}")
        for r in [h] + ([w] if i < NPRE else []):
            if hn < NK:
                hload(hn, r)
                hn += 1
        if NPRE <= i < 10:
            for f in wdma_ops(vm, i + 10):
                f()
        if i in (11, 12):
            for f in wdma_ops(vm, i + 9):
                f()
        if i == FYI:
            E(f"    s_lshl_b32 s93, s49, {FSH}")
            E("    s_mov_b32 exec_hi, 0")
            E(f"    buffer_load_dwordx2 v[{PA}:{PA+1}], v{VL8}, s[56:59], s93 offen sc0 sc1")
            E("    s_mov_b64 exec, -1")
            vm.issue("fy")
        if i == FYC:
            vm.wait("fy")
            E("    s_mov_b32 exec_hi, 0")
            E(f"    v_cmp_ne_u64 vcc, s[90:91], v[{PA}:{PA+1}]")
            E("    s_mov_b64 exec, -1")
            E("    s_cmp_eq_u64 vcc, 0")
            E("    s_cselect_b32 s28, 1, 0")
            E("    s_cbranch_scc0 fy_no")
            y_dma()
            E("fy_no:")
            stamp(14, vm)
    E("pc_skip:")
    stamp(13)
    E("    s_waitcnt vmcnt(0) lgkmcnt(0)")
    YR = 32
    PS = 152
    RS = 216
    TT = 64
    for a in range(1, 4):
        E(f"    s_xor_b32 s36, s3, {a}")
        E("    s_lshl_b32 s38, s36, 14")
        E("    s_add_u32 s38, s38, s37")
        E(f"    v_add_u32 v{8+a}, s38, v8")
        E("    s_lshl_b32 s36, s36, 11")
        E("    s_lshl_b32 s38, s3, 14")
        E("    s_add_u32 s38, s38, s36")
        E(f"    v_add_u32 v{15+a}, s38, v8")

    def y_read():
        for q in range(4):
            E(f"    ds_read_b64_tr_b16 v[{YR+2*q}:{YR+2*q+1}], v14 offset:{YSLOT*8192 + q*512}")

    def acc_out(fill):
        per = (len(fill) + 10) // 11
        for a in range(1, 4):
            for jq in range(4):
                r = ACC + 16 * a + 4 * jq
                E(f"    ds_write_b128 v{8+a}, v[{r}:{r+3}] offset:{(RSL + jq//2)*8192 + (jq%2)*1024}")
                if fill and a == 1 and jq == 0:
                    E("    s_waitcnt lgkmcnt(1)")
                for _ in range(per):
                    if fill:
                        E(fill.pop(0))
        assert not fill
        E("    s_waitcnt lgkmcnt(0)")
        E("    s_barrier")
        for a in range(1, 4):
            for jq in range(4):
                r = PS + 16 * a + 4 * jq
                E(f"    ds_read_b128 v[{r}:{r+3}], v{15+a} offset:{(RSL + jq//2)*8192 + (jq%2)*1024}")

    def a_term():
        o = []
        for q in range(4):
            t = TT
            xs = [RS + 4 * q + e_ for e_ in range(4)]
            ns = [t + e_ for e_ in range(4)]
            ys = [t + 4 + e_ for e_ in range(4)]
            for (dst, src) in ((xs, XT + 2 * q), (ns, NT + 2 * q), (ys, YR + 2 * q)):
                o.append(f"    v_lshlrev_b32 v{dst[0]}, 16, v{src}")
                o.append(f"    v_and_b32 v{dst[1]}, s40, v{src}")
                o.append(f"    v_lshlrev_b32 v{dst[2]}, 16, v{src+1}")
                o.append(f"    v_and_b32 v{dst[3]}, s40, v{src+1}")
            for e_ in (0, 2):
                o.append(f"    v_pk_mul_f32 v[{ns[e_]}:{ns[e_]+1}], v[{ns[e_]}:{ns[e_]+1}], v[{ys[e_]}:{ys[e_]+1}]")
            for e_ in range(4):
                o.append(f"    v_cvt_pk_bf16_f32 v{ns[e_]}, 0, v{ns[e_]}")
            for e_ in (0, 2):
                o.append(f"    v_pk_add_f32 v[{xs[e_]}:{xs[e_]+1}], v[{xs[e_]}:{xs[e_]+1}], v[{ns[e_]}:{ns[e_]+1}]")
            for e_ in range(4):
                o.append(f"    v_cvt_pk_bf16_f32 v{xs[e_]}, 0, v{xs[e_]}")
        return o

    def b_sum():
        E("    s_waitcnt lgkmcnt(8)")
        for j in range(0, 16, 2):
            E(f"    v_pk_add_f32 v[{PS+j}:{PS+j+1}], v[{ACC+j}:{ACC+j+1}], v[{PS+16+j}:{PS+16+j+1}]")
        E("    s_waitcnt lgkmcnt(0)")
        for j in range(0, 16, 2):
            E(f"    v_pk_add_f32 v[{PS+32+j}:{PS+32+j+1}], v[{PS+32+j}:{PS+32+j+1}], v[{PS+48+j}:{PS+48+j+1}]")
        for j in range(0, 16, 2):
            E(f"    v_pk_add_f32 v[{PS+j}:{PS+j+1}], v[{PS+j}:{PS+j+1}], v[{PS+32+j}:{PS+32+j+1}]")
        for j in range(16):
            E(f"    v_cvt_pk_bf16_f32 v{PS+j}, 0, v{PS+j}")

    E("    s_cmp_eq_u32 s28, 0")
    E("    s_cbranch_scc1 fin_slow")
    y_read()
    acc_out(a_term())
    b_sum()
    E("    s_branch fin_out")
    E("fin_slow:")
    acc_out([])
    b_sum()
    if 'g' not in os.environ.get('XP', '') and not CX:
        poll(vm, "s49", "0xffffffff")
    stamp(15)
    y_dma()
    E("    s_waitcnt vmcnt(0)")
    y_read()
    E("    s_waitcnt lgkmcnt(0)")
    for t in a_term():
        E(t)
    E("fin_out:")
    for jq in range(4):
        a = PS + 4 * jq
        xs = [RS + 4 * jq + e_ for e_ in range(4)]
        for e_ in (0, 2):
            E(f"    v_pk_add_f32 v[{xs[e_]}:{xs[e_]+1}], v[{xs[e_]}:{xs[e_]+1}], v[{a+e_}:{a+e_+1}]")
        o = TT + 2 * jq
        E(f"    v_cvt_pk_bf16_f32 v{o}, v{xs[0]}, v{xs[1]}")
        E(f"    v_cvt_pk_bf16_f32 v{o+1}, v{xs[2]}, v{xs[3]}")
        E(f"    buffer_store_dwordx2 v[{o}:{o+1}], v23, s[52:55], 0 offen offset:{16*jq}")
    if DIAG or LITE:
        E("    s_waitcnt vmcnt(0)")
    stamp(31)
    E("    s_endpgm")
    VL8 = VL8_saved


def gen_kernel():
    E(f".globl {KNAME}")
    E(".p2align 8")
    E(f".type {KNAME},@function")
    E(f"{KNAME}:")
    E("    s_cmp_ge_u32 s2, 512")
    E("    s_cbranch_scc1 k_done")
    E("    s_load_dwordx16 s[64:79], s[0:1], 0")
    E("    s_load_dwordx8 s[80:87], s[0:1], 64")
    E("    s_load_dwordx2 s[88:89], s[0:1], 96")
    E("    s_memrealtime s[90:91]")
    E("    s_mov_b32 s40, 0xffff0000")
    E("    v_and_b32 v1, 63, v0")
    E("    v_lshrrev_b32 v2, 6, v0")
    E(f"    v_lshlrev_b32 v{VL8}, {3+FSH}, v1")
    E("    v_readfirstlane_b32 s3, v2")
    E("    s_waitcnt lgkmcnt(0)")
    stamp_init()
    stamp(0)
    srd_off(56, 88, 89, WS_FLAG, FLAG_BYTES)
    srd(60, 86, 87, 256)
    E("    s_cmp_lt_u32 s2, 256" if CFIRST else "    s_cmp_ge_u32 s2, 256")
    E("    s_cbranch_scc1 c_type")
    gen_gtype()
    gen_ctype()
    E("k_done:")
    E("    s_endpgm")


def main():
    hdr = open("parallel_sum__ssm_conv_h3__glu_gated_bilinear__prompt.s.ref").read().splitlines()
    for l in hdr:
        if l.startswith("; Override") or l.startswith("; grid=") or l.startswith("; @launch"):
            continue
        if not l.startswith(";"):
            break
        E(l)
    E(f"; @launch grid=(512,1,1) block=(256,1,1) lds={LDS_BYTES}")
    E('.amdgcn_target "amdgcn-amd-amdhsa--gfx950"')
    E(".text")
    gen_kernel()
    E('.section .rodata,"a"')
    E(".p2align 6")
    E(f".amdhsa_kernel {KNAME}")
    E("  .amdhsa_next_free_vgpr 256")
    E("  .amdhsa_next_free_sgpr 102")
    E("  .amdhsa_accum_offset 256")
    E("  .amdhsa_group_segment_fixed_size 0")
    E("  .amdhsa_kernarg_size 104")
    E("  .amdhsa_user_sgpr_count 2")
    E("  .amdhsa_user_sgpr_kernarg_segment_ptr 1")
    E("  .amdhsa_system_sgpr_workgroup_id_x 1")
    E(".end_amdhsa_kernel")
    path = sys.argv[1] if len(sys.argv) > 1 else "fused.s"
    open(path, "w").write("\n".join(out) + "\n")
    print("wrote", path, len(out), "lines")


main()
```
